```python
import torch

def _softmax(x, axis=-1):
    return torch.softmax(x, dim=axis)
def _gelu(x):
    return torch.nn.functional.gelu(x, approximate="tanh")
def _silu(x):
    return torch.nn.functional.silu(x)
def _sigmoid(x):
    return torch.sigmoid(x)
def _layernorm(x, axis=-1, eps=1e-5):
    m = x.mean(dim=axis, keepdim=True)
    v = x.var(dim=axis, keepdim=True, unbiased=False)
    return (x - m) / torch.sqrt(v + eps)
def _scatter_add(tgt, idx, src, axis=0):
    return tgt.clone().index_add_(axis, idx, src)
def _segment_sum(src, seg, n):
    out = torch.zeros((n,) + src.shape[1:], dtype=src.dtype)
    return out.index_add_(0, seg, src)
def _pad(x, pw):
    flat = tuple(v for pair in reversed(pw) for v in pair)
    return torch.nn.functional.pad(x, flat)

kernel_name = 'parallel_sum__compressed_kv_cla__moe_arch_mod__prompt'

def setup_inputs():

    _w = (lambda a: (lambda t: t.to(torch.bfloat16) if t.is_floating_point() else t)(torch.as_tensor(a)))
    def _A_setup():
        B, H, Sq, Sk, D, M = 1, 32, 2048, 2048, 128, 640
        Dc = 4 * D
        return {
            "x": _w((lambda *s: torch.randn(*s, dtype=torch.bfloat16) * 0.05)(B, Sq, M)),
            "c_kv": _w((lambda *s: torch.randn(*s, dtype=torch.bfloat16) * 1.6)(B, Sk, Dc)),
            "w_q": _w((lambda *s: torch.randn(*s, dtype=torch.bfloat16) * 0.8)(M, H, D) * (M ** -0.5)),
            "w_uk": _w((lambda *s: torch.randn(*s, dtype=torch.bfloat16) * 0.8)(Dc, H, D) * (Dc ** -0.5)),
            "w_uv": _w((lambda *s: torch.randn(*s, dtype=torch.bfloat16) * 1.6)(Dc, H, D) * (Dc ** -0.5)),
            "w_o": _w((lambda *s: torch.randn(*s, dtype=torch.bfloat16) * 1.6)(H, D, M) * ((H * D) ** -0.5)),
        }
    _A_in = _A_setup()

    def _B_setup():
        B, S, D, F, C = 1, 2048, 640, 1728, 8
        return {
            "x": _w((lambda *s: torch.randn(*s, dtype=torch.bfloat16) * 0.05)(B, S, D)),
            "w_r": _w((lambda *s: torch.randn(*s, dtype=torch.bfloat16) * 0.05)(D)),
            "w_gate": _w((lambda *s: torch.randn(*s, dtype=torch.bfloat16) * 0.05)(D, F)),
            "w_up": _w((lambda *s: torch.randn(*s, dtype=torch.bfloat16) * 0.05)(D, F)),
            "w_down": _w((lambda *s: torch.randn(*s, dtype=torch.bfloat16) * 0.05)(F, D)),
        }
    _B_in = _B_setup()

    return {
        "A_x": _A_in["x"],
        "A_c_kv": _A_in["c_kv"],
        "A_w_q": _A_in["w_q"],
        "A_w_uk": _A_in["w_uk"],
        "A_w_uv": _A_in["w_uv"],
        "A_w_o": _A_in["w_o"],
        "B_x": _B_in["x"],
        "B_w_r": _B_in["w_r"],
        "B_w_gate": _B_in["w_gate"],
        "B_w_up": _B_in["w_up"],
        "B_w_down": _B_in["w_down"],
    }

def reference(A_x, A_c_kv, A_w_q, A_w_uk, A_w_uv, A_w_o, B_x, B_w_r, B_w_gate, B_w_up, B_w_down):
    def _A_ref(x, c_kv, w_q, w_uk, w_uv, w_o):
        B, Sq, M = x.shape[0], x.shape[1], x.shape[2]
        Sk = c_kv.shape[1]
        H, D = w_q.shape[1], w_q.shape[2]
        q = torch.einsum("bqm,mhd->bhqd", x, w_q)
        k = torch.einsum("bkc,chd->bhkd", c_kv, w_uk)
        v = torch.einsum("bkc,chd->bhkd", c_kv, w_uv)
        scores = torch.einsum("bhqd,bhkd->bhqk", q, k) * (D ** -0.5)
        off = Sk - Sq
        qi = torch.arange(Sq)[:, None]
        kj = torch.arange(Sk)[None, :]
        cmask = kj <= (qi + off)
        scores = torch.where(cmask[None, None], scores, -1e9)
        p = _softmax(scores, axis=-1)
        ctx = torch.einsum("bhqk,bhkd->bhqd", p, v)
        return torch.einsum("bhqd,hdm->bqm", ctx, w_o)

    def _B_ref(x, w_r, w_gate, w_up, w_down):
        B, S, D = x.shape
        C = 8
        r = x @ w_r
        idx = torch.argsort(-r, axis=-1)[:, :C]
        idx_e = (lambda x, n, axis: torch.repeat_interleave(x, n, dim=axis))(idx.reshape(B, C, 1), D, axis=2)
        x_sel = (lambda x, i, axis: torch.take_along_dim(x, i, dim=axis))(x, idx_e, axis=1)
        g = _silu(x_sel @ w_gate)
        u = x_sel @ w_up
        y = (g * u) @ w_down
        r_sel = _sigmoid((lambda x, i, axis: torch.take_along_dim(x, i, dim=axis))(r, idx, axis=1))
        y = y * r_sel.reshape(B, C, 1)
        b_off = (torch.arange(B) * S).reshape(B, 1)
        flat_idx = (idx + b_off).reshape(B * C)
        zero = (x * 0.0).reshape(B * S, D)
        upd = _scatter_add(zero, flat_idx, y.reshape(B * C, D), axis=0)
        return x + upd.reshape(B, S, D)

    x = A_x
    xn = _layernorm(x, axis=-1)
    return x + _A_ref(xn, A_c_kv, A_w_q, A_w_uk, A_w_uv, A_w_o) + _B_ref(xn, B_w_r, B_w_gate, B_w_up, B_w_down)
```

```python
import re

def vr(b, n=1): return f"v{b}" if n == 1 else f"v[{b}:{b+n-1}]"
def ar(b, n=1): return f"a{b}" if n == 1 else f"a[{b}:{b+n-1}]"
def sr(b, n=1): return f"s{b}" if n == 1 else f"s[{b}:{b+n-1}]"

class Asm:
    def __init__(self):
        self.lines = []
    def __call__(self, *ls):
        for l in ls:
            if isinstance(l, (list, tuple)):
                self(*l)
            else:
                for x in l.split("\n"):
                    x = x.strip()
                    if x: self.lines.append(x)
    def label(self, n): self.lines.append(n + ":")
    def text(self):
        return "\n".join((l if l.endswith(":") or l.startswith(".") else "  " + l) for l in self.lines)

def kernel_text(name, body):
    return f".globl {name}\n.p2align 8\n.type {name},@function\n{name}:\n{body}\n"

def desc_text(name, nvgpr, accum, nsgpr=102):
    return f'''.section .rodata,"a"
.p2align 6
.amdhsa_kernel {name}
  .amdhsa_next_free_vgpr {nvgpr}
  .amdhsa_next_free_sgpr {nsgpr}
  .amdhsa_accum_offset {accum}
  .amdhsa_group_segment_fixed_size 0
  .amdhsa_kernarg_size 112
  .amdhsa_user_sgpr_count 2
  .amdhsa_user_sgpr_kernarg_segment_ptr 1
  .amdhsa_system_sgpr_workgroup_id_x 1
  .amdhsa_float_denorm_mode_32 3
.end_amdhsa_kernel
.text
'''

_reg_re = re.compile(r'^(-|abs\()?([vas])(\d+|\[(\d+):(\d+)\])\)?$')
def regs_of(tok):
    tok = tok.strip()
    if tok == "vcc": return {("s", "vcc")}
    if tok == "m0": return {("s", "m0")}
    if tok == "exec": return {("s", "exec")}
    m = _reg_re.match(tok)
    if not m: return set()
    k = m.group(2)
    if m.group(4) is not None:
        return {(k, i) for i in range(int(m.group(4)), int(m.group(5)) + 1)}
    return {(k, int(m.group(3)))}

def split_ops(line):
    line = line.split(";")[0].strip()
    parts = line.split(None, 1)
    mn = parts[0]
    ops = []
    if len(parts) > 1:
        depth = 0; cur = ""
        for ch in parts[1]:
            if ch == "[": depth += 1
            if ch == "]": depth -= 1
            if ch == "," and depth == 0:
                ops.append(cur.strip()); cur = ""
            else: cur += ch
        ops.append(cur.strip())
        last = ops[-1].split()
        if last: ops[-1] = last[0]
    return mn, ops

TRANS = ("v_exp_f32", "v_log_f32", "v_rcp_f32", "v_rsq_f32", "v_sqrt_f32", "v_sin_f32", "v_cos_f32")

class Ins:
    def __init__(self, line):
        self.line = line
        mn, ops = split_ops(line)
        self.mn = mn
        self.kind = "other"
        self.w = set(); self.r = set()
        self.ra = set(); self.rc = set()
        self.states = 1
        R = [regs_of(o) for o in ops]
        if mn.startswith("v_mfma"):
            self.kind = "mfma"
            self.passes = 8 if "32x32" in mn else 4
            self.w = R[0]; self.ra = R[1] | R[2]; self.rc = R[3]; self.r = self.ra | self.rc
        elif mn.startswith("v_"):
            self.kind = "valu"
            self.trans = mn.replace("_e32", "").replace("_e64", "") in TRANS
            self.dpp = "dpp" in mn
            self.perm = mn.startswith("v_permlane")
            if mn.startswith("v_cmp"):
                self.w = R[0]; self.r = set().union(*R[1:])
            elif self.perm:
                self.w = R[0] | R[1]; self.r = R[0] | R[1]
            elif mn.startswith(("v_add_co", "v_sub_co", "v_addc_co")):
                self.w = R[0] | R[1]; self.r = set().union(*R[2:])
            else:
                self.w = R[0]; self.r = set().union(*R[1:]) if len(R) > 1 else set()
                if mn.startswith(("v_fmac", "v_dot2c")) or self.dpp: self.r |= R[0]
            self.lane = mn.startswith(("v_readlane", "v_readfirstlane"))
        elif mn.startswith(("buffer_", "global_")):
            self.kind = "vmem"
            self.lds = line.split(";")[0].rstrip().endswith(" lds")
            allr = set().union(*R) if R else set()
            if "load" in mn and not self.lds:
                self.w = R[0]; self.r = set().union(*R[1:])
            else:
                self.r = allr
                if self.lds: self.r = self.r | {("s", "m0")}
            self.widestore = ("store" in mn and ("x4" in mn or "x3" in mn))
            self.sdata = (R[0] if mn.startswith("buffer_") else R[1]) if self.widestore else set()
        elif mn.startswith("ds_"):
            self.kind = "ds"
            if "read" in mn or "permute" in mn or "swizzle" in mn:
                self.w = R[0]; self.r = set().union(*R[1:])
            else:
                self.r = set().union(*R)
        elif mn.startswith("s_"):
            self.kind = "salu"
            if mn == "s_nop": self.states = int(ops[0], 0) + 1
            elif mn.startswith(("s_cmp", "s_cbranch", "s_branch", "s_waitcnt", "s_barrier", "s_setprio", "s_endpgm", "s_sleep", "s_setpc")):
                self.r = set().union(*R) if R else set()
            else:
                self.w = R[0] if R else set(); self.r = set().union(*R[1:]) if len(R) > 1 else set()

def check_hazards(lines, name=""):
    ins = [Ins(l) for l in lines if not (l.endswith(":") or l.startswith("."))]
    errs = []
    for j, c in enumerate(ins):
        dist = 0
        for i in range(j - 1, max(j - 24, -1), -1):
            p = ins[i]
            need = 0; why = ""
            def upd(n, w):
                nonlocal need, why
                if n > need: need = n; why = w
            vw = {x for x in p.w if x[0] in "va"}
            sw = {x for x in p.w if x[0] == "s"}
            if p.kind == "valu":
                if c.kind == "mfma" and (vw & c.r): upd(2, "valu->mfma")
                if c.kind == "valu":
                    if p.trans and not c.trans and (vw & c.r): upd(1, "trans->valu")
                    if c.dpp and (vw & c.r): upd(2, "valu->dpp")
                    if c.perm and (vw & c.r): upd(2, "valu->permlane")
                    if c.lane and (vw & c.r): upd(1, "valu->readlane")
                    if sw & c.r: upd(2, "valu sgpr->valu")
                    if ("s", "vcc") in sw and c.mn.startswith("v_cndmask") : upd(2, "vcc->cndmask")
                if c.kind == "vmem" and (sw & c.r): upd(5, "valu sgpr->vmem")
            if p.kind == "mfma":
                big = p.passes == 8
                if c.kind == "mfma":
                    if p.w & c.ra: upd(12 if big else 8, "mfma D->mfma A/B")
                    if (p.w & c.rc) and not (p.w == c.rc and p.passes == c.passes): upd(10 if big else 6, "mfma D->mfma C overlap")
                    if (p.w & c.w) and not (p.w & c.rc) and p.passes != c.passes: upd(12 if big else 8, "mfma WAW diff")
                if c.kind in ("valu", "vmem", "ds") and (p.w & (c.r | c.w)): upd(12 if big else 8, "mfma D->valu/mem")
                if c.kind == "valu" and (p.rc & c.w): upd(7 if big else 3, "mfma C WAR")
            if p.kind == "salu" and ("s", "m0") in p.w and c.kind == "vmem" and getattr(c, "lds", False): upd(1, "m0->lds dma")
            if p.kind == "vmem" and p.widestore and (p.sdata & c.w): upd(2 if c.kind == "valu" else 1, "store data WAR")
            if need > dist:
                errs.append(f"{name}: need {need} have {dist} [{why}]: '{p.line}' -> '{c.line}'")
            dist += p.states
            if p.mn in ("s_branch", "s_setpc_b64", "s_endpgm"): break
    return errs

def weave(mf, sc, mem, va):
    out = []
    for i, m in enumerate(mf):
        out.append(m)
        out += sc.get(i, []) + mem.get(i, []) + va.get(i, [])
    return out
```

```python
from asmlib import *

XNF = 0x0
RKEY = 0x280000
SEL = 0x282000
YP = 0x290000
WOF = 0x400000
KFO = 0x1000000
VFO = 0x2000000
CTX = 0x3000000
WS_BYTES = 0x4000000
MF = "v_mfma_f32_16x16x32_bf16"

def srd(a, d, lo, hi, size):
    a(f"s_mov_b32 s{d}, {lo}", f"s_mov_b32 s{d+1}, {hi}", f"s_mov_b32 s{d+2}, {size}", f"s_mov_b32 s{d+3}, 0x20000")

def allreduce32_add(a, v, t):
    for m in ("quad_perm:[1,0,3,2]", "quad_perm:[2,3,0,1]", "row_half_mirror", "row_mirror"):
        a("s_nop 1", f"v_add_f32_dpp v{v}, v{v}, v{v} {m} row_mask:0xf bank_mask:0xf")
    a(f"v_mov_b32 v{t}, v{v}", "s_nop 1", f"v_permlane16_swap_b32 v{v}, v{t}", f"v_add_f32 v{v}, v{v}, v{t}")

def bf16r(a, v):
    a(f"v_cvt_pk_bf16_f32 v{v}, v{v}, v{v}", f"v_and_b32 v{v}, 0xffff0000, v{v}")

def gen_k1(name):
    a = Asm()
    sW, sH, sP = 20, 21, 22
    sC, sWt, sWS, sX, sWR, sWO = 32, 36, 40, 44, 48, 52
    sM0C, sM0W, sOC, sOW, sIT = 24, 25, 26, 27, 28
    vL = 1
    vCo = 4
    vWo = 8
    vCa = 12
    vWa = 13
    vL16 = 15
    vT = 16
    FA = 32; FB = 96
    a("s_cmp_ge_u32 s2, 256", f"s_cbranch_scc1 {name}_end")
    a("s_load_dwordx4 s[4:7], s[0:1], 0", "s_load_dwordx4 s[8:11], s[0:1], 24", "s_load_dwordx2 s[12:13], s[0:1], 40",
      "s_load_dwordx2 s[14:15], s[0:1], 56", "s_load_dwordx2 s[16:17], s[0:1], 104")
    a(f"v_lshrrev_b32 v2, 6, v0", f"v_and_b32 v{vL}, 63, v0", f"v_readfirstlane_b32 s{sW}, v2")
    a(f"s_and_b32 s{sH}, s2, 7", f"s_lshl_b32 s{sH}, s{sH}, 2", "s_lshr_b32 s23, s2, 3", "s_and_b32 s23, s23, 3",
      f"s_add_u32 s{sH}, s{sH}, s23", f"s_lshr_b32 s{sP}, s2, 5")
    a(f"v_lshlrev_b32 v{vL16}, 4, v{vL}")
    a(f"v_lshrrev_b32 v{vT}, 2, v{vL}",
      f"v_lshrrev_b32 v{vT+1}, 5, v{vL}",
      f"v_mul_u32_u24 v{vT+1}, 3, v{vT+1}",
      f"v_and_b32 v{vT+2}, 3, v{vL}",
      f"v_xor_b32 v{vT+1}, v{vT+1}, v{vT+2}",
      f"v_lshlrev_b32 v{vT+1}, 4, v{vT+1}",
      f"v_lshl_add_u32 v{vCo}, v{vT}, 10, v{vT+1}",
      f"s_lshl_b32 s23, s{sW}, 16",
      f"v_add_u32 v{vCo}, s23, v{vCo}")
    for j in range(1, 4):
        a(f"v_add_u32 v{vCo+j}, {j*(16384-1024)}, v{vCo}")
    a(f"v_and_b32 v{vT}, 3, v{vT}",
      f"v_lshrrev_b32 v{vT+1}, 4, v{vL}",
      f"v_lshlrev_b32 v{vT+1}, 6, v{vT+1}",
      f"v_lshl_add_u32 v{vT}, v{vT}, 13, v{vT+1}",
      f"s_and_b32 s23, s{sW}, 1", "s_lshl_b32 s23, s23, 17",
      f"v_add_u32 v{vT}, s23, v{vT}",
      f"v_lshl_add_u32 v{vWo}, v{vT+2}, 4, v{vT}",
      f"v_xor_b32 v{vT+2}, 2, v{vT+2}",
      f"v_lshl_add_u32 v{vWo+2}, v{vT+2}, 4, v{vT}",
      f"v_add_u32 v{vWo+1}, {32768-1024}, v{vWo}",
      f"v_add_u32 v{vWo+3}, {3*(32768-1024)}, v{vWo+2}",
      f"v_add_u32 v{vWo+2}, {2*(32768-1024)}, v{vWo+2}")
    a("s_waitcnt lgkmcnt(0)")
    a(f"s_lshl_b32 s23, s{sP}, 18", "s_add_u32 s6, s6, s23", "s_addc_u32 s7, s7, 0")
    srd(a, sC, "s6", "s7", 262144)
    a(f"s_cmp_ge_u32 s{sW}, 2", "s_cselect_b32 s8, s10, s8", "s_cselect_b32 s9, s11, s9",
      f"s_lshl_b32 s23, s{sH}, 8", "s_add_u32 s8, s8, s23", "s_addc_u32 s9, s9, 0")
    srd(a, sWt, "s8", "s9", 0)
    a(f"s_sub_u32 s{sWt+2}, {512*8192}, s23")
    srd(a, sWS, "s16", "s17", WS_BYTES)
    srd(a, sX, "s4", "s5", 2048*1280)
    srd(a, sWR, "s14", "s15", 1280)
    srd(a, sWO, "s12", "s13", 4096*1280)
    a(f"s_lshl_b32 s{sM0C}, s{sW}, 12", f"s_mov_b32 s{sOC}, 0", f"s_mov_b32 s{sOW}, 0")

    def dma_stage_lines():
        preC = [f"s_mov_b32 m0, s{sM0C}"]
        lc = [f"buffer_load_dwordx4 v{vCo+j}, s[{sC}:{sC+3}], s{sOC} offen offset:{j*1024} lds" for j in range(4)]
        preW = [f"s_add_u32 m0, s{sM0C}, 16384"]
        lw = [f"buffer_load_dwordx4 v{vWo+j}, s[{sWt}:{sWt+3}], s{sOW} offen offset:{j*1024} lds" for j in range(4)]
        post = [f"s_add_u32 s{sOC}, s{sOC}, 64", f"s_add_u32 s{sOW}, s{sOW}, {32*8192}",
                f"s_add_u32 s{sM0C}, s{sM0C}, 32768", f"s_and_b32 s{sM0C}, s{sM0C}, 0x1ffff"]
        return preC, lc, preW, lw, post
    def dma_stage():
        preC, lc, preW, lw, post = dma_stage_lines()
        a(preC, "s_nop 0", lc, preW, "s_nop 0", lw, post)

    dma_stage()
    XR = 160; WR = 172; F = 184
    vU, vRow, vXo, vXo3, vWro = 208, 209, 210, 211, 212
    vS, vT2, vMean, vMb, vRc, vAcc = 213, 214, 215, 216, 217, 218
    a(f"v_and_b32 v{vU}, 31, v{vL}", f"v_lshrrev_b32 v{vRow}, 5, v{vL}",
      "s_lshl_b32 s23, s2, 2", f"s_add_u32 s23, s23, s{sW}", "s_lshl_b32 s23, s23, 1",
      f"v_add_u32 v{vRow}, s23, v{vRow}",
      f"v_lshlrev_b32 v{vWro}, 4, v{vU}",
      f"v_mul_u32_u24 v{vXo}, 1280, v{vRow}", f"v_add_u32 v{vXo}, v{vXo}, v{vWro}",
      f"v_cmp_gt_u32 s[56:57], 16, v{vU}",
      f"v_mov_b32 v{vXo3}, 0x40000000", "s_nop 0",
      f"v_cndmask_b32 v{vXo3}, v{vXo3}, v{vXo}, s[56:57]")
    a(f"buffer_load_dwordx4 {vr(XR,4)}, v{vXo}, s[{sX}:{sX+3}], 0 offen",
      f"buffer_load_dwordx4 {vr(XR+4,4)}, v{vXo}, s[{sX}:{sX+3}], 0 offen offset:512",
      f"buffer_load_dwordx4 {vr(XR+8,4)}, v{vXo3}, s[{sX}:{sX+3}], 0 offen offset:1024")
    for i in range(3):
        a(f"buffer_load_dwordx4 {vr(WR+4*i,4)}, v{vWro}, s[{sWR}:{sWR+3}], 0 offen offset:{512*i}")
    for i in range(3): dma_stage()
    sNG, sS = 29, 30
    a(f"s_and_b32 s{sNG}, s2, 1", f"s_lshl_b32 s{sNG}, s{sNG}, 2", f"s_add_u32 s{sNG}, s{sNG}, s{sW}",
      f"s_lshr_b32 s{sS}, s2, 1",
      f"s_mul_i32 s23, s{sS}, {32*1280}", f"s_mul_i32 s31, s{sNG}, 160", "s_add_u32 s23, s23, s31",
      f"s_mul_i32 s31, s{sW}, 5120", "s_add_u32 s31, s31, 131072")
    for q in range(5):
        a(f"v_add_u32 v{vT}, {64*q}, v{vL}",
          f"v_mul_u32_u24 v{vT+1}, 6554, v{vT}", f"v_lshrrev_b32 v{vT+1}, 16, v{vT+1}",
          f"v_mul_u32_u24 v{vT+1}, {1280-160}, v{vT+1}",
          f"v_lshl_add_u32 v{vT+1}, v{vT}, 4, v{vT+1}",
          f"s_add_u32 m0, s31, {q*1024}", "s_nop 0",
          f"buffer_load_dwordx4 v{vT+1}, s[{sWO}:{sWO+3}], s23 offen lds")
    for i in range(4): a(f"v_mov_b32 v{vT+4+i}, 0")
    a(f"v_and_b32 v{vT}, 15, v{vL}", f"v_lshrrev_b32 v{vT+1}, 4, v{vL}",
      f"v_lshrrev_b32 v{vT+2}, 3, v{vT}", f"v_mul_u32_u24 v{vT+2}, 3, v{vT+2}",
      f"v_xor_b32 v{vT+2}, v{vT+2}, v{vT+1}", f"v_lshlrev_b32 v{vT+2}, 4, v{vT+2}",
      f"v_lshl_add_u32 v{vCa}, v{vT}, 6, v{vT+2}",
      f"s_and_b32 s23, s{sW}, 1", "s_lshl_b32 s23, s23, 13", f"v_add_u32 v{vCa}, s23, v{vCa}")
    for i in range(16):
        a(f"v_mfma_f32_32x32x16_bf16 {ar(16*i,16)}, {vr(vT+4,4)}, {vr(vT+4,4)}, 0")
    a(f"v_lshrrev_b32 v{vT+2}, 2, v{vT}",
      f"v_lshlrev_b32 v{vT+2}, 6, v{vT+2}",
      f"v_lshl_add_u32 v{vT+2}, v{vT+1}, 11, v{vT+2}",
      f"v_and_b32 v{vT+3}, 1, v{vL}", f"v_lshl_add_u32 v{vT+2}, v{vT+3}, 3, v{vT+2}",
      f"v_bfe_u32 v{vT+3}, v{vL}, 1, 1",
      f"v_and_b32 v{vT+1}, 1, v{vT+1}", f"v_lshl_or_b32 v{vT+3}, v{vT+1}, 1, v{vT+3}",
      f"s_lshr_b32 s23, s{sW}, 1", "s_lshl_b32 s23, s23, 13", "s_add_u32 s23, s23, 16384",
      f"v_add_u32 v{vT+2}, s23, v{vT+2}",
      f"v_lshl_add_u32 v{vWa}, v{vT+3}, 4, v{vT+2}",
      f"v_xor_b32 v{vWa+1}, 32, v{vWa}")
    a("s_waitcnt vmcnt(29)")
    for i in range(12):
        a(f"v_lshlrev_b32 v{F+2*i}, 16, v{XR+i}", f"v_and_b32 v{F+2*i+1}, 0xffff0000, v{XR+i}")
    a(f"v_add_f32 v{vS}, v{F}, v{F+1}", f"v_add_f32 v{vT2}, v{F+2}, v{F+3}")
    for i in range(4, 24, 2):
        a(f"v_add_f32 v{vS}, v{vS}, v{F+i}", f"v_add_f32 v{vT2}, v{vT2}, v{F+i+1}")
    a(f"v_add_f32 v{vS}, v{vS}, v{vT2}")
    allreduce32_add(a, vS, vT2)
    a(f"v_mul_f32 v{vMean}, 0x3acccccd, v{vS}")
    a(f"v_mov_b32 v{vAcc}, 0", f"v_mov_b32 v{vS}, 0")
    for i in range(24):
        t = vT + (i % 4)
        acc = vAcc if i < 16 else vS
        a(f"v_sub_f32 v{t}, v{F+i}, v{vMean}", f"v_fmac_f32 v{acc}, v{t}, v{t}")
    a(f"v_cndmask_b32 v{vS}, 0, v{vS}, s[56:57]", f"v_add_f32 v{vS}, v{vS}, v{vAcc}")
    allreduce32_add(a, vS, vT2)
    a(f"v_mul_f32 v{vS}, 0x3acccccd, v{vS}")
    bf16r(a, vS)
    a(f"v_add_f32 v{vS}, 0x3727c5ac, v{vS}")
    bf16r(a, vS)
    a(f"v_sqrt_f32 v{vS}, v{vS}", f"v_mov_b32 v{vMb}, v{vMean}")
    bf16r(a, vS)
    a(f"v_rcp_f32 v{vRc}, v{vS}")
    bf16r(a, vMb)
    a(f"v_mov_b32 v{vAcc}, 0")
    for i in range(12):
        f0, f1 = F + 2*i, F + 2*i + 1
        a(f"v_sub_f32 v{f0}, v{f0}, v{vMb}", f"v_sub_f32 v{f1}, v{f1}, v{vMb}",
          f"v_cvt_pk_bf16_f32 v{vT}, v{f0}, v{f1}",
          f"v_lshlrev_b32 v{f0}, 16, v{vT}", f"v_and_b32 v{f1}, 0xffff0000, v{vT}",
          f"v_mul_f32 v{f0}, v{f0}, v{vRc}", f"v_mul_f32 v{f1}, v{f1}, v{vRc}",
          f"v_cvt_pk_bf16_f32 v{XR+i}, v{f0}, v{f1}",
          f"v_lshlrev_b32 v{f0}, 16, v{XR+i}", f"v_and_b32 v{f1}, 0xffff0000, v{XR+i}",
          f"v_lshlrev_b32 v{vT+1}, 16, v{WR+i}", f"v_and_b32 v{vT+2}, 0xffff0000, v{WR+i}",
          f"v_fmac_f32 v{vAcc}, v{f0}, v{vT+1}", f"v_fmac_f32 v{vAcc}, v{f1}, v{vT+2}")
    a(f"v_lshrrev_b32 v{vT}, 4, v{vRow}", f"v_mul_u32_u24 v{vT}, 20480, v{vT}",
      f"v_and_b32 v{vT+1}, 15, v{vRow}", f"v_lshl_add_u32 v{vT}, v{vT+1}, 4, v{vT}",
      f"v_lshl_add_u32 v{vXo}, v{vU}, 8, v{vT}",
      f"v_add_u32 v{vT+1}, 8192, v{vXo}", f"v_add_u32 v{vT+2}, 16384, v{vXo}",
      f"v_mov_b32 v{vT+3}, 0x40000000", f"v_cndmask_b32 v{vT+2}, v{vT+3}, v{vT+2}, s[56:57]")
    a(f"buffer_store_dwordx4 {vr(XR,4)}, v{vXo}, s[{sWS}:{sWS+3}], 0 offen",
      f"buffer_store_dwordx4 {vr(XR+4,4)}, v{vT+1}, s[{sWS}:{sWS+3}], 0 offen",
      f"buffer_store_dwordx4 {vr(XR+8,4)}, v{vT+2}, s[{sWS}:{sWS+3}], 0 offen")
    allreduce32_add(a, vAcc, vT2)
    bf16r(a, vAcc)
    a(f"v_ashrrev_i32 v{vT2}, 31, v{vAcc}", f"v_or_b32 v{vT2}, 0x80000000, v{vT2}", f"v_xor_b32 v{vAcc}, v{vAcc}, v{vT2}",
      f"v_and_b32 v{vAcc}, 0xffff0000, v{vAcc}", f"v_sub_u32 v{vT2}, 0xffff, v{vRow}", f"v_or_b32 v{vAcc}, v{vAcc}, v{vT2}",
      f"v_lshlrev_b32 v{vT2}, 2, v{vRow}", f"v_add_u32 v{vT2}, {RKEY}, v{vT2}",
      f"v_cmp_eq_u32 vcc, 0, v{vU}", "s_nop 1", f"v_cndmask_b32 v{vT2}, v{vT+3}, v{vT2}, vcc",
      f"buffer_store_dword v{vAcc}, v{vT2}, s[{sWS}:{sWS+3}], 0 offen")
    a("s_barrier")
    a(f"s_mov_b32 s{sIT}, 0", f"s_cmp_ge_u32 s{sW}, 2", f"s_cbranch_scc1 {name}_roleV")

    def reads(role, buf, off):
        CF = (FB if role == "K" else FA) + 32 * buf
        WF = (FA if role == "K" else FB) + 32 * buf
        rc = [f"ds_read_b128 {vr(CF+4*i,4)}, v{vCa} offset:{off + i*1024}" for i in range(8)]
        rw = []
        for cb in range(8):
            for t in range(2):
                rw.append(f"ds_read_b64_tr_b16 {vr(WF+4*cb+2*t,2)}, v{vWa+(cb&1)} offset:{off + t*1024 + (cb>>1)*256}")
        return rc, rw

    for role in ("K", "V"):
        if role == "V": a.label(f"{name}_roleV")
        rc, rw = reads(role, 0, 0)
        a(rc, rw, "s_waitcnt lgkmcnt(0)")
        a(".p2align 6")
        a.label(f"{name}_loop{role}")
        for half in range(2):
            mf = [f"{MF} {ar((i*8+j)*4,4)}, {vr(FA+32*half+4*i,4)}, {vr(FB+32*half+4*j,4)}, {ar((i*8+j)*4,4)}" for i in range(8) for j in range(8)]
            sc = {}; mem = {}; va = {}
            sc[0] = ["s_waitcnt vmcnt(16)"]; sc[1] = ["s_barrier"]
            rc, rw = reads(role, 1 - half, 32768 if half == 0 else 0)
            preC, lc, preW, lw, post = dma_stage_lines()
            ds = []
            for i in range(8): ds += [rw[2*i], rw[2*i+1], rc[i]]
            g = 2
            for i, x in enumerate(ds):
                mem[2 + 2*i] = [x]
            sc[2] = preC
            for j in range(4): mem[3 + 6*j] = [lc[j]]
            sc[26] = preW
            for j in range(4): mem[27 + 6*j] = [lw[j]]
            for j, x in enumerate(post): sc[48 + j] = [x]
            if half == 0:
                va[52] = [f"v_xor_b32 v{vCa}, 0x10000, v{vCa}"]
                va[53] = [f"v_xor_b32 v{vWa}, 0x10000, v{vWa}"]
                va[54] = [f"v_xor_b32 v{vWa+1}, 0x10000, v{vWa+1}"]
                sc[63] = ["s_waitcnt lgkmcnt(0)"]
            else:
                sc[54] = [f"s_add_u32 s{sIT}, s{sIT}, 1"]
                sc[55] = [f"s_cmp_ge_u32 s{sIT}, 6"]
                sc[56] = [f"s_cselect_b32 s{sC+2}, 0, s{sC+2}"]
                sc[57] = [f"s_cselect_b32 s{sWt+2}, 0, s{sWt+2}"]
                sc[61] = [f"s_cmp_lt_u32 s{sIT}, 8"]
                sc[62] = ["s_waitcnt lgkmcnt(0)"]
                sc[63] = [f"s_cbranch_scc1 {name}_loop{role}"]
            a(weave(mf, sc, mem, va))
        if role == "K":
            a("s_mov_b32 s60, 2048", "s_mov_b32 s61, 8192", f"s_mov_b32 s62, {KFO}", f"s_branch {name}_epi")
        else:
            a("s_mov_b32 s60, 8192", "s_mov_b32 s61, 2048", f"s_mov_b32 s62, {VFO}")
    a.label(f"{name}_epi")
    a(f"s_lshl_b32 s23, s{sH}, 19", "s_add_u32 s62, s62, s23", f"s_lshl_b32 s23, s{sP}, 16", "s_add_u32 s62, s62, s23",
      f"s_and_b32 s23, s{sW}, 1", "s_lshl_b32 s23, s23, 15", "s_add_u32 s62, s62, s23", "s_nop 4")
    k = 0
    for t in range(4):
        for j in range(8):
            T = 32 + (k % 8) * 12; k += 1
            if j == 0: a("s_mov_b32 s63, s62", "s_add_u32 s62, s62, s60")
            elif j % 2 == 0: a("s_add_u32 s63, s63, s61")
            for r in range(4): a(f"v_accvgpr_read_b32 v{T+4+r}, a{((2*t)*8+j)*4+r}")
            for r in range(4): a(f"v_accvgpr_read_b32 v{T+8+r}, a{((2*t+1)*8+j)*4+r}")
            for r in range(4): a(f"v_cvt_pk_bf16_f32 v{T+r}, v{T+4+2*r}, v{T+5+2*r}")
            a(f"buffer_store_dwordx4 {vr(T,4)}, v{vL16}, s[{sWS}:{sWS+3}], s63 offen offset:{(j&1)*1024}")
    a(f"v_lshrrev_b32 v{vT}, 2, v{vL}", f"v_mul_u32_u24 v{vT}, 160, v{vT}", f"v_and_b32 v{vT+1}, 3, v{vL}",
      f"v_lshl_add_u32 v{vT}, v{vT+1}, 3, v{vT}", f"v_add_u32 v{vT}, s31, v{vT}")
    for cb in range(5):
        for t in range(2):
            a(f"ds_read_b64_tr_b16 {vr(160+4*cb+2*t,2)}, v{vT} offset:{t*16*160 + cb*32}")
    a(f"s_lshl_b32 s23, s{sNG}, 7", f"s_add_u32 s23, s23, s{sS}", "s_mul_i32 s23, s23, 5120", f"s_add_u32 s23, s23, {WOF}",
      "s_add_u32 s31, s23, 4096", "s_waitcnt lgkmcnt(0)")
    for cb in range(5):
        a(f"buffer_store_dwordx4 {vr(160+4*cb,4)}, v{vL16}, s[{sWS}:{sWS+3}], s{23 if cb < 4 else 31} offen offset:{(cb%4)*1024}")
    a.label(f"{name}_end")
    a("s_endpgm")
    return a
```

```python
from asmlib import *
from gen_k1 import XNF, RKEY, SEL, YP, WOF, KFO, VFO, CTX, WS_BYTES, MF, srd, bf16r

LDS = 131072
vL, vL16, vKV, vNI, vX = 1, 2, 3, 4, 5
vWo = 8
vWa = 12
vT = 16
Q = 32
S = 96
P = 160
NM = 192
E = 208
TS = 224
LS = 228
QACC = 96
O = 0
KF = 128
VF = 160
XR = 192
sW, sH, sI = 20, 21, 22
sWq, sXn, sWS, sK, sV = 32, 36, 40, 44, 48
sKm, sVm, sKo, sVo, sCnt, sNSS = 24, 25, 26, 27, 28, 29
sXo = 64
sMask = 68
sRet, sRet2 = 76, 78
sThr = 81

def xreduce(a, op, v, t):
    a(f"v_mov_b32 v{t}, v{v}", "s_nop 1", f"v_permlane16_swap_b32 v{v}, v{t}", f"{op} v{v}, v{v}, v{t}",
      f"v_mov_b32 v{t}, v{v}", "s_nop 1", f"v_permlane32_swap_b32 v{v}, v{t}", f"{op} v{v}, v{v}, v{t}")

def mask_ops(X, par):
    Sc = S + 32 * X + 16 * par
    o = []
    for r in range(4):
        o.append(f"v_cndmask_b32 v{Sc+r}, v{vNI}, v{Sc+r}, s[{sMask+2*r}:{sMask+2*r+1}]")
    for r in range(4):
        o.append(f"v_mov_b32 v{Sc+4+r}, v{vNI}")
    for r in range(4):
        o.append(f"v_cndmask_b32 v{Sc+12+r}, v{vNI}, v{Sc+12+r}, s[{sMask+2*r}:{sMask+2*r+1}]")
    return o

def sm_ops(X, par):
    Sc = S + 32 * X + 16 * par; Pc = P + 16 * X + 8 * par; e = E + 8 * X
    exps = [f"v_exp_f32 v{e+(i%8)}, v{Sc+i}" for i in range(16)]
    pl = []
    for i in range(16):
        t = TS + 2 * X + i // 8
        aa = e + ((i - 1) % 8); bb = e + (i % 8)
        if i % 8 == 1: pl.append((i, f"v_add_f32 v{t}, v{aa}, v{bb}"))
        elif i % 8 > 1: pl.append((i, f"v_add_f32 v{t}, v{t}, v{bb}"))
        if i % 2 == 1: pl.append((i, f"v_cvt_pk_bf16_f32 v{Pc+i//2}, v{aa}, v{bb}"))
    return exps, pl

class K2:
    def __init__(self, name):
        self.name = name
        self.a = Asm()
        self.stubs = []
        self.nstub = 0

    def period(self, par, st, dma=True, bar=None, kread=True, c0=False, tail_sc=None):
        odd = par == 1
        qs = [X for X in range(2) if "q" in st[X]]
        vs = [X for X in range(2) if "v" in st[X]]
        ss = [X for X in range(2) if "s" in st[X]]
        mf = []; use = []
        for f in range(8):
            ks, kb = f // 2, f % 2
            for X in qs:
                for qb in range(2):
                    d = S + 32 * X + 16 * (1 - par) + qb * 8 + kb * 4
                    c = vr(d, 4) if ks > 0 else ("0" if c0 else vr(NM + 8 * X + 4 * qb, 4))
                    mf.append(f"{MF} {vr(d,4)}, {ar(KF+4*f,4)}, {vr(Q+32*X+8*ks+4*qb,4)}, {c}"); use.append(("K", f))
        nq = len(mf)
        for db in range(8):
            for X in vs:
                for qb in range(2):
                    d = O + 64 * X + 8 * db + 4 * qb
                    mf.append(f"{MF} {ar(d,4)}, {ar(VF+4*db,4)}, {vr(P+16*X+8*(1-par)+4*qb,4)}, {ar(d,4)}"); use.append(("V", db))
        n = len(mf); nv = n - nq
        hoff = 0 if odd else 8192
        vrd = [f"ds_read_b128 {ar(VF+4*i,4)}, v{vKV} offset:{16384+hoff+i*1024}" for i in range(8)] if vs else []
        krd = [f"ds_read_b128 {ar(KF+4*i,4)}, v{vKV} offset:{hoff+i*1024}" for i in range(8)] if kread else []
        pre = []
        sc = {g: [] for g in range(n)}; mem = {g: [] for g in range(n)}; va = {g: [] for g in range(n)}
        first = 0
        if bar is not None:
            if nq > 0:
                sc[0].append(f"s_waitcnt vmcnt({bar})"); sc[1].append("s_barrier"); first = 2
            else:
                pre += [f"s_waitcnt vmcnt({bar})", "s_barrier"]
        vpos = {}; kpos = {}
        if vrd:
            if nq == 0:
                pre += vrd
                for i in range(8): vpos[i] = -1
            else:
                step = nq // 8
                for i in range(8):
                    g = max(first, i * step)
                    if step == 2 and first == 2: g = [2, 2, 4, 6, 8, 10, 12, 14][i]
                    mem[g].append(vrd[i]); vpos[i] = g
        if krd:
            if nv > 0:
                step = nv // 8
                for i in range(8):
                    g = nq + i * step
                    mem[g].append(krd[i]); kpos[i] = g
            else:
                step = nq // 8
                for i in range(8):
                    g = (i + 1) * step - 1
                    mem[g].append(krd[i]); kpos[i] = g
        if dma:
            srdn = sK if odd else sV; so = sKo if odd else sVo; sm = sKm if odd else sVm
            step = n // 4
            base = 6 if step >= 12 else 4
            gs = [base + j * step for j in range(4)]
            if n == 32: gs = [4, 10, 18, 24]
            sc[gs[0] - 1].append(f"s_mov_b32 m0, s{sm}")
            for j in range(4):
                mem[gs[j]].append(f"buffer_load_dwordx4 v{vL16}, s[{srdn}:{srdn+3}], s{so} offen offset:{j*1024} lds")
            post = [f"s_add_u32 s{so}, s{so}, 16384", f"s_add_u32 s{sm}, s{sm}, 32768", f"s_and_b32 s{sm}, s{sm}, 0x1ffff"]
            for j, x in enumerate(post): sc[gs[3] + 1 + j].append(x)
        head = []
        for X in ss:
            if "m" in st[X]: head += mask_ops(X, par)
        exps = []; pl = []
        for X in ss:
            e, p = sm_ops(X, par)
            off = len(exps)
            exps += e; pl += [(i + off, l) for i, l in p]
        pl = [(-1, l) for l in head] + pl
        nhead = len(head)
        if ss:
            ts = [TS + 2 * X + qb for X in ss for qb in range(2)]
            last = len(exps) - 1
            if len(ts) == 2:
                pl.append((last, f"v_max_f32 v{vX}, v{ts[0]}, v{ts[1]}"))
            else:
                pl.insert(len(pl) - 6, (last - 4, f"v_max3_f32 v{vX}, v{ts[0]}, v{ts[1]}, v{ts[2]}"))
                pl.append((last, f"v_max_f32 v{vX}, v{vX}, v{ts[3]}"))
            pl.append((last, f"v_cmp_lt_f32 vcc, s{sThr}, v{vX}"))
        kvupd = []
        if not odd:
            kvupd = [f"v_add_u32 v{vKV}, 32768, v{vKV}", f"v_and_b32 v{vKV}, 0x1ffff, v{vKV}"]
        ng = n - 1
        if nq == 0 and ss:
            ng += 1
        memcost = [4 * len(mem[g]) for g in range(n)]
        total = sum(memcost[:n-1]) + 8 * len(exps) + 4 * len(pl)
        ei = 0; pi = 0; used = 0
        exp_gap = {}
        def ready_pl(g, lastline_is_exp):
            if pi >= len(pl): return False
            need = pl[pi][0]
            if need >= ei: return False
            if need == ei - 1 and lastline_is_exp: return False
            return True
        def ready_exp():
            if ei >= len(exps): return False
            if pi < nhead: return False
            for k in range(pi, len(pl)):
                if pl[k][0] <= ei - 7 and pl[k][0] >= 0 and (pl[k][0] // 16 == ei // 16): return False
                if pl[k][0] > ei - 7: break
            return True
        slots = ([-1] if (nq == 0 and ss) else []) + list(range(n - 1))
        tau = max(8.0, total / max(1, n - 1)) if not (nq == 0 and ss) else max(8.0, (total - 120) / max(1, n - 1))
        target = 0.0
        for g in slots:
            lst = pre if g < 0 else va[g]
            target += 120 if g < 0 else tau
            c = 0 if g < 0 else memcost[g]
            used += c
            le = False
            lastgap = (g == n - 2)
            while True:
                rem = target - used
                if not lastgap and rem < 2 and c >= 8: break
                if not lastgap and c > 0 and rem < 2: break
                pickexp = ready_exp() and (c == 0 or not ready_pl(g, le) or (rem >= 7 and (len(exps) - ei) * 2 > (n - 1 - g)))
                if pickexp:
                    lst.append(exps[ei]); ei += 1; used += 8; c += 8; le = True
                elif ready_pl(g, le):
                    lst.append(pl[pi][1]); pi += 1; used += 4; c += 4; le = False
                elif lastgap and pi < len(pl) and le:
                    lst.append("s_nop 0"); le = False
                else: break
        assert ei == len(exps) and pi == len(pl), (ei, pi, len(exps), len(pl), st)
        order = [("K", f, -2) for f in range(4, 8)]
        evs = []
        for i in range(8):
            if i in vpos: evs.append((vpos[i], 0, "V", i))
        for i in range(8):
            if i in kpos: evs.append((kpos[i], 1, "N", i))
        evs.sort()
        allops = order + [(k, i, g) for (g, _, k, i) in evs]
        def cnt_after(kind, idx, gap):
            pos = [j for j, o in enumerate(allops) if o[0] == kind and o[1] == idx][0]
            assert allops[pos][2] < gap, (kind, idx, gap, st)
            return sum(1 for o in allops[pos+1:] if o[2] < gap)
        seen = set()
        for m, u in enumerate(use):
            if u in seen: continue
            seen.add(u)
            kind, f = u
            if f % 4 != 0: continue
            if kind == "K" and f == 0: continue
            if m == 0:
                pre.append(f"s_waitcnt lgkmcnt({cnt_after(kind, f+3, 0)})")
            else:
                sc[m-1].append(f"s_waitcnt lgkmcnt({cnt_after(kind, f+3, m-1)})")
        if krd:
            g = n - 2 if nv > 0 else n - 1
            sc[g].append(f"s_waitcnt lgkmcnt({cnt_after('N', 3, g)})")
        if tail_sc:
            free = [g for g in range(n // 2, n - 2) if not sc[g]]
            for x, g in zip(tail_sc, free[-len(tail_sc):]): sc[g].append(x)
        if ss:
            k = self.nstub; self.nstub += 1
            sc[n-1].append(f"s_cbranch_vccnz {self.name}_stub{k}")
            sc[n-1].append(f"{self.name}_back{k}:")
            self.stubs.append((k, ss, par))
            for X in ss:
                for qb in range(2):
                    va[n-1].append(f"v_add_f32 v{LS+2*X+qb}, v{LS+2*X+qb}, v{TS+2*X+qb}")
        va[n-1] += kvupd
        return pre + weave(mf, sc, mem, va)

    def rare(self, X, par):
        a = self.a
        Sc = S + 32 * X + 16 * par; Sn = S + 32 * X + 16 * (1 - par)
        a.label(f"{self.name}_rare{X}{par}")
        a("s_nop 7")
        d = [vT, vT + 1]
        for qb in range(2):
            s0 = Sc + 8 * qb
            a(f"v_max3_f32 v{d[qb]}, v{s0}, v{s0+1}, v{s0+2}", f"v_max3_f32 v{d[qb]}, v{d[qb]}, v{s0+3}, v{s0+4}",
              f"v_max3_f32 v{d[qb]}, v{d[qb]}, v{s0+5}, v{s0+6}", f"v_max3_f32 v{d[qb]}, v{d[qb]}, v{s0+7}, 0")
            xreduce(a, "v_max_f32", d[qb], vT + 2)
            for r in range(8):
                a(f"v_sub_f32 v{s0+r}, v{s0+r}, v{d[qb]}", f"v_sub_f32 v{Sn+8*qb+r}, v{Sn+8*qb+r}, v{d[qb]}")
        a(f"s_call_b64 s[{sRet2}:{sRet2+1}], {self.name}_resc{X}")
        exps, pl = sm_ops(X, par)
        pi = 0
        for i in range(16):
            a(exps[i])
            while pi < len(pl) and pl[pi][0] < i:
                a(pl[pi][1]); pi += 1
        a("s_nop 0")
        a([l for _, l in pl[pi:]])
        a("s_nop 1", f"s_setpc_b64 s[{sRet}:{sRet+1}]")

    def resc(self, X):
        a = self.a
        a.label(f"{self.name}_resc{X}")
        for qb in range(2):
            for r in range(4):
                a(f"v_sub_f32 v{NM+8*X+4*qb+r}, v{NM+8*X+4*qb+r}, v{vT+qb}")
            a(f"v_exp_f32 v{vT+2+qb}, -v{vT+qb}")
        a("s_nop 0")
        for qb in range(2):
            a(f"v_mul_f32 v{LS+2*X+qb}, v{LS+2*X+qb}, v{vT+2+qb}")
        for db in range(8):
            for qb in range(2):
                o = O + 64 * X + 8 * db + 4 * qb
                for r in range(4): a(f"v_accvgpr_read_b32 v{vT+4+r}, a{o+r}")
                for r in range(4): a(f"v_mul_f32 v{vT+4+r}, v{vT+4+r}, v{vT+2+qb}")
                for r in range(4): a(f"v_accvgpr_write_b32 a{o+r}, v{vT+4+r}")
        a(f"s_setpc_b64 s[{sRet2}:{sRet2+1}]")

    def gen(self):
        a = self.a; name = self.name
        a("s_cmp_ge_u32 s2, 256", f"s_cbranch_scc1 {name}_end")
        a("s_load_dwordx2 s[4:5], s[0:1], 16", "s_load_dwordx2 s[16:17], s[0:1], 104")
        a(f"v_lshrrev_b32 v{vT}, 6, v0", f"v_and_b32 v{vL}, 63, v0", f"v_readfirstlane_b32 s{sW}, v{vT}")
        a(f"s_and_b32 s{sH}, s2, 7", f"s_lshl_b32 s{sH}, s{sH}, 2", "s_lshr_b32 s23, s2, 3", "s_and_b32 s23, s23, 3",
          f"s_add_u32 s{sH}, s{sH}, s23", f"s_lshr_b32 s{sI}, s2, 5")
        a(f"v_lshlrev_b32 v{vL16}, 4, v{vL}")
        a(f"v_bfe_u32 v{vT}, v{vL}, 2, 2", f"v_lshrrev_b32 v{vT+1}, 4, v{vL}", f"v_lshlrev_b32 v{vT+1}, 6, v{vT+1}",
          f"v_lshl_add_u32 v{vT}, v{vT}, 13, v{vT+1}", f"s_lshl_b32 s23, s{sW}, 17", f"v_add_u32 v{vT}, s23, v{vT}",
          f"v_and_b32 v{vT+2}, 3, v{vL}",
          f"v_lshl_add_u32 v{vWo}, v{vT+2}, 4, v{vT}", f"v_xor_b32 v{vT+2}, 2, v{vT+2}",
          f"v_lshl_add_u32 v{vWo+2}, v{vT+2}, 4, v{vT}",
          f"v_add_u32 v{vWo+1}, {32768-1024}, v{vWo}", f"v_add_u32 v{vWo+3}, {3*(32768-1024)}, v{vWo+2}",
          f"v_add_u32 v{vWo+2}, {2*(32768-1024)}, v{vWo+2}")
        a(f"s_lshl_b32 s23, s{sI}, 2", f"s_add_u32 s23, s23, s{sW}", f"s_mul_i32 s{sXo}, s23, {2*20480}",
          f"s_add_u32 s{sXo+1}, s{sXo}, 20480",
          f"s_sub_u32 s30, 15, s{sI}", "s_lshl_b32 s23, s30, 2", f"s_add_u32 s23, s23, s{sW}", f"s_mul_i32 s{sXo+2}, s23, {2*20480}",
          f"s_add_u32 s{sXo+3}, s{sXo+2}, 20480")
        a("s_waitcnt lgkmcnt(0)")
        a(f"s_lshl_b32 s23, s{sH}, 8", "s_add_u32 s4, s4, s23", "s_addc_u32 s5, s5, 0")
        srd(a, sWq, "s4", "s5", 0)
        a(f"s_sub_u32 s{sWq+2}, {640*8192}, s23")
        srd(a, sXn, "s16", "s17", 2048 * 1280)
        srd(a, sWS, "s16", "s17", WS_BYTES)
        a(f"s_lshl_b32 s{sKm}, s{sW}, 12", f"s_add_u32 s{sKm}, s{sKm}, 16384", f"s_mov_b32 s{sKo}, 0")
        def wdma():
            pre = [f"s_mov_b32 m0, s{sKm}"]
            l = [f"buffer_load_dwordx4 v{vWo+j}, s[{sWq}:{sWq+3}], s{sKo} offen offset:{j*1024} lds" for j in range(4)]
            post = [f"s_add_u32 s{sKo}, s{sKo}, {64*8192}", f"s_add_u32 s{sKm}, s{sKm}, 32768", f"s_and_b32 s{sKm}, s{sKm}, 0x1ffff"]
            return pre, l, post
        def xload(slot, qb):
            return f"buffer_load_dwordx4 {ar(XR+16*slot+4*qb,4)}, v{vL16}, s[{sXn}:{sXn+3}], s{sXo+qb} offen offset:{slot*1024}"
        for tok in ("W", "X0", "W", "X1", "X2", "W", "X3", "W"):
            if tok == "W":
                pre, l, post = wdma(); a(pre, "s_nop 0", l, post)
            else:
                a([xload(int(tok[1]), qb) for qb in range(4)])
        for qb in range(4): a(f"s_add_u32 s{sXo+qb}, s{sXo+qb}, 4096")
        a(f"s_lshl_b32 s23, s{sH}, 19", f"s_add_u32 s23, s23, {KFO}", "s_add_u32 s6, s16, s23", "s_addc_u32 s7, s17, 0",
          f"s_add_u32 s8, s6, {VFO-KFO}", "s_addc_u32 s9, s7, 0",
          f"s_sub_u32 s23, 16, s{sI}", "s_lshl_b32 s23, s23, 15")
        srd(a, sK, "s6", "s7", "s23")
        srd(a, sV, "s8", "s9", "s23")
        for i in range(4): a(f"v_mov_b32 v{vT+4+i}, 0")
        a(f"v_bfe_u32 v{vT+2}, v{vL}, 2, 2", f"v_lshlrev_b32 v{vT+2}, 6, v{vT+2}", f"v_lshrrev_b32 v{vT+1}, 4, v{vL}",
          f"v_lshl_add_u32 v{vT+2}, v{vT+1}, 11, v{vT+2}",
          f"v_and_b32 v{vT+3}, 1, v{vL}", f"v_lshl_add_u32 v{vT+2}, v{vT+3}, 3, v{vT+2}",
          f"v_bfe_u32 v{vT+3}, v{vL}, 1, 1", f"v_and_b32 v{vT}, 1, v{vT+1}", f"v_lshl_or_b32 v{vT+3}, v{vT}, 1, v{vT+3}",
          f"v_add_u32 v{vT+2}, 16384, v{vT+2}", f"v_lshl_add_u32 v{vWa}, v{vT+3}, 4, v{vT+2}", f"v_xor_b32 v{vWa+1}, 32, v{vWa}")
        for i in range(8):
            a(f"v_mfma_f32_32x32x16_bf16 {vr(QACC+16*i,16)}, {vr(vT+4,4)}, {vr(vT+4,4)}, 0")
        for i in range(8):
            a(f"v_mfma_f32_32x32x16_bf16 {ar(O+16*i,16)}, {vr(vT+4,4)}, {vr(vT+4,4)}, 0")
        a(f"v_and_b32 v{vT}, 15, v{vL}", f"v_lshlrev_b32 v{vT+1}, 2, v{vT+1}", f"v_sub_u32 v{vT}, v{vT}, v{vT+1}")
        for r in range(4): a(f"v_cmp_le_i32 s[{sMask+2*r}:{sMask+2*r+1}], {r}, v{vT}")
        a(f"v_mov_b32 v{vNI}, 0xff800000", f"s_mov_b32 s{sThr}, 0x47800000")
        for i in range(4): a(f"v_mov_b32 v{LS+i}, 0")
        def wreads(buf, off):
            return [f"ds_read_b64_tr_b16 {vr(Q+32*buf+4*cb+2*t,2)}, v{vWa+(cb&1)} offset:{off + t*1024 + (cb>>1)*256}" for cb in range(8) for t in range(2)]
        a("s_waitcnt vmcnt(24)", "s_barrier")
        a(wreads(0, 0), f"s_mov_b32 s{sCnt}, 0", "s_waitcnt lgkmcnt(0)")
        a(".p2align 6")
        a.label(f"{name}_qloop")
        for ks in range(4):
            buf = ks & 1
            mf = [f"{MF} {vr(QACC+(db*4+qb)*4,4)}, {vr(Q+32*buf+4*db,4)}, {ar(XR+16*ks+4*qb,4)}, {vr(QACC+(db*4+qb)*4,4)}" for qb in range(4) for db in range(8)]
            sc = {g: [] for g in range(32)}; mem = {g: [] for g in range(32)}; va = {g: [] for g in range(32)}
            off = [8192, 32768, 32768 + 8192, 0][ks]
            rd = wreads(1 - buf, off)
            pos = [1, 2, 3, 4, 5, 6, 8, 9, 10, 12, 13, 14, 16, 17, 18, 20]
            if ks & 1: sc[0].append("s_barrier")
            for p_, x in zip(pos, rd): mem[p_].append(x)
            for qb in range(4): mem[8*qb+7].append(xload(ks, qb))
            if ks & 1:
                pre, l, post = wdma()
                sc[10] += pre
                for j, g in enumerate([11, 19, 22, 27]): mem[g].append(l[j])
                for j, x in enumerate(post): sc[28 + j if j < 2 else 27].append(x) if False else None
                sc[28].append(post[0]); sc[29].append(post[1]); sc[30].append(post[2])
            if ks == 2:
                va[24].append(f"v_xor_b32 v{vWa}, 0x10000, v{vWa}")
                va[25].append(f"v_xor_b32 v{vWa+1}, 0x10000, v{vWa+1}")
                sc[24].append(f"s_add_u32 s{sCnt}, s{sCnt}, 1")
            w = f"s_waitcnt vmcnt({15 if (ks+1) & 1 else 19}) lgkmcnt(0)"
            sc[31].append(w)
            if ks == 3:
                for qb in range(3): sc[8*qb+8].append(f"s_add_u32 s{sXo+qb}, s{sXo+qb}, 4096")
                va[31] += [f"s_add_u32 s{sXo+3}, s{sXo+3}, 4096", f"s_cmp_ge_u32 s{sCnt}, 4", f"s_cselect_b32 s{sXn+2}, 0, s{sXn+2}",
                           f"s_cmp_lt_u32 s{sCnt}, 5", f"s_cbranch_scc1 {name}_qloop"]
            a(weave(mf, sc, mem, va))
        a("s_waitcnt vmcnt(0)", "s_barrier")
        a(f"s_and_b32 s23, s{sW}, 1", "s_lshl_b32 s23, s23, 12", f"s_cmp_lt_u32 s{sW}, 2", f"s_cselect_b32 s{sKm}, {131072-24576}, 0",
          f"s_add_u32 s{sKm}, s{sKm}, s23", f"s_lshl_b32 s{sKo}, s{sW}, 12", f"s_mov_b32 s{sVo}, s{sKo}",
          f"s_add_u32 s{sVm}, s{sKo}, {32768+16384}")
        for (srdn, so, sm) in [(sK, sKo, sKm)] * 3 + [(sV, sVo, sVm)] * 2:
            a(f"s_mov_b32 m0, s{sm}", "s_nop 0")
            a([f"buffer_load_dwordx4 v{vL16}, s[{srdn}:{srdn+3}], s{so} offen offset:{j*1024} lds" for j in range(4)])
            a(f"s_add_u32 s{so}, s{so}, 16384", f"s_add_u32 s{sm}, s{sm}, 32768", f"s_and_b32 s{sm}, s{sm}, 0x1ffff")
        a(f"v_mov_b32 v{vT}, 0x3e0293ee", f"v_mov_b32 v{vT+1}, 0x3e0293ee")
        for X in range(2):
            for ks in range(4):
                for qb in range(2):
                    d = Q + 32 * X + 8 * ks + 4 * qb
                    for hh in range(2):
                        s0 = QACC + ((2 * ks + hh) * 4 + 2 * X + qb) * 4
                        a(f"v_pk_mul_f32 {vr(s0,2)}, {vr(s0,2)}, {vr(vT,2)}", f"v_pk_mul_f32 {vr(s0+2,2)}, {vr(s0+2,2)}, {vr(vT,2)}",
                          f"v_cvt_pk_bf16_f32 v{d+2*hh}, v{s0}, v{s0+1}", f"v_cvt_pk_bf16_f32 v{d+2*hh+1}, v{s0+2}, v{s0+3}")
        a(f"s_add_u32 s23, s{sW}, 1", "s_lshr_b32 s23, s23, 1", f"s_lshl_b32 s{sCnt}, s{sI}, 1", f"s_add_u32 s{sCnt}, s{sCnt}, s23",
          f"s_lshl_b32 s23, s{sI}, 2", f"s_sub_u32 s{sNSS}, 28, s23", f"s_and_b32 s23, s{sW}, 1", f"s_add_u32 s{sNSS}, s{sNSS}, s23")
        a(f"v_mov_b32 v{vKV}, v{vL16}", f"v_add_u32 v{vT+2}, {3*32768+8192}, v{vL16}")
        a("s_waitcnt vmcnt(12)", "s_barrier")
        a([f"ds_read_b128 {ar(KF+4*i,4)}, v{vT+2} offset:{i*1024}" for i in range(8)])
        a("s_waitcnt lgkmcnt(4)")
        a(self.period(1, ["q", "q"], c0=True))
        a("s_nop 7", f"s_cmp_lg_u32 s{sCnt}, 0", f"s_cbranch_scc1 {name}_nomask0")
        a(mask_ops(0, 0))
        a.label(f"{name}_nomask0")
        for X in range(2):
            for qb in range(2):
                s0 = S + 32 * X + 8 * qb; d = vT + 2 * X + qb
                a(f"v_max3_f32 v{d}, v{s0}, v{s0+1}, v{s0+2}", f"v_max3_f32 v{d}, v{d}, v{s0+3}, v{s0+4}",
                  f"v_max3_f32 v{d}, v{d}, v{s0+5}, v{s0+6}", f"v_max_f32 v{d}, v{d}, v{s0+7}")
        for sw in ("v_permlane16_swap_b32", "v_permlane32_swap_b32"):
            for k in range(4): a(f"v_mov_b32 v{vT+4+k}, v{vT+k}")
            a("s_nop 0")
            for k in range(4): a(f"{sw} v{vT+k}, v{vT+4+k}")
            for k in range(4): a(f"v_max_f32 v{vT+k}, v{vT+k}, v{vT+4+k}")
        for X in range(2):
            for qb in range(2):
                s0 = S + 32 * X + 8 * qb; d = vT + 2 * X + qb
                for r in range(4): a(f"v_sub_f32 v{NM+8*X+4*qb+r}, 0, v{d}")
        for X in range(2):
            for qb in range(2):
                s0 = S + 32 * X + 8 * qb; d = vT + 2 * X + qb
                for r in range(8): a(f"v_sub_f32 v{s0+r}, v{s0+r}, v{d}")
        a(self.period(0, ["qs", "qs"]))
        F = "qsv"
        a(f"s_cmp_eq_u32 s{sCnt}, 0", f"s_cbranch_scc1 {name}_AV", f"s_sub_u32 s{sCnt}, s{sCnt}, 1",
          f"s_cmp_eq_u32 s{sCnt}, 0", f"s_cbranch_scc1 {name}_Aexit")
        a(".p2align 6")
        a.label(f"{name}_DD")
        a(self.period(1, [F, F], bar=12))
        a(self.period(0, [F, F], tail_sc=[f"s_sub_u32 s{sCnt}, s{sCnt}, 1"]))
        a(f"s_cmp_lg_u32 s{sCnt}, 0", f"s_cbranch_scc1 {name}_DD")
        a.label(f"{name}_Aexit")
        a(f"s_bitcmp1_b32 s{sW}, 0", f"s_cbranch_scc1 {name}_Aodd")
        a(self.period(1, [F, F], bar=12))
        a(self.period(0, ["smv", F]))
        a.label(f"{name}_AV")
        a(self.period(1, ["v", F], bar=12))
        a(self.period(0, ["", F]))
        a(f"s_branch {name}_SSpre")
        a.label(f"{name}_Aodd")
        a(self.period(1, ["smv", F], bar=12))
        a(self.period(0, ["v", F]))
        a.label(f"{name}_SSpre")
        a(f"s_cmp_eq_u32 s{sNSS}, 0", f"s_cbranch_scc1 {name}_Bexit")
        a(".p2align 6")
        a.label(f"{name}_SS")
        a(self.period(1, ["", F], bar=12))
        a(self.period(0, ["", F], tail_sc=[f"s_sub_u32 s{sNSS}, s{sNSS}, 1"]))
        a(f"s_cmp_lg_u32 s{sNSS}, 0", f"s_cbranch_scc1 {name}_SS")
        a.label(f"{name}_Bexit")
        a(f"s_bitcmp1_b32 s{sW}, 0", f"s_cbranch_scc1 {name}_Bodd")
        a(self.period(1, ["", F], bar=0, dma=False, kread=False))
        a(self.period(0, ["", "smv"], dma=False, kread=False))
        a(self.period(1, ["", "v"], bar=0, dma=False, kread=False))
        a(f"s_branch {name}_Bdone")
        a.label(f"{name}_Bodd")
        a(self.period(1, ["", "smv"], bar=0, dma=False, kread=False))
        a(self.period(0, ["", "v"], dma=False, kread=False))
        a.label(f"{name}_Bdone")
        a(f"s_cmp_ge_u32 s{sW}, 2", f"s_cbranch_scc1 {name}_epi", "s_barrier")
        a.label(f"{name}_epi")
        for sw in ("v_permlane16_swap_b32", "v_permlane32_swap_b32"):
            for k in range(4): a(f"v_mov_b32 v{vT+4+k}, v{LS+k}")
            a("s_nop 0")
            for k in range(4): a(f"{sw} v{LS+k}, v{vT+4+k}")
            for k in range(4): a(f"v_add_f32 v{LS+k}, v{LS+k}, v{vT+4+k}")
        for k in range(4): a(f"v_rcp_f32 v{vT+2*k}, v{LS+k}")
        a("s_nop 0")
        for k in range(4): a(f"v_mov_b32 v{vT+2*k+1}, v{vT+2*k}")
        a(f"s_lshl_b32 s23, s{sI}, 2", f"s_add_u32 s23, s23, s{sW}", "s_lshl_b32 s23, s23, 18", f"s_lshl_b32 s31, s{sH}, 12",
          f"s_add_u32 s31, s31, {CTX}", f"s_add_u32 s{sXo}, s23, s31", f"s_add_u32 s{sXo+1}, s{sXo}, {1<<17}",
          "s_lshl_b32 s23, s30, 2", f"s_add_u32 s23, s23, s{sW}", "s_lshl_b32 s23, s23, 18",
          f"s_add_u32 s{sXo+2}, s23, s31", f"s_add_u32 s{sXo+3}, s{sXo+2}, {1<<17}")
        k = 0
        for X in range(2):
            for qb in range(2):
                for t in range(4):
                    T = 32 + (k % 8) * 12; k += 1
                    f = vT + 2 * (2 * X + qb)
                    for hh in range(2):
                        for r in range(4): a(f"v_accvgpr_read_b32 v{T+4+4*hh+r}, a{O+64*X+8*(2*t+hh)+4*qb+r}")
                    for r in range(4): a(f"v_pk_mul_f32 {vr(T+4+2*r,2)}, {vr(T+4+2*r,2)}, {vr(f,2)}")
                    for r in range(4): a(f"v_cvt_pk_bf16_f32 v{T+r}, v{T+4+2*r}, v{T+5+2*r}")
                    a(f"buffer_store_dwordx4 {vr(T,4)}, v{vL16}, s[{sWS}:{sWS+3}], s{sXo+2*X+qb} offen offset:{t*1024}")
        self.ffn()
        a.label(f"{name}_end")
        a("s_endpgm")
        for (k, ss, par) in self.stubs:
            a.label(f"{name}_stub{k}")
            for X in ss: a(f"s_call_b64 s[{sRet}:{sRet+1}], {name}_rare{X}{par}")
            a(f"s_branch {name}_back{k}")
        for X in range(2):
            for par in range(2): self.rare(X, par)
            self.resc(X)
        return a

    def ffn(self):
        a = self.a; name = self.name
        sG, sU, sD = 52, 56, 60
        sJ = 82
        a("s_cmp_lt_u32 s2, 192", f"s_cbranch_scc1 {name}_end", "s_cmp_ge_u32 s2, 246", f"s_cbranch_scc1 {name}_end")
        a("s_load_dwordx4 s[4:7], s[0:1], 64", "s_load_dwordx2 s[8:9], s[0:1], 80", f"s_sub_u32 s{sJ}, s2, 192")
        KEY = 128
        a(f"s_mov_b32 s23, {RKEY}", f"s_mov_b32 s31, {RKEY+4096}")
        for q in range(8):
            a(f"buffer_load_dwordx4 {vr(KEY+4*q,4)}, v{vL16}, s[{sWS}:{sWS+3}], s{23 if q < 4 else 31} offen offset:{(q%4)*1024}")
        a(f"v_lshrrev_b32 v{vT}, 2, v{vL}", f"v_mul_u32_u24 v{vT+1}, 3456, v{vT}", f"v_and_b32 v{vT+2}, 3, v{vL}",
          f"v_lshl_add_u32 v{vT+1}, v{vT+2}, 4, v{vT+1}")
        a("s_waitcnt lgkmcnt(0)")
        srd(a, sG, "s4", "s5", 640 * 3456); srd(a, sU, "s6", "s7", 640 * 3456); srd(a, sD, "s8", "s9", 1728 * 1280)
        a(f"s_mul_i32 s23, s{sW}, {10*16*3456}", f"s_lshl_b32 s31, s{sJ}, 6", "s_add_u32 s23, s23, s31",
          f"s_mul_i32 s24, s{sW}, 10240", f"s_mul_i32 s25, s{sJ}, 40960", "s_add_u32 s25, s25, s24", "s_mov_b32 s26, 10")
        a("s_barrier")
        a.label(f"{name}_fdma")
        a("s_mov_b32 m0, s24", "s_nop 0", f"buffer_load_dwordx4 v{vT+1}, s[{sG}:{sG+3}], s23 offen lds",
          "s_add_u32 m0, s24, 40960", "s_nop 0", f"buffer_load_dwordx4 v{vT+1}, s[{sU}:{sU+3}], s23 offen lds",
          "s_add_u32 m0, s24, 81920", "s_nop 0", f"buffer_load_dwordx4 v{vL16}, s[{sD}:{sD+3}], s25 offen lds",
          f"s_add_u32 s23, s23, {16*3456}", "s_add_u32 s24, s24, 1024", "s_add_u32 s25, s25, 1024",
          "s_sub_u32 s26, s26, 1", "s_cmp_lg_u32 s26, 0", f"s_cbranch_scc1 {name}_fdma")
        vM, vPrev, vSel, vTok, vTmp = vT + 4, vT + 5, vT + 6, vT + 7, vT + 8
        a(f"v_mov_b32 v{vPrev}, 0", f"v_mov_b32 v{vSel}, 0", f"v_and_b32 v{vTok}, 7, v{vL}", "s_mov_b32 s26, 0", "s_waitcnt vmcnt(30)")
        a.label(f"{name}_top")
        a(f"v_max3_u32 v{vM}, v{KEY}, v{KEY+1}, v{KEY+2}", f"v_max3_u32 v{vTmp}, v{KEY+3}, v{KEY+4}, v{KEY+5}")
        for q in range(6, 30, 4):
            a(f"v_max3_u32 v{vM}, v{vM}, v{KEY+q}, v{KEY+q+1}", f"v_max3_u32 v{vTmp}, v{vTmp}, v{KEY+q+2}, v{KEY+q+3}")
        a(f"v_max3_u32 v{vM}, v{vM}, v{KEY+30}, v{KEY+31}", f"v_max_u32 v{vM}, v{vM}, v{vTmp}")
        for m in ("quad_perm:[1,0,3,2]", "quad_perm:[2,3,0,1]", "row_half_mirror", "row_mirror"):
            a("s_nop 1", f"v_max_u32_dpp v{vM}, v{vM}, v{vM} {m} row_mask:0xf bank_mask:0xf")
        xreduce(a, "v_max_u32", vM, vTmp)
        a(f"v_add_u32 v{vPrev}, v{vPrev}, v{vM}", f"v_cmp_eq_u32 vcc, s26, v{vTok}")
        for q in range(32): a(f"v_sub_u32 v{KEY+q}, v{KEY+q}, v{vM}")
        a(f"v_cndmask_b32 v{vSel}, v{vSel}, v{vPrev}, vcc", "s_add_u32 s26, s26, 1", "s_cmp_lt_u32 s26, 8", f"s_cbranch_scc1 {name}_top")
        vRow, vR, vXo = vT + 9, vT + 10, vT + 11
        a(f"v_and_b32 v{vRow}, 0xffff, v{vSel}", f"v_sub_u32 v{vRow}, 0xffff, v{vRow}", f"v_and_b32 v{vRow}, 2047, v{vRow}",
          f"v_lshrrev_b32 v{vXo}, 4, v{vRow}", f"v_mul_u32_u24 v{vXo}, 20480, v{vXo}", f"v_and_b32 v{vTmp}, 15, v{vRow}",
          f"v_lshl_add_u32 v{vXo}, v{vTmp}, 4, v{vXo}", f"v_lshrrev_b32 v{vTmp}, 4, v{vL}", f"v_lshl_add_u32 v{vXo}, v{vTmp}, 8, v{vXo}")
        XS = 32
        for s_ in range(20):
            if s_ % 4 == 0: a(f"s_mov_b32 s23, {s_*1024}")
            a(f"buffer_load_dwordx4 {vr(XS+4*s_,4)}, v{vXo}, s[{sWS}:{sWS+3}], s23 offen offset:{(s_%4)*1024}")
        a(f"v_ashrrev_i32 v{vM}, 31, v{vSel}", f"v_not_b32 v{vM}, v{vM}", f"v_or_b32 v{vM}, 0x80000000, v{vM}",
          f"v_xor_b32 v{vR}, v{vSel}, v{vM}", f"v_and_b32 v{vR}, 0xffff0000, v{vR}",
          f"v_mul_f32 v{vR}, 0xbfb8aa3b, v{vR}", f"v_exp_f32 v{vR}, v{vR}", "s_nop 0", f"v_add_f32 v{vR}, 1.0, v{vR}",
          f"v_rcp_f32 v{vR}, v{vR}", "s_nop 0")
        bf16r(a, vR)
        a(f"v_lshlrev_b32 v{vM}, 2, v{vL}", f"v_add_u32 v{vM}, {SEL}, v{vM}", f"v_mov_b32 v{vPrev}, 0x40000000",
          f"s_add_u32 s23, s{sJ}, s{sW}", "s_cmp_eq_u32 s23, 0", "s_cselect_b32 s23, 8, 0",
          f"v_cmp_gt_u32 vcc, s23, v{vL}", "s_nop 1", f"v_cndmask_b32 v{vM}, v{vPrev}, v{vM}, vcc",
          f"buffer_store_dword v{vRow}, v{vM}, s[{sWS}:{sWS+3}], 0 offen",
          f"buffer_store_dword v{vR}, v{vM}, s[{sWS}:{sWS+3}], 0 offen offset:32")
        vA, vB, vC = vT + 12, vT + 13, vT + 14
        a(f"v_lshl_add_u32 v{vA}, v{vTmp}, 2, v{vT}",
          f"v_lshlrev_b32 v{vA}, 6, v{vA}", f"v_lshl_add_u32 v{vA}, v{vT+2}, 3, v{vA}",
          f"s_lshr_b32 s23, s{sW}, 1", "s_mul_i32 s23, s23, 40960", f"s_and_b32 s31, s{sW}, 1", "s_lshl_b32 s31, s31, 5", "s_add_u32 s23, s23, s31",
          f"v_add_u32 v{vA}, s23, v{vA}",
          f"v_mul_u32_u24 v{vB}, 1280, v{vT}", f"v_lshl_add_u32 v{vB}, v{vT+2}, 3, v{vB}",
          f"s_mul_i32 s23, s{sW}, 320", "s_add_u32 s23, s23, 81920", f"v_add_u32 v{vB}, s23, v{vB}",
          f"s_lshl_b32 s23, s{sW}, 10", "s_add_u32 s23, s23, 122880", f"v_add_u32 v{vC}, s23, v{vL16}")
        a("s_waitcnt vmcnt(0)", "s_barrier")
        WFr = 112; DF = 192
        for s_ in range(20):
            for t in range(2):
                a(f"ds_read_b64_tr_b16 {vr(WFr+4*s_+2*t,2)}, v{vA} offset:{s_*2048+t*256}")
        a("s_waitcnt lgkmcnt(0)")
        for cb in range(10):
            for t in range(2):
                a(f"ds_read_b64_tr_b16 {vr(DF+4*cb+2*t,2)}, v{vB} offset:{t*20480+cb*32}")
        G = 232
        for s_ in range(20):
            a(f"{MF} {vr(G,4)}, {vr(WFr+4*s_,4)}, {vr(XS+4*s_,4)}, {'0' if s_ == 0 else vr(G,4)}")
        a("s_nop 7", f"ds_write_b128 v{vC}, {vr(G,4)}", f"v_add_u32 v{vC}, 122880, v{vL16}", "s_waitcnt lgkmcnt(0)", "s_barrier")
        GU = 32
        for k in range(4): a(f"ds_read_b128 {vr(GU+4*k,4)}, v{vC} offset:{k*1024}")
        a(f"v_and_b32 v{vM}, 15, v{vL}", f"v_mul_u32_u24 v{vA}, 2560, v{vM}", f"v_lshl_add_u32 v{vA}, v{vTmp}, 4, v{vA}",
          f"v_cmp_gt_u32 vcc, 8, v{vM}", f"s_mul_i32 s23, s{sJ}, 20480", f"s_mul_i32 s31, s{sW}, 640",
          f"v_cndmask_b32 v{vA}, v{vPrev}, v{vA}, vcc", "s_add_u32 s23, s23, s31", f"s_add_u32 s23, s23, {YP}")
        a("s_waitcnt lgkmcnt(0)")
        for k in range(16): bf16r(a, GU + k)
        for k in range(8): a(f"v_mul_f32 v{GU+16+k}, 0xbfb8aa3b, v{GU+k}")
        for k in range(8): a(f"v_exp_f32 v{GU+16+k}, v{GU+16+k}")
        for k in range(8): a(f"v_add_f32 v{GU+16+k}, 1.0, v{GU+16+k}")
        for k in range(8): a(f"v_rcp_f32 v{GU+16+k}, v{GU+16+k}")
        for k in range(8): a(f"v_mul_f32 v{GU+k}, v{GU+k}, v{GU+16+k}")
        for k in range(8): bf16r(a, GU + k)
        for k in range(8): a(f"v_mul_f32 v{GU+k}, v{GU+k}, v{GU+8+k}")
        H = GU + 24
        for k in range(4): a(f"v_cvt_pk_bf16_f32 v{H+k}, v{GU+2*k}, v{GU+2*k+1}")
        a("s_nop 1")
        Y = 64
        for cb in range(10): a(f"{MF} {vr(Y+4*cb,4)}, {vr(DF+4*cb,4)}, {vr(H,4)}, 0")
        a("s_nop 7")
        for cb in range(10): a(f"buffer_store_dwordx4 {vr(Y+4*cb,4)}, v{vA}, s[{sWS}:{sWS+3}], s23 offen offset:{cb*64}")

def gen_k2(name):
    return K2(name).gen()
```

```python
from asmlib import *
from gen_k1 import XNF, RKEY, SEL, YP, WOF, KFO, VFO, CTX, WS_BYTES, MF, srd, bf16r

RS = 336
PART = 64 * RS
UPD = 4 * PART
SCR = UPD + PART
LDS = SCR + 4096
NV = 256; ACC = 256

def gen_k3(name):
    a = Asm()
    sW, sMT, sNG, sCnt = 20, 21, 22, 24
    sL, sWS, sX, sO = 32, 36, 40, 44
    sCo, sWo = 48, 52
    sSel = 64
    vL, vL16, vT = 1, 2, 4
    vXo = 12
    vLa = 15
    AC = 20
    R = 100
    a("s_cmp_ge_u32 s2, 256", f"s_cbranch_scc1 {name}_end")
    a("s_load_dwordx2 s[4:5], s[0:1], 0", "s_load_dwordx2 s[6:7], s[0:1], 88", "s_load_dwordx2 s[16:17], s[0:1], 104")
    a(f"v_lshrrev_b32 v{vT}, 6, v0", f"v_and_b32 v{vL}, 63, v0", f"v_readfirstlane_b32 s{sW}, v{vT}")
    a(f"s_and_b32 s{sMT}, s2, 7", f"s_lshl_b32 s{sMT}, s{sMT}, 2", "s_lshr_b32 s23, s2, 3", "s_and_b32 s23, s23, 3",
      f"s_add_u32 s{sMT}, s{sMT}, s23", f"s_lshr_b32 s{sNG}, s2, 5")
    a(f"v_lshlrev_b32 v{vL16}, 4, v{vL}")
    a(f"s_lshl_b32 s{sCo}, s{sMT}, 19", f"s_lshl_b32 s23, s{sW}, 15", f"s_add_u32 s{sCo}, s{sCo}, s23", f"s_add_u32 s{sCo}, s{sCo}, {CTX}")
    for qb in range(1, 4): a(f"s_add_u32 s{sCo+qb}, s{sCo}, {qb<<17}")
    a(f"s_lshl_b32 s23, s{sNG}, 2", f"s_add_u32 s23, s23, s{sW}", f"s_mul_i32 s{sWo}, s23, {32*5120}", f"s_add_u32 s{sWo}, s{sWo}, {WOF}")
    for k in range(1, 5): a(f"s_add_u32 s{sWo+k}, s{sWo}, {k*4096}")
    a("s_waitcnt lgkmcnt(0)")
    srd(a, sL, "s16", "s17", WS_BYTES)
    srd(a, sWS, "s16", "s17", WS_BYTES)
    srd(a, sX, "s4", "s5", 2048 * 1280)
    srd(a, sO, "s6", "s7", 2048 * 1280)
    a(f"s_add_u32 s18, s16, {SEL}", "s_addc_u32 s19, s17, 0", f"s_load_dwordx16 s[{sSel}:{sSel+15}], s[18:19], 0")
    def wl(ks, cb):
        idx = ks * 5 + cb
        return f"buffer_load_dwordx4 {vr(R+36*ks+4*cb,4)}, v{vL16}, s[{sL}:{sL+3}], s{sWo+idx//4} offen offset:{(idx%4)*1024}"
    def cl(ks, qb):
        return f"buffer_load_dwordx4 {vr(R+36*ks+20+4*qb,4)}, v{vL16}, s[{sL}:{sL+3}], s{sCo+qb} offen offset:{ks*1024}"
    for ks in range(4):
        a([wl(ks, cb) for cb in range(5)], [cl(ks, qb) for qb in range(4)])
    for qb in range(4): a(f"s_add_u32 s{sCo+qb}, s{sCo+qb}, 4096")
    for k in range(5): a(f"s_add_u32 s{sWo+k}, s{sWo+k}, 20480")
    for i in range(4): a(f"v_mov_b32 v{vT+4+i}, 0")
    a(f"v_lshlrev_b32 v{vT}, 4, v0", f"v_add_u32 v{vT}, {UPD}, v{vT}")
    for i in range(5):
        a(f"v_mfma_f32_32x32x16_bf16 {vr(AC+16*i,16)}, {vr(vT+4,4)}, {vr(vT+4,4)}, 0")
    for i in range(6):
        a(f"ds_write_b128 v{vT}, {vr(vT+4,4)} offset:{i*4096}")
    a(f"s_lshl_b32 s25, s{sMT}, 6", f"s_mul_i32 s26, s{sNG}, 160", f"s_mul_i32 s27, s{sNG}, 2560")
    for k in range(3):
        a(f"v_add_u32 v{vT}, {256*k}, v0", f"v_mul_u32_u24 v{vT+1}, 6554, v{vT}", f"v_lshrrev_b32 v{vT+1}, 16, v{vT+1}",
          f"v_mul_u32_u24 v{vT+2}, 10, v{vT+1}", f"v_sub_u32 v{vT+2}, v{vT}, v{vT+2}",
          f"v_mul_u32_u24 v{vLa+k}, {RS}, v{vT+1}", f"v_lshl_add_u32 v{vLa+k}, v{vT+2}, 5, v{vLa+k}",
          f"v_add_u32 v{vT+1}, s25, v{vT+1}",
          f"v_mul_u32_u24 v{vXo+k}, 1280, v{vT+1}", f"v_lshl_add_u32 v{vXo+k}, v{vT+2}, 4, v{vXo+k}", f"v_add_u32 v{vXo+k}, s26, v{vXo+k}",
          f"v_lshrrev_b32 v{vT+3}, 4, v{vT+1}", f"v_mul_u32_u24 v{vT+3}, 20480, v{vT+3}", f"v_and_b32 v{vT+1}, 15, v{vT+1}",
          f"v_lshl_add_u32 v{vT+3}, v{vT+1}, 4, v{vT+3}", f"v_lshl_add_u32 v{244+k}, v{vT+2}, 8, v{vT+3}")
        if k == 2:
            a(f"v_cmp_gt_u32 vcc, 128, v0", f"v_mov_b32 v{vT}, 0x40000000", f"v_mov_b32 v{vT+1}, 0",
              f"v_cndmask_b32 v{vXo+k}, v{vT}, v{vXo+k}, vcc", f"v_cndmask_b32 v{244+k}, v{vT}, v{244+k}, vcc",
              f"v_cndmask_b32 v{vLa+k}, v{vT+1}, v{vLa+k}, vcc")
    a("s_waitcnt lgkmcnt(0)", "s_barrier")
    for k in range(2):
        a(f"s_mov_b32 s{28+k}, s{sSel+k}", f"s_mov_b32 s{30+k}, s{sSel+8+k}")
        for w in range(1, 4):
            a(f"s_cmp_eq_u32 s{sW}, {w}", f"s_cselect_b32 s{28+k}, s{sSel+2*w+k}, s{28+k}", f"s_cselect_b32 s{30+k}, s{sSel+8+2*w+k}, s{30+k}")
    for k in range(2):
        a(f"s_sub_u32 s23, s{28+k}, s25", "s_cmp_ge_u32 s23, 64", f"s_cbranch_scc1 {name}_nosel{k}")
        a(f"v_mul_u32_u24 v{vT}, 3277, v{vL}", f"v_lshrrev_b32 v{vT}, 16, v{vT}", f"v_mul_u32_u24 v{vT+1}, 20, v{vT}",
          f"v_sub_u32 v{vT+1}, v{vL}, v{vT+1}", f"v_lshlrev_b32 v{vT+1}, 4, v{vT+1}",
          f"v_mul_u32_u24 v{vT+2}, {18*20480}, v{vT}", f"v_add_u32 v{vT+2}, v{vT+2}, v{vT+1}",
          f"v_cmp_gt_u32 vcc, 3, v{vT}", f"v_mov_b32 v{vT+3}, 0x40000000", f"s_lshl_b32 s58, s{sW}, 1",
          f"v_cndmask_b32 v{vT+2}, v{vT+3}, v{vT+2}, vcc",
          f"s_add_u32 s58, s58, {k}", "s_mul_i32 s58, s58, 2560", f"s_mul_i32 s59, s{sNG}, 320", "s_add_u32 s58, s58, s59", f"s_add_u32 s58, s58, {YP}",
          "s_mov_b32 s59, 9")
        for i in range(4): a(f"v_mov_b32 v{vT+4+i}, 0")
        a.label(f"{name}_yl{k}")
        a(f"buffer_load_dwordx4 v[248:251], v{vT+2}, s[{sWS}:{sWS+3}], s58 offen", "s_add_u32 s58, s58, 20480",
          f"buffer_load_dwordx4 v[252:255], v{vT+2}, s[{sWS}:{sWS+3}], s58 offen", "s_add_u32 s58, s58, 20480",
          "s_waitcnt vmcnt(0)")
        for i in range(4): a(f"v_add_f32 v{vT+4+i}, v{vT+4+i}, v{248+i}")
        for i in range(4): a(f"v_add_f32 v{vT+4+i}, v{vT+4+i}, v{252+i}")
        a("s_sub_u32 s59, s59, 1", "s_cmp_lg_u32 s59, 0", f"s_cbranch_scc1 {name}_yl{k}")
        a(f"s_lshl_b32 s58, s{sW}, 10", f"s_add_u32 s58, s58, {SCR}", f"v_add_u32 v{vT+3}, s58, v{vL16}",
          f"ds_write_b128 v{vT+3}, {vr(vT+4,4)}", f"v_add_u32 v{vT+3}, s58, v{vT+1}", "s_waitcnt lgkmcnt(0)",
          f"ds_read_b128 {vr(vT+4,4)}, v{vT+3}", f"ds_read_b128 v[248:251], v{vT+3} offset:320", f"ds_read_b128 v[252:255], v{vT+3} offset:640",
          f"s_mul_i32 s23, s23, {RS}", f"s_add_u32 s23, s23, {UPD}", f"v_add_u32 v{vT+3}, s23, v{vT+1}", "s_waitcnt lgkmcnt(0)")
        for i in range(4):
            a(f"v_add_f32 v{vT+4+i}, v{vT+4+i}, v{248+i}", f"v_add_f32 v{vT+4+i}, v{vT+4+i}, v{252+i}")
            bf16r(a, vT + 4 + i)
            a(f"v_mul_f32 v{vT+4+i}, s{30+k}, v{vT+4+i}")
            bf16r(a, vT + 4 + i)
        a(f"ds_write_b128 v{vT+3}, {vr(vT+4,4)}")
        a("s_waitcnt lgkmcnt(0)")
        a.label(f"{name}_nosel{k}")
    a(f"s_mov_b32 s{sCnt}, 0", "s_waitcnt vmcnt(27)")
    a(".p2align 6")
    a.label(f"{name}_loop")
    for ks in range(4):
        mf = [f"{MF} {vr(AC+(cb*4+qb)*4,4)}, {vr(R+36*ks+4*cb,4)}, {vr(R+36*ks+20+4*qb,4)}, {vr(AC+(cb*4+qb)*4,4)}" for cb in range(5) for qb in range(4)]
        sc = {g: [] for g in range(20)}; mem = {g: [] for g in range(20)}; va = {g: [] for g in range(20)}
        for cb in range(5): mem[4*cb+3].append(wl(ks, cb))
        for qb in range(4): mem[16+qb].append(cl(ks, qb))
        va[19].append("s_waitcnt vmcnt(27)")
        if ks == 3:
            for k in range(4): sc[4+k].append(f"s_add_u32 s{sWo+k}, s{sWo+k}, 20480")
            sc[8].append(f"s_add_u32 s{sCnt}, s{sCnt}, 1")
            va[19] = [f"s_add_u32 s{sCo+qb}, s{sCo+qb}, 4096" for qb in range(4)] + [f"s_add_u32 s{sWo+4}, s{sWo+4}, 20480",
                      f"s_cmp_ge_u32 s{sCnt}, 7", f"s_cselect_b32 s{sL+2}, 0, s{sL+2}", f"s_cmp_lt_u32 s{sCnt}, 8", "s_waitcnt vmcnt(27)", f"s_cbranch_scc1 {name}_loop"]
        a(weave(mf, sc, mem, va))
    XV = R
    a("s_waitcnt vmcnt(0)")
    for k in range(3):
        a(f"buffer_load_dwordx4 {vr(XV+4*k,4)}, v{vXo+k}, s[{sX}:{sX+3}], 0 offen",
          f"buffer_load_dwordx4 {vr(XV+12+4*k,4)}, v{244+k}, s[{sWS}:{sWS+3}], s27 offen")
    a(f"v_and_b32 v{vT}, 15, v{vL}", f"v_mul_u32_u24 v{vT}, {RS}, v{vT}", f"v_lshrrev_b32 v{vT+1}, 4, v{vL}",
      f"v_lshl_add_u32 v{vT}, v{vT+1}, 4, v{vT}", f"s_mul_i32 s23, s{sW}, {PART}", f"v_add_u32 v{vT}, s23, v{vT}")
    for cb in range(5):
        for qb in range(4):
            a(f"ds_write_b128 v{vT}, {vr(AC+(cb*4+qb)*4,4)} offset:{qb*16*RS+cb*64}")
    a("s_waitcnt lgkmcnt(0)", "s_barrier")
    PV = 128
    for k in range(3):
        a(f"v_add_u32 v{vT+k}, {3*PART}, v{vLa+k}")
    for k in range(3):
        for p in range(5):
            base = vLa + k if p < 3 else vT + k
            off = p * PART if p < 3 else (p - 3) * PART
            for hh in range(2):
                a(f"ds_read_b128 {vr(PV+40*k+8*p+4*hh,4)}, v{base} offset:{off+16*hh}")
    for k in range(3):
        a(f"s_waitcnt vmcnt({4-2*k + k}) lgkmcnt({min(15, 20-10*k)})" if k < 2 else "s_waitcnt vmcnt(2) lgkmcnt(0)")
        if k == 0: a("s_waitcnt lgkmcnt(10)")
        b = PV + 40 * k
        for e in range(8):
            a(f"v_add_f32 v{b+e}, v{b+e}, v{b+8+e}", f"v_add_f32 v{b+16+e}, v{b+16+e}, v{b+24+e}")
        for e in range(8): a(f"v_add_f32 v{b+e}, v{b+e}, v{b+16+e}")
        for e in range(4):
            x = XV + 4 * k + e; xn = XV + 12 + 4 * k + e
            t0, t1, t2, t3 = b + 8, b + 9, b + 10, b + 11
            a(f"v_cvt_pk_bf16_f32 v{t0}, v{b+2*e}, v{b+2*e+1}",
              f"v_lshlrev_b32 v{t2}, 16, v{x}", f"v_and_b32 v{t3}, 0xffff0000, v{x}",
              f"v_and_b32 v{t1}, 0xffff0000, v{t0}", f"v_lshlrev_b32 v{t0}, 16, v{t0}",
              f"v_add_f32 v{t0}, v{t0}, v{t2}", f"v_add_f32 v{t1}, v{t1}, v{t3}",
              f"v_cvt_pk_bf16_f32 v{t0}, v{t0}, v{t1}",
              f"v_lshlrev_b32 v{t2}, 16, v{xn}", f"v_and_b32 v{t3}, 0xffff0000, v{xn}",
              f"v_add_f32 v{t2}, v{t2}, v{b+32+2*e}", f"v_add_f32 v{t3}, v{t3}, v{b+32+2*e+1}",
              f"v_cvt_pk_bf16_f32 v{t2}, v{t2}, v{t3}",
              f"v_and_b32 v{t1}, 0xffff0000, v{t0}", f"v_lshlrev_b32 v{t0}, 16, v{t0}",
              f"v_and_b32 v{t3}, 0xffff0000, v{t2}", f"v_lshlrev_b32 v{t2}, 16, v{t2}",
              f"v_add_f32 v{t0}, v{t0}, v{t2}", f"v_add_f32 v{t1}, v{t1}, v{t3}",
              f"v_cvt_pk_bf16_f32 v{b+12+e}, v{t0}, v{t1}")
        a(f"buffer_store_dwordx4 {vr(b+12,4)}, v{vXo+k}, s[{sO}:{sO+3}], 0 offen")
    a.label(f"{name}_end")
    a("s_endpgm")
    return a
```

```python
import sys
from asmlib import *
import gen_k1

PFX = "parallel_sum__compressed_kv_cla__moe_arch_mod__prompt"
def main(out):
    ks = []
    ks.append(("k1_kernel", gen_k1.gen_k1("k1"), 256, 256, 151552, 512, 256))
    try:
        import gen_k2
        ks.append(("k2_kernel", gen_k2.gen_k2("k2"), 256, 256, gen_k2.LDS, 512, 256))
    except ImportError: pass
    try:
        import gen_k3
        ks.append(("k3_kernel", gen_k3.gen_k3("k3"), 256, 256, gen_k3.LDS, gen_k3.NV, gen_k3.ACC))
    except ImportError: pass
    ref = open(f"/code/{PFX}.s.ref").read().split("\n")
    hdr = [l for l in ref if l.startswith(";") and "@launch" not in l and "Override launch" not in l and "Harness parses" not in l]
    txt = "\n".join(hdr) + "\n"
    for (n, a, g, b, lds, nv, acc) in ks:
        txt += f"; @launch kernel={n} grid=({g},1,1) block=({b},1,1) lds={lds}\n"
    txt += '.amdgcn_target "amdgcn-amd-amdhsa--gfx950"\n.text\n'
    nerr = 0
    for (n, a, g, b, lds, nv, acc) in ks:
        errs = check_hazards(a.lines, n)
        for e in errs: print("HAZARD", e)
        nerr += len(errs)
        txt += kernel_text(n, a.text())
        txt += desc_text(n, nv, acc)
    open(out, "w").write(txt)
    print("hazards:", nerr)

if __name__ == "__main__":
    main(sys.argv[1] if len(sys.argv) > 1 else f"/code/{PFX}.s")
```

```python
import os
from asmlib import *
from gen_k1 import (XNF, RKEY, SEL, YP, WOF, KFO, VFO, CTX, WS_BYTES, MF, srd, bf16r, allreduce32_add,
                    stamp, stampc, stampv, stamp_init, stamp_flush, DBG)
import gen_k2 as k2
from gen_k2 import (vL, vL16, vKV, vNI, vX, vT, Q, S, P, NM, E, TS, LS, QACC, O, KF, VF, XR,
                    sW, sH, sI, sWS, sK, sV, sKm, sVm, sKo, sVo, sCnt, sNSS, sXo, sMask, sRet, sRet2, sThr,
                    xreduce, mask_ops)

LDS = 163840
FLG = 0x284000
KVF = FLG
CF = FLG + 0x1000
YF = FLG + 0x3000
WF = FLG + 0x4000
SC = " sc1"
BIG = 0x40000000
SPARE = 131072
XS = SPARE + 20480
EX = SPARE + 30720
TOPWG = 255
FFN0, FFN1 = 192, 246
SPIN_MAX = 200000
sDb = 56
sCFA, sCFB, sKVa = 80, 3, 82
vWo, vWa, vCa = 8, 12, 14
vPoll, vZero, vPo = 228, 229, 230

class VM:
    def __init__(self): self.ops = []
    def issue(self, tag, n=1): self.ops += [tag] * n
    def need(self, *tags):
        last = max(i for i, t in enumerate(self.ops) if t in tags)
        return min(63, len(self.ops) - 1 - last)

class Fused(k2.K2):
    SC = SC
    def poll_check(self, a, tag, vreg, voff, srdn, cmp_lines, soff="0"):
        n = self.name
        a(cmp_lines, f"s_cbranch_vccnz {n}_{tag}_spin")
        a.label(f"{n}_{tag}_ok")
        t = Asm()
        t.label(f"{n}_{tag}_spin")
        t(f"s_mov_b32 s83, {SPIN_MAX}")
        t.label(f"{n}_{tag}_spin2")
        t(f"buffer_load_dword v{vreg}, v{voff}, s[{srdn}:{srdn+3}], {soff} offen{SC}", "s_waitcnt vmcnt(0)")
        t(cmp_lines, f"s_cbranch_vccz {n}_{tag}_ok", "s_sleep 8", "s_sub_u32 s83, s83, 1", "s_cmp_lg_u32 s83, 0",
          f"s_cbranch_scc1 {n}_{tag}_spin2", f"s_branch {n}_{tag}_ok")
        self.tail += t.lines

    def phase1(self):
        a = self.a; name = self.name
        sC, sWt, sX, sWR, sWO = 32, 36, 44, 48, 52
        sM0C, sStep, sOC, sOW, sIT = 24, 25, 26, 27, 28
        vCo = 224
        FA = 32; FB = 96
        a("s_cmp_ge_u32 s2, 256", f"s_cbranch_scc1 {name}_end")
        stamp_init(a)
        a("s_load_dwordx4 s[4:7], s[0:1], 0", "s_load_dwordx2 s[14:15], s[0:1], 56", "s_load_dwordx4 s[8:11], s[0:1], 24",
          "s_load_dwordx2 s[12:13], s[0:1], 40", "s_load_dwordx4 s[16:19], s[0:1], 96", "s_load_dwordx2 s[60:61], s[0:1], 16")
        a(f"v_lshrrev_b32 v{vT}, 6, v0", f"v_and_b32 v{vL}, 63, v0", f"v_readfirstlane_b32 s{sW}, v{vT}")
        a(f"s_and_b32 s{sH}, s2, 7", f"s_lshl_b32 s{sH}, s{sH}, 2", "s_lshr_b32 s23, s2, 3", "s_and_b32 s23, s23, 3",
          f"s_add_u32 s{sH}, s{sH}, s23", f"s_lshr_b32 s{sI}, s2, 5")
        XV = 160; WR = 172; F = 184
        vU, vRow, vXo, vXo3, vWro = 208, 209, 210, 211, 212
        vS, vT2, vMean, vMb, vRc, vAcc = 213, 214, 215, 216, 217, 218
        vTQ = 235; sQ2 = 48; sM16 = 64
        a(f"v_and_b32 v{vU}, 31, v{vL}", f"v_lshrrev_b32 v{vRow}, 5, v{vL}",
          "s_lshl_b32 s23, s2, 2", f"s_add_u32 s23, s23, s{sW}", "s_lshl_b32 s23, s23, 1", f"v_add_u32 v{vRow}, s23, v{vRow}",
          f"v_lshlrev_b32 v{vWro}, 4, v{vU}", f"v_mul_u32_u24 v{vXo}, 1280, v{vRow}", f"v_add_u32 v{vXo}, v{vXo}, v{vWro}",
          f"v_cmp_gt_u32 s[{sM16}:{sM16+1}], 16, v{vU}", f"v_mov_b32 v{vXo3}, {BIG}", f"v_lshlrev_b32 v{vL16}, 4, v{vL}",
          f"v_cndmask_b32 v{vXo3}, v{vXo3}, v{vXo}, s[{sM16}:{sM16+1}]")
        a(f"v_lshrrev_b32 v{vT+1}, 1, v{vL}", f"v_lshlrev_b32 v{vT+1}, 13, v{vT+1}", f"v_and_b32 v{vT+2}, 1, v{vL}",
          f"v_lshl_add_u32 v{vT+1}, v{vT+2}, 7, v{vT+1}", f"s_lshl_b32 s29, s{sI}, 1", f"s_and_b32 s31, s{sW}, 1", "s_add_u32 s29, s29, s31",
          "s_lshl_b32 s29, s29, 18", "s_and_b32 s31, s2, 31", "s_lshl_b32 s31, s31, 2", f"s_add_u32 s31, s31, s{sW}", "s_lshl_b32 s31, s31, 11",
          f"v_and_b32 v{vT}, 15, v{vL}", f"v_lshlrev_b32 v234, 7, v{vT}")
        a("s_waitcnt lgkmcnt(0)")
        srd(a, sX, "s4", "s5", 2048*1280)
        srd(a, sWR, "s14", "s15", 1280)
        a(f"buffer_load_dwordx4 {vr(XV,4)}, v{vXo}, s[{sX}:{sX+3}], 0 offen",
          f"buffer_load_dwordx4 {vr(XV+4,4)}, v{vXo}, s[{sX}:{sX+3}], 0 offen offset:512",
          f"buffer_load_dwordx4 {vr(XV+8,4)}, v{vXo3}, s[{sX}:{sX+3}], 0 offen offset:1024")
        for i in range(3):
            a(f"buffer_load_dwordx4 {vr(WR+4*i,4)}, v{vWro}, s[{sWR}:{sWR+3}], 0 offen offset:{512*i}")
        a(f"s_lshl_b32 s23, s{sI}, 18", "s_add_u32 s62, s6, s23", "s_addc_u32 s63, s7, 0")
        srd(a, sC, "s62", "s63", 262144)
        a(f"buffer_load_dword v231, v234, s[{sC}:{sC+3}], s31 offen")
        a(f"s_cmp_ge_u32 s{sW}, 2", "s_cselect_b32 s62, s10, s8", "s_cselect_b32 s63, s11, s9",
          f"s_lshl_b32 s23, s{sH}, 8", "s_add_u32 s62, s62, s23", "s_addc_u32 s63, s63, 0")
        srd(a, sWt, "s62", "s63", 0)
        a(f"s_sub_u32 s{sWt+2}, {512*8192}, s23", f"buffer_load_dword v232, v{vT+1}, s[{sWt}:{sWt+3}], s29 offen")
        a("s_add_u32 s60, s60, s23", "s_addc_u32 s61, s61, 0", f"s_sub_u32 s75, {640*8192}, s23", "s_mov_b32 s74, 0")
        srd(a, sQ2, "s60", "s61", 0)
        srd(a, sWS, "s18", "s19", WS_BYTES)
        srd(a, sWO, "s12", "s13", 4096*1280)
        srd(a, sDb, "s16", "s17", 256)
        a(f"v_and_b32 v{vTQ}, 0xffff, v{vT+1}", f"s_lshl_b32 s23, s{sI}, 2", f"s_add_u32 s23, s23, s{sW}", "s_lshl_b32 s23, s23, 16",
          f"v_add_u32 v{vTQ}, s23, v{vTQ}")
        a(f"s_lshl_b32 s23, s{sW}, 5", f"s_add_u32 s23, s23, s{sH}", "s_lshl_b32 s23, s23, 2", f"s_add_u32 s23, s23, {CF}",
          f"s_lshl_b32 s31, s{sI}, 9", f"s_add_u32 s{sCFA}, s23, s31", f"s_sub_u32 s31, {15*512}, s31", f"s_add_u32 s{sCFB}, s23, s31",
          f"s_lshl_b32 s23, s{sH}, 7", f"s_lshl_b32 s31, s{sI}, 2", "s_add_u32 s23, s23, s31", f"s_add_u32 s{sKVa}, s23, {KVF}",
          "s_and_b32 s23, s2, 63", "s_lshl_b32 s23, s23, 2", f"s_add_u32 s23, s23, {YF}",
          f"s_cmp_ge_u32 s2, {FFN0}", f"s_cselect_b32 s23, s23, {BIG}",
          f"s_cmp_eq_u32 s{sW}, 1", f"s_cselect_b32 s31, s23, {BIG}", f"s_cmp_eq_u32 s{sW}, 0", f"s_cselect_b32 s31, s{sKVa}, s31",
          f"s_cmp_eq_u32 s2, {TOPWG}", f"s_cselect_b32 s23, {SEL}, {BIG}",
          f"v_lshl_add_u32 v{vT+3}, v{vT}, 2, s23", f"v_mov_b32 v{vZero}, 0",
          f"v_writelane_b32 v{vT+3}, s{sCFA}, 0", f"v_writelane_b32 v{vT+3}, s{sCFB}, 1", f"v_writelane_b32 v{vT+3}, s31, 2",
          self.wf_addr(23), f"v_writelane_b32 v{vT+3}, s23, 3",
          f"buffer_store_dword v{vZero}, v{vT+3}, s[{sWS}:{sWS+3}], 0 offen{SC}")
        a(f"v_lshrrev_b32 v{vT}, 2, v{vL}", f"v_lshrrev_b32 v{vT+1}, 5, v{vL}", f"v_mul_u32_u24 v{vT+1}, 3, v{vT+1}",
          f"v_and_b32 v{vT+2}, 3, v{vL}", f"v_xor_b32 v{vT+1}, v{vT+1}, v{vT+2}", f"v_lshlrev_b32 v{vT+1}, 4, v{vT+1}",
          f"v_lshl_add_u32 v{vCo}, v{vT}, 10, v{vT+1}", f"s_lshl_b32 s23, s{sW}, 16", f"v_add_u32 v{vCo}, s23, v{vCo}")
        for j in range(1, 4): a(f"v_add_u32 v{vCo+j}, {j*(16384-1024)}, v{vCo}")
        a(f"v_and_b32 v{vT}, 3, v{vT}", f"v_lshrrev_b32 v{vT+1}, 4, v{vL}", f"v_lshlrev_b32 v{vT+1}, 6, v{vT+1}",
          f"v_lshl_add_u32 v{vT}, v{vT}, 13, v{vT+1}", f"s_and_b32 s23, s{sW}, 1", "s_lshl_b32 s23, s23, 17",
          f"v_add_u32 v{vT}, s23, v{vT}", f"v_lshl_add_u32 v{vWo}, v{vT+2}, 4, v{vT}", f"v_xor_b32 v{vT+2}, 2, v{vT+2}",
          f"v_lshl_add_u32 v{vWo+2}, v{vT+2}, 4, v{vT}", f"v_add_u32 v{vWo+1}, {32768-1024}, v{vWo}",
          f"v_add_u32 v{vWo+3}, {3*(32768-1024)}, v{vWo+2}", f"v_add_u32 v{vWo+2}, {2*(32768-1024)}, v{vWo+2}")
        a(f"s_lshl_b32 s{sM0C}, s{sW}, 12", f"s_mov_b32 s{sOC}, 0", f"s_mov_b32 s{sOW}, 0", f"s_mov_b32 s{sStep}, {32*8192}")
        def dma_lines():
            preC = [f"s_mov_b32 m0, s{sM0C}"]
            lc = [f"buffer_load_dwordx4 v{vCo+j}, s[{sC}:{sC+3}], s{sOC} offen offset:{j*1024} lds" for j in range(4)]
            preW = [f"s_add_u32 m0, s{sM0C}, 16384"]
            lw = [f"buffer_load_dwordx4 v{vWo+j}, s[{sWt}:{sWt+3}], s{sOW} offen offset:{j*1024} lds" for j in range(4)]
            post = [f"s_add_u32 s{sOC}, s{sOC}, 64", f"s_add_u32 s{sOW}, s{sOW}, s{sStep}",
                    f"s_add_u32 s{sM0C}, s{sM0C}, 32768", f"s_and_b32 s{sM0C}, s{sM0C}, 0x1ffff"]
            return preC, lc, preW, lw, post
        def dma_stage():
            preC, lc, preW, lw, post = dma_lines()
            a(preC, "s_nop 0", lc, preW, "s_nop 0", lw, post)
        for i in range(4): a(f"v_mov_b32 v{vT+4+i}, 0")
        a(f"v_and_b32 v{vT}, 15, v{vL}", f"v_lshrrev_b32 v{vT+1}, 4, v{vL}", f"v_lshrrev_b32 v{vT+2}, 3, v{vT}",
          f"v_mul_u32_u24 v{vT+2}, 3, v{vT+2}", f"v_xor_b32 v{vT+2}, v{vT+2}, v{vT+1}", f"v_lshlrev_b32 v{vT+2}, 4, v{vT+2}",
          f"v_lshl_add_u32 v{vCa}, v{vT}, 6, v{vT+2}", f"s_and_b32 s23, s{sW}, 1", "s_lshl_b32 s23, s23, 13", f"v_add_u32 v{vCa}, s23, v{vCa}")
        for i in range(16):
            a(f"v_mfma_f32_32x32x16_bf16 {ar(16*i,16)}, {vr(vT+4,4)}, {vr(vT+4,4)}, 0")
        a(f"v_lshrrev_b32 v{vT+2}, 2, v{vT}", f"v_lshlrev_b32 v{vT+2}, 6, v{vT+2}", f"v_lshl_add_u32 v{vT+2}, v{vT+1}, 11, v{vT+2}",
          f"v_and_b32 v{vT+3}, 1, v{vL}", f"v_lshl_add_u32 v{vT+2}, v{vT+3}, 3, v{vT+2}", f"v_bfe_u32 v{vT+3}, v{vL}, 1, 1",
          f"v_and_b32 v{vT+1}, 1, v{vT+1}", f"v_lshl_or_b32 v{vT+3}, v{vT+1}, 1, v{vT+3}",
          f"s_lshr_b32 s23, s{sW}, 1", "s_lshl_b32 s23, s23, 13", "s_add_u32 s23, s23, 16384", f"v_add_u32 v{vT+2}, s23, v{vT+2}",
          f"v_lshl_add_u32 v{vWa}, v{vT+3}, 4, v{vT+2}", f"v_xor_b32 v{vWa+1}, 32, v{vWa}")
        stamp(a, 1)
        a("s_waitcnt vmcnt(3)")
        stamp(a, 2)
        dma_stage()
        for i in range(12):
            a(f"v_lshlrev_b32 v{F+2*i}, 16, v{XV+i}", f"v_and_b32 v{F+2*i+1}, 0xffff0000, v{XV+i}")
        a(f"v_add_f32 v{vS}, v{F}, v{F+1}", f"v_add_f32 v{vT2}, v{F+2}, v{F+3}")
        for i in range(4, 24, 2):
            a(f"v_add_f32 v{vS}, v{vS}, v{F+i}", f"v_add_f32 v{vT2}, v{vT2}, v{F+i+1}")
        a(f"v_add_f32 v{vS}, v{vS}, v{vT2}")
        allreduce32_add(a, vS, vT2)
        a(f"v_mul_f32 v{vMean}, 0x3acccccd, v{vS}", f"v_mov_b32 v{vAcc}, 0", f"v_mov_b32 v{vS}, 0")
        for i in range(24):
            t = vT + (i % 4); acc = vAcc if i < 16 else vS
            a(f"v_sub_f32 v{t}, v{F+i}, v{vMean}", f"v_fmac_f32 v{acc}, v{t}, v{t}")
        a(f"v_cndmask_b32 v{vS}, 0, v{vS}, s[{sM16}:{sM16+1}]", f"v_add_f32 v{vS}, v{vS}, v{vAcc}")
        allreduce32_add(a, vS, vT2)
        a(f"v_mul_f32 v{vS}, 0x3acccccd, v{vS}")
        bf16r(a, vS)
        a(f"v_add_f32 v{vS}, 0x3727c5ac, v{vS}")
        bf16r(a, vS)
        a(f"v_sqrt_f32 v{vS}, v{vS}", f"v_mov_b32 v{vMb}, v{vMean}")
        bf16r(a, vS)
        a(f"v_rcp_f32 v{vRc}, v{vS}")
        bf16r(a, vMb)
        a(f"v_mov_b32 v{vAcc}, 0")
        for i in range(12):
            f0, f1 = F + 2*i, F + 2*i + 1
            a(f"v_sub_f32 v{f0}, v{f0}, v{vMb}", f"v_sub_f32 v{f1}, v{f1}, v{vMb}", f"v_cvt_pk_bf16_f32 v{vT}, v{f0}, v{f1}",
              f"v_lshlrev_b32 v{f0}, 16, v{vT}", f"v_and_b32 v{f1}, 0xffff0000, v{vT}",
              f"v_mul_f32 v{f0}, v{f0}, v{vRc}", f"v_mul_f32 v{f1}, v{f1}, v{vRc}", f"v_cvt_pk_bf16_f32 v{XV+i}, v{f0}, v{f1}",
              f"v_lshlrev_b32 v{f0}, 16, v{XV+i}", f"v_and_b32 v{f1}, 0xffff0000, v{XV+i}",
              f"v_lshlrev_b32 v{vT+1}, 16, v{WR+i}", f"v_and_b32 v{vT+2}, 0xffff0000, v{WR+i}",
              f"v_fmac_f32 v{vAcc}, v{f0}, v{vT+1}", f"v_fmac_f32 v{vAcc}, v{f1}, v{vT+2}")
        TR = SPARE
        a(f"v_and_b32 v{vT}, 7, v{vRow}", f"v_lshlrev_b32 v{vT}, 4, v{vT}", f"v_lshl_add_u32 v{vT}, v{vU}, 7, v{vT}",
          f"v_add_u32 v{vT}, {TR}, v{vT}")
        for i in range(3): a(f"ds_write_b128 v{vT}, {vr(XV+4*i,4)} offset:{i*4096}")
        allreduce32_add(a, vAcc, vT2)
        bf16r(a, vAcc)
        a(f"v_ashrrev_i32 v{vT2}, 31, v{vAcc}", f"v_or_b32 v{vT2}, 0x80000000, v{vT2}", f"v_xor_b32 v{vAcc}, v{vAcc}, v{vT2}",
          f"v_and_b32 v{vAcc}, 0xffff0000, v{vAcc}", f"v_sub_u32 v{vT2}, 0xffff, v{vRow}", f"v_or_b32 v{vAcc}, v{vAcc}, v{vT2}",
          f"v_lshlrev_b32 v{vT2}, 2, v{vRow}", f"v_add_u32 v{vT2}, {RKEY}, v{vT2}", f"v_mov_b32 v{vT+3}, {BIG}",
          f"v_cmp_eq_u32 vcc, 0, v{vU}", f"v_lshlrev_b32 v{vT}, 4, v0", f"v_add_u32 v{vT}, {TR}, v{vT}",
          f"v_cndmask_b32 v{vT2}, v{vT+3}, v{vT2}, vcc")
        a(f"v_lshrrev_b32 v{vT+1}, 3, v0", f"v_and_b32 v{vT+2}, 7, v0", f"v_lshlrev_b32 v{vT+2}, 4, v{vT+2}",
          f"v_lshl_add_u32 v{vT+1}, v{vT+1}, 8, v{vT+2}", f"v_cmp_gt_u32 vcc, 128, v0",
          "s_lshr_b32 s23, s2, 1", "s_mul_i32 s23, s23, 20480", "s_and_b32 s31, s2, 1", "s_lshl_b32 s31, s31, 7", "s_add_u32 s23, s23, s31",
          f"v_cndmask_b32 v{vT+2}, v{vT+3}, v{vT+1}, vcc", "s_add_u32 s31, s23, 8192", "s_add_u32 s62, s23, 16384")
        stamp(a, 3)
        a("s_waitcnt lgkmcnt(0)", "s_barrier")
        for i in range(3): a(f"ds_read_b128 {vr(XV+4*i,4)}, v{vT} offset:{i*4096}")
        a(f"buffer_store_dword v{vAcc}, v{vT2}, s[{sWS}:{sWS+3}], 0 offen{SC}", f"s_mov_b32 s{sIT}, 0", "s_waitcnt lgkmcnt(0)")
        a(f"buffer_store_dwordx4 {vr(XV,4)}, v{vT+1}, s[{sWS}:{sWS+3}], s23 offen{SC}",
          f"buffer_store_dwordx4 {vr(XV+4,4)}, v{vT+1}, s[{sWS}:{sWS+3}], s31 offen{SC}",
          f"buffer_store_dwordx4 {vr(XV+8,4)}, v{vT+2}, s[{sWS}:{sWS+3}], s62 offen{SC}")
        a(stampv(11))
        dma_stage(); dma_stage()
        a("s_getpc_b64 s[62:63]", f"{name}_pc:", "s_lshr_b32 s23, s2, 3", "s_and_b32 s23, s23, 7", "s_lshl_b32 s23, s23, 2",
          f"s_add_u32 s23, s23, s{sW}", "s_lshl_b32 s23, s23, 11", f"s_min_u32 s23, s23, {name}_codeend-{name}_pc-2048",
          "v_add_u32 v234, s23, v234", "global_load_dword v231, v234, s[62:63]")
        dma_stage()
        a(stampv(12))
        a("s_waitcnt vmcnt(29)", "s_barrier")
        stampc(a, 12)
        a(f"s_cmp_ge_u32 s{sW}, 2", f"s_cbranch_scc1 {name}_roleV")
        def reads(role, buf, off):
            CFr = (FB if role == "K" else FA) + 32 * buf
            WF = (FA if role == "K" else FB) + 32 * buf
            rc = [f"ds_read_b128 {vr(CFr+4*i,4)}, v{vCa} offset:{off + i*1024}" for i in range(8)]
            rw = [f"ds_read_b64_tr_b16 {vr(WF+4*cb+2*t,2)}, v{vWa+(cb&1)} offset:{off + t*1024 + (cb>>1)*256}" for cb in range(8) for t in range(2)]
            return rc, rw
        for role in ("K", "V"):
            if role == "V": a.label(f"{name}_roleV")
            rc, rw = reads(role, 0, 0)
            a(rc, rw, "s_waitcnt lgkmcnt(0)")
            a(".p2align 6")
            a.label(f"{name}_loop{role}")
            if DBG: a(f"s_mov_b32 m0, s{sIT}", stampv("m0"))
            for half in range(2):
                mf = [f"{MF} {ar((i*8+j)*4,4)}, {vr(FA+32*half+4*i,4)}, {vr(FB+32*half+4*j,4)}, {ar((i*8+j)*4,4)}" for i in range(8) for j in range(8)]
                sc = {}; mem = {}; va = {}
                sc[0] = [f"s_waitcnt vmcnt({17 if half == 0 else 18})"]; sc[1] = ["s_barrier"]
                rc, rw = reads(role, 1 - half, 32768 if half == 0 else 0)
                preC, lc, preW, lw, post = dma_lines()
                ds = []
                for i in range(8): ds += [rw[2*i], rw[2*i+1], rc[i]]
                for i, x in enumerate(ds): mem[2 + 2*i] = [x]
                st_ = 2 if half == 0 else 6
                sc[4] = preC
                for j in range(4): mem[5 + st_*j] = [lc[j]]
                sc[4 + 4*st_] = preW
                for j in range(4): mem[5 + st_*(4+j)] = [lw[j]]
                for j, x in enumerate(post): sc[48 + j] = [x]
                if half == 0:
                    sc[16] = [f"s_bitcmp1_b32 0x2a, s{sIT}"]
                    sc[17] = [f"s_cselect_b32 s{sQ2+2}, s75, 0"]
                    sc[18] = [f"s_cselect_b32 s23, {256*8192}, 0"]
                    mem[21] = [f"buffer_load_dword v231, v{vTQ}, s[{sQ2}:{sQ2+3}], s74 offen"]
                    sc[22] = ["s_add_u32 s74, s74, s23"]
                    sc[2] = [f"s_bitcmp1_b32 0x41, s{sIT}"]
                    sc[3] = [f"s_cbranch_scc1 {name}_p1stub{role}", f"{name}_p1back{role}:"]
                    va[52] = [f"v_xor_b32 v{vCa}, 0x10000, v{vCa}"]
                    va[53] = [f"v_xor_b32 v{vWa}, 0x10000, v{vWa}"]
                    va[54] = [f"v_xor_b32 v{vWa+1}, 0x10000, v{vWa+1}"]
                    sc[63] = ["s_waitcnt lgkmcnt(0)"]
                else:
                    sc[54] = [f"s_add_u32 s{sIT}, s{sIT}, 1"]
                    sc[61] = [f"s_cmp_lt_u32 s{sIT}, 8"]
                    sc[62] = ["s_waitcnt lgkmcnt(0)"]
                    sc[63] = [f"s_cbranch_scc1 {name}_loop{role}"]
                a(weave(mf, sc, mem, va))
            if role == "K":
                a("s_mov_b32 s60, 2048", "s_mov_b32 s61, 8192", f"s_mov_b32 s62, {KFO}", f"s_branch {name}_p1epi")
            else:
                a("s_mov_b32 s60, 8192", "s_mov_b32 s61, 2048", f"s_mov_b32 s62, {VFO}")
        t = Asm()
        for role in ("K", "V"):
            t.label(f"{name}_p1stub{role}")
            t(f"s_call_b64 s[{sRet}:{sRet+1}], {name}_p1sub", f"s_branch {name}_p1back{role}")
        t.label(f"{name}_p1sub")
        t(f"s_cmp_eq_u32 s{sIT}, 0", f"s_cbranch_scc0 {name}_p1sub6")
        t(f"s_cmp_eq_u32 s{sW}, 0", f"s_cselect_b32 s23, s2, {BIG}", f"v_mov_b32 v{vT}, {BIG}", f"v_mov_b32 v{vT+1}, 1",
          f"v_writelane_b32 v{vT}, s23, 0", f"v_lshlrev_b32 v{vZero}, 2, v{vL}", f"buffer_store_byte v{vT+1}, v{vT}, s[{sDb}:{sDb+3}], 0 offen{SC}")
        t(f"s_setpc_b64 s[{sRet}:{sRet+1}]")
        t.label(f"{name}_p1sub6")
        t(f"s_mov_b32 s{sC+2}, 0", f"s_mov_b32 s{sWt}, s60", f"s_mov_b32 s{sWt+1}, s61", f"s_mov_b32 s{sWt+2}, s75",
          f"s_lshr_b32 s{sOW}, s{sW}, 1", f"s_lshl_b32 s{sOW}, s{sOW}, 18", f"s_mov_b32 s{sStep}, {64*8192}",
          f"buffer_load_dword v{vPoll}, v{vZero}, s[{sDb}:{sDb+3}], 0 offen{SC}",
          f"s_setpc_b64 s[{sRet}:{sRet+1}]")
        self.tail += t.lines
        a.label(f"{name}_p1epi")
        stamp(a, 4); stampc(a, 13)
        self.sWq = sWt; self.sWm = sM0C; self.sWoff = sOW

    def kv_item(self, tt, j, T):
        sc = []
        if j == 0: sc = [f"s_mul_i32 s63, s60, {tt}", "s_add_u32 s63, s63, s62"]
        elif j % 2 == 0: sc = ["s_add_u32 s63, s63, s61"]
        va = [f"v_accvgpr_read_b32 v{T+4+r}, a{((2*tt)*8+j)*4+r}" for r in range(4)]
        va += [f"v_accvgpr_read_b32 v{T+8+r}, a{((2*tt+1)*8+j)*4+r}" for r in range(4)]
        va += [f"v_cvt_pk_bf16_f32 v{T+r}, v{T+4+2*r}, v{T+5+2*r}" for r in range(4)]
        st = f"buffer_store_dwordx4 {vr(T,4)}, v{vL16}, s[{sWS}:{sWS+3}], s63 offen offset:{(j&1)*1024}{SC}"
        return sc, va, st

    def top8(self):
        name = self.name
        self.a(f"s_cmp_eq_u32 s2, {TOPWG}", f"s_cbranch_scc1 {name}_top8")
        self.a.label(f"{name}_notop")
        a = Asm()
        KEY = 32
        a.label(f"{name}_top8")
        a(f"s_cmp_lg_u32 s{sW}, 0", f"s_cbranch_scc1 {name}_notop")
        a(f"s_mov_b32 s23, {RKEY}", f"s_mov_b32 s31, {RKEY+4096}")
        for q in range(8):
            a(f"buffer_load_dwordx4 {vr(KEY+4*q,4)}, v{vL16}, s[{sWS}:{sWS+3}], s{23 if q < 4 else 31} offen offset:{(q%4)*1024}{SC}")
        vM, vPrev, vSel, vTok, vTmp, vRow, vR = vT + 4, vT + 5, vT + 6, vT + 7, vT + 8, vT + 9, vT + 10
        a(f"v_mov_b32 v{vPrev}, 0", f"v_mov_b32 v{vSel}, 0", f"v_and_b32 v{vTok}, 7, v{vL}", "s_mov_b32 s23, 0", "s_waitcnt vmcnt(0)")
        a.label(f"{name}_top")
        a(f"v_max3_u32 v{vM}, v{KEY}, v{KEY+1}, v{KEY+2}", f"v_max3_u32 v{vTmp}, v{KEY+3}, v{KEY+4}, v{KEY+5}")
        for q in range(6, 30, 4):
            a(f"v_max3_u32 v{vM}, v{vM}, v{KEY+q}, v{KEY+q+1}", f"v_max3_u32 v{vTmp}, v{vTmp}, v{KEY+q+2}, v{KEY+q+3}")
        a(f"v_max3_u32 v{vM}, v{vM}, v{KEY+30}, v{KEY+31}", f"v_max_u32 v{vM}, v{vM}, v{vTmp}")
        for m in ("quad_perm:[1,0,3,2]", "quad_perm:[2,3,0,1]", "row_half_mirror", "row_mirror"):
            a("s_nop 1", f"v_max_u32_dpp v{vM}, v{vM}, v{vM} {m} row_mask:0xf bank_mask:0xf")
        xreduce(a, "v_max_u32", vM, vTmp)
        a(f"v_add_u32 v{vPrev}, v{vPrev}, v{vM}", f"v_cmp_eq_u32 vcc, s23, v{vTok}")
        for q in range(32): a(f"v_sub_u32 v{KEY+q}, v{KEY+q}, v{vM}")
        a(f"v_cndmask_b32 v{vSel}, v{vSel}, v{vPrev}, vcc", "s_add_u32 s23, s23, 1", "s_cmp_lt_u32 s23, 8", f"s_cbranch_scc1 {name}_top")
        a(f"v_and_b32 v{vRow}, 0xffff, v{vSel}", f"v_sub_u32 v{vRow}, 0xffff, v{vRow}", f"v_and_b32 v{vRow}, 2047, v{vRow}")
        a(f"v_ashrrev_i32 v{vM}, 31, v{vSel}", f"v_not_b32 v{vM}, v{vM}", f"v_or_b32 v{vM}, 0x80000000, v{vM}",
          f"v_xor_b32 v{vR}, v{vSel}, v{vM}", f"v_and_b32 v{vR}, 0xffff0000, v{vR}",
          f"v_mul_f32 v{vR}, 0xbfb8aa3b, v{vR}", f"v_exp_f32 v{vR}, v{vR}", "s_nop 0", f"v_add_f32 v{vR}, 1.0, v{vR}",
          f"v_rcp_f32 v{vR}, v{vR}", "s_nop 0")
        bf16r(a, vR)
        a(f"v_lshlrev_b32 v{vM}, 2, v{vL}", f"v_add_u32 v{vM}, {SEL}, v{vM}", f"v_mov_b32 v{vPrev}, {BIG}",
          f"v_cmp_gt_u32 vcc, 16, v{vL}", f"v_add_u32 v{vRow}, 1, v{vRow}", f"v_or_b32 v{vR}, 1, v{vR}", f"v_cndmask_b32 v{vM}, v{vPrev}, v{vM}, vcc",
          f"v_cmp_gt_u32 vcc, 8, v{vL}", "s_nop 1", f"v_cndmask_b32 v{vR}, v{vR}, v{vRow}, vcc",
          f"buffer_store_dword v{vR}, v{vM}, s[{sWS}:{sWS+3}], 0 offen{SC}", f"s_branch {name}_notop")
        self.tail += a.lines

    def phase2(self):
        a = self.a; name = self.name
        sWq, sWm, sWoff = self.sWq, self.sWm, self.sWoff
        vm = VM()
        vm.issue("old", 30)
        a(f"s_lshl_b32 s23, s{sH}, 19", "s_add_u32 s62, s62, s23", f"s_lshl_b32 s23, s{sI}, 16", "s_add_u32 s62, s62, s23",
          f"s_and_b32 s23, s{sW}, 1", "s_lshl_b32 s23, s23, 15", "s_add_u32 s62, s62, s23")
        a(f"s_lshl_b32 s23, s{sI}, 2", f"s_add_u32 s23, s23, s{sW}", f"s_mul_i32 s{sXo}, s23, {2*20480}", f"s_add_u32 s{sXo+1}, s{sXo}, 20480",
          f"s_sub_u32 s23, 15, s{sI}", "s_lshl_b32 s23, s23, 2", f"s_add_u32 s23, s23, s{sW}", f"s_mul_i32 s{sXo+2}, s23, {2*20480}",
          f"s_add_u32 s{sXo+3}, s{sXo+2}, 20480")
        def xload(s_, qb):
            return f"buffer_load_dwordx4 {ar(XR+16*(s_%4)+4*qb,4)}, v{vL16}, s[{sWS}:{sWS+3}], s{sXo+qb} offen offset:{(s_%4)*1024}{SC}"
        self.poll_check(a, "ln", vPoll, vZero, sDb, [f"v_cmp_ne_u32 vcc, 0x01010101, v{vPoll}"])
        items3 = [self.kv_item(3, j, 96 + 12 * j) for j in range(8)]
        for (sc, va, st) in items3: a(va[:8])
        for s_ in range(4):
            a([xload(s_, qb) for qb in range(4)]); vm.issue(f"X{s_}", 4)
        for qb in range(4): a(f"s_add_u32 s{sXo+qb}, s{sXo+qb}, 4096")
        for (sc, va, st) in items3:
            a(sc, va[8:], st); vm.issue("st")
        a(f"s_lshr_b32 s23, s{sW}, 1", "s_lshl_b32 s23, s23, 13", f"v_subrev_u32 v{vWa}, s23, v{vWa}", f"v_subrev_u32 v{vWa+1}, s23, v{vWa+1}")
        def wreads(buf, off):
            return [f"ds_read_b64_tr_b16 {vr(Q+32*buf+4*cb+2*t,2)}, v{vWa+(cb&1)} offset:{off + t*1024 + (cb>>1)*256}" for cb in range(8) for t in range(2)]
        a(f"s_waitcnt vmcnt({vm.need('X0')})", "s_barrier")
        stamp(a, 6)
        a(wreads(0, 0))
        a(f"s_lshl_b32 s23, s{sH}, 19", f"s_add_u32 s23, s23, {KFO}", "s_add_u32 s6, s18, s23", "s_addc_u32 s7, s19, 0",
          f"s_add_u32 s8, s6, {VFO-KFO}", "s_addc_u32 s9, s7, 0", f"s_sub_u32 s23, 16, s{sI}", "s_lshl_b32 s23, s23, 15")
        srd(a, sK, "s6", "s7", "s23")
        srd(a, sV, "s8", "s9", "s23")
        a("s_waitcnt lgkmcnt(0)")
        items = [(tt, j) for tt in range(3) for j in range(8)]
        NE = int(os.environ.get("NE", "12"))
        per = [len(range(k, 24, NE)) for k in range(NE)] if 24 % NE else [24 // NE] * NE
        misc = [f"v_and_b32 v{vT}, 15, v{vL}", f"v_lshrrev_b32 v{vT+1}, 4, v{vL}", f"v_lshlrev_b32 v{vT+1}, 2, v{vT+1}", f"v_sub_u32 v{vT}, v{vT}, v{vT+1}"]
        misc += [f"v_cmp_le_i32 s[{sMask+2*r}:{sMask+2*r+1}], {r}, v{vT}" for r in range(4)]
        misc += [f"v_mov_b32 v{vNI}, 0xff800000", f"v_and_b32 v{vPo}, 7, v{vL}", f"v_lshlrev_b32 v{vPo}, 2, v{vPo}",
                 f"v_add_u32 v{vPo}, s30, v{vPo}",
                 f"v_mov_b32 v{vT+2}, {BIG}", f"v_mov_b32 v{vT+3}, 1", f"v_writelane_b32 v{vT+2}, s29, 0"]
        a(f"s_lshl_b32 s30, s{sH}, 7", f"s_add_u32 s30, s30, {KVF}", f"s_mov_b32 s{sThr}, 0x47800000",
          f"s_cmp_eq_u32 s{sW}, 0", f"s_cselect_b32 s29, s{sKVa}, {BIG}")
        zero = [f"v_accvgpr_write_b32 a{O+i}, 0" for i in range(128)]
        late = misc + zero
        SFLAG = NE + 3 if NE % 2 == 0 else NE + 2
        SPOLL = min(SFLAG + 2, 18)
        it = 0
        for s_ in range(20):
            buf = s_ & 1
            C = lambda d: "0" if s_ == 0 else vr(d, 4)
            mf = [f"{MF} {vr(QACC+(db*4+qb)*4,4)}, {vr(Q+32*buf+4*db,4)}, {ar(XR+16*(s_%4)+4*qb,4)}, {C(QACC+(db*4+qb)*4)}" for qb in range(4) for db in range(8)]
            sc = {g: [] for g in range(32)}; mem = {g: [] for g in range(32)}; va = {g: [] for g in range(32)}
            tags = {g: [] for g in range(32)}
            if s_ & 1: sc[0].append("s_barrier")
            if s_ < 19:
                off = [8192, 32768, 32768 + 8192, 0][s_ % 4]
                pos = [1, 2, 3, 4, 5, 6, 8, 9, 10, 12, 13, 14, 16, 17, 18, 20]
                for p_, x in zip(pos, wreads(1 - buf, off)): mem[p_].append(x)
            if s_ + 4 < 20:
                for qb in range(4):
                    mem[8*qb+7].append(xload(s_, qb)); tags[8*qb+7].append(f"X{s_+4}")
                if s_ % 4 == 3:
                    for qb in range(3): sc[8*qb+8].append(f"s_add_u32 s{sXo+qb}, s{sXo+qb}, 4096")
            if s_ % 4 == 0 and s_ > 0: sc[1].append(f"s_add_u32 s{sXo+3}, s{sXo+3}, 4096")
            stage = (s_ + 1) // 2 + 3
            if (s_ & 1) and stage < 10:
                sc[10].append(f"s_add_u32 m0, s{sWm}, 16384")
                for j, g in enumerate([11, 19, 22, 25]):
                    mem[g].append(f"buffer_load_dwordx4 v{vWo+j}, s[{sWq}:{sWq+3}], s{sWoff} offen offset:{j*1024} lds"); tags[g].append(f"W{stage}")
                sc[26].append(f"s_add_u32 s{sWoff}, s{sWoff}, {64*8192}")
                sc[27].append(f"s_add_u32 s{sWm}, s{sWm}, 32768"); sc[28].append(f"s_and_b32 s{sWm}, s{sWm}, 0x1ffff")
            if s_ % 4 == 2:
                va[24].append(f"v_xor_b32 v{vWa}, 0x10000, v{vWa}"); va[26].append(f"v_xor_b32 v{vWa+1}, 0x10000, v{vWa+1}")
            if s_ < NE:
                n_it = per[s_]
                for k in range(n_it):
                    tt, j = items[it]; T = 232 + 12 * (it % 2); it += 1
                    isc, iva, ist = self.kv_item(tt, j, T)
                    g0 = 0 if k == 0 else 14
                    gst = 21 if (k == 0 and n_it > 1) else 29
                    if n_it == 1: g0 = 8
                    for q, x in enumerate(iva): va[g0 + q + (2 if k else 0)].append(x)
                    for q, x in enumerate(isc): sc[(gst - 8 if k == 0 else 22) + q + (0 if k == 0 else 0)].append(x)
                    mem[gst].append(ist); tags[gst].append("st")
            else:
                nl = -(-len(late) // (20 - s_))
                chunk = late[:nl]; late = late[nl:]
                free = sorted(range(31), key=lambda g: (len(mem[g]) + len(va[g]), g))
                gs = sorted(free[:len(chunk)])
                for g, x in zip(gs, chunk): va[g].append(x)
            if s_ == SFLAG:
                mem[11].append(f"buffer_store_dword v{vT+3}, v{vT+2}, s[{sWS}:{sWS+3}], 0 offen{SC}"); tags[11].append("flag")
            if s_ == SPOLL:
                mem[21].append(f"buffer_load_dword v{vPoll}, v{vPo}, s[{sWS}:{sWS+3}], 0 offen{SC}"); tags[21].append("poll")
            for g in range(31):
                for t_ in tags[g]: vm.issue(t_)
            if s_ < 19:
                need = [f"X{s_+1}"]
                if (s_ + 1) & 1:
                    st1 = (s_ + 2) // 2
                    if 4 <= st1 < 10: need.append(f"W{st1}")
                if s_ + 1 == SFLAG: need.append("st")
                sc[31].append(f"s_waitcnt vmcnt({vm.need(*need)}) lgkmcnt(0)")
            for t_ in tags[31]: vm.issue(t_)
            a(weave(mf, sc, mem, va))
        assert it == 24 and not late
        a(f"s_and_b32 s23, s{sW}, 1", "s_lshl_b32 s23, s23, 12", f"s_cmp_lt_u32 s{sW}, 2", f"s_cselect_b32 s{sKm}, {131072-24576}, 0",
          f"s_add_u32 s{sKm}, s{sKm}, s23", f"s_lshl_b32 s{sKo}, s{sW}, 12", f"s_mov_b32 s{sVo}, s{sKo}", f"s_add_u32 s{sVm}, s{sVo}, {32768+16384}",
          "s_waitcnt vmcnt(0)")
        stamp(a, 5)
        self.poll_check(a, "kv", vPoll, vPo, sWS, [f"v_cmp_eq_u32 vcc, 0, v{vPoll}"])
        stamp(a, 7)
        a("s_load_dwordx4 s[4:7], s[0:1], 64", "s_load_dwordx2 s[8:9], s[0:1], 80")
        for (srdn, so, sm) in [(sK, sKo, sKm)] * 3 + [(sV, sVo, sVm)] * 2:
            a(f"s_mov_b32 m0, s{sm}", "s_nop 0")
            a([f"buffer_load_dwordx4 v{vL16}, s[{srdn}:{srdn+3}], s{so} offen offset:{j*1024}{SC} lds" for j in range(4)])
            a(f"s_add_u32 s{so}, s{so}, 16384", f"s_add_u32 s{sm}, s{sm}, 32768", f"s_and_b32 s{sm}, s{sm}, 0x1ffff")
        self.top8()
        a(f"v_mov_b32 v{vT}, 0x3e0293ee", f"v_mov_b32 v{vT+1}, 0x3e0293ee")
        def conv(X):
            for ks in range(4):
                for qb in range(2):
                    d = Q + 32 * X + 8 * ks + 4 * qb
                    for hh in range(2):
                        s0 = QACC + ((2 * ks + hh) * 4 + 2 * X + qb) * 4
                        a(f"v_pk_mul_f32 {vr(s0,2)}, {vr(s0,2)}, {vr(vT,2)}", f"v_pk_mul_f32 {vr(s0+2,2)}, {vr(s0+2,2)}, {vr(vT,2)}",
                          f"v_cvt_pk_bf16_f32 v{d+2*hh}, v{s0}, v{s0+1}", f"v_cvt_pk_bf16_f32 v{d+2*hh+1}, v{s0+2}, v{s0+3}")
        conv(0)
        self.wo_dma()
        a("s_waitcnt lgkmcnt(0)", f"s_cmp_ge_u32 s{sW}, 2", "s_cselect_b32 s4, s6, s4", "s_cselect_b32 s5, s7, s5")
        srd(a, 52, "s4", "s5", 640 * 3456); srd(a, 60, "s8", "s9", 1728 * 1280)
        conv(1)
        for i in range(4): a(f"v_mov_b32 v{LS+i}, 0")
        a(f"s_add_u32 s23, s{sW}, 1", "s_lshr_b32 s23, s23, 1", f"s_lshl_b32 s{sCnt}, s{sI}, 1", f"s_add_u32 s{sCnt}, s{sCnt}, s23",
          f"s_lshl_b32 s23, s{sI}, 2", f"s_sub_u32 s{sNSS}, 28, s23", f"s_and_b32 s23, s{sW}, 1", f"s_add_u32 s{sNSS}, s{sNSS}, s23")
        a(f"v_mov_b32 v{vKV}, v{vL16}", f"v_add_u32 v{vT+2}, {3*32768+8192}, v{vL16}", "s_waitcnt vmcnt(17)", "s_barrier")
        a([f"ds_read_b128 {ar(KF+4*i,4)}, v{vT+2} offset:{i*1024}" for i in range(8)])
        self.ffn_setup()

    def rowmap(self, a, q):
        a(f"v_add_u32 v{vT+4}, {64*q}, v{vL}", f"v_mul_u32_u24 v{vT+3}, 6554, v{vT+4}", f"s_add_u32 m0, s34, {q*1024}",
          f"v_lshrrev_b32 v{vT+3}, 16, v{vT+3}", f"v_mul_u32_u24 v{vT+3}, {1280-160}, v{vT+3}", f"v_lshl_add_u32 v{vT+3}, v{vT+4}, 4, v{vT+3}")

    def wo_dma(self):
        a = self.a
        a("s_and_b32 s62, s2, 1", "s_lshl_b32 s62, s62, 2", f"s_add_u32 s62, s62, s{sW}", "s_lshr_b32 s63, s2, 1",
          f"s_mul_i32 s23, s63, {32*1280}", "s_mul_i32 s31, s62, 160", "s_add_u32 s23, s23, s31",
          f"s_mul_i32 s34, s{sW}, 5120", f"s_add_u32 s34, s34, {SPARE}")
        for q in range(5):
            self.rowmap(a, q)
            a(f"buffer_load_dwordx4 v{vT+3}, s[52:55], s23 offen lds")
        a(f"v_lshrrev_b32 v6, 2, v{vL}", "v_mul_u32_u24 v6, 160, v6", f"v_and_b32 v{vT+3}, 3, v{vL}",
          f"v_lshl_add_u32 v6, v{vT+3}, 3, v6", "v_add_u32 v6, s34, v6",
          "s_lshl_b32 s30, s62, 7", "s_add_u32 s30, s30, s63", "s_mul_i32 s30, s30, 5120", f"s_add_u32 s30, s30, {WOF}")

    def wo_store(self):
        a = self.a
        a("s_waitcnt vmcnt(8)")
        for cb in range(5):
            for tt in range(2): a(f"ds_read_b64_tr_b16 {vr(232+4*cb+2*tt,2)}, v6 offset:{tt*16*160 + cb*32}")
        a("s_add_u32 s31, s30, 4096", "s_waitcnt lgkmcnt(0)")
        for cb in range(5):
            a(f"buffer_store_dwordx4 {vr(232+4*cb,4)}, v{vL16}, s[{sWS}:{sWS+3}], s{30 if cb < 4 else 31} offen offset:{(cb%4)*1024}{SC}")

    def wf_addr(self, d):
        return [f"s_and_b32 s{d}, s2, 1", f"s_lshl_b32 s{d}, s{d}, 2", f"s_add_u32 s{d}, s{d}, s{sW}", f"s_lshl_b32 s{d}, s{d}, 7",
                "s_lshr_b32 s31, s2, 1", f"s_add_u32 s{d}, s{d}, s31", f"s_lshl_b32 s{d}, s{d}, 2", f"s_add_u32 s{d}, s{d}, {WF}"]

    def wof_arrive(self):
        return [f"v_mov_b32 v{vT}, {BIG}", f"v_mov_b32 v{vT+1}, 1", f"v_writelane_b32 v{vT}, s37, 0", "s_waitcnt vmcnt(8)",
                f"buffer_store_dword v{vT+1}, v{vT}, s[{sWS}:{sWS+3}], 0 offen{SC}", f"s_mov_b32 s37, {BIG}"]

    def ffn_setup(self):
        a = self.a
        a(f"s_sub_u32 s23, s2, {FFN0}", f"s_cmp_lt_u32 s23, {FFN1-FFN0}", "s_cselect_b32 s32, 1, 41", self.wf_addr(37), "s_mov_b32 s38, 0",
          "s_sub_u32 s31, s2, 64", "s_cmp_lt_u32 s31, 128", "s_cselect_b32 s32, 21, s32",
          f"v_and_b32 v11, 15, v{vL}", "v_lshlrev_b32 v10, 2, v11", f"v_add_u32 v10, {SEL}, v10", "v_mov_b32 v8, 0", "v_mov_b32 v9, 0",
          "s_waitcnt lgkmcnt(0)")

    def ffn_stub(self):
        name = self.name
        a = Asm()
        G = 232; FW = 192; FX = 212; Y = 236
        a.label(f"{name}_fstub")
        a("s_add_u32 s38, s38, 1", "s_cmp_eq_u32 s38, 2", f"s_cbranch_scc0 {name}_fst2")
        a(self.wof_arrive())
        a.label(f"{name}_fst2")
        a("s_cmp_ge_u32 s32, 8", f"s_cbranch_scc1 {name}_f6", "s_cmp_ge_u32 s32, 4", f"s_cbranch_scc1 {name}_f2",
          "s_cmp_eq_u32 s32, 1", f"s_cbranch_scc1 {name}_fret", "s_cmp_eq_u32 s32, 3", f"s_cbranch_scc1 {name}_f1")
        a(f"buffer_load_dword v15, v10, s[{sWS}:{sWS+3}], 0 offen{SC}", f"s_branch {name}_fret")
        a.label(f"{name}_f1")
        a("s_waitcnt vmcnt(8)")
        self.poll_check(a, "sel", 15, 10, sWS, ["v_cmp_eq_u32 vcc, 0, v15"])
        a(f"s_sub_u32 s23, s2, {FFN0}", f"v_and_b32 v{vT}, 7, v{vL}", f"v_lshlrev_b32 v{vT+1}, 2, v{vT}", f"ds_bpermute_b32 v{vT+2}, v{vT+1}, v15",
          "s_lshl_b32 s33, s23, 6", f"s_and_b32 s31, s{sW}, 1", "s_lshl_b32 s31, s31, 5", "s_add_u32 s33, s33, s31",
          "s_mul_i32 s35, s23, 40960", f"s_mul_i32 s31, s{sW}, 320", "s_add_u32 s35, s35, s31",
          "s_mul_i32 s36, s23, 20480", f"s_mul_i32 s31, s{sW}, 640", "s_add_u32 s36, s36, s31", f"s_add_u32 s36, s36, {YP}",
          "s_waitcnt lgkmcnt(0)")
        a(f"v_add_u32 v{vT+2}, -1, v{vT+2}", f"v_and_b32 v{vT+2}, 2047, v{vT+2}", f"v_lshrrev_b32 v{vT+3}, 4, v{vT+2}", f"v_mul_u32_u24 v{vT+3}, 20480, v{vT+3}",
          f"v_and_b32 v{vT+2}, 15, v{vT+2}", f"v_lshl_add_u32 v{vT+3}, v{vT+2}, 4, v{vT+3}",
          f"v_lshrrev_b32 v{vT+2}, 3, v{vL}", f"v_lshl_add_u32 v{vT+3}, v{vT+2}, 8, v{vT+3}",
          f"s_lshl_b32 s23, s{sW}, 11", f"s_lshl_b32 s31, s{sW}, 10", f"s_add_u32 s31, s31, {XS}")
        for k in range(3):
            a("s_mov_b32 m0, s31", "s_nop 0", f"buffer_load_dwordx4 v{vT+3}, s[{sWS}:{sWS+3}], s23 offen{SC} lds",
              "s_add_u32 s23, s23, 8192", "s_add_u32 s31, s31, 4096")
        a(f"v_lshrrev_b32 v{vT+1}, 1, v{vL}", f"v_mul_u32_u24 v8, 3456, v{vT+1}", f"v_and_b32 v{vT+1}, 1, v{vL}", f"v_lshl_add_u32 v8, v{vT+1}, 4, v8",
          f"v_lshrrev_b32 v{vT+1}, 4, v{vL}",
          f"v_lshrrev_b32 v{vT+2}, 2, v{vL}", f"v_lshl_add_u32 v{vT+2}, v{vT+1}, 2, v{vT+2}",
          f"v_lshlrev_b32 v{vT+2}, 5, v{vT+2}", f"v_and_b32 v{vT+3}, 3, v{vL}", f"v_lshl_add_u32 v9, v{vT+3}, 3, v{vT+2}", "v_add_u32 v9, s34, v9",
          f"v_lshlrev_b32 v10, 4, v{vT}", f"v_lshl_add_u32 v10, v{vT+1}, 7, v10", f"v_add_u32 v10, {XS}, v10",
          "v_cmp_gt_u32 vcc, 8, v11", "v_mul_u32_u24 v11, 2560, v11", f"v_lshl_add_u32 v11, v{vT+1}, 4, v11",
          f"v_mov_b32 v{vT+3}, {BIG}", f"v_cndmask_b32 v11, v{vT+3}, v11, vcc")
        for i in range(4): a(f"v_mov_b32 v{G+i}, 0")
        a(f"s_branch {name}_fissueG")
        a.label(f"{name}_f2")
        a("s_waitcnt vmcnt(8)")
        for q in range(5):
            for t in range(2): a(f"ds_read_b64_tr_b16 {ar(FW+4*q+2*t,2)}, v9 offset:{q*1024+t*128}")
            a(f"ds_read_b128 {ar(FX+4*q,4)}, v10 offset:{q*512}")
        a("v_add_u32 v10, 2560, v10", "s_waitcnt lgkmcnt(0)")
        for q in range(5): a(f"{MF} {vr(G,4)}, {ar(FW+4*q,4)}, {ar(FX+4*q,4)}, {vr(G,4)}")
        a("s_cmp_eq_u32 s32, 7", f"s_cbranch_scc1 {name}_f5")
        a.label(f"{name}_fissueG")
        for q in range(5):
            a(f"s_add_u32 m0, s34, {q*1024}", "s_nop 0", "buffer_load_dwordx4 v8, s[52:55], s33 offen lds", f"s_add_u32 s33, s33, {32*3456}")
        a(f"s_branch {name}_fret")
        a.label(f"{name}_f5")
        a(f"s_lshl_b32 s23, s{sW}, 9", f"v_add_u32 v{vT}, s23, v10", "s_nop 6", f"ds_write_b128 v{vT}, {vr(G,4)}", "s_waitcnt lgkmcnt(0)",
          f"s_branch {name}_fissueD")
        a.label(f"{name}_f6")
        a("s_cmp_ge_u32 s32, 10", f"s_cbranch_scc1 {name}_f8", "s_cmp_eq_u32 s32, 8", f"s_cbranch_scc0 {name}_f7")
        GU = vT
        for k in range(4): a(f"ds_read_b128 {vr(GU+4*k,4)}, v10 offset:{k*512}")
        a("s_waitcnt lgkmcnt(0)")
        for k in range(16): bf16r(a, GU + k)
        for k in range(8): a(f"v_mul_f32 v{Y+k}, 0xbfb8aa3b, v{GU+k}")
        for k in range(8): a(f"v_exp_f32 v{Y+k}, v{Y+k}")
        for k in range(8): a(f"v_add_f32 v{Y+k}, 1.0, v{Y+k}")
        for k in range(8): a(f"v_rcp_f32 v{Y+k}, v{Y+k}")
        for k in range(8): a(f"v_mul_f32 v{GU+k}, v{GU+k}, v{Y+k}")
        for k in range(8): bf16r(a, GU + k)
        for k in range(8): a(f"v_mul_f32 v{GU+k}, v{GU+k}, v{GU+8+k}")
        for k in range(4): a(f"v_cvt_pk_bf16_f32 v{G+k}, v{GU+2*k}, v{GU+2*k+1}")
        a.label(f"{name}_f7")
        a("s_waitcnt vmcnt(8)")
        for cb in range(5):
            for t in range(2): a(f"ds_read_b64_tr_b16 {ar(FW+4*cb+2*t,2)}, v6 offset:{t*2560+cb*32}")
        a("s_waitcnt lgkmcnt(0)")
        for cb in range(5): a(f"{MF} {vr(Y+4*cb,4)}, {ar(FW+4*cb,4)}, {vr(G,4)}, 0")
        a("s_nop 7")
        for cb in range(5): a(f"buffer_store_dwordx4 {vr(Y+4*cb,4)}, v11, s[{sWS}:{sWS+3}], s36 offen offset:{cb*64}{SC}")
        a("s_add_u32 s36, s36, 320", "s_cmp_eq_u32 s32, 9", f"s_cbranch_scc1 {name}_fret")
        a.label(f"{name}_fissueD")
        for q in range(5):
            self.rowmap(a, q)
            a(f"buffer_load_dwordx4 v{vT+3}, s[60:63], s35 offen lds")
        a("s_add_u32 s35, s35, 160", f"s_branch {name}_fret")
        a.label(f"{name}_f8")
        a("s_cmp_eq_u32 s32, 10", f"s_cbranch_scc1 {name}_fret", "s_cmp_ge_u32 s32, 41", f"s_cbranch_scc1 {name}_fdef",
          "s_cmp_ge_u32 s32, 21", f"s_cbranch_scc1 {name}_ftouch")
        a("s_and_b32 s23, s2, 63", "s_lshl_b32 s23, s23, 2", f"s_add_u32 s23, s23, {YF}", f"s_cmp_eq_u32 s{sW}, 0", f"s_cselect_b32 s23, s23, {BIG}",
          f"v_mov_b32 v{vT}, {BIG}", f"v_mov_b32 v{vT+1}, 1", f"v_writelane_b32 v{vT}, s23, 0",
          f"buffer_store_dword v{vT+1}, v{vT}, s[{sWS}:{sWS+3}], 0 offen{SC}", "s_mov_b32 s32, -1")
        a.label(f"{name}_fret")
        a("s_add_u32 s32, s32, 1", f"s_branch {name}_fback")
        a.label(f"{name}_fdef")
        a("s_cmp_eq_u32 s32, 42", "s_cselect_b32 s32, -1, s32", f"s_branch {name}_fret")
        a.label(f"{name}_ftouch")
        a(f"v_lshlrev_b32 v{vT}, 7, v{vL}", f"v_cmp_gt_u32 vcc, 34, v{vL}", f"v_mov_b32 v{vT+1}, {BIG}", "s_sub_u32 s23, s2, 64",
          f"v_cndmask_b32 v{vT}, v{vT+1}, v{vT}, vcc", "s_cmp_eq_u32 s32, 21", f"s_cbranch_scc0 {name}_ftouch2",
          "s_lshl_b32 s23, s23, 1", f"s_and_b32 s31, s{sW}, 1", "s_add_u32 s23, s23, s31", f"s_mul_i32 s23, s23, {2*4352}", "s_add_u32 s31, s23, 4352",
          f"buffer_load_dword v8, v{vT}, s[52:55], s23 offen", f"buffer_load_dword v9, v{vT}, s[52:55], s31 offen", f"s_branch {name}_fret")
        a.label(f"{name}_ftouch2")
        a("s_lshl_b32 s23, s23, 2", f"s_add_u32 s23, s23, s{sW}", "s_mul_i32 s23, s23, 4352",
          f"buffer_load_dword v8, v{vT}, s[60:63], s23 offen", "s_mov_b32 s32, -1", f"s_branch {name}_fret")
        self.tail += a.lines

    def phase3(self):
        a = self.a; name = self.name
        a(self.period(1, ["q", "q"], c0=True))
        a("s_nop 7", f"s_cmp_lg_u32 s{sCnt}, 0", f"s_cbranch_scc1 {name}_nomask0")
        a(mask_ops(0, 0))
        a.label(f"{name}_nomask0")
        for X in range(2):
            for qb in range(2):
                s0 = S + 32 * X + 8 * qb; d = vT + 2 * X + qb
                a(f"v_max3_f32 v{d}, v{s0}, v{s0+1}, v{s0+2}", f"v_max3_f32 v{d}, v{d}, v{s0+3}, v{s0+4}",
                  f"v_max3_f32 v{d}, v{d}, v{s0+5}, v{s0+6}", f"v_max_f32 v{d}, v{d}, v{s0+7}")
        for sw in ("v_permlane16_swap_b32", "v_permlane32_swap_b32"):
            for k in range(4): a(f"v_mov_b32 v{vT+4+k}, v{vT+k}")
            a("s_nop 0")
            for k in range(4): a(f"{sw} v{vT+k}, v{vT+4+k}")
            for k in range(4): a(f"v_max_f32 v{vT+k}, v{vT+k}, v{vT+4+k}")
        for X in range(2):
            for qb in range(2):
                for r in range(4): a(f"v_sub_f32 v{NM+8*X+4*qb+r}, 0, v{vT+2*X+qb}")
        for X in range(2):
            for qb in range(2):
                s0 = S + 32 * X + 8 * qb
                for r in range(8): a(f"v_sub_f32 v{s0+r}, v{s0+r}, v{vT+2*X+qb}")
        a(self.period(0, ["qs", "qs"]))
        self.wo_store()
        stamp(a, 8)
        F = "qsv"
        a(f"s_cmp_eq_u32 s{sCnt}, 0", f"s_cbranch_scc1 {name}_AV", f"s_sub_u32 s{sCnt}, s{sCnt}, 1",
          f"s_cmp_eq_u32 s{sCnt}, 0", f"s_cbranch_scc1 {name}_Aexit")
        a(".p2align 6")
        a.label(f"{name}_DD")
        a(self.period(1, [F, F], bar=12, hook=["s_cmp_lg_u32 s32, 0", [f"s_cbranch_scc1 {name}_fstub", f"{name}_fback:"]]))
        a(self.period(0, [F, F], tail_sc=[f"s_sub_u32 s{sCnt}, s{sCnt}, 1"]))
        a(f"s_cmp_lg_u32 s{sCnt}, 0", f"s_cbranch_scc1 {name}_DD")
        self.ffn_stub()
        a.label(f"{name}_Aexit")
        a(f"s_bitcmp1_b32 s{sW}, 0", f"s_cbranch_scc1 {name}_Aodd")
        a(self.period(1, [F, F], bar=12))
        a(self.period(0, ["smv", F]))
        a.label(f"{name}_AV")
        a(self.period(1, ["v", F], bar=12))
        a(self.period(0, ["", F]))
        a(f"s_branch {name}_SSpre")
        a.label(f"{name}_Aodd")
        a(self.period(1, ["smv", F], bar=12))
        a(self.period(0, ["v", F]))
        a.label(f"{name}_SSpre")
        a(self.wof_arrive())
        a(f"s_cmp_eq_u32 s{sNSS}, 0", f"s_cbranch_scc1 {name}_Bexit")
        a(".p2align 6")
        a.label(f"{name}_SS")
        a(self.period(1, ["", F], bar=12))
        a(self.period(0, ["", F], tail_sc=[f"s_sub_u32 s{sNSS}, s{sNSS}, 1"]))
        a(f"s_cmp_lg_u32 s{sNSS}, 0", f"s_cbranch_scc1 {name}_SS")
        a.label(f"{name}_Bexit")
        a(f"s_bitcmp1_b32 s{sW}, 0", f"s_cbranch_scc1 {name}_Bodd")
        a(self.period(1, ["", F], bar=0, dma=False, kread=False))
        a(self.period(0, ["", "smv"], dma=False, kread=False))
        a(self.period(1, ["", "v"], bar=0, dma=False, kread=False))
        a(f"s_branch {name}_Bdone")
        a.label(f"{name}_Bodd")
        a(self.period(1, ["", "smv"], bar=0, dma=False, kread=False))
        a(self.period(0, ["", "v"], dma=False, kread=False))
        a.label(f"{name}_Bdone")
        a(f"s_cmp_ge_u32 s{sW}, 2", f"s_cbranch_scc1 {name}_epi", "s_barrier")
        a.label(f"{name}_epi")
        stamp(a, 9)
        if self.p4:
            a(f"s_and_b32 s23, s{sH}, {3 if os.environ.get('REMAP') else 0}", "s_lshl_b32 s23, s23, 1", f"s_add_u32 s23, s23, s{sI}", "s_and_b32 s60, s23, 7",
              "s_lshl_b32 s23, s60, 2", f"s_add_u32 s23, s23, s{sW}", "s_lshl_b32 s23, s23, 7", f"s_add_u32 s23, s23, {WF}",
              f"v_and_b32 v9, 31, v{vL}", "v_lshl_add_u32 v9, v9, 2, s23", f"buffer_load_dword v8, v9, s[{sWS}:{sWS+3}], 0 offen{SC}")
        for sw in ("v_permlane16_swap_b32", "v_permlane32_swap_b32"):
            for k in range(4): a(f"v_mov_b32 v{vT+4+k}, v{LS+k}")
            a("s_nop 0")
            for k in range(4): a(f"{sw} v{LS+k}, v{vT+4+k}")
            for k in range(4): a(f"v_add_f32 v{LS+k}, v{LS+k}, v{vT+4+k}")
        for k in range(4): a(f"v_rcp_f32 v{vT+2*k}, v{LS+k}")
        a("s_nop 0")
        for k in range(4): a(f"v_mov_b32 v{vT+2*k+1}, v{vT+2*k}")
        a(f"s_lshl_b32 s23, s{sI}, 2", f"s_add_u32 s23, s23, s{sW}", "s_lshl_b32 s23, s23, 18", f"s_lshl_b32 s31, s{sH}, 12",
          f"s_add_u32 s31, s31, {CTX}", f"s_add_u32 s{sXo}, s23, s31", f"s_add_u32 s{sXo+1}, s{sXo}, {1<<17}",
          f"s_sub_u32 s23, 15, s{sI}", "s_lshl_b32 s23, s23, 2", f"s_add_u32 s23, s23, s{sW}", "s_lshl_b32 s23, s23, 18",
          f"s_add_u32 s{sXo+2}, s23, s31", f"s_add_u32 s{sXo+3}, s{sXo+2}, {1<<17}")
        k = 0
        for X in range(2):
            for qb in range(2):
                for t in range(4):
                    T = 32 + (k % 8) * 12; k += 1
                    f = vT + 2 * (2 * X + qb)
                    for hh in range(2):
                        for r in range(4): a(f"v_accvgpr_read_b32 v{T+4+4*hh+r}, a{O+64*X+8*(2*t+hh)+4*qb+r}")
                    for r in range(4): a(f"v_pk_mul_f32 {vr(T+4+2*r,2)}, {vr(T+4+2*r,2)}, {vr(f,2)}")
                    for r in range(4): a(f"v_cvt_pk_bf16_f32 v{T+r}, v{T+4+2*r}, v{T+5+2*r}")
                    a(f"buffer_store_dwordx4 {vr(T,4)}, v{vL16}, s[{sWS}:{sWS+3}], s{sXo+2*X+qb} offen offset:{t*1024}{SC}")

    def phase4(self):
        a = self.a; name = self.name
        RS = 336; PART = 64 * RS
        ROT = bool(os.environ.get("ROT")); NPRE = int(os.environ.get("NPRE", "8"))
        UPD = SPARE; SCR = SPARE + 4096
        AC, CR, WV = 32, 112, 176
        vXo, vLa, vXn, vUp = 240, 243, 246, 249
        sLw, sLc, sX, sO = 32, 36, 44, 48
        sCo, sWo, sC4 = 64, 24, 28
        sMT, sNG = sH, 39 + 21
        sWe, sRot = 61, 62
        def wreg(f): return ar(4 * f, 4) if f < 64 else vr(WV + 4 * (f - 64), 4)
        def wl(f): return f"buffer_load_dwordx4 {wreg(f)}, v{vL16}, s[{sLw}:{sLw+3}], s{sWo} offen offset:{(f%4)*1024}{SC}"
        winc = f"s_add_u32 s{sWo}, s{sWo}, 4096"
        wwrap = [f"s_cmp_ge_u32 s{sWo}, s{sWe}", f"s_cselect_b32 s23, {32*5120}, 0", f"s_sub_u32 s{sWo}, s{sWo}, s23"]
        def wloads(f0, f1):
            for f in range(f0, f1):
                a(wl(f))
                if f % 4 == 3: a(winc)
                if f % 20 == 19: a(wwrap)
        cnext = [f"s_add_u32 s{sRot}, s{sRot}, 4096", f"s_and_b32 s{sRot}, s{sRot}, 0x7fff", f"s_add_u32 s{sCo}, s63, s{sRot}"]
        cnext += [f"s_add_u32 s{sCo+qb}, s{sCo}, {qb<<17}" for qb in range(1, 4)]
        def cl(ks, qb): return f"buffer_load_dwordx4 {vr(CR+16*(ks%4)+4*qb,4)}, v{vL16}, s[{sLc}:{sLc+3}], s{sCo+qb} offen offset:{(ks%4)*1024}{SC}"
        a("s_load_dwordx2 s[4:5], s[0:1], 0", "s_load_dwordx2 s[6:7], s[0:1], 88")
        srd(a, sLw, "s18", "s19", WS_BYTES); srd(a, sLc, "s18", "s19", WS_BYTES)
        a(f"s_lshl_b32 s23, s{sNG}, 2", f"s_add_u32 s23, s23, s{sW}", f"s_mul_i32 s{sWo}, s23, {32*5120}", f"s_add_u32 s{sWo}, s{sWo}, {WOF}",
          f"s_add_u32 s{sWe}, s{sWo}, {32*5120}", f"s_mul_i32 s23, s{sI}, {20480 if ROT else 0}", f"s_add_u32 s{sWo}, s{sWo}, s23",
          "s_waitcnt vmcnt(16)")
        self.poll_check(a, "wof", 8, 9, sWS, ["v_cmp_eq_u32 vcc, 0, v8"])
        wloads(0, NPRE)
        a(f"v_mov_b32 v{vT}, {BIG}", f"v_mov_b32 v{vT+1}, 1", f"v_writelane_b32 v{vT}, s{sCFA}, 0", f"v_writelane_b32 v{vT}, s{sCFB}, 1",
          f"v_and_b32 v10, 15, v{vL}", "v_lshlrev_b32 v10, 2, v10", f"v_add_u32 v10, {SEL}, v10",
          f"v_min_u32 v11, {FFN1-FFN0-1}, v{vL}", "v_lshlrev_b32 v11, 2, v11", f"v_add_u32 v11, {YF}, v11",
          f"s_waitcnt vmcnt({NPRE})", f"buffer_store_dword v{vT+1}, v{vT}, s[{sWS}:{sWS+3}], 0 offen{SC}")
        stamp(a, 10)
        a(f"buffer_load_dword v15, v10, s[{sWS}:{sWS+3}], 0 offen{SC}", f"buffer_load_dword v14, v11, s[{sWS}:{sWS+3}], 0 offen{SC}")
        wloads(NPRE, NPRE + 20)
        a(f"s_lshl_b32 s63, s{sMT}, 19", f"s_lshl_b32 s23, s{sW}, 15", "s_add_u32 s63, s63, s23", f"s_add_u32 s63, s63, {CTX}",
          f"s_mul_i32 s{sRot}, s{sI}, {4096 if ROT else 0}", cnext[2:])
        a(f"v_bfe_u32 v12, v{vL}, 3, 1", "v_lshlrev_b32 v12, 7, v12", f"v_and_b32 v13, 7, v{vL}", "v_lshl_add_u32 v12, v13, 2, v12",
          f"s_lshl_b32 s23, s{sMT}, 8", f"s_lshl_b32 s31, s{sW}, 5", "s_add_u32 s23, s23, s31", f"s_add_u32 s23, s23, {CF}", "v_add_u32 v12, s23, v12")
        a(f"s_lshl_b32 s25, s{sMT}, 6", f"s_mul_i32 s26, s{sNG}, 160", f"s_mul_i32 s27, s{sNG}, 2560")
        for k in range(3):
            a(f"v_add_u32 v{vT}, {256*k}, v0", f"v_mul_u32_u24 v{vT+1}, 6554, v{vT}", f"v_lshrrev_b32 v{vT+1}, 16, v{vT+1}",
              f"v_mul_u32_u24 v{vT+2}, 10, v{vT+1}", f"v_sub_u32 v{vT+2}, v{vT}, v{vT+2}",
              f"v_mul_u32_u24 v{vLa+k}, {RS}, v{vT+1}", f"v_lshl_add_u32 v{vLa+k}, v{vT+2}, 5, v{vLa+k}",
              f"v_lshlrev_b32 v{vUp+k}, 5, v{vT+2}",
              f"v_add_u32 v{vT+1}, s25, v{vT+1}", f"v_add_u32 v{vT+8+k}, 1, v{vT+1}",
              f"v_mul_u32_u24 v{vXo+k}, 1280, v{vT+1}", f"v_lshl_add_u32 v{vXo+k}, v{vT+2}, 4, v{vXo+k}", f"v_add_u32 v{vXo+k}, s26, v{vXo+k}",
              f"v_lshrrev_b32 v{vT+3}, 4, v{vT+1}", f"v_mul_u32_u24 v{vT+3}, 20480, v{vT+3}", f"v_and_b32 v{vT+1}, 15, v{vT+1}",
              f"v_lshl_add_u32 v{vT+3}, v{vT+1}, 4, v{vT+3}", f"v_lshl_add_u32 v{vXn+k}, v{vT+2}, 8, v{vT+3}",
              f"v_mov_b32 v{vT+12+k}, 8")
        a(f"v_cmp_gt_u32 vcc, 128, v0", f"v_mov_b32 v{vT}, {BIG}", f"v_mov_b32 v{vT+1}, 0",
          f"v_cndmask_b32 v{vXo+2}, v{vT}, v{vXo+2}, vcc", f"v_cndmask_b32 v{vXn+2}, v{vT}, v{vXn+2}, vcc",
          f"v_cndmask_b32 v{vLa+2}, v{vT+1}, v{vLa+2}, vcc")
        for i in range(4): a(f"v_mov_b32 v{vT+4+i}, 0")
        a(f"v_add_u32 v{vT}, {UPD+2560}, v{vL16}", f"ds_write_b128 v{vT}, {vr(vT+4,4)}", "s_waitcnt vmcnt(20) lgkmcnt(0)")
        srd(a, sX, "s4", "s5", 2048 * 1280); srd(a, sO, "s6", "s7", 2048 * 1280)
        self.poll_check(a, "sel4", 15, 10, sWS, ["v_cmp_eq_u32 vcc, 0, v15"])
        for k in range(8): a(f"v_readlane_b32 s{68+k}, v15, {k}")
        a(f"s_lshl_b32 s23, s{sW}, 1", "s_add_u32 s31, s23, 8", "v_readlane_b32 s29, v15, s23", "v_readlane_b32 s30, v15, s31")
        for k in range(8):
            for t in range(3): a(f"v_cmp_eq_u32 s[{8+2*t}:{9+2*t}], s{68+k}, v{vT+8+t}")
            for t in range(3): a(f"v_cndmask_b32 v{vT+12+t}, v{vT+12+t}, {k}, s[{8+2*t}:{9+2*t}]")
        for t in range(3): a(f"v_mul_u32_u24 v{vT+12+t}, 320, v{vT+12+t}", f"v_add3_u32 v{vUp+t}, v{vUp+t}, v{vT+12+t}, v{vT+1}")
        for t in range(3): a(f"v_add_u32 v{vUp+t}, {UPD}, v{vUp+t}")
        for k in range(2):
            if k == 1: a("s_add_u32 s23, s23, 1", "s_add_u32 s31, s23, 8", "v_readlane_b32 s29, v15, s23", "v_readlane_b32 s30, v15, s31")
            a("s_sub_u32 s29, s29, s25", "s_sub_u32 s29, s29, 1", "s_cmp_lt_u32 s29, 64", f"s_cbranch_scc1 {name}_ystub{k}")
            a.label(f"{name}_yback{k}")
        t = Asm()
        for k in range(2):
            t.label(f"{name}_ystub{k}")
            t(f"s_call_b64 s[{sRet}:{sRet+1}], {name}_ysub", f"s_branch {name}_yback{k}")
        t.label(f"{name}_ysub")
        self.poll_check(t, "yf", 14, 11, sWS, ["v_cmp_eq_u32 vcc, 0, v14"])
        t(f"v_mul_u32_u24 v{vT}, 3277, v{vL}", f"v_lshrrev_b32 v{vT}, 16, v{vT}", f"v_mul_u32_u24 v{vT+1}, 20, v{vT}",
          f"v_sub_u32 v{vT+1}, v{vL}, v{vT+1}", f"v_lshlrev_b32 v{vT+1}, 4, v{vT+1}",
          f"v_mul_u32_u24 v{vT+2}, {18*20480}, v{vT}", f"v_add_u32 v{vT+2}, v{vT+2}, v{vT+1}",
          f"v_cmp_gt_u32 vcc, 3, v{vT}", f"v_mov_b32 v{vT+3}, {BIG}", "s_mul_i32 s14, s23, 2560",
          f"v_cndmask_b32 v{vT+2}, v{vT+3}, v{vT+2}, vcc",
          f"s_mul_i32 s15, s{sNG}, 320", "s_add_u32 s14, s14, s15", f"s_add_u32 s14, s14, {YP}")
        for i in range(18):
            t(f"buffer_load_dwordx4 {vr(AC+4*i,4)}, v{vT+2}, s[{sWS}:{sWS+3}], s14 offen{SC}", "s_add_u32 s14, s14, 20480")
        t(f"s_lshl_b32 s14, s{sW}, 10", f"s_add_u32 s14, s14, {SCR}", f"v_add_u32 v{vT+3}, s14, v{vL16}", "s_and_b32 s30, s30, 0xffff0000",
          "s_waitcnt vmcnt(0)")
        for i in range(1, 18):
            for e in range(4): t(f"v_add_f32 v{AC+e}, v{AC+e}, v{AC+4*i+e}")
        t(f"ds_write_b128 v{vT+3}, {vr(AC,4)}", f"v_add_u32 v{vT+3}, s14, v{vT+1}", "s_waitcnt lgkmcnt(0)",
          f"ds_read_b128 {vr(AC,4)}, v{vT+3}", f"ds_read_b128 {vr(AC+4,4)}, v{vT+3} offset:320", f"ds_read_b128 {vr(AC+8,4)}, v{vT+3} offset:640",
          "s_mul_i32 s14, s23, 320", f"s_add_u32 s14, s14, {UPD}", f"v_add_u32 v{vT+3}, s14, v{vT+1}", "s_waitcnt lgkmcnt(0)")
        for e in range(4):
            t(f"v_add_f32 v{AC+e}, v{AC+e}, v{AC+4+e}", f"v_add_f32 v{AC+e}, v{AC+e}, v{AC+8+e}")
            bf16r(t, AC + e)
            t(f"v_mul_f32 v{AC+e}, s30, v{AC+e}")
            bf16r(t, AC + e)
        t(f"ds_write_b128 v{vT+3}, {vr(AC,4)}", "s_waitcnt lgkmcnt(0)", f"s_setpc_b64 s[{sRet}:{sRet+1}]")
        self.tail += t.lines
        wloads(NPRE + 20, 80)
        a(f"buffer_load_dword v13, v12, s[{sWS}:{sWS+3}], 0 offen{SC}")
        for i in range(5):
            a(f"v_mfma_f32_32x32x16_bf16 {vr(AC+16*i,16)}, {vr(vT+4,4)}, {vr(vT+4,4)}, 0")
        a(f"s_mov_b32 s{sC4}, 0", "s_waitcnt vmcnt(0)")
        a(stampv(20))
        self.poll_check(a, "ctx", 13, 12, sWS, ["v_cmp_eq_u32 vcc, 0, v13"])
        a(stampv(21))
        for ks in range(4): a([cl(ks, qb) for qb in range(4)])
        a(cnext, "s_waitcnt vmcnt(12)")
        a(stampv(22))
        vm = VM()
        for ks in range(4): vm.issue(f"C{ks}", 4)
        fnext = 80
        for ks in range(32):
            mf = [f"{MF} {vr(AC+(cb*4+qb)*4,4)}, {wreg((ks*5+cb) % 80)}, {vr(CR+16*(ks%4)+4*qb,4)}, {vr(AC+(cb*4+qb)*4,4)}" for cb in range(5) for qb in range(4)]
            sc = {g: [] for g in range(20)}; mem = {g: [] for g in range(20)}; va = {g: [] for g in range(20)}
            for g in (3, 7, 11):
                if fnext < 160 and fnext - 80 <= ks * 5 + g // 4:
                    mem[g].append(wl(fnext % 80)); vm.issue(f"W{fnext // 5}")
                    if fnext % 4 == 3: sc[g+1].append(winc)
                    if fnext % 20 == 19: sc[g+2] += wwrap
                    fnext += 1
            if ks + 4 < 32:
                for qb in range(4): mem[16+qb].append(cl(ks, qb))
                vm.issue(f"C{ks+4}", 4)
                if ks % 4 == 0 and ks > 0:
                    for q, x in enumerate(cnext): sc[[0, 1, 2, 6, 10, 14][q]].append(x)
            if ks == 28:
                for k in range(3):
                    mem[3+4*k].append(f"buffer_load_dwordx4 {ar(4*k,4)}, v{vXo+k}, s[{sX}:{sX+3}], 0 offen")
                    mem[5+4*k].append(f"buffer_load_dwordx4 {ar(12+4*k,4)}, v{vXn+k}, s[{sWS}:{sWS+3}], s27 offen{SC}")
                vm.issue("x", 6)
            if ks < 31:
                need = [f"C{ks+1}"] + ([f"W{ks+1}"] if ks + 1 >= 16 else [])
                va[19].append(f"s_waitcnt vmcnt({vm.need(*need)})")
            a(weave(mf, sc, mem, va))
        assert fnext == 160
        a(stampv(23))
        XV = CR
        a(f"v_and_b32 v{vT}, 15, v{vL}", f"v_mul_u32_u24 v{vT}, {RS}, v{vT}", f"v_lshrrev_b32 v{vT+1}, 4, v{vL}",
          f"v_lshl_add_u32 v{vT}, v{vT+1}, 4, v{vT}", f"s_mul_i32 s23, s{sW}, {PART}", f"v_add_u32 v{vT}, s23, v{vT}", "s_barrier")
        for cb in range(5):
            for qb in range(4):
                a(f"ds_write_b128 v{vT}, {vr(AC+(cb*4+qb)*4,4)} offset:{qb*16*RS+cb*64}")
        a("s_waitcnt vmcnt(0)")
        for e in range(24): a(f"v_accvgpr_read_b32 v{XV+e}, a{e}")
        a("s_waitcnt lgkmcnt(0)", "s_barrier")
        PVb = [32, 72, 136]
        for k in range(3):
            for p in range(5):
                for hh in range(2):
                    if p < 4: a(f"ds_read_b128 {vr(PVb[k]+8*p+4*hh,4)}, v{vLa+k} offset:{p*PART+16*hh}")
                    else: a(f"ds_read_b128 {vr(PVb[k]+8*p+4*hh,4)}, v{vUp+k} offset:{16*hh}")
        for k in range(3):
            a(f"s_waitcnt lgkmcnt({[10, 10, 0][k]})")
            b = PVb[k]
            for e in range(8):
                a(f"v_add_f32 v{b+e}, v{b+e}, v{b+8+e}", f"v_add_f32 v{b+16+e}, v{b+16+e}, v{b+24+e}")
            for e in range(8): a(f"v_add_f32 v{b+e}, v{b+e}, v{b+16+e}")
            for e in range(4):
                x = XV + 4 * k + e; xn = XV + 12 + 4 * k + e
                t0, t1, t2, t3 = b + 8, b + 9, b + 10, b + 11
                a(f"v_cvt_pk_bf16_f32 v{t0}, v{b+2*e}, v{b+2*e+1}",
                  f"v_lshlrev_b32 v{t2}, 16, v{x}", f"v_and_b32 v{t3}, 0xffff0000, v{x}",
                  f"v_and_b32 v{t1}, 0xffff0000, v{t0}", f"v_lshlrev_b32 v{t0}, 16, v{t0}",
                  f"v_add_f32 v{t0}, v{t0}, v{t2}", f"v_add_f32 v{t1}, v{t1}, v{t3}",
                  f"v_cvt_pk_bf16_f32 v{t0}, v{t0}, v{t1}",
                  f"v_lshlrev_b32 v{t2}, 16, v{xn}", f"v_and_b32 v{t3}, 0xffff0000, v{xn}",
                  f"v_add_f32 v{t2}, v{t2}, v{b+32+2*e}", f"v_add_f32 v{t3}, v{t3}, v{b+32+2*e+1}",
                  f"v_cvt_pk_bf16_f32 v{t2}, v{t2}, v{t3}",
                  f"v_and_b32 v{t1}, 0xffff0000, v{t0}", f"v_lshlrev_b32 v{t0}, 16, v{t0}",
                  f"v_and_b32 v{t3}, 0xffff0000, v{t2}", f"v_lshlrev_b32 v{t2}, 16, v{t2}",
                  f"v_add_f32 v{t0}, v{t0}, v{t2}", f"v_add_f32 v{t1}, v{t1}, v{t3}",
                  f"v_cvt_pk_bf16_f32 v{b+12+e}, v{t0}, v{t1}")
            a(f"buffer_store_dwordx4 {vr(b+12,4)}, v{vXo+k}, s[{sO}:{sO+3}], 0 offen")

    def gen(self, with_p4=True):
        a = self.a; name = self.name
        self.tail = []; self.p4 = with_p4
        self.phase1()
        self.phase2()
        self.phase3()
        if with_p4: self.phase4()
        stamp_flush(a, 0, sW, sWS)
        a.label(f"{name}_end")
        a("s_endpgm")
        a(self.tail)
        for (k, ss, par) in self.stubs:
            a.label(f"{name}_stub{k}")
            for X in ss: a(f"s_call_b64 s[{sRet}:{sRet+1}], {name}_rare{X}{par}")
            a(f"s_branch {name}_back{k}")
        a.label(f"{name}_codeend")
        for X in range(2):
            for par in range(2): self.rare(X, par)
            self.resc(X)
        return a
```

```python
from asmlib import *

XNF = 0x0
RKEY = 0x280000
SEL = 0x282000
YP = 0x290000
WOF = 0x400000
KFO = 0x1000000
VFO = 0x2000000
CTX = 0x3000000
WS_BYTES = 0x4100000
MF = "v_mfma_f32_16x16x32_bf16"
import os
DBG = bool(os.environ.get("STAMPS"))
STAMP = 0x900000
NST = 14
def stamp(a, idx):
    if not DBG: return
    a("s_memrealtime s[98:99]", "s_waitcnt lgkmcnt(0)", f"s_mov_b32 s{84+idx}, s98")
def stampc(a, idx):
    if not DBG: return
    a("s_memtime s[98:99]", "s_waitcnt lgkmcnt(0)", f"s_mov_b32 s{84+idx}, s98")
def stampv(lane):
    if not DBG: return []
    return ["s_memrealtime s[98:99]", "s_waitcnt lgkmcnt(0)", f"v_writelane_b32 v7, s98, {lane}"]
def stamp_init(a):
    if not DBG: return
    for i in range(NST): a(f"s_mov_b32 s{84+i}, 0")
    a("v_mov_b32 v7, 0")
    stamp(a, 0)
def stamp_flush(a, kidx, sW, sWS):
    if not DBG: return
    a("s_waitcnt vmcnt(0)")
    stamp(a, 11)
    a("s_lshl_b32 s98, s2, 2", f"s_add_u32 s98, s98, s{sW}", "s_lshl_b32 s98, s98, 6", f"s_add_u32 s98, s98, {STAMP + kidx*65536 - (0 if kidx == 0 else 0)}")
    a("v_mbcnt_lo_u32_b32 v0, -1, 0", "v_mbcnt_hi_u32_b32 v0, -1, v0", "v_lshlrev_b32 v0, 2, v0",
      "s_lshl_b32 s99, s2, 2", f"s_add_u32 s99, s99, s{sW}", "s_lshl_b32 s99, s99, 8", f"s_add_u32 s99, s99, {STAMP + 0x40000 + kidx*0x40000}",
      f"buffer_store_dword v7, v0, s[{sWS}:{sWS+3}], s99 offen")
    a("v_mov_b32 v0, 0")
    for i in range(NST):
        a(f"v_mov_b32 v1, s{84+i}", f"buffer_store_dword v1, v0, s[{sWS}:{sWS+3}], s98 offen offset:{4*i}", "s_nop 0")

def srd(a, d, lo, hi, size):
    a(f"s_mov_b32 s{d}, {lo}", f"s_mov_b32 s{d+1}, {hi}", f"s_mov_b32 s{d+2}, {size}", f"s_mov_b32 s{d+3}, 0x20000")

def allreduce32_add(a, v, t):
    for m in ("quad_perm:[1,0,3,2]", "quad_perm:[2,3,0,1]", "row_half_mirror", "row_mirror"):
        a("s_nop 1", f"v_add_f32_dpp v{v}, v{v}, v{v} {m} row_mask:0xf bank_mask:0xf")
    a(f"v_mov_b32 v{t}, v{v}", "s_nop 1", f"v_permlane16_swap_b32 v{v}, v{t}", f"v_add_f32 v{v}, v{v}, v{t}")

def bf16r(a, v):
    a(f"v_cvt_pk_bf16_f32 v{v}, v{v}, v{v}", f"v_and_b32 v{v}, 0xffff0000, v{v}")

def gen_k1(name):
    a = Asm()
    sW, sH, sP = 20, 21, 22
    sC, sWt, sWS, sX, sWR, sWO = 32, 36, 40, 44, 48, 52
    sM0C, sM0W, sOC, sOW, sIT = 24, 25, 26, 27, 28
    vL = 1
    vCo = 4
    vWo = 8
    vCa = 12
    vWa = 13
    vL16 = 15
    vT = 16
    FA = 32; FB = 96
    a("s_cmp_ge_u32 s2, 256", f"s_cbranch_scc1 {name}_end")
    stamp_init(a)
    a("s_load_dwordx4 s[4:7], s[0:1], 0", "s_load_dwordx4 s[8:11], s[0:1], 24", "s_load_dwordx2 s[12:13], s[0:1], 40",
      "s_load_dwordx2 s[14:15], s[0:1], 56", "s_load_dwordx2 s[16:17], s[0:1], 104")
    a(f"v_lshrrev_b32 v2, 6, v0", f"v_and_b32 v{vL}, 63, v0", f"v_readfirstlane_b32 s{sW}, v2")
    a(f"s_and_b32 s{sH}, s2, 7", f"s_lshl_b32 s{sH}, s{sH}, 2", "s_lshr_b32 s23, s2, 3", "s_and_b32 s23, s23, 3",
      f"s_add_u32 s{sH}, s{sH}, s23", f"s_lshr_b32 s{sP}, s2, 5")
    a(f"v_lshlrev_b32 v{vL16}, 4, v{vL}")
    a(f"v_lshrrev_b32 v{vT}, 2, v{vL}",
      f"v_lshrrev_b32 v{vT+1}, 5, v{vL}",
      f"v_mul_u32_u24 v{vT+1}, 3, v{vT+1}",
      f"v_and_b32 v{vT+2}, 3, v{vL}",
      f"v_xor_b32 v{vT+1}, v{vT+1}, v{vT+2}",
      f"v_lshlrev_b32 v{vT+1}, 4, v{vT+1}",
      f"v_lshl_add_u32 v{vCo}, v{vT}, 10, v{vT+1}",
      f"s_lshl_b32 s23, s{sW}, 16",
      f"v_add_u32 v{vCo}, s23, v{vCo}")
    for j in range(1, 4):
        a(f"v_add_u32 v{vCo+j}, {j*(16384-1024)}, v{vCo}")
    a(f"v_and_b32 v{vT}, 3, v{vT}",
      f"v_lshrrev_b32 v{vT+1}, 4, v{vL}",
      f"v_lshlrev_b32 v{vT+1}, 6, v{vT+1}",
      f"v_lshl_add_u32 v{vT}, v{vT}, 13, v{vT+1}",
      f"s_and_b32 s23, s{sW}, 1", "s_lshl_b32 s23, s23, 17",
      f"v_add_u32 v{vT}, s23, v{vT}",
      f"v_lshl_add_u32 v{vWo}, v{vT+2}, 4, v{vT}",
      f"v_xor_b32 v{vT+2}, 2, v{vT+2}",
      f"v_lshl_add_u32 v{vWo+2}, v{vT+2}, 4, v{vT}",
      f"v_add_u32 v{vWo+1}, {32768-1024}, v{vWo}",
      f"v_add_u32 v{vWo+3}, {3*(32768-1024)}, v{vWo+2}",
      f"v_add_u32 v{vWo+2}, {2*(32768-1024)}, v{vWo+2}")
    a("s_waitcnt lgkmcnt(0)")
    stamp(a, 6)
    a(f"s_lshl_b32 s23, s{sP}, 18", "s_add_u32 s6, s6, s23", "s_addc_u32 s7, s7, 0")
    srd(a, sC, "s6", "s7", 262144)
    a(f"s_cmp_ge_u32 s{sW}, 2", "s_cselect_b32 s8, s10, s8", "s_cselect_b32 s9, s11, s9",
      f"s_lshl_b32 s23, s{sH}, 8", "s_add_u32 s8, s8, s23", "s_addc_u32 s9, s9, 0")
    srd(a, sWt, "s8", "s9", 0)
    a(f"s_sub_u32 s{sWt+2}, {512*8192}, s23")
    srd(a, sWS, "s16", "s17", WS_BYTES)
    srd(a, sX, "s4", "s5", 2048*1280)
    srd(a, sWR, "s14", "s15", 1280)
    srd(a, sWO, "s12", "s13", 4096*1280)
    a(f"s_lshl_b32 s{sM0C}, s{sW}, 12", f"s_mov_b32 s{sOC}, 0", f"s_mov_b32 s{sOW}, 0")

    def dma_stage_lines():
        preC = [f"s_mov_b32 m0, s{sM0C}"]
        lc = [f"buffer_load_dwordx4 v{vCo+j}, s[{sC}:{sC+3}], s{sOC} offen offset:{j*1024} lds" for j in range(4)]
        preW = [f"s_add_u32 m0, s{sM0C}, 16384"]
        lw = [f"buffer_load_dwordx4 v{vWo+j}, s[{sWt}:{sWt+3}], s{sOW} offen offset:{j*1024} lds" for j in range(4)]
        post = [f"s_add_u32 s{sOC}, s{sOC}, 64", f"s_add_u32 s{sOW}, s{sOW}, {32*8192}",
                f"s_add_u32 s{sM0C}, s{sM0C}, 32768", f"s_and_b32 s{sM0C}, s{sM0C}, 0x1ffff"]
        return preC, lc, preW, lw, post
    def dma_stage():
        preC, lc, preW, lw, post = dma_stage_lines()
        a(preC, "s_nop 0", lc, preW, "s_nop 0", lw, post)

    dma_stage()
    stamp(a, 7)
    if os.environ.get("WAIT0"):
        a("s_waitcnt vmcnt(0)")
        stamp(a, 8)
    XR = 160; WR = 172; F = 184
    vU, vRow, vXo, vXo3, vWro = 208, 209, 210, 211, 212
    vS, vT2, vMean, vMb, vRc, vAcc = 213, 214, 215, 216, 217, 218
    a(f"v_and_b32 v{vU}, 31, v{vL}", f"v_lshrrev_b32 v{vRow}, 5, v{vL}",
      "s_lshl_b32 s23, s2, 2", f"s_add_u32 s23, s23, s{sW}", "s_lshl_b32 s23, s23, 1",
      f"v_add_u32 v{vRow}, s23, v{vRow}",
      f"v_lshlrev_b32 v{vWro}, 4, v{vU}",
      f"v_mul_u32_u24 v{vXo}, 1280, v{vRow}", f"v_add_u32 v{vXo}, v{vXo}, v{vWro}",
      f"v_cmp_gt_u32 s[56:57], 16, v{vU}",
      f"v_mov_b32 v{vXo3}, 0x40000000", "s_nop 0",
      f"v_cndmask_b32 v{vXo3}, v{vXo3}, v{vXo}, s[56:57]")
    a(f"buffer_load_dwordx4 {vr(XR,4)}, v{vXo}, s[{sX}:{sX+3}], 0 offen",
      f"buffer_load_dwordx4 {vr(XR+4,4)}, v{vXo}, s[{sX}:{sX+3}], 0 offen offset:512",
      f"buffer_load_dwordx4 {vr(XR+8,4)}, v{vXo3}, s[{sX}:{sX+3}], 0 offen offset:1024")
    for i in range(3):
        a(f"buffer_load_dwordx4 {vr(WR+4*i,4)}, v{vWro}, s[{sWR}:{sWR+3}], 0 offen offset:{512*i}")
    stamp(a, 9)
    for i in range(3): dma_stage()
    stamp(a, 10)
    sNG, sS = 29, 30
    a(f"s_and_b32 s{sNG}, s2, 1", f"s_lshl_b32 s{sNG}, s{sNG}, 2", f"s_add_u32 s{sNG}, s{sNG}, s{sW}",
      f"s_lshr_b32 s{sS}, s2, 1",
      f"s_mul_i32 s23, s{sS}, {32*1280}", f"s_mul_i32 s31, s{sNG}, 160", "s_add_u32 s23, s23, s31",
      f"s_mul_i32 s31, s{sW}, 5120", "s_add_u32 s31, s31, 131072")
    for q in range(5):
        a(f"v_add_u32 v{vT}, {64*q}, v{vL}",
          f"v_mul_u32_u24 v{vT+1}, 6554, v{vT}", f"v_lshrrev_b32 v{vT+1}, 16, v{vT+1}",
          f"v_mul_u32_u24 v{vT+1}, {1280-160}, v{vT+1}",
          f"v_lshl_add_u32 v{vT+1}, v{vT}, 4, v{vT+1}",
          f"s_add_u32 m0, s31, {q*1024}", "s_nop 0",
          f"buffer_load_dwordx4 v{vT+1}, s[{sWO}:{sWO+3}], s23 offen lds")
    for i in range(4): a(f"v_mov_b32 v{vT+4+i}, 0")
    a(f"v_and_b32 v{vT}, 15, v{vL}", f"v_lshrrev_b32 v{vT+1}, 4, v{vL}",
      f"v_lshrrev_b32 v{vT+2}, 3, v{vT}", f"v_mul_u32_u24 v{vT+2}, 3, v{vT+2}",
      f"v_xor_b32 v{vT+2}, v{vT+2}, v{vT+1}", f"v_lshlrev_b32 v{vT+2}, 4, v{vT+2}",
      f"v_lshl_add_u32 v{vCa}, v{vT}, 6, v{vT+2}",
      f"s_and_b32 s23, s{sW}, 1", "s_lshl_b32 s23, s23, 13", f"v_add_u32 v{vCa}, s23, v{vCa}")
    for i in range(16):
        a(f"v_mfma_f32_32x32x16_bf16 {ar(16*i,16)}, {vr(vT+4,4)}, {vr(vT+4,4)}, 0")
    a(f"v_lshrrev_b32 v{vT+2}, 2, v{vT}",
      f"v_lshlrev_b32 v{vT+2}, 6, v{vT+2}",
      f"v_lshl_add_u32 v{vT+2}, v{vT+1}, 11, v{vT+2}",
      f"v_and_b32 v{vT+3}, 1, v{vL}", f"v_lshl_add_u32 v{vT+2}, v{vT+3}, 3, v{vT+2}",
      f"v_bfe_u32 v{vT+3}, v{vL}, 1, 1",
      f"v_and_b32 v{vT+1}, 1, v{vT+1}", f"v_lshl_or_b32 v{vT+3}, v{vT+1}, 1, v{vT+3}",
      f"s_lshr_b32 s23, s{sW}, 1", "s_lshl_b32 s23, s23, 13", "s_add_u32 s23, s23, 16384",
      f"v_add_u32 v{vT+2}, s23, v{vT+2}",
      f"v_lshl_add_u32 v{vWa}, v{vT+3}, 4, v{vT+2}",
      f"v_xor_b32 v{vWa+1}, 32, v{vWa}")
    stamp(a, 1)
    a("s_waitcnt vmcnt(29)")
    stamp(a, 2)
    for i in range(12):
        a(f"v_lshlrev_b32 v{F+2*i}, 16, v{XR+i}", f"v_and_b32 v{F+2*i+1}, 0xffff0000, v{XR+i}")
    a(f"v_add_f32 v{vS}, v{F}, v{F+1}", f"v_add_f32 v{vT2}, v{F+2}, v{F+3}")
    for i in range(4, 24, 2):
        a(f"v_add_f32 v{vS}, v{vS}, v{F+i}", f"v_add_f32 v{vT2}, v{vT2}, v{F+i+1}")
    a(f"v_add_f32 v{vS}, v{vS}, v{vT2}")
    allreduce32_add(a, vS, vT2)
    a(f"v_mul_f32 v{vMean}, 0x3acccccd, v{vS}")
    a(f"v_mov_b32 v{vAcc}, 0", f"v_mov_b32 v{vS}, 0")
    for i in range(24):
        t = vT + (i % 4)
        acc = vAcc if i < 16 else vS
        a(f"v_sub_f32 v{t}, v{F+i}, v{vMean}", f"v_fmac_f32 v{acc}, v{t}, v{t}")
    a(f"v_cndmask_b32 v{vS}, 0, v{vS}, s[56:57]", f"v_add_f32 v{vS}, v{vS}, v{vAcc}")
    allreduce32_add(a, vS, vT2)
    a(f"v_mul_f32 v{vS}, 0x3acccccd, v{vS}")
    bf16r(a, vS)
    a(f"v_add_f32 v{vS}, 0x3727c5ac, v{vS}")
    bf16r(a, vS)
    a(f"v_sqrt_f32 v{vS}, v{vS}", f"v_mov_b32 v{vMb}, v{vMean}")
    bf16r(a, vS)
    a(f"v_rcp_f32 v{vRc}, v{vS}")
    bf16r(a, vMb)
    a(f"v_mov_b32 v{vAcc}, 0")
    for i in range(12):
        f0, f1 = F + 2*i, F + 2*i + 1
        a(f"v_sub_f32 v{f0}, v{f0}, v{vMb}", f"v_sub_f32 v{f1}, v{f1}, v{vMb}",
          f"v_cvt_pk_bf16_f32 v{vT}, v{f0}, v{f1}",
          f"v_lshlrev_b32 v{f0}, 16, v{vT}", f"v_and_b32 v{f1}, 0xffff0000, v{vT}",
          f"v_mul_f32 v{f0}, v{f0}, v{vRc}", f"v_mul_f32 v{f1}, v{f1}, v{vRc}",
          f"v_cvt_pk_bf16_f32 v{XR+i}, v{f0}, v{f1}",
          f"v_lshlrev_b32 v{f0}, 16, v{XR+i}", f"v_and_b32 v{f1}, 0xffff0000, v{XR+i}",
          f"v_lshlrev_b32 v{vT+1}, 16, v{WR+i}", f"v_and_b32 v{vT+2}, 0xffff0000, v{WR+i}",
          f"v_fmac_f32 v{vAcc}, v{f0}, v{vT+1}", f"v_fmac_f32 v{vAcc}, v{f1}, v{vT+2}")
    a(f"v_lshrrev_b32 v{vT}, 4, v{vRow}", f"v_mul_u32_u24 v{vT}, 20480, v{vT}",
      f"v_and_b32 v{vT+1}, 15, v{vRow}", f"v_lshl_add_u32 v{vT}, v{vT+1}, 4, v{vT}",
      f"v_lshl_add_u32 v{vXo}, v{vU}, 8, v{vT}",
      f"v_add_u32 v{vT+1}, 8192, v{vXo}", f"v_add_u32 v{vT+2}, 16384, v{vXo}",
      f"v_mov_b32 v{vT+3}, 0x40000000", f"v_cndmask_b32 v{vT+2}, v{vT+3}, v{vT+2}, s[56:57]")
    a(f"buffer_store_dwordx4 {vr(XR,4)}, v{vXo}, s[{sWS}:{sWS+3}], 0 offen",
      f"buffer_store_dwordx4 {vr(XR+4,4)}, v{vT+1}, s[{sWS}:{sWS+3}], 0 offen",
      f"buffer_store_dwordx4 {vr(XR+8,4)}, v{vT+2}, s[{sWS}:{sWS+3}], 0 offen")
    allreduce32_add(a, vAcc, vT2)
    bf16r(a, vAcc)
    a(f"v_ashrrev_i32 v{vT2}, 31, v{vAcc}", f"v_or_b32 v{vT2}, 0x80000000, v{vT2}", f"v_xor_b32 v{vAcc}, v{vAcc}, v{vT2}",
      f"v_and_b32 v{vAcc}, 0xffff0000, v{vAcc}", f"v_sub_u32 v{vT2}, 0xffff, v{vRow}", f"v_or_b32 v{vAcc}, v{vAcc}, v{vT2}",
      f"v_lshlrev_b32 v{vT2}, 2, v{vRow}", f"v_add_u32 v{vT2}, {RKEY}, v{vT2}",
      f"v_cmp_eq_u32 vcc, 0, v{vU}", "s_nop 1", f"v_cndmask_b32 v{vT2}, v{vT+3}, v{vT2}, vcc",
      f"buffer_store_dword v{vAcc}, v{vT2}, s[{sWS}:{sWS+3}], 0 offen")
    stamp(a, 3)
    stampc(a, 12)
    a("s_barrier")
    a(f"s_mov_b32 s{sIT}, 0", f"s_cmp_ge_u32 s{sW}, 2", f"s_cbranch_scc1 {name}_roleV")

    def reads(role, buf, off):
        CF = (FB if role == "K" else FA) + 32 * buf
        WF = (FA if role == "K" else FB) + 32 * buf
        rc = [f"ds_read_b128 {vr(CF+4*i,4)}, v{vCa} offset:{off + i*1024}" for i in range(8)]
        rw = []
        for cb in range(8):
            for t in range(2):
                rw.append(f"ds_read_b64_tr_b16 {vr(WF+4*cb+2*t,2)}, v{vWa+(cb&1)} offset:{off + t*1024 + (cb>>1)*256}")
        return rc, rw

    for role in ("K", "V"):
        if role == "V": a.label(f"{name}_roleV")
        rc, rw = reads(role, 0, 0)
        a(rc, rw, "s_waitcnt lgkmcnt(0)")
        a(".p2align 6")
        a.label(f"{name}_loop{role}")
        for half in range(2):
            mf = [f"{MF} {ar((i*8+j)*4,4)}, {vr(FA+32*half+4*i,4)}, {vr(FB+32*half+4*j,4)}, {ar((i*8+j)*4,4)}" for i in range(8) for j in range(8)]
            sc = {}; mem = {}; va = {}
            sc[0] = ["s_waitcnt vmcnt(16)"]; sc[1] = ["s_barrier"]
            rc, rw = reads(role, 1 - half, 32768 if half == 0 else 0)
            preC, lc, preW, lw, post = dma_stage_lines()
            ds = []
            for i in range(8): ds += [rw[2*i], rw[2*i+1], rc[i]]
            g = 2
            for i, x in enumerate(ds):
                mem[2 + 2*i] = [x]
            sc[2] = preC
            for j in range(4): mem[3 + 6*j] = [lc[j]]
            sc[26] = preW
            for j in range(4): mem[27 + 6*j] = [lw[j]]
            for j, x in enumerate(post): sc[48 + j] = [x]
            if half == 0:
                va[52] = [f"v_xor_b32 v{vCa}, 0x10000, v{vCa}"]
                va[53] = [f"v_xor_b32 v{vWa}, 0x10000, v{vWa}"]
                va[54] = [f"v_xor_b32 v{vWa+1}, 0x10000, v{vWa+1}"]
                sc[63] = ["s_waitcnt lgkmcnt(0)"]
            else:
                sc[54] = [f"s_add_u32 s{sIT}, s{sIT}, 1"]
                sc[55] = [f"s_cmp_ge_u32 s{sIT}, 6"]
                sc[56] = [f"s_cselect_b32 s{sC+2}, 0, s{sC+2}"]
                sc[57] = [f"s_cselect_b32 s{sWt+2}, 0, s{sWt+2}"]
                sc[61] = [f"s_cmp_lt_u32 s{sIT}, 8"]
                sc[62] = ["s_waitcnt lgkmcnt(0)"]
                sc[63] = [f"s_cbranch_scc1 {name}_loop{role}"]
            a(weave(mf, sc, mem, va))
        if role == "K":
            a("s_mov_b32 s60, 2048", "s_mov_b32 s61, 8192", f"s_mov_b32 s62, {KFO}", f"s_branch {name}_epi")
        else:
            a("s_mov_b32 s60, 8192", "s_mov_b32 s61, 2048", f"s_mov_b32 s62, {VFO}")
    a.label(f"{name}_epi")
    stamp(a, 4)
    stampc(a, 13)
    a(f"s_lshl_b32 s23, s{sH}, 19", "s_add_u32 s62, s62, s23", f"s_lshl_b32 s23, s{sP}, 16", "s_add_u32 s62, s62, s23",
      f"s_and_b32 s23, s{sW}, 1", "s_lshl_b32 s23, s23, 15", "s_add_u32 s62, s62, s23", "s_nop 4")
    k = 0
    for t in range(4):
        for j in range(8):
            T = 32 + (k % 8) * 12; k += 1
            if j == 0: a("s_mov_b32 s63, s62", "s_add_u32 s62, s62, s60")
            elif j % 2 == 0: a("s_add_u32 s63, s63, s61")
            for r in range(4): a(f"v_accvgpr_read_b32 v{T+4+r}, a{((2*t)*8+j)*4+r}")
            for r in range(4): a(f"v_accvgpr_read_b32 v{T+8+r}, a{((2*t+1)*8+j)*4+r}")
            for r in range(4): a(f"v_cvt_pk_bf16_f32 v{T+r}, v{T+4+2*r}, v{T+5+2*r}")
            a(f"buffer_store_dwordx4 {vr(T,4)}, v{vL16}, s[{sWS}:{sWS+3}], s63 offen offset:{(j&1)*1024}")
    stamp(a, 5)
    a(f"v_lshrrev_b32 v{vT}, 2, v{vL}", f"v_mul_u32_u24 v{vT}, 160, v{vT}", f"v_and_b32 v{vT+1}, 3, v{vL}",
      f"v_lshl_add_u32 v{vT}, v{vT+1}, 3, v{vT}", f"v_add_u32 v{vT}, s31, v{vT}")
    for cb in range(5):
        for t in range(2):
            a(f"ds_read_b64_tr_b16 {vr(160+4*cb+2*t,2)}, v{vT} offset:{t*16*160 + cb*32}")
    a(f"s_lshl_b32 s23, s{sNG}, 7", f"s_add_u32 s23, s23, s{sS}", "s_mul_i32 s23, s23, 5120", f"s_add_u32 s23, s23, {WOF}",
      "s_add_u32 s31, s23, 4096", "s_waitcnt lgkmcnt(0)")
    for cb in range(5):
        a(f"buffer_store_dwordx4 {vr(160+4*cb,4)}, v{vL16}, s[{sWS}:{sWS+3}], s{23 if cb < 4 else 31} offen offset:{(cb%4)*1024}")
    stamp_flush(a, 0, sW, sWS)
    a.label(f"{name}_end")
    a("s_endpgm")
    return a
```

```python
import os
from asmlib import *
from gen_k1 import XNF, RKEY, SEL, YP, WOF, KFO, VFO, CTX, WS_BYTES, MF, srd, bf16r, stamp, stampc, stamp_init, stamp_flush

LDS = 131072
vL, vL16, vKV, vNI, vX = 1, 2, 3, 4, 5
vWo = 8
vWa = 12
vT = 16
Q = 32
S = 96
P = 160
NM = 192
E = 208
TS = 224
LS = 228
QACC = 96
O = 0
KF = 128
VF = 160
XR = 192
sW, sH, sI = 20, 21, 22
sWq, sXn, sWS, sK, sV = 32, 36, 40, 44, 48
sKm, sVm, sKo, sVo, sCnt, sNSS = 24, 25, 26, 27, 28, 29
sXo = 64
sMask = 68
sRet, sRet2 = 76, 78
sThr = 81

def xreduce(a, op, v, t):
    a(f"v_mov_b32 v{t}, v{v}", "s_nop 1", f"v_permlane16_swap_b32 v{v}, v{t}", f"{op} v{v}, v{v}, v{t}",
      f"v_mov_b32 v{t}, v{v}", "s_nop 1", f"v_permlane32_swap_b32 v{v}, v{t}", f"{op} v{v}, v{v}, v{t}")

def mask_ops(X, par):
    Sc = S + 32 * X + 16 * par
    o = []
    for r in range(4):
        o.append(f"v_cndmask_b32 v{Sc+r}, v{vNI}, v{Sc+r}, s[{sMask+2*r}:{sMask+2*r+1}]")
    for r in range(4):
        o.append(f"v_mov_b32 v{Sc+4+r}, v{vNI}")
    for r in range(4):
        o.append(f"v_cndmask_b32 v{Sc+12+r}, v{vNI}, v{Sc+12+r}, s[{sMask+2*r}:{sMask+2*r+1}]")
    return o

def sm_ops(X, par):
    Sc = S + 32 * X + 16 * par; Pc = P + 16 * X + 8 * par; e = E + 8 * X
    exps = [f"v_exp_f32 v{e+(i%8)}, v{Sc+i}" for i in range(16)]
    pl = []
    for i in range(16):
        t = TS + 2 * X + i // 8
        aa = e + ((i - 1) % 8); bb = e + (i % 8)
        if i % 8 == 1: pl.append((i, f"v_add_f32 v{t}, v{aa}, v{bb}"))
        elif i % 8 > 1: pl.append((i, f"v_add_f32 v{t}, v{t}, v{bb}"))
        if i % 2 == 1: pl.append((i, f"v_cvt_pk_bf16_f32 v{Pc+i//2}, v{aa}, v{bb}"))
    return exps, pl

class K2:
    SC = ''
    def __init__(self, name):
        self.name = name
        self.a = Asm()
        self.stubs = []
        self.nstub = 0

    def period(self, par, st, dma=True, bar=None, kread=True, c0=False, tail_sc=None, hook=None):
        odd = par == 1
        qs = [X for X in range(2) if "q" in st[X]]
        vs = [X for X in range(2) if "v" in st[X]]
        ss = [X for X in range(2) if "s" in st[X]]
        mf = []; use = []
        for f in range(8):
            ks, kb = f // 2, f % 2
            for X in qs:
                for qb in range(2):
                    d = S + 32 * X + 16 * (1 - par) + qb * 8 + kb * 4
                    c = vr(d, 4) if ks > 0 else ("0" if c0 else vr(NM + 8 * X + 4 * qb, 4))
                    mf.append(f"{MF} {vr(d,4)}, {ar(KF+4*f,4)}, {vr(Q+32*X+8*ks+4*qb,4)}, {c}"); use.append(("K", f))
        nq = len(mf)
        for db in range(8):
            for X in vs:
                for qb in range(2):
                    d = O + 64 * X + 8 * db + 4 * qb
                    mf.append(f"{MF} {ar(d,4)}, {ar(VF+4*db,4)}, {vr(P+16*X+8*(1-par)+4*qb,4)}, {ar(d,4)}"); use.append(("V", db))
        n = len(mf); nv = n - nq
        hoff = 0 if odd else 8192
        vrd = [f"ds_read_b128 {ar(VF+4*i,4)}, v{vKV} offset:{16384+hoff+i*1024}" for i in range(8)] if vs else []
        krd = [f"ds_read_b128 {ar(KF+4*i,4)}, v{vKV} offset:{hoff+i*1024}" for i in range(8)] if kread else []
        pre = []
        sc = {g: [] for g in range(n)}; mem = {g: [] for g in range(n)}; va = {g: [] for g in range(n)}
        first = 0
        if bar is not None:
            if nq > 0:
                sc[0].append(f"s_waitcnt vmcnt({bar})"); sc[1].append("s_barrier"); first = 2
            else:
                pre += [f"s_waitcnt vmcnt({bar})", "s_barrier"]
        if hook:
            sc[2].append(hook[0]); sc[3] += hook[1]
        vpos = {}; kpos = {}
        if vrd:
            if nq == 0:
                pre += vrd
                for i in range(8): vpos[i] = -1
            else:
                step = nq // 8
                for i in range(8):
                    g = max(first, i * step)
                    if step == 2 and first == 2: g = [2, 2, 4, 6, 8, 10, 12, 14][i]
                    mem[g].append(vrd[i]); vpos[i] = g
        if krd:
            if nv > 0:
                step = nv // 8
                for i in range(8):
                    g = nq + i * step
                    mem[g].append(krd[i]); kpos[i] = g
            else:
                step = nq // 8
                for i in range(8):
                    g = (i + 1) * step - 1
                    mem[g].append(krd[i]); kpos[i] = g
        if dma:
            srdn = sK if odd else sV; so = sKo if odd else sVo; sm = sKm if odd else sVm
            step = n // 4
            base = 6 if step >= 12 else 4
            gs = [base + j * step for j in range(4)]
            if n == 32: gs = [4, 10, 18, 24]
            sc[gs[0] - 1].append(f"s_mov_b32 m0, s{sm}")
            for j in range(4):
                mem[gs[j]].append(f"buffer_load_dwordx4 v{vL16}, s[{srdn}:{srdn+3}], s{so} offen offset:{j*1024}{self.SC} lds")
            post = [f"s_add_u32 s{so}, s{so}, 16384", f"s_add_u32 s{sm}, s{sm}, 32768", f"s_and_b32 s{sm}, s{sm}, 0x1ffff"]
            for j, x in enumerate(post): sc[gs[3] + 1 + j].append(x)
        head = []
        for X in ss:
            if "m" in st[X]: head += mask_ops(X, par)
        exps = []; pl = []
        for X in ss:
            e, p = sm_ops(X, par)
            off = len(exps)
            exps += e; pl += [(i + off, l) for i, l in p]
        pl = [(-1, l) for l in head] + pl
        nhead = len(head)
        if ss:
            ts = [TS + 2 * X + qb for X in ss for qb in range(2)]
            last = len(exps) - 1
            if len(ts) == 2:
                pl.append((last, f"v_max_f32 v{vX}, v{ts[0]}, v{ts[1]}"))
            else:
                pl.insert(len(pl) - 6, (last - 4, f"v_max3_f32 v{vX}, v{ts[0]}, v{ts[1]}, v{ts[2]}"))
                pl.append((last, f"v_max_f32 v{vX}, v{vX}, v{ts[3]}"))
            pl.append((last, f"v_cmp_lt_f32 vcc, s{sThr}, v{vX}"))
        kvupd = []
        if not odd:
            kvupd = [f"v_add_u32 v{vKV}, 32768, v{vKV}", f"v_and_b32 v{vKV}, 0x1ffff, v{vKV}"]
        ng = n - 1
        if nq == 0 and ss:
            ng += 1
        memcost = [4 * len(mem[g]) for g in range(n)]
        total = sum(memcost[:n-1]) + 8 * len(exps) + 4 * len(pl)
        ei = 0; pi = 0; used = 0
        exp_gap = {}
        def ready_pl(g, lastline_is_exp):
            if pi >= len(pl): return False
            need = pl[pi][0]
            if need >= ei: return False
            if need == ei - 1 and lastline_is_exp: return False
            return True
        def ready_exp():
            if ei >= len(exps): return False
            if pi < nhead: return False
            for k in range(pi, len(pl)):
                if pl[k][0] <= ei - 7 and pl[k][0] >= 0 and (pl[k][0] // 16 == ei // 16): return False
                if pl[k][0] > ei - 7: break
            return True
        slots = ([-1] if (nq == 0 and ss) else []) + list(range(n - 1))
        tau = max(8.0, total / max(1, n - 1)) if not (nq == 0 and ss) else max(8.0, (total - 120) / max(1, n - 1))
        target = 0.0
        for g in slots:
            lst = pre if g < 0 else va[g]
            target += 120 if g < 0 else tau
            c = 0 if g < 0 else memcost[g]
            used += c
            le = False
            lastgap = (g == n - 2)
            while True:
                rem = target - used
                if not lastgap and rem < 2 and c >= 8: break
                if not lastgap and c > 0 and rem < 2: break
                pickexp = ready_exp() and (c == 0 or not ready_pl(g, le) or (rem >= 7 and (len(exps) - ei) * 2 > (n - 1 - g)))
                if pickexp:
                    lst.append(exps[ei]); ei += 1; used += 8; c += 8; le = True
                elif ready_pl(g, le):
                    lst.append(pl[pi][1]); pi += 1; used += 4; c += 4; le = False
                elif lastgap and pi < len(pl) and le:
                    lst.append("s_nop 0"); le = False
                else: break
        assert ei == len(exps) and pi == len(pl), (ei, pi, len(exps), len(pl), st)
        order = [("K", f, -2) for f in range(4, 8)]
        evs = []
        for i in range(8):
            if i in vpos: evs.append((vpos[i], 0, "V", i))
        for i in range(8):
            if i in kpos: evs.append((kpos[i], 1, "N", i))
        evs.sort()
        allops = order + [(k, i, g) for (g, _, k, i) in evs]
        def cnt_after(kind, idx, gap):
            pos = [j for j, o in enumerate(allops) if o[0] == kind and o[1] == idx][0]
            assert allops[pos][2] < gap, (kind, idx, gap, st)
            return sum(1 for o in allops[pos+1:] if o[2] < gap)
        seen = set()
        for m, u in enumerate(use):
            if u in seen: continue
            seen.add(u)
            kind, f = u
            if f % 4 != 0: continue
            if kind == "K" and f == 0: continue
            if m == 0:
                pre.append(f"s_waitcnt lgkmcnt({cnt_after(kind, f+3, 0)})")
            else:
                sc[m-1].append(f"s_waitcnt lgkmcnt({cnt_after(kind, f+3, m-1)})")
        if krd:
            g = n - 2 if nv > 0 else n - 1
            sc[g].append(f"s_waitcnt lgkmcnt({cnt_after('N', 3, g)})")
        if tail_sc:
            free = [g for g in range(n // 2, n - 2) if not sc[g]]
            for x, g in zip(tail_sc, free[-len(tail_sc):]): sc[g].append(x)
        if ss:
            k = self.nstub; self.nstub += 1
            sc[n-1].append(f"s_cbranch_vccnz {self.name}_stub{k}")
            sc[n-1].append(f"{self.name}_back{k}:")
            self.stubs.append((k, ss, par))
            for X in ss:
                for qb in range(2):
                    va[n-1].append(f"v_add_f32 v{LS+2*X+qb}, v{LS+2*X+qb}, v{TS+2*X+qb}")
        va[n-1] += kvupd
        return pre + weave(mf, sc, mem, va)

    def rare(self, X, par):
        a = self.a
        Sc = S + 32 * X + 16 * par; Sn = S + 32 * X + 16 * (1 - par)
        a.label(f"{self.name}_rare{X}{par}")
        a("s_nop 7")
        d = [vT, vT + 1]
        for qb in range(2):
            s0 = Sc + 8 * qb
            a(f"v_max3_f32 v{d[qb]}, v{s0}, v{s0+1}, v{s0+2}", f"v_max3_f32 v{d[qb]}, v{d[qb]}, v{s0+3}, v{s0+4}",
              f"v_max3_f32 v{d[qb]}, v{d[qb]}, v{s0+5}, v{s0+6}", f"v_max3_f32 v{d[qb]}, v{d[qb]}, v{s0+7}, 0")
            xreduce(a, "v_max_f32", d[qb], vT + 2)
            for r in range(8):
                a(f"v_sub_f32 v{s0+r}, v{s0+r}, v{d[qb]}", f"v_sub_f32 v{Sn+8*qb+r}, v{Sn+8*qb+r}, v{d[qb]}")
        a(f"s_call_b64 s[{sRet2}:{sRet2+1}], {self.name}_resc{X}")
        exps, pl = sm_ops(X, par)
        pi = 0
        for i in range(16):
            a(exps[i])
            while pi < len(pl) and pl[pi][0] < i:
                a(pl[pi][1]); pi += 1
        a("s_nop 0")
        a([l for _, l in pl[pi:]])
        a("s_nop 1", f"s_setpc_b64 s[{sRet}:{sRet+1}]")

    def resc(self, X):
        a = self.a
        a.label(f"{self.name}_resc{X}")
        for qb in range(2):
            for r in range(4):
                a(f"v_sub_f32 v{NM+8*X+4*qb+r}, v{NM+8*X+4*qb+r}, v{vT+qb}")
            a(f"v_exp_f32 v{vT+2+qb}, -v{vT+qb}")
        a("s_nop 0")
        for qb in range(2):
            a(f"v_mul_f32 v{LS+2*X+qb}, v{LS+2*X+qb}, v{vT+2+qb}")
        for db in range(8):
            for qb in range(2):
                o = O + 64 * X + 8 * db + 4 * qb
                for r in range(4): a(f"v_accvgpr_read_b32 v{vT+4+r}, a{o+r}")
                for r in range(4): a(f"v_mul_f32 v{vT+4+r}, v{vT+4+r}, v{vT+2+qb}")
                for r in range(4): a(f"v_accvgpr_write_b32 a{o+r}, v{vT+4+r}")
        a(f"s_setpc_b64 s[{sRet2}:{sRet2+1}]")

    def gen(self):
        a = self.a; name = self.name
        a("s_cmp_ge_u32 s2, 256", f"s_cbranch_scc1 {name}_end")
        stamp_init(a)
        a("s_load_dwordx2 s[4:5], s[0:1], 16", "s_load_dwordx2 s[16:17], s[0:1], 104")
        a(f"v_lshrrev_b32 v{vT}, 6, v0", f"v_and_b32 v{vL}, 63, v0", f"v_readfirstlane_b32 s{sW}, v{vT}")
        a(f"s_and_b32 s{sH}, s2, 7", f"s_lshl_b32 s{sH}, s{sH}, 2", "s_lshr_b32 s23, s2, 3", "s_and_b32 s23, s23, 3",
          f"s_add_u32 s{sH}, s{sH}, s23", f"s_lshr_b32 s{sI}, s2, 5")
        a(f"v_lshlrev_b32 v{vL16}, 4, v{vL}")
        a(f"v_bfe_u32 v{vT}, v{vL}, 2, 2", f"v_lshrrev_b32 v{vT+1}, 4, v{vL}", f"v_lshlrev_b32 v{vT+1}, 6, v{vT+1}",
          f"v_lshl_add_u32 v{vT}, v{vT}, 13, v{vT+1}", f"s_lshl_b32 s23, s{sW}, 17", f"v_add_u32 v{vT}, s23, v{vT}",
          f"v_and_b32 v{vT+2}, 3, v{vL}",
          f"v_lshl_add_u32 v{vWo}, v{vT+2}, 4, v{vT}", f"v_xor_b32 v{vT+2}, 2, v{vT+2}",
          f"v_lshl_add_u32 v{vWo+2}, v{vT+2}, 4, v{vT}",
          f"v_add_u32 v{vWo+1}, {32768-1024}, v{vWo}", f"v_add_u32 v{vWo+3}, {3*(32768-1024)}, v{vWo+2}",
          f"v_add_u32 v{vWo+2}, {2*(32768-1024)}, v{vWo+2}")
        a(f"s_lshl_b32 s23, s{sI}, 2", f"s_add_u32 s23, s23, s{sW}", f"s_mul_i32 s{sXo}, s23, {2*20480}",
          f"s_add_u32 s{sXo+1}, s{sXo}, 20480",
          f"s_sub_u32 s30, 15, s{sI}", "s_lshl_b32 s23, s30, 2", f"s_add_u32 s23, s23, s{sW}", f"s_mul_i32 s{sXo+2}, s23, {2*20480}",
          f"s_add_u32 s{sXo+3}, s{sXo+2}, 20480")
        a("s_waitcnt lgkmcnt(0)")
        a(f"s_lshl_b32 s23, s{sH}, 8", "s_add_u32 s4, s4, s23", "s_addc_u32 s5, s5, 0")
        srd(a, sWq, "s4", "s5", 0)
        a(f"s_sub_u32 s{sWq+2}, {640*8192}, s23")
        srd(a, sXn, "s16", "s17", 2048 * 1280)
        srd(a, sWS, "s16", "s17", WS_BYTES)
        a(f"s_lshl_b32 s{sKm}, s{sW}, 12", f"s_add_u32 s{sKm}, s{sKm}, 16384", f"s_mov_b32 s{sKo}, 0")
        def wdma():
            pre = [f"s_mov_b32 m0, s{sKm}"]
            l = [f"buffer_load_dwordx4 v{vWo+j}, s[{sWq}:{sWq+3}], s{sKo} offen offset:{j*1024} lds" for j in range(4)]
            post = [f"s_add_u32 s{sKo}, s{sKo}, {64*8192}", f"s_add_u32 s{sKm}, s{sKm}, 32768", f"s_and_b32 s{sKm}, s{sKm}, 0x1ffff"]
            return pre, l, post
        def xload(slot, qb):
            return f"buffer_load_dwordx4 {ar(XR+16*slot+4*qb,4)}, v{vL16}, s[{sXn}:{sXn+3}], s{sXo+qb} offen offset:{slot*1024}"
        for tok in ("W", "X0", "W", "X1", "X2", "W", "X3", "W"):
            if tok == "W":
                pre, l, post = wdma(); a(pre, "s_nop 0", l, post)
            else:
                a([xload(int(tok[1]), qb) for qb in range(4)])
        for qb in range(4): a(f"s_add_u32 s{sXo+qb}, s{sXo+qb}, 4096")
        a(f"s_lshl_b32 s23, s{sH}, 19", f"s_add_u32 s23, s23, {KFO}", "s_add_u32 s6, s16, s23", "s_addc_u32 s7, s17, 0",
          f"s_add_u32 s8, s6, {VFO-KFO}", "s_addc_u32 s9, s7, 0",
          f"s_sub_u32 s23, 16, s{sI}", "s_lshl_b32 s23, s23, 15")
        srd(a, sK, "s6", "s7", "s23")
        srd(a, sV, "s8", "s9", "s23")
        for i in range(4): a(f"v_mov_b32 v{vT+4+i}, 0")
        a(f"v_bfe_u32 v{vT+2}, v{vL}, 2, 2", f"v_lshlrev_b32 v{vT+2}, 6, v{vT+2}", f"v_lshrrev_b32 v{vT+1}, 4, v{vL}",
          f"v_lshl_add_u32 v{vT+2}, v{vT+1}, 11, v{vT+2}",
          f"v_and_b32 v{vT+3}, 1, v{vL}", f"v_lshl_add_u32 v{vT+2}, v{vT+3}, 3, v{vT+2}",
          f"v_bfe_u32 v{vT+3}, v{vL}, 1, 1", f"v_and_b32 v{vT}, 1, v{vT+1}", f"v_lshl_or_b32 v{vT+3}, v{vT}, 1, v{vT+3}",
          f"v_add_u32 v{vT+2}, 16384, v{vT+2}", f"v_lshl_add_u32 v{vWa}, v{vT+3}, 4, v{vT+2}", f"v_xor_b32 v{vWa+1}, 32, v{vWa}")
        for i in range(8):
            a(f"v_mfma_f32_32x32x16_bf16 {vr(QACC+16*i,16)}, {vr(vT+4,4)}, {vr(vT+4,4)}, 0")
        for i in range(8):
            a(f"v_mfma_f32_32x32x16_bf16 {ar(O+16*i,16)}, {vr(vT+4,4)}, {vr(vT+4,4)}, 0")
        a(f"v_and_b32 v{vT}, 15, v{vL}", f"v_lshlrev_b32 v{vT+1}, 2, v{vT+1}", f"v_sub_u32 v{vT}, v{vT}, v{vT+1}")
        for r in range(4): a(f"v_cmp_le_i32 s[{sMask+2*r}:{sMask+2*r+1}], {r}, v{vT}")
        a(f"v_mov_b32 v{vNI}, 0xff800000", f"s_mov_b32 s{sThr}, 0x47800000")
        for i in range(4): a(f"v_mov_b32 v{LS+i}, 0")
        def wreads(buf, off):
            return [f"ds_read_b64_tr_b16 {vr(Q+32*buf+4*cb+2*t,2)}, v{vWa+(cb&1)} offset:{off + t*1024 + (cb>>1)*256}" for cb in range(8) for t in range(2)]
        stamp(a, 1)
        a("s_waitcnt vmcnt(24)", "s_barrier")
        stamp(a, 2)
        if os.environ.get("CYC") == "q": stampc(a, 12)
        a(wreads(0, 0), f"s_mov_b32 s{sCnt}, 0", "s_waitcnt lgkmcnt(0)")
        a(".p2align 6")
        a.label(f"{name}_qloop")
        for ks in range(4):
            buf = ks & 1
            mf = [f"{MF} {vr(QACC+(db*4+qb)*4,4)}, {vr(Q+32*buf+4*db,4)}, {ar(XR+16*ks+4*qb,4)}, {vr(QACC+(db*4+qb)*4,4)}" for qb in range(4) for db in range(8)]
            sc = {g: [] for g in range(32)}; mem = {g: [] for g in range(32)}; va = {g: [] for g in range(32)}
            off = [8192, 32768, 32768 + 8192, 0][ks]
            rd = wreads(1 - buf, off)
            pos = [1, 2, 3, 4, 5, 6, 8, 9, 10, 12, 13, 14, 16, 17, 18, 20]
            if ks & 1: sc[0].append("s_barrier")
            for p_, x in zip(pos, rd): mem[p_].append(x)
            for qb in range(4): mem[8*qb+7].append(xload(ks, qb))
            if ks & 1:
                pre, l, post = wdma()
                sc[10] += pre
                for j, g in enumerate([11, 19, 22, 27]): mem[g].append(l[j])
                for j, x in enumerate(post): sc[28 + j if j < 2 else 27].append(x) if False else None
                sc[28].append(post[0]); sc[29].append(post[1]); sc[30].append(post[2])
            if ks == 2:
                va[24].append(f"v_xor_b32 v{vWa}, 0x10000, v{vWa}")
                va[25].append(f"v_xor_b32 v{vWa+1}, 0x10000, v{vWa+1}")
                sc[24].append(f"s_add_u32 s{sCnt}, s{sCnt}, 1")
            w = f"s_waitcnt vmcnt({15 if (ks+1) & 1 else 19}) lgkmcnt(0)"
            sc[31].append(w)
            if ks == 3:
                for qb in range(3): sc[8*qb+8].append(f"s_add_u32 s{sXo+qb}, s{sXo+qb}, 4096")
                va[31] += [f"s_add_u32 s{sXo+3}, s{sXo+3}, 4096", f"s_cmp_ge_u32 s{sCnt}, 4", f"s_cselect_b32 s{sXn+2}, 0, s{sXn+2}",
                           f"s_cmp_lt_u32 s{sCnt}, 5", f"s_cbranch_scc1 {name}_qloop"]
            a(weave(mf, sc, mem, va))
        a("s_waitcnt vmcnt(0)", "s_barrier")
        stamp(a, 3)
        if os.environ.get("CYC") == "q": stampc(a, 13)
        a(f"s_and_b32 s23, s{sW}, 1", "s_lshl_b32 s23, s23, 12", f"s_cmp_lt_u32 s{sW}, 2", f"s_cselect_b32 s{sKm}, {131072-24576}, 0",
          f"s_add_u32 s{sKm}, s{sKm}, s23", f"s_lshl_b32 s{sKo}, s{sW}, 12", f"s_mov_b32 s{sVo}, s{sKo}",
          f"s_add_u32 s{sVm}, s{sKo}, {32768+16384}")
        for (srdn, so, sm) in [(sK, sKo, sKm)] * 3 + [(sV, sVo, sVm)] * 2:
            a(f"s_mov_b32 m0, s{sm}", "s_nop 0")
            a([f"buffer_load_dwordx4 v{vL16}, s[{srdn}:{srdn+3}], s{so} offen offset:{j*1024} lds" for j in range(4)])
            a(f"s_add_u32 s{so}, s{so}, 16384", f"s_add_u32 s{sm}, s{sm}, 32768", f"s_and_b32 s{sm}, s{sm}, 0x1ffff")
        a(f"v_mov_b32 v{vT}, 0x3e0293ee", f"v_mov_b32 v{vT+1}, 0x3e0293ee")
        for X in range(2):
            for ks in range(4):
                for qb in range(2):
                    d = Q + 32 * X + 8 * ks + 4 * qb
                    for hh in range(2):
                        s0 = QACC + ((2 * ks + hh) * 4 + 2 * X + qb) * 4
                        a(f"v_pk_mul_f32 {vr(s0,2)}, {vr(s0,2)}, {vr(vT,2)}", f"v_pk_mul_f32 {vr(s0+2,2)}, {vr(s0+2,2)}, {vr(vT,2)}",
                          f"v_cvt_pk_bf16_f32 v{d+2*hh}, v{s0}, v{s0+1}", f"v_cvt_pk_bf16_f32 v{d+2*hh+1}, v{s0+2}, v{s0+3}")
        a(f"s_add_u32 s23, s{sW}, 1", "s_lshr_b32 s23, s23, 1", f"s_lshl_b32 s{sCnt}, s{sI}, 1", f"s_add_u32 s{sCnt}, s{sCnt}, s23",
          f"s_lshl_b32 s23, s{sI}, 2", f"s_sub_u32 s{sNSS}, 28, s23", f"s_and_b32 s23, s{sW}, 1", f"s_add_u32 s{sNSS}, s{sNSS}, s23")
        a(f"v_mov_b32 v{vKV}, v{vL16}", f"v_add_u32 v{vT+2}, {3*32768+8192}, v{vL16}")
        stamp(a, 4)
        a("s_waitcnt vmcnt(12)", "s_barrier")
        stamp(a, 5)
        a([f"ds_read_b128 {ar(KF+4*i,4)}, v{vT+2} offset:{i*1024}" for i in range(8)])
        a("s_waitcnt lgkmcnt(4)")
        a(self.period(1, ["q", "q"], c0=True))
        a("s_nop 7", f"s_cmp_lg_u32 s{sCnt}, 0", f"s_cbranch_scc1 {name}_nomask0")
        a(mask_ops(0, 0))
        a.label(f"{name}_nomask0")
        for X in range(2):
            for qb in range(2):
                s0 = S + 32 * X + 8 * qb; d = vT + 2 * X + qb
                a(f"v_max3_f32 v{d}, v{s0}, v{s0+1}, v{s0+2}", f"v_max3_f32 v{d}, v{d}, v{s0+3}, v{s0+4}",
                  f"v_max3_f32 v{d}, v{d}, v{s0+5}, v{s0+6}", f"v_max_f32 v{d}, v{d}, v{s0+7}")
        for sw in ("v_permlane16_swap_b32", "v_permlane32_swap_b32"):
            for k in range(4): a(f"v_mov_b32 v{vT+4+k}, v{vT+k}")
            a("s_nop 0")
            for k in range(4): a(f"{sw} v{vT+k}, v{vT+4+k}")
            for k in range(4): a(f"v_max_f32 v{vT+k}, v{vT+k}, v{vT+4+k}")
        for X in range(2):
            for qb in range(2):
                s0 = S + 32 * X + 8 * qb; d = vT + 2 * X + qb
                for r in range(4): a(f"v_sub_f32 v{NM+8*X+4*qb+r}, 0, v{d}")
        for X in range(2):
            for qb in range(2):
                s0 = S + 32 * X + 8 * qb; d = vT + 2 * X + qb
                for r in range(8): a(f"v_sub_f32 v{s0+r}, v{s0+r}, v{d}")
        a(self.period(0, ["qs", "qs"]))
        stamp(a, 6)
        if os.environ.get("CYC") != "q": stampc(a, 12)
        F = "qsv"
        a(f"s_cmp_eq_u32 s{sCnt}, 0", f"s_cbranch_scc1 {name}_AV", f"s_sub_u32 s{sCnt}, s{sCnt}, 1",
          f"s_cmp_eq_u32 s{sCnt}, 0", f"s_cbranch_scc1 {name}_Aexit")
        a(".p2align 6")
        a.label(f"{name}_DD")
        a(self.period(1, [F, F], bar=12))
        a(self.period(0, [F, F], tail_sc=[f"s_sub_u32 s{sCnt}, s{sCnt}, 1"]))
        a(f"s_cmp_lg_u32 s{sCnt}, 0", f"s_cbranch_scc1 {name}_DD")
        a.label(f"{name}_Aexit")
        a(f"s_bitcmp1_b32 s{sW}, 0", f"s_cbranch_scc1 {name}_Aodd")
        a(self.period(1, [F, F], bar=12))
        a(self.period(0, ["smv", F]))
        a.label(f"{name}_AV")
        a(self.period(1, ["v", F], bar=12))
        a(self.period(0, ["", F]))
        a(f"s_branch {name}_SSpre")
        a.label(f"{name}_Aodd")
        a(self.period(1, ["smv", F], bar=12))
        a(self.period(0, ["v", F]))
        a.label(f"{name}_SSpre")
        stamp(a, 7)
        a(f"s_cmp_eq_u32 s{sNSS}, 0", f"s_cbranch_scc1 {name}_Bexit")
        a(".p2align 6")
        a.label(f"{name}_SS")
        a(self.period(1, ["", F], bar=12))
        a(self.period(0, ["", F], tail_sc=[f"s_sub_u32 s{sNSS}, s{sNSS}, 1"]))
        a(f"s_cmp_lg_u32 s{sNSS}, 0", f"s_cbranch_scc1 {name}_SS")
        a.label(f"{name}_Bexit")
        a(f"s_bitcmp1_b32 s{sW}, 0", f"s_cbranch_scc1 {name}_Bodd")
        a(self.period(1, ["", F], bar=0, dma=False, kread=False))
        a(self.period(0, ["", "smv"], dma=False, kread=False))
        a(self.period(1, ["", "v"], bar=0, dma=False, kread=False))
        a(f"s_branch {name}_Bdone")
        a.label(f"{name}_Bodd")
        a(self.period(1, ["", "smv"], bar=0, dma=False, kread=False))
        a(self.period(0, ["", "v"], dma=False, kread=False))
        a.label(f"{name}_Bdone")
        a(f"s_cmp_ge_u32 s{sW}, 2", f"s_cbranch_scc1 {name}_epi", "s_barrier")
        a.label(f"{name}_epi")
        stamp(a, 8)
        if os.environ.get("CYC") != "q": stampc(a, 13)
        for sw in ("v_permlane16_swap_b32", "v_permlane32_swap_b32"):
            for k in range(4): a(f"v_mov_b32 v{vT+4+k}, v{LS+k}")
            a("s_nop 0")
            for k in range(4): a(f"{sw} v{LS+k}, v{vT+4+k}")
            for k in range(4): a(f"v_add_f32 v{LS+k}, v{LS+k}, v{vT+4+k}")
        for k in range(4): a(f"v_rcp_f32 v{vT+2*k}, v{LS+k}")
        a("s_nop 0")
        for k in range(4): a(f"v_mov_b32 v{vT+2*k+1}, v{vT+2*k}")
        a(f"s_lshl_b32 s23, s{sI}, 2", f"s_add_u32 s23, s23, s{sW}", "s_lshl_b32 s23, s23, 18", f"s_lshl_b32 s31, s{sH}, 12",
          f"s_add_u32 s31, s31, {CTX}", f"s_add_u32 s{sXo}, s23, s31", f"s_add_u32 s{sXo+1}, s{sXo}, {1<<17}",
          "s_lshl_b32 s23, s30, 2", f"s_add_u32 s23, s23, s{sW}", "s_lshl_b32 s23, s23, 18",
          f"s_add_u32 s{sXo+2}, s23, s31", f"s_add_u32 s{sXo+3}, s{sXo+2}, {1<<17}")
        k = 0
        for X in range(2):
            for qb in range(2):
                for t in range(4):
                    T = 32 + (k % 8) * 12; k += 1
                    f = vT + 2 * (2 * X + qb)
                    for hh in range(2):
                        for r in range(4): a(f"v_accvgpr_read_b32 v{T+4+4*hh+r}, a{O+64*X+8*(2*t+hh)+4*qb+r}")
                    for r in range(4): a(f"v_pk_mul_f32 {vr(T+4+2*r,2)}, {vr(T+4+2*r,2)}, {vr(f,2)}")
                    for r in range(4): a(f"v_cvt_pk_bf16_f32 v{T+r}, v{T+4+2*r}, v{T+5+2*r}")
                    a(f"buffer_store_dwordx4 {vr(T,4)}, v{vL16}, s[{sWS}:{sWS+3}], s{sXo+2*X+qb} offen offset:{t*1024}")
        stamp(a, 9)
        self.ffn()
        a.label(f"{name}_fin")
        stamp_flush(a, 1, sW, sWS)
        a.label(f"{name}_end")
        a("s_endpgm")
        for (k, ss, par) in self.stubs:
            a.label(f"{name}_stub{k}")
            for X in ss: a(f"s_call_b64 s[{sRet}:{sRet+1}], {name}_rare{X}{par}")
            a(f"s_branch {name}_back{k}")
        for X in range(2):
            for par in range(2): self.rare(X, par)
            self.resc(X)
        return a

    def ffn(self):
        a = self.a; name = self.name
        sG, sU, sD = 52, 56, 60
        sJ = 82
        a("s_cmp_lt_u32 s2, 192", f"s_cbranch_scc1 {name}_fin", "s_cmp_ge_u32 s2, 246", f"s_cbranch_scc1 {name}_fin")
        a("s_load_dwordx4 s[4:7], s[0:1], 64", "s_load_dwordx2 s[8:9], s[0:1], 80", f"s_sub_u32 s{sJ}, s2, 192")
        KEY = 128
        a(f"s_mov_b32 s23, {RKEY}", f"s_mov_b32 s31, {RKEY+4096}")
        for q in range(8):
            a(f"buffer_load_dwordx4 {vr(KEY+4*q,4)}, v{vL16}, s[{sWS}:{sWS+3}], s{23 if q < 4 else 31} offen offset:{(q%4)*1024}")
        a(f"v_lshrrev_b32 v{vT}, 2, v{vL}", f"v_mul_u32_u24 v{vT+1}, 3456, v{vT}", f"v_and_b32 v{vT+2}, 3, v{vL}",
          f"v_lshl_add_u32 v{vT+1}, v{vT+2}, 4, v{vT+1}")
        a("s_waitcnt lgkmcnt(0)")
        srd(a, sG, "s4", "s5", 640 * 3456); srd(a, sU, "s6", "s7", 640 * 3456); srd(a, sD, "s8", "s9", 1728 * 1280)
        a(f"s_mul_i32 s23, s{sW}, {10*16*3456}", f"s_lshl_b32 s31, s{sJ}, 6", "s_add_u32 s23, s23, s31",
          f"s_mul_i32 s24, s{sW}, 10240", f"s_mul_i32 s25, s{sJ}, 40960", "s_add_u32 s25, s25, s24", "s_mov_b32 s26, 10")
        a("s_barrier")
        a.label(f"{name}_fdma")
        a("s_mov_b32 m0, s24", "s_nop 0", f"buffer_load_dwordx4 v{vT+1}, s[{sG}:{sG+3}], s23 offen lds",
          "s_add_u32 m0, s24, 40960", "s_nop 0", f"buffer_load_dwordx4 v{vT+1}, s[{sU}:{sU+3}], s23 offen lds",
          "s_add_u32 m0, s24, 81920", "s_nop 0", f"buffer_load_dwordx4 v{vL16}, s[{sD}:{sD+3}], s25 offen lds",
          f"s_add_u32 s23, s23, {16*3456}", "s_add_u32 s24, s24, 1024", "s_add_u32 s25, s25, 1024",
          "s_sub_u32 s26, s26, 1", "s_cmp_lg_u32 s26, 0", f"s_cbranch_scc1 {name}_fdma")
        vM, vPrev, vSel, vTok, vTmp = vT + 4, vT + 5, vT + 6, vT + 7, vT + 8
        a(f"v_mov_b32 v{vPrev}, 0", f"v_mov_b32 v{vSel}, 0", f"v_and_b32 v{vTok}, 7, v{vL}", "s_mov_b32 s26, 0", "s_waitcnt vmcnt(30)")
        a.label(f"{name}_top")
        a(f"v_max3_u32 v{vM}, v{KEY}, v{KEY+1}, v{KEY+2}", f"v_max3_u32 v{vTmp}, v{KEY+3}, v{KEY+4}, v{KEY+5}")
        for q in range(6, 30, 4):
            a(f"v_max3_u32 v{vM}, v{vM}, v{KEY+q}, v{KEY+q+1}", f"v_max3_u32 v{vTmp}, v{vTmp}, v{KEY+q+2}, v{KEY+q+3}")
        a(f"v_max3_u32 v{vM}, v{vM}, v{KEY+30}, v{KEY+31}", f"v_max_u32 v{vM}, v{vM}, v{vTmp}")
        for m in ("quad_perm:[1,0,3,2]", "quad_perm:[2,3,0,1]", "row_half_mirror", "row_mirror"):
            a("s_nop 1", f"v_max_u32_dpp v{vM}, v{vM}, v{vM} {m} row_mask:0xf bank_mask:0xf")
        xreduce(a, "v_max_u32", vM, vTmp)
        a(f"v_add_u32 v{vPrev}, v{vPrev}, v{vM}", f"v_cmp_eq_u32 vcc, s26, v{vTok}")
        for q in range(32): a(f"v_sub_u32 v{KEY+q}, v{KEY+q}, v{vM}")
        a(f"v_cndmask_b32 v{vSel}, v{vSel}, v{vPrev}, vcc", "s_add_u32 s26, s26, 1", "s_cmp_lt_u32 s26, 8", f"s_cbranch_scc1 {name}_top")
        vRow, vR, vXo = vT + 9, vT + 10, vT + 11
        stamp(a, 10)
        a(f"v_and_b32 v{vRow}, 0xffff, v{vSel}", f"v_sub_u32 v{vRow}, 0xffff, v{vRow}", f"v_and_b32 v{vRow}, 2047, v{vRow}",
          f"v_lshrrev_b32 v{vXo}, 4, v{vRow}", f"v_mul_u32_u24 v{vXo}, 20480, v{vXo}", f"v_and_b32 v{vTmp}, 15, v{vRow}",
          f"v_lshl_add_u32 v{vXo}, v{vTmp}, 4, v{vXo}", f"v_lshrrev_b32 v{vTmp}, 4, v{vL}", f"v_lshl_add_u32 v{vXo}, v{vTmp}, 8, v{vXo}")
        XS = 32
        for s_ in range(20):
            if s_ % 4 == 0: a(f"s_mov_b32 s23, {s_*1024}")
            a(f"buffer_load_dwordx4 {vr(XS+4*s_,4)}, v{vXo}, s[{sWS}:{sWS+3}], s23 offen offset:{(s_%4)*1024}")
        a(f"v_ashrrev_i32 v{vM}, 31, v{vSel}", f"v_not_b32 v{vM}, v{vM}", f"v_or_b32 v{vM}, 0x80000000, v{vM}",
          f"v_xor_b32 v{vR}, v{vSel}, v{vM}", f"v_and_b32 v{vR}, 0xffff0000, v{vR}",
          f"v_mul_f32 v{vR}, 0xbfb8aa3b, v{vR}", f"v_exp_f32 v{vR}, v{vR}", "s_nop 0", f"v_add_f32 v{vR}, 1.0, v{vR}",
          f"v_rcp_f32 v{vR}, v{vR}", "s_nop 0")
        bf16r(a, vR)
        a(f"v_lshlrev_b32 v{vM}, 2, v{vL}", f"v_add_u32 v{vM}, {SEL}, v{vM}", f"v_mov_b32 v{vPrev}, 0x40000000",
          f"s_add_u32 s23, s{sJ}, s{sW}", "s_cmp_eq_u32 s23, 0", "s_cselect_b32 s23, 8, 0",
          f"v_cmp_gt_u32 vcc, s23, v{vL}", "s_nop 1", f"v_cndmask_b32 v{vM}, v{vPrev}, v{vM}, vcc",
          f"buffer_store_dword v{vRow}, v{vM}, s[{sWS}:{sWS+3}], 0 offen",
          f"buffer_store_dword v{vR}, v{vM}, s[{sWS}:{sWS+3}], 0 offen offset:32")
        vA, vB, vC = vT + 12, vT + 13, vT + 14
        a(f"v_lshl_add_u32 v{vA}, v{vTmp}, 2, v{vT}",
          f"v_lshlrev_b32 v{vA}, 6, v{vA}", f"v_lshl_add_u32 v{vA}, v{vT+2}, 3, v{vA}",
          f"s_lshr_b32 s23, s{sW}, 1", "s_mul_i32 s23, s23, 40960", f"s_and_b32 s31, s{sW}, 1", "s_lshl_b32 s31, s31, 5", "s_add_u32 s23, s23, s31",
          f"v_add_u32 v{vA}, s23, v{vA}",
          f"v_mul_u32_u24 v{vB}, 1280, v{vT}", f"v_lshl_add_u32 v{vB}, v{vT+2}, 3, v{vB}",
          f"s_mul_i32 s23, s{sW}, 320", "s_add_u32 s23, s23, 81920", f"v_add_u32 v{vB}, s23, v{vB}",
          f"s_lshl_b32 s23, s{sW}, 10", "s_add_u32 s23, s23, 122880", f"v_add_u32 v{vC}, s23, v{vL16}")
        a("s_waitcnt vmcnt(0)", "s_barrier")
        WFr = 112; DF = 192
        for s_ in range(20):
            for t in range(2):
                a(f"ds_read_b64_tr_b16 {vr(WFr+4*s_+2*t,2)}, v{vA} offset:{s_*2048+t*256}")
        a("s_waitcnt lgkmcnt(0)")
        for cb in range(10):
            for t in range(2):
                a(f"ds_read_b64_tr_b16 {vr(DF+4*cb+2*t,2)}, v{vB} offset:{t*20480+cb*32}")
        G = 232
        for s_ in range(20):
            a(f"{MF} {vr(G,4)}, {vr(WFr+4*s_,4)}, {vr(XS+4*s_,4)}, {'0' if s_ == 0 else vr(G,4)}")
        a("s_nop 7", f"ds_write_b128 v{vC}, {vr(G,4)}", f"v_add_u32 v{vC}, 122880, v{vL16}", "s_waitcnt lgkmcnt(0)", "s_barrier")
        GU = 32
        for k in range(4): a(f"ds_read_b128 {vr(GU+4*k,4)}, v{vC} offset:{k*1024}")
        a(f"v_and_b32 v{vM}, 15, v{vL}", f"v_mul_u32_u24 v{vA}, 2560, v{vM}", f"v_lshl_add_u32 v{vA}, v{vTmp}, 4, v{vA}",
          f"v_cmp_gt_u32 vcc, 8, v{vM}", f"s_mul_i32 s23, s{sJ}, 20480", f"s_mul_i32 s31, s{sW}, 640",
          f"v_cndmask_b32 v{vA}, v{vPrev}, v{vA}, vcc", "s_add_u32 s23, s23, s31", f"s_add_u32 s23, s23, {YP}")
        a("s_waitcnt lgkmcnt(0)")
        for k in range(16): bf16r(a, GU + k)
        for k in range(8): a(f"v_mul_f32 v{GU+16+k}, 0xbfb8aa3b, v{GU+k}")
        for k in range(8): a(f"v_exp_f32 v{GU+16+k}, v{GU+16+k}")
        for k in range(8): a(f"v_add_f32 v{GU+16+k}, 1.0, v{GU+16+k}")
        for k in range(8): a(f"v_rcp_f32 v{GU+16+k}, v{GU+16+k}")
        for k in range(8): a(f"v_mul_f32 v{GU+k}, v{GU+k}, v{GU+16+k}")
        for k in range(8): bf16r(a, GU + k)
        for k in range(8): a(f"v_mul_f32 v{GU+k}, v{GU+k}, v{GU+8+k}")
        H = GU + 24
        for k in range(4): a(f"v_cvt_pk_bf16_f32 v{H+k}, v{GU+2*k}, v{GU+2*k+1}")
        a("s_nop 1")
        Y = 64
        for cb in range(10): a(f"{MF} {vr(Y+4*cb,4)}, {vr(DF+4*cb,4)}, {vr(H,4)}, 0")
        a("s_nop 7")
        for cb in range(10): a(f"buffer_store_dwordx4 {vr(Y+4*cb,4)}, v{vA}, s[{sWS}:{sWS+3}], s23 offen offset:{cb*64}")

def gen_k2(name):
    return K2(name).gen()
```

```python
from asmlib import *
from gen_k1 import XNF, RKEY, SEL, YP, WOF, KFO, VFO, CTX, WS_BYTES, MF, srd, bf16r, stamp, stampc, stamp_init, stamp_flush

RS = 336
PART = 64 * RS
UPD = 4 * PART
SCR = UPD + PART
LDS = SCR + 4096
NV = 256; ACC = 256

def gen_k3(name):
    a = Asm()
    sW, sMT, sNG, sCnt = 20, 21, 22, 24
    sL, sWS, sX, sO = 32, 36, 40, 44
    sCo, sWo = 48, 52
    sSel = 64
    vL, vL16, vT = 1, 2, 4
    vXo = 12
    vLa = 15
    AC = 20
    R = 100
    a("s_cmp_ge_u32 s2, 256", f"s_cbranch_scc1 {name}_end")
    stamp_init(a)
    a("s_load_dwordx2 s[4:5], s[0:1], 0", "s_load_dwordx2 s[6:7], s[0:1], 88", "s_load_dwordx2 s[16:17], s[0:1], 104")
    a(f"v_lshrrev_b32 v{vT}, 6, v0", f"v_and_b32 v{vL}, 63, v0", f"v_readfirstlane_b32 s{sW}, v{vT}")
    a(f"s_and_b32 s{sMT}, s2, 7", f"s_lshl_b32 s{sMT}, s{sMT}, 2", "s_lshr_b32 s23, s2, 3", "s_and_b32 s23, s23, 3",
      f"s_add_u32 s{sMT}, s{sMT}, s23", f"s_lshr_b32 s{sNG}, s2, 5")
    a(f"v_lshlrev_b32 v{vL16}, 4, v{vL}")
    a(f"s_lshl_b32 s{sCo}, s{sMT}, 19", f"s_lshl_b32 s23, s{sW}, 15", f"s_add_u32 s{sCo}, s{sCo}, s23", f"s_add_u32 s{sCo}, s{sCo}, {CTX}")
    for qb in range(1, 4): a(f"s_add_u32 s{sCo+qb}, s{sCo}, {qb<<17}")
    a(f"s_lshl_b32 s23, s{sNG}, 2", f"s_add_u32 s23, s23, s{sW}", f"s_mul_i32 s{sWo}, s23, {32*5120}", f"s_add_u32 s{sWo}, s{sWo}, {WOF}")
    for k in range(1, 5): a(f"s_add_u32 s{sWo+k}, s{sWo}, {k*4096}")
    a("s_waitcnt lgkmcnt(0)")
    srd(a, sL, "s16", "s17", WS_BYTES)
    srd(a, sWS, "s16", "s17", WS_BYTES)
    srd(a, sX, "s4", "s5", 2048 * 1280)
    srd(a, sO, "s6", "s7", 2048 * 1280)
    a(f"s_add_u32 s18, s16, {SEL}", "s_addc_u32 s19, s17, 0", f"s_load_dwordx16 s[{sSel}:{sSel+15}], s[18:19], 0")
    def wl(ks, cb):
        idx = ks * 5 + cb
        return f"buffer_load_dwordx4 {vr(R+36*ks+4*cb,4)}, v{vL16}, s[{sL}:{sL+3}], s{sWo+idx//4} offen offset:{(idx%4)*1024}"
    def cl(ks, qb):
        return f"buffer_load_dwordx4 {vr(R+36*ks+20+4*qb,4)}, v{vL16}, s[{sL}:{sL+3}], s{sCo+qb} offen offset:{ks*1024}"
    for ks in range(4):
        a([wl(ks, cb) for cb in range(5)], [cl(ks, qb) for qb in range(4)])
    for qb in range(4): a(f"s_add_u32 s{sCo+qb}, s{sCo+qb}, 4096")
    for k in range(5): a(f"s_add_u32 s{sWo+k}, s{sWo+k}, 20480")
    for i in range(4): a(f"v_mov_b32 v{vT+4+i}, 0")
    a(f"v_lshlrev_b32 v{vT}, 4, v0", f"v_add_u32 v{vT}, {UPD}, v{vT}")
    for i in range(5):
        a(f"v_mfma_f32_32x32x16_bf16 {vr(AC+16*i,16)}, {vr(vT+4,4)}, {vr(vT+4,4)}, 0")
    for i in range(6):
        a(f"ds_write_b128 v{vT}, {vr(vT+4,4)} offset:{i*4096}")
    a(f"s_lshl_b32 s25, s{sMT}, 6", f"s_mul_i32 s26, s{sNG}, 160", f"s_mul_i32 s27, s{sNG}, 2560")
    for k in range(3):
        a(f"v_add_u32 v{vT}, {256*k}, v0", f"v_mul_u32_u24 v{vT+1}, 6554, v{vT}", f"v_lshrrev_b32 v{vT+1}, 16, v{vT+1}",
          f"v_mul_u32_u24 v{vT+2}, 10, v{vT+1}", f"v_sub_u32 v{vT+2}, v{vT}, v{vT+2}",
          f"v_mul_u32_u24 v{vLa+k}, {RS}, v{vT+1}", f"v_lshl_add_u32 v{vLa+k}, v{vT+2}, 5, v{vLa+k}",
          f"v_add_u32 v{vT+1}, s25, v{vT+1}",
          f"v_mul_u32_u24 v{vXo+k}, 1280, v{vT+1}", f"v_lshl_add_u32 v{vXo+k}, v{vT+2}, 4, v{vXo+k}", f"v_add_u32 v{vXo+k}, s26, v{vXo+k}",
          f"v_lshrrev_b32 v{vT+3}, 4, v{vT+1}", f"v_mul_u32_u24 v{vT+3}, 20480, v{vT+3}", f"v_and_b32 v{vT+1}, 15, v{vT+1}",
          f"v_lshl_add_u32 v{vT+3}, v{vT+1}, 4, v{vT+3}", f"v_lshl_add_u32 v{244+k}, v{vT+2}, 8, v{vT+3}")
        if k == 2:
            a(f"v_cmp_gt_u32 vcc, 128, v0", f"v_mov_b32 v{vT}, 0x40000000", f"v_mov_b32 v{vT+1}, 0",
              f"v_cndmask_b32 v{vXo+k}, v{vT}, v{vXo+k}, vcc", f"v_cndmask_b32 v{244+k}, v{vT}, v{244+k}, vcc",
              f"v_cndmask_b32 v{vLa+k}, v{vT+1}, v{vLa+k}, vcc")
    a("s_waitcnt lgkmcnt(0)", "s_barrier")
    stamp(a, 1)
    for k in range(2):
        a(f"s_mov_b32 s{28+k}, s{sSel+k}", f"s_mov_b32 s{30+k}, s{sSel+8+k}")
        for w in range(1, 4):
            a(f"s_cmp_eq_u32 s{sW}, {w}", f"s_cselect_b32 s{28+k}, s{sSel+2*w+k}, s{28+k}", f"s_cselect_b32 s{30+k}, s{sSel+8+2*w+k}, s{30+k}")
    for k in range(2):
        a(f"s_sub_u32 s{28+k}, s{28+k}, 1", f"s_and_b32 s{30+k}, s{30+k}, 0xffff0000")
    for k in range(2):
        a(f"s_sub_u32 s23, s{28+k}, s25", "s_cmp_ge_u32 s23, 64", f"s_cbranch_scc1 {name}_nosel{k}")
        a(f"v_mul_u32_u24 v{vT}, 3277, v{vL}", f"v_lshrrev_b32 v{vT}, 16, v{vT}", f"v_mul_u32_u24 v{vT+1}, 20, v{vT}",
          f"v_sub_u32 v{vT+1}, v{vL}, v{vT+1}", f"v_lshlrev_b32 v{vT+1}, 4, v{vT+1}",
          f"v_mul_u32_u24 v{vT+2}, {18*20480}, v{vT}", f"v_add_u32 v{vT+2}, v{vT+2}, v{vT+1}",
          f"v_cmp_gt_u32 vcc, 3, v{vT}", f"v_mov_b32 v{vT+3}, 0x40000000", f"s_lshl_b32 s58, s{sW}, 1",
          f"v_cndmask_b32 v{vT+2}, v{vT+3}, v{vT+2}, vcc",
          f"s_add_u32 s58, s58, {k}", "s_mul_i32 s58, s58, 2560", f"s_mul_i32 s59, s{sNG}, 320", "s_add_u32 s58, s58, s59", f"s_add_u32 s58, s58, {YP}",
          "s_mov_b32 s59, 9")
        for i in range(4): a(f"v_mov_b32 v{vT+4+i}, 0")
        a.label(f"{name}_yl{k}")
        a(f"buffer_load_dwordx4 v[248:251], v{vT+2}, s[{sWS}:{sWS+3}], s58 offen", "s_add_u32 s58, s58, 20480",
          f"buffer_load_dwordx4 v[252:255], v{vT+2}, s[{sWS}:{sWS+3}], s58 offen", "s_add_u32 s58, s58, 20480",
          "s_waitcnt vmcnt(0)")
        for i in range(4): a(f"v_add_f32 v{vT+4+i}, v{vT+4+i}, v{248+i}")
        for i in range(4): a(f"v_add_f32 v{vT+4+i}, v{vT+4+i}, v{252+i}")
        a("s_sub_u32 s59, s59, 1", "s_cmp_lg_u32 s59, 0", f"s_cbranch_scc1 {name}_yl{k}")
        a(f"s_lshl_b32 s58, s{sW}, 10", f"s_add_u32 s58, s58, {SCR}", f"v_add_u32 v{vT+3}, s58, v{vL16}",
          f"ds_write_b128 v{vT+3}, {vr(vT+4,4)}", f"v_add_u32 v{vT+3}, s58, v{vT+1}", "s_waitcnt lgkmcnt(0)",
          f"ds_read_b128 {vr(vT+4,4)}, v{vT+3}", f"ds_read_b128 v[248:251], v{vT+3} offset:320", f"ds_read_b128 v[252:255], v{vT+3} offset:640",
          f"s_mul_i32 s23, s23, {RS}", f"s_add_u32 s23, s23, {UPD}", f"v_add_u32 v{vT+3}, s23, v{vT+1}", "s_waitcnt lgkmcnt(0)")
        for i in range(4):
            a(f"v_add_f32 v{vT+4+i}, v{vT+4+i}, v{248+i}", f"v_add_f32 v{vT+4+i}, v{vT+4+i}, v{252+i}")
            bf16r(a, vT + 4 + i)
            a(f"v_mul_f32 v{vT+4+i}, s{30+k}, v{vT+4+i}")
            bf16r(a, vT + 4 + i)
        a(f"ds_write_b128 v{vT+3}, {vr(vT+4,4)}")
        a("s_waitcnt lgkmcnt(0)")
        a.label(f"{name}_nosel{k}")
    stamp(a, 2)
    a(f"s_mov_b32 s{sCnt}, 0", "s_waitcnt vmcnt(27)")
    stamp(a, 3)
    stampc(a, 12)
    a(".p2align 6")
    a.label(f"{name}_loop")
    for ks in range(4):
        mf = [f"{MF} {vr(AC+(cb*4+qb)*4,4)}, {vr(R+36*ks+4*cb,4)}, {vr(R+36*ks+20+4*qb,4)}, {vr(AC+(cb*4+qb)*4,4)}" for cb in range(5) for qb in range(4)]
        sc = {g: [] for g in range(20)}; mem = {g: [] for g in range(20)}; va = {g: [] for g in range(20)}
        for cb in range(5): mem[4*cb+3].append(wl(ks, cb))
        for qb in range(4): mem[16+qb].append(cl(ks, qb))
        va[19].append("s_waitcnt vmcnt(27)")
        if ks == 3:
            for k in range(4): sc[4+k].append(f"s_add_u32 s{sWo+k}, s{sWo+k}, 20480")
            sc[8].append(f"s_add_u32 s{sCnt}, s{sCnt}, 1")
            va[19] = [f"s_add_u32 s{sCo+qb}, s{sCo+qb}, 4096" for qb in range(4)] + [f"s_add_u32 s{sWo+4}, s{sWo+4}, 20480",
                      f"s_cmp_ge_u32 s{sCnt}, 7", f"s_cselect_b32 s{sL+2}, 0, s{sL+2}", f"s_cmp_lt_u32 s{sCnt}, 8", "s_waitcnt vmcnt(27)", f"s_cbranch_scc1 {name}_loop"]
        a(weave(mf, sc, mem, va))
    XV = R
    a("s_waitcnt vmcnt(0)")
    stamp(a, 4)
    stampc(a, 13)
    for k in range(3):
        a(f"buffer_load_dwordx4 {vr(XV+4*k,4)}, v{vXo+k}, s[{sX}:{sX+3}], 0 offen",
          f"buffer_load_dwordx4 {vr(XV+12+4*k,4)}, v{244+k}, s[{sWS}:{sWS+3}], s27 offen")
    a(f"v_and_b32 v{vT}, 15, v{vL}", f"v_mul_u32_u24 v{vT}, {RS}, v{vT}", f"v_lshrrev_b32 v{vT+1}, 4, v{vL}",
      f"v_lshl_add_u32 v{vT}, v{vT+1}, 4, v{vT}", f"s_mul_i32 s23, s{sW}, {PART}", f"v_add_u32 v{vT}, s23, v{vT}")
    for cb in range(5):
        for qb in range(4):
            a(f"ds_write_b128 v{vT}, {vr(AC+(cb*4+qb)*4,4)} offset:{qb*16*RS+cb*64}")
    a("s_waitcnt lgkmcnt(0)", "s_barrier")
    stamp(a, 5)
    PV = 128
    for k in range(3):
        a(f"v_add_u32 v{vT+k}, {3*PART}, v{vLa+k}")
    for k in range(3):
        for p in range(5):
            base = vLa + k if p < 3 else vT + k
            off = p * PART if p < 3 else (p - 3) * PART
            for hh in range(2):
                a(f"ds_read_b128 {vr(PV+40*k+8*p+4*hh,4)}, v{base} offset:{off+16*hh}")
    for k in range(3):
        a(f"s_waitcnt vmcnt({4-2*k + k}) lgkmcnt({min(15, 20-10*k)})" if k < 2 else "s_waitcnt vmcnt(2) lgkmcnt(0)")
        if k == 0: a("s_waitcnt lgkmcnt(10)")
        b = PV + 40 * k
        for e in range(8):
            a(f"v_add_f32 v{b+e}, v{b+e}, v{b+8+e}", f"v_add_f32 v{b+16+e}, v{b+16+e}, v{b+24+e}")
        for e in range(8): a(f"v_add_f32 v{b+e}, v{b+e}, v{b+16+e}")
        for e in range(4):
            x = XV + 4 * k + e; xn = XV + 12 + 4 * k + e
            t0, t1, t2, t3 = b + 8, b + 9, b + 10, b + 11
            a(f"v_cvt_pk_bf16_f32 v{t0}, v{b+2*e}, v{b+2*e+1}",
              f"v_lshlrev_b32 v{t2}, 16, v{x}", f"v_and_b32 v{t3}, 0xffff0000, v{x}",
              f"v_and_b32 v{t1}, 0xffff0000, v{t0}", f"v_lshlrev_b32 v{t0}, 16, v{t0}",
              f"v_add_f32 v{t0}, v{t0}, v{t2}", f"v_add_f32 v{t1}, v{t1}, v{t3}",
              f"v_cvt_pk_bf16_f32 v{t0}, v{t0}, v{t1}",
              f"v_lshlrev_b32 v{t2}, 16, v{xn}", f"v_and_b32 v{t3}, 0xffff0000, v{xn}",
              f"v_add_f32 v{t2}, v{t2}, v{b+32+2*e}", f"v_add_f32 v{t3}, v{t3}, v{b+32+2*e+1}",
              f"v_cvt_pk_bf16_f32 v{t2}, v{t2}, v{t3}",
              f"v_and_b32 v{t1}, 0xffff0000, v{t0}", f"v_lshlrev_b32 v{t0}, 16, v{t0}",
              f"v_and_b32 v{t3}, 0xffff0000, v{t2}", f"v_lshlrev_b32 v{t2}, 16, v{t2}",
              f"v_add_f32 v{t0}, v{t0}, v{t2}", f"v_add_f32 v{t1}, v{t1}, v{t3}",
              f"v_cvt_pk_bf16_f32 v{b+12+e}, v{t0}, v{t1}")
        a(f"buffer_store_dwordx4 {vr(b+12,4)}, v{vXo+k}, s[{sO}:{sO+3}], 0 offen")
    stamp_flush(a, 2, sW, sWS)
    a.label(f"{name}_end")
    a("s_endpgm")
    return a
```

```python
import sys, os
from asmlib import *
import gen_k1

PFX = "parallel_sum__compressed_kv_cla__moe_arch_mod__prompt"
def main(out):
    ks = []
    mode = os.environ.get("MODE", "f1")
    if mode in ("f2", "f1"):
        import gen_f, gen_k3
        ks.append(("fa_kernel", gen_f.Fused("fa").gen(with_p4=(mode == "f1")), 256, 256, gen_f.LDS, 512, 256))
        if mode == "f2": ks.append(("k3_kernel", gen_k3.gen_k3("k3"), 256, 256, gen_k3.LDS, gen_k3.NV, gen_k3.ACC))
        return finish(ks, out)
    ks.append(("k1_kernel", gen_k1.gen_k1("k1"), 256, 256, 151552, 512, 256))
    try:
        import gen_k2
        ks.append(("k2_kernel", gen_k2.gen_k2("k2"), 256, 256, gen_k2.LDS, 512, 256))
    except ImportError: pass
    try:
        import gen_k3
        ks.append(("k3_kernel", gen_k3.gen_k3("k3"), 256, 256, gen_k3.LDS, gen_k3.NV, gen_k3.ACC))
    except ImportError: pass
    return finish(ks, out)

def finish(ks, out):
    ref = open(f"/code/{PFX}.s.ref").read().split("\n")
    hdr = [l for l in ref if l.startswith(";") and "@launch" not in l and "Override launch" not in l and "Harness parses" not in l]
    txt = "\n".join(hdr) + "\n"
    for (n, a, g, b, lds, nv, acc) in ks:
        txt += f"; @launch kernel={n} grid=({g},1,1) block=({b},1,1) lds={lds}\n"
    txt += '.amdgcn_target "amdgcn-amd-amdhsa--gfx950"\n.text\n'
    nerr = 0
    for (n, a, g, b, lds, nv, acc) in ks:
        errs = check_hazards(a.lines, n)
        for e in errs: print("HAZARD", e)
        nerr += len(errs)
        txt += kernel_text(n, a.text())
        txt += desc_text(n, nv, acc)
    open(out, "w").write(txt)
    print("hazards:", nerr)

if __name__ == "__main__":
    main(sys.argv[1] if len(sys.argv) > 1 else f"/code/{PFX}.s")
```

```python
import os
from asmlib import *
from gen_k1 import (XNF, RKEY, SEL, YP, WOF, KFO, VFO, CTX, WS_BYTES, MF, srd, bf16r, allreduce32_add,
                    stamp, stampc, stampv, stamp_init, stamp_flush, DBG)
import gen_k2 as k2
from gen_k2 import (vL, vL16, vKV, vNI, vX, vT, Q, S, P, NM, E, TS, LS, QACC, O, KF, VF, XR,
                    sW, sH, sI, sWS, sK, sV, sKm, sVm, sKo, sVo, sCnt, sNSS, sXo, sMask, sRet, sRet2, sThr,
                    xreduce, mask_ops)

LDS = 163840
FLG = 0x284000
KVF = FLG
CF = FLG + 0x1000
YF = FLG + 0x3000
WF = FLG + 0x4000
SC = " sc1"
BIG = 0x40000000
SPARE = 131072
XS = SPARE + 20480
EX = SPARE + 30720
UPD = LDS - 8192
SCR = LDS - 4096
TOPWG = 255
FFN0, FFN1 = 170, 224
SPIN_MAX = 200000
sDb = 56
sCFA, sCFB, sKVa = 80, 3, 82
vWo, vWa, vCa = 8, 12, 14
vPoll, vZero, vPo = 15, 229, 8
vCo = 3

class VM:
    def __init__(self): self.ops = []
    def issue(self, tag, n=1): self.ops += [tag] * n
    def need(self, *tags):
        last = max(i for i, t in enumerate(self.ops) if t in tags)
        return min(63, len(self.ops) - 1 - last)

class Fused(k2.K2):
    SC = SC
    U = 8
    FV = [8, 11, 12, 13, 14]
    KY = 3
    def poll_check(self, a, tag, vreg, voff, srdn, cmp_lines, soff="0"):
        n = self.name
        a(cmp_lines, f"s_cbranch_vccnz {n}_{tag}_spin")
        a.label(f"{n}_{tag}_ok")
        t = Asm()
        t.label(f"{n}_{tag}_spin")
        t(f"s_mov_b32 s83, {SPIN_MAX}")
        t.label(f"{n}_{tag}_spin2")
        t(f"buffer_load_dword v{vreg}, v{voff}, s[{srdn}:{srdn+3}], {soff} offen{SC}", "s_waitcnt vmcnt(0)")
        t(cmp_lines, f"s_cbranch_vccz {n}_{tag}_ok", "s_sleep 8", "s_sub_u32 s83, s83, 1", "s_cmp_lg_u32 s83, 0",
          f"s_cbranch_scc1 {n}_{tag}_spin2", f"s_branch {n}_{tag}_ok")
        self.tail += t.lines

    def phase1(self):
        a = self.a; name = self.name
        sC, sWt, sX, sQ2, sWO, sWR = 32, 36, 44, 48, 52, 68
        sM0C, sStep, sOC, sOW, sIT = 24, 25, 26, 27, 28
        FA = 32; FB = 96
        a("s_cmp_ge_u32 s2, 256", f"s_cbranch_scc1 {name}_end")
        if os.environ.get("CT0", "1") == "1":
            a("s_getpc_b64 s[62:63]", "v_and_b32 v230, 127, v0", "v_lshlrev_b32 v230, 7, v230", "global_load_dword v231, v230, s[62:63]")
        stamp_init(a)
        a("s_load_dwordx4 s[4:7], s[0:1], 0", "s_load_dwordx4 s[8:11], s[0:1], 24", "s_load_dwordx2 s[14:15], s[0:1], 56",
          "s_load_dwordx2 s[12:13], s[0:1], 40", "s_load_dwordx4 s[16:19], s[0:1], 96", "s_load_dwordx2 s[60:61], s[0:1], 16")
        a(f"v_lshrrev_b32 v{vT}, 6, v0", f"v_and_b32 v{vL}, 63, v0", f"v_readfirstlane_b32 s{sW}, v{vT}")
        a(f"s_and_b32 s{sH}, s2, 7", f"s_lshl_b32 s{sH}, s{sH}, 2", "s_lshr_b32 s23, s2, 3", "s_and_b32 s23, s23, 3",
          f"s_add_u32 s{sH}, s{sH}, s23", f"s_lshr_b32 s{sI}, s2, 5")
        XV = 160; WR = 172; F = 184
        vU, vRow, vXo, vXo3, vWro = 208, 209, 210, 211, 212
        vS, vT2, vMean, vAcc = 213, 214, 216, 218
        vTW, vTR, vKo, vO1, vO3, vFl = 220, 221, 222, 223, 224, 225
        vTQ = 235; sM16 = 64
        LNPRE = os.environ.get("LNPRE", "1") == "1"
        lnaddr = [f"v_and_b32 v{vU}, 31, v{vL}", f"v_lshrrev_b32 v{vRow}, 5, v{vL}",
          "s_lshl_b32 s31, s2, 2", f"s_add_u32 s31, s31, s{sW}", "s_lshl_b32 s31, s31, 1", f"v_add_u32 v{vRow}, s31, v{vRow}",
          f"v_lshlrev_b32 v{vWro}, 4, v{vU}", f"v_mul_u32_u24 v{vXo}, 1280, v{vRow}", f"v_add_u32 v{vXo}, v{vXo}, v{vWro}",
          f"v_cmp_gt_u32 s[{sM16}:{sM16+1}], 16, v{vU}", f"v_mov_b32 v{vT+3}, {BIG}", f"v_and_b32 v{vTW}, 7, v{vRow}",
          f"v_cndmask_b32 v{vXo3}, v{vT+3}, v{vXo}, s[{sM16}:{sM16+1}]"]
        xloads = [f"buffer_load_dwordx4 {vr(XV,4)}, v{vXo}, s[{sX}:{sX+3}], 0 offen",
          f"buffer_load_dwordx4 {vr(XV+4,4)}, v{vXo}, s[{sX}:{sX+3}], 0 offen offset:512",
          f"buffer_load_dwordx4 {vr(XV+8,4)}, v{vXo3}, s[{sX}:{sX+3}], 0 offen offset:1024"]
        xloads += [f"buffer_load_dwordx4 {vr(WR+4*i,4)}, v{vWro}, s[{sWR}:{sWR+3}], 0 offen offset:{512*i}" for i in range(3)]
        if LNPRE: a(lnaddr)
        a(f"v_bfe_u32 v{vT+1}, v{vL}, 1, 3", f"v_lshlrev_b32 v{vT+1}, 13, v{vT+1}", f"v_and_b32 v{vT+2}, 1, v{vL}",
          f"v_lshl_add_u32 v{vTQ}, v{vT+2}, 7, v{vT+1}", f"s_lshl_b32 s74, s{sI}, 1", f"s_and_b32 s31, s{sW}, 1", "s_add_u32 s74, s74, s31",
          "s_lshl_b32 s74, s74, 16", f"s_mov_b32 s73, {128*8192}", f"v_and_b32 v{vT}, 15, v{vL}",
          f"v_lshlrev_b32 v{vT+1}, 10, v{vT}", f"v_and_b32 v{vT+2}, 16, v{vL}", f"v_lshl_add_u32 v233, v{vT+2}, 3, v{vT+1}",
          "s_lshl_b32 s30, s23, 2", f"s_add_u32 s30, s30, s{sW}", "s_lshl_b32 s30, s30, 14", f"s_lshl_b32 s29, s{sI}, 18", f"s_lshl_b32 s23, s{sH}, 8",
          f"s_cmp_ge_u32 s{sW}, 2", "s_waitcnt lgkmcnt(0)")
        if LNPRE:
            srd(a, sX, "s4", "s5", 2048*1280)
            srd(a, sWR, "s14", "s15", 1280)
            a(xloads)
        a("s_cselect_b32 s62, s10, s8", "s_cselect_b32 s63, s11, s9", "s_add_u32 s62, s62, s23", "s_addc_u32 s63, s63, 0")
        srd(a, sWt, "s62", "s63", 0)
        a(f"s_sub_u32 s{sWt+2}, {512*8192}, s23", f"buffer_load_dword v231, v{vTQ}, s[{sWt}:{sWt+3}], s74 offen",
          "s_add_u32 s6, s6, s29", "s_addc_u32 s7, s7, 0")
        srd(a, sC, "s6", "s7", 262144)
        a(f"buffer_load_dword v232, v233, s[{sC}:{sC+3}], s30 offen", "s_add_u32 s74, s74, s73")
        T01 = os.environ.get("T01", "1") == "1"
        t1 = [f"buffer_load_dword v231, v{vTQ}, s[{sWt}:{sWt+3}], s74 offen", f"buffer_load_dword v232, v233, s[{sC}:{sC+3}], s30 offen offset:256"]
        if T01: a(t1)
        a("s_getpc_b64 s[8:9]", f"{name}_pc:", "s_lshr_b32 s31, s2, 3", "s_and_b32 s31, s31, 15", "s_lshl_b32 s31, s31, 2",
          f"s_add_u32 s31, s31, s{sW}", "s_lshl_b32 s31, s31, 11", f"s_min_u32 s31, s31, {name}_codeend-{name}_pc-2048",
          f"v_lshlrev_b32 v234, 7, v{vT}", "v_add_u32 v230, s31, v234", "global_load_dword v231, v230, s[8:9]",
          f"s_add_u32 s8, s8, {name}_co1-{name}_pc-4", "s_addc_u32 s9, s9, 0")
        a("s_add_u32 s60, s60, s23", "s_addc_u32 s61, s61, 0", f"s_sub_u32 s75, {640*8192}, s23")
        srd(a, sQ2, "s62", "s63", f"s{sWt+2}")
        a(f"v_lshlrev_b32 v{vL16}, 4, v{vL}",
          f"v_lshrrev_b32 v{vT+3}, 2, v{vL}", f"v_lshrrev_b32 v{vT+1}, 5, v{vL}", f"v_mul_u32_u24 v{vT+1}, 3, v{vT+1}",
          f"v_and_b32 v{vT+2}, 3, v{vL}", f"v_xor_b32 v{vT+1}, v{vT+1}, v{vT+2}", f"v_lshlrev_b32 v{vT+1}, 4, v{vT+1}",
          f"v_lshl_add_u32 v{vCo}, v{vT+3}, 10, v{vT+1}", f"s_lshl_b32 s23, s{sW}, 16", f"v_add_u32 v{vCo}, s23, v{vCo}")
        for j in range(1, 4): a(f"v_add_u32 v{vCo+j}, {j*(16384-1024)}, v{vCo}")
        a(f"v_and_b32 v{vT+3}, 3, v{vT+3}", f"v_lshrrev_b32 v{vT+1}, 4, v{vL}", f"v_lshlrev_b32 v{vT+1}, 6, v{vT+1}",
          f"v_lshl_add_u32 v{vT+3}, v{vT+3}, 13, v{vT+1}", f"s_and_b32 s23, s{sW}, 1", "s_lshl_b32 s23, s23, 17",
          f"v_add_u32 v{vT+3}, s23, v{vT+3}", f"v_lshl_add_u32 v{vWo}, v{vT+2}, 4, v{vT+3}", f"v_xor_b32 v{vT+2}, 2, v{vT+2}",
          f"v_lshl_add_u32 v{vWo+2}, v{vT+2}, 4, v{vT+3}", f"v_add_u32 v{vWo+1}, {32768-1024}, v{vWo}",
          f"v_add_u32 v{vWo+3}, {3*(32768-1024)}, v{vWo+2}", f"v_add_u32 v{vWo+2}, {2*(32768-1024)}, v{vWo+2}")
        a(f"s_lshl_b32 s{sM0C}, s{sW}, 12", f"s_mov_b32 s{sOC}, 0", f"s_mov_b32 s{sOW}, 0", f"s_mov_b32 s{sStep}, {32*8192}", "s_mov_b32 s79, 64")
        def dma_lines():
            preC = [f"s_mov_b32 m0, s{sM0C}"]
            lc = [f"buffer_load_dwordx4 v{vCo+j}, s[{sC}:{sC+3}], s{sOC} offen offset:{j*1024}{SC} lds" for j in range(4)]
            preW = [f"s_add_u32 m0, s{sM0C}, 16384"]
            lw = [f"buffer_load_dwordx4 v{vWo+j}, s[{sWt}:{sWt+3}], s{sOW} offen offset:{j*1024} lds" for j in range(4)]
            post = [f"s_add_u32 s{sOC}, s{sOC}, s79", f"s_add_u32 s{sOW}, s{sOW}, s{sStep}",
                    f"s_add_u32 s{sM0C}, s{sM0C}, 32768", f"s_and_b32 s{sM0C}, s{sM0C}, 0x1ffff"]
            return preC, lc, preW, lw, post
        def dma_stage():
            preC, lc, preW, lw, post = dma_lines()
            a(preC, "s_nop 0", lc, preW, "s_nop 0", lw, post)
        if not LNPRE: dma_stage()
        stamp(a, 1)
        srd(a, sWS, "s18", "s19", WS_BYTES)
        srd(a, sWO, "s12", "s13", 4096*1280)
        srd(a, sDb, "s16", "s17", 256)
        if not LNPRE:
            srd(a, sX, "s4", "s5", 2048*1280)
            srd(a, sWR, "s14", "s15", 1280)
        a("s_and_b32 s29, s2, 31", "s_lshl_b32 s29, s29, 2", f"s_add_u32 s29, s29, s{sW}", "s_lshl_b32 s29, s29, 11")
        a(f"s_lshl_b32 s23, s{sW}, 5", f"s_add_u32 s23, s23, s{sH}", "s_lshl_b32 s23, s23, 2", f"s_add_u32 s23, s23, {CF}",
          f"s_lshl_b32 s31, s{sI}, 9", f"s_add_u32 s{sCFA}, s23, s31", f"s_sub_u32 s31, {15*512}, s31", f"s_add_u32 s{sCFB}, s23, s31",
          f"s_lshl_b32 s23, s{sH}, 7", f"s_lshl_b32 s31, s{sI}, 2", "s_add_u32 s23, s23, s31", f"s_add_u32 s{sKVa}, s23, {KVF}",
          self.yf_addr(62), f"s_sub_u32 s23, s2, {FFN0}", f"s_cmp_lt_u32 s23, {FFN1-FFN0}", f"s_cselect_b32 s62, s62, {BIG}",
          f"s_cmp_eq_u32 s{sW}, 0", f"s_cselect_b32 s31, s{sKVa}, {BIG}", f"s_cselect_b32 s77, s2, {BIG}",
          f"s_cmp_eq_u32 s2, {TOPWG}", f"s_cselect_b32 s23, {SEL}, {BIG}",
          f"v_lshl_add_u32 v{vFl}, v{vT}, 2, s23", f"v_mov_b32 v{vZero}, 0",
          f"v_writelane_b32 v{vFl}, s{sCFA}, 0", f"v_writelane_b32 v{vFl}, s{sCFB}, 1", f"v_writelane_b32 v{vFl}, s31, 2",
          self.wf_addr(23), f"v_writelane_b32 v{vFl}, s23, 3", f"v_writelane_b32 v{vFl}, s62, 4")
        if LNPRE:
            a(f"s_and_b32 s23, s{sH}, 3", "s_lshr_b32 s31, s23, 1", "s_lshl_b32 s31, 4, s31", "s_bitcmp1_b32 s23, 0",
              "s_cselect_b32 s76, s31, 0", "s_cselect_b32 s72, 0, s31", "s_or_b32 s76, s76, 0x20", "s_or_b32 s72, s72, 0x25")
        else:
            a(f"s_and_b32 s23, s{sH}, 3", "s_cmp_eq_u32 s23, 2", "s_cselect_b32 s76, 0x2a, 0x22", "s_cselect_b32 s72, 0x27, 0x2f",
              "s_cmp_eq_u32 s23, 3", "s_cselect_b32 s72, 0x37, s72")
        for i in range(4): a(f"v_mov_b32 v{vT+4+i}, 0")
        a(f"v_lshrrev_b32 v{vT+1}, 4, v{vL}", f"v_lshrrev_b32 v{vT+2}, 3, v{vT}",
          f"v_mul_u32_u24 v{vT+2}, 3, v{vT+2}", f"v_xor_b32 v{vT+2}, v{vT+2}, v{vT+1}", f"v_lshlrev_b32 v{vT+2}, 4, v{vT+2}",
          f"v_lshl_add_u32 v{vCa}, v{vT}, 6, v{vT+2}", f"s_and_b32 s23, s{sW}, 1", "s_lshl_b32 s23, s23, 13", f"v_add_u32 v{vCa}, s23, v{vCa}")
        rest = Asm()
        rest(f"v_lshrrev_b32 v{vT+2}, 2, v{vT}", f"v_lshlrev_b32 v{vT+2}, 6, v{vT+2}", f"v_lshl_add_u32 v{vT+2}, v{vT+1}, 11, v{vT+2}",
          f"v_and_b32 v{vT+3}, 1, v{vL}", f"v_lshl_add_u32 v{vT+2}, v{vT+3}, 3, v{vT+2}", f"v_bfe_u32 v{vT+3}, v{vL}, 1, 1",
          f"v_and_b32 v{vT+1}, 1, v{vT+1}", f"v_lshl_or_b32 v{vT+3}, v{vT+1}, 1, v{vT+3}",
          f"s_lshr_b32 s23, s{sW}, 1", "s_lshl_b32 s23, s23, 13", "s_add_u32 s23, s23, 16384", f"v_add_u32 v{vT+2}, s23, v{vT+2}",
          f"v_lshl_add_u32 v{vWa}, v{vT+3}, 4, v{vT+2}", f"v_xor_b32 v{vWa+1}, 32, v{vWa}")
        TR = SPARE
        rest([f"v_mov_b32 v{vT+3}, {BIG}"] if LNPRE else lnaddr,
          f"v_lshlrev_b32 v{vTW}, 4, v{vTW}", f"v_lshl_add_u32 v{vTW}, v{vU}, 7, v{vTW}", f"v_add_u32 v{vTW}, {TR}, v{vTW}",
          f"v_lshlrev_b32 v{vKo}, 2, v{vRow}", f"v_cmp_eq_u32 vcc, 0, v{vU}", f"v_add_u32 v{vKo}, {RKEY}, v{vKo}",
          f"v_lshlrev_b32 v{vTR}, 4, v0", f"v_cndmask_b32 v{vKo}, v{vT+3}, v{vKo}, vcc", f"v_add_u32 v{vTR}, {TR}, v{vTR}",
          f"v_sub_u32 v{vRow}, 0xffff, v{vRow}",
          f"v_lshrrev_b32 v{vO1}, 3, v0", f"v_and_b32 v{vT+2}, 7, v0", f"v_lshlrev_b32 v{vT+2}, 4, v{vT+2}",
          f"v_cmp_gt_u32 vcc, 128, v0", f"v_lshl_add_u32 v{vO1}, v{vO1}, 8, v{vT+2}",
          "s_lshr_b32 s66, s2, 1", "s_mul_i32 s66, s66, 20480", "s_and_b32 s31, s2, 1", "s_lshl_b32 s31, s31, 7", "s_add_u32 s66, s66, s31",
          f"v_cndmask_b32 v{vO3}, v{vT+3}, v{vO1}, vcc", "s_add_u32 s67, s66, 8192", "s_add_u32 s78, s66, 16384", f"s_mov_b32 s{sIT}, 0")
        rl = rest.lines
        for i in range(16):
            a(f"v_mfma_f32_32x32x16_bf16 {ar(16*i,16)}, {vr(vT+4,4)}, {vr(vT+4,4)}, 0", rl[4*i:4*i+4])
        assert len(rl) <= 64
        def ln_compute(t):
            pk = lambda op, d, x, y, extra="": f"{op} {vr(d,2)}, {vr(x,2)}, {vr(y,2)}{extra}"
            for i in range(12):
                t(f"v_lshlrev_b32 v{F+2*i}, 16, v{XV+i}", f"v_and_b32 v{F+2*i+1}, 0xffff0000, v{XV+i}")
            t(pk("v_pk_add_f32", vT, F, F + 2), pk("v_pk_add_f32", vT + 2, F + 4, F + 6))
            for i in range(8, 24, 4): t(pk("v_pk_add_f32", vT, vT, F + i), pk("v_pk_add_f32", vT + 2, vT + 2, F + i + 2))
            t(pk("v_pk_add_f32", vT, vT, vT + 2), f"v_add_f32 v{vS}, v{vT}, v{vT+1}")
            allreduce32_add(t, vS, vT2)
            t(f"v_mul_f32 v{vMean}, 0xbacccccd, v{vS}", f"v_mul_f32 v{vMean+1}, 0xbacccccd, v{vS}")
            for i in range(12):
                d = vT + 4 + 2 * (i % 4); acc = vT if i < 8 else vT + 2
                t(pk("v_pk_add_f32", d, F + 2 * i, vMean))
                if i in (0, 8): t(pk("v_pk_mul_f32", acc, d, d))
                else: t(f"v_pk_fma_f32 {vr(acc,2)}, {vr(d,2)}, {vr(d,2)}, {vr(acc,2)}")
            t(f"v_add_f32 v{vT+2}, v{vT+2}, v{vT+3}", f"v_add_f32 v{vS}, v{vT}, v{vT+1}", f"v_cndmask_b32 v{vT+2}, 0, v{vT+2}, s[{sM16}:{sM16+1}]",
              f"v_add_f32 v{vS}, v{vS}, v{vT+2}")
            allreduce32_add(t, vS, vT2)
            t(f"v_mul_f32 v{vS}, 0x3acccccd, v{vS}")
            bf16r(t, vS)
            t(f"v_add_f32 v{vS}, 0x3727c5ac, v{vS}")
            bf16r(t, vS)
            t(f"v_sqrt_f32 v{vS}, v{vS}")
            bf16r(t, vMean)
            bf16r(t, vS)
            t(f"v_rcp_f32 v{vT+12}, v{vS}", f"v_mov_b32 v{vMean+1}, v{vMean}", f"v_mov_b32 v{vT+13}, v{vT+12}")
            for i in range(12):
                f0 = F + 2 * i; w0 = vT + 2 * (i % 2)
                t(pk("v_pk_add_f32", f0, f0, vMean), f"v_lshlrev_b32 v{w0}, 16, v{WR+i}", f"v_cvt_pk_bf16_f32 v{f0+1}, v{f0}, v{f0+1}",
                  f"v_and_b32 v{w0+1}, 0xffff0000, v{WR+i}", f"v_lshlrev_b32 v{f0}, 16, v{f0+1}", f"v_and_b32 v{f0+1}, 0xffff0000, v{f0+1}",
                  pk("v_pk_mul_f32", f0, f0, vT + 12), f"v_cvt_pk_bf16_f32 v{XV+i}, v{f0}, v{f0+1}",
                  f"v_lshlrev_b32 v{f0}, 16, v{XV+i}", f"v_and_b32 v{f0+1}, 0xffff0000, v{XV+i}")
                if i == 0: t(pk("v_pk_mul_f32", vAcc, f0, w0))
                else: t(f"v_pk_fma_f32 {vr(vAcc,2)}, {vr(f0,2)}, {vr(w0,2)}, {vr(vAcc,2)}")
                if i % 4 == 3: t(f"ds_write_b128 v{vTW}, {vr(XV+i-3,4)} offset:{(i//4)*4096}")
            t(f"v_add_f32 v{vAcc}, v{vAcc}, v{vAcc+1}")
            allreduce32_add(t, vAcc, vT2)
            bf16r(t, vAcc)
            t(f"v_ashrrev_i32 v{vT2}, 31, v{vAcc}", f"v_or_b32 v{vT2}, 0x80000000, v{vT2}", f"v_xor_b32 v{vAcc}, v{vAcc}, v{vT2}",
              f"v_and_b32 v{vAcc}, 0xffff0000, v{vAcc}", f"v_or_b32 v{vAcc}, v{vAcc}, v{vRow}")
        stamp(a, 2)
        if LNPRE:
            a(f"s_waitcnt vmcnt({5 if T01 else 3})")
            ln_compute(a)
            a(stampv(9))
            a(f"v_mov_b32 v{vT+3}, {BIG}")
            dma_stage()
        dma_stage(); dma_stage()
        a(f"buffer_load_dword v231, v{vT+3}, s[{sC}:{sC+3}], 0 offen")
        dma_stage()
        n1 = 0
        if not T01: a(t1); n1 = 2
        stamp(a, 3)
        a(f"s_waitcnt vmcnt({25+n1}) lgkmcnt(0)", "s_barrier")
        stampc(a, 12)
        a(f"s_cmp_ge_u32 s{sW}, 2", f"s_cbranch_scc1 {name}_roleV")
        def reads(role, buf, off):
            CFr = (FB if role == "K" else FA) + 32 * buf
            WF = (FA if role == "K" else FB) + 32 * buf
            rc = [f"ds_read_b128 {vr(CFr+4*i,4)}, v{vCa} offset:{off + i*1024}" for i in range(8)]
            rw = [f"ds_read_b64_tr_b16 {vr(WF+4*cb+2*t,2)}, v{vWa+(cb&1)} offset:{off + t*1024 + (cb>>1)*256}" for cb in range(8) for t in range(2)]
            return rc, rw
        for role in ("K", "V"):
            if role == "V": a.label(f"{name}_roleV")
            rc, rw = reads(role, 0, 0)
            a(rc, rw, "s_waitcnt lgkmcnt(0)")
            a(".p2align 6")
            a.label(f"{name}_loop{role}")
            if DBG: a(f"s_mov_b32 m0, s{sIT}", stampv("m0"))
            for half in range(2):
                mf = [f"{MF} {ar((i*8+j)*4,4)}, {vr(FA+32*half+4*i,4)}, {vr(FB+32*half+4*j,4)}, {ar((i*8+j)*4,4)}" for i in range(8) for j in range(8)]
                sc = {}; mem = {}; va = {}
                sc[0] = [f"s_waitcnt vmcnt({17 if half == 0 else 18})"]; sc[1] = ["s_barrier"]
                rc, rw = reads(role, 1 - half, 32768 if half == 0 else 0)
                preC, lc, preW, lw, post = dma_lines()
                ds = []
                for i in range(8): ds += [rw[2*i], rw[2*i+1], rc[i]]
                for i, x in enumerate(ds): mem[2 + 2*i] = [x]
                st_ = 2 if half == 0 else 6
                sc[4] = preC
                for j in range(4): mem[5 + st_*j] = [lc[j]]
                sc[4 + 4*st_] = preW
                for j in range(4): mem[5 + st_*(4+j)] = [lw[j]]
                for j, x in enumerate(post): sc[48 + j] = [x]
                if half == 0:
                    mem[21] = [f"buffer_load_dword v231, v{vTQ}, s[{sQ2}:{sQ2+3}], s74 offen"]
                    sc[22] = ["s_add_u32 s74, s74, s73"]
                    h = self.hook(f"s_bitcmp1_b32 s72, s{sIT}", 8)
                    sc[23] = [h[0]]; sc[24] = h[1]
                    va[52] = [f"v_xor_b32 v{vCa}, 0x10000, v{vCa}"]
                    va[53] = [f"v_xor_b32 v{vWa}, 0x10000, v{vWa}"]
                    va[54] = [f"v_xor_b32 v{vWa+1}, 0x10000, v{vWa+1}"]
                    sc[63] = ["s_waitcnt lgkmcnt(0)"]
                else:
                    h = self.hook(f"s_bitcmp1_b32 s76, s{sIT}", 8)
                    sc[53] = [h[0]]; sc[54] = h[1]
                    sc[57] = [f"s_add_u32 s{sIT}, s{sIT}, 1"]
                    sc[61] = [f"s_cmp_lt_u32 s{sIT}, 8"]
                    sc[62] = ["s_waitcnt lgkmcnt(0)"]
                    sc[63] = [f"s_cbranch_scc1 {name}_loop{role}"]
                a(weave(mf, sc, mem, va))
            if role == "K":
                a("s_mov_b32 s60, 2048", "s_mov_b32 s61, 8192", f"s_mov_b32 s62, {KFO}", f"s_branch {name}_p1epi")
            else:
                a("s_mov_b32 s60, 8192", "s_mov_b32 s61, 2048", f"s_mov_b32 s62, {VFO}")
        t = Asm()
        yld = ["s_getpc_b64 s[8:9]", "s_setpc_b64 s[10:11]"]
        t.label(f"{name}_co1")
        if not LNPRE: t(xloads, yld)
        t(f"buffer_load_dword v232, v234, s[{sC}:{sC+3}], s29 offen", f"buffer_store_dword v{vZero}, v{vFl}, s[{sWS}:{sWS+3}], 0 offen{SC}")
        if not LNPRE:
            t("s_waitcnt vmcnt(18)")
            ln_compute(t)
            t(yld)
        for i in range(3): t(f"ds_read_b128 {vr(XV+4*i,4)}, v{vTR} offset:{i*4096}")
        t(f"buffer_store_dword v{vAcc}, v{vKo}, s[{sWS}:{sWS+3}], 0 offen{SC}", "s_waitcnt lgkmcnt(0)",
          f"buffer_store_dwordx4 {vr(XV,4)}, v{vO1}, s[{sWS}:{sWS+3}], s66 offen{SC}",
          f"buffer_store_dwordx4 {vr(XV+4,4)}, v{vO1}, s[{sWS}:{sWS+3}], s67 offen{SC}",
          f"buffer_store_dwordx4 {vr(XV+8,4)}, v{vO3}, s[{sWS}:{sWS+3}], s78 offen{SC}")
        t(yld)
        t(f"s_mov_b32 s{sQ2}, s60", f"s_mov_b32 s{sQ2+1}, s61", f"s_mov_b32 s{sQ2+2}, s75", f"s_lshl_b32 s74, s{sI}, 2", f"s_add_u32 s74, s74, s{sW}",
          "s_lshl_b32 s74, s74, 16", f"s_mov_b32 s73, {256*8192}",
          f"v_mov_b32 v{vS}, {BIG}", f"v_mov_b32 v{vT2}, 1", f"v_writelane_b32 v{vS}, s77, 0", f"v_lshlrev_b32 v{vZero}, 2, v{vL}")
        if LNPRE: t(f"s_and_b32 s23, s{sH}, 3", f"s_cbranch_scc0 {name}_arr")
        t(yld)
        t.label(f"{name}_arr")
        t(f"buffer_store_byte v{vT2}, v{vS}, s[{sDb}:{sDb+3}], 0 offen{SC}", yld)
        t(f"buffer_load_dword v{vPoll}, v{vZero}, s[{sDb}:{sDb+3}], 0 offen{SC}", yld)
        t(f"s_mov_b32 s{sWt}, s60", f"s_mov_b32 s{sWt+1}, s61", f"s_mov_b32 s{sWt+2}, s75",
          f"s_lshr_b32 s{sOW}, s{sW}, 1", f"s_lshl_b32 s{sOW}, s{sOW}, 18", f"s_mov_b32 s{sStep}, {64*8192}",
          f"s_mov_b32 s{sC}, s18", f"s_mov_b32 s{sC+1}, s19", f"s_mov_b32 s{sC+2}, {2048*1280}", f"s_mov_b32 s{sOC}, 0", "s_movk_i32 s79, 1024",
          f"s_lshl_b32 s23, s{sI}, 2", f"s_add_u32 s23, s23, s{sW}", f"s_mul_i32 s23, s23, {2*20480}", f"v_add_u32 v{vCo}, s23, v{vL16}",
          f"s_sub_u32 s23, 15, s{sI}", "s_lshl_b32 s23, s23, 2", f"s_add_u32 s23, s23, s{sW}", f"s_mul_i32 s23, s23, {2*20480}", "s_sub_u32 s23, s23, 2048",
          f"v_add_u32 v{vCo+2}, s23, v{vL16}", f"v_add_u32 v{vCo+1}, {20480-1024}, v{vCo}", f"v_add_u32 v{vCo+3}, {20480-1024}, v{vCo+2}",
          "s_waitcnt vmcnt(8)")
        self.poll_check(t, "ln", vPoll, vZero, sDb, [f"v_cmp_ne_u32 vcc, 0x01010101, v{vPoll}"])
        t("s_setpc_b64 s[10:11]")
        self.tail += t.lines
        a.label(f"{name}_p1epi")
        stamp(a, 4); stampc(a, 13)
        self.sWq = sWt; self.sXs = sC; self.sWoff = sOW; self.sXoff = sOC

    def kv_item(self, tt, j, D):
        sc = []
        if j == 0: sc = [f"s_mul_i32 s63, s60, {tt}", "s_add_u32 s63, s63, s62"]
        elif j % 2 == 0: sc = ["s_add_u32 s63, s63, s61"]
        regs = [((2*tt)*8+j)*4+r for r in range(4)] + [((2*tt+1)*8+j)*4+r for r in range(4)]
        va = [f"v_accvgpr_read_b32 v{vT+k}, a{r}" for k, r in enumerate(regs)]
        va += [f"v_cvt_pk_bf16_f32 v{D+r}, v{vT+2*r}, v{vT+1+2*r}" for r in range(4)]
        z = [f"v_accvgpr_write_b32 a{r}, 0" for r in regs if r < 128]
        st = f"buffer_store_dwordx4 {vr(D,4)}, v{vL16}, s[{sWS}:{sWS+3}], s63 offen offset:{(j&1)*1024}{SC}"
        return sc, va, z, st

    def top8(self):
        name = self.name
        self.a(f"s_cmp_eq_u32 s2, {TOPWG}", f"s_cbranch_scc1 {name}_top8")
        self.a.label(f"{name}_notop")
        a = Asm()
        KEY = 96
        a.label(f"{name}_top8")
        a(f"s_cmp_lg_u32 s{sW}, 0", f"s_cbranch_scc1 {name}_notop")
        a(f"s_mov_b32 s23, {RKEY}", f"s_mov_b32 s31, {RKEY+4096}")
        for q in range(8):
            a(f"buffer_load_dwordx4 {vr(KEY+4*q,4)}, v{vL16}, s[{sWS}:{sWS+3}], s{23 if q < 4 else 31} offen offset:{(q%4)*1024}{SC}")
        vM, vPrev, vSel, vTok, vTmp, vRow, vR = vT + 4, vT + 5, vT + 6, vT + 7, vT + 8, vT + 9, vT + 10
        a(f"v_mov_b32 v{vPrev}, 0", f"v_mov_b32 v{vSel}, 0", f"v_and_b32 v{vTok}, 7, v{vL}", "s_mov_b32 s23, 0", "s_waitcnt vmcnt(0)")
        a.label(f"{name}_top")
        a(f"v_max3_u32 v{vM}, v{KEY}, v{KEY+1}, v{KEY+2}", f"v_max3_u32 v{vTmp}, v{KEY+3}, v{KEY+4}, v{KEY+5}")
        for q in range(6, 30, 4):
            a(f"v_max3_u32 v{vM}, v{vM}, v{KEY+q}, v{KEY+q+1}", f"v_max3_u32 v{vTmp}, v{vTmp}, v{KEY+q+2}, v{KEY+q+3}")
        a(f"v_max3_u32 v{vM}, v{vM}, v{KEY+30}, v{KEY+31}", f"v_max_u32 v{vM}, v{vM}, v{vTmp}")
        for m in ("quad_perm:[1,0,3,2]", "quad_perm:[2,3,0,1]", "row_half_mirror", "row_mirror"):
            a("s_nop 1", f"v_max_u32_dpp v{vM}, v{vM}, v{vM} {m} row_mask:0xf bank_mask:0xf")
        xreduce(a, "v_max_u32", vM, vTmp)
        a(f"v_add_u32 v{vPrev}, v{vPrev}, v{vM}", f"v_cmp_eq_u32 vcc, s23, v{vTok}")
        for q in range(32): a(f"v_sub_u32 v{KEY+q}, v{KEY+q}, v{vM}")
        a(f"v_cndmask_b32 v{vSel}, v{vSel}, v{vPrev}, vcc", "s_add_u32 s23, s23, 1", "s_cmp_lt_u32 s23, 8", f"s_cbranch_scc1 {name}_top")
        a(f"v_and_b32 v{vRow}, 0xffff, v{vSel}", f"v_sub_u32 v{vRow}, 0xffff, v{vRow}", f"v_and_b32 v{vRow}, 2047, v{vRow}")
        a(f"v_ashrrev_i32 v{vM}, 31, v{vSel}", f"v_not_b32 v{vM}, v{vM}", f"v_or_b32 v{vM}, 0x80000000, v{vM}",
          f"v_xor_b32 v{vR}, v{vSel}, v{vM}", f"v_and_b32 v{vR}, 0xffff0000, v{vR}",
          f"v_mul_f32 v{vR}, 0xbfb8aa3b, v{vR}", f"v_exp_f32 v{vR}, v{vR}", "s_nop 0", f"v_add_f32 v{vR}, 1.0, v{vR}",
          f"v_rcp_f32 v{vR}, v{vR}", "s_nop 0")
        bf16r(a, vR)
        a(f"v_lshlrev_b32 v{vM}, 2, v{vL}", f"v_add_u32 v{vM}, {SEL}, v{vM}", f"v_mov_b32 v{vPrev}, {BIG}",
          f"v_cmp_gt_u32 vcc, 16, v{vL}", f"v_add_u32 v{vRow}, 1, v{vRow}", f"v_or_b32 v{vR}, 1, v{vR}", f"v_cndmask_b32 v{vM}, v{vPrev}, v{vM}, vcc",
          f"v_cmp_gt_u32 vcc, 8, v{vL}", "s_nop 1", f"v_cndmask_b32 v{vR}, v{vR}, v{vRow}, vcc",
          f"buffer_store_dword v{vR}, v{vM}, s[{sWS}:{sWS+3}], 0 offen{SC}", f"s_branch {name}_notop")
        self.tail += a.lines

    def phase2(self):
        a = self.a; name = self.name
        sWq, sXs, sWoff, sXoff = self.sWq, self.sXs, self.sWoff, self.sXoff
        XB = 224; vXa = 14; sW4 = 24
        vm = VM()
        vm.issue("X1", 4); vm.issue("W1", 4); vm.issue("X2", 4); vm.issue("W2", 4); vm.issue("T"); vm.issue("X3", 4); vm.issue("W3", 4)
        def wreads(buf, off):
            return [f"ds_read_b64_tr_b16 {vr(Q+32*buf+4*cb+2*t,2)}, v{vWa+(cb&1)} offset:{off + t*1024 + (cb>>1)*256}" for cb in range(8) for t in range(2)]
        def xreads(buf, off):
            return [f"ds_read_b128 {vr(XB+16*buf+4*qb,4)}, v{vXa} offset:{off + qb*1024}" for qb in range(4)]
        a(f"s_lshr_b32 s23, s{sW}, 1", "s_lshl_b32 s23, s23, 13", f"v_subrev_u32 v{vWa}, s23, v{vWa}", f"v_subrev_u32 v{vWa+1}, s23, v{vWa+1}",
          f"s_lshl_b32 s{sW4}, s{sW}, 12", f"v_add_u32 v{vXa}, s{sW4}, v{vL16}")
        a(wreads(0, 0), f"s_waitcnt vmcnt({vm.need('T')})", xreads(0, 0))
        a(f"s_lshl_b32 s23, s{sH}, 19", "s_add_u32 s62, s62, s23", f"s_lshl_b32 s23, s{sI}, 16", "s_add_u32 s62, s62, s23",
          f"s_and_b32 s23, s{sW}, 1", "s_lshl_b32 s23, s23, 15", "s_add_u32 s62, s62, s23")
        a(f"s_lshl_b32 s23, s{sH}, 19", f"s_add_u32 s23, s23, {KFO}", "s_add_u32 s6, s18, s23", "s_addc_u32 s7, s19, 0",
          f"s_add_u32 s8, s6, {VFO-KFO}", "s_addc_u32 s9, s7, 0", f"s_sub_u32 s23, 16, s{sI}", "s_lshl_b32 s23, s23, 15")
        srd(a, sK, "s6", "s7", "s23")
        srd(a, sV, "s8", "s9", "s23")
        a(f"s_lshl_b32 s30, s{sH}, 7", f"s_add_u32 s30, s30, {KVF}", f"s_mov_b32 s{sThr}, 0x47800000",
          f"s_cmp_eq_u32 s{sW}, 0", f"s_cselect_b32 s29, s{sKVa}, {BIG}")
        a(f"s_waitcnt vmcnt({vm.need('X1')}) lgkmcnt(0)")
        stamp(a, 6)
        items = [(tt, j) for tt in range(4) for j in range(8)]
        per = [int(c) for c in os.environ.get("PER", "22222222222233200000")]
        assert sum(per) == 32 and len(per) == 20
        lastst = max(k for k in range(20) if per[k])
        SFLAG = lastst + 2 if lastst % 2 else lastst + 3
        if "SFLAG" in os.environ: SFLAG = int(os.environ["SFLAG"])
        SFLAG = max(SFLAG, 15)
        SPOLL = max(SFLAG + 1, 18)
        misc = [f"v_and_b32 v11, 15, v{vL}", f"v_lshrrev_b32 v10, 4, v{vL}", "v_lshlrev_b32 v10, 2, v10", "v_sub_u32 v11, v11, v10"]
        misc += [f"v_cmp_le_i32 s[{sMask+2*r}:{sMask+2*r+1}], {r}, v11" for r in range(4)]
        misc += [f"v_and_b32 v{vPo}, 7, v{vL}", f"v_lshlrev_b32 v{vPo}, 2, v{vPo}", f"v_add_u32 v{vPo}, s30, v{vPo}",
                 f"v_mov_b32 v9, {BIG}", "v_mov_b32 v10, 1", "v_writelane_b32 v9, s29, 0"]
        flagst = f"buffer_store_dword v10, v9, s[{sWS}:{sWS+3}], 0 offen{SC}"
        pollld = f"buffer_load_dword v{vPoll}, v{vPo}, s[{sWS}:{sWS+3}], 0 offen{SC}"
        it = 0; zpool = []
        for s_ in range(20):
            buf = s_ & 1
            C = lambda d: "0" if s_ == 0 else vr(d, 4)
            mf = [f"{MF} {vr(QACC+(db*4+qb)*4,4)}, {vr(Q+32*buf+4*db,4)}, {vr(XB+16*buf+4*qb,4)}, {C(QACC+(db*4+qb)*4)}" for qb in range(4) for db in range(8)]
            sc = {g: [] for g in range(32)}; mem = {g: [] for g in range(32)}; va = {g: [] for g in range(32)}
            tags = {g: [] for g in range(32)}
            if s_ & 1: sc[0].append("s_barrier")
            vpos = [3, 8, 13, 18, 23, 28]
            if s_ < 19:
                off = [8192, 32768, 32768 + 8192, 0][s_ % 4]
                rd = wreads(1 - buf, off); xr = xreads(1 - buf, 32768 if s_ % 2 == 0 else 0)
                ds = rd[:8] + xr[:2] + rd[8:] + xr[2:]
                dpos = [g for g in range(1, 27) if g not in vpos][:20]
                for p_, x in zip(dpos, ds): mem[p_].append(x)
            if s_ + 4 < 20:
                sc[2].append(f"s_add_u32 m0, s{sW4}, {(s_%4)*32768}")
                for j in range(4):
                    mem[vpos[j]].append(f"buffer_load_dwordx4 v{vCo+j}, s[{sXs}:{sXs+3}], s{sXoff} offen offset:{j*1024}{SC} lds"); tags[vpos[j]].append(f"X{s_+4}")
                sc[19].append(f"s_add_u32 s{sXoff}, s{sXoff}, 1024")
            stage = (s_ + 1) // 2 + 3
            if s_ >= 1 and stage < 10:
                sc[22].append(f"s_add_u32 m0, s{sW4}, {(stage%4)*32768+16384}")
                for jj in range(2):
                    j = jj if s_ & 1 else 2 + jj
                    mem[vpos[4+jj]].append(f"buffer_load_dwordx4 v{vWo+j}, s[{sWq}:{sWq+3}], s{sWoff} offen offset:{j*1024} lds"); tags[vpos[4+jj]].append(f"W{stage}")
                if not s_ & 1: sc[29].append(f"s_add_u32 s{sWoff}, s{sWoff}, {64*8192}")
            if s_ % 4 == 2:
                va[29].append(f"v_xor_b32 v{vWa}, 0x10000, v{vWa}"); va[30].append(f"v_xor_b32 v{vWa+1}, 0x10000, v{vWa+1}")
            if s_ % 2 == 0: va[27].append(f"v_xor_b32 v{vXa}, 0x10000, v{vXa}")
            if s_ == SFLAG:
                mem[0].append(flagst); tags[0].append("flag")
            if s_ == SPOLL:
                mem[3].append(pollld); tags[3].append("poll")
            toks = []
            for k in range(per[s_]):
                tt, j = items[it]; D = vT + 8 + 4 * (it % 2); it += 1
                isc, iva, z, ist = self.kv_item(tt, j, D)
                toks += [("s", x) for x in isc] + [("v", x) for x in iva] + [("st", ist)]
                zpool += z
            if s_ == 13: toks += [("v", x) for x in misc]
            cap = [max(0, 2 - len(mem[g]) - len(va[g])) for g in range(31)]
            nv = sum(1 for t_ in toks if t_[0] != "s")
            nz = len(zpool) if s_ == 19 else min(len(zpool), max(0, sum(cap) - nv - per[s_] - 1))
            toks += [("v", x) for x in zpool[:nz]]; zpool = zpool[nz:]
            nv += nz
            extra = max(0, nv + per[s_] + 1 - sum(cap))
            for q in range(extra): cap[(q * 30 // extra) % 30] += 1
            g = 0; smin = 0
            for kind, x in toks:
                if kind == "s":
                    gg = max(g, smin)
                    while sc[gg] and gg < max(g, smin) + 3: gg += 1
                    sc[gg].append(x); smin = gg + 1
                    continue
                if kind == "st": g = max(g + 1, smin - 1)
                while cap[g] == 0: g += 1
                cap[g] -= 1
                if kind == "v": va[g].append(x)
                else:
                    mem[g].append(x); tags[g].append("st"); smin = g + 1
            for g in range(31):
                for t_ in tags[g]: vm.issue(t_)
            if s_ < 19:
                need = []
                if s_ + 2 < 20: need.append(f"X{s_+2}")
                if (s_ + 1) & 1:
                    st1 = (s_ + 2) // 2
                    if st1 < 10: need.append(f"W{st1}")
                if s_ + 1 == SFLAG: need.append("st")
                sc[31].append(f"s_waitcnt vmcnt({vm.need(*need)}) lgkmcnt(0)" if need else "s_waitcnt lgkmcnt(0)")
            for t_ in tags[31]: vm.issue(t_)
            if os.environ.get("QST"): a(stampv(30 + s_))
            a(weave(mf, sc, mem, va))
        assert it == 32 and not zpool
        self.late_flag = SFLAG > 19; self.late_poll = SPOLL > 19; self.flagst = flagst; self.pollld = pollld
        a(f"s_and_b32 s23, s{sW}, 1", "s_lshl_b32 s23, s23, 12", f"s_cmp_lt_u32 s{sW}, 2", f"s_cselect_b32 s{sKm}, {131072-24576}, 0",
          f"s_add_u32 s{sKm}, s{sKm}, s23", f"s_lshl_b32 s{sKo}, s{sW}, 12", f"s_mov_b32 s{sVo}, s{sKo}", f"s_add_u32 s{sVm}, s{sVo}, {32768+16384}",
          "s_load_dwordx4 s[4:7], s[0:1], 64", "s_load_dwordx2 s[8:9], s[0:1], 80",
          "v_mov_b32 v12, 0x3e0293ee", "v_mov_b32 v13, 0x3e0293ee")
        cv = []
        for X in range(2):
            for ks in range(4):
                for qb in range(2):
                    d = Q + 32 * X + 8 * ks + 4 * qb
                    for hh in range(2):
                        s0 = QACC + ((2 * ks + hh) * 4 + 2 * X + qb) * 4
                        cv += [f"v_pk_mul_f32 {vr(s0,2)}, {vr(s0,2)}, v[12:13]", f"v_pk_mul_f32 {vr(s0+2,2)}, {vr(s0+2,2)}, v[12:13]",
                               f"v_cvt_pk_bf16_f32 v{d+2*hh}, v{s0}, v{s0+1}", f"v_cvt_pk_bf16_f32 v{d+2*hh+1}, v{s0+2}, v{s0+3}"]
        if self.late_flag:
            a(cv[:48], "s_waitcnt vmcnt(0)", "s_barrier", flagst); cv = cv[48:]
            a(cv[:40]); cv = cv[40:]
        if self.late_poll:
            a(pollld, cv[:40]); cv = cv[40:]
        a("s_waitcnt vmcnt(0)")
        stamp(a, 5)
        self.poll_check(a, "kv", vPoll, vPo, sWS, [f"v_cmp_eq_u32 vcc, 0, v{vPoll}"])
        stamp(a, 7)
        n_ = -(-len(cv) // 20)
        for (srdn, so, sm) in [(sK, sKo, sKm)] * 3 + [(sV, sVo, sVm)] * 2:
            a(f"s_mov_b32 m0, s{sm}", "s_nop 0")
            for j in range(4):
                a(f"buffer_load_dwordx4 v{vL16}, s[{srdn}:{srdn+3}], s{so} offen offset:{j*1024}{SC} lds", cv[:n_]); cv = cv[n_:]
            a(f"s_add_u32 s{so}, s{so}, 16384", f"s_add_u32 s{sm}, s{sm}, 32768", f"s_and_b32 s{sm}, s{sm}, 0x1ffff")
        assert not cv
        a(f"v_add_u32 v{vT+2}, {3*32768+8192}, v{vL16}", "s_waitcnt vmcnt(12)", "s_barrier")
        a([f"ds_read_b128 {ar(KF+4*i,4)}, v{vT+2} offset:{i*1024}" for i in range(8)])
        self.wo_dma()
        a("s_waitcnt lgkmcnt(0)", f"s_cmp_ge_u32 s{sW}, 2", "s_cselect_b32 s4, s6, s4", "s_cselect_b32 s5, s7, s5")
        srd(a, 52, "s4", "s5", 640 * 3456); srd(a, 60, "s8", "s9", 1728 * 1280)
        for i in range(4): a(f"v_mov_b32 v{LS+i}, 0")
        a(f"s_add_u32 s23, s{sW}, 1", "s_lshr_b32 s23, s23, 1", f"s_lshl_b32 s{sCnt}, s{sI}, 1", f"s_add_u32 s{sCnt}, s{sCnt}, s23",
          f"s_lshl_b32 s23, s{sI}, 2", f"s_sub_u32 s{sNSS}, 28, s23", f"s_and_b32 s23, s{sW}, 1", f"s_add_u32 s{sNSS}, s{sNSS}, s23")
        a(f"v_mov_b32 v{vKV}, v{vL16}", f"v_mov_b32 v{vNI}, 0xff800000")
        self.top8()
        self.ffn_setup()

    def rowmap(self, a, q):
        a(f"v_add_u32 v{vT+4}, {64*q}, v{vL}", f"v_mul_u32_u24 v{vT+3}, 6554, v{vT+4}", f"s_add_u32 m0, s34, {q*1024}",
          f"v_lshrrev_b32 v{vT+3}, 16, v{vT+3}", f"v_mul_u32_u24 v{vT+3}, {1280-160}, v{vT+3}", f"v_lshl_add_u32 v{vT+3}, v{vT+4}, 4, v{vT+3}")

    def wo_dma(self):
        a = self.a
        a("s_and_b32 s62, s2, 1", "s_lshl_b32 s62, s62, 2", f"s_add_u32 s62, s62, s{sW}", "s_lshr_b32 s63, s2, 1",
          f"s_mul_i32 s23, s63, {32*1280}", "s_mul_i32 s31, s62, 160", "s_add_u32 s23, s23, s31",
          f"s_mul_i32 s34, s{sW}, 5120", f"s_add_u32 s34, s34, {SPARE}")
        for q in range(5):
            self.rowmap(a, q)
            a(f"buffer_load_dwordx4 v{vT+3}, s[52:55], s23 offen lds", f"v_accvgpr_write_b32 a{248+q}, v{vT+3}")
        a(f"v_lshrrev_b32 v6, 2, v{vL}", "v_mul_u32_u24 v6, 160, v6", f"v_and_b32 v{vT+3}, 3, v{vL}",
          f"v_lshl_add_u32 v6, v{vT+3}, 3, v6", "v_add_u32 v6, s34, v6",
          "s_lshl_b32 s30, s62, 7", "s_add_u32 s30, s30, s63", "s_mul_i32 s30, s30, 5120", f"s_add_u32 s30, s30, {WOF}")

    def wf_addr(self, d):
        return [f"s_and_b32 s{d}, s2, 1", f"s_lshl_b32 s{d}, s{d}, 2", f"s_add_u32 s{d}, s{d}, s{sW}", f"s_lshl_b32 s{d}, s{d}, 7",
                "s_lshr_b32 s31, s2, 1", f"s_add_u32 s{d}, s{d}, s31", f"s_lshl_b32 s{d}, s{d}, 2", f"s_add_u32 s{d}, s{d}, {WF}"]
    def yf_addr(self, d):
        return [f"s_sub_u32 s{d}, s2, {FFN0}", f"s_lshl_b32 s31, s{sW}, 6", f"s_add_u32 s{d}, s{d}, s31", f"s_lshl_b32 s{d}, s{d}, 2", f"s_add_u32 s{d}, s{d}, {YF}"]
    def flag_store(self, addr_lines, wait):
        return addr_lines + [f"v_mov_b32 v{vT}, {BIG}", f"v_mov_b32 v{vT+1}, 1", f"v_writelane_b32 v{vT}, s23, 0", wait,
                             f"buffer_store_dword v{vT+1}, v{vT}, s[{sWS}:{sWS+3}], 0 offen{SC}"]

    def ffn_setup(self):
        a = self.a; name = self.name
        a("s_mov_b32 s101, 24" if DBG else [], "s_mov_b32 s32, 0", "s_mov_b32 s9, 0", "s_mov_b32 s8, 0", "s_mov_b32 s11, 0", "s_mov_b32 s12, 0",
          f"s_lshl_b32 s15, s{sI}, 1", "s_add_u32 s23, s15, 6", f"s_sub_u32 s15, {32-self.U}, s15", "s_max_u32 s15, s15, s23", "s_lshl_b32 s15, s15, 14",
          "s_getpc_b64 s[36:37]", f"{name}_copc:", f"s_add_u32 s36, s36, {name}_co-{name}_copc-4", "s_addc_u32 s37, s37, 0",
          "s_waitcnt lgkmcnt(0)")

    def hook(self, cond=None, R=36):
        k = self.nhook; self.nhook += 1
        n = self.name
        dbg = ["s_memrealtime s[98:99]", "s_waitcnt lgkmcnt(0)", "s_mov_b32 s100, s98"] if (DBG and os.environ.get("REC")) else []
        self.tail += [f"{n}_hk{k}:"] + dbg + [f"s_getpc_b64 s[{R+2}:{R+3}]", f"{n}_hp{k}:", f"s_add_u32 s{R}, s{R}, 4", f"s_addc_u32 s{R+1}, s{R+1}, 0",
                      f"s_sub_u32 s{R+2}, s{R+2}, {n}_hp{k}-{n}_hb{k}", f"s_subb_u32 s{R+3}, s{R+3}, 0", f"s_setpc_b64 s[{R}:{R+1}]"]
        return [cond or f"s_cmp_ge_u32 s{sKo}, s32", [f"s_cbranch_scc1 {n}_hk{k}", f"{n}_hb{k}:"]]

    def coroutine(self):
        name = self.name
        a = Asm()
        cnt = [0]
        def rec():
            if DBG and os.environ.get("REC"): a("s_memrealtime s[98:99]", "s_waitcnt lgkmcnt(0)", "s_sub_u32 s98, s98, s100", "s_lshl_b32 s98, s98, 16", "s_and_b32 s100, s100, 0xffff",
                      "s_or_b32 s98, s98, s100", "s_mov_b32 m0, s101", "s_add_u32 s101, s101, 1", "v_writelane_b32 v7, s98, m0")
        def yld(n=1):
            for _ in range(n):
                rec()
                a("s_getpc_b64 s[36:37]", "s_setpc_b64 s[38:39]")
        G = 232; FW = 192; FX = 212; Y = 236
        def wo_reads():
            a("s_waitcnt vmcnt(8)")
            for cb in range(5):
                for tt in range(2): a(f"ds_read_b64_tr_b16 {vr(232+4*cb+2*tt,2)}, v6 offset:{tt*16*160 + cb*32}")
        def wo_stores():
            a("s_add_u32 s31, s30, 4096")
            for cb in range(5):
                a(f"buffer_store_dwordx4 {vr(232+4*cb,4)}, v{vL16}, s[{sWS}:{sWS+3}], s{30 if cb < 4 else 31} offen offset:{(cb%4)*1024}{SC}")
        a.label(f"{name}_co")
        wo_reads()
        a(f"s_sub_u32 s14, s2, {FFN0}", f"s_cmp_lt_u32 s14, {FFN1-FFN0}", f"s_cbranch_scc1 {name}_coF",
          "s_sub_u32 s14, s2, 64", "s_cmp_lt_u32 s14, 96", f"s_cbranch_scc1 {name}_coT",
          "s_sub_u32 s14, s2, 128", "s_cmp_ge_u32 s2, 224", f"s_cbranch_scc1 {name}_coT")
        yld(); wo_stores(); yld(2)
        a(self.flag_store(self.wf_addr(23), "s_waitcnt vmcnt(8)"), f"s_branch {name}_coW")
        a.label(f"{name}_coT")
        a(f"v_min_u32 v8, 16, v{vL}", "v_lshlrev_b32 v8, 7, v8", "s_lshl_b32 s33, s14, 1", f"s_and_b32 s31, s{sW}, 1", "s_add_u32 s33, s33, s31",
          f"s_mul_i32 s33, s33, {17*128}", "s_lshl_b32 s35, s14, 2", f"s_add_u32 s35, s35, s{sW}", f"s_mul_i32 s35, s35, {34*128}")
        tg = ["buffer_load_dword v255, v8, s[52:55], s33 offen", f"s_add_u32 s33, s33, {160*3456}"]
        a(tg); yld()
        wo_stores(); a(tg); yld()
        a(tg); yld()
        a(self.flag_store(self.wf_addr(23), "s_waitcnt vmcnt(10)"), tg); yld()
        a("buffer_load_dword v255, v8, s[60:63], s35 offen"); yld()
        a(f"buffer_load_dword v255, v8, s[60:63], s35 offen offset:{17*128}", f"s_branch {name}_coW")
        FV = self.FV
        a.label(f"{name}_coF")
        yld()
        wo_stores()
        a("s_lshl_b32 s33, s14, 6", f"s_and_b32 s31, s{sW}, 1", "s_lshl_b32 s31, s31, 5", "s_add_u32 s33, s33, s31",
          "s_mul_i32 s35, s14, 40960", f"s_mul_i32 s31, s{sW}, 320", "s_add_u32 s35, s35, s31",
          "s_mul_i32 s10, s14, 20480", f"s_mul_i32 s31, s{sW}, 640", "s_add_u32 s10, s10, s31", f"s_add_u32 s10, s10, {YP}", "s_mov_b32 s9, -1")
        yld()
        a(f"v_and_b32 v{vT}, 7, v{vL}", f"v_lshlrev_b32 v252, 2, v{vT}", f"v_add_u32 v252, {SEL}, v252",
          f"buffer_load_dword v15, v252, s[{sWS}:{sWS+3}], 0 offen{SC}")
        a(f"v_lshrrev_b32 v{vT+1}, 1, v{vL}", f"v_mul_u32_u24 v{FV[0]}, 3456, v{vT+1}", f"v_and_b32 v{vT+1}, 1, v{vL}", f"v_lshl_add_u32 v{FV[0]}, v{vT+1}, 4, v{FV[0]}")
        for q in range(1, 5): a(f"v_add_u32 v{FV[q]}, {q*32*3456 - (q%4)*1024}, v{FV[0]}")
        a(f"v_lshrrev_b32 v{vT+1}, 4, v{vL}",
          f"v_lshrrev_b32 v{vT+2}, 2, v{vL}", f"v_lshl_add_u32 v{vT+2}, v{vT+1}, 2, v{vT+2}",
          f"v_lshlrev_b32 v{vT+2}, 5, v{vT+2}", f"v_and_b32 v{vT+3}, 3, v{vL}", f"v_lshl_add_u32 v9, v{vT+3}, 3, v{vT+2}", "v_add_u32 v9, s34, v9",
          f"v_lshlrev_b32 v10, 4, v{vT}", f"v_lshl_add_u32 v10, v{vT+1}, 7, v10", f"v_add_u32 v10, {XS}, v10", "s_mov_b32 s8, 1")
        for k in range(4): a(f"v_mov_b32 v{G+k}, 0")
        yld()
        a(self.flag_store(self.wf_addr(23), "s_waitcnt vmcnt(8)"))
        self.poll_check(a, "sel", 15, 252, sWS, ["v_cmp_eq_u32 vcc, 0, v15"])
        a(f"v_add_u32 v{vT+2}, -1, v15", f"v_and_b32 v{vT+2}, 2047, v{vT+2}", f"v_lshrrev_b32 v{vT+3}, 4, v{vT+2}", f"v_mul_u32_u24 v{vT+3}, 20480, v{vT+3}",
          f"v_and_b32 v{vT+2}, 15, v{vT+2}", f"v_lshl_add_u32 v{vT+3}, v{vT+2}, 4, v{vT+3}",
          f"v_lshrrev_b32 v{vT+2}, 3, v{vL}", f"v_lshl_add_u32 v{vT+3}, v{vT+2}, 8, v{vT+3}",
          f"s_lshl_b32 s23, s{sW}, 11", f"s_lshl_b32 s31, s{sW}, 10", f"s_add_u32 s31, s31, {XS}", "s_mov_b32 s14, 4")
        for k in range(3):
            a("s_mov_b32 m0, s31", "s_add_u32 s31, s31, 4096", f"buffer_load_dwordx4 v{vT+3}, s[{sWS}:{sWS+3}], s23 offen{SC} lds",
              "s_add_u32 s23, s23, 8192")
        a.label(f"{name}_coG")
        yld()
        a("s_waitcnt vmcnt(4)")
        for q in range(5):
            for t in range(2): a(f"ds_read_b64_tr_b16 {ar(FW+4*q+2*t,2)}, v9 offset:{q*1024+t*128}")
            a(f"ds_read_b128 {ar(FX+4*q,4)}, v10 offset:{q*512}")
        a("v_add_u32 v10, 2560, v10", f"s_add_u32 s33, s33, {160*3456}", "s_sub_u32 s14, s14, 1")
        for q in range(5): a(f"s_waitcnt lgkmcnt({12-3*q})", f"{MF} {vr(G,4)}, {ar(FW+4*q,4)}, {ar(FX+4*q,4)}, {vr(G,4)}")
        a("s_cmp_lg_u32 s14, 0", f"s_cbranch_scc1 {name}_coG")
        for q in range(5): a(f"v_accvgpr_read_b32 v{FV[q]}, a{248+q}")
        for q in range(1, 4): a(f"v_subrev_u32 v{FV[q]}, {q*1024}, v{FV[q]}")
        a("s_mov_b32 s52, s60", "s_mov_b32 s53, s61", "s_mov_b32 s33, s35",
          f"s_lshl_b32 s23, s{sW}, 9", f"v_add_u32 v{vT}, s23, v10", f"ds_write_b128 v{vT}, {vr(G,4)}",
          f"v_and_b32 v{vT+1}, 7, v{vL}", f"v_mul_u32_u24 v9, 2560, v{vT+1}", f"v_lshrrev_b32 v{vT+1}, 4, v{vL}", f"v_lshl_add_u32 v9, v{vT+1}, 4, v9",
          f"v_and_b32 v{vT+1}, 8, v{vL}", f"v_lshl_add_u32 v9, v{vT+1}, 27, v9")
        yld()
        GU = 236
        def dreads():
            a("s_waitcnt vmcnt(4)")
            for cb in range(5):
                for t in range(2): a(f"ds_read_b64_tr_b16 {ar(FW+4*cb+2*t,2)}, v6 offset:{t*2560+cb*32}")
        def dmm():
            a("s_waitcnt lgkmcnt(0)")
            for cb in range(5): a(f"{MF} {vr(Y+4*cb,4)}, {ar(FW+4*cb,4)}, {vr(G,4)}, 0")
            a("s_nop 3")
            for cb in range(5): a(f"buffer_store_dwordx4 {vr(Y+4*cb,4)}, v9, s[{sWS}:{sWS+3}], s10 offen offset:{cb*64}{SC}")
            a("s_add_u32 s10, s10, 320")
        for k in range(4): a(f"ds_read_b128 {vr(GU+4*k,4)}, v10 offset:{k*512}")
        dreads()
        a("s_add_u32 s33, s33, 160", "s_mov_b32 s8, 0", "s_waitcnt lgkmcnt(10)")
        for k in range(8):
            a(f"v_cvt_pk_bf16_f32 v{GU+k}, v{GU+k}, v{GU+8+k}")
        for k in range(8): a(f"v_lshlrev_b32 v{GU+8+k}, 16, v{GU+k}")
        for k in range(8): a(f"v_mul_f32 v{vT+k}, 0xbfb8aa3b, v{GU+8+k}")
        for k in range(8): a(f"v_exp_f32 v{vT+k}, v{vT+k}")
        for k in range(8): a(f"v_add_f32 v{vT+k}, 1.0, v{vT+k}")
        for k in range(8): a(f"v_rcp_f32 v{vT+k}, v{vT+k}")
        for k in range(8): a(f"v_mul_f32 v{GU+8+k}, v{GU+8+k}, v{vT+k}")
        for k in range(4): a(f"v_cvt_pk_bf16_f32 v{vT+k}, v{GU+8+2*k}, v{GU+9+2*k}")
        for k in range(8): a(f"v_and_b32 v{GU+k}, 0xffff0000, v{GU+k}")
        for k in range(4): a(f"v_lshlrev_b32 v{GU+8+2*k}, 16, v{vT+k}", f"v_and_b32 v{GU+9+2*k}, 0xffff0000, v{vT+k}")
        for k in range(8): a(f"v_mul_f32 v{GU+k}, v{GU+k}, v{GU+8+k}")
        for k in range(4): a(f"v_cvt_pk_bf16_f32 v{G+k}, v{GU+2*k}, v{GU+2*k+1}")
        a("s_nop 0")
        dmm()
        yld()
        dreads()
        dmm()
        yld()
        a(self.flag_store(self.yf_addr(23), "s_waitcnt vmcnt(8)"))
        a.label(f"{name}_coW")
        a("s_mov_b32 s12, 1", "s_mov_b32 s9, -1", "s_cmp_lg_u32 s11, 0", "s_cselect_b32 s32, s15, -1")
        yld()
        a(f"s_lshl_b32 s23, s{sI}, 2", f"s_add_u32 s23, s23, s{sW}", f"s_mul_i32 s13, s23, {32*5120}", f"s_add_u32 s13, s13, {WOF}",
          "s_lshl_b32 s23, s23, 7", f"s_add_u32 s23, s23, {WF}", f"v_and_b32 v9, 31, v{vL}", "v_lshl_add_u32 v9, v9, 2, s23",
          f"v_and_b32 v10, 15, v{vL}", "v_lshlrev_b32 v10, 2, v10", f"v_add_u32 v10, {SEL}, v10",
          f"buffer_load_dword v8, v9, s[{sWS}:{sWS+3}], 0 offen{SC}", f"buffer_load_dword v15, v10, s[{sWS}:{sWS+3}], 0 offen{SC}")
        self.ctx_epi(a, 0, [32, 44, 96, 108])
        a("s_waitcnt vmcnt(8)")
        self.poll_check(a, "wof", 8, 9, sWS, ["v_cmp_eq_u32 vcc, 0, v8"])
        self.poll_check(a, "sel4", 15, 10, sWS, ["v_cmp_eq_u32 vcc, 0, v15"])
        a(f"s_lshl_b32 s23, s{sW}, 1", "s_add_u32 s31, s23, 1", "v_readlane_b32 s33, v15, s23", "v_readlane_b32 s35, v15, s31",
          f"s_lshl_b32 s31, s{sH}, 6", "s_add_u32 s31, s31, 1", "s_sub_u32 s33, s33, s31", "s_sub_u32 s35, s35, s31",
          "s_cmp_lt_u32 s33, 64", "s_cselect_b32 s10, 1, 0", "s_cmp_lt_u32 s35, 64", "s_cselect_b32 s31, 2, 0", "s_or_b32 s10, s10, s31",
          f"s_cbranch_scc0 {name}_coEnd")
        a(f"v_min_u32 v11, {FFN1-FFN0-1}, v{vL}", f"s_lshr_b32 s23, s{sI}, 1", "s_lshl_b32 s23, s23, 8", f"s_add_u32 s23, s23, {YF}",
          "v_lshl_add_u32 v11, v11, 2, s23", f"buffer_load_dword v14, v11, s[{sWS}:{sWS+3}], 0 offen{SC}")
        YQ = list(range(64, 96, 4)) + list(range(128, 160, 4)) + [176, 180]
        AC = YQ[0]
        a(f"v_mul_u32_u24 v{vT}, 3277, v{vL}", f"v_lshrrev_b32 v{vT}, 16, v{vT}", f"v_mul_u32_u24 v8, 20, v{vT}",
          f"v_sub_u32 v8, v{vL}, v8", "v_lshlrev_b32 v8, 4, v8",
          f"v_mul_u32_u24 v9, {18*20480}, v{vT}", "v_add_u32 v9, v9, v8",
          f"v_cmp_gt_u32 vcc, 3, v{vT}", f"v_mov_b32 v{vT+3}, {BIG}", "s_nop 0", f"v_cndmask_b32 v9, v{vT+3}, v9, vcc")
        a("s_mov_b32 s12, 2", "s_mov_b32 s32, -1", "s_mov_b32 s11, 0")
        yld()
        self.poll_check(a, "yf", 14, 11, sWS, ["v_cmp_eq_u32 vcc, 0, v14"])
        a.label(f"{name}_coY")
        a("s_ff1_i32_b32 s33, s10", "s_bitset0_b32 s10, s33", f"s_lshl_b32 s23, s{sW}, 1", "s_add_u32 s33, s33, s23",
          "s_mul_i32 s14, s33, 2560", f"s_mul_i32 s23, s{sI}, 320", "s_add_u32 s14, s14, s23", f"s_add_u32 s14, s14, {YP}")
        for q in range(18):
            a(f"buffer_load_dwordx4 {vr(YQ[q],4)}, v9, s[{sWS}:{sWS+3}], s14 offen{SC}", "s_add_u32 s14, s14, 20480")
        a("s_cmp_eq_u32 s11, 0", f"s_cbranch_scc1 {name}_coY1", "s_waitcnt vmcnt(0)", f"s_branch {name}_coY2", f"{name}_coY1:", "s_mov_b32 s11, 1")
        yld()
        a.label(f"{name}_coY2")
        a(f"s_lshl_b32 s14, s{sW}, 10", f"s_add_u32 s14, s14, {SCR}", f"v_add_u32 v{vT+3}, s14, v{vL16}", "s_add_u32 s23, s33, 8",
          "v_readlane_b32 s35, v15, s23", "s_waitcnt vmcnt(1)")
        for q in range(1, 18):
            for e in range(0, 4, 2): a(f"v_pk_add_f32 {vr(AC+e,2)}, {vr(AC+e,2)}, {vr(YQ[q]+e,2)}")
        a(f"ds_write_b128 v{vT+3}, {vr(AC,4)}", f"v_add_u32 v{vT+3}, s14, v8", "s_and_b32 s35, s35, 0xffff0000", "s_waitcnt lgkmcnt(0)",
          f"ds_read_b128 {vr(AC,4)}, v{vT+3}", f"ds_read_b128 {vr(AC+4,4)}, v{vT+3} offset:320", f"ds_read_b128 {vr(AC+8,4)}, v{vT+3} offset:640",
          "s_mul_i32 s14, s33, 320", f"s_add_u32 s14, s14, {UPD}", f"v_add_u32 v{vT+3}, s14, v8", "s_waitcnt lgkmcnt(0)")
        for e in range(4):
            a(f"v_add_f32 v{AC+e}, v{AC+e}, v{AC+4+e}", f"v_add_f32 v{AC+e}, v{AC+e}, v{AC+8+e}")
            bf16r(a, AC + e)
            a(f"v_mul_f32 v{AC+e}, s35, v{AC+e}")
            bf16r(a, AC + e)
        a(f"ds_write_b128 v{vT+3}, {vr(AC,4)}", "s_waitcnt lgkmcnt(0)", "s_cmp_lg_u32 s10, 0", f"s_cbranch_scc1 {name}_coY")
        a.label(f"{name}_coEnd")
        a("s_mov_b32 s12, 3", "s_mov_b32 s32, -1")
        rec()
        a("s_setpc_b64 s[38:39]")
        self.tail += a.lines

    def phase3(self):
        a = self.a; name = self.name
        a(self.period(1, ["q", "q"], c0=True))
        a("s_nop 7", f"s_cmp_lg_u32 s{sCnt}, 0", f"s_cbranch_scc1 {name}_nomask0")
        a(mask_ops(0, 0))
        a.label(f"{name}_nomask0")
        for X in range(2):
            for qb in range(2):
                s0 = S + 32 * X + 8 * qb; d = vT + 2 * X + qb
                a(f"v_max3_f32 v{d}, v{s0}, v{s0+1}, v{s0+2}", f"v_max3_f32 v{d}, v{d}, v{s0+3}, v{s0+4}",
                  f"v_max3_f32 v{d}, v{d}, v{s0+5}, v{s0+6}", f"v_max_f32 v{d}, v{d}, v{s0+7}")
        for sw in ("v_permlane16_swap_b32", "v_permlane32_swap_b32"):
            for k in range(4): a(f"v_mov_b32 v{vT+4+k}, v{vT+k}")
            a("s_nop 0")
            for k in range(4): a(f"{sw} v{vT+k}, v{vT+4+k}")
            for k in range(4): a(f"v_max_f32 v{vT+k}, v{vT+k}, v{vT+4+k}")
        for X in range(2):
            for qb in range(2):
                for r in range(4): a(f"v_sub_f32 v{NM+8*X+4*qb+r}, 0, v{vT+2*X+qb}")
        for X in range(2):
            for qb in range(2):
                s0 = S + 32 * X + 8 * qb
                for r in range(8): a(f"v_sub_f32 v{s0+r}, v{s0+r}, v{vT+2*X+qb}")
        a(self.period(0, ["qs", "qs"]))
        stamp(a, 8)
        F = "qsv"
        a(f"s_cmp_eq_u32 s{sCnt}, 0", f"s_cbranch_scc1 {name}_AV", f"s_sub_u32 s{sCnt}, s{sCnt}, 1",
          f"s_cmp_eq_u32 s{sCnt}, 0", f"s_cbranch_scc1 {name}_Aexit")
        a(".p2align 6")
        a.label(f"{name}_DD")
        a(self.period(1, [F, F], bar=12, hook=self.hook()))
        a.label(f"{name}_DDe")
        a(self.period(0, [F, F], tail_sc=[f"s_sub_u32 s{sCnt}, s{sCnt}, 1"], hook=self.hook(f"s_cmp_ge_u32 s{sKo}, s9")))
        a("s_cmp_lg_u32 s8, 0", f"s_cbranch_scc1 {name}_DDF", f"s_cmp_lg_u32 s{sCnt}, 0", f"s_cbranch_scc1 {name}_DD")
        ex = [([f"s_add_u32 m0, s34, {(q//4)*4096}"] if q % 4 == 0 else [],
               f"buffer_load_dwordx4 v{self.FV[q]}, s[52:55], s33 offen offset:{(q%4)*1024} lds") for q in range(5)]
        hk = self.hook()
        k_ = self.nhook - 1
        self.tail[-3] = f"s_add_u32 s38, s38, {name}_hb{k_}-{name}_hp{k_}"; self.tail[-2] = "s_addc_u32 s39, s39, 0"
        self.tail += [f"{name}_DDF:"] + self.period(1, [F, F], bar=12, hook=hk, extra=ex, dgaps=[6, 13, 19, 25], egaps=[31, 37, 43, 49, 55]) + [f"s_branch {name}_DDe"]
        self.coroutine()
        a.label(f"{name}_Aexit")
        a(f"s_bitcmp1_b32 s{sW}, 0", f"s_cbranch_scc1 {name}_Aodd")
        a(self.period(1, [F, F], bar=12))
        a(self.period(0, ["smv", F]))
        a.label(f"{name}_AV")
        a(self.period(1, ["v", F], bar=12))
        a(self.period(0, ["", F]))
        a(f"s_branch {name}_SSpre")
        a.label(f"{name}_Aodd")
        a(self.period(1, ["smv", F], bar=12))
        a(self.period(0, ["v", F]))
        a.label(f"{name}_SSpre")
        a("s_mov_b32 s11, 1", "s_cmp_lg_u32 s12, 0", "s_cselect_b32 s32, s15, s32")
        U, KY = self.U, self.KY
        def wx(fs):
            out = []
            for k, f in enumerate(fs):
                pre = [f"s_add_u32 s14, s13, {(f//4)*4096}"] if (k == 0 or f % 4 == 0) else []
                out.append((pre, self.wl(f).replace("s13 offen", "s14 offen")))
            return out
        def drain(lv):
            h = self.hook(f"s_cmp_lt_u32 s12, {lv}")
            a(h[1][1], h[0], h[1][0])
        a(f"s_cmp_ge_u32 s{sW}, 2", f"s_cselect_b32 s23, {U}, 0", f"s_cmp_le_u32 s{sNSS}, s23", f"s_cbranch_scc1 {name}_chain")
        a(".p2align 6")
        a.label(f"{name}_SS")
        a(self.period(1, ["", F], bar=12, hook=self.hook()))
        a(self.period(0, ["", F], tail_sc=[f"s_sub_u32 s{sNSS}, s{sNSS}, 1"]))
        a(f"s_cmp_gt_u32 s{sNSS}, {U}", f"s_cbranch_scc1 {name}_SS")
        a.label(f"{name}_chain")
        drain(2)
        a(f"s_cmp_eq_u32 s{sNSS}, {U}", f"s_cbranch_scc0 {name}_disp")
        t = Asm()
        t.label(f"{name}_disp")
        for k in range(U - 1, 0, -1): t(f"s_cmp_eq_u32 s{sNSS}, {k}", f"s_cbranch_scc1 {name}_SSW{k}")
        t(f"s_branch {name}_Bexit")
        self.tail += t.lines
        for k in range(U, 0, -1):
            a.label(f"{name}_SSW{k}")
            f0 = (U - k) * 6
            a(self.period(1, ["", F], bar=12, extra=wx(range(f0, f0 + 3))))
            a(self.period(0, ["", F], extra=wx(range(f0 + 3, f0 + 6))))
        a.label(f"{name}_Bexit")
        f0 = U * 6
        a(f"s_bitcmp1_b32 s{sW}, 0", f"s_cbranch_scc1 {name}_Bodd")
        a(self.period(1, ["", F], bar=0, dma=False, kread=False, extra=wx(range(f0, f0 + 6))))
        a(self.period(0, ["", "smv"], dma=False, kread=False, extra=wx(range(f0 + 6, f0 + 10))))
        a(self.period(1, ["", "v"], bar=10, dma=False, kread=False, extra=wx(range(f0 + 10, f0 + 12))))
        a(f"s_branch {name}_Bdone")
        a.label(f"{name}_Bodd")
        a(self.period(1, ["", "smv"], bar=0, dma=False, kread=False, extra=wx(range(f0, f0 + 7))))
        a(self.period(0, ["", "v"], dma=False, kread=False, extra=wx(range(f0 + 7, f0 + 12))))
        self.wx = wx
        a.label(f"{name}_Bdone")
        a(f"s_cmp_ge_u32 s{sW}, 2", f"s_cbranch_scc1 {name}_epi", "s_barrier")
        a.label(f"{name}_epi")
        stamp(a, 9)
        self.ctx_epi(a, 1, [64, 76, 128, 140])
        a(self.hook("s_cmp_lt_u32 s12, 3"))

    def ctx_epi(self, a, X, Ts):
        L = LS + 2 * X
        for sw in ("v_permlane16_swap_b32", "v_permlane32_swap_b32"):
            for k in range(2): a(f"v_mov_b32 v{vT+4+k}, v{L+k}")
            a("s_nop 1")
            for k in range(2): a(f"{sw} v{L+k}, v{vT+4+k}")
            for k in range(2): a(f"v_add_f32 v{L+k}, v{L+k}, v{vT+4+k}")
        for k in range(2): a(f"v_rcp_f32 v{vT+2*k}, v{L+k}")
        if X == 0: a(f"s_lshl_b32 s23, s{sI}, 2")
        else: a(f"s_sub_u32 s23, 15, s{sI}", "s_lshl_b32 s23, s23, 2")
        for k in range(2): a(f"v_mov_b32 v{vT+2*k+1}, v{vT+2*k}")
        a(f"s_add_u32 s23, s23, s{sW}", "s_lshl_b32 s23, s23, 18", f"s_lshl_b32 s31, s{sH}, 12",
          f"s_add_u32 s31, s31, {CTX}", f"s_add_u32 s{sXo}, s23, s31", f"s_add_u32 s{sXo+1}, s{sXo}, {1<<17}")
        k = 0
        for qb in range(2):
            for t in range(4):
                T = Ts[k % len(Ts)]; k += 1
                f = vT + 2 * qb
                for hh in range(2):
                    for r in range(4): a(f"v_accvgpr_read_b32 v{T+4+4*hh+r}, a{O+64*X+8*(2*t+hh)+4*qb+r}")
                for r in range(4): a(f"v_pk_mul_f32 {vr(T+4+2*r,2)}, {vr(T+4+2*r,2)}, {vr(f,2)}")
                for r in range(4): a(f"v_cvt_pk_bf16_f32 v{T+r}, v{T+4+2*r}, v{T+5+2*r}")
                a(f"buffer_store_dwordx4 {vr(T,4)}, v{vL16}, s[{sWS}:{sWS+3}], s{sXo+qb} offen offset:{t*1024}{SC}")

    WQ = ([ar(b, 4) for b in range(0, 64, 4)] + [ar(b, 4) for b in range(192, 256, 4)] + [vr(b, 4) for b in range(32, 64, 4)]
          + [vr(b, 4) for b in range(96, 128, 4)] + [vr(b, 4) for b in range(160, 176, 4)] + [vr(192, 4), vr(196, 4), vr(208, 4), vr(212, 4)]
          + [vr(b, 4) for b in range(232, 248, 4)]
          + [vr(b, 4) for b in range(64, 96, 4)] + [vr(b, 4) for b in range(128, 160, 4)] + [vr(b, 4) for b in range(176, 192, 4)])
    def wl(self, f):
        return f"buffer_load_dwordx4 {self.WQ[f % 80]}, v{vL16}, s[{sWS}:{sWS+3}], s13 offen offset:{(f%4)*1024}{SC}"
    WINC = "s_add_u32 s13, s13, 4096"

    def phase4(self):
        a = self.a; name = self.name
        RS = 336; PART = 38 * 1024
        assert len(self.WQ) == 80
        ACq = [ar(b, 4) for b in range(64, 144, 4)]
        CRq = [ar(b, 4) for b in range(144, 192, 4)] + [vr(b, 4) for b in range(216, 232, 4)]
        YQ = list(range(64, 96, 4)) + list(range(128, 160, 4)) + [176, 180]
        XQ = [32, 36, 40, 44, 48, 52]
        XF = [96, 104, 112]; OF = [120, 160, 168]
        vXo, vLa, vXn, vUp = 248, 251, 200, 203
        sX, sO = 44, 48
        sCo = 64
        sMT, sNG = sH, sI
        wl = self.wl; winc = self.WINC
        def cl(ks, qb): return f"buffer_load_dwordx4 {CRq[4*(ks%4)+qb]}, v{vL16}, s[{sWS}:{sWS+3}], s{sCo+qb} offen offset:{(ks%4)*1024}{SC}"
        cnext = [f"s_add_u32 s{sCo+qb}, s{sCo+qb}, 4096" for qb in range(4)]
        a("s_load_dwordx2 s[4:5], s[0:1], 0", "s_load_dwordx2 s[6:7], s[0:1], 88")
        a(f"v_mov_b32 v{vT+14}, {BIG}", f"v_mov_b32 v{vT+15}, 1", f"v_writelane_b32 v{vT+14}, s{sCFA}, 0", f"v_writelane_b32 v{vT+14}, s{sCFB}, 1",
          )
        a(f"s_lshl_b32 s{sCo}, s{sMT}, 19", f"s_lshl_b32 s23, s{sW}, 15", f"s_add_u32 s{sCo}, s{sCo}, s23", f"s_add_u32 s{sCo}, s{sCo}, {CTX}")
        for qb in range(1, 4): a(f"s_add_u32 s{sCo+qb}, s{sCo}, {qb<<17}")
        a(f"v_bfe_u32 v12, v{vL}, 3, 1", "v_lshlrev_b32 v12, 7, v12", f"v_and_b32 v13, 7, v{vL}", "v_lshl_add_u32 v12, v13, 2, v12",
          f"s_lshl_b32 s23, s{sMT}, 8", f"s_lshl_b32 s31, s{sW}, 5", "s_add_u32 s23, s23, s31", f"s_add_u32 s23, s23, {CF}", "v_add_u32 v12, s23, v12")
        a(f"s_lshl_b32 s25, s{sMT}, 6", f"s_mul_i32 s26, s{sNG}, 160", f"s_mul_i32 s27, s{sNG}, 2560")
        for k in range(3):
            a(f"v_add_u32 v{vT}, {256*k}, v0", f"v_mul_u32_u24 v{vT+1}, 6554, v{vT}", f"v_lshrrev_b32 v{vT+1}, 16, v{vT+1}",
              f"v_mul_u32_u24 v{vT+2}, 10, v{vT+1}", f"v_sub_u32 v{vT+2}, v{vT}, v{vT+2}",
              f"v_mul_u32_u24 v{vLa+k}, {RS}, v{vT+1}", f"v_lshl_add_u32 v{vLa+k}, v{vT+2}, 5, v{vLa+k}",
              f"v_lshlrev_b32 v{vUp+k}, 5, v{vT+2}",
              f"v_add_u32 v{vT+1}, s25, v{vT+1}", f"v_add_u32 v{vT+8+k}, 1, v{vT+1}",
              f"v_mul_u32_u24 v{vXo+k}, 1280, v{vT+1}", f"v_lshl_add_u32 v{vXo+k}, v{vT+2}, 4, v{vXo+k}", f"v_add_u32 v{vXo+k}, s26, v{vXo+k}",
              f"v_lshrrev_b32 v{vT+3}, 4, v{vT+1}", f"v_mul_u32_u24 v{vT+3}, 20480, v{vT+3}", f"v_and_b32 v{vT+1}, 15, v{vT+1}",
              f"v_lshl_add_u32 v{vT+3}, v{vT+1}, 4, v{vT+3}", f"v_lshl_add_u32 v{vXn+k}, v{vT+2}, 8, v{vT+3}",
              f"v_mov_b32 v{vT+11+k}, 8")
        a(f"v_cmp_gt_u32 vcc, 128, v0", f"v_mov_b32 v{vT}, {BIG}", f"v_mov_b32 v{vT+1}, 0",
          f"v_cndmask_b32 v{vXo+2}, v{vT}, v{vXo+2}, vcc", f"v_cndmask_b32 v{vXn+2}, v{vT}, v{vXn+2}, vcc",
          f"v_cndmask_b32 v{vLa+2}, v{vT+1}, v{vLa+2}, vcc")
        for i in range(4): a(f"v_mov_b32 v{vT+4+i}, 0")
        a(f"v_add_u32 v{vT}, {UPD+2560}, v{vL16}", f"ds_write_b128 v{vT}, {vr(vT+4,4)}", "s_cmp_lt_u32 s12, 3", "s_waitcnt vmcnt(18) lgkmcnt(0)",
          f"s_cbranch_scc1 {name}_pub", "s_waitcnt vmcnt(0)", f"{name}_pub:",
          f"buffer_store_dword v{vT+15}, v{vT+14}, s[{sWS}:{sWS+3}], 0 offen{SC}")
        stamp(a, 10)
        a(self.hook("s_cmp_lt_u32 s12, 3"))
        a(f"s_cmp_lt_u32 s{sNSS}, {self.U}", f"s_cbranch_scc1 {name}_left")
        a.label(f"{name}_leftb")
        t = Asm()
        t.label(f"{name}_left")
        for k in range(self.U, 0, -1):
            if k < self.U: t(f"s_cmp_ge_u32 s{sNSS}, {k}", f"s_cbranch_scc1 {name}_leftb")
            for (pre, l) in self.wx(range((self.U - k) * 6, (self.U - k) * 6 + 6)): t(pre, l)
        t(f"s_branch {name}_leftb")
        self.tail += t.lines
        a(f"s_add_u32 s13, s13, {60*1024}")
        for f in range(60, 80):
            a(wl(f))
            if f % 4 == 3: a(winc)
        NL = int(os.environ.get("NL", "36")); F0 = 160 - NL
        a("s_barrier", f"s_add_u32 s14, s13, {(F0-80)*1024}", f"s_mul_i32 s23, s{sW}, {38*1024}", f"v_add_u32 v11, s23, v{vL16}")
        for q in range(NL):
            if q % 4 == 0: a(f"s_add_u32 m0, s23, {q*1024}", "s_nop 0")
            a(f"buffer_load_dwordx4 v{vL16}, s[{sWS}:{sWS+3}], s14 offen offset:{(q%4)*1024}{SC} lds")
            if q % 4 == 3: a("s_add_u32 s14, s14, 4096")
            if q == NL - 13: a(f"buffer_load_dword v13, v12, s[{sWS}:{sWS+3}], 0 offen{SC}")
        srd(a, sX, "s4", "s5", 2048 * 1280); srd(a, sO, "s6", "s7", 2048 * 1280)
        for k in range(8): a(f"v_readlane_b32 s{68+k}, v15, {k}")
        for k in range(8):
            for t in range(3): a(f"v_cmp_eq_u32 s[{52+2*t}:{53+2*t}], s{68+k}, v{vT+8+t}")
            for t in range(3): a(f"v_cndmask_b32 v{vT+11+t}, v{vT+11+t}, {k}, s[{52+2*t}:{53+2*t}]")
        for t in range(3): a(f"v_mul_u32_u24 v{vT+11+t}, 320, v{vT+11+t}", f"v_add_u32 v{vUp+t}, v{vUp+t}, v{vT+11+t}")
        for t in range(3): a(f"v_add_u32 v{vUp+t}, {UPD}, v{vUp+t}")
        a("s_waitcnt vmcnt(12)")
        a(stampv(20))
        self.poll_check(a, "ctx", 13, 12, sWS, ["v_cmp_eq_u32 vcc, 0, v13"])
        a(stampv(21))
        for ks in range(4): a([cl(ks, qb) for qb in range(4)])
        a(cnext, "s_waitcnt vmcnt(12)")
        a(stampv(22))
        vm = VM()
        for ks in range(4): vm.issue(f"C{ks}", 4)
        lnext = F0; WSP = int(os.environ.get("WSP", "20"))
        fnext = 80
        for ks in range(32):
            mf = [f"{MF} {ACq[cb*4+qb]}, {self.WQ[(ks*5+cb) % 80]}, {CRq[4*(ks%4)+qb]}, {ACq[cb*4+qb] if ks else 0}" for cb in range(5) for qb in range(4)]
            sc = {g: [] for g in range(20)}; mem = {g: [] for g in range(20)}; va = {g: [] for g in range(20)}
            quota = 80 + ((ks + 1) * (F0 - 80) + WSP - 1) // WSP
            for g in (3, 7, 11):
                if fnext < min(F0, quota) and fnext - 80 <= ks * 5 + g // 4:
                    mem[g].append(wl(fnext)); vm.issue(f"W{fnext // 5}")
                    if fnext % 4 == 3: sc[g+1].append(winc)
                    fnext += 1
            for g in (1, 5, 9, 13):
                if lnext < 160 and lnext - 80 < ks * 5:
                    mem[g].append(f"ds_read_b128 {self.WQ[lnext % 80]}, v11 offset:{(lnext-F0)*1024}"); lnext += 1
            if ks + 4 < 32:
                for qb in range(4): mem[16+qb].append(cl(ks, qb))
                vm.issue(f"C{ks+4}", 4)
                if ks % 4 == 0 and ks > 0:
                    for q, x in enumerate(cnext): sc[[0, 1, 2, 6][q]].append(x)
            if ks == 24:
                for k in range(3):
                    mem[3+4*k].append(f"buffer_load_dwordx4 {vr(XQ[k],4)}, v{vXo+k}, s[{sX}:{sX+3}], 0 offen")
                    mem[5+4*k].append(f"buffer_load_dwordx4 {vr(XQ[3+k],4)}, v{vXn+k}, s[{sWS}:{sWS+3}], s27 offen{SC}")
                vm.ops = vm.ops[:-4] + ["x"] * 6 + vm.ops[-4:]
            if ks == 27:
                for k in range(3):
                    for hh in range(2): mem[1+4*k+2*hh].append(f"ds_read_b128 {vr(OF[k]+4*hh,4)}, v{vUp+k} offset:{16*hh}")
                sc[18].append("s_waitcnt lgkmcnt(0)")
                va[14] += [f"v_and_b32 v{vT}, 15, v{vL}", f"v_mul_u32_u24 v{vT}, {RS}, v{vT}"]
                va[15] += [f"v_lshrrev_b32 v{vT+1}, 4, v{vL}", f"v_lshl_add_u32 v{vT}, v{vT+1}, 4, v{vT}"]
                sc[14].append(f"s_mul_i32 s23, s{sW}, {PART}")
                va[16] += [f"v_add_u32 v{vT}, s23, v{vT}"]
                for k in range(3): va[2+4*k].append(f"v_add_u32 v{vT+4+k}, {2*PART}, v{vLa+k}")
            if 28 <= ks < 31:
                k = ks - 28
                ops = []
                for e in range(4):
                    x = XQ[k] + e; xn = XQ[3+k] + e; o = OF[k] + 2 * e; t0, t1 = vT + 2, vT + 3
                    ops += [f"v_lshlrev_b32 v{t0}, 16, v{xn}", f"v_and_b32 v{t1}, 0xffff0000, v{xn}",
                            f"v_add_f32 v{o}, v{o}, v{t0}", f"v_add_f32 v{o+1}, v{o+1}, v{t1}",
                            f"v_cvt_pk_bf16_f32 v{t0}, v{o}, v{o+1}",
                            f"v_lshlrev_b32 v{XF[k]+2*e}, 16, v{x}", f"v_and_b32 v{XF[k]+2*e+1}, 0xffff0000, v{x}",
                            f"v_lshlrev_b32 v{o}, 16, v{t0}", f"v_and_b32 v{o+1}, 0xffff0000, v{t0}"]
                for q, x in enumerate(ops): va[q // 2].append(x)
            if ks == 31:
                for q in range(11): mem[q+9].append(f"ds_write_b128 v{vT}, {ACq[q]} offset:{(q%4)*16*RS+(q//4)*64}")
            if ks < 31:
                need = [f"C{ks+1}"] + ([f"W{ks+1}"] if (ks + 1 >= 16 and (ks + 1) * 5 < F0) else [])
                if ks + 1 >= 16: assert fnext >= min(F0, (ks + 2) * 5)
                lg = ""
                if (ks + 2) * 5 > F0 and (ks + 1) * 5 <= F0:
                    assert lnext == 160; lg = " lgkmcnt(0)"
                va[19].append(f"s_waitcnt vmcnt({vm.need(*need)}){lg}")
            a(weave(mf, sc, mem, va))
        assert fnext == F0 and lnext == 160
        a(stampv(23))
        for q in range(11, 20): a(f"ds_write_b128 v{vT}, {ACq[q]} offset:{(q%4)*16*RS+(q//4)*64}")
        a("s_waitcnt lgkmcnt(0)", "s_barrier")
        PVb = [32, 64, 128]
        for k in range(3):
            for p in range(4):
                for hh in range(2):
                    a(f"ds_read_b128 {vr(PVb[k]+8*p+4*hh,4)}, v{vLa+k if p < 2 else vT+4+k} offset:{(p%2)*PART+16*hh}")
        for k in range(3):
            a(f"s_waitcnt lgkmcnt({[15, 8, 0][k]})")
            b = PVb[k]
            for e in range(0, 8, 2):
                a(f"v_pk_add_f32 {vr(b+e,2)}, {vr(b+e,2)}, {vr(b+8+e,2)}", f"v_pk_add_f32 {vr(b+16+e,2)}, {vr(b+16+e,2)}, {vr(b+24+e,2)}")
            for e in range(0, 8, 2): a(f"v_pk_add_f32 {vr(b+e,2)}, {vr(b+e,2)}, {vr(b+16+e,2)}")
            for src in (XF[k], OF[k]):
                for e in range(4): a(f"v_cvt_pk_bf16_f32 v{b+8+e}, v{b+2*e}, v{b+2*e+1}")
                for e in range(4): a(f"v_lshlrev_b32 v{b+2*e}, 16, v{b+8+e}", f"v_and_b32 v{b+2*e+1}, 0xffff0000, v{b+8+e}")
                for e in range(4): a(f"v_pk_add_f32 {vr(b+2*e,2)}, {vr(b+2*e,2)}, {vr(src+2*e,2)}")
            for e in range(4): a(f"v_cvt_pk_bf16_f32 v{b+12+e}, v{b+2*e}, v{b+2*e+1}")
            a(f"buffer_store_dwordx4 {vr(b+12,4)}, v{vXo+k}, s[{sO}:{sO+3}], 0 offen")

    def gen(self, with_p4=True):
        a = self.a; name = self.name
        self.tail = []; self.p4 = with_p4; self.nhook = 0
        self.phase1()
        self.phase2()
        self.phase3()
        if with_p4: self.phase4()
        stamp_flush(a, 0, sW, sWS)
        a.label(f"{name}_end")
        a("s_endpgm")
        a(self.tail)
        for (k, ss, par) in self.stubs:
            a.label(f"{name}_stub{k}")
            for X in ss: a(f"s_call_b64 s[{sRet}:{sRet+1}], {name}_rare{X}{par}")
            a(f"s_branch {name}_back{k}")
        a.label(f"{name}_codeend")
        for X in range(2):
            for par in range(2): self.rare(X, par)
            self.resc(X)
        return a
```

```python
import os
from asmlib import *
from gen_k1 import XNF, RKEY, SEL, YP, WOF, KFO, VFO, CTX, WS_BYTES, MF, srd, bf16r, stamp, stampc, stamp_init, stamp_flush

LDS = 131072
vL, vL16, vKV, vNI, vX = 1, 2, 3, 4, 5
vWo = 8
vWa = 12
vT = 16
Q = 32
S = 96
P = 160
NM = 192
E = 208
TS = 224
LS = 228
QACC = 96
O = 0
KF = 128
VF = 160
XR = 192
sW, sH, sI = 20, 21, 22
sWq, sXn, sWS, sK, sV = 32, 36, 40, 44, 48
sKm, sVm, sKo, sVo, sCnt, sNSS = 24, 25, 26, 27, 28, 29
sXo = 64
sMask = 68
sRet, sRet2 = 76, 78
sThr = 81

def xreduce(a, op, v, t):
    a(f"v_mov_b32 v{t}, v{v}", "s_nop 1", f"v_permlane16_swap_b32 v{v}, v{t}", f"{op} v{v}, v{v}, v{t}",
      f"v_mov_b32 v{t}, v{v}", "s_nop 1", f"v_permlane32_swap_b32 v{v}, v{t}", f"{op} v{v}, v{v}, v{t}")

def mask_ops(X, par):
    Sc = S + 32 * X + 16 * par
    o = []
    for r in range(4):
        o.append(f"v_cndmask_b32 v{Sc+r}, v{vNI}, v{Sc+r}, s[{sMask+2*r}:{sMask+2*r+1}]")
    for r in range(4):
        o.append(f"v_mov_b32 v{Sc+4+r}, v{vNI}")
    for r in range(4):
        o.append(f"v_cndmask_b32 v{Sc+12+r}, v{vNI}, v{Sc+12+r}, s[{sMask+2*r}:{sMask+2*r+1}]")
    return o

def sm_ops(X, par):
    Sc = S + 32 * X + 16 * par; Pc = P + 16 * X + 8 * par; e = E + 8 * X
    exps = [f"v_exp_f32 v{e+(i%8)}, v{Sc+i}" for i in range(16)]
    pl = []
    for i in range(16):
        t = TS + 2 * X + i // 8
        aa = e + ((i - 1) % 8); bb = e + (i % 8)
        if i % 8 == 1: pl.append((i, f"v_add_f32 v{t}, v{aa}, v{bb}"))
        elif i % 8 > 1: pl.append((i, f"v_add_f32 v{t}, v{t}, v{bb}"))
        if i % 2 == 1: pl.append((i, f"v_cvt_pk_bf16_f32 v{Pc+i//2}, v{aa}, v{bb}"))
    return exps, pl

class K2:
    SC = ''
    def __init__(self, name):
        self.name = name
        self.a = Asm()
        self.stubs = []
        self.nstub = 0

    def period(self, par, st, dma=True, bar=None, kread=True, c0=False, tail_sc=None, hook=None, extra=None, dgaps=None, egaps=None):
        odd = par == 1
        qs = [X for X in range(2) if "q" in st[X]]
        vs = [X for X in range(2) if "v" in st[X]]
        ss = [X for X in range(2) if "s" in st[X]]
        mf = []; use = []
        for f in range(8):
            ks, kb = f // 2, f % 2
            for X in qs:
                for qb in range(2):
                    d = S + 32 * X + 16 * (1 - par) + qb * 8 + kb * 4
                    c = vr(d, 4) if ks > 0 else ("0" if c0 else vr(NM + 8 * X + 4 * qb, 4))
                    mf.append(f"{MF} {vr(d,4)}, {ar(KF+4*f,4)}, {vr(Q+32*X+8*ks+4*qb,4)}, {c}"); use.append(("K", f))
        nq = len(mf)
        for db in range(8):
            for X in vs:
                for qb in range(2):
                    d = O + 64 * X + 8 * db + 4 * qb
                    mf.append(f"{MF} {ar(d,4)}, {ar(VF+4*db,4)}, {vr(P+16*X+8*(1-par)+4*qb,4)}, {ar(d,4)}"); use.append(("V", db))
        n = len(mf); nv = n - nq
        hoff = 0 if odd else 8192
        vrd = [f"ds_read_b128 {ar(VF+4*i,4)}, v{vKV} offset:{16384+hoff+i*1024}" for i in range(8)] if vs else []
        krd = [f"ds_read_b128 {ar(KF+4*i,4)}, v{vKV} offset:{hoff+i*1024}" for i in range(8)] if kread else []
        pre = []
        sc = {g: [] for g in range(n)}; mem = {g: [] for g in range(n)}; va = {g: [] for g in range(n)}
        first = 0
        if bar is not None:
            if nq > 0:
                sc[0].append(f"s_waitcnt vmcnt({bar})"); sc[1].append("s_barrier"); first = 2
            else:
                pre += [f"s_waitcnt vmcnt({bar})", "s_barrier"]
        if hook:
            sc[2].append(hook[0]); sc[3] += hook[1]
        vpos = {}; kpos = {}
        if vrd:
            if nq == 0:
                pre += vrd
                for i in range(8): vpos[i] = -1
            else:
                step = nq // 8
                for i in range(8):
                    g = max(first, i * step)
                    if step == 2 and first == 2: g = [2, 2, 4, 6, 8, 10, 12, 14][i]
                    mem[g].append(vrd[i]); vpos[i] = g
        if krd:
            if nv > 0:
                step = nv // 8
                for i in range(8):
                    g = nq + i * step
                    mem[g].append(krd[i]); kpos[i] = g
            else:
                step = nq // 8
                for i in range(8):
                    g = (i + 1) * step - 1
                    mem[g].append(krd[i]); kpos[i] = g
        if dma:
            srdn = sK if odd else sV; so = sKo if odd else sVo; sm = sKm if odd else sVm
            step = n // 4
            base = 6 if step >= 12 else 4
            gs = [base + j * step for j in range(4)]
            if n == 32: gs = [4, 10, 18, 24]
            if dgaps: gs = dgaps
            sc[gs[0] - 1].append(f"s_mov_b32 m0, s{sm}")
            for j in range(4):
                mem[gs[j]].append(f"buffer_load_dwordx4 v{vL16}, s[{srdn}:{srdn+3}], s{so} offen offset:{j*1024}{self.SC} lds")
            post = [f"s_add_u32 s{so}, s{so}, 16384", f"s_add_u32 s{sm}, s{sm}, 32768", f"s_and_b32 s{sm}, s{sm}, 0x1ffff"]
            for j, x in enumerate(post): sc[gs[3] + 1 + j].append(x)
        if extra:
            ne = len(extra)
            if n == 32 and ne == 3 and dma: eg = [7, 14, 21]
            else: eg = [first + 1 + (k * (n - 2 - first)) // ne for k in range(ne)]
            if egaps: eg = egaps
            for g, (xs, xl) in zip(eg, extra):
                sc[g - 1 if egaps else g] += xs
                mem[g].append(xl)
        head = []
        for X in ss:
            if "m" in st[X]: head += mask_ops(X, par)
        exps = []; pl = []
        for X in ss:
            e, p = sm_ops(X, par)
            off = len(exps)
            exps += e; pl += [(i + off, l) for i, l in p]
        pl = [(-1, l) for l in head] + pl
        nhead = len(head)
        if ss:
            ts = [TS + 2 * X + qb for X in ss for qb in range(2)]
            last = len(exps) - 1
            if len(ts) == 2:
                pl.append((last, f"v_max_f32 v{vX}, v{ts[0]}, v{ts[1]}"))
            else:
                pl.insert(len(pl) - 6, (last - 4, f"v_max3_f32 v{vX}, v{ts[0]}, v{ts[1]}, v{ts[2]}"))
                pl.append((last, f"v_max_f32 v{vX}, v{vX}, v{ts[3]}"))
            pl.append((last, f"v_cmp_lt_f32 vcc, s{sThr}, v{vX}"))
        kvupd = []
        if not odd:
            kvupd = [f"v_add_u32 v{vKV}, 32768, v{vKV}", f"v_and_b32 v{vKV}, 0x1ffff, v{vKV}"]
        ng = n - 1
        if nq == 0 and ss:
            ng += 1
        memcost = [4 * len(mem[g]) for g in range(n)]
        total = sum(memcost[:n-1]) + 8 * len(exps) + 4 * len(pl)
        ei = 0; pi = 0; used = 0
        exp_gap = {}
        def ready_pl(g, lastline_is_exp):
            if pi >= len(pl): return False
            need = pl[pi][0]
            if need >= ei: return False
            if need == ei - 1 and lastline_is_exp: return False
            return True
        def ready_exp():
            if ei >= len(exps): return False
            if pi < nhead: return False
            for k in range(pi, len(pl)):
                if pl[k][0] <= ei - 7 and pl[k][0] >= 0 and (pl[k][0] // 16 == ei // 16): return False
                if pl[k][0] > ei - 7: break
            return True
        slots = ([-1] if (nq == 0 and ss) else []) + list(range(n - 1))
        tau = max(8.0, total / max(1, n - 1)) if not (nq == 0 and ss) else max(8.0, (total - 120) / max(1, n - 1))
        target = 0.0
        for g in slots:
            lst = pre if g < 0 else va[g]
            target += 120 if g < 0 else tau
            c = 0 if g < 0 else memcost[g]
            used += c
            le = False
            lastgap = (g == n - 2)
            while True:
                rem = target - used
                if not lastgap and rem < 2 and c >= 8: break
                if not lastgap and c > 0 and rem < 2: break
                pickexp = ready_exp() and (c == 0 or not ready_pl(g, le) or (rem >= 7 and (len(exps) - ei) * 2 > (n - 1 - g)))
                if pickexp:
                    lst.append(exps[ei]); ei += 1; used += 8; c += 8; le = True
                elif ready_pl(g, le):
                    lst.append(pl[pi][1]); pi += 1; used += 4; c += 4; le = False
                elif lastgap and pi < len(pl) and le:
                    lst.append("s_nop 0"); le = False
                else: break
        assert ei == len(exps) and pi == len(pl), (ei, pi, len(exps), len(pl), st)
        order = [("K", f, -2) for f in range(4, 8)]
        evs = []
        for i in range(8):
            if i in vpos: evs.append((vpos[i], 0, "V", i))
        for i in range(8):
            if i in kpos: evs.append((kpos[i], 1, "N", i))
        evs.sort()
        allops = order + [(k, i, g) for (g, _, k, i) in evs]
        def cnt_after(kind, idx, gap):
            pos = [j for j, o in enumerate(allops) if o[0] == kind and o[1] == idx][0]
            assert allops[pos][2] < gap, (kind, idx, gap, st)
            return sum(1 for o in allops[pos+1:] if o[2] < gap)
        seen = set()
        for m, u in enumerate(use):
            if u in seen: continue
            seen.add(u)
            kind, f = u
            if f % 4 != 0: continue
            if kind == "K" and f == 0: continue
            if m == 0:
                pre.append(f"s_waitcnt lgkmcnt({cnt_after(kind, f+3, 0)})")
            else:
                sc[m-1].append(f"s_waitcnt lgkmcnt({cnt_after(kind, f+3, m-1)})")
        if krd:
            g = n - 2 if nv > 0 else n - 1
            sc[g].append(f"s_waitcnt lgkmcnt({cnt_after('N', 3, g)})")
        if tail_sc:
            free = [g for g in range(n // 2, n - 2) if not sc[g]]
            for x, g in zip(tail_sc, free[-len(tail_sc):]): sc[g].append(x)
        if ss:
            k = self.nstub; self.nstub += 1
            sc[n-1].append(f"s_cbranch_vccnz {self.name}_stub{k}")
            sc[n-1].append(f"{self.name}_back{k}:")
            self.stubs.append((k, ss, par))
            for X in ss:
                for qb in range(2):
                    va[n-1].append(f"v_add_f32 v{LS+2*X+qb}, v{LS+2*X+qb}, v{TS+2*X+qb}")
        va[n-1] += kvupd
        return pre + weave(mf, sc, mem, va)

    def rare(self, X, par):
        a = self.a
        Sc = S + 32 * X + 16 * par; Sn = S + 32 * X + 16 * (1 - par)
        a.label(f"{self.name}_rare{X}{par}")
        a("s_nop 7")
        d = [vT, vT + 1]
        for qb in range(2):
            s0 = Sc + 8 * qb
            a(f"v_max3_f32 v{d[qb]}, v{s0}, v{s0+1}, v{s0+2}", f"v_max3_f32 v{d[qb]}, v{d[qb]}, v{s0+3}, v{s0+4}",
              f"v_max3_f32 v{d[qb]}, v{d[qb]}, v{s0+5}, v{s0+6}", f"v_max3_f32 v{d[qb]}, v{d[qb]}, v{s0+7}, 0")
            xreduce(a, "v_max_f32", d[qb], vT + 2)
            for r in range(8):
                a(f"v_sub_f32 v{s0+r}, v{s0+r}, v{d[qb]}", f"v_sub_f32 v{Sn+8*qb+r}, v{Sn+8*qb+r}, v{d[qb]}")
        a(f"s_call_b64 s[{sRet2}:{sRet2+1}], {self.name}_resc{X}")
        exps, pl = sm_ops(X, par)
        pi = 0
        for i in range(16):
            a(exps[i])
            while pi < len(pl) and pl[pi][0] < i:
                a(pl[pi][1]); pi += 1
        a("s_nop 0")
        a([l for _, l in pl[pi:]])
        a("s_nop 1", f"s_setpc_b64 s[{sRet}:{sRet+1}]")

    def resc(self, X):
        a = self.a
        a.label(f"{self.name}_resc{X}")
        for qb in range(2):
            for r in range(4):
                a(f"v_sub_f32 v{NM+8*X+4*qb+r}, v{NM+8*X+4*qb+r}, v{vT+qb}")
            a(f"v_exp_f32 v{vT+2+qb}, -v{vT+qb}")
        a("s_nop 0")
        for qb in range(2):
            a(f"v_mul_f32 v{LS+2*X+qb}, v{LS+2*X+qb}, v{vT+2+qb}")
        for db in range(8):
            for qb in range(2):
                o = O + 64 * X + 8 * db + 4 * qb
                for r in range(4): a(f"v_accvgpr_read_b32 v{vT+4+r}, a{o+r}")
                for r in range(4): a(f"v_mul_f32 v{vT+4+r}, v{vT+4+r}, v{vT+2+qb}")
                for r in range(4): a(f"v_accvgpr_write_b32 a{o+r}, v{vT+4+r}")
        a(f"s_setpc_b64 s[{sRet2}:{sRet2+1}]")

    def gen(self):
        a = self.a; name = self.name
        a("s_cmp_ge_u32 s2, 256", f"s_cbranch_scc1 {name}_end")
        stamp_init(a)
        a("s_load_dwordx2 s[4:5], s[0:1], 16", "s_load_dwordx2 s[16:17], s[0:1], 104")
        a(f"v_lshrrev_b32 v{vT}, 6, v0", f"v_and_b32 v{vL}, 63, v0", f"v_readfirstlane_b32 s{sW}, v{vT}")
        a(f"s_and_b32 s{sH}, s2, 7", f"s_lshl_b32 s{sH}, s{sH}, 2", "s_lshr_b32 s23, s2, 3", "s_and_b32 s23, s23, 3",
          f"s_add_u32 s{sH}, s{sH}, s23", f"s_lshr_b32 s{sI}, s2, 5")
        a(f"v_lshlrev_b32 v{vL16}, 4, v{vL}")
        a(f"v_bfe_u32 v{vT}, v{vL}, 2, 2", f"v_lshrrev_b32 v{vT+1}, 4, v{vL}", f"v_lshlrev_b32 v{vT+1}, 6, v{vT+1}",
          f"v_lshl_add_u32 v{vT}, v{vT}, 13, v{vT+1}", f"s_lshl_b32 s23, s{sW}, 17", f"v_add_u32 v{vT}, s23, v{vT}",
          f"v_and_b32 v{vT+2}, 3, v{vL}",
          f"v_lshl_add_u32 v{vWo}, v{vT+2}, 4, v{vT}", f"v_xor_b32 v{vT+2}, 2, v{vT+2}",
          f"v_lshl_add_u32 v{vWo+2}, v{vT+2}, 4, v{vT}",
          f"v_add_u32 v{vWo+1}, {32768-1024}, v{vWo}", f"v_add_u32 v{vWo+3}, {3*(32768-1024)}, v{vWo+2}",
          f"v_add_u32 v{vWo+2}, {2*(32768-1024)}, v{vWo+2}")
        a(f"s_lshl_b32 s23, s{sI}, 2", f"s_add_u32 s23, s23, s{sW}", f"s_mul_i32 s{sXo}, s23, {2*20480}",
          f"s_add_u32 s{sXo+1}, s{sXo}, 20480",
          f"s_sub_u32 s30, 15, s{sI}", "s_lshl_b32 s23, s30, 2", f"s_add_u32 s23, s23, s{sW}", f"s_mul_i32 s{sXo+2}, s23, {2*20480}",
          f"s_add_u32 s{sXo+3}, s{sXo+2}, 20480")
        a("s_waitcnt lgkmcnt(0)")
        a(f"s_lshl_b32 s23, s{sH}, 8", "s_add_u32 s4, s4, s23", "s_addc_u32 s5, s5, 0")
        srd(a, sWq, "s4", "s5", 0)
        a(f"s_sub_u32 s{sWq+2}, {640*8192}, s23")
        srd(a, sXn, "s16", "s17", 2048 * 1280)
        srd(a, sWS, "s16", "s17", WS_BYTES)
        a(f"s_lshl_b32 s{sKm}, s{sW}, 12", f"s_add_u32 s{sKm}, s{sKm}, 16384", f"s_mov_b32 s{sKo}, 0")
        def wdma():
            pre = [f"s_mov_b32 m0, s{sKm}"]
            l = [f"buffer_load_dwordx4 v{vWo+j}, s[{sWq}:{sWq+3}], s{sKo} offen offset:{j*1024} lds" for j in range(4)]
            post = [f"s_add_u32 s{sKo}, s{sKo}, {64*8192}", f"s_add_u32 s{sKm}, s{sKm}, 32768", f"s_and_b32 s{sKm}, s{sKm}, 0x1ffff"]
            return pre, l, post
        def xload(slot, qb):
            return f"buffer_load_dwordx4 {ar(XR+16*slot+4*qb,4)}, v{vL16}, s[{sXn}:{sXn+3}], s{sXo+qb} offen offset:{slot*1024}"
        for tok in ("W", "X0", "W", "X1", "X2", "W", "X3", "W"):
            if tok == "W":
                pre, l, post = wdma(); a(pre, "s_nop 0", l, post)
            else:
                a([xload(int(tok[1]), qb) for qb in range(4)])
        for qb in range(4): a(f"s_add_u32 s{sXo+qb}, s{sXo+qb}, 4096")
        a(f"s_lshl_b32 s23, s{sH}, 19", f"s_add_u32 s23, s23, {KFO}", "s_add_u32 s6, s16, s23", "s_addc_u32 s7, s17, 0",
          f"s_add_u32 s8, s6, {VFO-KFO}", "s_addc_u32 s9, s7, 0",
          f"s_sub_u32 s23, 16, s{sI}", "s_lshl_b32 s23, s23, 15")
        srd(a, sK, "s6", "s7", "s23")
        srd(a, sV, "s8", "s9", "s23")
        for i in range(4): a(f"v_mov_b32 v{vT+4+i}, 0")
        a(f"v_bfe_u32 v{vT+2}, v{vL}, 2, 2", f"v_lshlrev_b32 v{vT+2}, 6, v{vT+2}", f"v_lshrrev_b32 v{vT+1}, 4, v{vL}",
          f"v_lshl_add_u32 v{vT+2}, v{vT+1}, 11, v{vT+2}",
          f"v_and_b32 v{vT+3}, 1, v{vL}", f"v_lshl_add_u32 v{vT+2}, v{vT+3}, 3, v{vT+2}",
          f"v_bfe_u32 v{vT+3}, v{vL}, 1, 1", f"v_and_b32 v{vT}, 1, v{vT+1}", f"v_lshl_or_b32 v{vT+3}, v{vT}, 1, v{vT+3}",
          f"v_add_u32 v{vT+2}, 16384, v{vT+2}", f"v_lshl_add_u32 v{vWa}, v{vT+3}, 4, v{vT+2}", f"v_xor_b32 v{vWa+1}, 32, v{vWa}")
        for i in range(8):
            a(f"v_mfma_f32_32x32x16_bf16 {vr(QACC+16*i,16)}, {vr(vT+4,4)}, {vr(vT+4,4)}, 0")
        for i in range(8):
            a(f"v_mfma_f32_32x32x16_bf16 {ar(O+16*i,16)}, {vr(vT+4,4)}, {vr(vT+4,4)}, 0")
        a(f"v_and_b32 v{vT}, 15, v{vL}", f"v_lshlrev_b32 v{vT+1}, 2, v{vT+1}", f"v_sub_u32 v{vT}, v{vT}, v{vT+1}")
        for r in range(4): a(f"v_cmp_le_i32 s[{sMask+2*r}:{sMask+2*r+1}], {r}, v{vT}")
        a(f"v_mov_b32 v{vNI}, 0xff800000", f"s_mov_b32 s{sThr}, 0x47800000")
        for i in range(4): a(f"v_mov_b32 v{LS+i}, 0")
        def wreads(buf, off):
            return [f"ds_read_b64_tr_b16 {vr(Q+32*buf+4*cb+2*t,2)}, v{vWa+(cb&1)} offset:{off + t*1024 + (cb>>1)*256}" for cb in range(8) for t in range(2)]
        stamp(a, 1)
        a("s_waitcnt vmcnt(24)", "s_barrier")
        stamp(a, 2)
        if os.environ.get("CYC") == "q": stampc(a, 12)
        a(wreads(0, 0), f"s_mov_b32 s{sCnt}, 0", "s_waitcnt lgkmcnt(0)")
        a(".p2align 6")
        a.label(f"{name}_qloop")
        for ks in range(4):
            buf = ks & 1
            mf = [f"{MF} {vr(QACC+(db*4+qb)*4,4)}, {vr(Q+32*buf+4*db,4)}, {ar(XR+16*ks+4*qb,4)}, {vr(QACC+(db*4+qb)*4,4)}" for qb in range(4) for db in range(8)]
            sc = {g: [] for g in range(32)}; mem = {g: [] for g in range(32)}; va = {g: [] for g in range(32)}
            off = [8192, 32768, 32768 + 8192, 0][ks]
            rd = wreads(1 - buf, off)
            pos = [1, 2, 3, 4, 5, 6, 8, 9, 10, 12, 13, 14, 16, 17, 18, 20]
            if ks & 1: sc[0].append("s_barrier")
            for p_, x in zip(pos, rd): mem[p_].append(x)
            for qb in range(4): mem[8*qb+7].append(xload(ks, qb))
            if ks & 1:
                pre, l, post = wdma()
                sc[10] += pre
                for j, g in enumerate([11, 19, 22, 27]): mem[g].append(l[j])
                for j, x in enumerate(post): sc[28 + j if j < 2 else 27].append(x) if False else None
                sc[28].append(post[0]); sc[29].append(post[1]); sc[30].append(post[2])
            if ks == 2:
                va[24].append(f"v_xor_b32 v{vWa}, 0x10000, v{vWa}")
                va[25].append(f"v_xor_b32 v{vWa+1}, 0x10000, v{vWa+1}")
                sc[24].append(f"s_add_u32 s{sCnt}, s{sCnt}, 1")
            w = f"s_waitcnt vmcnt({15 if (ks+1) & 1 else 19}) lgkmcnt(0)"
            sc[31].append(w)
            if ks == 3:
                for qb in range(3): sc[8*qb+8].append(f"s_add_u32 s{sXo+qb}, s{sXo+qb}, 4096")
                va[31] += [f"s_add_u32 s{sXo+3}, s{sXo+3}, 4096", f"s_cmp_ge_u32 s{sCnt}, 4", f"s_cselect_b32 s{sXn+2}, 0, s{sXn+2}",
                           f"s_cmp_lt_u32 s{sCnt}, 5", f"s_cbranch_scc1 {name}_qloop"]
            a(weave(mf, sc, mem, va))
        a("s_waitcnt vmcnt(0)", "s_barrier")
        stamp(a, 3)
        if os.environ.get("CYC") == "q": stampc(a, 13)
        a(f"s_and_b32 s23, s{sW}, 1", "s_lshl_b32 s23, s23, 12", f"s_cmp_lt_u32 s{sW}, 2", f"s_cselect_b32 s{sKm}, {131072-24576}, 0",
          f"s_add_u32 s{sKm}, s{sKm}, s23", f"s_lshl_b32 s{sKo}, s{sW}, 12", f"s_mov_b32 s{sVo}, s{sKo}",
          f"s_add_u32 s{sVm}, s{sKo}, {32768+16384}")
        for (srdn, so, sm) in [(sK, sKo, sKm)] * 3 + [(sV, sVo, sVm)] * 2:
            a(f"s_mov_b32 m0, s{sm}", "s_nop 0")
            a([f"buffer_load_dwordx4 v{vL16}, s[{srdn}:{srdn+3}], s{so} offen offset:{j*1024} lds" for j in range(4)])
            a(f"s_add_u32 s{so}, s{so}, 16384", f"s_add_u32 s{sm}, s{sm}, 32768", f"s_and_b32 s{sm}, s{sm}, 0x1ffff")
        a(f"v_mov_b32 v{vT}, 0x3e0293ee", f"v_mov_b32 v{vT+1}, 0x3e0293ee")
        for X in range(2):
            for ks in range(4):
                for qb in range(2):
                    d = Q + 32 * X + 8 * ks + 4 * qb
                    for hh in range(2):
                        s0 = QACC + ((2 * ks + hh) * 4 + 2 * X + qb) * 4
                        a(f"v_pk_mul_f32 {vr(s0,2)}, {vr(s0,2)}, {vr(vT,2)}", f"v_pk_mul_f32 {vr(s0+2,2)}, {vr(s0+2,2)}, {vr(vT,2)}",
                          f"v_cvt_pk_bf16_f32 v{d+2*hh}, v{s0}, v{s0+1}", f"v_cvt_pk_bf16_f32 v{d+2*hh+1}, v{s0+2}, v{s0+3}")
        a(f"s_add_u32 s23, s{sW}, 1", "s_lshr_b32 s23, s23, 1", f"s_lshl_b32 s{sCnt}, s{sI}, 1", f"s_add_u32 s{sCnt}, s{sCnt}, s23",
          f"s_lshl_b32 s23, s{sI}, 2", f"s_sub_u32 s{sNSS}, 28, s23", f"s_and_b32 s23, s{sW}, 1", f"s_add_u32 s{sNSS}, s{sNSS}, s23")
        a(f"v_mov_b32 v{vKV}, v{vL16}", f"v_add_u32 v{vT+2}, {3*32768+8192}, v{vL16}")
        stamp(a, 4)
        a("s_waitcnt vmcnt(12)", "s_barrier")
        stamp(a, 5)
        a([f"ds_read_b128 {ar(KF+4*i,4)}, v{vT+2} offset:{i*1024}" for i in range(8)])
        a("s_waitcnt lgkmcnt(4)")
        a(self.period(1, ["q", "q"], c0=True))
        a("s_nop 7", f"s_cmp_lg_u32 s{sCnt}, 0", f"s_cbranch_scc1 {name}_nomask0")
        a(mask_ops(0, 0))
        a.label(f"{name}_nomask0")
        for X in range(2):
            for qb in range(2):
                s0 = S + 32 * X + 8 * qb; d = vT + 2 * X + qb
                a(f"v_max3_f32 v{d}, v{s0}, v{s0+1}, v{s0+2}", f"v_max3_f32 v{d}, v{d}, v{s0+3}, v{s0+4}",
                  f"v_max3_f32 v{d}, v{d}, v{s0+5}, v{s0+6}", f"v_max_f32 v{d}, v{d}, v{s0+7}")
        for sw in ("v_permlane16_swap_b32", "v_permlane32_swap_b32"):
            for k in range(4): a(f"v_mov_b32 v{vT+4+k}, v{vT+k}")
            a("s_nop 0")
            for k in range(4): a(f"{sw} v{vT+k}, v{vT+4+k}")
            for k in range(4): a(f"v_max_f32 v{vT+k}, v{vT+k}, v{vT+4+k}")
        for X in range(2):
            for qb in range(2):
                s0 = S + 32 * X + 8 * qb; d = vT + 2 * X + qb
                for r in range(4): a(f"v_sub_f32 v{NM+8*X+4*qb+r}, 0, v{d}")
        for X in range(2):
            for qb in range(2):
                s0 = S + 32 * X + 8 * qb; d = vT + 2 * X + qb
                for r in range(8): a(f"v_sub_f32 v{s0+r}, v{s0+r}, v{d}")
        a(self.period(0, ["qs", "qs"]))
        stamp(a, 6)
        if os.environ.get("CYC") != "q": stampc(a, 12)
        F = "qsv"
        a(f"s_cmp_eq_u32 s{sCnt}, 0", f"s_cbranch_scc1 {name}_AV", f"s_sub_u32 s{sCnt}, s{sCnt}, 1",
          f"s_cmp_eq_u32 s{sCnt}, 0", f"s_cbranch_scc1 {name}_Aexit")
        a(".p2align 6")
        a.label(f"{name}_DD")
        a(self.period(1, [F, F], bar=12))
        a(self.period(0, [F, F], tail_sc=[f"s_sub_u32 s{sCnt}, s{sCnt}, 1"]))
        a(f"s_cmp_lg_u32 s{sCnt}, 0", f"s_cbranch_scc1 {name}_DD")
        a.label(f"{name}_Aexit")
        a(f"s_bitcmp1_b32 s{sW}, 0", f"s_cbranch_scc1 {name}_Aodd")
        a(self.period(1, [F, F], bar=12))
        a(self.period(0, ["smv", F]))
        a.label(f"{name}_AV")
        a(self.period(1, ["v", F], bar=12))
        a(self.period(0, ["", F]))
        a(f"s_branch {name}_SSpre")
        a.label(f"{name}_Aodd")
        a(self.period(1, ["smv", F], bar=12))
        a(self.period(0, ["v", F]))
        a.label(f"{name}_SSpre")
        stamp(a, 7)
        a(f"s_cmp_eq_u32 s{sNSS}, 0", f"s_cbranch_scc1 {name}_Bexit")
        a(".p2align 6")
        a.label(f"{name}_SS")
        a(self.period(1, ["", F], bar=12))
        a(self.period(0, ["", F], tail_sc=[f"s_sub_u32 s{sNSS}, s{sNSS}, 1"]))
        a(f"s_cmp_lg_u32 s{sNSS}, 0", f"s_cbranch_scc1 {name}_SS")
        a.label(f"{name}_Bexit")
        a(f"s_bitcmp1_b32 s{sW}, 0", f"s_cbranch_scc1 {name}_Bodd")
        a(self.period(1, ["", F], bar=0, dma=False, kread=False))
        a(self.period(0, ["", "smv"], dma=False, kread=False))
        a(self.period(1, ["", "v"], bar=0, dma=False, kread=False))
        a(f"s_branch {name}_Bdone")
        a.label(f"{name}_Bodd")
        a(self.period(1, ["", "smv"], bar=0, dma=False, kread=False))
        a(self.period(0, ["", "v"], dma=False, kread=False))
        a.label(f"{name}_Bdone")
        a(f"s_cmp_ge_u32 s{sW}, 2", f"s_cbranch_scc1 {name}_epi", "s_barrier")
        a.label(f"{name}_epi")
        stamp(a, 8)
        if os.environ.get("CYC") != "q": stampc(a, 13)
        for sw in ("v_permlane16_swap_b32", "v_permlane32_swap_b32"):
            for k in range(4): a(f"v_mov_b32 v{vT+4+k}, v{LS+k}")
            a("s_nop 0")
            for k in range(4): a(f"{sw} v{LS+k}, v{vT+4+k}")
            for k in range(4): a(f"v_add_f32 v{LS+k}, v{LS+k}, v{vT+4+k}")
        for k in range(4): a(f"v_rcp_f32 v{vT+2*k}, v{LS+k}")
        a("s_nop 0")
        for k in range(4): a(f"v_mov_b32 v{vT+2*k+1}, v{vT+2*k}")
        a(f"s_lshl_b32 s23, s{sI}, 2", f"s_add_u32 s23, s23, s{sW}", "s_lshl_b32 s23, s23, 18", f"s_lshl_b32 s31, s{sH}, 12",
          f"s_add_u32 s31, s31, {CTX}", f"s_add_u32 s{sXo}, s23, s31", f"s_add_u32 s{sXo+1}, s{sXo}, {1<<17}",
          "s_lshl_b32 s23, s30, 2", f"s_add_u32 s23, s23, s{sW}", "s_lshl_b32 s23, s23, 18",
          f"s_add_u32 s{sXo+2}, s23, s31", f"s_add_u32 s{sXo+3}, s{sXo+2}, {1<<17}")
        k = 0
        for X in range(2):
            for qb in range(2):
                for t in range(4):
                    T = 32 + (k % 8) * 12; k += 1
                    f = vT + 2 * (2 * X + qb)
                    for hh in range(2):
                        for r in range(4): a(f"v_accvgpr_read_b32 v{T+4+4*hh+r}, a{O+64*X+8*(2*t+hh)+4*qb+r}")
                    for r in range(4): a(f"v_pk_mul_f32 {vr(T+4+2*r,2)}, {vr(T+4+2*r,2)}, {vr(f,2)}")
                    for r in range(4): a(f"v_cvt_pk_bf16_f32 v{T+r}, v{T+4+2*r}, v{T+5+2*r}")
                    a(f"buffer_store_dwordx4 {vr(T,4)}, v{vL16}, s[{sWS}:{sWS+3}], s{sXo+2*X+qb} offen offset:{t*1024}")
        stamp(a, 9)
        self.ffn()
        a.label(f"{name}_fin")
        stamp_flush(a, 1, sW, sWS)
        a.label(f"{name}_end")
        a("s_endpgm")
        for (k, ss, par) in self.stubs:
            a.label(f"{name}_stub{k}")
            for X in ss: a(f"s_call_b64 s[{sRet}:{sRet+1}], {name}_rare{X}{par}")
            a(f"s_branch {name}_back{k}")
        for X in range(2):
            for par in range(2): self.rare(X, par)
            self.resc(X)
        return a

    def ffn(self):
        a = self.a; name = self.name
        sG, sU, sD = 52, 56, 60
        sJ = 82
        a("s_cmp_lt_u32 s2, 192", f"s_cbranch_scc1 {name}_fin", "s_cmp_ge_u32 s2, 246", f"s_cbranch_scc1 {name}_fin")
        a("s_load_dwordx4 s[4:7], s[0:1], 64", "s_load_dwordx2 s[8:9], s[0:1], 80", f"s_sub_u32 s{sJ}, s2, 192")
        KEY = 128
        a(f"s_mov_b32 s23, {RKEY}", f"s_mov_b32 s31, {RKEY+4096}")
        for q in range(8):
            a(f"buffer_load_dwordx4 {vr(KEY+4*q,4)}, v{vL16}, s[{sWS}:{sWS+3}], s{23 if q < 4 else 31} offen offset:{(q%4)*1024}")
        a(f"v_lshrrev_b32 v{vT}, 2, v{vL}", f"v_mul_u32_u24 v{vT+1}, 3456, v{vT}", f"v_and_b32 v{vT+2}, 3, v{vL}",
          f"v_lshl_add_u32 v{vT+1}, v{vT+2}, 4, v{vT+1}")
        a("s_waitcnt lgkmcnt(0)")
        srd(a, sG, "s4", "s5", 640 * 3456); srd(a, sU, "s6", "s7", 640 * 3456); srd(a, sD, "s8", "s9", 1728 * 1280)
        a(f"s_mul_i32 s23, s{sW}, {10*16*3456}", f"s_lshl_b32 s31, s{sJ}, 6", "s_add_u32 s23, s23, s31",
          f"s_mul_i32 s24, s{sW}, 10240", f"s_mul_i32 s25, s{sJ}, 40960", "s_add_u32 s25, s25, s24", "s_mov_b32 s26, 10")
        a("s_barrier")
        a.label(f"{name}_fdma")
        a("s_mov_b32 m0, s24", "s_nop 0", f"buffer_load_dwordx4 v{vT+1}, s[{sG}:{sG+3}], s23 offen lds",
          "s_add_u32 m0, s24, 40960", "s_nop 0", f"buffer_load_dwordx4 v{vT+1}, s[{sU}:{sU+3}], s23 offen lds",
          "s_add_u32 m0, s24, 81920", "s_nop 0", f"buffer_load_dwordx4 v{vL16}, s[{sD}:{sD+3}], s25 offen lds",
          f"s_add_u32 s23, s23, {16*3456}", "s_add_u32 s24, s24, 1024", "s_add_u32 s25, s25, 1024",
          "s_sub_u32 s26, s26, 1", "s_cmp_lg_u32 s26, 0", f"s_cbranch_scc1 {name}_fdma")
        vM, vPrev, vSel, vTok, vTmp = vT + 4, vT + 5, vT + 6, vT + 7, vT + 8
        a(f"v_mov_b32 v{vPrev}, 0", f"v_mov_b32 v{vSel}, 0", f"v_and_b32 v{vTok}, 7, v{vL}", "s_mov_b32 s26, 0", "s_waitcnt vmcnt(30)")
        a.label(f"{name}_top")
        a(f"v_max3_u32 v{vM}, v{KEY}, v{KEY+1}, v{KEY+2}", f"v_max3_u32 v{vTmp}, v{KEY+3}, v{KEY+4}, v{KEY+5}")
        for q in range(6, 30, 4):
            a(f"v_max3_u32 v{vM}, v{vM}, v{KEY+q}, v{KEY+q+1}", f"v_max3_u32 v{vTmp}, v{vTmp}, v{KEY+q+2}, v{KEY+q+3}")
        a(f"v_max3_u32 v{vM}, v{vM}, v{KEY+30}, v{KEY+31}", f"v_max_u32 v{vM}, v{vM}, v{vTmp}")
        for m in ("quad_perm:[1,0,3,2]", "quad_perm:[2,3,0,1]", "row_half_mirror", "row_mirror"):
            a("s_nop 1", f"v_max_u32_dpp v{vM}, v{vM}, v{vM} {m} row_mask:0xf bank_mask:0xf")
        xreduce(a, "v_max_u32", vM, vTmp)
        a(f"v_add_u32 v{vPrev}, v{vPrev}, v{vM}", f"v_cmp_eq_u32 vcc, s26, v{vTok}")
        for q in range(32): a(f"v_sub_u32 v{KEY+q}, v{KEY+q}, v{vM}")
        a(f"v_cndmask_b32 v{vSel}, v{vSel}, v{vPrev}, vcc", "s_add_u32 s26, s26, 1", "s_cmp_lt_u32 s26, 8", f"s_cbranch_scc1 {name}_top")
        vRow, vR, vXo = vT + 9, vT + 10, vT + 11
        stamp(a, 10)
        a(f"v_and_b32 v{vRow}, 0xffff, v{vSel}", f"v_sub_u32 v{vRow}, 0xffff, v{vRow}", f"v_and_b32 v{vRow}, 2047, v{vRow}",
          f"v_lshrrev_b32 v{vXo}, 4, v{vRow}", f"v_mul_u32_u24 v{vXo}, 20480, v{vXo}", f"v_and_b32 v{vTmp}, 15, v{vRow}",
          f"v_lshl_add_u32 v{vXo}, v{vTmp}, 4, v{vXo}", f"v_lshrrev_b32 v{vTmp}, 4, v{vL}", f"v_lshl_add_u32 v{vXo}, v{vTmp}, 8, v{vXo}")
        XS = 32
        for s_ in range(20):
            if s_ % 4 == 0: a(f"s_mov_b32 s23, {s_*1024}")
            a(f"buffer_load_dwordx4 {vr(XS+4*s_,4)}, v{vXo}, s[{sWS}:{sWS+3}], s23 offen offset:{(s_%4)*1024}")
        a(f"v_ashrrev_i32 v{vM}, 31, v{vSel}", f"v_not_b32 v{vM}, v{vM}", f"v_or_b32 v{vM}, 0x80000000, v{vM}",
          f"v_xor_b32 v{vR}, v{vSel}, v{vM}", f"v_and_b32 v{vR}, 0xffff0000, v{vR}",
          f"v_mul_f32 v{vR}, 0xbfb8aa3b, v{vR}", f"v_exp_f32 v{vR}, v{vR}", "s_nop 0", f"v_add_f32 v{vR}, 1.0, v{vR}",
          f"v_rcp_f32 v{vR}, v{vR}", "s_nop 0")
        bf16r(a, vR)
        a(f"v_lshlrev_b32 v{vM}, 2, v{vL}", f"v_add_u32 v{vM}, {SEL}, v{vM}", f"v_mov_b32 v{vPrev}, 0x40000000",
          f"s_add_u32 s23, s{sJ}, s{sW}", "s_cmp_eq_u32 s23, 0", "s_cselect_b32 s23, 8, 0",
          f"v_cmp_gt_u32 vcc, s23, v{vL}", "s_nop 1", f"v_cndmask_b32 v{vM}, v{vPrev}, v{vM}, vcc",
          f"buffer_store_dword v{vRow}, v{vM}, s[{sWS}:{sWS+3}], 0 offen",
          f"buffer_store_dword v{vR}, v{vM}, s[{sWS}:{sWS+3}], 0 offen offset:32")
        vA, vB, vC = vT + 12, vT + 13, vT + 14
        a(f"v_lshl_add_u32 v{vA}, v{vTmp}, 2, v{vT}",
          f"v_lshlrev_b32 v{vA}, 6, v{vA}", f"v_lshl_add_u32 v{vA}, v{vT+2}, 3, v{vA}",
          f"s_lshr_b32 s23, s{sW}, 1", "s_mul_i32 s23, s23, 40960", f"s_and_b32 s31, s{sW}, 1", "s_lshl_b32 s31, s31, 5", "s_add_u32 s23, s23, s31",
          f"v_add_u32 v{vA}, s23, v{vA}",
          f"v_mul_u32_u24 v{vB}, 1280, v{vT}", f"v_lshl_add_u32 v{vB}, v{vT+2}, 3, v{vB}",
          f"s_mul_i32 s23, s{sW}, 320", "s_add_u32 s23, s23, 81920", f"v_add_u32 v{vB}, s23, v{vB}",
          f"s_lshl_b32 s23, s{sW}, 10", "s_add_u32 s23, s23, 122880", f"v_add_u32 v{vC}, s23, v{vL16}")
        a("s_waitcnt vmcnt(0)", "s_barrier")
        WFr = 112; DF = 192
        for s_ in range(20):
            for t in range(2):
                a(f"ds_read_b64_tr_b16 {vr(WFr+4*s_+2*t,2)}, v{vA} offset:{s_*2048+t*256}")
        a("s_waitcnt lgkmcnt(0)")
        for cb in range(10):
            for t in range(2):
                a(f"ds_read_b64_tr_b16 {vr(DF+4*cb+2*t,2)}, v{vB} offset:{t*20480+cb*32}")
        G = 232
        for s_ in range(20):
            a(f"{MF} {vr(G,4)}, {vr(WFr+4*s_,4)}, {vr(XS+4*s_,4)}, {'0' if s_ == 0 else vr(G,4)}")
        a("s_nop 7", f"ds_write_b128 v{vC}, {vr(G,4)}", f"v_add_u32 v{vC}, 122880, v{vL16}", "s_waitcnt lgkmcnt(0)", "s_barrier")
        GU = 32
        for k in range(4): a(f"ds_read_b128 {vr(GU+4*k,4)}, v{vC} offset:{k*1024}")
        a(f"v_and_b32 v{vM}, 15, v{vL}", f"v_mul_u32_u24 v{vA}, 2560, v{vM}", f"v_lshl_add_u32 v{vA}, v{vTmp}, 4, v{vA}",
          f"v_cmp_gt_u32 vcc, 8, v{vM}", f"s_mul_i32 s23, s{sJ}, 20480", f"s_mul_i32 s31, s{sW}, 640",
          f"v_cndmask_b32 v{vA}, v{vPrev}, v{vA}, vcc", "s_add_u32 s23, s23, s31", f"s_add_u32 s23, s23, {YP}")
        a("s_waitcnt lgkmcnt(0)")
        for k in range(16): bf16r(a, GU + k)
        for k in range(8): a(f"v_mul_f32 v{GU+16+k}, 0xbfb8aa3b, v{GU+k}")
        for k in range(8): a(f"v_exp_f32 v{GU+16+k}, v{GU+16+k}")
        for k in range(8): a(f"v_add_f32 v{GU+16+k}, 1.0, v{GU+16+k}")
        for k in range(8): a(f"v_rcp_f32 v{GU+16+k}, v{GU+16+k}")
        for k in range(8): a(f"v_mul_f32 v{GU+k}, v{GU+k}, v{GU+16+k}")
        for k in range(8): bf16r(a, GU + k)
        for k in range(8): a(f"v_mul_f32 v{GU+k}, v{GU+k}, v{GU+8+k}")
        H = GU + 24
        for k in range(4): a(f"v_cvt_pk_bf16_f32 v{H+k}, v{GU+2*k}, v{GU+2*k+1}")
        a("s_nop 1")
        Y = 64
        for cb in range(10): a(f"{MF} {vr(Y+4*cb,4)}, {vr(DF+4*cb,4)}, {vr(H,4)}, 0")
        a("s_nop 7")
        for cb in range(10): a(f"buffer_store_dwordx4 {vr(Y+4*cb,4)}, v{vA}, s[{sWS}:{sWS+3}], s23 offen offset:{cb*64}")

def gen_k2(name):
    return K2(name).gen()
```

```python
import re

def vr(b, n=1): return f"v{b}" if n == 1 else f"v[{b}:{b+n-1}]"
def ar(b, n=1): return f"a{b}" if n == 1 else f"a[{b}:{b+n-1}]"
def sr(b, n=1): return f"s{b}" if n == 1 else f"s[{b}:{b+n-1}]"

class Asm:
    def __init__(self):
        self.lines = []
    def __call__(self, *ls):
        for l in ls:
            if isinstance(l, (list, tuple)):
                self(*l)
            else:
                for x in l.split("\n"):
                    x = x.strip()
                    if x: self.lines.append(x)
    def label(self, n): self.lines.append(n + ":")
    def text(self):
        return "\n".join((l if l.endswith(":") or l.startswith(".") else "  " + l) for l in self.lines)

def kernel_text(name, body):
    return f".globl {name}\n.p2align 8\n.type {name},@function\n{name}:\n{body}\n"

def desc_text(name, nvgpr, accum, nsgpr=102):
    return f'''.section .rodata,"a"
.p2align 6
.amdhsa_kernel {name}
  .amdhsa_next_free_vgpr {nvgpr}
  .amdhsa_next_free_sgpr {nsgpr}
  .amdhsa_accum_offset {accum}
  .amdhsa_group_segment_fixed_size 0
  .amdhsa_kernarg_size 112
  .amdhsa_user_sgpr_count 2
  .amdhsa_user_sgpr_kernarg_segment_ptr 1
  .amdhsa_system_sgpr_workgroup_id_x 1
  .amdhsa_float_denorm_mode_32 3
.end_amdhsa_kernel
.text
'''

_reg_re = re.compile(r'^(-|abs\()?([vas])(\d+|\[(\d+):(\d+)\])\)?$')
def regs_of(tok):
    tok = tok.strip()
    if tok == "vcc": return {("s", "vcc")}
    if tok == "m0": return {("s", "m0")}
    if tok == "exec": return {("s", "exec")}
    m = _reg_re.match(tok)
    if not m: return set()
    k = m.group(2)
    if m.group(4) is not None:
        return {(k, i) for i in range(int(m.group(4)), int(m.group(5)) + 1)}
    return {(k, int(m.group(3)))}

def split_ops(line):
    line = line.split(";")[0].strip()
    parts = line.split(None, 1)
    mn = parts[0]
    ops = []
    if len(parts) > 1:
        depth = 0; cur = ""
        for ch in parts[1]:
            if ch == "[": depth += 1
            if ch == "]": depth -= 1
            if ch == "," and depth == 0:
                ops.append(cur.strip()); cur = ""
            else: cur += ch
        ops.append(cur.strip())
        last = ops[-1].split()
        if last: ops[-1] = last[0]
    return mn, ops

TRANS = ("v_exp_f32", "v_log_f32", "v_rcp_f32", "v_rsq_f32", "v_sqrt_f32", "v_sin_f32", "v_cos_f32")

class Ins:
    def __init__(self, line):
        self.line = line
        mn, ops = split_ops(line)
        self.mn = mn
        self.kind = "other"
        self.w = set(); self.r = set()
        self.ra = set(); self.rc = set()
        self.states = 1
        R = [regs_of(o) for o in ops]
        if mn.startswith("v_mfma"):
            self.kind = "mfma"
            self.passes = 8 if "32x32" in mn else 4
            self.w = R[0]; self.ra = R[1] | R[2]; self.rc = R[3]; self.r = self.ra | self.rc
        elif mn.startswith("v_"):
            self.kind = "valu"
            self.trans = mn.replace("_e32", "").replace("_e64", "") in TRANS
            self.dpp = "dpp" in mn
            self.perm = mn.startswith("v_permlane")
            if mn.startswith("v_cmp"):
                self.w = R[0]; self.r = set().union(*R[1:])
            elif self.perm:
                self.w = R[0] | R[1]; self.r = R[0] | R[1]
            elif mn.startswith(("v_add_co", "v_sub_co", "v_addc_co")):
                self.w = R[0] | R[1]; self.r = set().union(*R[2:])
            else:
                self.w = R[0]; self.r = set().union(*R[1:]) if len(R) > 1 else set()
                if mn.startswith(("v_fmac", "v_dot2c")) or self.dpp: self.r |= R[0]
            self.lane = mn.startswith(("v_readlane", "v_readfirstlane"))
        elif mn.startswith(("buffer_", "global_")):
            self.kind = "vmem"
            self.lds = line.split(";")[0].rstrip().endswith(" lds")
            allr = set().union(*R) if R else set()
            if "load" in mn and not self.lds:
                self.w = R[0]; self.r = set().union(*R[1:])
            else:
                self.r = allr
                if self.lds: self.r = self.r | {("s", "m0")}
            self.widestore = ("store" in mn and ("x4" in mn or "x3" in mn))
            self.sdata = (R[0] if mn.startswith("buffer_") else R[1]) if self.widestore else set()
        elif mn.startswith("ds_"):
            self.kind = "ds"
            if "read" in mn or "permute" in mn or "swizzle" in mn:
                self.w = R[0]; self.r = set().union(*R[1:])
            else:
                self.r = set().union(*R)
        elif mn.startswith("s_"):
            self.kind = "salu"
            if mn == "s_nop": self.states = int(ops[0], 0) + 1
            elif mn.startswith(("s_cmp", "s_cbranch", "s_branch", "s_waitcnt", "s_barrier", "s_setprio", "s_endpgm", "s_sleep", "s_setpc")):
                self.r = set().union(*R) if R else set()
            else:
                self.w = R[0] if R else set(); self.r = set().union(*R[1:]) if len(R) > 1 else set()

def check_hazards(lines, name=""):
    ins = [Ins(l) for l in lines if not (l.endswith(":") or l.startswith("."))]
    errs = []
    for j, c in enumerate(ins):
        dist = 0
        for i in range(j - 1, max(j - 24, -1), -1):
            p = ins[i]
            need = 0; why = ""
            def upd(n, w):
                nonlocal need, why
                if n > need: need = n; why = w
            vw = {x for x in p.w if x[0] in "va"}
            sw = {x for x in p.w if x[0] == "s"}
            if p.kind == "valu":
                if c.kind == "mfma" and (vw & c.r): upd(2, "valu->mfma")
                if c.kind == "valu":
                    if p.trans and not c.trans and (vw & c.r): upd(1, "trans->valu")
                    if c.dpp and (vw & c.r): upd(2, "valu->dpp")
                    if c.perm and (vw & c.r): upd(2, "valu->permlane")
                    if c.lane and (vw & c.r): upd(1, "valu->readlane")
                    if sw & c.r: upd(2, "valu sgpr->valu")
                    if ("s", "vcc") in sw and c.mn.startswith("v_cndmask") and ("s", "vcc") in c.r: upd(2, "vcc->cndmask")
                if c.kind == "vmem" and (sw & c.r): upd(5, "valu sgpr->vmem")
            if p.kind == "mfma":
                big = p.passes == 8
                if c.kind == "mfma":
                    if p.w & c.ra: upd(12 if big else 8, "mfma D->mfma A/B")
                    if (p.w & c.rc) and not (p.w == c.rc and p.passes == c.passes): upd(10 if big else 6, "mfma D->mfma C overlap")
                    if (p.w & c.w) and not (p.w & c.rc) and p.passes != c.passes: upd(12 if big else 8, "mfma WAW diff")
                if c.kind in ("valu", "vmem", "ds") and (p.w & (c.r | c.w)): upd(12 if big else 8, "mfma D->valu/mem")
                if c.kind == "valu" and (p.rc & c.w): upd(7 if big else 3, "mfma C WAR")
            if p.kind == "salu" and ("s", "m0") in p.w and c.kind == "vmem" and getattr(c, "lds", False): upd(1, "m0->lds dma")
            if p.kind == "vmem" and p.widestore and (p.sdata & c.w): upd(2 if c.kind == "valu" else 1, "store data WAR")
            if need > dist:
                errs.append(f"{name}: need {need} have {dist} [{why}]: '{p.line}' -> '{c.line}'")
            dist += p.states
            if p.mn in ("s_branch", "s_setpc_b64", "s_endpgm"): break
    return errs

def weave(mf, sc, mem, va):
    out = []
    for i, m in enumerate(mf):
        out.append(m)
        out += sc.get(i, []) + mem.get(i, []) + va.get(i, [])
    return out

_VOP_E32 = ("v_exp_f32", "v_add_f32", "v_max_f32", "v_mov_b32", "v_mul_f32", "v_sub_f32", "v_cmp_lt_f32", "v_xor_b32", "v_add_u32", "v_and_b32", "v_lshlrev_b32")
def isize(l):
    l = l.split(";")[0].strip()
    if not l or l.endswith(":") or l.startswith("."): return 0
    mn, ops = split_ops(l)
    def lit(o):
        o = o.strip()
        if re.match(r'^-?(0x[0-9a-fA-F]+|\d+)$', o):
            v = int(o, 0)
            return not (-16 <= v <= 64)
        return bool(re.match(r'^[a-zA-Z_][\w]*[-+]', o))
    if mn.startswith("s_"):
        if mn.startswith(("s_waitcnt", "s_barrier", "s_nop", "s_cbranch", "s_branch", "s_setprio", "s_movk", "s_call", "s_endpgm", "s_sleep")): return 4
        if mn.startswith(("s_load", "s_mem")): return 8
        return 8 if any(lit(o) for o in ops) else 4
    if mn in _VOP_E32:
        if mn.startswith("v_cmp") and ops[0] != "vcc": return 8
        if any(o.startswith("-v") for o in ops): return 8
        return 8 if any(lit(o) for o in ops) else 4
    return 8

def align8(lines, start=0):
    out = list(lines); off = start; cand = None; miss = 0
    for i, l in enumerate(out):
        sz = isize(l)
        if sz == 8:
            if off % 8:
                if cand is not None:
                    mn, rest = out[cand].split(None, 1)
                    out[cand] = mn + "_e64 " + rest; off += 4
                else: miss += 1
            cand = None
        elif sz == 4 and l.startswith("v_"): cand = i
        off += sz
    if off % 8 and cand is not None:
        mn, rest = out[cand].split(None, 1)
        out[cand] = mn + "_e64 " + rest; off += 4
    return out, off % 8, miss
```

```python
import os
from asmlib import *
from gen_k1 import (XNF, RKEY, SEL, YP, WOF, KFO, VFO, CTX, WS_BYTES, MF, srd, bf16r, allreduce32_add,
                    stamp, stampc, stampv, stamp_init, stamp_flush, DBG)
import gen_k2 as k2
from gen_k2 import (vL, vL16, vKV, vNI, vX, vT, Q, S, P, NM, E, TS, LS, QACC, O, KF, VF, XR,
                    sW, sH, sI, sWS, sK, sV, sKm, sVm, sKo, sVo, sCnt, sNSS, sXo, sMask, sRet, sRet2, sThr,
                    xreduce, mask_ops)

LDS = 163840
FLG = 0x284000
KVF = FLG
CF = FLG + 0x1000
YF = FLG + 0x3000
WF = FLG + 0x4000
SC = " sc1"
BIG = 0x40000000
SPARE = 131072
XS = SPARE + 20480
EX = SPARE + 30720
UPD = LDS - 8192
SCR = LDS - 4096
TOPWG = 255
FFN0, FFN1 = 170, 224
SPIN_MAX = 200000
sDb = 56
sCFA, sCFB, sKVa = 80, 3, 82
vWo, vWa, vCa = 8, 12, 14
vPoll, vZero, vPo = 15, 229, 8
vCo = 3

class VM:
    def __init__(self): self.ops = []
    def issue(self, tag, n=1): self.ops += [tag] * n
    def need(self, *tags):
        last = max(i for i, t in enumerate(self.ops) if t in tags)
        return min(63, len(self.ops) - 1 - last)

class Fused(k2.K2):
    SC = SC
    U = 8
    FV = [8, 11, 12, 13, 14]
    KY = 3
    def poll_check(self, a, tag, vreg, voff, srdn, cmp_lines, soff="0"):
        n = self.name
        a(cmp_lines, f"s_cbranch_vccnz {n}_{tag}_spin")
        a.label(f"{n}_{tag}_ok")
        t = Asm()
        t.label(f"{n}_{tag}_spin")
        t(f"s_mov_b32 s83, {SPIN_MAX}")
        t.label(f"{n}_{tag}_spin2")
        t(f"buffer_load_dword v{vreg}, v{voff}, s[{srdn}:{srdn+3}], {soff} offen{SC}", "s_waitcnt vmcnt(0)")
        t(cmp_lines, f"s_cbranch_vccz {n}_{tag}_ok", "s_sleep 8", "s_sub_u32 s83, s83, 1", "s_cmp_lg_u32 s83, 0",
          f"s_cbranch_scc1 {n}_{tag}_spin2", f"s_branch {n}_{tag}_ok")
        self.tail += t.lines

    def phase1(self):
        a = self.a; name = self.name
        sC, sWt, sX, sQ2, sWO, sWR = 32, 36, 44, 48, 52, 68
        sM0C, sStep, sOC, sOW, sIT = 24, 25, 26, 27, 28
        FA = 32; FB = 96
        a("s_cmp_ge_u32 s2, 256", f"s_cbranch_scc1 {name}_end")
        if os.environ.get("CT0", "1") == "1":
            a("s_getpc_b64 s[62:63]", "v_and_b32 v230, 127, v0", "v_lshlrev_b32 v230, 7, v230", "global_load_dword v231, v230, s[62:63]")
        stamp_init(a)
        a("s_load_dwordx4 s[4:7], s[0:1], 0", "s_load_dwordx4 s[8:11], s[0:1], 24", "s_load_dwordx2 s[14:15], s[0:1], 56",
          "s_load_dwordx2 s[12:13], s[0:1], 40", "s_load_dwordx4 s[16:19], s[0:1], 96", "s_load_dwordx2 s[60:61], s[0:1], 16")
        a(f"v_lshrrev_b32 v{vT}, 6, v0", f"v_and_b32 v{vL}, 63, v0", f"v_readfirstlane_b32 s{sW}, v{vT}")
        a(f"s_and_b32 s{sH}, s2, 7", f"s_lshl_b32 s{sH}, s{sH}, 2", "s_lshr_b32 s23, s2, 3", "s_and_b32 s23, s23, 3",
          f"s_add_u32 s{sH}, s{sH}, s23", f"s_lshr_b32 s{sI}, s2, 5")
        XV = 160; WR = 172; F = 184
        vU, vRow, vXo, vXo3, vWro = 208, 209, 210, 211, 212
        vS, vT2, vMean, vAcc = 213, 214, 216, 218
        vTW, vTR, vKo, vO1, vO3, vFl = 220, 221, 222, 223, 224, 225
        vTQ = 235; sM16 = 64
        LNPRE = os.environ.get("LNPRE", "1") == "1"
        lnaddr = [f"v_and_b32 v{vU}, 31, v{vL}", f"v_lshrrev_b32 v{vRow}, 5, v{vL}",
          "s_lshl_b32 s31, s2, 2", f"s_add_u32 s31, s31, s{sW}", "s_lshl_b32 s31, s31, 1", f"v_add_u32 v{vRow}, s31, v{vRow}",
          f"v_lshlrev_b32 v{vWro}, 4, v{vU}", f"v_mul_u32_u24 v{vXo}, 1280, v{vRow}", f"v_add_u32 v{vXo}, v{vXo}, v{vWro}",
          f"v_cmp_gt_u32 s[{sM16}:{sM16+1}], 16, v{vU}", f"v_mov_b32 v{vT+3}, {BIG}", f"v_and_b32 v{vTW}, 7, v{vRow}",
          f"v_cndmask_b32 v{vXo3}, v{vT+3}, v{vXo}, s[{sM16}:{sM16+1}]"]
        xloads = [f"buffer_load_dwordx4 {vr(XV,4)}, v{vXo}, s[{sX}:{sX+3}], 0 offen",
          f"buffer_load_dwordx4 {vr(XV+4,4)}, v{vXo}, s[{sX}:{sX+3}], 0 offen offset:512",
          f"buffer_load_dwordx4 {vr(XV+8,4)}, v{vXo3}, s[{sX}:{sX+3}], 0 offen offset:1024"]
        xloads += [f"buffer_load_dwordx4 {vr(WR+4*i,4)}, v{vWro}, s[{sWR}:{sWR+3}], 0 offen offset:{512*i}" for i in range(3)]
        if LNPRE: a(lnaddr)
        a(f"v_bfe_u32 v{vT+1}, v{vL}, 1, 3", f"v_lshlrev_b32 v{vT+1}, 13, v{vT+1}", f"v_and_b32 v{vT+2}, 1, v{vL}",
          f"v_lshl_add_u32 v{vTQ}, v{vT+2}, 7, v{vT+1}", f"s_lshl_b32 s74, s{sI}, 1", f"s_and_b32 s31, s{sW}, 1", "s_add_u32 s74, s74, s31",
          "s_lshl_b32 s74, s74, 16", f"s_mov_b32 s73, {128*8192}", f"v_and_b32 v{vT}, 15, v{vL}",
          f"v_lshlrev_b32 v{vT+1}, 10, v{vT}", f"v_and_b32 v{vT+2}, 16, v{vL}", f"v_lshl_add_u32 v233, v{vT+2}, 3, v{vT+1}",
          "s_lshl_b32 s30, s23, 2", f"s_add_u32 s30, s30, s{sW}", "s_lshl_b32 s30, s30, 14", f"s_lshl_b32 s29, s{sI}, 18", f"s_lshl_b32 s23, s{sH}, 8",
          f"s_cmp_ge_u32 s{sW}, 2", "s_waitcnt lgkmcnt(0)")
        if LNPRE:
            srd(a, sX, "s4", "s5", 2048*1280)
            srd(a, sWR, "s14", "s15", 1280)
            a(xloads)
        a("s_cselect_b32 s62, s10, s8", "s_cselect_b32 s63, s11, s9", "s_add_u32 s62, s62, s23", "s_addc_u32 s63, s63, 0")
        srd(a, sWt, "s62", "s63", 0)
        a(f"s_sub_u32 s{sWt+2}, {512*8192}, s23", f"buffer_load_dword v231, v{vTQ}, s[{sWt}:{sWt+3}], s74 offen",
          "s_add_u32 s6, s6, s29", "s_addc_u32 s7, s7, 0")
        srd(a, sC, "s6", "s7", 262144)
        a(f"buffer_load_dword v232, v233, s[{sC}:{sC+3}], s30 offen", "s_add_u32 s74, s74, s73")
        T01 = os.environ.get("T01", "1") == "1"
        t1 = [f"buffer_load_dword v231, v{vTQ}, s[{sWt}:{sWt+3}], s74 offen", f"buffer_load_dword v232, v233, s[{sC}:{sC+3}], s30 offen offset:256"]
        if T01: a(t1)
        a("s_getpc_b64 s[8:9]", f"{name}_pc:", "s_lshr_b32 s31, s2, 3", "s_and_b32 s31, s31, 15", "s_lshl_b32 s31, s31, 2",
          f"s_add_u32 s31, s31, s{sW}", "s_lshl_b32 s31, s31, 11", f"s_min_u32 s31, s31, {name}_codeend-{name}_pc-2048",
          f"v_lshlrev_b32 v234, 7, v{vT}", "v_add_u32 v230, s31, v234", "global_load_dword v231, v230, s[8:9]",
          f"s_add_u32 s8, s8, {name}_co1-{name}_pc-4", "s_addc_u32 s9, s9, 0")
        a("s_add_u32 s60, s60, s23", "s_addc_u32 s61, s61, 0", f"s_sub_u32 s75, {640*8192}, s23")
        srd(a, sQ2, "s62", "s63", f"s{sWt+2}")
        a(f"v_lshlrev_b32 v{vL16}, 4, v{vL}",
          f"v_lshrrev_b32 v{vT+3}, 2, v{vL}", f"v_lshrrev_b32 v{vT+1}, 5, v{vL}", f"v_mul_u32_u24 v{vT+1}, 3, v{vT+1}",
          f"v_and_b32 v{vT+2}, 3, v{vL}", f"v_xor_b32 v{vT+1}, v{vT+1}, v{vT+2}", f"v_lshlrev_b32 v{vT+1}, 4, v{vT+1}",
          f"v_lshl_add_u32 v{vCo}, v{vT+3}, 10, v{vT+1}", f"s_lshl_b32 s23, s{sW}, 16", f"v_add_u32 v{vCo}, s23, v{vCo}")
        for j in range(1, 4): a(f"v_add_u32 v{vCo+j}, {j*(16384-1024)}, v{vCo}")
        a(f"v_and_b32 v{vT+3}, 3, v{vT+3}", f"v_lshrrev_b32 v{vT+1}, 4, v{vL}", f"v_lshlrev_b32 v{vT+1}, 6, v{vT+1}",
          f"v_lshl_add_u32 v{vT+3}, v{vT+3}, 13, v{vT+1}", f"s_and_b32 s23, s{sW}, 1", "s_lshl_b32 s23, s23, 17",
          f"v_add_u32 v{vT+3}, s23, v{vT+3}", f"v_lshl_add_u32 v{vWo}, v{vT+2}, 4, v{vT+3}", f"v_xor_b32 v{vT+2}, 2, v{vT+2}",
          f"v_lshl_add_u32 v{vWo+2}, v{vT+2}, 4, v{vT+3}", f"v_add_u32 v{vWo+1}, {32768-1024}, v{vWo}",
          f"v_add_u32 v{vWo+3}, {3*(32768-1024)}, v{vWo+2}", f"v_add_u32 v{vWo+2}, {2*(32768-1024)}, v{vWo+2}")
        a(f"s_lshl_b32 s{sM0C}, s{sW}, 12", f"s_mov_b32 s{sOC}, 0", f"s_mov_b32 s{sOW}, 0", f"s_mov_b32 s{sStep}, {32*8192}", "s_mov_b32 s79, 64")
        def dma_lines():
            preC = [f"s_mov_b32 m0, s{sM0C}"]
            lc = [f"buffer_load_dwordx4 v{vCo+j}, s[{sC}:{sC+3}], s{sOC} offen offset:{j*1024}{SC} lds" for j in range(4)]
            preW = [f"s_add_u32 m0, s{sM0C}, 16384"]
            lw = [f"buffer_load_dwordx4 v{vWo+j}, s[{sWt}:{sWt+3}], s{sOW} offen offset:{j*1024} lds" for j in range(4)]
            post = [f"s_add_u32 s{sOC}, s{sOC}, s79", f"s_add_u32 s{sOW}, s{sOW}, s{sStep}",
                    f"s_add_u32 s{sM0C}, s{sM0C}, 32768", f"s_and_b32 s{sM0C}, s{sM0C}, 0x1ffff"]
            return preC, lc, preW, lw, post
        def dma_stage():
            preC, lc, preW, lw, post = dma_lines()
            a(preC, "s_nop 0", lc, preW, "s_nop 0", lw, post)
        if not LNPRE: dma_stage()
        stamp(a, 1)
        srd(a, sWS, "s18", "s19", WS_BYTES)
        srd(a, sWO, "s12", "s13", 4096*1280)
        srd(a, sDb, "s16", "s17", 256)
        if not LNPRE:
            srd(a, sX, "s4", "s5", 2048*1280)
            srd(a, sWR, "s14", "s15", 1280)
        a("s_and_b32 s29, s2, 31", "s_lshl_b32 s29, s29, 2", f"s_add_u32 s29, s29, s{sW}", "s_lshl_b32 s29, s29, 11")
        a(f"s_lshl_b32 s23, s{sW}, 5", f"s_add_u32 s23, s23, s{sH}", "s_lshl_b32 s23, s23, 2", f"s_add_u32 s23, s23, {CF}",
          f"s_lshl_b32 s31, s{sI}, 9", f"s_add_u32 s{sCFA}, s23, s31", f"s_sub_u32 s31, {15*512}, s31", f"s_add_u32 s{sCFB}, s23, s31",
          f"s_lshl_b32 s23, s{sH}, 7", f"s_lshl_b32 s31, s{sI}, 2", "s_add_u32 s23, s23, s31", f"s_add_u32 s{sKVa}, s23, {KVF}",
          self.yf_addr(62), f"s_sub_u32 s23, s2, {FFN0}", f"s_cmp_lt_u32 s23, {FFN1-FFN0}", f"s_cselect_b32 s62, s62, {BIG}",
          f"s_cmp_eq_u32 s{sW}, 0", f"s_cselect_b32 s31, s{sKVa}, {BIG}", f"s_cselect_b32 s77, s2, {BIG}",
          f"s_cmp_eq_u32 s2, {TOPWG}", f"s_cselect_b32 s23, {SEL}, {BIG}",
          f"v_lshl_add_u32 v{vFl}, v{vT}, 2, s23", f"v_mov_b32 v{vZero}, 0",
          f"v_writelane_b32 v{vFl}, s{sCFA}, 0", f"v_writelane_b32 v{vFl}, s{sCFB}, 1", f"v_writelane_b32 v{vFl}, s31, 2",
          self.wf_addr(23), f"v_writelane_b32 v{vFl}, s23, 3", f"v_writelane_b32 v{vFl}, s62, 4")
        if LNPRE:
            a(f"s_and_b32 s23, s{sH}, 3", "s_lshr_b32 s31, s23, 1", "s_lshl_b32 s31, 4, s31", "s_bitcmp1_b32 s23, 0",
              "s_cselect_b32 s76, s31, 0", "s_cselect_b32 s72, 0, s31", "s_or_b32 s76, s76, 0x20", "s_or_b32 s72, s72, 0x25")
        else:
            a(f"s_and_b32 s23, s{sH}, 3", "s_cmp_eq_u32 s23, 2", "s_cselect_b32 s76, 0x2a, 0x22", "s_cselect_b32 s72, 0x27, 0x2f",
              "s_cmp_eq_u32 s23, 3", "s_cselect_b32 s72, 0x37, s72")
        for i in range(4): a(f"v_mov_b32 v{vT+4+i}, 0")
        a(f"v_lshrrev_b32 v{vT+1}, 4, v{vL}", f"v_lshrrev_b32 v{vT+2}, 3, v{vT}",
          f"v_mul_u32_u24 v{vT+2}, 3, v{vT+2}", f"v_xor_b32 v{vT+2}, v{vT+2}, v{vT+1}", f"v_lshlrev_b32 v{vT+2}, 4, v{vT+2}",
          f"v_lshl_add_u32 v{vCa}, v{vT}, 6, v{vT+2}", f"s_and_b32 s23, s{sW}, 1", "s_lshl_b32 s23, s23, 13", f"v_add_u32 v{vCa}, s23, v{vCa}")
        rest = Asm()
        rest(f"v_lshrrev_b32 v{vT+2}, 2, v{vT}", f"v_lshlrev_b32 v{vT+2}, 6, v{vT+2}", f"v_lshl_add_u32 v{vT+2}, v{vT+1}, 11, v{vT+2}",
          f"v_and_b32 v{vT+3}, 1, v{vL}", f"v_lshl_add_u32 v{vT+2}, v{vT+3}, 3, v{vT+2}", f"v_bfe_u32 v{vT+3}, v{vL}, 1, 1",
          f"v_and_b32 v{vT+1}, 1, v{vT+1}", f"v_lshl_or_b32 v{vT+3}, v{vT+1}, 1, v{vT+3}",
          f"s_lshr_b32 s23, s{sW}, 1", "s_lshl_b32 s23, s23, 13", "s_add_u32 s23, s23, 16384", f"v_add_u32 v{vT+2}, s23, v{vT+2}",
          f"v_lshl_add_u32 v{vWa}, v{vT+3}, 4, v{vT+2}", f"v_xor_b32 v{vWa+1}, 32, v{vWa}")
        TR = SPARE
        rest([f"v_mov_b32 v{vT+3}, {BIG}"] if LNPRE else lnaddr,
          f"v_lshlrev_b32 v{vTW}, 4, v{vTW}", f"v_lshl_add_u32 v{vTW}, v{vU}, 7, v{vTW}", f"v_add_u32 v{vTW}, {TR}, v{vTW}",
          f"v_lshlrev_b32 v{vKo}, 2, v{vRow}", f"v_cmp_eq_u32 vcc, 0, v{vU}", f"v_add_u32 v{vKo}, {RKEY}, v{vKo}",
          f"v_lshlrev_b32 v{vTR}, 4, v0", f"v_cndmask_b32 v{vKo}, v{vT+3}, v{vKo}, vcc", f"v_add_u32 v{vTR}, {TR}, v{vTR}",
          f"v_sub_u32 v{vRow}, 0xffff, v{vRow}",
          f"v_lshrrev_b32 v{vO1}, 3, v0", f"v_and_b32 v{vT+2}, 7, v0", f"v_lshlrev_b32 v{vT+2}, 4, v{vT+2}",
          f"v_cmp_gt_u32 vcc, 128, v0", f"v_lshl_add_u32 v{vO1}, v{vO1}, 8, v{vT+2}",
          "s_lshr_b32 s66, s2, 1", "s_mul_i32 s66, s66, 20480", "s_and_b32 s31, s2, 1", "s_lshl_b32 s31, s31, 7", "s_add_u32 s66, s66, s31",
          f"v_cndmask_b32 v{vO3}, v{vT+3}, v{vO1}, vcc", "s_add_u32 s67, s66, 8192", "s_add_u32 s78, s66, 16384", f"s_mov_b32 s{sIT}, 0")
        rl = rest.lines
        for i in range(16):
            a(f"v_mfma_f32_32x32x16_bf16 {ar(16*i,16)}, {vr(vT+4,4)}, {vr(vT+4,4)}, 0", rl[4*i:4*i+4])
        assert len(rl) <= 64
        def ln_compute(t):
            pk = lambda op, d, x, y, extra="": f"{op} {vr(d,2)}, {vr(x,2)}, {vr(y,2)}{extra}"
            for i in range(12):
                t(f"v_lshlrev_b32 v{F+2*i}, 16, v{XV+i}", f"v_and_b32 v{F+2*i+1}, 0xffff0000, v{XV+i}")
            t(pk("v_pk_add_f32", vT, F, F + 2), pk("v_pk_add_f32", vT + 2, F + 4, F + 6))
            for i in range(8, 24, 4): t(pk("v_pk_add_f32", vT, vT, F + i), pk("v_pk_add_f32", vT + 2, vT + 2, F + i + 2))
            t(pk("v_pk_add_f32", vT, vT, vT + 2), f"v_add_f32 v{vS}, v{vT}, v{vT+1}")
            allreduce32_add(t, vS, vT2)
            t(f"v_mul_f32 v{vMean}, 0xbacccccd, v{vS}", f"v_mul_f32 v{vMean+1}, 0xbacccccd, v{vS}")
            for i in range(12):
                d = vT + 4 + 2 * (i % 4); acc = vT if i < 8 else vT + 2
                t(pk("v_pk_add_f32", d, F + 2 * i, vMean))
                if i in (0, 8): t(pk("v_pk_mul_f32", acc, d, d))
                else: t(f"v_pk_fma_f32 {vr(acc,2)}, {vr(d,2)}, {vr(d,2)}, {vr(acc,2)}")
            t(f"v_add_f32 v{vT+2}, v{vT+2}, v{vT+3}", f"v_add_f32 v{vS}, v{vT}, v{vT+1}", f"v_cndmask_b32 v{vT+2}, 0, v{vT+2}, s[{sM16}:{sM16+1}]",
              f"v_add_f32 v{vS}, v{vS}, v{vT+2}")
            allreduce32_add(t, vS, vT2)
            t(f"v_mul_f32 v{vS}, 0x3acccccd, v{vS}")
            bf16r(t, vS)
            t(f"v_add_f32 v{vS}, 0x3727c5ac, v{vS}")
            bf16r(t, vS)
            t(f"v_sqrt_f32 v{vS}, v{vS}")
            bf16r(t, vMean)
            bf16r(t, vS)
            t(f"v_rcp_f32 v{vT+12}, v{vS}", f"v_mov_b32 v{vMean+1}, v{vMean}", f"v_mov_b32 v{vT+13}, v{vT+12}")
            for i in range(12):
                f0 = F + 2 * i; w0 = vT + 2 * (i % 2)
                t(pk("v_pk_add_f32", f0, f0, vMean), f"v_lshlrev_b32 v{w0}, 16, v{WR+i}", f"v_cvt_pk_bf16_f32 v{f0+1}, v{f0}, v{f0+1}",
                  f"v_and_b32 v{w0+1}, 0xffff0000, v{WR+i}", f"v_lshlrev_b32 v{f0}, 16, v{f0+1}", f"v_and_b32 v{f0+1}, 0xffff0000, v{f0+1}",
                  pk("v_pk_mul_f32", f0, f0, vT + 12), f"v_cvt_pk_bf16_f32 v{XV+i}, v{f0}, v{f0+1}",
                  f"v_lshlrev_b32 v{f0}, 16, v{XV+i}", f"v_and_b32 v{f0+1}, 0xffff0000, v{XV+i}")
                if i == 0: t(pk("v_pk_mul_f32", vAcc, f0, w0))
                else: t(f"v_pk_fma_f32 {vr(vAcc,2)}, {vr(f0,2)}, {vr(w0,2)}, {vr(vAcc,2)}")
                if i % 4 == 3: t(f"ds_write_b128 v{vTW}, {vr(XV+i-3,4)} offset:{(i//4)*4096}")
            t(f"v_add_f32 v{vAcc}, v{vAcc}, v{vAcc+1}")
            allreduce32_add(t, vAcc, vT2)
            bf16r(t, vAcc)
            t(f"v_ashrrev_i32 v{vT2}, 31, v{vAcc}", f"v_or_b32 v{vT2}, 0x80000000, v{vT2}", f"v_xor_b32 v{vAcc}, v{vAcc}, v{vT2}",
              f"v_and_b32 v{vAcc}, 0xffff0000, v{vAcc}", f"v_or_b32 v{vAcc}, v{vAcc}, v{vRow}")
        stamp(a, 2)
        if LNPRE:
            a(f"s_waitcnt vmcnt({5 if T01 else 3})")
            ln_compute(a)
            a(stampv(9))
            a(f"v_mov_b32 v{vT+3}, {BIG}")
            dma_stage()
        dma_stage(); dma_stage()
        a(f"buffer_load_dword v231, v{vT+3}, s[{sC}:{sC+3}], 0 offen")
        dma_stage()
        n1 = 0
        if not T01: a(t1); n1 = 2
        stamp(a, 3)
        a(f"s_waitcnt vmcnt({25+n1}) lgkmcnt(0)", "s_barrier")
        a(f"s_cmp_ge_u32 s{sW}, 2", f"s_cbranch_scc1 {name}_roleV")
        def reads(role, buf, off):
            CFr = (FB if role == "K" else FA) + 32 * buf
            WF = (FA if role == "K" else FB) + 32 * buf
            rc = [f"ds_read_b128 {vr(CFr+4*i,4)}, v{vCa} offset:{off + i*1024}" for i in range(8)]
            rw = [f"ds_read_b64_tr_b16 {vr(WF+4*cb+2*t,2)}, v{vWa+(cb&1)} offset:{off + t*1024 + (cb>>1)*256}" for cb in range(8) for t in range(2)]
            return rc, rw
        for role in ("K", "V"):
            if role == "V": a.label(f"{name}_roleV")
            rc, rw = reads(role, 0, 0)
            a(rc, rw, "s_waitcnt lgkmcnt(0)")
            a(".p2align 6")
            a.label(f"{name}_loop{role}")
            if DBG: a(f"s_mov_b32 m0, s{sIT}", stampv("m0"))
            for half in range(2):
                mf = [f"{MF} {ar((i*8+j)*4,4)}, {vr(FA+32*half+4*i,4)}, {vr(FB+32*half+4*j,4)}, {ar((i*8+j)*4,4)}" for i in range(8) for j in range(8)]
                sc = {}; mem = {}; va = {}
                sc[0] = [f"s_waitcnt vmcnt({17 if half == 0 else 18})"]; sc[1] = ["s_barrier"]
                rc, rw = reads(role, 1 - half, 32768 if half == 0 else 0)
                preC, lc, preW, lw, post = dma_lines()
                ds = []
                for i in range(8): ds += [rw[2*i], rw[2*i+1], rc[i]]
                for i, x in enumerate(ds): mem[2 + 2*i] = [x]
                st_ = 2 if half == 0 else 6
                sc[4] = preC
                for j in range(4): mem[5 + st_*j] = [lc[j]]
                sc[4 + 4*st_] = preW
                for j in range(4): mem[5 + st_*(4+j)] = [lw[j]]
                for j, x in enumerate(post): sc[48 + j] = [x]
                if half == 0:
                    mem[21] = [f"buffer_load_dword v231, v{vTQ}, s[{sQ2}:{sQ2+3}], s74 offen{SC}"]
                    sc[22] = ["s_add_u32 s74, s74, s73"]
                    h = self.hook(f"s_bitcmp1_b32 s72, s{sIT}", 8)
                    sc[23] = [h[0]]; sc[24] = h[1]
                    va[52] = [f"v_xor_b32 v{vCa}, 0x10000, v{vCa}"]
                    va[53] = [f"v_xor_b32 v{vWa}, 0x10000, v{vWa}"]
                    va[54] = [f"v_xor_b32 v{vWa+1}, 0x10000, v{vWa+1}"]
                    sc[63] = ["s_waitcnt lgkmcnt(0)"]
                else:
                    h = self.hook(f"s_bitcmp1_b32 s76, s{sIT}", 8)
                    sc[53] = [h[0]]; sc[54] = h[1]
                    sc[57] = [f"s_add_u32 s{sIT}, s{sIT}, 1"]
                    sc[61] = [f"s_cmp_lt_u32 s{sIT}, 8"]
                    sc[62] = ["s_waitcnt lgkmcnt(0)"]
                    sc[63] = [f"s_cbranch_scc1 {name}_loop{role}"]
                a(weave(mf, sc, mem, va))
            if role == "K":
                a("s_mov_b32 s60, 2048", "s_mov_b32 s61, 8192", f"s_mov_b32 s62, {KFO}", "s_mov_b32 s76, 0x3e0293ee", f"s_branch {name}_p1epi")
            else:
                a("s_mov_b32 s60, 8192", "s_mov_b32 s61, 2048", f"s_mov_b32 s62, {VFO}", "s_mov_b32 s76, 1.0")
        t = Asm()
        yld = ["s_getpc_b64 s[8:9]", "s_setpc_b64 s[10:11]"]
        t.label(f"{name}_co1")
        if not LNPRE: t(xloads, yld)
        t(f"buffer_load_dword v232, v234, s[{sC}:{sC+3}], s29 offen", f"buffer_store_dword v{vZero}, v{vFl}, s[{sWS}:{sWS+3}], 0 offen{SC}")
        if not LNPRE:
            t("s_waitcnt vmcnt(18)")
            ln_compute(t)
            t(yld)
        for i in range(3): t(f"ds_read_b128 {vr(XV+4*i,4)}, v{vTR} offset:{i*4096}")
        t(f"buffer_store_dword v{vAcc}, v{vKo}, s[{sWS}:{sWS+3}], 0 offen{SC}", "s_waitcnt lgkmcnt(0)",
          f"buffer_store_dwordx4 {vr(XV,4)}, v{vO1}, s[{sWS}:{sWS+3}], s66 offen{SC}",
          f"buffer_store_dwordx4 {vr(XV+4,4)}, v{vO1}, s[{sWS}:{sWS+3}], s67 offen{SC}",
          f"buffer_store_dwordx4 {vr(XV+8,4)}, v{vO3}, s[{sWS}:{sWS+3}], s78 offen{SC}")
        t(yld)
        t(f"s_mov_b32 s{sQ2}, s60", f"s_mov_b32 s{sQ2+1}, s61", f"s_mov_b32 s{sQ2+2}, s75", f"s_lshl_b32 s74, s{sI}, 2", f"s_add_u32 s74, s74, s{sW}",
          "s_lshl_b32 s74, s74, 16", f"s_mov_b32 s73, {256*8192}",
          f"v_mov_b32 v{vS}, {BIG}", f"v_mov_b32 v{vT2}, 1", f"v_writelane_b32 v{vS}, s77, 0", f"v_lshlrev_b32 v{vZero}, 2, v{vL}")
        if LNPRE: t(f"s_and_b32 s23, s{sH}, 3", f"s_cbranch_scc0 {name}_arr")
        t(yld)
        t.label(f"{name}_arr")
        t(f"buffer_store_byte v{vT2}, v{vS}, s[{sDb}:{sDb+3}], 0 offen{SC}", yld)
        t(f"buffer_load_dword v{vPoll}, v{vZero}, s[{sDb}:{sDb+3}], 0 offen{SC}", yld)
        t(f"s_mov_b32 s{sWt}, s60", f"s_mov_b32 s{sWt+1}, s61", f"s_mov_b32 s{sWt+2}, s75",
          f"s_lshr_b32 s{sOW}, s{sW}, 1", f"s_lshl_b32 s{sOW}, s{sOW}, 18", f"s_mov_b32 s{sStep}, {64*8192}",
          f"s_mov_b32 s{sC}, s18", f"s_mov_b32 s{sC+1}, s19", f"s_mov_b32 s{sC+2}, {2048*1280}", f"s_mov_b32 s{sOC}, 0", "s_movk_i32 s79, 1024",
          f"s_lshl_b32 s23, s{sI}, 2", f"s_add_u32 s23, s23, s{sW}", f"s_mul_i32 s23, s23, {2*20480}", f"v_add_u32 v{vCo}, s23, v{vL16}",
          f"s_sub_u32 s23, 15, s{sI}", "s_lshl_b32 s23, s23, 2", f"s_add_u32 s23, s23, s{sW}", f"s_mul_i32 s23, s23, {2*20480}", "s_sub_u32 s23, s23, 2048",
          f"v_add_u32 v{vCo+2}, s23, v{vL16}", f"v_add_u32 v{vCo+1}, {20480-1024}, v{vCo}", f"v_add_u32 v{vCo+3}, {20480-1024}, v{vCo+2}",
          )
        if os.environ.get("XT", "0") == "1":
            t(f"s_mov_b32 s{sQ2}, s18", f"s_mov_b32 s{sQ2+1}, s19", f"s_mov_b32 s{sQ2+2}, {2048*1280}", "s_movk_i32 s73, 8192",
              f"s_sub_u32 s23, 15, s{sI}", f"s_bitcmp1_b32 s{sH}, 1", f"s_cselect_b32 s23, s23, s{sI}", "s_lshl_b32 s23, s23, 2", f"s_add_u32 s23, s23, s{sW}",
              "s_lshl_b32 s23, s23, 1", f"s_and_b32 s31, s{sH}, 1", "s_add_u32 s23, s23, s31", "s_mul_i32 s74, s23, 20480", "s_add_u32 s74, s74, 4096",
              f"v_lshlrev_b32 v{vTQ}, 7, v{vL}")
        t("s_waitcnt vmcnt(8)")
        self.poll_check(t, "ln", vPoll, vZero, sDb, [f"v_cmp_ne_u32 vcc, 0x01010101, v{vPoll}"])
        t("s_setpc_b64 s[10:11]")
        self.tail += t.lines
        a.label(f"{name}_p1epi")
        stamp(a, 4)
        self.sWq = sWt; self.sXs = sC; self.sWoff = sOW; self.sXoff = sOC

    def kv_item(self, tt, j, D):
        sc = []
        if j == 0: sc = [f"s_mul_i32 s63, s60, {tt}", "s_add_u32 s63, s63, s62"]
        elif j % 2 == 0: sc = ["s_add_u32 s63, s63, s61"]
        regs = [((2*tt)*8+j)*4+r for r in range(4)] + [((2*tt+1)*8+j)*4+r for r in range(4)]
        va = [f"v_accvgpr_read_b32 v{vT+k}, a{r}" for k, r in enumerate(regs)]
        va += [f"v_mul_f32 v{vT+k}, s76, v{vT+k}" for k in range(8)]
        va += [f"v_cvt_pk_bf16_f32 v{D+r}, v{vT+2*r}, v{vT+1+2*r}" for r in range(4)]
        z = [f"v_accvgpr_write_b32 a{r}, 0" for r in regs if r < 128]
        st = f"buffer_store_dwordx4 {vr(D,4)}, v{vL16}, s[{sWS}:{sWS+3}], s63 offen offset:{(j&1)*1024}{os.environ.get('KVSC', SC)}"
        return sc, va, z, st

    def top8(self):
        name = self.name
        self.a(f"s_cmp_eq_u32 s2, {TOPWG}", f"s_cbranch_scc1 {name}_top8")
        self.a.label(f"{name}_notop")
        a = Asm()
        KEY = 96
        a.label(f"{name}_top8")
        a(f"s_cmp_lg_u32 s{sW}, 0", f"s_cbranch_scc1 {name}_notop")
        a(f"s_mov_b32 s23, {RKEY}", f"s_mov_b32 s31, {RKEY+4096}")
        for q in range(8):
            a(f"buffer_load_dwordx4 {vr(KEY+4*q,4)}, v{vL16}, s[{sWS}:{sWS+3}], s{23 if q < 4 else 31} offen offset:{(q%4)*1024}{SC}")
        vM, vPrev, vSel, vTok, vTmp, vRow, vR = vT + 4, vT + 5, vT + 6, vT + 7, vT + 8, vT + 9, vT + 10
        a(f"v_mov_b32 v{vPrev}, 0", f"v_mov_b32 v{vSel}, 0", f"v_and_b32 v{vTok}, 7, v{vL}", "s_mov_b32 s23, 0", "s_waitcnt vmcnt(0)")
        a.label(f"{name}_top")
        a(f"v_max3_u32 v{vM}, v{KEY}, v{KEY+1}, v{KEY+2}", f"v_max3_u32 v{vTmp}, v{KEY+3}, v{KEY+4}, v{KEY+5}")
        for q in range(6, 30, 4):
            a(f"v_max3_u32 v{vM}, v{vM}, v{KEY+q}, v{KEY+q+1}", f"v_max3_u32 v{vTmp}, v{vTmp}, v{KEY+q+2}, v{KEY+q+3}")
        a(f"v_max3_u32 v{vM}, v{vM}, v{KEY+30}, v{KEY+31}", f"v_max_u32 v{vM}, v{vM}, v{vTmp}")
        for m in ("quad_perm:[1,0,3,2]", "quad_perm:[2,3,0,1]", "row_half_mirror", "row_mirror"):
            a("s_nop 1", f"v_max_u32_dpp v{vM}, v{vM}, v{vM} {m} row_mask:0xf bank_mask:0xf")
        xreduce(a, "v_max_u32", vM, vTmp)
        a(f"v_add_u32 v{vPrev}, v{vPrev}, v{vM}", f"v_cmp_eq_u32 vcc, s23, v{vTok}")
        for q in range(32): a(f"v_sub_u32 v{KEY+q}, v{KEY+q}, v{vM}")
        a(f"v_cndmask_b32 v{vSel}, v{vSel}, v{vPrev}, vcc", "s_add_u32 s23, s23, 1", "s_cmp_lt_u32 s23, 8", f"s_cbranch_scc1 {name}_top")
        a(f"v_and_b32 v{vRow}, 0xffff, v{vSel}", f"v_sub_u32 v{vRow}, 0xffff, v{vRow}", f"v_and_b32 v{vRow}, 2047, v{vRow}")
        a(f"v_ashrrev_i32 v{vM}, 31, v{vSel}", f"v_not_b32 v{vM}, v{vM}", f"v_or_b32 v{vM}, 0x80000000, v{vM}",
          f"v_xor_b32 v{vR}, v{vSel}, v{vM}", f"v_and_b32 v{vR}, 0xffff0000, v{vR}",
          f"v_mul_f32 v{vR}, 0xbfb8aa3b, v{vR}", f"v_exp_f32 v{vR}, v{vR}", "s_nop 0", f"v_add_f32 v{vR}, 1.0, v{vR}",
          f"v_rcp_f32 v{vR}, v{vR}", "s_nop 0")
        bf16r(a, vR)
        a(f"v_lshlrev_b32 v{vM}, 2, v{vL}", f"v_add_u32 v{vM}, {SEL}, v{vM}", f"v_mov_b32 v{vPrev}, {BIG}",
          f"v_cmp_gt_u32 vcc, 16, v{vL}", f"v_add_u32 v{vRow}, 1, v{vRow}", f"v_or_b32 v{vR}, 1, v{vR}", f"v_cndmask_b32 v{vM}, v{vPrev}, v{vM}, vcc",
          f"v_cmp_gt_u32 vcc, 8, v{vL}", "s_nop 1", f"v_cndmask_b32 v{vR}, v{vR}, v{vRow}, vcc",
          f"buffer_store_dword v{vR}, v{vM}, s[{sWS}:{sWS+3}], 0 offen{SC}", f"s_branch {name}_notop")
        self.tail += a.lines

    def phase2(self):
        a = self.a; name = self.name
        sWq, sXs, sWoff, sXoff = self.sWq, self.sXs, self.sWoff, self.sXoff
        XB = 224; vXa = 14; sW4 = 24
        vm = VM()
        vm.issue("X1", 4); vm.issue("W1", 4); vm.issue("X2", 4); vm.issue("W2", 4); vm.issue("T"); vm.issue("X3", 4); vm.issue("W3", 4)
        def wreads(buf, off):
            return [f"ds_read_b64_tr_b16 {vr(Q+32*buf+4*cb+2*t,2)}, v{vWa+(cb&1)} offset:{off + t*1024 + (cb>>1)*256}" for cb in range(8) for t in range(2)]
        def xreads(buf, off):
            return [f"ds_read_b128 {vr(XB+16*buf+4*qb,4)}, v{vXa} offset:{off + qb*1024}" for qb in range(4)]
        a(f"s_lshr_b32 s23, s{sW}, 1", "s_lshl_b32 s23, s23, 13", f"v_subrev_u32 v{vWa}, s23, v{vWa}", f"v_subrev_u32 v{vWa+1}, s23, v{vWa+1}",
          f"s_lshl_b32 s{sW4}, s{sW}, 12", f"v_add_u32 v{vXa}, s{sW4}, v{vL16}")
        a(wreads(0, 0), f"s_waitcnt vmcnt({vm.need('T')})", xreads(0, 0))
        a(f"s_lshl_b32 s23, s{sH}, 19", "s_add_u32 s62, s62, s23", f"s_lshl_b32 s23, s{sI}, 16", "s_add_u32 s62, s62, s23",
          f"s_and_b32 s23, s{sW}, 1", "s_lshl_b32 s23, s23, 15", "s_add_u32 s62, s62, s23")
        a(f"s_lshl_b32 s23, s{sH}, 19", f"s_add_u32 s23, s23, {KFO}", "s_add_u32 s6, s18, s23", "s_addc_u32 s7, s19, 0",
          f"s_add_u32 s8, s6, {VFO-KFO}", "s_addc_u32 s9, s7, 0", f"s_sub_u32 s23, 16, s{sI}", "s_lshl_b32 s23, s23, 15")
        srd(a, sK, "s6", "s7", "s23")
        srd(a, sV, "s8", "s9", "s23")
        a(f"s_lshl_b32 s30, s{sH}, 7", f"s_add_u32 s30, s30, {KVF}", f"s_mov_b32 s{sThr}, 0x47800000",
          f"s_cmp_eq_u32 s{sW}, 0", f"s_cselect_b32 s29, s{sKVa}, {BIG}")
        a(f"s_waitcnt vmcnt({vm.need('X1')}) lgkmcnt(0)")
        stamp(a, 6)
        items = [(tt, j) for tt in range(4) for j in range(8)]
        per = [int(c) for c in os.environ.get("PER", "33333322222220000000")]
        assert sum(per) == 32 and len(per) == 20
        lastst = max(k for k in range(20) if per[k])
        SFLAG = lastst + 2 if lastst % 2 else lastst + 3
        if "SFLAG" in os.environ: SFLAG = int(os.environ["SFLAG"])
        SPOLL = int(os.environ.get('SPOLL', '18'))
        assert SFLAG <= 17 and lastst <= 14
        misc = [f"v_and_b32 v11, 15, v{vL}", f"v_lshrrev_b32 v10, 4, v{vL}", "v_lshlrev_b32 v10, 2, v10", "v_sub_u32 v11, v11, v10"]
        misc += [f"v_cmp_le_i32 s[{sMask+2*r}:{sMask+2*r+1}], {r}, v11" for r in range(4)]
        misc += [f"v_and_b32 v{vPo}, 7, v{vL}", f"v_lshlrev_b32 v{vPo}, 2, v{vPo}", f"v_add_u32 v{vPo}, s30, v{vPo}"]
        flagst = f"buffer_store_dword v{vWa}, off, s[{sWS}:{sWS+3}], s29{SC}"
        pollld = f"buffer_load_dword v{vPoll}, v{vPo}, s[{sWS}:{sWS+3}], 0 offen{SC}"
        it = 0; zpool = []
        for s_ in range(20):
            buf = s_ & 1
            C = lambda d: "0" if s_ == 0 else vr(d, 4)
            mf = [f"{MF} {vr(QACC+(db*4+qb)*4,4)}, {vr(Q+32*buf+4*db,4)}, {vr(XB+16*buf+4*qb,4)}, {C(QACC+(db*4+qb)*4)}" for qb in range(4) for db in range(8)]
            sc = {g: [] for g in range(32)}; mem = {g: [] for g in range(32)}; va = {g: [] for g in range(32)}
            tags = {g: [] for g in range(32)}
            if s_ & 1: sc[0].append("s_barrier")
            vpos = [3, 8, 13, 18, 23, 28]
            if s_ < 19:
                off = [8192, 32768, 32768 + 8192, 0][s_ % 4]
                rd = wreads(1 - buf, off); xr = xreads(1 - buf, 32768 if s_ % 2 == 0 else 0)
                ds = rd[:8] + xr[:2] + rd[8:] + xr[2:]
                dpos = [g for g in range(1, 27) if g not in vpos][:20]
                for p_, x in zip(dpos, ds): mem[p_].append(x)
            if s_ + 4 < 20:
                sc[2].append(f"s_add_u32 m0, s{sW4}, {(s_%4)*32768}")
                for j in range(4):
                    mem[vpos[j]].append(f"buffer_load_dwordx4 v{vCo+j}, s[{sXs}:{sXs+3}], s{sXoff} offen offset:{j*1024}{SC} lds"); tags[vpos[j]].append(f"X{s_+4}")
                sc[19].append(f"s_add_u32 s{sXoff}, s{sXoff}, 1024")
            stage = (s_ + 1) // 2 + 3
            if s_ >= 1 and stage < 10:
                sc[22].append(f"s_add_u32 m0, s{sW4}, {(stage%4)*32768+16384}")
                for jj in range(2):
                    j = jj if s_ & 1 else 2 + jj
                    mem[vpos[4+jj]].append(f"buffer_load_dwordx4 v{vWo+j}, s[{sWq}:{sWq+3}], s{sWoff} offen offset:{j*1024} lds"); tags[vpos[4+jj]].append(f"W{stage}")
                if not s_ & 1: sc[29].append(f"s_add_u32 s{sWoff}, s{sWoff}, {64*8192}")
            if s_ % 4 == 2:
                va[29].append(f"v_xor_b32 v{vWa}, 0x10000, v{vWa}"); va[30].append(f"v_xor_b32 v{vWa+1}, 0x10000, v{vWa+1}")
            if s_ % 2 == 0: va[27].append(f"v_xor_b32 v{vXa}, 0x10000, v{vXa}")
            if s_ == SFLAG:
                mem[0].append(flagst); tags[0].append("flag")
            if s_ == SPOLL:
                mem[3].append(pollld); tags[3].append("poll")
            toks = []
            for k in range(per[s_]):
                tt, j = items[it]; D = vT + 8 + 4 * (it % 2); it += 1
                isc, iva, z, ist = self.kv_item(tt, j, D)
                toks += [("s", x) for x in isc] + [("v", x) for x in iva] + [("st", ist)]
                zpool += z
            if s_ == 13: toks += [("v", x) for x in misc]
            if s_ == 16:
                for q in range(5):
                    toks += [("v", x) for x in [f"v_add_u32 v{vT+4}, {64*q}, v{vL}", f"v_mul_u32_u24 v{vT+3}, 6554, v{vT+4}", f"v_lshrrev_b32 v{vT+3}, 16, v{vT+3}",
                             f"v_mul_u32_u24 v{vT+3}, {1280-160}, v{vT+3}", f"v_lshl_add_u32 v{vT+8+q}, v{vT+4}, 4, v{vT+3}", f"v_accvgpr_write_b32 a{248+q}, v{vT+8+q}"]]
                toks += [("s", x) for x in [f"s_mul_i32 s34, s{sW}, 5120", f"s_add_u32 s34, s34, {SPARE}"] + self.co_setup()[:-3]]
                toks = [t_ for t_ in toks if t_[0] == "s"] + [t_ for t_ in toks if t_[0] != "s"]
            if s_ == 17:
                toks += [("s", x) for x in [f"s_and_b32 s23, s{sW}, 1", "s_lshl_b32 s23, s23, 12", f"s_cmp_lt_u32 s{sW}, 2", f"s_cselect_b32 s{sKm}, {131072-24576}, 0",
                         f"s_add_u32 s{sKm}, s{sKm}, s23", f"s_lshl_b32 s{sKo}, s{sW}, 12", f"s_mov_b32 s{sVo}, s{sKo}", f"s_add_u32 s{sVm}, s{sVo}, {32768+16384}",
                         "s_load_dwordx4 s[4:7], s[0:1], 64", "s_load_dwordx2 s[60:61], s[0:1], 80",
                         f"s_add_u32 s23, s{sW}, 1", "s_lshr_b32 s23, s23, 1", f"s_lshl_b32 s{sCnt}, s{sI}, 1", f"s_add_u32 s{sCnt}, s{sCnt}, s23",
                         f"s_lshl_b32 s23, s{sI}, 2", f"s_sub_u32 s{sNSS}, 28, s23", f"s_and_b32 s23, s{sW}, 1", f"s_add_u32 s{sNSS}, s{sNSS}, s23"]]
                toks += [("v", x) for x in [f"v_lshrrev_b32 v6, 2, v{vL}", "v_mul_u32_u24 v6, 160, v6", f"v_and_b32 v{vT+3}, 3, v{vL}",
                         f"v_lshl_add_u32 v6, v{vT+3}, 3, v6", "v_add_u32 v6, s34, v6", f"v_mov_b32 v{vKV}, v{vL16}", f"v_mov_b32 v{vNI}, 0xff800000",
                         f"v_add_u32 v{vT+2}, {3*32768+8192}, v{vL16}"]]
            if s_ == 18:
                toks += [("s", x) for x in [f"s_cmp_ge_u32 s{sW}, 2", "s_cselect_b32 s4, s6, s4", "s_cselect_b32 s5, s7, s5",
                         f"s_mov_b32 s62, {1728*1280}", "s_mov_b32 s63, 0x20000",
                         "s_mov_b64 s[56:57], s[52:53]", "s_mov_b32 s58, s54", "s_mov_b64 s[52:53], s[4:5]", f"s_mov_b32 s54, {640*3456}"] + self.co_setup()[-3:]]
            if s_ == 19:
                tmp = Asm()
                self.poll_check(tmp, "kv", vPoll, vPo, sWS, [f"v_cmp_eq_u32 vcc, 0, v{vPoll}"])
                va[0].append(tmp.lines[0]); sc[1] += tmp.lines[1:]
                for p_ in range(3):
                    g0 = 2 + 10 * p_
                    sc[g0].append(f"s_mov_b32 m0, s{sKm}")
                    for j in range(4): mem[g0+1+2*j].append(f"buffer_load_dwordx4 v{vL16}, s[{sK}:{sK+3}], s{sKo} offen offset:{j*1024}{SC} lds")
                    sc[g0+2].append(f"s_add_u32 s{sKm}, s{sKm}, 32768"); sc[g0+3].append(f"s_and_b32 s{sKm}, s{sKm}, 0x1ffff")
                    sc[g0+8].append(f"s_add_u32 s{sKo}, s{sKo}, 16384")
                def cvq(X, qb):
                    return [f"v_cvt_pk_bf16_f32 v{Q+32*X+8*ks+4*qb+2*hh+e}, v{QACC+((2*ks+hh)*4+2*X+qb)*4+2*e}, v{QACC+((2*ks+hh)*4+2*X+qb)*4+2*e+1}"
                            for ks in range(4) for hh in range(2) for e in range(2)]
                for q, x in enumerate(cvq(0, 0)): va[10 + q * 10 // 16].append(x)
                for q, x in enumerate(cvq(0, 1)): va[20 + q * 11 // 16].append(x)
            cap = [max(0, 2 - len(mem[g]) - len(va[g])) for g in range(31)]
            nv = sum(1 for t_ in toks if t_[0] != "s")
            nz = len(zpool) if s_ == 19 else min(len(zpool), max(0, sum(cap) - nv - per[s_] - 1))
            toks += [("v", x) for x in zpool[:nz]]; zpool = zpool[nz:]
            nv += nz
            extra = max(0, nv + per[s_] + 1 - sum(cap))
            for q in range(extra): cap[(q * 30 // extra) % 30] += 1
            g = 0; smin = 0
            for kind, x in toks:
                if kind == "s":
                    gg = max(g, smin)
                    while sc[gg] and gg < max(g, smin) + 3 and gg < 30: gg += 1
                    gg = min(gg, 30)
                    sc[gg].append(x); smin = gg + 1
                    continue
                if kind == "st": g = max(g + 1, smin - 1)
                while cap[g] == 0: g += 1
                cap[g] -= 1
                if kind == "v": va[g].append(x)
                else:
                    mem[g].append(x); tags[g].append("st"); smin = g + 1
            for g in range(31):
                for t_ in tags[g]: vm.issue(t_)
            if s_ < 19:
                need = []
                if s_ + 2 < 20: need.append(f"X{s_+2}")
                if (s_ + 1) & 1:
                    st1 = (s_ + 2) // 2
                    if st1 < 10: need.append(f"W{st1}")
                if s_ + 1 == SFLAG: need.append("st")
                if s_ == 18: need.append("poll")
                sc[31].append(f"s_waitcnt vmcnt({vm.need(*need)}) lgkmcnt(0)" if need else "s_waitcnt lgkmcnt(0)")
            for t_ in tags[31]: vm.issue(t_)
            if os.environ.get("QST"): a(stampv(30 + s_))
            a(weave(mf, sc, mem, va))
        assert it == 32 and not zpool
        stamp(a, 5); stamp(a, 7)
        cv = cvq(1, 0) + cvq(1, 1) + [f"v_mov_b32 v{LS+i}, 0" for i in range(4)]
        for p_ in range(2):
            a(f"s_mov_b32 m0, s{sVm}", "s_nop 0")
            for j in range(4):
                a(f"buffer_load_dwordx4 v{vL16}, s[{sV}:{sV+3}], s{sVo} offen offset:{j*1024}{SC} lds", cv[:5]); cv = cv[5:]
            a(f"s_add_u32 s{sVo}, s{sVo}, 16384", f"s_add_u32 s{sVm}, s{sVm}, 32768", f"s_and_b32 s{sVm}, s{sVm}, 0x1ffff")
        assert not cv
        a("s_waitcnt vmcnt(12)", "s_barrier")
        a([f"ds_read_b128 {ar(KF+4*i,4)}, v{vT+2} offset:{i*1024}" for i in range(8)])
        self.top8()
        a("s_waitcnt lgkmcnt(4)")

    def wf_addr(self, d):
        return [f"s_and_b32 s{d}, s2, 1", f"s_lshl_b32 s{d}, s{d}, 2", f"s_add_u32 s{d}, s{d}, s{sW}", f"s_lshl_b32 s{d}, s{d}, 7",
                "s_lshr_b32 s31, s2, 1", f"s_add_u32 s{d}, s{d}, s31", f"s_lshl_b32 s{d}, s{d}, 2", f"s_add_u32 s{d}, s{d}, {WF}"]
    def yf_addr(self, d):
        return [f"s_sub_u32 s{d}, s2, {FFN0}", f"s_lshl_b32 s31, s{sW}, 6", f"s_add_u32 s{d}, s{d}, s31", f"s_lshl_b32 s{d}, s{d}, 2", f"s_add_u32 s{d}, s{d}, {YF}"]
    def flag_store(self, addr_lines, wait):
        return addr_lines + [wait, f"buffer_store_dword v{vNI}, off, s[{sWS}:{sWS+3}], s23{SC}"]

    def co_setup(self):
        name = self.name
        return (["s_mov_b32 s101, 24"] if DBG else []) + [f"s_and_b32 s32, s{sH}, 3", "s_add_u32 s32, s32, 6", "s_lshl_b32 s32, s32, 14",
          "s_cmp_lt_u32 s2, 64", "s_cselect_b32 s32, s32, 0", "s_cselect_b32 s9, -1, 0", f"s_sub_u32 s23, s2, {FFN0}", f"s_cmp_lt_u32 s23, {FFN1-FFN0}",
          f"s_cselect_b32 s32, {6*16384}, s32", "s_cselect_b32 s9, -1, s9", "s_mov_b32 s67, s2", "s_mov_b32 s8, 0", f"s_mov_b32 s{k2.sRing}, 0", "s_mov_b32 s11, 0", "s_mov_b32 s12, 0",
          f"s_lshl_b32 s15, s{sI}, 1", "s_add_u32 s23, s15, 6", f"s_sub_u32 s15, {32-self.U}, s15", "s_max_u32 s15, s15, s23", "s_lshl_b32 s15, s15, 14",
          f"s_getpc_b64 s[36:37]\n{name}_copc:", f"s_add_u32 s36, s36, {name}_co-{name}_copc-4", "s_addc_u32 s37, s37, 0"]

    def cyc(self, lane):
        if not (DBG and os.environ.get("CYC")): return []
        return ["s_memtime s[98:99]", "s_waitcnt lgkmcnt(0)", f"v_writelane_b32 v7, s98, {lane}"]

    def hook(self, cond=None, R=36):
        k = self.nhook; self.nhook += 1
        n = self.name
        dbg = ["s_memrealtime s[98:99]", "s_waitcnt lgkmcnt(0)", "s_mov_b32 s100, s98"] if (DBG and os.environ.get("REC")) else []
        self.tail += [f"{n}_hk{k}:"] + dbg + [f"s_getpc_b64 s[{R+2}:{R+3}]", f"{n}_hp{k}:", f"s_add_u32 s{R}, s{R}, 4", f"s_addc_u32 s{R+1}, s{R+1}, 0",
                      f"s_sub_u32 s{R+2}, s{R+2}, {n}_hp{k}-{n}_hb{k}", f"s_subb_u32 s{R+3}, s{R+3}, 0", f"s_setpc_b64 s[{R}:{R+1}]"]
        return [cond or f"s_cmp_ge_u32 s{sKo}, s32", [f"s_cbranch_scc1 {n}_hk{k}", f"{n}_hb{k}:"]]

    def coroutine(self):
        name = self.name
        a = Asm()
        cnt = [0]
        def rec():
            if DBG and os.environ.get("REC"): a("s_memrealtime s[98:99]", "s_waitcnt lgkmcnt(0)", "s_sub_u32 s98, s98, s100", "s_lshl_b32 s98, s98, 16", "s_and_b32 s100, s100, 0xffff",
                      "s_or_b32 s98, s98, s100", "s_mov_b32 m0, s101", "s_add_u32 s101, s101, 1", "v_writelane_b32 v7, s98, m0")
        def yld(n=1):
            for _ in range(n):
                rec()
                a("s_getpc_b64 s[36:37]", "s_setpc_b64 s[38:39]")
        G = 232; FW = 192; FX = 212; Y = 236
        def wo_reads():
            a("s_waitcnt vmcnt(8)")
            for cb in range(5):
                for tt in range(2): a(f"ds_read_b64_tr_b16 {vr(232+4*cb+2*tt,2)}, v6 offset:{tt*16*160 + cb*32}")
        def wo_stores():
            a("s_add_u32 s31, s30, 4096")
            for cb in range(5):
                a(f"buffer_store_dwordx4 {vr(232+4*cb,4)}, v{vL16}, s[{sWS}:{sWS+3}], s{30 if cb < 4 else 31} offen offset:{(cb%4)*1024}{SC}")
        a.label(f"{name}_co")
        a(f"s_sub_u32 s14, s2, {FFN0}", f"s_cmp_lt_u32 s14, {FFN1-FFN0}", f"s_cbranch_scc1 {name}_coF",
          "s_sub_u32 s14, s2, 64", "s_cmp_lt_u32 s14, 96", f"s_cbranch_scc1 {name}_coT",
          f"s_cmp_eq_u32 s2, {TOPWG}", f"s_cbranch_scc1 {name}_coW",
          "s_sub_u32 s14, s2, 128", "s_cmp_ge_u32 s2, 224", f"s_cbranch_scc0 {name}_coO")
        a.label(f"{name}_coT")
        a(f"v_min_u32 v8, 16, v{vL}", "v_lshlrev_b32 v8, 7, v8", "s_lshl_b32 s10, s14, 1", f"s_and_b32 s31, s{sW}, 1", "s_add_u32 s10, s10, s31",
          f"s_mul_i32 s10, s10, {17*128}", "s_lshl_b32 s35, s14, 2", f"s_add_u32 s35, s35, s{sW}", f"s_mul_i32 s35, s35, {34*128}")
        for k in range(4):
            a("buffer_load_dword v255, v8, s[52:55], s10 offen", f"s_add_u32 s10, s10, {160*3456}")
            if k >= 2: a(f"buffer_load_dword v255, v8, s[60:63], s35 offen offset:{(k-2)*17*128}")
            if k == 3: a("s_mov_b32 s9, -1", f"s_and_b32 s32, s{sH}, 3", "s_lshr_b32 s32, s32, 1", "s_add_u32 s32, s32, 6", "s_lshl_b32 s32, s32, 14")
            yld()
        a.label(f"{name}_coO")
        a("s_and_b32 s23, s67, 1", "s_lshl_b32 s23, s23, 2", f"s_add_u32 s23, s23, s{sW}", "s_lshr_b32 s31, s67, 1",
          "s_lshl_b32 s30, s23, 7", "s_add_u32 s30, s30, s31", f"s_mul_i32 s33, s31, {32*1280}", "s_mul_i32 s23, s23, 160", "s_add_u32 s33, s33, s23")
        for q in range(5):
            a(f"s_add_u32 m0, s34, {q*1024}", f"v_accvgpr_read_b32 v{vT+3}, a{248+q}", f"buffer_load_dwordx4 v{vT+3}, s[56:59], s33 offen lds")
        a(f"s_add_u32 s32, s{sKo}, {2*16384}", "s_mov_b32 s9, -1", "s_lshl_b32 s10, s30, 2", "s_mul_i32 s30, s30, 5120", f"s_add_u32 s30, s30, {WOF}")
        yld()
        wo_reads()
        a("s_waitcnt lgkmcnt(0)")
        wo_stores()
        yld()
        a(self.flag_store([f"s_add_u32 s23, s10, {WF}"], "s_waitcnt vmcnt(8)"),
          "s_sub_u32 s23, s67, 96", f"s_cmp_gt_u32 s23, {FFN1-FFN0}", f"s_cbranch_scc1 {name}_coW",
          f"s_add_u32 s67, s23, {FFN0}", f"s_cmp_eq_u32 s67, {FFN1}", f"s_cselect_b32 s67, {TOPWG}, s67", f"s_branch {name}_coO")
        FV = self.FV
        a.label(f"{name}_coF")
        a(f"v_and_b32 v{vT}, 7, v{vL}", f"v_lshlrev_b32 v252, 2, v{vT}", f"v_add_u32 v252, {SEL}, v252",
          f"buffer_load_dword v15, v252, s[{sWS}:{sWS+3}], 0 offen{SC}")
        a("s_lshl_b32 s33, s14, 6", f"s_and_b32 s31, s{sW}, 1", "s_lshl_b32 s31, s31, 5", "s_add_u32 s33, s33, s31",
          "s_mul_i32 s35, s14, 40960", f"s_mul_i32 s31, s{sW}, 320", "s_add_u32 s35, s35, s31",
          "s_mul_i32 s10, s14, 20480", f"s_mul_i32 s31, s{sW}, 640", "s_add_u32 s10, s10, s31", f"s_add_u32 s10, s10, {YP}")
        a(f"v_lshrrev_b32 v{vT+1}, 1, v{vL}", f"v_mul_u32_u24 v{FV[0]}, 3456, v{vT+1}", f"v_and_b32 v{vT+1}, 1, v{vL}", f"v_lshl_add_u32 v{FV[0]}, v{vT+1}, 4, v{FV[0]}")
        for q in range(1, 5): a(f"v_add_u32 v{FV[q]}, {q*32*3456 - (q%4)*1024}, v{FV[0]}")
        a(f"v_lshrrev_b32 v{vT+1}, 4, v{vL}",
          f"v_lshrrev_b32 v{vT+2}, 2, v{vL}", f"v_lshl_add_u32 v{vT+2}, v{vT+1}, 2, v{vT+2}",
          f"v_lshlrev_b32 v{vT+2}, 5, v{vT+2}", f"v_and_b32 v{vT+3}, 3, v{vL}", f"v_lshl_add_u32 v9, v{vT+3}, 3, v{vT+2}", "v_add_u32 v9, s34, v9",
          f"v_lshlrev_b32 v10, 4, v{vT}", f"v_lshl_add_u32 v10, v{vT+1}, 7, v10", f"v_add_u32 v10, {XS}, v10", "s_mov_b32 s8, -1")
        for k in range(4): a(f"v_mov_b32 v{G+k}, 0")
        yld()
        a("s_waitcnt vmcnt(8)")
        self.poll_check(a, "sel", 15, 252, sWS, ["v_cmp_eq_u32 vcc, 0, v15"])
        a(f"v_add_u32 v{vT+2}, -1, v15", f"v_and_b32 v{vT+2}, 2047, v{vT+2}", f"v_lshrrev_b32 v{vT+3}, 4, v{vT+2}", f"v_mul_u32_u24 v{vT+3}, 20480, v{vT+3}",
          f"v_and_b32 v{vT+2}, 15, v{vT+2}", f"v_lshl_add_u32 v{vT+3}, v{vT+2}, 4, v{vT+3}",
          f"v_lshrrev_b32 v{vT+2}, 3, v{vL}", f"v_lshl_add_u32 v{vT+3}, v{vT+2}, 8, v{vT+3}",
          f"s_lshl_b32 s23, s{sW}, 11", f"s_lshl_b32 s31, s{sW}, 10", f"s_add_u32 s31, s31, {XS}", "s_mov_b32 s14, 4")
        for k in range(3):
            a("s_mov_b32 m0, s31", "s_add_u32 s31, s31, 4096", f"buffer_load_dwordx4 v{vT+3}, s[{sWS}:{sWS+3}], s23 offen{SC} lds",
              "s_add_u32 s23, s23, 8192")
        yld()
        a(f"s_branch {name}_coG1")
        gm = [f"{MF} {vr(G,4)}, {ar(FW+4*q,4)}, {ar(FX+4*q,4)}, {vr(G,4)}" for q in range(5)]
        a.label(f"{name}_coG")
        yld()
        a(gm)
        a.label(f"{name}_coG1")
        a("s_waitcnt vmcnt(4)")
        for q in range(5):
            for t in range(2): a(f"ds_read_b64_tr_b16 {ar(FW+4*q+2*t,2)}, v9 offset:{q*1024+t*128}")
            a(f"ds_read_b128 {ar(FX+4*q,4)}, v10 offset:{q*512}")
        a("v_add_u32 v10, 2560, v10", f"s_add_u32 s33, s33, {160*3456}", "s_sub_u32 s14, s14, 1", "s_cmp_lg_u32 s14, 0", f"s_cbranch_scc1 {name}_coG")
        for q in range(5): a(f"v_accvgpr_read_b32 v{FV[q]}, a{248+q}")
        for q in range(1, 4): a(f"v_subrev_u32 v{FV[q]}, {q*1024}, v{FV[q]}")
        a("s_mov_b32 s52, s60", "s_mov_b32 s53, s61", "s_mov_b32 s33, s35",
          f"s_lshl_b32 s23, s{sW}, 9", f"v_add_u32 v{vT}, s23, v10",
          f"v_and_b32 v{vT+1}, 7, v{vL}", f"v_mul_u32_u24 v9, 2560, v{vT+1}", f"v_lshrrev_b32 v{vT+1}, 4, v{vL}", f"v_lshl_add_u32 v9, v{vT+1}, 4, v9",
          f"v_and_b32 v{vT+1}, 8, v{vL}", f"v_lshl_add_u32 v9, v{vT+1}, 27, v9", "s_waitcnt lgkmcnt(0)")
        a(gm, "s_nop 7", f"ds_write_b128 v{vT}, {vr(G,4)}")
        yld()
        GU = 236
        def dreads():
            a("s_waitcnt vmcnt(4)")
            for cb in range(5):
                for t in range(2): a(f"ds_read_b64_tr_b16 {ar(FW+4*cb+2*t,2)}, v6 offset:{t*2560+cb*32}")
        def dmm():
            a("s_waitcnt lgkmcnt(0)")
            for cb in range(5): a(f"{MF} {vr(Y+4*cb,4)}, {ar(FW+4*cb,4)}, {vr(G,4)}, 0")
            a("s_nop 3")
            for cb in range(5): a(f"buffer_store_dwordx4 {vr(Y+4*cb,4)}, v9, s[{sWS}:{sWS+3}], s10 offen offset:{cb*64}{SC}")
            a("s_add_u32 s10, s10, 320")
        for k in range(4): a(f"ds_read_b128 {vr(GU+4*k,4)}, v10 offset:{k*512}")
        dreads()
        a("s_add_u32 s33, s33, 160", "s_mov_b32 s8, 0", "s_waitcnt lgkmcnt(10)")
        for k in range(8):
            a(f"v_cvt_pk_bf16_f32 v{GU+k}, v{GU+k}, v{GU+8+k}")
        for k in range(8): a(f"v_lshlrev_b32 v{GU+8+k}, 16, v{GU+k}")
        for k in range(8): a(f"v_mul_f32 v{vT+k}, 0xbfb8aa3b, v{GU+8+k}")
        for k in range(8): a(f"v_exp_f32 v{vT+k}, v{vT+k}")
        for k in range(8): a(f"v_add_f32 v{vT+k}, 1.0, v{vT+k}")
        for k in range(8): a(f"v_rcp_f32 v{vT+k}, v{vT+k}")
        for k in range(8): a(f"v_and_b32 v{GU+k}, 0xffff0000, v{GU+k}")
        for k in range(4): a(f"v_pk_mul_f32 {vr(GU+8+2*k,2)}, {vr(GU+8+2*k,2)}, {vr(vT+2*k,2)}")
        for k in range(4): a(f"v_cvt_pk_bf16_f32 v{vT+k}, v{GU+8+2*k}, v{GU+9+2*k}")
        for k in range(4): a(f"v_lshlrev_b32 v{GU+8+2*k}, 16, v{vT+k}", f"v_and_b32 v{GU+9+2*k}, 0xffff0000, v{vT+k}")
        for k in range(4): a(f"v_pk_mul_f32 {vr(GU+2*k,2)}, {vr(GU+2*k,2)}, {vr(GU+8+2*k,2)}")
        for k in range(4): a(f"v_cvt_pk_bf16_f32 v{G+k}, v{GU+2*k}, v{GU+2*k+1}")
        a("s_nop 0")
        dmm()
        yld()
        dreads()
        dmm()
        yld()
        a(self.flag_store(self.yf_addr(23), "s_waitcnt vmcnt(8)"))
        a.label(f"{name}_coW")
        a("s_mov_b32 s12, 1", "s_mov_b32 s9, -1", "s_cmp_lg_u32 s11, 0", "s_cselect_b32 s32, s15, -1")
        yld()
        a(f"s_lshl_b32 s23, s{sI}, 2", f"s_add_u32 s23, s23, s{sW}", f"s_mul_i32 s13, s23, {32*5120}", f"s_add_u32 s13, s13, {WOF}",
          "s_lshl_b32 s23, s23, 7", f"s_add_u32 s23, s23, {WF}", f"v_and_b32 v9, 31, v{vL}", "v_lshl_add_u32 v9, v9, 2, s23",
          f"v_and_b32 v10, 15, v{vL}", "v_lshlrev_b32 v10, 2, v10", f"v_add_u32 v10, {SEL}, v10",
          f"buffer_load_dword v8, v9, s[{sWS}:{sWS+3}], 0 offen{SC}", f"buffer_load_dword v15, v10, s[{sWS}:{sWS+3}], 0 offen{SC}")
        self.ctx_epi(a, 0, [32, 44, 96, 108])
        a("s_waitcnt vmcnt(8)")
        self.poll_check(a, "wof", 8, 9, sWS, ["v_cmp_eq_u32 vcc, 0, v8"])
        self.poll_check(a, "sel4", 15, 10, sWS, ["v_cmp_eq_u32 vcc, 0, v15"])
        a(f"s_lshl_b32 s31, s{sH}, 6", "s_add_u32 s31, s31, 1", f"v_subrev_u32 v{vT}, s31, v15", f"v_cmp_gt_u32 vcc, 64, v{vT}",
          f"s_cmp_lt_u32 s{sW}, 2", "s_cselect_b32 s23, 0xff, 0", "s_and_b32 s10, vcc_lo, s23",
          "s_sub_u32 s23, s10, 1", "s_and_b32 s23, s23, s10", f"s_cmp_eq_u32 s{sW}, 1", "s_cselect_b32 s10, s23, s10",
          "s_cmp_eq_u32 s10, 0", f"s_cbranch_scc1 {name}_coEnd")
        a(f"v_min_u32 v11, {FFN1-FFN0-1}, v{vL}", f"s_lshr_b32 s23, s{sI}, 1", "s_lshl_b32 s23, s23, 8", f"s_add_u32 s23, s23, {YF}",
          "v_lshl_add_u32 v11, v11, 2, s23", f"buffer_load_dword v14, v11, s[{sWS}:{sWS+3}], 0 offen{SC}")
        YQ = list(range(64, 96, 4)) + list(range(128, 160, 4)) + [176, 180]
        AC = YQ[0]
        a(f"v_mul_u32_u24 v{vT}, 3277, v{vL}", f"v_lshrrev_b32 v{vT}, 16, v{vT}", f"v_mul_u32_u24 v8, 20, v{vT}",
          f"v_sub_u32 v8, v{vL}, v8", "v_lshlrev_b32 v8, 4, v8",
          f"v_mul_u32_u24 v9, {18*20480}, v{vT}", "v_add_u32 v9, v9, v8",
          f"v_cmp_gt_u32 vcc, 3, v{vT}", f"v_mov_b32 v{vT+3}, {BIG}", "s_nop 0", f"v_cndmask_b32 v9, v{vT+3}, v9, vcc")
        a("s_mov_b32 s12, 2", "s_mov_b32 s32, -1", "s_mov_b32 s11, 0")
        yld()
        self.poll_check(a, "yf", 14, 11, sWS, ["v_cmp_eq_u32 vcc, 0, v14"])
        a.label(f"{name}_coY")
        a("s_ff1_i32_b32 s33, s10", "s_bitset0_b32 s10, s33", "s_sub_u32 s23, s10, 1", "s_and_b32 s10, s10, s23",
          "s_mul_i32 s14, s33, 2560", f"s_mul_i32 s23, s{sI}, 320", "s_add_u32 s14, s14, s23", f"s_add_u32 s14, s14, {YP}")
        for q in range(18):
            a(f"buffer_load_dwordx4 {vr(YQ[q],4)}, v9, s[{sWS}:{sWS+3}], s14 offen{SC}", "s_add_u32 s14, s14, 20480")
        a(f"s_lshl_b32 s14, s{sW}, 10", f"s_add_u32 s14, s14, {SCR}", f"v_add_u32 v{vT+3}, s14, v{vL16}", "s_add_u32 s23, s33, 8",
          "v_readlane_b32 s35, v15, s23", "s_waitcnt vmcnt(0)")
        for q in range(1, 18):
            for e in range(0, 4, 2): a(f"v_pk_add_f32 {vr(AC+e,2)}, {vr(AC+e,2)}, {vr(YQ[q]+e,2)}")
        a(f"ds_write_b128 v{vT+3}, {vr(AC,4)}", f"v_add_u32 v{vT+3}, s14, v8", "s_and_b32 s35, s35, 0xffff0000", "s_waitcnt lgkmcnt(0)",
          f"ds_read_b128 {vr(AC,4)}, v{vT+3}", f"ds_read_b128 {vr(AC+4,4)}, v{vT+3} offset:320", f"ds_read_b128 {vr(AC+8,4)}, v{vT+3} offset:640",
          "s_mul_i32 s14, s33, 320", f"s_add_u32 s14, s14, {UPD}", f"v_add_u32 v{vT+3}, s14, v8", "s_waitcnt lgkmcnt(0)")
        for e in range(4):
            a(f"v_add_f32 v{AC+e}, v{AC+e}, v{AC+4+e}", f"v_add_f32 v{AC+e}, v{AC+e}, v{AC+8+e}")
            bf16r(a, AC + e)
            a(f"v_mul_f32 v{AC+e}, s35, v{AC+e}")
            bf16r(a, AC + e)
        a(f"ds_write_b128 v{vT+3}, {vr(AC,4)}", "s_waitcnt lgkmcnt(0)", "s_cmp_lg_u32 s10, 0", f"s_cbranch_scc1 {name}_coY")
        a.label(f"{name}_coEnd")
        a("s_mov_b32 s12, 3", "s_mov_b32 s32, -1")
        rec()
        a("s_setpc_b64 s[38:39]")
        self.tail += a.lines

    def phase3(self):
        a = self.a; name = self.name
        a(self.period(1, ["q", "q"], c0=True))
        a("s_nop 7", f"s_cmp_lg_u32 s{sCnt}, 0", f"s_cbranch_scc1 {name}_nomask0")
        a(mask_ops(0, 0))
        a.label(f"{name}_nomask0")
        for X in range(2):
            for qb in range(2):
                s0 = S + 32 * X + 8 * qb; d = vT + 2 * X + qb
                a(f"v_max3_f32 v{d}, v{s0}, v{s0+1}, v{s0+2}", f"v_max3_f32 v{d}, v{d}, v{s0+3}, v{s0+4}",
                  f"v_max3_f32 v{d}, v{d}, v{s0+5}, v{s0+6}", f"v_max_f32 v{d}, v{d}, v{s0+7}")
        for sw in ("v_permlane16_swap_b32", "v_permlane32_swap_b32"):
            for k in range(4): a(f"v_mov_b32 v{vT+4+k}, v{vT+k}")
            a("s_nop 0")
            for k in range(4): a(f"{sw} v{vT+k}, v{vT+4+k}")
            for k in range(4): a(f"v_max_f32 v{vT+k}, v{vT+k}, v{vT+4+k}")
        for X in range(2):
            for qb in range(2):
                for r in range(4): a(f"v_sub_f32 v{NM+8*X+4*qb+r}, 0, v{vT+2*X+qb}")
        for X in range(2):
            for qb in range(2):
                s0 = S + 32 * X + 8 * qb
                for r in range(8): a(f"v_sub_f32 v{s0+r}, v{s0+r}, v{vT+2*X+qb}")
        a(self.period(0, ["qs", "qs"]))
        stamp(a, 8)
        a(self.cyc(50))
        F = "qsv"
        a(f"s_cmp_eq_u32 s{sCnt}, 0", f"s_cbranch_scc1 {name}_AV", f"s_sub_u32 s{sCnt}, s{sCnt}, 1",
          f"s_cmp_eq_u32 s{sCnt}, 0", f"s_cbranch_scc1 {name}_Aexit")
        a(".p2align 6")
        a.label(f"{name}_DD")
        a(self.period(1, [F, F], bar=12, hook=self.hook()))
        a.label(f"{name}_DDe")
        a(self.period(0, [F, F], tail_sc=[f"s_sub_u32 s{sCnt}, s{sCnt}, 1", f"s_cmp_gt_u32 s{sCnt}, s8"], hook=self.hook(f"s_cmp_ge_u32 s{sKo}, s9")))
        a(f"s_cbranch_scc1 {name}_DD", "s_cmp_lg_u32 s8, 0", f"s_cbranch_scc1 {name}_DDF")
        ex = [([f"s_add_u32 m0, s34, {(q//4)*4096}"] if q % 4 == 0 else [],
               f"buffer_load_dwordx4 v{self.FV[q]}, s[52:55], s33 offen offset:{(q%4)*1024} lds") for q in range(5)]
        hk = self.hook()
        k_ = self.nhook - 1
        self.tail[-3] = f"s_add_u32 s38, s38, {name}_hb{k_}-{name}_hp{k_}"; self.tail[-2] = "s_addc_u32 s39, s39, 0"
        self.tail += [f"{name}_DDF:"] + self.period(1, [F, F], bar=12, hook=hk, extra=ex, dgaps=[6, 13, 19, 25], egaps=[31, 37, 43, 49, 55]) + [f"s_branch {name}_DDe"]
        self.coroutine()
        a.label(f"{name}_Aexit")
        a(self.cyc(51))
        a(f"s_bitcmp1_b32 s{sW}, 0", f"s_cbranch_scc1 {name}_Aodd")
        a(self.period(1, [F, F], bar=12))
        a(self.period(0, ["smv", F]))
        a.label(f"{name}_AV")
        a(self.period(1, ["v", F], bar=12))
        a(self.period(0, ["", F]))
        a(f"s_branch {name}_SSpre")
        a.label(f"{name}_Aodd")
        a(self.period(1, ["smv", F], bar=12))
        a(self.period(0, ["v", F]))
        a.label(f"{name}_SSpre")
        a(self.cyc(52))
        a("s_mov_b32 s11, 1", "s_cmp_lg_u32 s12, 0", "s_cselect_b32 s32, s15, s32")
        U, KY = self.U, self.KY
        def wx(fs):
            out = []
            for k, f in enumerate(fs):
                pre = [f"s_add_u32 s14, s13, {(f//4)*4096}"] if (k == 0 or f % 4 == 0) else []
                out.append((pre, self.wl(f).replace("s13 offen", "s14 offen")))
            return out
        def drain(lv):
            h = self.hook(f"s_cmp_lt_u32 s12, {lv}")
            a(h[1][1], h[0], h[1][0])
        a(f"s_cmp_ge_u32 s{sW}, 2", f"s_cselect_b32 s23, {U}, 0", f"s_cmp_le_u32 s{sNSS}, s23", f"s_cbranch_scc1 {name}_chain")
        a(".p2align 6")
        a.label(f"{name}_SS")
        a(self.period(1, ["", F], bar=12, hook=self.hook()))
        a(self.period(0, ["", F], tail_sc=[f"s_sub_u32 s{sNSS}, s{sNSS}, 1", f"s_cmp_gt_u32 s{sNSS}, {U}"]))
        a(f"s_cbranch_scc1 {name}_SS")
        a.label(f"{name}_chain")
        a(self.cyc(53))
        drain(2)
        a(f"s_cmp_eq_u32 s{sNSS}, {U}", f"s_cbranch_scc0 {name}_disp")
        t = Asm()
        t.label(f"{name}_disp")
        for k in range(U - 1, 0, -1): t(f"s_cmp_eq_u32 s{sNSS}, {k}", f"s_cbranch_scc1 {name}_SSW{k}")
        t(f"s_branch {name}_Bexit")
        self.tail += t.lines
        for k in range(U, 0, -1):
            a.label(f"{name}_SSW{k}")
            f0 = (U - k) * 6
            a(self.period(1, ["", F], bar=12, extra=wx(range(f0, f0 + 3))))
            a(self.period(0, ["", F], extra=wx(range(f0 + 3, f0 + 6))))
        a.label(f"{name}_Bexit")
        a(self.cyc(54))
        f0 = U * 6
        a(f"s_bitcmp1_b32 s{sW}, 0", f"s_cbranch_scc1 {name}_Bodd")
        a(self.period(1, ["", F], bar=0, dma=False, kread=False, extra=wx(range(f0, f0 + 6))))
        a(self.period(0, ["", "smv"], dma=False, kread=False, extra=wx(range(f0 + 6, f0 + 10))))
        a(self.period(1, ["", "v"], bar=10, dma=False, kread=False, extra=wx(range(f0 + 10, f0 + 12))))
        a(f"s_branch {name}_Bdone")
        a.label(f"{name}_Bodd")
        a(self.period(1, ["", "smv"], bar=0, dma=False, kread=False, extra=wx(range(f0, f0 + 7))))
        a(self.period(0, ["", "v"], dma=False, kread=False, extra=wx(range(f0 + 7, f0 + 12))))
        self.wx = wx
        a.label(f"{name}_Bdone")
        a(f"s_cmp_ge_u32 s{sW}, 2", f"s_cbranch_scc1 {name}_epi", "s_barrier" if "b" not in os.environ.get("XP", "") else "s_nop 0")
        a.label(f"{name}_epi")
        stamp(a, 9)
        a(self.cyc(55))
        self.ctx_epi(a, 1, [64, 76, 128, 140])

    def ctx_epi(self, a, X, Ts):
        L = LS + 2 * X
        for sw in ("v_permlane16_swap_b32", "v_permlane32_swap_b32"):
            for k in range(2): a(f"v_mov_b32 v{vT+4+k}, v{L+k}")
            a("s_nop 1")
            for k in range(2): a(f"{sw} v{L+k}, v{vT+4+k}")
            for k in range(2): a(f"v_add_f32 v{L+k}, v{L+k}, v{vT+4+k}")
        for k in range(2): a(f"v_rcp_f32 v{vT+2*k}, v{L+k}")
        if X == 0: a(f"s_lshl_b32 s23, s{sI}, 2")
        else: a(f"s_sub_u32 s23, 15, s{sI}", "s_lshl_b32 s23, s23, 2")
        for k in range(2): a(f"v_mov_b32 v{vT+2*k+1}, v{vT+2*k}")
        a(f"s_add_u32 s23, s23, s{sW}", "s_lshl_b32 s23, s23, 18", f"s_lshl_b32 s31, s{sH}, 12",
          f"s_add_u32 s31, s31, {CTX}", f"s_add_u32 s{sXo}, s23, s31", f"s_add_u32 s{sXo+1}, s{sXo}, {1<<17}")
        k = 0
        for qb in range(2):
            for t in range(4):
                T = Ts[k % len(Ts)]; k += 1
                f = vT + 2 * qb
                for hh in range(2):
                    for r in range(4): a(f"v_accvgpr_read_b32 v{T+4+4*hh+r}, a{O+64*X+8*(2*t+hh)+4*qb+r}")
                for r in range(4): a(f"v_pk_mul_f32 {vr(T+4+2*r,2)}, {vr(T+4+2*r,2)}, {vr(f,2)}")
                for r in range(4): a(f"v_cvt_pk_bf16_f32 v{T+r}, v{T+4+2*r}, v{T+5+2*r}")
                a(f"buffer_store_dwordx4 {vr(T,4)}, v{vL16}, s[{sWS}:{sWS+3}], s{sXo+qb} offen offset:{t*1024}{SC}")

    WQ = ([ar(b, 4) for b in range(0, 64, 4)] + [ar(b, 4) for b in range(192, 256, 4)] + [vr(b, 4) for b in range(32, 64, 4)]
          + [vr(b, 4) for b in range(96, 128, 4)] + [vr(b, 4) for b in range(160, 176, 4)] + [vr(192, 4), vr(196, 4), vr(208, 4), vr(212, 4)]
          + [vr(b, 4) for b in range(232, 248, 4)]
          + [vr(b, 4) for b in range(64, 96, 4)] + [vr(b, 4) for b in range(128, 160, 4)] + [vr(b, 4) for b in range(176, 192, 4)])
    def wl(self, f):
        return f"buffer_load_dwordx4 {self.WQ[f % 80]}, v{vL16}, s[{sWS}:{sWS+3}], s13 offen offset:{(f%4)*1024}{SC}"
    WINC = "s_add_u32 s13, s13, 4096"

    def phase4(self):
        a = self.a; name = self.name
        RS = 336; PART = 38 * 1024
        assert len(self.WQ) == 80
        ACq = [ar(b, 4) for b in range(64, 144, 4)]
        CRq = [ar(b, 4) for b in range(144, 192, 4)] + [vr(b, 4) for b in range(216, 232, 4)]
        YQ = list(range(64, 96, 4)) + list(range(128, 160, 4)) + [176, 180]
        XQ = [32, 36, 40, 44, 48, 52]
        XF = [96, 104, 112]; OF = [120, 160, 168]
        vXo, vLa, vXn, vUp = 248, 251, 200, 203
        sX, sO = 44, 48
        sCo = 64
        sMT, sNG = sH, sI
        wl = self.wl; winc = self.WINC
        def cl(ks, qb): return f"buffer_load_dwordx4 {CRq[4*(ks%4)+qb]}, v{vL16}, s[{sWS}:{sWS+3}], s{sCo+qb} offen offset:{(ks%4)*1024}{SC}"
        cnext = [f"s_add_u32 s{sCo+qb}, s{sCo+qb}, 4096" for qb in range(4)]
        NL = 36; F0 = 160 - NL; NPRE = int(os.environ.get("NPRE", "8"))
        a("s_load_dwordx2 s[4:5], s[0:1], 0", "s_load_dwordx2 s[6:7], s[0:1], 88")
        a(f"v_mov_b32 v{vT+14}, {BIG}", f"v_writelane_b32 v{vT+14}, s{sCFA}, 0", f"v_writelane_b32 v{vT+14}, s{sCFB}, 1")
        lw = []
        for (pre, l) in self.wx(range(60, 80)): lw.append(pre + [l])
        pubst = f"buffer_store_dword v{vNI}, v{vT+14}, s[{sWS}:{sWS+3}], 0 offen{SC}"
        a("s_cmp_lt_u32 s12, 3", f"s_cbranch_scc1 {name}_puby")
        a(lw[:NPRE], f"s_waitcnt vmcnt({NPRE})", pubst)
        a.label(f"{name}_pubb")
        t = Asm()
        t.label(f"{name}_puby")
        h = self.hook("s_cmp_lt_u32 s12, 3"); k_ = self.nhook - 1
        self.tail[-3] = f"s_add_u32 s38, s38, {name}_hb{k_}-{name}_hp{k_}"; self.tail[-2] = "s_addc_u32 s39, s39, 0"
        t("s_waitcnt vmcnt(0)", pubst, h[0], h[1], lw[:NPRE], f"s_branch {name}_pubb")
        self.tail += t.lines
        stamp(a, 10)
        a(f"s_cmp_lt_u32 s{sNSS}, {self.U}", f"s_cbranch_scc1 {name}_left")
        a.label(f"{name}_leftb")
        t = Asm()
        t.label(f"{name}_left")
        for k in range(self.U, 0, -1):
            if k < self.U: t(f"s_cmp_ge_u32 s{sNSS}, {k}", f"s_cbranch_scc1 {name}_leftb")
            for (pre, l) in self.wx(range((self.U - k) * 6, (self.U - k) * 6 + 6)): t(pre, l)
        t(f"s_branch {name}_leftb")
        self.tail += t.lines
        su = [f"s_lshl_b32 s{sCo}, s{sMT}, 19", f"s_lshl_b32 s23, s{sW}, 15", f"s_add_u32 s{sCo}, s{sCo}, s23", f"s_add_u32 s{sCo}, s{sCo}, {CTX}"]
        su += [f"s_add_u32 s{sCo+qb}, s{sCo}, {qb<<17}" for qb in range(1, 4)]
        su += [f"v_bfe_u32 v12, v{vL}, 3, 1", "v_lshlrev_b32 v12, 7, v12", f"v_and_b32 v13, 7, v{vL}", "v_lshl_add_u32 v12, v13, 2, v12",
               f"s_lshl_b32 s23, s{sMT}, 8", f"s_lshl_b32 s31, s{sW}, 5", "s_add_u32 s23, s23, s31", f"s_add_u32 s23, s23, {CF}", "v_add_u32 v12, s23, v12",
               f"s_lshl_b32 s25, s{sMT}, 6", f"s_mul_i32 s26, s{sNG}, 160", f"s_mul_i32 s27, s{sNG}, 2560"]
        su += [f"v_mov_b32 v{vT+4+i}, 0" for i in range(4)] + [f"v_add_u32 v{vT}, {UPD+2560}, v{vL16}", f"ds_write_b128 v{vT}, {vr(vT+4,4)}",
               f"s_add_u32 s33, s13, {F0*1024}", f"s_mul_i32 s34, s{sW}, {38*1024}", f"v_add_u32 v11, s34, v{vL16}", f"s_add_u32 s35, s34, {NL*1024}"]
        pollc = f"buffer_load_dword v13, v12, s[{sWS}:{sWS+3}], 0 offen{SC}"
        rest = lw[NPRE:]
        for q, l in enumerate(rest):
            if q == len(rest) - 6: a(su)
            a(l)
        a(f"s_add_u32 s13, s13, {80*1024}", "s_waitcnt lgkmcnt(0)", "s_barrier")
        srd(a, sX, "s4", "s5", 2048 * 1280); srd(a, sO, "s6", "s7", 2048 * 1280)
        fill = ["s_mov_b32 m0, s34", "s_add_u32 s34, s34, 4096"] + \
               [f"buffer_load_dwordx4 v{vL16}, s[{sWS}:{sWS+3}], s33 offen offset:{q*1024}{SC} lds" for q in range(4)] + ["s_add_u32 s33, s33, 4096"]
        NG0 = int(os.environ.get("NG0", "9"))
        for g in range(NG0):
            if g == NG0 - 2: a(pollc)
            a(fill)
        a("s_waitcnt vmcnt(8)")
        a(stampv(20))
        self.poll_check(a, "ctx", 13, 12, sWS, ["v_cmp_eq_u32 vcc, 0, v13"])
        a(stampv(21))
        for ks in range(4): a([cl(ks, qb) for qb in range(4)])
        a(cnext, "s_waitcnt vmcnt(12)")
        a(stampv(22))
        tm = []
        for k in range(3):
            tm += [f"v_add_u32 v{vT}, {256*k}, v0", f"v_mul_u32_u24 v{vT+1}, 6554, v{vT}", f"v_lshrrev_b32 v{vT+1}, 16, v{vT+1}",
              f"v_mul_u32_u24 v{vT+2}, 10, v{vT+1}", f"v_sub_u32 v{vT+2}, v{vT}, v{vT+2}",
              f"v_mul_u32_u24 v{vLa+k}, {RS}, v{vT+1}", f"v_lshl_add_u32 v{vLa+k}, v{vT+2}, 5, v{vLa+k}",
              f"v_lshlrev_b32 v{vUp+k}, 5, v{vT+2}",
              f"v_add_u32 v{vT+1}, s25, v{vT+1}", f"v_add_u32 v{vT+8+k}, 1, v{vT+1}",
              f"v_mul_u32_u24 v{vXo+k}, 1280, v{vT+1}", f"v_lshl_add_u32 v{vXo+k}, v{vT+2}, 4, v{vXo+k}", f"v_add_u32 v{vXo+k}, s26, v{vXo+k}",
              f"v_lshrrev_b32 v{vT+3}, 4, v{vT+1}", f"v_mul_u32_u24 v{vT+3}, 20480, v{vT+3}", f"v_and_b32 v{vT+1}, 15, v{vT+1}",
              f"v_lshl_add_u32 v{vT+3}, v{vT+1}, 4, v{vT+3}", f"v_lshl_add_u32 v{vXn+k}, v{vT+2}, 8, v{vT+3}",
              f"v_mov_b32 v{vT+11+k}, 8"]
        tm += [f"v_cmp_gt_u32 vcc, 128, v0", f"v_mov_b32 v{vT}, {BIG}", f"v_mov_b32 v{vT+1}, 0",
          f"v_cndmask_b32 v{vXo+2}, v{vT}, v{vXo+2}, vcc", f"v_cndmask_b32 v{vXn+2}, v{vT}, v{vXn+2}, vcc", f"v_cndmask_b32 v{vLa+2}, v{vT+1}, v{vLa+2}, vcc"]
        tm += [f"v_readlane_b32 s{68+k}, v15, {k}" for k in range(8)]
        for k in range(8):
            tm += [f"v_cmp_eq_u32 s[{52+2*t_}:{53+2*t_}], s{68+k}, v{vT+8+t_}" for t_ in range(3)]
            tm += [f"v_cndmask_b32 v{vT+11+t_}, v{vT+11+t_}, {k}, s[{52+2*t_}:{53+2*t_}]" for t_ in range(3)]
        for t_ in range(3): tm += [f"v_mul_u32_u24 v{vT+11+t_}, 320, v{vT+11+t_}", f"v_add_u32 v{vUp+t_}, v{vUp+t_}, v{vT+11+t_}", f"v_add_u32 v{vUp+t_}, {UPD}, v{vUp+t_}"]
        vm = VM()
        for ks in range(4): vm.issue(f"C{ks}", 4)
        lnext = F0; WSP = int(os.environ.get("WSP", "21")); FSP = float(os.environ.get("FSP", "3"))
        fpos = [-4] * NG0 + [21 + g for g in range(9 - NG0)]
        fnext = 80
        for ks in range(32):
            mf = [f"{MF} {ACq[cb*4+qb]}, {self.WQ[(ks*5+cb) % 80]}, {CRq[4*(ks%4)+qb]}, {ACq[cb*4+qb] if ks else 0}" for cb in range(5) for qb in range(4)]
            sc = {g: [] for g in range(20)}; mem = {g: [] for g in range(20)}; va = {g: [] for g in range(20)}
            quota = 80 + ((ks + 1) * (F0 - 80) + WSP - 1) // WSP
            for g in (3, 7, 11):
                if fnext < min(F0, quota) and fnext - 80 <= ks * 5 + g // 4:
                    mem[g].append(wl(fnext)); vm.issue(f"W{fnext // 5}")
                    if fnext % 4 == 3: sc[g+1].append(winc)
                    fnext += 1
            if ks in fpos[NG0:]:
                sc[8] += fill[:2]
                for q in range(4): mem[[9, 12, 13, 14][q]].append(fill[2+q])
                sc[15].append(fill[6]); vm.issue("F", 4)
            for g in (0, 2, 4, 6, 8):
                if lnext < min(160, (ks + 2) * 5):
                    assert fpos[(lnext - F0) // 4] + 4 <= ks
                    mem[g].append(f"ds_read_b128 {self.WQ[lnext % 80]}, v11 offset:{(lnext-F0)*1024}"); lnext += 1
            if 1 <= ks < 20:
                for g in (0, 2, 5, 6, 9, 13, 14):
                    if tm: va[g].append(tm.pop(0))
            if ks + 4 < 32:
                for qb in range(4): mem[16+qb].append(cl(ks, qb))
                vm.issue(f"C{ks+4}", 4)
                if ks % 4 == 0 and ks > 0:
                    for q, x in enumerate(cnext): sc[[0, 1, 2, 6][q]].append(x)
            if ks == 24:
                for k in range(3):
                    mem[3+4*k].append(f"buffer_load_dwordx4 {vr(XQ[k],4)}, v{vXo+k}, s[{sX}:{sX+3}], 0 offen")
                    mem[5+4*k].append(f"buffer_load_dwordx4 {vr(XQ[3+k],4)}, v{vXn+k}, s[{sWS}:{sWS+3}], s27 offen{SC}")
                vm.ops = vm.ops[:-4] + ["x"] * 6 + vm.ops[-4:]
            if ks == 27:
                for k in range(3):
                    for hh in range(2): mem[1+4*k+2*hh].append(f"ds_read_b128 {vr(OF[k]+4*hh,4)}, v{vUp+k} offset:{16*hh}")
                sc[18].append("s_waitcnt lgkmcnt(0)")
                va[14] += [f"v_and_b32 v{vT}, 15, v{vL}", f"v_mul_u32_u24 v{vT}, {RS}, v{vT}"]
                va[15] += [f"v_lshrrev_b32 v{vT+1}, 4, v{vL}", f"v_lshl_add_u32 v{vT}, v{vT+1}, 4, v{vT}"]
                sc[14].append(f"s_mul_i32 s23, s{sW}, {PART}")
                va[16] += [f"v_add_u32 v{vT}, s23, v{vT}"]
                for k in range(3): va[2+4*k].append(f"v_add_u32 v{vT+4+k}, {2*PART}, v{vLa+k}")
            if 28 <= ks < 31:
                k = ks - 28
                ops = []
                for e in range(4):
                    x = XQ[k] + e; xn = XQ[3+k] + e; o = OF[k] + 2 * e; t0, t1 = vT + 2, vT + 3
                    ops += [f"v_lshlrev_b32 v{t0}, 16, v{xn}", f"v_and_b32 v{t1}, 0xffff0000, v{xn}",
                            f"v_add_f32 v{o}, v{o}, v{t0}", f"v_add_f32 v{o+1}, v{o+1}, v{t1}",
                            f"v_cvt_pk_bf16_f32 v{t0}, v{o}, v{o+1}",
                            f"v_lshlrev_b32 v{XF[k]+2*e}, 16, v{x}", f"v_and_b32 v{XF[k]+2*e+1}, 0xffff0000, v{x}",
                            f"v_lshlrev_b32 v{o}, 16, v{t0}", f"v_and_b32 v{o+1}, 0xffff0000, v{t0}"]
                for q, x in enumerate(ops): va[q // 2].append(x)
            if ks == 31:
                for q in range(11): mem[q+9].append(f"ds_write_b128 v{vT}, {ACq[q]} offset:{(q%4)*16*RS+(q//4)*64}")
            if ks < 31:
                need = [f"C{ks+1}"] + ([f"W{ks+1}"] if (ks + 1 >= 16 and (ks + 1) * 5 < F0) else [])
                if ks + 1 >= 16: assert fnext >= min(F0, (ks + 2) * 5)
                lg = " lgkmcnt(0)" if (ks + 2) * 5 > F0 else ""
                va[19].append(f"s_waitcnt vmcnt({vm.need(*need)}){lg}")
            a(weave(mf, sc, mem, va))
        assert fnext == F0 and lnext == 160 and not tm
        a(stampv(23))
        for q in range(11, 20): a(f"ds_write_b128 v{vT}, {ACq[q]} offset:{(q%4)*16*RS+(q//4)*64}")
        a("s_waitcnt lgkmcnt(0)", "s_barrier")
        PVb = [32, 64, 128]
        for k in range(3):
            for p in range(4):
                for hh in range(2):
                    a(f"ds_read_b128 {vr(PVb[k]+8*p+4*hh,4)}, v{vLa+k if p < 2 else vT+4+k} offset:{(p%2)*PART+16*hh}")
        for k in range(3):
            a(f"s_waitcnt lgkmcnt({[15, 8, 0][k]})")
            b = PVb[k]
            for e in range(0, 8, 2):
                a(f"v_pk_add_f32 {vr(b+e,2)}, {vr(b+e,2)}, {vr(b+8+e,2)}", f"v_pk_add_f32 {vr(b+16+e,2)}, {vr(b+16+e,2)}, {vr(b+24+e,2)}")
            for e in range(0, 8, 2): a(f"v_pk_add_f32 {vr(b+e,2)}, {vr(b+e,2)}, {vr(b+16+e,2)}")
            for src in (XF[k], OF[k]):
                for e in range(4): a(f"v_cvt_pk_bf16_f32 v{b+8+e}, v{b+2*e}, v{b+2*e+1}")
                for e in range(4): a(f"v_lshlrev_b32 v{b+2*e}, 16, v{b+8+e}", f"v_and_b32 v{b+2*e+1}, 0xffff0000, v{b+8+e}")
                for e in range(4): a(f"v_pk_add_f32 {vr(b+2*e,2)}, {vr(b+2*e,2)}, {vr(src+2*e,2)}")
            for e in range(4): a(f"v_cvt_pk_bf16_f32 v{b+12+e}, v{b+2*e}, v{b+2*e+1}")
            a(f"buffer_store_dwordx4 {vr(b+12,4)}, v{vXo+k}, s[{sO}:{sO+3}], 0 offen")

    def gen(self, with_p4=True):
        a = self.a; name = self.name
        self.tail = []; self.p4 = with_p4; self.nhook = 0
        self.phase1()
        self.phase2()
        self.phase3()
        if with_p4: self.phase4()
        stamp_flush(a, 0, sW, sWS)
        a.label(f"{name}_end")
        a("s_endpgm")
        a(self.tail)
        for (k, ss, par) in self.stubs:
            a.label(f"{name}_stub{k}")
            for X in ss: a(f"s_call_b64 s[{sRet}:{sRet+1}], {name}_rare{X}{par}")
            a(f"s_branch {name}_back{k}")
        a.label(f"{name}_codeend")
        for X in range(2):
            for par in range(2): self.rare(X, par)
            self.resc(X)
        return a
```

```python
import os
from asmlib import *
from gen_k1 import XNF, RKEY, SEL, YP, WOF, KFO, VFO, CTX, WS_BYTES, MF, srd, bf16r, stamp, stampc, stamp_init, stamp_flush

LDS = 131072
vL, vL16, vKV, vNI, vX = 1, 2, 3, 4, 5
vWo = 8
vWa = 12
vT = 16
Q = 32
S = 96
P = 160
NM = 192
E = 208
TS = 224
LS = 228
QACC = 96
O = 0
KF = 128
VF = 160
XR = 192
sW, sH, sI = 20, 21, 22
sWq, sXn, sWS, sK, sV = 32, 36, 40, 44, 48
sKm, sVm, sKo, sVo, sCnt, sNSS = 24, 25, 26, 27, 28, 29
sXo = 64
sMask = 68
sRet, sRet2 = 76, 78
sThr = 81
sRing = 66

def xreduce(a, op, v, t):
    a(f"v_mov_b32 v{t}, v{v}", "s_nop 1", f"v_permlane16_swap_b32 v{v}, v{t}", f"{op} v{v}, v{v}, v{t}",
      f"v_mov_b32 v{t}, v{v}", "s_nop 1", f"v_permlane32_swap_b32 v{v}, v{t}", f"{op} v{v}, v{v}, v{t}")

def mask_ops(X, par):
    Sc = S + 32 * X + 16 * par
    o = []
    for r in range(4):
        o.append(f"v_cndmask_b32 v{Sc+r}, v{vNI}, v{Sc+r}, s[{sMask+2*r}:{sMask+2*r+1}]")
    for r in range(4):
        o.append(f"v_mov_b32 v{Sc+4+r}, v{vNI}")
    for r in range(4):
        o.append(f"v_cndmask_b32 v{Sc+12+r}, v{vNI}, v{Sc+12+r}, s[{sMask+2*r}:{sMask+2*r+1}]")
    return o

def sm_ops(X, par):
    Sc = S + 32 * X + 16 * par; Pc = P + 16 * X + 8 * par; e = E + 8 * X
    exps = [f"v_exp_f32 v{e+(i%8)}, v{Sc+i}" for i in range(16)]
    pl = []
    for i in range(16):
        t = TS + 2 * X + i // 8
        aa = e + ((i - 1) % 8); bb = e + (i % 8)
        if i % 8 == 1: pl.append((i, f"v_add_f32 v{t}, v{aa}, v{bb}"))
        elif i % 8 > 1: pl.append((i, f"v_add_f32 v{t}, v{t}, v{bb}"))
        if i % 2 == 1: pl.append((i, f"v_cvt_pk_bf16_f32 v{Pc+i//2}, v{aa}, v{bb}"))
    return exps, pl

class K2:
    SC = ''
    NP = 2
    def __init__(self, name):
        self.name = name
        self.a = Asm()
        self.stubs = []
        self.nstub = 0

    def period(self, par, st, dma=True, bar=None, kread=True, c0=False, tail_sc=None, hook=None, extra=None, dgaps=None, egaps=None, have_pre=None):
        odd = par == 1
        qs = [X for X in range(2) if "q" in st[X]]
        vs = [X for X in range(2) if "v" in st[X]]
        ss = [X for X in range(2) if "s" in st[X]]
        mf = []; use = []
        for f in range(8):
            ks, kb = f // 2, f % 2
            for X in qs:
                for qb in range(2):
                    d = S + 32 * X + 16 * (1 - par) + qb * 8 + kb * 4
                    c = vr(d, 4) if ks > 0 else ("0" if c0 else vr(NM + 8 * X + 4 * qb, 4))
                    mf.append(f"{MF} {vr(d,4)}, {ar(KF+4*f,4)}, {vr(Q+32*X+8*ks+4*qb,4)}, {c}"); use.append(("K", f))
        nq = len(mf)
        for db in range(8):
            for X in vs:
                for qb in range(2):
                    d = O + 64 * X + 8 * db + 4 * qb
                    mf.append(f"{MF} {ar(d,4)}, {ar(VF+4*db,4)}, {vr(P+16*X+8*(1-par)+4*qb,4)}, {ar(d,4)}"); use.append(("V", db))
        n = len(mf); nv = n - nq
        hoff = 0 if odd else 8192
        vrd = [f"ds_read_b128 {ar(VF+4*i,4)}, v{vKV} offset:{16384+hoff+i*1024}" for i in range(8)] if vs else []
        krd = [f"ds_read_b128 {ar(KF+4*i,4)}, v{vKV} offset:{hoff+i*1024}" for i in range(8)] if kread else []
        pre = []
        sc = {g: [] for g in range(n)}; mem = {g: [] for g in range(n)}; va = {g: [] for g in range(n)}
        first = 0
        if bar is not None:
            if nq > 0:
                sc[0].append(f"s_waitcnt vmcnt({bar})"); sc[1].append("s_barrier"); first = 2
            else:
                pre += [f"s_waitcnt vmcnt({bar})", "s_barrier"]
            if os.environ.get("TRACE"):
                pre[0:0] = ["s_memtime s[98:99]", "s_mov_b32 m0, s101", "s_add_u32 s101, s101, 1", "s_waitcnt lgkmcnt(0)", "v_writelane_b32 v7, s98, m0"]
        if hook:
            sc[2].append(hook[0]); sc[3] += hook[1]
        vpos = {}; kpos = {}
        if vrd:
            if nq == 0:
                pre += vrd
                for i in range(8): vpos[i] = -1
            else:
                step = nq // 8
                for i in range(8):
                    g = max(first, i * step)
                    if step == 2 and first == 2: g = [2, 2, 4, 6, 8, 10, 12, 14][i]
                    mem[g].append(vrd[i]); vpos[i] = g
        if krd:
            if nv > 0:
                step = nv // 8
                for i in range(8):
                    g = nq + i * step
                    mem[g].append(krd[i]); kpos[i] = g
            else:
                step = nq // 8
                for i in range(8):
                    g = (i + 1) * step - 1
                    mem[g].append(krd[i]); kpos[i] = g
        if dma:
            srdn = sK if odd else sV; so = sKo if odd else sVo; sm = sKm if odd else sVm
            step = n // 4
            base = 6 if step >= 12 else 4
            gs = [base + j * step for j in range(4)]
            if n == 32: gs = [4, 10, 18, 24]
            if dgaps: gs = dgaps
            if hook and gs[0] == 4: gs = [6, 12, 18, 24]
            if n == 32 and os.environ.get("SCH_DG"): gs = eval(os.environ["SCH_DG"])
            if n == 64 and os.environ.get("SCH_DG64") and not dgaps: gs = eval(os.environ["SCH_DG64"])
            sc[gs[0] - 1].append(f"s_mov_b32 m0, s{sm}")
            for j in range(4):
                (mem[gs[j]].append if not os.environ.get("SCH_BF") else (lambda x, g=gs[j]: mem[g].insert(0, x)))(f"buffer_load_dwordx4 v{vL16}, s[{srdn}:{srdn+3}], s{so} offen offset:{j*1024}{self.SC} lds")
            post = [f"s_add_u32 s{so}, s{so}, 16384", f"s_add_u32 s{sm}, s{sm}, 32768", f"s_and_b32 s{sm}, s{sm}, 0x1ffff"]
            for j, x in enumerate(post): sc[gs[3] + 1 + j].append(x)
        if extra:
            ne = len(extra)
            if n == 32 and ne == 3 and dma: eg = [8, 14, 22]
            else: eg = [first + 1 + (k * (n - 2 - first)) // ne for k in range(ne)]
            if egaps: eg = egaps
            for g, (xs, xl) in zip(eg, extra):
                sc[g - 1 if egaps else g] += xs
                mem[g].append(xl)
        NP = self.NP
        if have_pre is None: have_pre = ("s" in st[1] and "m" not in st[1] and "v" in st[1])
        do_pre = "q" in st[1] and "s" in st[1]
        exps = []; pl = []; gate = {}
        for X in reversed(ss):
            if "m" in st[X]:
                k0 = 0 if not exps else max(0, len(pl) - 14)
                need = pl[k0 - 1][0] if k0 else -1
                pl[k0:k0] = [(need, l) for l in mask_ops(X, par)]
                gate[len(exps)] = k0 + 12
            e, p = sm_ops(X, par)
            off = len(exps)
            exps += e; pl += [(i + off, l) for i, l in p]
        if ss:
            ts = [TS + 2 * X + qb for X in reversed(ss) for qb in range(2)]
            last = len(exps) - 1
            if len(ts) == 2:
                pl.append((last, f"v_max_f32 v{vX}, v{ts[0]}, v{ts[1]}"))
            else:
                pl.insert(len(pl) - 6, (last - 4, f"v_max3_f32 v{vX}, v{ts[0]}, v{ts[1]}, v{ts[2]}"))
                pl.append((last, f"v_max_f32 v{vX}, v{vX}, v{ts[3]}"))
            cv = [k for k in range(len(pl)) if pl[k][0] == last and "cvt" in pl[k][1]][0]
            lastcvt = pl.pop(cv)[1]
            pl.append((last, f"v_cmp_lt_f32 vcc, s{sThr}, v{vX}"))
        ei = NP if have_pre else 0
        pi = 0
        def ready_pl(le):
            if pi >= len(pl): return False
            need = pl[pi][0]
            return need < ei and not (need == ei - 1 and le)
        def ready_exp():
            if ei >= len(exps): return False
            if pi < gate.get(ei, 0): return False
            for k in range(pi, len(pl)):
                if 0 <= pl[k][0] <= ei - 7 and (pl[k][0] // 16 == ei // 16): return False
                if pl[k][0] > ei - 7: break
            return True
        D = n - 4
        if ss:
            if nq == 0:
                c = 0; le = False
                while c < 120:
                    if ready_pl(le): pre.append(pl[pi][1]); pi += 1; c += 4; le = False
                    elif ready_exp(): pre.append(exps[ei]); ei += 1; c += 8; le = True
                    else: break
            def nready():
                c = 0
                for k in range(pi, len(pl)):
                    if pl[k][0] < ei: c += 1
                    else: break
                return c
            BL = int(os.environ.get("SCH_BL", "6"))
            F = sum(8 if not mem[g] else 4 for g in range(D)) + 12
            tot_over = max(0, (8 * (len(exps) - ei) + 4 * (len(pl) - pi) - F) // 4)
            done_over = 0
            for g in range(D + 1):
                le = False
                nm_left = sum(1 for q in range(g, D) if not mem[q])
                def Pl():
                    nonlocal pi, le
                    va[g].append(pl[pi][1]); pi += 1; le = False
                def Ex():
                    nonlocal ei, le
                    va[g].append(exps[ei]); ei += 1; le = True
                if g == D:
                    while ei < len(exps) or pi < len(pl):
                        if ready_pl(le): Pl()
                        elif ready_exp(): Ex()
                        else: va[g].append("s_nop 0"); le = False
                    break
                eleft = len(exps) - ei
                if not mem[g]:
                    if ready_exp() and (nready() < BL or eleft >= nm_left): Ex()
                    else:
                        for _ in range(2):
                            if ready_pl(le): Pl()
                            else: done_over -= 1
                else:
                    if eleft > nm_left and ready_exp() and (nready() < BL): Ex(); done_over += 1
                    elif ready_pl(le): Pl()
                    else: done_over -= 1
                quota = (tot_over * (g + 1)) // D
                while done_over < quota and not (le and len(exps) - ei <= nm_left):
                    if ready_pl(le) and nready() >= 2 - (len(exps) == ei): Pl(); done_over += 1
                    elif len(exps) - ei >= nm_left and ready_exp(): Ex(); done_over += 2
                    else: break
            assert ei == len(exps) and pi == len(pl), (ei, pi, len(exps), len(pl), st)
            va[n-2].append(lastcvt)
        nxt = sm_ops(1, 1 - par)[0][:NP] if do_pre else []
        post_pre = []
        if nxt:
            if nv > 0:
                va[n-3].append(nxt[0]); post_pre = nxt[1:]
            else: post_pre = ["s_nop 3"] + nxt
        kvupd = []
        if not odd:
            fr = [g for g in range(2, n - 4) if not sc[g]]
            sc[fr[0]].append(f"s_add_u32 s{sRing}, s{sRing}, 32768"); sc[fr[1]].append(f"s_and_b32 s{sRing}, s{sRing}, 0x1ffff")
            kvupd = [f"v_add_u32 v{vKV}, s{sRing}, v{vL16}"]
        order = [("K", f, -2) for f in range(4, 8)]
        evs = []
        for i in range(8):
            if i in vpos: evs.append((vpos[i], 0, "V", i))
        for i in range(8):
            if i in kpos: evs.append((kpos[i], 1, "N", i))
        evs.sort()
        allops = order + [(k, i, g) for (g, _, k, i) in evs]
        def cnt_after(kind, idx, gap):
            pos = [j for j, o in enumerate(allops) if o[0] == kind and o[1] == idx][0]
            assert allops[pos][2] < gap, (kind, idx, gap, st)
            return sum(1 for o in allops[pos+1:] if o[2] < gap)
        seen = set()
        for m, u in enumerate(use):
            if u in seen: continue
            seen.add(u)
            kind, f = u
            if f % 4 != 0: continue
            if kind == "K" and f == 0: continue
            if m == 0:
                pre.append(f"s_waitcnt lgkmcnt({cnt_after(kind, f+3, 0)})")
            else:
                sc[m-1].append(f"s_waitcnt lgkmcnt({cnt_after(kind, f+3, m-1)})")
        if krd:
            g = n - 2 if nv > 0 else n - 1
            sc[g].append(f"s_waitcnt lgkmcnt({cnt_after('N', 3, g)})")
        if tail_sc:
            free = [g for g in range(n // 2, n - 2) if not sc[g]]
            body = [x for x in tail_sc if not x.startswith("s_cmp")]; cmps = [x for x in tail_sc if x.startswith("s_cmp")]
            free = [g for g in free if g < n - 3]
            for x, g in zip(body, free[-len(body):]): sc[g].append(x)
            sc[n-3] += cmps
            for g in range(n - 2, n):
                assert all(x.startswith("s_waitcnt") for x in sc[g]), sc[g]
        if ss:
            k = self.nstub; self.nstub += 1
            sc[n-1].append(f"s_cbranch_vccnz {self.name}_stub{k}")
            sc[n-1].append(f"{self.name}_back{k}:")
            self.stubs.append((k, ss, par))
            if nv > 0: va[n-1] += post_pre
            for X in ss:
                for qb in range(2):
                    va[n-1].append(f"v_add_f32 v{LS+2*X+qb}, v{LS+2*X+qb}, v{TS+2*X+qb}")
            if nv == 0: va[n-1] += post_pre
        if kvupd and max(list(kpos.values()) + list(vpos.values()) + [0]) <= n - 2: va[n-2] += kvupd
        else: va[n-1] += kvupd
        out = pre + weave(mf, sc, mem, va)
        X_ = os.environ.get("XP", "")
        if "d" in X_ and bar != 0 and not c0: out = [l for l in out if not (l.startswith("buffer_load") and l.endswith("lds") and ("s[44:47]" in l or "s[48:51]" in l))]
        if "b" in X_: out = [l for l in out if l != "s_barrier"]
        if "r" in X_ and not c0: out = [l for l in out if not l.startswith("ds_read")]
        if "v" in X_: out = [l for l in out if not l.startswith("s_cbranch_vccnz")]
        if "a" in X_:
            out, e_, miss = align8(out)
            out = [".p2align 3"] + out
        if "s" in X_: out = [l.replace(" sc1 lds", " lds") for l in out]
        return out

    def loop_interval(self, st, hook, label, cnt):
        p1 = self.period(1, st, bar=12, hook=hook)
        p2 = self.period(0, st, tail_sc=cnt)
        return p1 + p2 + [f"s_cbranch_scc1 {label}"]

    def rare(self, X, par):
        a = self.a
        Sc = S + 32 * X + 16 * par; Sn = S + 32 * X + 16 * (1 - par)
        a.label(f"{self.name}_rare{X}{par}")
        a("s_nop 7")
        d = [vT, vT + 1]
        for qb in range(2):
            s0 = Sc + 8 * qb
            a(f"v_max3_f32 v{d[qb]}, v{s0}, v{s0+1}, v{s0+2}", f"v_max3_f32 v{d[qb]}, v{d[qb]}, v{s0+3}, v{s0+4}",
              f"v_max3_f32 v{d[qb]}, v{d[qb]}, v{s0+5}, v{s0+6}", f"v_max3_f32 v{d[qb]}, v{d[qb]}, v{s0+7}, 0")
            xreduce(a, "v_max_f32", d[qb], vT + 2)
            for r in range(8):
                a(f"v_sub_f32 v{s0+r}, v{s0+r}, v{d[qb]}", f"v_sub_f32 v{Sn+8*qb+r}, v{Sn+8*qb+r}, v{d[qb]}")
        a(f"s_call_b64 s[{sRet2}:{sRet2+1}], {self.name}_resc{X}")
        exps, pl = sm_ops(X, par)
        pi = 0
        for i in range(16):
            a(exps[i])
            while pi < len(pl) and pl[pi][0] < i:
                a(pl[pi][1]); pi += 1
        a("s_nop 0")
        a([l for _, l in pl[pi:]])
        if X == 1: a(sm_ops(1, 1 - par)[0][:1])
        a("s_nop 1", f"s_setpc_b64 s[{sRet}:{sRet+1}]")

    def resc(self, X):
        a = self.a
        a.label(f"{self.name}_resc{X}")
        for qb in range(2):
            for r in range(4):
                a(f"v_sub_f32 v{NM+8*X+4*qb+r}, v{NM+8*X+4*qb+r}, v{vT+qb}")
            a(f"v_exp_f32 v{vT+2+qb}, -v{vT+qb}")
        a("s_nop 0")
        for qb in range(2):
            a(f"v_mul_f32 v{LS+2*X+qb}, v{LS+2*X+qb}, v{vT+2+qb}")
        for db in range(8):
            for qb in range(2):
                o = O + 64 * X + 8 * db + 4 * qb
                for r in range(4): a(f"v_accvgpr_read_b32 v{vT+4+r}, a{o+r}")
                for r in range(4): a(f"v_mul_f32 v{vT+4+r}, v{vT+4+r}, v{vT+2+qb}")
                for r in range(4): a(f"v_accvgpr_write_b32 a{o+r}, v{vT+4+r}")
        a(f"s_setpc_b64 s[{sRet2}:{sRet2+1}]")

    def gen(self):
        a = self.a; name = self.name
        a("s_cmp_ge_u32 s2, 256", f"s_cbranch_scc1 {name}_end")
        stamp_init(a)
        a("s_load_dwordx2 s[4:5], s[0:1], 16", "s_load_dwordx2 s[16:17], s[0:1], 104")
        a(f"v_lshrrev_b32 v{vT}, 6, v0", f"v_and_b32 v{vL}, 63, v0", f"v_readfirstlane_b32 s{sW}, v{vT}")
        a(f"s_and_b32 s{sH}, s2, 7", f"s_lshl_b32 s{sH}, s{sH}, 2", "s_lshr_b32 s23, s2, 3", "s_and_b32 s23, s23, 3",
          f"s_add_u32 s{sH}, s{sH}, s23", f"s_lshr_b32 s{sI}, s2, 5")
        a(f"v_lshlrev_b32 v{vL16}, 4, v{vL}")
        a(f"v_bfe_u32 v{vT}, v{vL}, 2, 2", f"v_lshrrev_b32 v{vT+1}, 4, v{vL}", f"v_lshlrev_b32 v{vT+1}, 6, v{vT+1}",
          f"v_lshl_add_u32 v{vT}, v{vT}, 13, v{vT+1}", f"s_lshl_b32 s23, s{sW}, 17", f"v_add_u32 v{vT}, s23, v{vT}",
          f"v_and_b32 v{vT+2}, 3, v{vL}",
          f"v_lshl_add_u32 v{vWo}, v{vT+2}, 4, v{vT}", f"v_xor_b32 v{vT+2}, 2, v{vT+2}",
          f"v_lshl_add_u32 v{vWo+2}, v{vT+2}, 4, v{vT}",
          f"v_add_u32 v{vWo+1}, {32768-1024}, v{vWo}", f"v_add_u32 v{vWo+3}, {3*(32768-1024)}, v{vWo+2}",
          f"v_add_u32 v{vWo+2}, {2*(32768-1024)}, v{vWo+2}")
        a(f"s_lshl_b32 s23, s{sI}, 2", f"s_add_u32 s23, s23, s{sW}", f"s_mul_i32 s{sXo}, s23, {2*20480}",
          f"s_add_u32 s{sXo+1}, s{sXo}, 20480",
          f"s_sub_u32 s30, 15, s{sI}", "s_lshl_b32 s23, s30, 2", f"s_add_u32 s23, s23, s{sW}", f"s_mul_i32 s{sXo+2}, s23, {2*20480}",
          f"s_add_u32 s{sXo+3}, s{sXo+2}, 20480")
        a("s_waitcnt lgkmcnt(0)")
        a(f"s_lshl_b32 s23, s{sH}, 8", "s_add_u32 s4, s4, s23", "s_addc_u32 s5, s5, 0")
        srd(a, sWq, "s4", "s5", 0)
        a(f"s_sub_u32 s{sWq+2}, {640*8192}, s23")
        srd(a, sXn, "s16", "s17", 2048 * 1280)
        srd(a, sWS, "s16", "s17", WS_BYTES)
        a(f"s_lshl_b32 s{sKm}, s{sW}, 12", f"s_add_u32 s{sKm}, s{sKm}, 16384", f"s_mov_b32 s{sKo}, 0")
        def wdma():
            pre = [f"s_mov_b32 m0, s{sKm}"]
            l = [f"buffer_load_dwordx4 v{vWo+j}, s[{sWq}:{sWq+3}], s{sKo} offen offset:{j*1024} lds" for j in range(4)]
            post = [f"s_add_u32 s{sKo}, s{sKo}, {64*8192}", f"s_add_u32 s{sKm}, s{sKm}, 32768", f"s_and_b32 s{sKm}, s{sKm}, 0x1ffff"]
            return pre, l, post
        def xload(slot, qb):
            return f"buffer_load_dwordx4 {ar(XR+16*slot+4*qb,4)}, v{vL16}, s[{sXn}:{sXn+3}], s{sXo+qb} offen offset:{slot*1024}"
        for tok in ("W", "X0", "W", "X1", "X2", "W", "X3", "W"):
            if tok == "W":
                pre, l, post = wdma(); a(pre, "s_nop 0", l, post)
            else:
                a([xload(int(tok[1]), qb) for qb in range(4)])
        for qb in range(4): a(f"s_add_u32 s{sXo+qb}, s{sXo+qb}, 4096")
        a(f"s_lshl_b32 s23, s{sH}, 19", f"s_add_u32 s23, s23, {KFO}", "s_add_u32 s6, s16, s23", "s_addc_u32 s7, s17, 0",
          f"s_add_u32 s8, s6, {VFO-KFO}", "s_addc_u32 s9, s7, 0",
          f"s_sub_u32 s23, 16, s{sI}", "s_lshl_b32 s23, s23, 15")
        srd(a, sK, "s6", "s7", "s23")
        srd(a, sV, "s8", "s9", "s23")
        for i in range(4): a(f"v_mov_b32 v{vT+4+i}, 0")
        a(f"v_bfe_u32 v{vT+2}, v{vL}, 2, 2", f"v_lshlrev_b32 v{vT+2}, 6, v{vT+2}", f"v_lshrrev_b32 v{vT+1}, 4, v{vL}",
          f"v_lshl_add_u32 v{vT+2}, v{vT+1}, 11, v{vT+2}",
          f"v_and_b32 v{vT+3}, 1, v{vL}", f"v_lshl_add_u32 v{vT+2}, v{vT+3}, 3, v{vT+2}",
          f"v_bfe_u32 v{vT+3}, v{vL}, 1, 1", f"v_and_b32 v{vT}, 1, v{vT+1}", f"v_lshl_or_b32 v{vT+3}, v{vT}, 1, v{vT+3}",
          f"v_add_u32 v{vT+2}, 16384, v{vT+2}", f"v_lshl_add_u32 v{vWa}, v{vT+3}, 4, v{vT+2}", f"v_xor_b32 v{vWa+1}, 32, v{vWa}")
        for i in range(8):
            a(f"v_mfma_f32_32x32x16_bf16 {vr(QACC+16*i,16)}, {vr(vT+4,4)}, {vr(vT+4,4)}, 0")
        for i in range(8):
            a(f"v_mfma_f32_32x32x16_bf16 {ar(O+16*i,16)}, {vr(vT+4,4)}, {vr(vT+4,4)}, 0")
        a(f"v_and_b32 v{vT}, 15, v{vL}", f"v_lshlrev_b32 v{vT+1}, 2, v{vT+1}", f"v_sub_u32 v{vT}, v{vT}, v{vT+1}")
        for r in range(4): a(f"v_cmp_le_i32 s[{sMask+2*r}:{sMask+2*r+1}], {r}, v{vT}")
        a(f"v_mov_b32 v{vNI}, 0xff800000", f"s_mov_b32 s{sThr}, 0x47800000")
        for i in range(4): a(f"v_mov_b32 v{LS+i}, 0")
        def wreads(buf, off):
            return [f"ds_read_b64_tr_b16 {vr(Q+32*buf+4*cb+2*t,2)}, v{vWa+(cb&1)} offset:{off + t*1024 + (cb>>1)*256}" for cb in range(8) for t in range(2)]
        stamp(a, 1)
        a("s_waitcnt vmcnt(24)", "s_barrier")
        stamp(a, 2)
        if os.environ.get("CYC") == "q": stampc(a, 12)
        a(wreads(0, 0), f"s_mov_b32 s{sCnt}, 0", "s_waitcnt lgkmcnt(0)")
        a(".p2align 6")
        a.label(f"{name}_qloop")
        for ks in range(4):
            buf = ks & 1
            mf = [f"{MF} {vr(QACC+(db*4+qb)*4,4)}, {vr(Q+32*buf+4*db,4)}, {ar(XR+16*ks+4*qb,4)}, {vr(QACC+(db*4+qb)*4,4)}" for qb in range(4) for db in range(8)]
            sc = {g: [] for g in range(32)}; mem = {g: [] for g in range(32)}; va = {g: [] for g in range(32)}
            off = [8192, 32768, 32768 + 8192, 0][ks]
            rd = wreads(1 - buf, off)
            pos = [1, 2, 3, 4, 5, 6, 8, 9, 10, 12, 13, 14, 16, 17, 18, 20]
            if ks & 1: sc[0].append("s_barrier")
            for p_, x in zip(pos, rd): mem[p_].append(x)
            for qb in range(4): mem[8*qb+7].append(xload(ks, qb))
            if ks & 1:
                pre, l, post = wdma()
                sc[10] += pre
                for j, g in enumerate([11, 19, 22, 27]): mem[g].append(l[j])
                for j, x in enumerate(post): sc[28 + j if j < 2 else 27].append(x) if False else None
                sc[28].append(post[0]); sc[29].append(post[1]); sc[30].append(post[2])
            if ks == 2:
                va[24].append(f"v_xor_b32 v{vWa}, 0x10000, v{vWa}")
                va[25].append(f"v_xor_b32 v{vWa+1}, 0x10000, v{vWa+1}")
                sc[24].append(f"s_add_u32 s{sCnt}, s{sCnt}, 1")
            w = f"s_waitcnt vmcnt({15 if (ks+1) & 1 else 19}) lgkmcnt(0)"
            sc[31].append(w)
            if ks == 3:
                for qb in range(3): sc[8*qb+8].append(f"s_add_u32 s{sXo+qb}, s{sXo+qb}, 4096")
                va[31] += [f"s_add_u32 s{sXo+3}, s{sXo+3}, 4096", f"s_cmp_ge_u32 s{sCnt}, 4", f"s_cselect_b32 s{sXn+2}, 0, s{sXn+2}",
                           f"s_cmp_lt_u32 s{sCnt}, 5", f"s_cbranch_scc1 {name}_qloop"]
            a(weave(mf, sc, mem, va))
        a("s_waitcnt vmcnt(0)", "s_barrier")
        stamp(a, 3)
        if os.environ.get("CYC") == "q": stampc(a, 13)
        a(f"s_and_b32 s23, s{sW}, 1", "s_lshl_b32 s23, s23, 12", f"s_cmp_lt_u32 s{sW}, 2", f"s_cselect_b32 s{sKm}, {131072-24576}, 0",
          f"s_add_u32 s{sKm}, s{sKm}, s23", f"s_lshl_b32 s{sKo}, s{sW}, 12", f"s_mov_b32 s{sVo}, s{sKo}",
          f"s_add_u32 s{sVm}, s{sKo}, {32768+16384}")
        for (srdn, so, sm) in [(sK, sKo, sKm)] * 3 + [(sV, sVo, sVm)] * 2:
            a(f"s_mov_b32 m0, s{sm}", "s_nop 0")
            a([f"buffer_load_dwordx4 v{vL16}, s[{srdn}:{srdn+3}], s{so} offen offset:{j*1024} lds" for j in range(4)])
            a(f"s_add_u32 s{so}, s{so}, 16384", f"s_add_u32 s{sm}, s{sm}, 32768", f"s_and_b32 s{sm}, s{sm}, 0x1ffff")
        a(f"v_mov_b32 v{vT}, 0x3e0293ee", f"v_mov_b32 v{vT+1}, 0x3e0293ee")
        for X in range(2):
            for ks in range(4):
                for qb in range(2):
                    d = Q + 32 * X + 8 * ks + 4 * qb
                    for hh in range(2):
                        s0 = QACC + ((2 * ks + hh) * 4 + 2 * X + qb) * 4
                        a(f"v_pk_mul_f32 {vr(s0,2)}, {vr(s0,2)}, {vr(vT,2)}", f"v_pk_mul_f32 {vr(s0+2,2)}, {vr(s0+2,2)}, {vr(vT,2)}",
                          f"v_cvt_pk_bf16_f32 v{d+2*hh}, v{s0}, v{s0+1}", f"v_cvt_pk_bf16_f32 v{d+2*hh+1}, v{s0+2}, v{s0+3}")
        a(f"s_add_u32 s23, s{sW}, 1", "s_lshr_b32 s23, s23, 1", f"s_lshl_b32 s{sCnt}, s{sI}, 1", f"s_add_u32 s{sCnt}, s{sCnt}, s23",
          f"s_lshl_b32 s23, s{sI}, 2", f"s_sub_u32 s{sNSS}, 28, s23", f"s_and_b32 s23, s{sW}, 1", f"s_add_u32 s{sNSS}, s{sNSS}, s23")
        a(f"v_mov_b32 v{vKV}, v{vL16}", f"v_add_u32 v{vT+2}, {3*32768+8192}, v{vL16}")
        stamp(a, 4)
        a("s_waitcnt vmcnt(12)", "s_barrier")
        stamp(a, 5)
        a([f"ds_read_b128 {ar(KF+4*i,4)}, v{vT+2} offset:{i*1024}" for i in range(8)])
        a("s_waitcnt lgkmcnt(4)")
        a(self.period(1, ["q", "q"], c0=True))
        a("s_nop 7", f"s_cmp_lg_u32 s{sCnt}, 0", f"s_cbranch_scc1 {name}_nomask0")
        a(mask_ops(0, 0))
        a.label(f"{name}_nomask0")
        for X in range(2):
            for qb in range(2):
                s0 = S + 32 * X + 8 * qb; d = vT + 2 * X + qb
                a(f"v_max3_f32 v{d}, v{s0}, v{s0+1}, v{s0+2}", f"v_max3_f32 v{d}, v{d}, v{s0+3}, v{s0+4}",
                  f"v_max3_f32 v{d}, v{d}, v{s0+5}, v{s0+6}", f"v_max_f32 v{d}, v{d}, v{s0+7}")
        for sw in ("v_permlane16_swap_b32", "v_permlane32_swap_b32"):
            for k in range(4): a(f"v_mov_b32 v{vT+4+k}, v{vT+k}")
            a("s_nop 0")
            for k in range(4): a(f"{sw} v{vT+k}, v{vT+4+k}")
            for k in range(4): a(f"v_max_f32 v{vT+k}, v{vT+k}, v{vT+4+k}")
        for X in range(2):
            for qb in range(2):
                s0 = S + 32 * X + 8 * qb; d = vT + 2 * X + qb
                for r in range(4): a(f"v_sub_f32 v{NM+8*X+4*qb+r}, 0, v{d}")
        for X in range(2):
            for qb in range(2):
                s0 = S + 32 * X + 8 * qb; d = vT + 2 * X + qb
                for r in range(8): a(f"v_sub_f32 v{s0+r}, v{s0+r}, v{d}")
        a(self.period(0, ["qs", "qs"]))
        stamp(a, 6)
        if os.environ.get("CYC") != "q": stampc(a, 12)
        F = "qsv"
        a(f"s_cmp_eq_u32 s{sCnt}, 0", f"s_cbranch_scc1 {name}_AV", f"s_sub_u32 s{sCnt}, s{sCnt}, 1",
          f"s_cmp_eq_u32 s{sCnt}, 0", f"s_cbranch_scc1 {name}_Aexit")
        a(".p2align 6")
        a.label(f"{name}_DD")
        a(self.period(1, [F, F], bar=12))
        a(self.period(0, [F, F], tail_sc=[f"s_sub_u32 s{sCnt}, s{sCnt}, 1"]))
        a(f"s_cmp_lg_u32 s{sCnt}, 0", f"s_cbranch_scc1 {name}_DD")
        a.label(f"{name}_Aexit")
        a(f"s_bitcmp1_b32 s{sW}, 0", f"s_cbranch_scc1 {name}_Aodd")
        a(self.period(1, [F, F], bar=12))
        a(self.period(0, ["smv", F]))
        a.label(f"{name}_AV")
        a(self.period(1, ["v", F], bar=12))
        a(self.period(0, ["", F]))
        a(f"s_branch {name}_SSpre")
        a.label(f"{name}_Aodd")
        a(self.period(1, ["smv", F], bar=12))
        a(self.period(0, ["v", F]))
        a.label(f"{name}_SSpre")
        stamp(a, 7)
        a(f"s_cmp_eq_u32 s{sNSS}, 0", f"s_cbranch_scc1 {name}_Bexit")
        a(".p2align 6")
        a.label(f"{name}_SS")
        a(self.period(1, ["", F], bar=12))
        a(self.period(0, ["", F], tail_sc=[f"s_sub_u32 s{sNSS}, s{sNSS}, 1"]))
        a(f"s_cmp_lg_u32 s{sNSS}, 0", f"s_cbranch_scc1 {name}_SS")
        a.label(f"{name}_Bexit")
        a(f"s_bitcmp1_b32 s{sW}, 0", f"s_cbranch_scc1 {name}_Bodd")
        a(self.period(1, ["", F], bar=0, dma=False, kread=False))
        a(self.period(0, ["", "smv"], dma=False, kread=False))
        a(self.period(1, ["", "v"], bar=0, dma=False, kread=False))
        a(f"s_branch {name}_Bdone")
        a.label(f"{name}_Bodd")
        a(self.period(1, ["", "smv"], bar=0, dma=False, kread=False))
        a(self.period(0, ["", "v"], dma=False, kread=False))
        a.label(f"{name}_Bdone")
        a(f"s_cmp_ge_u32 s{sW}, 2", f"s_cbranch_scc1 {name}_epi", "s_barrier")
        a.label(f"{name}_epi")
        stamp(a, 8)
        if os.environ.get("CYC") != "q": stampc(a, 13)
        for sw in ("v_permlane16_swap_b32", "v_permlane32_swap_b32"):
            for k in range(4): a(f"v_mov_b32 v{vT+4+k}, v{LS+k}")
            a("s_nop 0")
            for k in range(4): a(f"{sw} v{LS+k}, v{vT+4+k}")
            for k in range(4): a(f"v_add_f32 v{LS+k}, v{LS+k}, v{vT+4+k}")
        for k in range(4): a(f"v_rcp_f32 v{vT+2*k}, v{LS+k}")
        a("s_nop 0")
        for k in range(4): a(f"v_mov_b32 v{vT+2*k+1}, v{vT+2*k}")
        a(f"s_lshl_b32 s23, s{sI}, 2", f"s_add_u32 s23, s23, s{sW}", "s_lshl_b32 s23, s23, 18", f"s_lshl_b32 s31, s{sH}, 12",
          f"s_add_u32 s31, s31, {CTX}", f"s_add_u32 s{sXo}, s23, s31", f"s_add_u32 s{sXo+1}, s{sXo}, {1<<17}",
          "s_lshl_b32 s23, s30, 2", f"s_add_u32 s23, s23, s{sW}", "s_lshl_b32 s23, s23, 18",
          f"s_add_u32 s{sXo+2}, s23, s31", f"s_add_u32 s{sXo+3}, s{sXo+2}, {1<<17}")
        k = 0
        for X in range(2):
            for qb in range(2):
                for t in range(4):
                    T = 32 + (k % 8) * 12; k += 1
                    f = vT + 2 * (2 * X + qb)
                    for hh in range(2):
                        for r in range(4): a(f"v_accvgpr_read_b32 v{T+4+4*hh+r}, a{O+64*X+8*(2*t+hh)+4*qb+r}")
                    for r in range(4): a(f"v_pk_mul_f32 {vr(T+4+2*r,2)}, {vr(T+4+2*r,2)}, {vr(f,2)}")
                    for r in range(4): a(f"v_cvt_pk_bf16_f32 v{T+r}, v{T+4+2*r}, v{T+5+2*r}")
                    a(f"buffer_store_dwordx4 {vr(T,4)}, v{vL16}, s[{sWS}:{sWS+3}], s{sXo+2*X+qb} offen offset:{t*1024}")
        stamp(a, 9)
        self.ffn()
        a.label(f"{name}_fin")
        stamp_flush(a, 1, sW, sWS)
        a.label(f"{name}_end")
        a("s_endpgm")
        for (k, ss, par) in self.stubs:
            a.label(f"{name}_stub{k}")
            for X in ss: a(f"s_call_b64 s[{sRet}:{sRet+1}], {name}_rare{X}{par}")
            a(f"s_branch {name}_back{k}")
        for X in range(2):
            for par in range(2): self.rare(X, par)
            self.resc(X)
        return a

    def ffn(self):
        a = self.a; name = self.name
        sG, sU, sD = 52, 56, 60
        sJ = 82
        a("s_cmp_lt_u32 s2, 192", f"s_cbranch_scc1 {name}_fin", "s_cmp_ge_u32 s2, 246", f"s_cbranch_scc1 {name}_fin")
        a("s_load_dwordx4 s[4:7], s[0:1], 64", "s_load_dwordx2 s[8:9], s[0:1], 80", f"s_sub_u32 s{sJ}, s2, 192")
        KEY = 128
        a(f"s_mov_b32 s23, {RKEY}", f"s_mov_b32 s31, {RKEY+4096}")
        for q in range(8):
            a(f"buffer_load_dwordx4 {vr(KEY+4*q,4)}, v{vL16}, s[{sWS}:{sWS+3}], s{23 if q < 4 else 31} offen offset:{(q%4)*1024}")
        a(f"v_lshrrev_b32 v{vT}, 2, v{vL}", f"v_mul_u32_u24 v{vT+1}, 3456, v{vT}", f"v_and_b32 v{vT+2}, 3, v{vL}",
          f"v_lshl_add_u32 v{vT+1}, v{vT+2}, 4, v{vT+1}")
        a("s_waitcnt lgkmcnt(0)")
        srd(a, sG, "s4", "s5", 640 * 3456); srd(a, sU, "s6", "s7", 640 * 3456); srd(a, sD, "s8", "s9", 1728 * 1280)
        a(f"s_mul_i32 s23, s{sW}, {10*16*3456}", f"s_lshl_b32 s31, s{sJ}, 6", "s_add_u32 s23, s23, s31",
          f"s_mul_i32 s24, s{sW}, 10240", f"s_mul_i32 s25, s{sJ}, 40960", "s_add_u32 s25, s25, s24", "s_mov_b32 s26, 10")
        a("s_barrier")
        a.label(f"{name}_fdma")
        a("s_mov_b32 m0, s24", "s_nop 0", f"buffer_load_dwordx4 v{vT+1}, s[{sG}:{sG+3}], s23 offen lds",
          "s_add_u32 m0, s24, 40960", "s_nop 0", f"buffer_load_dwordx4 v{vT+1}, s[{sU}:{sU+3}], s23 offen lds",
          "s_add_u32 m0, s24, 81920", "s_nop 0", f"buffer_load_dwordx4 v{vL16}, s[{sD}:{sD+3}], s25 offen lds",
          f"s_add_u32 s23, s23, {16*3456}", "s_add_u32 s24, s24, 1024", "s_add_u32 s25, s25, 1024",
          "s_sub_u32 s26, s26, 1", "s_cmp_lg_u32 s26, 0", f"s_cbranch_scc1 {name}_fdma")
        vM, vPrev, vSel, vTok, vTmp = vT + 4, vT + 5, vT + 6, vT + 7, vT + 8
        a(f"v_mov_b32 v{vPrev}, 0", f"v_mov_b32 v{vSel}, 0", f"v_and_b32 v{vTok}, 7, v{vL}", "s_mov_b32 s26, 0", "s_waitcnt vmcnt(30)")
        a.label(f"{name}_top")
        a(f"v_max3_u32 v{vM}, v{KEY}, v{KEY+1}, v{KEY+2}", f"v_max3_u32 v{vTmp}, v{KEY+3}, v{KEY+4}, v{KEY+5}")
        for q in range(6, 30, 4):
            a(f"v_max3_u32 v{vM}, v{vM}, v{KEY+q}, v{KEY+q+1}", f"v_max3_u32 v{vTmp}, v{vTmp}, v{KEY+q+2}, v{KEY+q+3}")
        a(f"v_max3_u32 v{vM}, v{vM}, v{KEY+30}, v{KEY+31}", f"v_max_u32 v{vM}, v{vM}, v{vTmp}")
        for m in ("quad_perm:[1,0,3,2]", "quad_perm:[2,3,0,1]", "row_half_mirror", "row_mirror"):
            a("s_nop 1", f"v_max_u32_dpp v{vM}, v{vM}, v{vM} {m} row_mask:0xf bank_mask:0xf")
        xreduce(a, "v_max_u32", vM, vTmp)
        a(f"v_add_u32 v{vPrev}, v{vPrev}, v{vM}", f"v_cmp_eq_u32 vcc, s26, v{vTok}")
        for q in range(32): a(f"v_sub_u32 v{KEY+q}, v{KEY+q}, v{vM}")
        a(f"v_cndmask_b32 v{vSel}, v{vSel}, v{vPrev}, vcc", "s_add_u32 s26, s26, 1", "s_cmp_lt_u32 s26, 8", f"s_cbranch_scc1 {name}_top")
        vRow, vR, vXo = vT + 9, vT + 10, vT + 11
        stamp(a, 10)
        a(f"v_and_b32 v{vRow}, 0xffff, v{vSel}", f"v_sub_u32 v{vRow}, 0xffff, v{vRow}", f"v_and_b32 v{vRow}, 2047, v{vRow}",
          f"v_lshrrev_b32 v{vXo}, 4, v{vRow}", f"v_mul_u32_u24 v{vXo}, 20480, v{vXo}", f"v_and_b32 v{vTmp}, 15, v{vRow}",
          f"v_lshl_add_u32 v{vXo}, v{vTmp}, 4, v{vXo}", f"v_lshrrev_b32 v{vTmp}, 4, v{vL}", f"v_lshl_add_u32 v{vXo}, v{vTmp}, 8, v{vXo}")
        XS = 32
        for s_ in range(20):
            if s_ % 4 == 0: a(f"s_mov_b32 s23, {s_*1024}")
            a(f"buffer_load_dwordx4 {vr(XS+4*s_,4)}, v{vXo}, s[{sWS}:{sWS+3}], s23 offen offset:{(s_%4)*1024}")
        a(f"v_ashrrev_i32 v{vM}, 31, v{vSel}", f"v_not_b32 v{vM}, v{vM}", f"v_or_b32 v{vM}, 0x80000000, v{vM}",
          f"v_xor_b32 v{vR}, v{vSel}, v{vM}", f"v_and_b32 v{vR}, 0xffff0000, v{vR}",
          f"v_mul_f32 v{vR}, 0xbfb8aa3b, v{vR}", f"v_exp_f32 v{vR}, v{vR}", "s_nop 0", f"v_add_f32 v{vR}, 1.0, v{vR}",
          f"v_rcp_f32 v{vR}, v{vR}", "s_nop 0")
        bf16r(a, vR)
        a(f"v_lshlrev_b32 v{vM}, 2, v{vL}", f"v_add_u32 v{vM}, {SEL}, v{vM}", f"v_mov_b32 v{vPrev}, 0x40000000",
          f"s_add_u32 s23, s{sJ}, s{sW}", "s_cmp_eq_u32 s23, 0", "s_cselect_b32 s23, 8, 0",
          f"v_cmp_gt_u32 vcc, s23, v{vL}", "s_nop 1", f"v_cndmask_b32 v{vM}, v{vPrev}, v{vM}, vcc",
          f"buffer_store_dword v{vRow}, v{vM}, s[{sWS}:{sWS+3}], 0 offen",
          f"buffer_store_dword v{vR}, v{vM}, s[{sWS}:{sWS+3}], 0 offen offset:32")
        vA, vB, vC = vT + 12, vT + 13, vT + 14
        a(f"v_lshl_add_u32 v{vA}, v{vTmp}, 2, v{vT}",
          f"v_lshlrev_b32 v{vA}, 6, v{vA}", f"v_lshl_add_u32 v{vA}, v{vT+2}, 3, v{vA}",
          f"s_lshr_b32 s23, s{sW}, 1", "s_mul_i32 s23, s23, 40960", f"s_and_b32 s31, s{sW}, 1", "s_lshl_b32 s31, s31, 5", "s_add_u32 s23, s23, s31",
          f"v_add_u32 v{vA}, s23, v{vA}",
          f"v_mul_u32_u24 v{vB}, 1280, v{vT}", f"v_lshl_add_u32 v{vB}, v{vT+2}, 3, v{vB}",
          f"s_mul_i32 s23, s{sW}, 320", "s_add_u32 s23, s23, 81920", f"v_add_u32 v{vB}, s23, v{vB}",
          f"s_lshl_b32 s23, s{sW}, 10", "s_add_u32 s23, s23, 122880", f"v_add_u32 v{vC}, s23, v{vL16}")
        a("s_waitcnt vmcnt(0)", "s_barrier")
        WFr = 112; DF = 192
        for s_ in range(20):
            for t in range(2):
                a(f"ds_read_b64_tr_b16 {vr(WFr+4*s_+2*t,2)}, v{vA} offset:{s_*2048+t*256}")
        a("s_waitcnt lgkmcnt(0)")
        for cb in range(10):
            for t in range(2):
                a(f"ds_read_b64_tr_b16 {vr(DF+4*cb+2*t,2)}, v{vB} offset:{t*20480+cb*32}")
        G = 232
        for s_ in range(20):
            a(f"{MF} {vr(G,4)}, {vr(WFr+4*s_,4)}, {vr(XS+4*s_,4)}, {'0' if s_ == 0 else vr(G,4)}")
        a("s_nop 7", f"ds_write_b128 v{vC}, {vr(G,4)}", f"v_add_u32 v{vC}, 122880, v{vL16}", "s_waitcnt lgkmcnt(0)", "s_barrier")
        GU = 32
        for k in range(4): a(f"ds_read_b128 {vr(GU+4*k,4)}, v{vC} offset:{k*1024}")
        a(f"v_and_b32 v{vM}, 15, v{vL}", f"v_mul_u32_u24 v{vA}, 2560, v{vM}", f"v_lshl_add_u32 v{vA}, v{vTmp}, 4, v{vA}",
          f"v_cmp_gt_u32 vcc, 8, v{vM}", f"s_mul_i32 s23, s{sJ}, 20480", f"s_mul_i32 s31, s{sW}, 640",
          f"v_cndmask_b32 v{vA}, v{vPrev}, v{vA}, vcc", "s_add_u32 s23, s23, s31", f"s_add_u32 s23, s23, {YP}")
        a("s_waitcnt lgkmcnt(0)")
        for k in range(16): bf16r(a, GU + k)
        for k in range(8): a(f"v_mul_f32 v{GU+16+k}, 0xbfb8aa3b, v{GU+k}")
        for k in range(8): a(f"v_exp_f32 v{GU+16+k}, v{GU+16+k}")
        for k in range(8): a(f"v_add_f32 v{GU+16+k}, 1.0, v{GU+16+k}")
        for k in range(8): a(f"v_rcp_f32 v{GU+16+k}, v{GU+16+k}")
        for k in range(8): a(f"v_mul_f32 v{GU+k}, v{GU+k}, v{GU+16+k}")
        for k in range(8): bf16r(a, GU + k)
        for k in range(8): a(f"v_mul_f32 v{GU+k}, v{GU+k}, v{GU+8+k}")
        H = GU + 24
        for k in range(4): a(f"v_cvt_pk_bf16_f32 v{H+k}, v{GU+2*k}, v{GU+2*k+1}")
        a("s_nop 1")
        Y = 64
        for cb in range(10): a(f"{MF} {vr(Y+4*cb,4)}, {vr(DF+4*cb,4)}, {vr(H,4)}, 0")
        a("s_nop 7")
        for cb in range(10): a(f"buffer_store_dwordx4 {vr(Y+4*cb,4)}, v{vA}, s[{sWS}:{sWS+3}], s23 offen offset:{cb*64}")

def gen_k2(name):
    return K2(name).gen()
```

```python
import os
from asmlib import *
from gen_k1 import (XNF, RKEY, SEL, YP, WOF, KFO, VFO, CTX, WS_BYTES, MF, srd, bf16r, allreduce32_add,
                    stamp, stampc, stampv, stamp_init, stamp_flush, DBG)
import gen_k2 as k2
from gen_k2 import (vL, vL16, vKV, vNI, vX, vT, Q, S, P, NM, E, TS, LS, QACC, O, KF, VF, XR,
                    sW, sH, sI, sWS, sK, sV, sKm, sVm, sKo, sVo, sCnt, sNSS, sXo, sMask, sRet, sRet2, sThr,
                    xreduce, mask_ops)

LDS = 163840
FLG = 0x284000
KVF = FLG
CF = FLG + 0x1000
YF = FLG + 0x3000
WF = FLG + 0x4000
SC = " sc1"
BIG = 0x40000000
SPARE = 131072
XS = SPARE + 20480
EX = SPARE + 30720
UPD = LDS - 8192
SCR = LDS - 4096
TOPWG = 255
FFN0, FFN1 = 170, 224
SPIN_MAX = 200000
sDb = 56
sCFA, sCFB, sKVa = 80, 3, 82
vWo, vWa, vCa = 8, 12, 14
vPoll, vZero, vPo = 15, 229, 8
vCo = 3

class VM:
    def __init__(self): self.ops = []
    def issue(self, tag, n=1): self.ops += [tag] * n
    def need(self, *tags):
        last = max(i for i, t in enumerate(self.ops) if t in tags)
        return min(63, len(self.ops) - 1 - last)

class Fused(k2.K2):
    SC = SC
    U = 8
    FL = 96
    ROT = int(os.environ.get('ROT', '0'))
    FV = [8, 11, 12, 13, 14]
    KY = 3
    def poll_check(self, a, tag, vreg, voff, srdn, cmp_lines, soff="0"):
        n = self.name
        a(cmp_lines, f"s_cbranch_vccnz {n}_{tag}_spin")
        a.label(f"{n}_{tag}_ok")
        t = Asm()
        t.label(f"{n}_{tag}_spin")
        t(f"s_mov_b32 s83, {SPIN_MAX}")
        t.label(f"{n}_{tag}_spin2")
        t(f"buffer_load_dword v{vreg}, v{voff}, s[{srdn}:{srdn+3}], {soff} offen{SC}", "s_waitcnt vmcnt(0)")
        t(cmp_lines, f"s_cbranch_vccz {n}_{tag}_ok", "s_sleep 8", "s_sub_u32 s83, s83, 1", "s_cmp_lg_u32 s83, 0",
          f"s_cbranch_scc1 {n}_{tag}_spin2", f"s_branch {n}_{tag}_ok")
        self.tail += t.lines

    def phase1(self):
        a = self.a; name = self.name
        sC, sWt, sX, sQ2, sWO, sWR = 32, 36, 44, 48, 52, 68
        sM0C, sStep, sOC, sOW, sIT = 24, 25, 26, 27, 28
        FA = 32; FB = 96
        a("s_cmp_ge_u32 s2, 256", f"s_cbranch_scc1 {name}_end")
        if os.environ.get("CT0", "1") == "1":
            a("s_getpc_b64 s[62:63]", "v_and_b32 v230, 127, v0", "v_lshlrev_b32 v230, 7, v230", "global_load_dword v231, v230, s[62:63]")
        stamp_init(a)
        a("s_load_dwordx4 s[4:7], s[0:1], 0", "s_load_dwordx4 s[8:11], s[0:1], 24", "s_load_dwordx2 s[14:15], s[0:1], 56",
          "s_load_dwordx2 s[12:13], s[0:1], 40", "s_load_dwordx4 s[16:19], s[0:1], 96", "s_load_dwordx2 s[60:61], s[0:1], 16")
        a(f"v_lshrrev_b32 v{vT}, 6, v0", f"v_and_b32 v{vL}, 63, v0", f"v_readfirstlane_b32 s{sW}, v{vT}")
        a(f"s_and_b32 s{sH}, s2, 7", f"s_lshl_b32 s{sH}, s{sH}, 2", "s_lshr_b32 s23, s2, 3", "s_and_b32 s23, s23, 3",
          f"s_add_u32 s{sH}, s{sH}, s23", f"s_lshr_b32 s{sI}, s2, 5")
        XV = 160; WR = 172; F = 184
        vU, vRow, vXo, vXo3, vWro = 208, 209, 210, 211, 212
        vS, vT2, vMean, vAcc = 213, 214, 216, 218
        vTW, vTR, vKo, vO1, vO3, vFl = 220, 221, 222, 223, 224, 225
        vTQ = 235; sM16 = 64
        LNPRE = os.environ.get("LNPRE", "1") == "1"
        lnaddr = [f"v_and_b32 v{vU}, 31, v{vL}", f"v_lshrrev_b32 v{vRow}, 5, v{vL}",
          "s_lshl_b32 s31, s2, 2", f"s_add_u32 s31, s31, s{sW}", "s_lshl_b32 s31, s31, 1", f"v_add_u32 v{vRow}, s31, v{vRow}",
          f"v_lshlrev_b32 v{vWro}, 4, v{vU}", f"v_mul_u32_u24 v{vXo}, 1280, v{vRow}", f"v_add_u32 v{vXo}, v{vXo}, v{vWro}",
          f"v_cmp_gt_u32 s[{sM16}:{sM16+1}], 16, v{vU}", f"v_mov_b32 v{vT+3}, {BIG}", f"v_and_b32 v{vTW}, 7, v{vRow}",
          f"v_cndmask_b32 v{vXo3}, v{vT+3}, v{vXo}, s[{sM16}:{sM16+1}]"]
        xloads = [f"buffer_load_dwordx4 {vr(XV,4)}, v{vXo}, s[{sX}:{sX+3}], 0 offen",
          f"buffer_load_dwordx4 {vr(XV+4,4)}, v{vXo}, s[{sX}:{sX+3}], 0 offen offset:512",
          f"buffer_load_dwordx4 {vr(XV+8,4)}, v{vXo3}, s[{sX}:{sX+3}], 0 offen offset:1024"]
        xloads += [f"buffer_load_dwordx4 {vr(WR+4*i,4)}, v{vWro}, s[{sWR}:{sWR+3}], 0 offen offset:{512*i}" for i in range(3)]
        if LNPRE: a(lnaddr)
        a(f"v_bfe_u32 v{vT+1}, v{vL}, 1, 3", f"v_lshlrev_b32 v{vT+1}, 13, v{vT+1}", f"v_and_b32 v{vT+2}, 1, v{vL}",
          f"v_lshl_add_u32 v{vTQ}, v{vT+2}, 7, v{vT+1}", f"s_lshl_b32 s74, s{sI}, 1", f"s_and_b32 s31, s{sW}, 1", "s_add_u32 s74, s74, s31",
          "s_lshl_b32 s74, s74, 16", f"s_mov_b32 s73, {128*8192}", f"v_and_b32 v{vT}, 15, v{vL}",
          f"v_lshlrev_b32 v{vT+1}, 10, v{vT}", f"v_and_b32 v{vT+2}, 16, v{vL}", f"v_lshl_add_u32 v233, v{vT+2}, 3, v{vT+1}",
          "s_lshl_b32 s30, s23, 5", f"s_add_u32 s30, s30, s{sW}", "s_lshl_b32 s30, s30, 14", f"s_lshl_b32 s29, s{sI}, 16", f"s_lshl_b32 s23, s{sH}, 8",
          f"s_cmp_ge_u32 s{sW}, 2", "s_waitcnt lgkmcnt(0)")
        if LNPRE:
            srd(a, sX, "s4", "s5", 2048*1280)
            srd(a, sWR, "s14", "s15", 1280)
            a(xloads)
        a("s_cselect_b32 s62, s10, s8", "s_cselect_b32 s63, s11, s9", "s_add_u32 s62, s62, s23", "s_addc_u32 s63, s63, 0")
        srd(a, sWt, "s62", "s63", 0)
        a(f"s_sub_u32 s{sWt+2}, {512*8192}, s23", f"buffer_load_dword v231, v{vTQ}, s[{sWt}:{sWt+3}], s74 offen",
          "s_add_u32 s6, s6, s29", "s_addc_u32 s7, s7, 0")
        srd(a, sC, "s6", "s7", 0)
        a(f"s_sub_u32 s{sC+2}, {2048*1024}, s29")
        a(f"buffer_load_dword v232, v233, s[{sC}:{sC+3}], s30 offen", "s_add_u32 s74, s74, s73")
        T01 = os.environ.get("T01", "1") == "1"
        t1 = [f"buffer_load_dword v231, v{vTQ}, s[{sWt}:{sWt+3}], s74 offen", f"buffer_load_dword v232, v233, s[{sC}:{sC+3}], s30 offen offset:256"]
        if T01: a(t1)
        a("s_getpc_b64 s[8:9]", f"{name}_pc:", "s_lshr_b32 s31, s2, 3", "s_and_b32 s31, s31, 15", "s_lshl_b32 s31, s31, 2",
          f"s_add_u32 s31, s31, s{sW}", "s_lshl_b32 s31, s31, 11", f"s_min_u32 s31, s31, {name}_codeend-{name}_pc-2048",
          f"v_lshlrev_b32 v234, 7, v{vT}", "v_add_u32 v230, s31, v234", "global_load_dword v231, v230, s[8:9]",
          f"s_add_u32 s8, s8, {name}_co1-{name}_pc-4", "s_addc_u32 s9, s9, 0")
        a("s_add_u32 s60, s60, s23", "s_addc_u32 s61, s61, 0", f"s_sub_u32 s75, {640*8192}, s23")
        srd(a, sQ2, "s62", "s63", f"s{sWt+2}")
        a(f"v_lshlrev_b32 v{vL16}, 4, v{vL}",
          f"v_lshrrev_b32 v{vT+3}, 2, v{vL}", f"v_lshrrev_b32 v{vT+1}, 5, v{vL}", f"v_mul_u32_u24 v{vT+1}, 3, v{vT+1}",
          f"v_and_b32 v{vT+2}, 3, v{vL}", f"v_xor_b32 v{vT+1}, v{vT+1}, v{vT+2}", f"v_lshlrev_b32 v{vT+1}, 4, v{vT+1}",
          f"v_lshl_add_u32 v{vCo}, v{vT+3}, 10, v{vT+1}", f"s_lshl_b32 s23, s{sW}, 19", f"v_add_u32 v{vCo}, s23, v{vCo}")
        for j in range(1, 4): a(f"v_add_u32 v{vCo+j}, {j*(16384-1024)}, v{vCo}")
        a(f"v_and_b32 v{vT+3}, 3, v{vT+3}", f"v_lshrrev_b32 v{vT+1}, 4, v{vL}", f"v_lshlrev_b32 v{vT+1}, 6, v{vT+1}",
          f"v_lshl_add_u32 v{vT+3}, v{vT+3}, 13, v{vT+1}", f"s_and_b32 s23, s{sW}, 1", "s_lshl_b32 s23, s23, 17",
          f"v_add_u32 v{vT+3}, s23, v{vT+3}", f"v_lshl_add_u32 v{vWo}, v{vT+2}, 4, v{vT+3}", f"v_xor_b32 v{vT+2}, 2, v{vT+2}",
          f"v_lshl_add_u32 v{vWo+2}, v{vT+2}, 4, v{vT+3}", f"v_add_u32 v{vWo+1}, {32768-1024}, v{vWo}",
          f"v_add_u32 v{vWo+3}, {3*(32768-1024)}, v{vWo+2}", f"v_add_u32 v{vWo+2}, {2*(32768-1024)}, v{vWo+2}")
        a(f"s_lshl_b32 s{sM0C}, s{sW}, 12", f"s_mov_b32 s{sOC}, 0", f"s_mov_b32 s{sOW}, 0", f"s_mov_b32 s{sStep}, {32*8192}", "s_mov_b32 s79, 64")
        def dma_lines():
            preC = [f"s_mov_b32 m0, s{sM0C}"]
            lc = [f"buffer_load_dwordx4 v{vCo+j}, s[{sC}:{sC+3}], s{sOC} offen offset:{j*1024}{SC} lds" for j in range(4)]
            preW = [f"s_add_u32 m0, s{sM0C}, 16384"]
            lw = [f"buffer_load_dwordx4 v{vWo+j}, s[{sWt}:{sWt+3}], s{sOW} offen offset:{j*1024} lds" for j in range(4)]
            post = [f"s_add_u32 s{sOC}, s{sOC}, s79", f"s_add_u32 s{sOW}, s{sOW}, s{sStep}",
                    f"s_add_u32 s{sM0C}, s{sM0C}, 32768", f"s_and_b32 s{sM0C}, s{sM0C}, 0x1ffff"]
            return preC, lc, preW, lw, post
        def dma_stage():
            preC, lc, preW, lw, post = dma_lines()
            a(preC, "s_nop 0", lc, preW, "s_nop 0", lw, post)
        if not LNPRE: dma_stage()
        stamp(a, 1)
        srd(a, sWS, "s18", "s19", WS_BYTES)
        srd(a, sWO, "s12", "s13", 4096*1280)
        srd(a, sDb, "s16", "s17", 256)
        if not LNPRE:
            srd(a, sX, "s4", "s5", 2048*1280)
            srd(a, sWR, "s14", "s15", 1280)
        a("s_and_b32 s29, s2, 7", "s_lshl_b32 s29, s29, 2", f"s_add_u32 s29, s29, s{sW}", "s_lshl_b32 s29, s29, 11",
          f"s_and_b32 s23, s{sH}, 3", "s_lshl_b32 s23, s23, 19", "s_add_u32 s29, s29, s23")
        a(f"s_lshl_b32 s23, s{sW}, 5", f"s_add_u32 s23, s23, s{sH}", "s_lshl_b32 s23, s23, 2", f"s_add_u32 s23, s23, {CF}",
          f"s_lshl_b32 s31, s{sI}, 9", f"s_add_u32 s{sCFA}, s23, s31", f"s_sub_u32 s31, {15*512}, s31", f"s_add_u32 s{sCFB}, s23, s31",
          f"s_lshl_b32 s23, s{sH}, 7", f"s_lshl_b32 s31, s{sI}, 2", "s_add_u32 s23, s23, s31", f"s_add_u32 s{sKVa}, s23, {KVF}",
          self.yf_addr(62), f"s_sub_u32 s23, s2, {FFN0}", f"s_cmp_lt_u32 s23, {FFN1-FFN0}", f"s_cselect_b32 s62, s62, {BIG}",
          f"s_cmp_eq_u32 s{sW}, 0", f"s_cselect_b32 s31, s{sKVa}, {BIG}", f"s_cselect_b32 s77, s2, {BIG}",
          f"s_cmp_eq_u32 s2, {TOPWG}", f"s_cselect_b32 s23, {SEL}, {BIG}",
          f"v_lshl_add_u32 v{vFl}, v{vT}, 2, s23", f"v_mov_b32 v{vZero}, 0",
          f"v_writelane_b32 v{vFl}, s{sCFA}, 0", f"v_writelane_b32 v{vFl}, s{sCFB}, 1", f"v_writelane_b32 v{vFl}, s31, 2", "s_add_u32 s31, s31, 32", f"v_writelane_b32 v{vFl}, s31, 5",
          self.wf_addr(23), f"v_writelane_b32 v{vFl}, s23, 3", f"v_writelane_b32 v{vFl}, s62, 4")
        if LNPRE:
            a(f"s_and_b32 s23, s{sH}, 3", "s_lshr_b32 s31, s23, 1", "s_lshl_b32 s31, 4, s31", "s_bitcmp1_b32 s23, 0",
              "s_cselect_b32 s76, s31, 0", "s_cselect_b32 s72, 0, s31", "s_or_b32 s76, s76, 0x20", "s_or_b32 s72, s72, 0x25")
        else:
            a(f"s_and_b32 s23, s{sH}, 3", "s_cmp_eq_u32 s23, 2", "s_cselect_b32 s76, 0x2a, 0x22", "s_cselect_b32 s72, 0x27, 0x2f",
              "s_cmp_eq_u32 s23, 3", "s_cselect_b32 s72, 0x37, s72")
        for i in range(4): a(f"v_mov_b32 v{vT+4+i}, 0")
        a(f"v_lshrrev_b32 v{vT+1}, 4, v{vL}", f"v_lshrrev_b32 v{vT+2}, 3, v{vT}",
          f"v_mul_u32_u24 v{vT+2}, 3, v{vT+2}", f"v_xor_b32 v{vT+2}, v{vT+2}, v{vT+1}", f"v_lshlrev_b32 v{vT+2}, 4, v{vT+2}",
          f"v_lshl_add_u32 v{vCa}, v{vT}, 6, v{vT+2}", f"s_and_b32 s23, s{sW}, 1", "s_lshl_b32 s23, s23, 11", f"v_add_u32 v{vCa}, s23, v{vCa}")
        rest = Asm()
        rest(f"v_lshrrev_b32 v{vT+2}, 2, v{vT}", f"v_lshlrev_b32 v{vT+2}, 6, v{vT+2}", f"v_lshl_add_u32 v{vT+2}, v{vT+1}, 11, v{vT+2}",
          f"v_and_b32 v{vT+3}, 1, v{vL}", f"v_lshl_add_u32 v{vT+2}, v{vT+3}, 3, v{vT+2}", f"v_bfe_u32 v{vT+3}, v{vL}, 1, 1",
          f"v_and_b32 v{vT+1}, 1, v{vT+1}", f"v_lshl_or_b32 v{vT+3}, v{vT+1}, 1, v{vT+3}",
          f"s_lshr_b32 s23, s{sW}, 1", "s_lshl_b32 s23, s23, 13", "s_add_u32 s23, s23, 16384", f"v_add_u32 v{vT+2}, s23, v{vT+2}",
          f"v_lshl_add_u32 v{vWa}, v{vT+3}, 4, v{vT+2}", f"v_xor_b32 v{vWa+1}, 32, v{vWa}")
        TR = SPARE
        rest([f"v_mov_b32 v{vT+3}, {BIG}"] if LNPRE else lnaddr,
          f"v_lshlrev_b32 v{vTW}, 4, v{vTW}", f"v_lshl_add_u32 v{vTW}, v{vU}, 7, v{vTW}", f"v_add_u32 v{vTW}, {TR}, v{vTW}",
          f"v_lshlrev_b32 v{vKo}, 2, v{vRow}", f"v_cmp_eq_u32 vcc, 0, v{vU}", f"v_add_u32 v{vKo}, {RKEY}, v{vKo}",
          f"v_lshlrev_b32 v{vTR}, 4, v0", f"v_cndmask_b32 v{vKo}, v{vT+3}, v{vKo}, vcc", f"v_add_u32 v{vTR}, {TR}, v{vTR}",
          f"v_sub_u32 v{vRow}, 0xffff, v{vRow}",
          f"v_lshrrev_b32 v{vO1}, 3, v0", f"v_and_b32 v{vT+2}, 7, v0", f"v_lshlrev_b32 v{vT+2}, 4, v{vT+2}",
          f"v_cmp_gt_u32 vcc, 128, v0", f"v_lshl_add_u32 v{vO1}, v{vO1}, 8, v{vT+2}",
          "s_lshr_b32 s66, s2, 1", "s_mul_i32 s66, s66, 20480", "s_and_b32 s31, s2, 1", "s_lshl_b32 s31, s31, 7", "s_add_u32 s66, s66, s31",
          f"v_cndmask_b32 v{vO3}, v{vT+3}, v{vO1}, vcc", "s_add_u32 s67, s66, 8192", "s_add_u32 s78, s66, 16384", f"s_mov_b32 s{sIT}, 0")
        rl = rest.lines
        for i in range(16):
            a(f"v_mfma_f32_32x32x16_bf16 {ar(16*i,16)}, {vr(vT+4,4)}, {vr(vT+4,4)}, 0", rl[4*i:4*i+4])
        assert len(rl) <= 64
        def ln_compute(t):
            pk = lambda op, d, x, y, extra="": f"{op} {vr(d,2)}, {vr(x,2)}, {vr(y,2)}{extra}"
            for i in range(12):
                t(f"v_lshlrev_b32 v{F+2*i}, 16, v{XV+i}", f"v_and_b32 v{F+2*i+1}, 0xffff0000, v{XV+i}")
            t(pk("v_pk_add_f32", vT, F, F + 2), pk("v_pk_add_f32", vT + 2, F + 4, F + 6))
            for i in range(8, 24, 4): t(pk("v_pk_add_f32", vT, vT, F + i), pk("v_pk_add_f32", vT + 2, vT + 2, F + i + 2))
            t(pk("v_pk_add_f32", vT, vT, vT + 2), f"v_add_f32 v{vS}, v{vT}, v{vT+1}")
            allreduce32_add(t, vS, vT2)
            t(f"v_mul_f32 v{vMean}, 0xbacccccd, v{vS}", f"v_mul_f32 v{vMean+1}, 0xbacccccd, v{vS}")
            for i in range(12):
                d = vT + 4 + 2 * (i % 4); acc = vT if i < 8 else vT + 2
                t(pk("v_pk_add_f32", d, F + 2 * i, vMean))
                if i in (0, 8): t(pk("v_pk_mul_f32", acc, d, d))
                else: t(f"v_pk_fma_f32 {vr(acc,2)}, {vr(d,2)}, {vr(d,2)}, {vr(acc,2)}")
            t(f"v_add_f32 v{vT+2}, v{vT+2}, v{vT+3}", f"v_add_f32 v{vS}, v{vT}, v{vT+1}", f"v_cndmask_b32 v{vT+2}, 0, v{vT+2}, s[{sM16}:{sM16+1}]",
              f"v_add_f32 v{vS}, v{vS}, v{vT+2}")
            allreduce32_add(t, vS, vT2)
            t(f"v_mul_f32 v{vS}, 0x3acccccd, v{vS}")
            bf16r(t, vS)
            t(f"v_add_f32 v{vS}, 0x3727c5ac, v{vS}")
            bf16r(t, vS)
            t(f"v_sqrt_f32 v{vS}, v{vS}")
            bf16r(t, vMean)
            bf16r(t, vS)
            t(f"v_rcp_f32 v{vT+12}, v{vS}", f"v_mov_b32 v{vMean+1}, v{vMean}", f"v_mov_b32 v{vT+13}, v{vT+12}")
            for i in range(12):
                f0 = F + 2 * i; w0 = vT + 2 * (i % 2)
                t(pk("v_pk_add_f32", f0, f0, vMean), f"v_lshlrev_b32 v{w0}, 16, v{WR+i}", f"v_cvt_pk_bf16_f32 v{f0+1}, v{f0}, v{f0+1}",
                  f"v_and_b32 v{w0+1}, 0xffff0000, v{WR+i}", f"v_lshlrev_b32 v{f0}, 16, v{f0+1}", f"v_and_b32 v{f0+1}, 0xffff0000, v{f0+1}",
                  pk("v_pk_mul_f32", f0, f0, vT + 12), f"v_cvt_pk_bf16_f32 v{XV+i}, v{f0}, v{f0+1}",
                  f"v_lshlrev_b32 v{f0}, 16, v{XV+i}", f"v_and_b32 v{f0+1}, 0xffff0000, v{XV+i}")
                if i == 0: t(pk("v_pk_mul_f32", vAcc, f0, w0))
                else: t(f"v_pk_fma_f32 {vr(vAcc,2)}, {vr(f0,2)}, {vr(w0,2)}, {vr(vAcc,2)}")
                if i % 4 == 3: t(f"ds_write_b128 v{vTW}, {vr(XV+i-3,4)} offset:{(i//4)*4096}")
            t(f"v_add_f32 v{vAcc}, v{vAcc}, v{vAcc+1}")
            allreduce32_add(t, vAcc, vT2)
            bf16r(t, vAcc)
            t(f"v_ashrrev_i32 v{vT2}, 31, v{vAcc}", f"v_or_b32 v{vT2}, 0x80000000, v{vT2}", f"v_xor_b32 v{vAcc}, v{vAcc}, v{vT2}",
              f"v_and_b32 v{vAcc}, 0xffff0000, v{vAcc}", f"v_or_b32 v{vAcc}, v{vAcc}, v{vRow}")
        stamp(a, 2)
        if LNPRE:
            a(f"s_waitcnt vmcnt({5 if T01 else 3})")
            ln_compute(a)
            a(stampv(9))
            a(f"v_mov_b32 v{vT+3}, {BIG}")
            dma_stage()
        dma_stage(); dma_stage()
        a(f"buffer_load_dword v231, v{vT+3}, s[{sC}:{sC+3}], 0 offen")
        dma_stage()
        n1 = 0
        if not T01: a(t1); n1 = 2
        stamp(a, 3)
        a(self.cyc(62))
        a(f"s_waitcnt vmcnt({25+n1}) lgkmcnt(0)", "s_barrier")
        a(f"s_cmp_ge_u32 s{sW}, 2", f"s_cbranch_scc1 {name}_roleV")
        def reads(role, buf, off):
            CFr = (FB if role == "K" else FA) + 32 * buf
            WF = (FA if role == "K" else FB) + 32 * buf
            rc = [f"ds_read_b128 {vr(CFr+4*i,4)}, v{vCa} offset:{off + (i//2)*4096 + (i%2)*1024}" for i in range(8)]
            rw = [f"ds_read_b64_tr_b16 {vr(WF+4*cb+2*t,2)}, v{vWa+(cb&1)} offset:{off + t*1024 + (cb>>1)*256}" for cb in range(8) for t in range(2)]
            return rc, rw
        for role in ("K", "V"):
            if role == "V": a.label(f"{name}_roleV")
            rc, rw = reads(role, 0, 0)
            a(rc, rw, "s_waitcnt lgkmcnt(0)")
            a(".p2align 6")
            a.label(f"{name}_loop{role}")
            if DBG: a(f"s_mov_b32 m0, s{sIT}", stampv("m0"))
            for half in range(2):
                def acc(i, j):
                    n_ = (8 * (j // 2) + 2 * (i // 2) + j % 2) if role == "K" else (8 * (i // 2) + j)
                    return ar(((n_ + 24) % 32) * 8 + 4 * (i % 2), 4)
                mf = [f"{MF} {acc(i,j)}, {vr(FA+32*half+4*i,4)}, {vr(FB+32*half+4*j,4)}, {acc(i,j)}" for i in range(8) for j in range(8)]
                sc = {}; mem = {}; va = {}
                sc[0] = [f"s_waitcnt vmcnt({17 if half == 0 else 18})"]; sc[1] = ["s_barrier"]
                rc, rw = reads(role, 1 - half, 32768 if half == 0 else 0)
                preC, lc, preW, lw, post = dma_lines()
                ds = []
                for i in range(8): ds += [rw[2*i], rw[2*i+1], rc[i]]
                for i, x in enumerate(ds): mem[2 + 2*i] = [x]
                st_ = 2 if half == 0 else 6
                sc[4] = preC
                for j in range(4): mem[5 + st_*j] = [lc[j]]
                sc[4 + 4*st_] = preW
                for j in range(4): mem[5 + st_*(4+j)] = [lw[j]]
                for j, x in enumerate(post): sc[48 + j] = [x]
                if half == 0:
                    mem[21] = [f"buffer_load_dword v231, v{vTQ}, s[{sQ2}:{sQ2+3}], s74 offen{SC}"]
                    sc[22] = ["s_add_u32 s74, s74, s73"]
                    h = self.hook(f"s_bitcmp1_b32 s72, s{sIT}", 8)
                    sc[23] = [h[0]]; sc[24] = h[1]
                    va[52] = [f"v_xor_b32 v{vCa}, 0x10000, v{vCa}"]
                    va[53] = [f"v_xor_b32 v{vWa}, 0x10000, v{vWa}"]
                    va[54] = [f"v_xor_b32 v{vWa+1}, 0x10000, v{vWa+1}"]
                    sc[63] = ["s_waitcnt lgkmcnt(0)"]
                else:
                    h = self.hook(f"s_bitcmp1_b32 s76, s{sIT}", 8)
                    sc[53] = [h[0]]; sc[54] = h[1]
                    sc[57] = [f"s_add_u32 s{sIT}, s{sIT}, 1"]
                    sc[61] = [f"s_cmp_lt_u32 s{sIT}, 8"]
                    sc[62] = ["s_waitcnt lgkmcnt(0)"]
                    sc[63] = [f"s_cbranch_scc1 {name}_loop{role}"]
                a(weave(mf, sc, mem, va))
            if role == "K":
                a(f"s_mov_b32 s64, {KFO}", "s_mov_b32 s76, 0x3e0293ee", f"s_branch {name}_p1epi")
            else:
                a(f"s_mov_b32 s64, {VFO}", "s_mov_b32 s76, 1.0")
        t = Asm()
        yld = ["s_getpc_b64 s[8:9]", "s_setpc_b64 s[10:11]"]
        t.label(f"{name}_co1")
        if not LNPRE: t(xloads, yld)
        t(f"buffer_load_dword v232, v234, s[{sC}:{sC+3}], s29 offen", f"buffer_store_dword v{vZero}, v{vFl}, s[{sWS}:{sWS+3}], 0 offen{SC}")
        if not LNPRE:
            t("s_waitcnt vmcnt(18)")
            ln_compute(t)
            t(yld)
        for i in range(3): t(f"ds_read_b128 {vr(XV+4*i,4)}, v{vTR} offset:{i*4096}")
        t(f"buffer_store_dword v{vAcc}, v{vKo}, s[{sWS}:{sWS+3}], 0 offen{SC}", "s_waitcnt lgkmcnt(0)",
          f"buffer_store_dwordx4 {vr(XV,4)}, v{vO1}, s[{sWS}:{sWS+3}], s66 offen{SC}",
          f"buffer_store_dwordx4 {vr(XV+4,4)}, v{vO1}, s[{sWS}:{sWS+3}], s67 offen{SC}",
          f"buffer_store_dwordx4 {vr(XV+8,4)}, v{vO3}, s[{sWS}:{sWS+3}], s78 offen{SC}")
        t(yld)
        t(f"s_mov_b32 s{sQ2}, s60", f"s_mov_b32 s{sQ2+1}, s61", f"s_mov_b32 s{sQ2+2}, s75", f"s_lshl_b32 s74, s{sI}, 2", f"s_add_u32 s74, s74, s{sW}",
          "s_lshl_b32 s74, s74, 16", f"s_mov_b32 s73, {256*8192}",
          f"v_mov_b32 v{vS}, {BIG}", f"v_mov_b32 v{vT2}, 1", f"v_writelane_b32 v{vS}, s77, 0", f"v_lshlrev_b32 v{vZero}, 2, v{vL}")
        if LNPRE: t(f"s_and_b32 s23, s{sH}, 3", f"s_cbranch_scc0 {name}_arr")
        t(yld)
        t.label(f"{name}_arr")
        t(f"buffer_store_byte v{vT2}, v{vS}, s[{sDb}:{sDb+3}], 0 offen{SC}", yld)
        t(f"buffer_load_dword v{vPoll}, v{vZero}, s[{sDb}:{sDb+3}], 0 offen{SC}", yld)
        t(f"s_mov_b32 s{sWt}, s60", f"s_mov_b32 s{sWt+1}, s61", f"s_mov_b32 s{sWt+2}, s75",
          f"s_lshr_b32 s{sOW}, s{sW}, 1", f"s_lshl_b32 s{sOW}, s{sOW}, 18", f"s_mov_b32 s{sStep}, {64*8192}",
          f"s_mov_b32 s{sC}, s18", f"s_mov_b32 s{sC+1}, s19", f"s_mov_b32 s{sC+2}, {2048*1280}", f"s_mov_b32 s{sOC}, 0", "s_movk_i32 s79, 1024",
          f"s_lshl_b32 s23, s{sI}, 2", f"s_add_u32 s23, s23, s{sW}", f"s_mul_i32 s23, s23, {2*20480}", f"v_add_u32 v{vCo}, s23, v{vL16}",
          f"s_sub_u32 s23, 15, s{sI}", "s_lshl_b32 s23, s23, 2", f"s_add_u32 s23, s23, s{sW}", f"s_mul_i32 s23, s23, {2*20480}", "s_sub_u32 s23, s23, 2048",
          f"v_add_u32 v{vCo+2}, s23, v{vL16}", f"v_add_u32 v{vCo+1}, {20480-1024}, v{vCo}", f"v_add_u32 v{vCo+3}, {20480-1024}, v{vCo+2}",
          )
        if os.environ.get("XT", "0") == "1":
            t(f"s_mov_b32 s{sQ2}, s18", f"s_mov_b32 s{sQ2+1}, s19", f"s_mov_b32 s{sQ2+2}, {2048*1280}", "s_movk_i32 s73, 8192",
              f"s_sub_u32 s23, 15, s{sI}", f"s_bitcmp1_b32 s{sH}, 1", f"s_cselect_b32 s23, s23, s{sI}", "s_lshl_b32 s23, s23, 2", f"s_add_u32 s23, s23, s{sW}",
              "s_lshl_b32 s23, s23, 1", f"s_and_b32 s31, s{sH}, 1", "s_add_u32 s23, s23, s31", "s_mul_i32 s74, s23, 20480", "s_add_u32 s74, s74, 4096",
              f"v_lshlrev_b32 v{vTQ}, 7, v{vL}")
        t("s_waitcnt vmcnt(8)")
        self.poll_check(t, "ln", vPoll, vZero, sDb, [f"v_cmp_ne_u32 vcc, 0x01010101, v{vPoll}"])
        t("s_setpc_b64 s[10:11]")
        self.tail += t.lines
        a.label(f"{name}_p1epi")
        stamp(a, 4)
        a(self.cyc(56))
        self.sWq = sWt; self.sXs = sC; self.sWoff = sOW; self.sXoff = sOC

    def kv_item(self, n, D):
        sc = []
        if n and n % 8 == 0: sc = [f"s_add_u32 s64, s64, {131072-4096}"]
        elif n % 8 == 4: sc = ["s_add_u32 s64, s64, 4096"]
        regs = [((n + 24) % 32) * 8 + r for r in range(8)]
        va = [f"v_accvgpr_read_b32 v{vT+k}, a{r}" for k, r in enumerate(regs)]
        va += [f"v_mul_f32 v{vT+k}, s76, v{vT+k}" for k in range(8)]
        va += [f"v_cvt_pk_bf16_f32 v{D+r}, v{vT+2*r}, v{vT+1+2*r}" for r in range(4)]
        z = []
        st = f"buffer_store_dwordx4 {vr(D,4)}, v{vL16}, s[{sWS}:{sWS+3}], s64 offen offset:{(n%4)*1024}{SC}"
        return sc, va, z, st

    def top8(self):
        name = self.name
        self.a(f"s_cmp_eq_u32 s2, {TOPWG}", f"s_cbranch_scc1 {name}_top8")
        self.a.label(f"{name}_notop")
        a = Asm()
        KEY = 96
        a.label(f"{name}_top8")
        a(f"s_cmp_lg_u32 s{sW}, 0", f"s_cbranch_scc1 {name}_notop")
        a(f"s_mov_b32 s23, {RKEY}", f"s_mov_b32 s31, {RKEY+4096}")
        for q in range(8):
            a(f"buffer_load_dwordx4 {vr(KEY+4*q,4)}, v{vL16}, s[{sWS}:{sWS+3}], s{23 if q < 4 else 31} offen offset:{(q%4)*1024}{SC}")
        vM, vPrev, vSel, vTok, vTmp, vRow, vR = vT + 4, vT + 5, vT + 6, vT + 7, vT + 8, vT + 9, vT + 10
        a(f"v_mov_b32 v{vPrev}, 0", f"v_mov_b32 v{vSel}, 0", f"v_and_b32 v{vTok}, 7, v{vL}", "s_mov_b32 s23, 0", "s_waitcnt vmcnt(0)")
        a.label(f"{name}_top")
        a(f"v_max3_u32 v{vM}, v{KEY}, v{KEY+1}, v{KEY+2}", f"v_max3_u32 v{vTmp}, v{KEY+3}, v{KEY+4}, v{KEY+5}")
        for q in range(6, 30, 4):
            a(f"v_max3_u32 v{vM}, v{vM}, v{KEY+q}, v{KEY+q+1}", f"v_max3_u32 v{vTmp}, v{vTmp}, v{KEY+q+2}, v{KEY+q+3}")
        a(f"v_max3_u32 v{vM}, v{vM}, v{KEY+30}, v{KEY+31}", f"v_max_u32 v{vM}, v{vM}, v{vTmp}")
        for m in ("quad_perm:[1,0,3,2]", "quad_perm:[2,3,0,1]", "row_half_mirror", "row_mirror"):
            a("s_nop 1", f"v_max_u32_dpp v{vM}, v{vM}, v{vM} {m} row_mask:0xf bank_mask:0xf")
        xreduce(a, "v_max_u32", vM, vTmp)
        a(f"v_add_u32 v{vPrev}, v{vPrev}, v{vM}", f"v_cmp_eq_u32 vcc, s23, v{vTok}")
        for q in range(32): a(f"v_sub_u32 v{KEY+q}, v{KEY+q}, v{vM}")
        a(f"v_cndmask_b32 v{vSel}, v{vSel}, v{vPrev}, vcc", "s_add_u32 s23, s23, 1", "s_cmp_lt_u32 s23, 8", f"s_cbranch_scc1 {name}_top")
        a(f"v_and_b32 v{vRow}, 0xffff, v{vSel}", f"v_sub_u32 v{vRow}, 0xffff, v{vRow}", f"v_and_b32 v{vRow}, 2047, v{vRow}")
        a(f"v_ashrrev_i32 v{vM}, 31, v{vSel}", f"v_not_b32 v{vM}, v{vM}", f"v_or_b32 v{vM}, 0x80000000, v{vM}",
          f"v_xor_b32 v{vR}, v{vSel}, v{vM}", f"v_and_b32 v{vR}, 0xffff0000, v{vR}",
          f"v_mul_f32 v{vR}, 0xbfb8aa3b, v{vR}", f"v_exp_f32 v{vR}, v{vR}", "s_nop 0", f"v_add_f32 v{vR}, 1.0, v{vR}",
          f"v_rcp_f32 v{vR}, v{vR}", "s_nop 0")
        bf16r(a, vR)
        a(f"v_lshlrev_b32 v{vM}, 2, v{vL}", f"v_add_u32 v{vM}, {SEL}, v{vM}", f"v_mov_b32 v{vPrev}, {BIG}",
          f"v_cmp_gt_u32 vcc, 16, v{vL}", f"v_add_u32 v{vRow}, 1, v{vRow}", f"v_or_b32 v{vR}, 1, v{vR}", f"v_cndmask_b32 v{vM}, v{vPrev}, v{vM}, vcc",
          f"v_cmp_gt_u32 vcc, 8, v{vL}", "s_nop 1", f"v_cndmask_b32 v{vR}, v{vR}, v{vRow}, vcc",
          f"buffer_store_dword v{vR}, v{vM}, s[{sWS}:{sWS+3}], 0 offen{SC}", f"s_branch {name}_notop")
        self.tail += a.lines

    def phase2(self):
        a = self.a; name = self.name
        sWq, sXs, sWoff, sXoff = self.sWq, self.sXs, self.sWoff, self.sXoff
        XB = 224; vXa = 14; sW4 = 24
        vm = VM()
        vm.issue("X1", 4); vm.issue("W1", 4); vm.issue("X2", 4); vm.issue("W2", 4); vm.issue("T"); vm.issue("X3", 4); vm.issue("W3", 4)
        def wreads(buf, off):
            return [f"ds_read_b64_tr_b16 {vr(Q+32*buf+4*cb+2*t,2)}, v{vWa+(cb&1)} offset:{off + t*1024 + (cb>>1)*256}" for cb in range(8) for t in range(2)]
        def xreads(buf, off):
            return [f"ds_read_b128 {vr(XB+16*buf+4*qb,4)}, v{vXa} offset:{off + qb*1024}" for qb in range(4)]
        a(f"s_lshr_b32 s23, s{sW}, 1", "s_lshl_b32 s23, s23, 13", f"v_subrev_u32 v{vWa}, s23, v{vWa}", f"v_subrev_u32 v{vWa+1}, s23, v{vWa+1}",
          f"s_lshl_b32 s{sW4}, s{sW}, 12", f"v_add_u32 v{vXa}, s{sW4}, v{vL16}")
        a(wreads(0, 0), f"s_waitcnt vmcnt({vm.need('T')})", xreads(0, 0))
        a(f"s_lshl_b32 s23, s{sH}, 19", "s_add_u32 s64, s64, s23", f"s_lshl_b32 s23, s{sI}, 14", "s_add_u32 s64, s64, s23",
          f"s_and_b32 s23, s{sW}, 1", "s_lshl_b32 s23, s23, 13", "s_add_u32 s64, s64, s23")
        a(f"s_lshl_b32 s23, s{sH}, 19", f"s_add_u32 s23, s23, {KFO}", "s_add_u32 s6, s18, s23", "s_addc_u32 s7, s19, 0",
          f"s_add_u32 s8, s6, {VFO-KFO}", "s_addc_u32 s9, s7, 0", f"s_sub_u32 s23, 16, s{sI}", "s_lshl_b32 s23, s23, 15")
        srd(a, sK, "s6", "s7", "s23")
        srd(a, sV, "s8", "s9", "s23")
        a(f"s_lshl_b32 s30, s{sH}, 7", f"s_add_u32 s30, s30, {KVF}", f"s_mov_b32 s{sThr}, 0x47800000",
          f"s_cmp_eq_u32 s{sW}, 0", f"s_cselect_b32 s65, s{sKVa}, {BIG}")
        a(f"s_waitcnt vmcnt({vm.need('X1')}) lgkmcnt(0)")
        stamp(a, 6)
        per = [int(c) for c in os.environ.get("PER", "22111111111122233330")]
        per[0] += 32 - sum(per)
        assert sum(per) == 32 and len(per) == 20 and per[19] == 0
        last8 = min(k for k in range(20) if sum(per[:k+1]) >= 8)
        SFLAG = last8 + 2 if last8 % 2 else last8 + 3
        SPOLL = int(os.environ.get('SPOLL', '16'))
        misc = [f"v_and_b32 v11, 15, v{vL}", f"v_lshrrev_b32 v10, 4, v{vL}", "v_lshlrev_b32 v10, 2, v10", "v_sub_u32 v11, v11, v10"]
        misc += [f"v_cmp_le_i32 s[{sMask+2*r}:{sMask+2*r+1}], {r}, v11" for r in range(4)]
        misc += [f"v_and_b32 v{vPo}, 7, v{vL}", f"v_lshlrev_b32 v{vPo}, 2, v{vPo}", f"v_add_u32 v{vPo}, s30, v{vPo}"]
        flagst = f"buffer_store_dword v{vWa}, off, s[{sWS}:{sWS+3}], s65{SC}"
        pollld = f"buffer_load_dword v{vPoll}, v{vPo}, s[{sWS}:{sWS+3}], 0 offen{SC}"
        it = 0; zpool = []
        for s_ in range(20):
            buf = s_ & 1
            C = lambda d: "0" if s_ == 0 else vr(d, 4)
            mf = [f"{MF} {vr(QACC+(db*4+qb)*4,4)}, {vr(Q+32*buf+4*db,4)}, {vr(XB+16*buf+4*qb,4)}, {C(QACC+(db*4+qb)*4)}" for qb in range(4) for db in range(8)]
            sc = {g: [] for g in range(32)}; mem = {g: [] for g in range(32)}; va = {g: [] for g in range(32)}
            tags = {g: [] for g in range(32)}
            if s_ & 1: sc[0].append("s_barrier")
            vpos = [3, 8, 13, 18, 23, 28]
            if s_ < 19:
                off = [8192, 32768, 32768 + 8192, 0][s_ % 4]
                rd = wreads(1 - buf, off); xr = xreads(1 - buf, 32768 if s_ % 2 == 0 else 0)
                ds = rd[:8] + xr[:2] + rd[8:] + xr[2:]
                dpos = [g for g in range(1, 27) if g not in vpos][:20]
                for p_, x in zip(dpos, ds): mem[p_].append(x)
            if s_ + 4 < 20:
                sc[2].append(f"s_add_u32 m0, s{sW4}, {(s_%4)*32768}")
                for j in range(4):
                    mem[vpos[j]].append(f"buffer_load_dwordx4 v{vCo+j}, s[{sXs}:{sXs+3}], s{sXoff} offen offset:{j*1024}{SC} lds"); tags[vpos[j]].append(f"X{s_+4}")
                sc[19].append(f"s_add_u32 s{sXoff}, s{sXoff}, 1024")
            stage = (s_ + 1) // 2 + 3
            if s_ >= 1 and stage < 10:
                sc[22].append(f"s_add_u32 m0, s{sW4}, {(stage%4)*32768+16384}")
                for jj in range(2):
                    j = jj if s_ & 1 else 2 + jj
                    mem[vpos[4+jj]].append(f"buffer_load_dwordx4 v{vWo+j}, s[{sWq}:{sWq+3}], s{sWoff} offen offset:{j*1024} lds"); tags[vpos[4+jj]].append(f"W{stage}")
                if not s_ & 1: sc[29].append(f"s_add_u32 s{sWoff}, s{sWoff}, {64*8192}")
            if s_ % 4 == 2:
                va[29].append(f"v_xor_b32 v{vWa}, 0x10000, v{vWa}"); va[30].append(f"v_xor_b32 v{vWa+1}, 0x10000, v{vWa+1}")
            if s_ % 2 == 0: va[27].append(f"v_xor_b32 v{vXa}, 0x10000, v{vXa}")
            if s_ == SFLAG:
                mem[0].append(flagst); tags[0].append("flag")
            if s_ == SPOLL:
                mem[3].append(pollld); tags[3].append("poll")
            toks = []
            for k in range(per[s_]):
                D = vT + 8 + 4 * (it % 2)
                isc, iva, z, ist = self.kv_item(it, D)
                toks += [("s", x) for x in isc] + [("v", x) for x in iva] + [("st" if it >= 8 else "st0", ist)]; it += 1
                zpool += z
            if s_ == 13: toks += [("v", x) for x in misc]
            fs = []
            if s_ in (14, 15):
                for q in (range(3) if s_ == 14 else range(3, 5)):
                    toks += [("v", x) for x in [f"v_add_u32 v9, {64*q}, v{vL}", "v_mul_u32_u24 v10, 6554, v9", "v_lshrrev_b32 v10, 16, v10",
                             f"v_mul_u32_u24 v10, {1280-160}, v10", "v_lshl_add_u32 v10, v9, 4, v10", f"v_accvgpr_write_b32 a{248+q}, v10"]]
            if s_ == 16:
                fs = [f"s_mul_i32 s34, s{sW}, 5120", f"s_add_u32 s34, s34, {SPARE}"] + self.co_setup()[:-3]
            if s_ == 17:
                fs = [f"s_and_b32 s23, s{sW}, 1", "s_lshl_b32 s23, s23, 12", f"s_cmp_lt_u32 s{sW}, 2\ns_cselect_b32 s{sKm}, {131072-24576}, 0",
                         f"s_add_u32 s{sKm}, s{sKm}, s23", f"s_lshl_b32 s{sKo}, s{sW}, 12", f"s_mov_b32 s{sVo}, s{sKo}", f"s_add_u32 s{sVm}, s{sVo}, {32768+16384}",
                         "s_load_dwordx4 s[4:7], s[0:1], 64", "s_load_dwordx2 s[60:61], s[0:1], 80",
                         f"s_add_u32 s23, s{sW}, 1", "s_lshr_b32 s23, s23, 1", f"s_lshl_b32 s{sCnt}, s{sI}, 1", f"s_add_u32 s{sCnt}, s{sCnt}, s23",
                         f"s_lshl_b32 s23, s{sI}, 2", f"s_sub_u32 s{sNSS}, 28, s23", f"s_and_b32 s23, s{sW}, 1", f"s_add_u32 s{sNSS}, s{sNSS}, s23"]
                toks += [("v", x) for x in [f"v_lshrrev_b32 v6, 2, v{vL}", "v_mul_u32_u24 v6, 160, v6", f"v_and_b32 v9, 3, v{vL}",
                         "v_lshl_add_u32 v6, v9, 3, v6", "v_add_u32 v6, s34, v6", f"v_mov_b32 v{vKV}, v{vL16}", f"v_mov_b32 v{vNI}, 0xff800000",
                         f"v_add_u32 v9, {3*32768+8192}, v{vL16}"]]
            if s_ == 18:
                cs = self.co_setup()[-3:]
                fs = [f"s_cmp_ge_u32 s{sW}, 2\ns_cselect_b32 s4, s6, s4\ns_cselect_b32 s5, s7, s5", f"s_mov_b32 s62, {1728*1280}", "s_mov_b32 s63, 0x20000",
                      "s_mov_b64 s[56:57], s[52:53]", "s_mov_b32 s58, s54", "s_mov_b64 s[52:53], s[4:5]", f"s_mov_b32 s54, {640*3456}", cs[0], cs[1] + "\n" + cs[2]]
            for q, x in enumerate(fs): sc[1 + q].append(x)
            if s_ == 19:
                tmp = Asm()
                self.poll_check(tmp, "kv", vPoll, vPo, sWS, [f"v_cmp_eq_u32 vcc, 0, v{vPoll}"])
                va[0].append(tmp.lines[0]); sc[1] += tmp.lines[1:]
                for p_ in range(3):
                    g0 = 2 + 10 * p_
                    sc[g0].append(f"s_mov_b32 m0, s{sKm}")
                    for j in range(4): mem[g0+1+2*j].append(f"buffer_load_dwordx4 v{vL16}, s[{sK}:{sK+3}], s{sKo} offen offset:{j*1024}{SC} lds")
                    sc[g0+2].append(f"s_add_u32 s{sKm}, s{sKm}, 32768"); sc[g0+3].append(f"s_and_b32 s{sKm}, s{sKm}, 0x1ffff")
                    sc[g0+8].append(f"s_add_u32 s{sKo}, s{sKo}, 16384")
                def cvq(X, qb):
                    return [f"v_cvt_pk_bf16_f32 v{Q+32*X+8*ks+4*qb+2*hh+e}, v{QACC+((2*ks+hh)*4+2*X+qb)*4+2*e}, v{QACC+((2*ks+hh)*4+2*X+qb)*4+2*e+1}"
                            for ks in range(4) for hh in range(2) for e in range(2)]
                for q in range(4): va[2 + 2 * q].append(f"v_mov_b32 v{LS+q}, 0")
                for q, x in enumerate(cvq(0, 0)): va[10 + q * 10 // 16].append(x)
                for q, x in enumerate(cvq(0, 1)): va[20 + q * 11 // 16].append(x)
            cap = [max(0, 2 - len(mem[g]) - len(va[g])) for g in range(31)]
            nv = sum(1 for t_ in toks if t_[0] != "s")
            nz = len(zpool) if s_ == 19 else min(len(zpool), max(0, sum(cap) - nv - per[s_] - 1))
            toks += [("v", x) for x in zpool[:nz]]; zpool = zpool[nz:]
            nv += nz
            extra = max(0, nv - sum(cap))
            while True:
                cp = list(cap); plc = []; nsc = {g: len(sc[g]) for g in range(32)}
                for q in range(extra): cp[(q * 30 // extra) % 30] += 1
                g = 0; smin = 0; ok = True
                for kind, x in toks:
                    if kind == "s":
                        gg = max(g, smin)
                        while gg < 30 and nsc[gg] and gg < max(g, smin) + 3: gg += 1
                        gg = min(gg, 30); nsc[gg] += 1
                        plc.append((sc, gg, x, None)); smin = gg + 1
                        continue
                    if kind != "v": g = max(g + 1, smin - 1)
                    while g < 31 and cp[g] == 0: g += 1
                    if g >= 31: ok = False; break
                    cp[g] -= 1
                    if kind == "v": plc.append((va, g, x, None))
                    else: plc.append((mem, g, x, kind)); smin = g + 1
                if ok: break
                extra += 1
            for (d_, g, x, kind) in plc:
                d_[g].append(x)
                if kind: tags[g].append(kind)
            for g in range(31):
                for t_ in tags[g]: vm.issue(t_)
            if s_ < 19:
                need = []
                if s_ + 2 < 20: need.append(f"X{s_+2}")
                if (s_ + 1) & 1:
                    st1 = (s_ + 2) // 2
                    if st1 < 10: need.append(f"W{st1}")
                if s_ + 1 == SFLAG: need.append("st0")
                if s_ == 18: need.append("poll")
                sc[31].append(f"s_waitcnt vmcnt({vm.need(*need)}) lgkmcnt(0)" if need else "s_waitcnt lgkmcnt(0)")
            for t_ in tags[31]: vm.issue(t_)
            if os.environ.get("QST"): a(stampv(30 + s_))
            a(weave(mf, sc, mem, va))
        assert it == 32 and not zpool
        stamp(a, 5); stamp(a, 7)
        a(self.cyc(57))
        cv = cvq(1, 0) + cvq(1, 1)
        for p_ in range(2):
            a(f"s_mov_b32 m0, s{sVm}", "s_nop 0")
            for j in range(4):
                a(f"v_mfma_f32_32x32x16_bf16 {ar(O+16*(4*p_+j),16)}, {vr(LS,4)}, {vr(LS,4)}, 0",
                  f"buffer_load_dwordx4 v{vL16}, s[{sV}:{sV+3}], s{sVo} offen offset:{j*1024}{SC} lds", cv[:4]); cv = cv[4:]
            a(f"s_add_u32 s{sVo}, s{sVo}, 16384", f"s_add_u32 s{sVm}, s{sVm}, 32768", f"s_and_b32 s{sVm}, s{sVm}, 0x1ffff")
        assert not cv
        a("s_waitcnt vmcnt(12)", "s_barrier")
        a([f"ds_read_b128 {ar(KF+4*i,4)}, v9 offset:{i*1024}" for i in range(8)])
        a(f"buffer_store_dword v{vNI}, off, s[{sWS}:{sWS+3}], s65 offset:32{SC}", f"v_add_u32 v13, 32, v{vPo}", "v_mov_b32 v14, 0")
        self.top8()
        a("s_waitcnt lgkmcnt(4)")

    def wf_addr(self, d):
        return [f"s_and_b32 s{d}, s2, 1", f"s_lshl_b32 s{d}, s{d}, 2", f"s_add_u32 s{d}, s{d}, s{sW}", f"s_lshl_b32 s{d}, s{d}, 7",
                "s_lshr_b32 s31, s2, 1", f"s_add_u32 s{d}, s{d}, s31", f"s_lshl_b32 s{d}, s{d}, 2", f"s_add_u32 s{d}, s{d}, {WF}"]
    def yf_addr(self, d):
        return [f"s_sub_u32 s{d}, s2, {FFN0}", f"s_lshl_b32 s31, s{sW}, 6", f"s_add_u32 s{d}, s{d}, s31", f"s_lshl_b32 s{d}, s{d}, 2", f"s_add_u32 s{d}, s{d}, {YF}"]
    def flag_store(self, addr_lines, wait):
        return addr_lines + [wait, f"buffer_store_dword v{vNI}, off, s[{sWS}:{sWS+3}], s23{SC}"]

    def co_setup(self):
        name = self.name
        return (["s_mov_b32 s101, 24"] if DBG else []) + [f"s_and_b32 s32, s{sH}, 3", "s_min_u32 s32, s32, 2", "s_add_u32 s32, s32, 5", "s_lshl_b32 s32, s32, 14",
          "s_mov_b32 s9, -1", "s_sub_u32 s23, s2, 64", "s_cmp_lt_u32 s23, 96\ns_cselect_b32 s9, 0, s9", "s_cmp_ge_u32 s2, 224\ns_cselect_b32 s9, 0, s9",
          "s_and_b32 s32, s32, s9", f"s_sub_u32 s23, s2, {FFN0}", f"s_cmp_lt_u32 s23, {FFN1-FFN0}\ns_cselect_b32 s32, {6*16384}, s32",
          "s_mov_b32 s67, s2", "s_mov_b32 s8, 0", f"s_mov_b32 s{k2.sRing}, 0", "s_mov_b32 s11, 0", "s_mov_b32 s12, 0",
          f"s_lshl_b32 s15, s{sI}, 1", "s_add_u32 s23, s15, 6", f"s_sub_u32 s15, {32-self.U}, s15", "s_max_u32 s15, s15, s23", "s_lshl_b32 s15, s15, 14",
          f"s_getpc_b64 s[36:37]\n{name}_copc:", f"s_add_u32 s36, s36, {name}_co-{name}_copc-4", "s_addc_u32 s37, s37, 0"]

    def cyc(self, lane):
        if not (DBG and os.environ.get("CYC")): return []
        return ["s_memtime s[98:99]", "s_waitcnt lgkmcnt(0)", f"v_writelane_b32 v7, s98, {lane}"]

    def hook(self, cond=None, R=36):
        k = self.nhook; self.nhook += 1
        n = self.name
        dbg = ["s_memrealtime s[98:99]", "s_waitcnt lgkmcnt(0)", "s_mov_b32 s100, s98"] if (DBG and os.environ.get("REC")) else []
        self.tail += [f"{n}_hk{k}:"] + dbg + [f"s_getpc_b64 s[{R+2}:{R+3}]", f"{n}_hp{k}:", f"s_add_u32 s{R}, s{R}, 4", f"s_addc_u32 s{R+1}, s{R+1}, 0",
                      f"s_sub_u32 s{R+2}, s{R+2}, {n}_hp{k}-{n}_hb{k}", f"s_subb_u32 s{R+3}, s{R+3}, 0", f"s_setpc_b64 s[{R}:{R+1}]"]
        return [cond or f"s_cmp_ge_u32 s{sKo}, s32", [f"s_cbranch_scc1 {n}_hk{k}", f"{n}_hb{k}:"]]

    def coroutine(self):
        name = self.name
        a = Asm()
        cnt = [0]
        def rec():
            if DBG and os.environ.get("REC"): a("s_memrealtime s[98:99]", "s_waitcnt lgkmcnt(0)", "s_sub_u32 s98, s98, s100", "s_lshl_b32 s98, s98, 16", "s_and_b32 s100, s100, 0xffff",
                      "s_or_b32 s98, s98, s100", "s_mov_b32 m0, s101", "s_add_u32 s101, s101, 1", "v_writelane_b32 v7, s98, m0")
        def yld(n=1):
            for _ in range(n):
                rec()
                a("s_getpc_b64 s[36:37]", "s_setpc_b64 s[38:39]")
        G = 232; FW = 192; FX = 212; Y = 236
        def wo_reads():
            a("s_waitcnt vmcnt(8)")
            for cb in range(5):
                for tt in range(2): a(f"ds_read_b64_tr_b16 {vr(232+4*cb+2*tt,2)}, v6 offset:{tt*16*160 + cb*32}")
        def wo_stores():
            a("s_add_u32 s31, s30, 4096")
            for cb in range(5):
                a(f"buffer_store_dwordx4 {vr(232+4*cb,4)}, v{vL16}, s[{sWS}:{sWS+3}], s{30 if cb < 4 else 31} offen offset:{(cb%4)*1024}{SC}")
        a.label(f"{name}_co")
        a("s_sub_u32 s14, s2, 64", "s_cmp_lt_u32 s14, 96", f"s_cbranch_scc1 {name}_coT",
          "s_sub_u32 s14, s2, 128", "s_sub_u32 s23, s2, 224", f"s_cmp_lt_u32 s23, {TOPWG-224}", f"s_cbranch_scc1 {name}_coT")
        self.poll_check(a, "kv2", 14, 13, sWS, ["v_cmp_eq_u32 vcc, 0, v14"])
        a(f"s_sub_u32 s14, s2, {FFN0}", f"s_cmp_lt_u32 s14, {FFN1-FFN0}", f"s_cbranch_scc1 {name}_coF",
          f"s_cmp_eq_u32 s2, {TOPWG}", f"s_cbranch_scc1 {name}_coW", f"s_branch {name}_coO")
        a.label(f"{name}_coT")
        a(f"v_min_u32 v8, 16, v{vL}", "v_lshlrev_b32 v8, 7, v8", "s_lshl_b32 s10, s14, 1", f"s_and_b32 s31, s{sW}, 1", "s_add_u32 s10, s10, s31",
          f"s_mul_i32 s10, s10, {17*128}", "s_lshl_b32 s35, s14, 2", f"s_add_u32 s35, s35, s{sW}", f"s_mul_i32 s35, s35, {34*128}")
        for k in range(4):
            if k == 2: self.poll_check(a, "kv3", 14, 13, sWS, ["v_cmp_eq_u32 vcc, 0, v14"])
            a("buffer_load_dword v255, v8, s[52:55], s10 offen", f"s_add_u32 s10, s10, {160*3456}")
            if k >= 2: a(f"buffer_load_dword v255, v8, s[60:63], s35 offen offset:{(k-2)*17*128}")
            if k == 3: a("s_mov_b32 s9, -1", f"s_and_b32 s32, s{sH}, 3", "s_lshr_b32 s32, s32, 1", "s_add_u32 s32, s32, 6", "s_lshl_b32 s32, s32, 14")
            yld()
        a.label(f"{name}_coO")
        a("s_and_b32 s23, s67, 1", "s_lshl_b32 s23, s23, 2", f"s_add_u32 s23, s23, s{sW}", "s_lshr_b32 s31, s67, 1",
          f"s_mul_i32 s33, s23, {-4*self.ROT}", "s_add_u32 s33, s33, s31", "s_and_b32 s33, s33, 31", "s_andn2_b32 s30, s31, 31", "s_add_u32 s33, s33, s30",
          "s_lshl_b32 s30, s23, 7", "s_add_u32 s30, s30, s33", f"s_mul_i32 s33, s31, {32*1280}", "s_mul_i32 s23, s23, 160", "s_add_u32 s33, s33, s23")
        for q in range(5):
            a(f"s_add_u32 m0, s34, {q*1024}", f"v_accvgpr_read_b32 v{vT+3}, a{248+q}", f"buffer_load_dwordx4 v{vT+3}, s[56:59], s33 offen lds")
        a(f"s_add_u32 s32, s{sKo}, {2*16384}", "s_mov_b32 s9, -1", "s_lshl_b32 s10, s30, 2", "s_mul_i32 s30, s30, 5120", f"s_add_u32 s30, s30, {WOF}")
        yld()
        wo_reads()
        a("s_waitcnt lgkmcnt(0)")
        wo_stores()
        yld()
        a(self.flag_store([f"s_add_u32 s23, s10, {WF}"], "s_waitcnt vmcnt(8)"),
          "s_sub_u32 s23, s67, 96", f"s_cmp_gt_u32 s23, {FFN1-FFN0}", f"s_cbranch_scc1 {name}_coW",
          f"s_add_u32 s67, s23, {FFN0}", f"s_cmp_eq_u32 s67, {FFN1}", f"s_cselect_b32 s67, {TOPWG}, s67", f"s_branch {name}_coO")
        FV = self.FV
        a.label(f"{name}_coF")
        a(f"v_and_b32 v{vT}, 7, v{vL}", f"v_lshlrev_b32 v252, 2, v{vT}", f"v_add_u32 v252, {SEL}, v252",
          f"buffer_load_dword v15, v252, s[{sWS}:{sWS+3}], 0 offen{SC}")
        a("s_lshl_b32 s33, s14, 6", f"s_and_b32 s31, s{sW}, 1", "s_lshl_b32 s31, s31, 5", "s_add_u32 s33, s33, s31",
          "s_mul_i32 s35, s14, 40960", f"s_mul_i32 s31, s{sW}, 320", "s_add_u32 s35, s35, s31",
          "s_mul_i32 s10, s14, 20480", f"s_mul_i32 s31, s{sW}, 640", "s_add_u32 s10, s10, s31", f"s_add_u32 s10, s10, {YP}")
        a(f"v_lshrrev_b32 v{vT+1}, 1, v{vL}", f"v_mul_u32_u24 v{FV[0]}, 3456, v{vT+1}", f"v_and_b32 v{vT+1}, 1, v{vL}", f"v_lshl_add_u32 v{FV[0]}, v{vT+1}, 4, v{FV[0]}")
        for q in range(1, 5): a(f"v_add_u32 v{FV[q]}, {q*32*3456 - (q%4)*1024}, v{FV[0]}")
        a(f"v_lshrrev_b32 v{vT+1}, 4, v{vL}",
          f"v_lshrrev_b32 v{vT+2}, 2, v{vL}", f"v_lshl_add_u32 v{vT+2}, v{vT+1}, 2, v{vT+2}",
          f"v_lshlrev_b32 v{vT+2}, 5, v{vT+2}", f"v_and_b32 v{vT+3}, 3, v{vL}", f"v_lshl_add_u32 v9, v{vT+3}, 3, v{vT+2}", "v_add_u32 v9, s34, v9",
          f"v_lshlrev_b32 v10, 4, v{vT}", f"v_lshl_add_u32 v10, v{vT+1}, 7, v10", f"v_add_u32 v10, {XS}, v10", "s_mov_b32 s8, -1")
        for k in range(4): a(f"v_mov_b32 v{G+k}, 0")
        yld()
        a("s_waitcnt vmcnt(8)")
        self.poll_check(a, "sel", 15, 252, sWS, ["v_cmp_eq_u32 vcc, 0, v15"])
        a(f"v_add_u32 v{vT+2}, -1, v15", f"v_and_b32 v{vT+2}, 2047, v{vT+2}", f"v_lshrrev_b32 v{vT+3}, 4, v{vT+2}", f"v_mul_u32_u24 v{vT+3}, 20480, v{vT+3}",
          f"v_and_b32 v{vT+2}, 15, v{vT+2}", f"v_lshl_add_u32 v{vT+3}, v{vT+2}, 4, v{vT+3}",
          f"v_lshrrev_b32 v{vT+2}, 3, v{vL}", f"v_lshl_add_u32 v{vT+3}, v{vT+2}, 8, v{vT+3}",
          f"s_lshl_b32 s23, s{sW}, 11", f"s_lshl_b32 s31, s{sW}, 10", f"s_add_u32 s31, s31, {XS}", "s_mov_b32 s14, 4")
        for k in range(3):
            a("s_mov_b32 m0, s31", "s_add_u32 s31, s31, 4096", f"buffer_load_dwordx4 v{vT+3}, s[{sWS}:{sWS+3}], s23 offen{SC} lds",
              "s_add_u32 s23, s23, 8192")
        yld()
        a(f"s_branch {name}_coG1")
        gm = [f"{MF} {vr(G,4)}, {ar(FW+4*q,4)}, {ar(FX+4*q,4)}, {vr(G,4)}" for q in range(5)]
        a.label(f"{name}_coG")
        yld()
        a(gm)
        a.label(f"{name}_coG1")
        a("s_waitcnt vmcnt(4)")
        for q in range(5):
            for t in range(2): a(f"ds_read_b64_tr_b16 {ar(FW+4*q+2*t,2)}, v9 offset:{q*1024+t*128}")
            a(f"ds_read_b128 {ar(FX+4*q,4)}, v10 offset:{q*512}")
        a("v_add_u32 v10, 2560, v10", f"s_add_u32 s33, s33, {160*3456}", "s_sub_u32 s14, s14, 1", "s_cmp_lg_u32 s14, 0", f"s_cbranch_scc1 {name}_coG")
        for q in range(5): a(f"v_accvgpr_read_b32 v{FV[q]}, a{248+q}")
        for q in range(1, 4): a(f"v_subrev_u32 v{FV[q]}, {q*1024}, v{FV[q]}")
        a("s_mov_b32 s52, s60", "s_mov_b32 s53, s61", "s_mov_b32 s33, s35",
          f"s_lshl_b32 s23, s{sW}, 9", f"v_add_u32 v{vT}, s23, v10",
          f"v_and_b32 v{vT+1}, 7, v{vL}", f"v_mul_u32_u24 v9, 2560, v{vT+1}", f"v_lshrrev_b32 v{vT+1}, 4, v{vL}", f"v_lshl_add_u32 v9, v{vT+1}, 4, v9",
          f"v_and_b32 v{vT+1}, 8, v{vL}", f"v_lshl_add_u32 v9, v{vT+1}, 27, v9", "s_waitcnt lgkmcnt(0)")
        a(gm, "s_nop 7", f"ds_write_b128 v{vT}, {vr(G,4)}")
        yld()
        GU = 236
        def dreads():
            a("s_waitcnt vmcnt(4)")
            for cb in range(5):
                for t in range(2): a(f"ds_read_b64_tr_b16 {ar(FW+4*cb+2*t,2)}, v6 offset:{t*2560+cb*32}")
        def dmm():
            a("s_waitcnt lgkmcnt(0)")
            for cb in range(5): a(f"{MF} {vr(Y+4*cb,4)}, {ar(FW+4*cb,4)}, {vr(G,4)}, 0")
            a("s_nop 3")
            for cb in range(5): a(f"buffer_store_dwordx4 {vr(Y+4*cb,4)}, v9, s[{sWS}:{sWS+3}], s10 offen offset:{cb*64}{SC}")
            a("s_add_u32 s10, s10, 320")
        for k in range(4): a(f"ds_read_b128 {vr(GU+4*k,4)}, v10 offset:{k*512}")
        dreads()
        a("s_add_u32 s33, s33, 160", "s_mov_b32 s8, 0", "s_waitcnt lgkmcnt(10)")
        for k in range(8):
            a(f"v_cvt_pk_bf16_f32 v{GU+k}, v{GU+k}, v{GU+8+k}")
        for k in range(8): a(f"v_lshlrev_b32 v{GU+8+k}, 16, v{GU+k}")
        for k in range(8): a(f"v_mul_f32 v{vT+k}, 0xbfb8aa3b, v{GU+8+k}")
        for k in range(8): a(f"v_exp_f32 v{vT+k}, v{vT+k}")
        for k in range(8): a(f"v_add_f32 v{vT+k}, 1.0, v{vT+k}")
        for k in range(8): a(f"v_rcp_f32 v{vT+k}, v{vT+k}")
        for k in range(8): a(f"v_and_b32 v{GU+k}, 0xffff0000, v{GU+k}")
        for k in range(4): a(f"v_pk_mul_f32 {vr(GU+8+2*k,2)}, {vr(GU+8+2*k,2)}, {vr(vT+2*k,2)}")
        for k in range(4): a(f"v_cvt_pk_bf16_f32 v{vT+k}, v{GU+8+2*k}, v{GU+9+2*k}")
        for k in range(4): a(f"v_lshlrev_b32 v{GU+8+2*k}, 16, v{vT+k}", f"v_and_b32 v{GU+9+2*k}, 0xffff0000, v{vT+k}")
        for k in range(4): a(f"v_pk_mul_f32 {vr(GU+2*k,2)}, {vr(GU+2*k,2)}, {vr(GU+8+2*k,2)}")
        for k in range(4): a(f"v_cvt_pk_bf16_f32 v{G+k}, v{GU+2*k}, v{GU+2*k+1}")
        a("s_nop 0")
        dmm()
        yld()
        dreads()
        dmm()
        yld()
        a(self.flag_store(self.yf_addr(23), "s_waitcnt vmcnt(8)"))
        a.label(f"{name}_coW")
        a("s_mov_b32 s12, 1", "s_mov_b32 s9, -1", "s_cmp_lg_u32 s11, 0", "s_cselect_b32 s32, s15, -1")
        yld()
        a(f"s_lshl_b32 s23, s{sI}, 2", f"s_add_u32 s23, s23, s{sW}", f"s_mul_i32 s13, s23, {32*5120}", f"s_add_u32 s13, s13, {WOF}",
          "s_lshl_b32 s23, s23, 7", f"s_add_u32 s23, s23, {WF}", f"v_and_b32 v9, 31, v{vL}", "v_lshl_add_u32 v9, v9, 2, s23",
          f"v_and_b32 v10, 15, v{vL}", "v_lshlrev_b32 v10, 2, v10", f"v_add_u32 v10, {SEL}, v10",
          f"buffer_load_dword v8, v9, s[{sWS}:{sWS+3}], 0 offen{SC}", f"buffer_load_dword v15, v10, s[{sWS}:{sWS+3}], 0 offen{SC}")
        self.ctx_epi(a, 0, [32, 44, 96, 108])
        a(f"s_mov_b32 s28, s{sK+2}", "s_add_u32 s30, s28, 65536", f"s_lshl_b32 s23, s{sW}, 12", "s_add_u32 s23, s23, s28",
          f"s_add_u32 s31, s13, {self.FL*1024}", "s_sub_u32 s31, s31, s23", "s_add_u32 s4, s18, s31", "s_addc_u32 s5, s19, 0",
          "s_add_u32 s6, s4, 4096", "s_addc_u32 s7, s5, 0")
        a("s_waitcnt vmcnt(8)")
        self.poll_check(a, "wof", 8, 9, sWS, ["v_cmp_eq_u32 vcc, 0, v8"])
        self.poll_check(a, "sel4", 15, 10, sWS, ["v_cmp_eq_u32 vcc, 0, v15"])
        a(f"s_lshl_b32 s31, s{sH}, 6", "s_add_u32 s31, s31, 1", f"v_subrev_u32 v{vT}, s31, v15", f"v_cmp_gt_u32 vcc, 64, v{vT}",
          f"s_cmp_lt_u32 s{sW}, 2", "s_cselect_b32 s23, 0xff, 0", "s_and_b32 s10, vcc_lo, s23",
          "s_sub_u32 s23, s10, 1", "s_and_b32 s23, s23, s10", f"s_cmp_eq_u32 s{sW}, 1", "s_cselect_b32 s10, s23, s10",
          "s_cmp_eq_u32 s10, 0", f"s_cbranch_scc1 {name}_coEnd")
        a(f"v_min_u32 v11, {FFN1-FFN0-1}, v{vL}", f"s_lshr_b32 s23, s{sI}, 1", "s_lshl_b32 s23, s23, 8", f"s_add_u32 s23, s23, {YF}",
          "v_lshl_add_u32 v11, v11, 2, s23", f"buffer_load_dword v14, v11, s[{sWS}:{sWS+3}], 0 offen{SC}")
        YQ = list(range(64, 96, 4)) + list(range(128, 160, 4)) + [176, 180]
        AC = YQ[0]
        a(f"v_mul_u32_u24 v{vT}, 3277, v{vL}", f"v_lshrrev_b32 v{vT}, 16, v{vT}", f"v_mul_u32_u24 v8, 20, v{vT}",
          f"v_sub_u32 v8, v{vL}, v8", "v_lshlrev_b32 v8, 4, v8",
          f"v_mul_u32_u24 v9, {18*20480}, v{vT}", "v_add_u32 v9, v9, v8",
          f"v_cmp_gt_u32 vcc, 3, v{vT}", f"v_mov_b32 v{vT+3}, {BIG}", "s_nop 0", f"v_cndmask_b32 v9, v{vT+3}, v9, vcc")
        a("s_mov_b32 s12, 2", "s_mov_b32 s32, -1", "s_mov_b32 s11, 0")
        yld()
        self.poll_check(a, "yf", 14, 11, sWS, ["v_cmp_eq_u32 vcc, 0, v14"])
        a.label(f"{name}_coY")
        a("s_ff1_i32_b32 s33, s10", "s_bitset0_b32 s10, s33", "s_sub_u32 s23, s10, 1", "s_and_b32 s10, s10, s23",
          "s_mul_i32 s14, s33, 2560", f"s_mul_i32 s23, s{sI}, 320", "s_add_u32 s14, s14, s23", f"s_add_u32 s14, s14, {YP}")
        for q in range(18):
            a(f"buffer_load_dwordx4 {vr(YQ[q],4)}, v9, s[{sWS}:{sWS+3}], s14 offen{SC}", "s_add_u32 s14, s14, 20480")
        a(f"s_lshl_b32 s14, s{sW}, 10", f"s_add_u32 s14, s14, {SCR}", f"v_add_u32 v{vT+3}, s14, v{vL16}", "s_add_u32 s23, s33, 8",
          "v_readlane_b32 s35, v15, s23", "s_waitcnt vmcnt(0)")
        for q in range(1, 18):
            for e in range(0, 4, 2): a(f"v_pk_add_f32 {vr(AC+e,2)}, {vr(AC+e,2)}, {vr(YQ[q]+e,2)}")
        a(f"ds_write_b128 v{vT+3}, {vr(AC,4)}", f"v_add_u32 v{vT+3}, s14, v8", "s_and_b32 s35, s35, 0xffff0000", "s_waitcnt lgkmcnt(0)",
          f"ds_read_b128 {vr(AC,4)}, v{vT+3}", f"ds_read_b128 {vr(AC+4,4)}, v{vT+3} offset:320", f"ds_read_b128 {vr(AC+8,4)}, v{vT+3} offset:640",
          "s_mul_i32 s14, s33, 320", f"s_add_u32 s14, s14, {UPD}", f"v_add_u32 v{vT+3}, s14, v8", "s_waitcnt lgkmcnt(0)")
        for e in range(4):
            a(f"v_add_f32 v{AC+e}, v{AC+e}, v{AC+4+e}", f"v_add_f32 v{AC+e}, v{AC+e}, v{AC+8+e}")
            bf16r(a, AC + e)
            a(f"v_mul_f32 v{AC+e}, s35, v{AC+e}")
            bf16r(a, AC + e)
        a(f"ds_write_b128 v{vT+3}, {vr(AC,4)}", "s_waitcnt lgkmcnt(0)", "s_cmp_lg_u32 s10, 0", f"s_cbranch_scc1 {name}_coY")
        a.label(f"{name}_coEnd")
        a("s_mov_b32 s12, 3", "s_mov_b32 s32, -1")
        rec()
        a("s_setpc_b64 s[38:39]")
        self.tail += a.lines

    def phase3(self):
        a = self.a; name = self.name
        a(self.period(1, ["q", "q"], c0=True))
        a("s_nop 7", f"s_cmp_lg_u32 s{sCnt}, 0", f"s_cbranch_scc1 {name}_nomask0")
        a(mask_ops(0, 0))
        a.label(f"{name}_nomask0")
        for X in range(2):
            for qb in range(2):
                s0 = S + 32 * X + 8 * qb; d = vT + 2 * X + qb
                a(f"v_max3_f32 v{d}, v{s0}, v{s0+1}, v{s0+2}", f"v_max3_f32 v{d}, v{d}, v{s0+3}, v{s0+4}",
                  f"v_max3_f32 v{d}, v{d}, v{s0+5}, v{s0+6}", f"v_max_f32 v{d}, v{d}, v{s0+7}")
        for sw in ("v_permlane16_swap_b32", "v_permlane32_swap_b32"):
            for k in range(4): a(f"v_mov_b32 v{vT+4+k}, v{vT+k}")
            a("s_nop 0")
            for k in range(4): a(f"{sw} v{vT+k}, v{vT+4+k}")
            for k in range(4): a(f"v_max_f32 v{vT+k}, v{vT+k}, v{vT+4+k}")
        for X in range(2):
            for qb in range(2):
                for r in range(4): a(f"v_sub_f32 v{NM+8*X+4*qb+r}, 0, v{vT+2*X+qb}")
        for X in range(2):
            for qb in range(2):
                s0 = S + 32 * X + 8 * qb
                for r in range(8): a(f"v_sub_f32 v{s0+r}, v{s0+r}, v{vT+2*X+qb}")
        a(self.period(0, ["qs", "qs"]))
        a(f"buffer_load_dword v14, v13, s[{sWS}:{sWS+3}], 0 offen{SC}")
        stamp(a, 8)
        a(self.cyc(50))
        F = "qsv"
        a(f"s_cmp_eq_u32 s{sCnt}, 0", f"s_cbranch_scc1 {name}_AV", f"s_sub_u32 s{sCnt}, s{sCnt}, 1",
          f"s_cmp_eq_u32 s{sCnt}, 0", f"s_cbranch_scc1 {name}_Aexit")
        a(".p2align 6")
        a.label(f"{name}_DD")
        a(self.period(1, [F, F], bar=12, hook=self.hook()))
        a.label(f"{name}_DDe")
        a(self.period(0, [F, F], tail_sc=[f"s_sub_u32 s{sCnt}, s{sCnt}, 1", f"s_cmp_gt_u32 s{sCnt}, s8"], hook=self.hook(f"s_cmp_ge_u32 s{sKo}, s9")))
        a(f"s_cbranch_scc1 {name}_DD", "s_cmp_lg_u32 s8, 0", f"s_cbranch_scc1 {name}_DDF")
        ex = [([f"s_add_u32 m0, s34, {(q//4)*4096}"] if q % 4 == 0 else [],
               f"buffer_load_dwordx4 v{self.FV[q]}, s[52:55], s33 offen offset:{(q%4)*1024} lds") for q in range(5)]
        hk = self.hook()
        k_ = self.nhook - 1
        self.tail[-3] = f"s_add_u32 s38, s38, {name}_hb{k_}-{name}_hp{k_}"; self.tail[-2] = "s_addc_u32 s39, s39, 0"
        self.tail += [f"{name}_DDF:"] + self.period(1, [F, F], bar=12, hook=hk, extra=ex, dgaps=[6, 13, 19, 25], egaps=[31, 37, 43, 49, 55]) + [f"s_branch {name}_DDe"]
        self.coroutine()
        a.label(f"{name}_Aexit")
        a(self.cyc(51))
        a(f"s_bitcmp1_b32 s{sW}, 0", f"s_cbranch_scc1 {name}_Aodd")
        a(self.period(1, [F, F], bar=12))
        a(self.period(0, ["smv", F]))
        a.label(f"{name}_AV")
        a(self.period(1, ["v", F], bar=12))
        a(self.period(0, ["", F]))
        a(f"s_branch {name}_SSpre")
        a.label(f"{name}_Aodd")
        a(self.period(1, ["smv", F], bar=12))
        a(self.period(0, ["v", F]))
        a.label(f"{name}_SSpre")
        a(self.cyc(52))
        a("s_mov_b32 s11, 1", "s_cmp_lg_u32 s12, 0", "s_cselect_b32 s32, s15, s32")
        U, KY = self.U, self.KY
        def wx(fs):
            out = []
            for k, f in enumerate(fs):
                pre = [f"s_add_u32 s14, s13, {(f//4)*4096}"] if (k == 0 or f % 4 == 0) else []
                out.append((pre, self.wl(f).replace("s13 offen", "s14 offen")))
            return out
        def drain(lv):
            h = self.hook(f"s_cmp_lt_u32 s12, {lv}")
            a(h[1][1], h[0], h[1][0])
        a(f"s_cmp_ge_u32 s{sW}, 2", f"s_cselect_b32 s23, {U}, 0", f"s_cmp_le_u32 s{sNSS}, s23", f"s_cbranch_scc1 {name}_chain")
        a(".p2align 6")
        a.label(f"{name}_SS")
        a(self.period(1, ["", F], bar=12, hook=self.hook()))
        a(self.period(0, ["", F], tail_sc=[f"s_sub_u32 s{sNSS}, s{sNSS}, 1", f"s_cmp_gt_u32 s{sNSS}, {U}"]))
        a(f"s_cbranch_scc1 {name}_SS")
        a.label(f"{name}_chain")
        a(self.cyc(53))
        drain(2)
        a(f"s_cmp_eq_u32 s{sNSS}, {U}", f"s_cbranch_scc0 {name}_disp")
        t = Asm()
        t.label(f"{name}_disp")
        for k in range(U - 1, 0, -1): t(f"s_cmp_eq_u32 s{sNSS}, {k}", f"s_cbranch_scc1 {name}_SSW{k}")
        t(f"s_branch {name}_Bexit")
        self.tail += t.lines
        for k in range(U, 0, -1):
            a.label(f"{name}_SSW{k}")
            f0 = (U - k) * 6
            a(self.period(1, ["", F], bar=(8 if k == 1 else 12), extra=wx(range(f0, f0 + 3)), redir=(k <= 3)))
            a(self.period(0, ["", F], extra=wx(range(f0 + 3, f0 + 6)), redir=(k <= 3)))
        a.label(f"{name}_Bexit")
        a(self.cyc(54))
        f0 = U * 6
        a(f"s_bitcmp1_b32 s{sW}, 0", f"s_cbranch_scc1 {name}_Bodd")
        a(self.period(1, ["", F], bar=8, dma=False, kread=False, extra=wx(range(f0, f0 + 6))))
        a(self.period(0, ["", "smv"], dma=False, kread=False, extra=wx(range(f0 + 6, f0 + 10))))
        a(self.period(1, ["", "v"], bar=10, dma=False, kread=False, extra=wx(range(f0 + 10, f0 + 12)), condbar=f"{name}_nb0"))
        a(f"s_branch {name}_Bdone")
        a.label(f"{name}_Bodd")
        a(self.period(1, ["", "smv"], bar=8, dma=False, kread=False, extra=wx(range(f0, f0 + 7)), condbar=f"{name}_nb1"))
        a(self.period(0, ["", "v"], dma=False, kread=False, extra=wx(range(f0 + 7, f0 + 12))))
        self.wx = wx
        a.label(f"{name}_Bdone")
        a.label(f"{name}_epi")
        stamp(a, 9)
        a(self.cyc(55))
        self.ctx_epi(a, 1, [64, 76, 128, 140])

    def ctx_epi(self, a, X, Ts):
        L = LS + 2 * X
        for sw in ("v_permlane16_swap_b32", "v_permlane32_swap_b32"):
            for k in range(2): a(f"v_mov_b32 v{vT+4+k}, v{L+k}")
            a("s_nop 1")
            for k in range(2): a(f"{sw} v{L+k}, v{vT+4+k}")
            for k in range(2): a(f"v_add_f32 v{L+k}, v{L+k}, v{vT+4+k}")
        for k in range(2): a(f"v_rcp_f32 v{vT+2*k}, v{L+k}")
        if X == 0: a(f"s_lshl_b32 s23, s{sI}, 2")
        else: a(f"s_sub_u32 s23, 15, s{sI}", "s_lshl_b32 s23, s23, 2")
        for k in range(2): a(f"v_mov_b32 v{vT+2*k+1}, v{vT+2*k}")
        a(f"s_add_u32 s23, s23, s{sW}", "s_lshl_b32 s23, s23, 18", f"s_lshl_b32 s31, s{sH}, 12",
          f"s_add_u32 s31, s31, {CTX}", f"s_add_u32 s{sXo}, s23, s31", f"s_add_u32 s{sXo+1}, s{sXo}, {1<<17}")
        k = 0
        for qb in range(2):
            for t in range(4):
                T = Ts[k % len(Ts)]; k += 1
                f = vT + 2 * qb
                for hh in range(2):
                    for r in range(4): a(f"v_accvgpr_read_b32 v{T+4+4*hh+r}, a{O+64*X+8*(2*t+hh)+4*qb+r}")
                for r in range(4): a(f"v_pk_mul_f32 {vr(T+4+2*r,2)}, {vr(T+4+2*r,2)}, {vr(f,2)}")
                for r in range(4): a(f"v_cvt_pk_bf16_f32 v{T+r}, v{T+4+2*r}, v{T+5+2*r}")
                a(f"buffer_store_dwordx4 {vr(T,4)}, v{vL16}, s[{sWS}:{sWS+3}], s{sXo+qb} offen offset:{t*1024}{SC}")

    WQ = ([ar(b, 4) for b in range(0, 64, 4)] + [ar(b, 4) for b in range(192, 256, 4)] + [vr(b, 4) for b in range(32, 64, 4)]
          + [vr(b, 4) for b in range(96, 128, 4)] + [vr(b, 4) for b in range(160, 176, 4)] + [vr(192, 4), vr(196, 4), vr(208, 4), vr(212, 4)]
          + [vr(b, 4) for b in range(232, 248, 4)]
          + [vr(b, 4) for b in range(64, 96, 4)] + [vr(b, 4) for b in range(128, 160, 4)] + [vr(b, 4) for b in range(176, 192, 4)])
    def wl(self, f):
        return f"buffer_load_dwordx4 {self.WQ[f % 80]}, v{vL16}, s[{sWS}:{sWS+3}], s13 offen offset:{(f%4)*1024}{SC}"
    WINC = "s_add_u32 s13, s13, 4096"

    def phase4(self):
        a = self.a; name = self.name
        RS = 336; PART = 64 * RS
        assert len(self.WQ) == 80
        ACq = [ar(b, 4) for b in range(64, 144, 4)]
        CRq = [ar(b, 4) for b in range(144, 192, 4)] + [vr(b, 4) for b in range(216, 232, 4)]
        YQ = list(range(64, 96, 4)) + list(range(128, 160, 4)) + [176, 180]
        XQ = [32, 36, 40, 44, 48, 52]
        XF = [96, 104, 112]; OF = [120, 160, 168]
        vXo, vLa, vXn, vUp = 248, 251, 200, 203
        sX, sO = 44, 48
        sCo = 64
        sMT, sNG = sH, sI
        wl = self.wl; winc = self.WINC
        def cl(ks, qb): return f"buffer_load_dwordx4 {CRq[4*(ks%4)+qb]}, v{vL16}, s[{sWS}:{sWS+3}], s{sCo+qb} offen offset:{(ks%4)*1024}{SC}"
        cnext = ["s_add_u32 s62, s62, 4096", "s_and_b32 s62, s62, 0x7fff", f"s_add_u32 s{sCo}, s63, s62"] + [f"s_add_u32 s{sCo+qb}, s{sCo}, {qb<<17}" for qb in range(1, 4)]
        NL = 36; F0 = 160 - NL; NPRE = int(os.environ.get("NPRE", "8"))
        a("s_load_dwordx2 s[8:9], s[0:1], 0", "s_load_dwordx2 s[16:17], s[0:1], 88")
        a(f"v_mov_b32 v{vT+14}, {BIG}", f"v_writelane_b32 v{vT+14}, s{sCFA}, 0", f"v_writelane_b32 v{vT+14}, s{sCFB}, 1")
        lw = []
        for (pre, l) in self.wx(range(60, 80)): lw.append(pre + [l])
        pubst = f"buffer_store_dword v{vNI}, v{vT+14}, s[{sWS}:{sWS+3}], 0 offen{SC}"
        a("s_cmp_lt_u32 s12, 3", f"s_cbranch_scc1 {name}_puby")
        a(lw[:NPRE], f"s_waitcnt vmcnt({NPRE})", pubst)
        a.label(f"{name}_pubb")
        t = Asm()
        t.label(f"{name}_puby")
        h = self.hook("s_cmp_lt_u32 s12, 3"); k_ = self.nhook - 1
        self.tail[-3] = f"s_add_u32 s38, s38, {name}_hb{k_}-{name}_hp{k_}"; self.tail[-2] = "s_addc_u32 s39, s39, 0"
        t("s_waitcnt vmcnt(0)", pubst, h[0], h[1], lw[:NPRE], f"s_branch {name}_pubb")
        self.tail += t.lines
        stamp(a, 10)
        a(self.cyc(60))
        a(f"s_cmp_lt_u32 s{sNSS}, {self.U}", f"s_cbranch_scc1 {name}_left")
        a.label(f"{name}_leftb")
        t = Asm()
        t.label(f"{name}_left")
        for k in range(self.U, 0, -1):
            if k < self.U: t(f"s_cmp_ge_u32 s{sNSS}, {k}", f"s_cbranch_scc1 {name}_leftb")
            for (pre, l) in self.wx(range((self.U - k) * 6, (self.U - k) * 6 + 6)): t(pre, l)
        t(f"s_branch {name}_leftb")
        self.tail += t.lines
        su = [f"s_lshl_b32 s63, s{sMT}, 19", f"s_lshl_b32 s23, s{sW}, 15", "s_add_u32 s63, s63, s23", f"s_add_u32 s63, s63, {CTX}",
              f"s_mul_i32 s62, s{sNG}, {4096*self.ROT}", "s_and_b32 s62, s62, 0x7fff"] + cnext[2:]
        su += [f"v_bfe_u32 v12, v{vL}, 3, 1", "v_lshlrev_b32 v12, 7, v12", f"v_and_b32 v13, 7, v{vL}", "v_lshl_add_u32 v12, v13, 2, v12",
               f"s_lshl_b32 s23, s{sMT}, 8", f"s_lshl_b32 s31, s{sW}, 5", "s_add_u32 s23, s23, s31", f"s_add_u32 s23, s23, {CF}", "v_add_u32 v12, s23, v12",
]
        su += [f"v_mov_b32 v{vT+4+i}, 0" for i in range(4)] + [f"v_add_u32 v{vT}, {UPD+2560}, v{vL16}", f"ds_write_b128 v{vT}, {vr(vT+4,4)}",
               ]
        pollc = f"buffer_load_dword v13, v12, s[{sWS}:{sWS+3}], 0 offen{SC}"
        rest = lw[NPRE:]
        for q, l in enumerate(rest):
            if q == len(rest) - 6: a(su)
            a(l)
        FL = self.FL
        a("s_lshl_b32 s34, s28, 1", f"s_and_b32 s23, s{sW}, 1", "s_lshl_b32 s23, s23, 12", f"s_cmp_lt_u32 s{sW}, 2", f"s_cselect_b32 s33, {131072-24576}, 0",
          "s_add_u32 s33, s33, s23", "s_add_u32 s33, s33, s34", "s_and_b32 s33, s33, 0x1ffff",
          f"s_lshl_b32 s23, s{sW}, 12", f"s_add_u32 s34, s34, {32768+16384}", "s_add_u32 s34, s34, s23", "s_and_b32 s34, s34, 0x1ffff",
          "s_add_u32 s23, s23, s28", f"s_cmp_lt_u32 s{sNSS}, 3",
          f"s_cselect_b32 s{sKo}, s23, s{sKo}", f"s_cselect_b32 s{sVo}, s23, s{sVo}", f"s_cselect_b32 s{sKm}, s33, s{sKm}", f"s_cselect_b32 s{sVm}, s34, s{sVm}",
          f"s_mov_b64 s[{sK}:{sK+1}], s[4:5]", f"s_mov_b64 s[{sV}:{sV+1}], s[6:7]", f"s_mov_b32 s{sK+2}, s30", f"s_mov_b32 s{sV+2}, s30")
        def piece(srdn, so, sm):
            return [f"s_mov_b32 m0, s{sm}", f"s_add_u32 s{sm}, s{sm}, 32768", f"s_and_b32 s{sm}, s{sm}, 0x1ffff"] + \
                   [f"buffer_load_dwordx4 v{vL16}, s[{srdn}:{srdn+3}], s{so} offen offset:{q*1024}{SC} lds" for q in range(4)] + [f"s_add_u32 s{so}, s{so}, 16384"]
        for tag, (srdn, so, sm), lim in (("pk", (sK, sKo, sKm), 3), ("pv", (sV, sVo, sVm), 2)):
            a(f"s_add_u32 s23, s28, {lim*16384}")
            a.label(f"{name}_{tag}")
            a(f"s_cmp_ge_u32 s{so}, s23", f"s_cbranch_scc1 {name}_{tag}d", piece(srdn, so, sm), f"s_branch {name}_{tag}")
            a.label(f"{name}_{tag}d")
        a(f"s_lshl_b32 s35, s{sW}, 12", f"s_add_u32 s35, s35, {SPARE}", "s_mov_b32 m0, s35", f"s_add_u32 s14, s13, {(FL+56)*1024}")
        a([f"buffer_load_dwordx4 v{vL16}, s[{sWS}:{sWS+3}], s14 offen offset:{q*1024}{SC} lds" for q in range(4)])
        a("s_waitcnt lgkmcnt(0)", "s_barrier")
        a(piece(sK, sKo, sKm), pollc, piece(sV, sVo, sVm), piece(sV, sVo, sVm))
        srd(a, sX, "s8", "s9", 2048 * 1280); srd(a, sO, "s16", "s17", 2048 * 1280)
        a(f"s_lshl_b32 s25, s{sMT}, 6", f"s_mul_i32 s26, s{sNG}, 160", f"s_mul_i32 s27, s{sNG}, 2560", "s_waitcnt vmcnt(8)")
        a(stampv(20), self.cyc(61))
        self.poll_check(a, "ctx", 13, 12, sWS, ["v_cmp_eq_u32 vcc, 0, v13"])
        a(stampv(21))
        for ks in range(4): a([cl(ks, qb) for qb in range(4)])
        a(cnext, "s_waitcnt vmcnt(14)")
        a(stampv(22), self.cyc(58))
        tm = []
        for k in range(3):
            tm += [f"v_add_u32 v{vT}, {256*k}, v0", f"v_mul_u32_u24 v{vT+1}, 6554, v{vT}", f"v_lshrrev_b32 v{vT+1}, 16, v{vT+1}",
              f"v_mul_u32_u24 v{vT+2}, 10, v{vT+1}", f"v_sub_u32 v{vT+2}, v{vT}, v{vT+2}",
              f"v_mul_u32_u24 v{vLa+k}, {RS}, v{vT+1}", f"v_lshl_add_u32 v{vLa+k}, v{vT+2}, 5, v{vLa+k}",
              f"v_lshlrev_b32 v{vUp+k}, 5, v{vT+2}",
              f"v_add_u32 v{vT+1}, s25, v{vT+1}", f"v_add_u32 v{vT+8+k}, 1, v{vT+1}",
              f"v_mul_u32_u24 v{vXo+k}, 1280, v{vT+1}", f"v_lshl_add_u32 v{vXo+k}, v{vT+2}, 4, v{vXo+k}", f"v_add_u32 v{vXo+k}, s26, v{vXo+k}",
              f"v_lshrrev_b32 v{vT+3}, 4, v{vT+1}", f"v_mul_u32_u24 v{vT+3}, 20480, v{vT+3}", f"v_and_b32 v{vT+1}, 15, v{vT+1}",
              f"v_lshl_add_u32 v{vT+3}, v{vT+1}, 4, v{vT+3}", f"v_lshl_add_u32 v{vXn+k}, v{vT+2}, 8, v{vT+3}",
              f"v_mov_b32 v{vT+11+k}, 8"]
        tm += [f"v_cmp_gt_u32 vcc, 128, v0", f"v_mov_b32 v{vT}, {BIG}", f"v_mov_b32 v{vT+1}, 0",
          f"v_cndmask_b32 v{vXo+2}, v{vT}, v{vXo+2}, vcc", f"v_cndmask_b32 v{vXn+2}, v{vT}, v{vXn+2}, vcc", f"v_cndmask_b32 v{vLa+2}, v{vT+1}, v{vLa+2}, vcc"]
        tm += [f"v_readlane_b32 s{68+k}, v15, {k}" for k in range(8)]
        for k in range(8):
            tm += [f"v_cmp_eq_u32 s[{52+2*t_}:{53+2*t_}], s{68+k}, v{vT+8+t_}" for t_ in range(3)]
            tm += [f"v_cndmask_b32 v{vT+11+t_}, v{vT+11+t_}, {k}, s[{52+2*t_}:{53+2*t_}]" for t_ in range(3)]
        for t_ in range(3): tm += [f"v_mul_u32_u24 v{vT+11+t_}, 320, v{vT+11+t_}", f"v_add_u32 v{vUp+t_}, v{vUp+t_}, v{vT+11+t_}", f"v_add_u32 v{vUp+t_}, {UPD}, v{vUp+t_}"]
        pw = lambda q: f"ds_write_b128 v{vT}, {ACq[(q%5)*4+q//5]} offset:{(q//5)*16*RS+(q%5)*64}"
        vm = VM()
        for ks in range(4):
            for qb in range(4): vm.issue(f"C{ks}_{qb}")
        ldsf = {}
        for jj in range(4):
            for q in range(4): ldsf[FL + 16*jj + q] = ("K", q); ldsf[FL + 16*jj + 4 + q] = ("V", q)
        for q in range(4): ldsf[FL + 56 + q] = ("S", q)
        gl = [f for f in range(80, 160) if f not in ldsf]; ll = sorted(ldsf)
        WSP = int(os.environ.get("WSP", "26")); gi = 0; li = 0
        for ks in range(32):
            mf = [f"{MF} {ACq[cb*4+qb]}, {self.WQ[(ks*5+cb) % 80]}, {CRq[4*(ks%4)+qb]}, {ACq[cb*4+qb] if ks else 0}" for qb in range(4) for cb in range(5)]
            sc = {g: [] for g in range(20)}; mem = {g: [] for g in range(20)}; va = {g: [] for g in range(20)}
            quota = min(len(gl), (ks * len(gl) + WSP - 1) // WSP)
            tg = {g: [] for g in range(20)}
            nw = 0
            while gi + nw < quota and nw < 3 and gl[gi + nw] - 80 < ks * 5: nw += 1
            for g in sorted((2, 12, 7)[:nw]):
                f_ = gl[gi]; gi += 1
                if f_ % 4 == 0: sc[g].append(f"s_add_u32 s14, s13, {f_*1024}")
                mem[g].append(wl(f_).replace("s13 offen", "s14 offen")); tg[g].append(f"W{f_ // 5}")
            if li < len(ll) and ll[li] - 80 + 3 < ks * 5 and ks >= 12:
                kind = ldsf[ll[li]][0]; sreg = {"K": 33, "V": 34, "S": 35}[kind]
                va[10].append(f"v_add_u32 v11, s{sreg}, v{vL16}")
                if kind != "S":
                    sc[13].append(f"s_add_u32 s{sreg}, s{sreg}, 32768"); sc[15].append(f"s_and_b32 s{sreg}, s{sreg}, 0x1ffff")
                for q, g in enumerate((11, 13, 16, 17)):
                    assert ll[li] // 5 > ks + 1
                    mem[g].append(f"ds_read_b128 {self.WQ[ll[li] % 80]}, v11 offset:{q*1024}"); li += 1
            if ks == 23: sc[8].append("s_barrier")
            if 1 <= ks < 20:
                for g in (0, 2, 5, 6, 9, 13, 14):
                    if tm: va[g].append(tm.pop(0))
            if ks + 4 < 32:
                for qb in range(4):
                    mem[5*qb+4].append(cl(ks, qb)); tg[5*qb+4].append(f"C{ks+4}_{qb}")
                if ks % 4 == 0 and ks > 0:
                    for q, x in enumerate(cnext): sc[[0, 1, 3, 5, 6, 10][q]].append(x)
            XK = int(os.environ.get("XK", "26"))
            if XK <= ks < XK + 3:
                k = ks - XK
                mem[1].append(f"buffer_load_dwordx4 {vr(XQ[k],4)}, v{vXo+k}, s[{sX}:{sX+3}], 0 offen"); tg[1].append(f"x{k}")
                mem[11].append(f"buffer_load_dwordx4 {vr(XQ[3+k],4)}, v{vXn+k}, s[{sWS}:{sWS+3}], s27 offen{SC}"); tg[11].append(f"x{k}")
            if ks == 27:
                for k in range(3):
                    for hh in range(2): mem[[0, 3, 5, 6, 8, 10][2*k+hh]].append(f"ds_read_b128 {vr(OF[k]+4*hh,4)}, v{vUp+k} offset:{16*hh}")
                sc[18].append("s_waitcnt lgkmcnt(0)")
                va[14] += [f"v_and_b32 v{vT}, 15, v{vL}", f"v_mul_u32_u24 v{vT}, {RS}, v{vT}"]
                va[15] += [f"v_lshrrev_b32 v{vT+1}, 4, v{vL}", f"v_lshl_add_u32 v{vT}, v{vT+1}, 4, v{vT}"]
                sc[14].append(f"s_mul_i32 s23, s{sW}, {PART}")
                va[16] += [f"v_add_u32 v{vT}, s23, v{vT}"]
                for k in range(3): va[2+4*k].append(f"v_add_u32 v{vT+4+k}, {2*PART}, v{vLa+k}")
            if ks >= 29:
                k = ks - 29
                ops = []
                for e in range(4):
                    x = XQ[k] + e; xn = XQ[3+k] + e; o = OF[k] + 2 * e; t0, t1 = vT + 2, vT + 3
                    ops += [f"v_lshlrev_b32 v{t0}, 16, v{xn}", f"v_and_b32 v{t1}, 0xffff0000, v{xn}",
                            f"v_add_f32 v{o}, v{o}, v{t0}", f"v_add_f32 v{o+1}, v{o+1}, v{t1}",
                            f"v_cvt_pk_bf16_f32 v{t0}, v{o}, v{o+1}",
                            f"v_lshlrev_b32 v{XF[k]+2*e}, 16, v{x}", f"v_and_b32 v{XF[k]+2*e+1}, 0xffff0000, v{x}",
                            f"v_lshlrev_b32 v{o}, 16, v{t0}", f"v_and_b32 v{o+1}, 0xffff0000, v{t0}"]
                for q, x in enumerate(ops): va[q // 2].append(x)
            if ks == 31:
                for q in range(11): mem[q+9].append(pw(q))
            for g in range(20):
                if g == 9: sc[g].append(f"s_waitcnt vmcnt({vm.need(f'C{ks}_3')})")
                if g == 19 and ks < 31:
                    wneed = [f for f in gl if f // 5 == ks + 1]
                    assert all(gl.index(f) < gi for f in wneed)
                    need = [f"C{ks+1}_1"] + ([f"W{ks+1}"] if wneed else []) + ([f"x{ks-28}"] if ks >= 28 else [])
                    sc[g].append(f"s_waitcnt vmcnt({vm.need(*need)})")
                if g == 8 and 13 <= ks <= 22: sc[g].append("s_waitcnt lgkmcnt(0)")
                for t_ in tg[g]: vm.issue(t_)
            if os.environ.get("OTR"): a("s_memtime s[98:99]", "s_waitcnt lgkmcnt(0)", f"v_writelane_b32 v7, s98, {24+ks}")
            lines = weave(mf, sc, mem, va)
            OX = os.environ.get("OX", "")
            if "c" in OX: lines = [l for l in lines if not (l.startswith("buffer_load") and " s6" in l)]
            if "w" in OX: lines = [l for l in lines if not (l.startswith("buffer_load") and " s13 " in l)]
            if "s" in OX: lines = [l.replace(" sc1", "") for l in lines]
            a(lines)
        assert gi == len(gl) and li == len(ll) and not tm
        a(stampv(23), self.cyc(59))
        for q in range(11, 20): a(pw(q))
        a("s_waitcnt lgkmcnt(0)", "s_barrier")
        PVb = [32, 64, 128]
        for k in range(3):
            for p in range(4):
                for hh in range(2):
                    a(f"ds_read_b128 {vr(PVb[k]+8*p+4*hh,4)}, v{vLa+k if p < 2 else vT+4+k} offset:{(p%2)*PART+16*hh}")
        for k in range(3):
            a(f"s_waitcnt lgkmcnt({[15, 8, 0][k]})")
            b = PVb[k]
            for e in range(0, 8, 2):
                a(f"v_pk_add_f32 {vr(b+e,2)}, {vr(b+e,2)}, {vr(b+8+e,2)}", f"v_pk_add_f32 {vr(b+16+e,2)}, {vr(b+16+e,2)}, {vr(b+24+e,2)}")
            for e in range(0, 8, 2): a(f"v_pk_add_f32 {vr(b+e,2)}, {vr(b+e,2)}, {vr(b+16+e,2)}")
            for src in (XF[k], OF[k]):
                for e in range(4): a(f"v_cvt_pk_bf16_f32 v{b+8+e}, v{b+2*e}, v{b+2*e+1}")
                for e in range(4): a(f"v_lshlrev_b32 v{b+2*e}, 16, v{b+8+e}", f"v_and_b32 v{b+2*e+1}, 0xffff0000, v{b+8+e}")
                for e in range(4): a(f"v_pk_add_f32 {vr(b+2*e,2)}, {vr(b+2*e,2)}, {vr(src+2*e,2)}")
            for e in range(4): a(f"v_cvt_pk_bf16_f32 v{b+12+e}, v{b+2*e}, v{b+2*e+1}")
            a(f"buffer_store_dwordx4 {vr(b+12,4)}, v{vXo+k}, s[{sO}:{sO+3}], 0 offen")

    def gen(self, with_p4=True):
        a = self.a; name = self.name
        self.tail = []; self.p4 = with_p4; self.nhook = 0
        self.phase1()
        self.phase2()
        self.phase3()
        if with_p4: self.phase4()
        stamp_flush(a, 0, sW, sWS)
        a.label(f"{name}_end")
        a("s_endpgm")
        a(self.tail)
        for (k, ss, par) in self.stubs:
            a.label(f"{name}_stub{k}")
            for X in ss: a(f"s_call_b64 s[{sRet}:{sRet+1}], {name}_rare{X}{par}")
            a(f"s_branch {name}_back{k}")
        a.label(f"{name}_codeend")
        for X in range(2):
            for par in range(2): self.rare(X, par)
            self.resc(X)
        return a
```

```python
import os
from asmlib import *
from gen_k1 import XNF, RKEY, SEL, YP, WOF, KFO, VFO, CTX, WS_BYTES, MF, srd, bf16r, stamp, stampc, stamp_init, stamp_flush

LDS = 131072
vL, vL16, vKV, vNI, vX = 1, 2, 3, 4, 5
vWo = 8
vWa = 12
vT = 16
Q = 32
S = 96
P = 160
NM = 192
E = 208
TS = 224
LS = 228
QACC = 96
O = 0
KF = 128
VF = 160
XR = 192
sW, sH, sI = 20, 21, 22
sWq, sXn, sWS, sK, sV = 32, 36, 40, 44, 48
sKm, sVm, sKo, sVo, sCnt, sNSS = 24, 25, 26, 27, 28, 29
sXo = 64
sMask = 68
sRet, sRet2 = 76, 78
sThr = 81
sRing = 66

def xreduce(a, op, v, t):
    a(f"v_mov_b32 v{t}, v{v}", "s_nop 1", f"v_permlane16_swap_b32 v{v}, v{t}", f"{op} v{v}, v{v}, v{t}",
      f"v_mov_b32 v{t}, v{v}", "s_nop 1", f"v_permlane32_swap_b32 v{v}, v{t}", f"{op} v{v}, v{v}, v{t}")

def mask_ops(X, par):
    Sc = S + 32 * X + 16 * par
    o = []
    for r in range(4):
        o.append(f"v_cndmask_b32 v{Sc+r}, v{vNI}, v{Sc+r}, s[{sMask+2*r}:{sMask+2*r+1}]")
    for r in range(4):
        o.append(f"v_mov_b32 v{Sc+4+r}, v{vNI}")
    for r in range(4):
        o.append(f"v_cndmask_b32 v{Sc+12+r}, v{vNI}, v{Sc+12+r}, s[{sMask+2*r}:{sMask+2*r+1}]")
    return o

def sm_ops(X, par):
    Sc = S + 32 * X + 16 * par; Pc = P + 16 * X + 8 * par; e = E + 8 * X
    exps = [f"v_exp_f32 v{e+(i%8)}, v{Sc+i}" for i in range(16)]
    pl = []
    for i in range(16):
        t = TS + 2 * X + i // 8
        aa = e + ((i - 1) % 8); bb = e + (i % 8)
        if i % 8 == 1: pl.append((i, f"v_add_f32 v{t}, v{aa}, v{bb}"))
        elif i % 8 > 1: pl.append((i, f"v_add_f32 v{t}, v{t}, v{bb}"))
        if i % 2 == 1: pl.append((i, f"v_cvt_pk_bf16_f32 v{Pc+i//2}, v{aa}, v{bb}"))
    return exps, pl

class K2:
    SC = ''
    NP = 2
    def __init__(self, name):
        self.name = name
        self.a = Asm()
        self.stubs = []
        self.nstub = 0

    def period(self, par, st, dma=True, bar=None, kread=True, c0=False, tail_sc=None, hook=None, extra=None, dgaps=None, egaps=None, have_pre=None, redir=False, condbar=None):
        odd = par == 1
        qs = [X for X in range(2) if "q" in st[X]]
        vs = [X for X in range(2) if "v" in st[X]]
        ss = [X for X in range(2) if "s" in st[X]]
        mf = []; use = []
        for f in range(8):
            ks, kb = f // 2, f % 2
            for X in qs:
                for qb in range(2):
                    d = S + 32 * X + 16 * (1 - par) + qb * 8 + kb * 4
                    c = vr(d, 4) if ks > 0 else ("0" if c0 else vr(NM + 8 * X + 4 * qb, 4))
                    mf.append(f"{MF} {vr(d,4)}, {ar(KF+4*f,4)}, {vr(Q+32*X+8*ks+4*qb,4)}, {c}"); use.append(("K", f))
        nq = len(mf)
        for db in range(8):
            for X in vs:
                for qb in range(2):
                    d = O + 64 * X + 8 * db + 4 * qb
                    mf.append(f"{MF} {ar(d,4)}, {ar(VF+4*db,4)}, {vr(P+16*X+8*(1-par)+4*qb,4)}, {ar(d,4)}"); use.append(("V", db))
        n = len(mf); nv = n - nq
        hoff = 0 if odd else 8192
        vrd = [f"ds_read_b128 {ar(VF+4*i,4)}, v{vKV} offset:{16384+hoff+i*1024}" for i in range(8)] if vs else []
        krd = [f"ds_read_b128 {ar(KF+4*i,4)}, v{vKV} offset:{hoff+i*1024}" for i in range(8)] if kread else []
        pre = []
        sc = {g: [] for g in range(n)}; mem = {g: [] for g in range(n)}; va = {g: [] for g in range(n)}
        first = 0
        if bar is not None:
            if nq > 0:
                sc[0].append(f"s_waitcnt vmcnt({bar})"); sc[1].append("s_barrier"); first = 2
            else:
                if condbar: pre += [f"s_cmp_ge_u32 s{sW}, 2", f"s_cbranch_scc1 {condbar}", f"s_waitcnt vmcnt({bar})", "s_barrier", f"{condbar}:"]
                else: pre += [f"s_waitcnt vmcnt({bar})", "s_barrier"]
            if os.environ.get("TRACE"):
                pre[0:0] = ["s_memtime s[98:99]", "s_mov_b32 m0, s101", "s_add_u32 s101, s101, 1", "s_waitcnt lgkmcnt(0)", "v_writelane_b32 v7, s98, m0"]
        if hook:
            sc[2].append(hook[0]); sc[3] += hook[1]
        vpos = {}; kpos = {}
        if vrd:
            if nq == 0:
                pre += vrd
                for i in range(8): vpos[i] = -1
            else:
                step = nq // 8
                for i in range(8):
                    g = max(first, i * step)
                    if step == 2 and first == 2: g = [2, 2, 4, 6, 8, 10, 12, 14][i]
                    mem[g].append(vrd[i]); vpos[i] = g
        if krd:
            if nv > 0:
                step = nv // 8
                for i in range(8):
                    g = nq + i * step
                    mem[g].append(krd[i]); kpos[i] = g
            else:
                step = nq // 8
                for i in range(8):
                    g = (i + 1) * step - 1
                    mem[g].append(krd[i]); kpos[i] = g
        if dma:
            srdn = sK if odd else sV; so = sKo if odd else sVo; sm = sKm if odd else sVm
            step = n // 4
            base = 6 if step >= 12 else 4
            gs = [base + j * step for j in range(4)]
            if n == 32: gs = [4, 10, 18, 24]
            if dgaps: gs = dgaps
            if hook and gs[0] == 4: gs = [6, 12, 18, 24]
            if n == 32 and os.environ.get("SCH_DG"): gs = eval(os.environ["SCH_DG"])
            if n == 64 and os.environ.get("SCH_DG64") and not dgaps: gs = eval(os.environ["SCH_DG64"])
            if redir:
                alt = 4 if odd else 6
                sc[gs[0] - 2] += [f"s_cmp_ge_u32 s{so}, s{srdn+2}", f"s_cselect_b64 s[{srdn}:{srdn+1}], s[{alt}:{alt+1}], s[{srdn}:{srdn+1}]",
                                  f"s_cselect_b32 s{srdn+2}, s30, s{srdn+2}"]
            sc[gs[0] - 1].append(f"s_mov_b32 m0, s{sm}")
            for j in range(4):
                (mem[gs[j]].append if not os.environ.get("SCH_BF") else (lambda x, g=gs[j]: mem[g].insert(0, x)))(f"buffer_load_dwordx4 v{vL16}, s[{srdn}:{srdn+3}], s{so} offen offset:{j*1024}{self.SC} lds")
            post = [f"s_add_u32 s{so}, s{so}, 16384", f"s_add_u32 s{sm}, s{sm}, 32768", f"s_and_b32 s{sm}, s{sm}, 0x1ffff"]
            for j, x in enumerate(post): sc[gs[3] + 1 + j].append(x)
        if extra:
            ne = len(extra)
            if n == 32 and ne <= 5 and dma: eg = {1: [14], 2: [8, 22], 3: [8, 14, 22], 4: [6, 14, 20, 26], 5: [6, 12, 16, 22, 26]}[ne]
            else: eg = [first + 1 + (k * (n - 2 - first)) // ne for k in range(ne)]
            if egaps: eg = egaps
            for g, (xs, xl) in zip(eg, extra):
                sc[g - 1 if egaps else g] += xs
                mem[g].append(xl)
        NP = self.NP
        if have_pre is None: have_pre = ("s" in st[1] and "m" not in st[1] and "v" in st[1])
        do_pre = "q" in st[1] and "s" in st[1]
        exps = []; pl = []; gate = {}
        for X in reversed(ss):
            if "m" in st[X]:
                k0 = 0 if not exps else max(0, len(pl) - 14)
                need = pl[k0 - 1][0] if k0 else -1
                pl[k0:k0] = [(need, l) for l in mask_ops(X, par)]
                gate[len(exps)] = k0 + 12
            e, p = sm_ops(X, par)
            off = len(exps)
            exps += e; pl += [(i + off, l) for i, l in p]
        if ss:
            ts = [TS + 2 * X + qb for X in reversed(ss) for qb in range(2)]
            last = len(exps) - 1
            if len(ts) == 2:
                pl.append((last, f"v_max_f32 v{vX}, v{ts[0]}, v{ts[1]}"))
            else:
                pl.insert(len(pl) - 6, (last - 4, f"v_max3_f32 v{vX}, v{ts[0]}, v{ts[1]}, v{ts[2]}"))
                pl.append((last, f"v_max_f32 v{vX}, v{vX}, v{ts[3]}"))
            cv = [k for k in range(len(pl)) if pl[k][0] == last and "cvt" in pl[k][1]][0]
            lastcvt = pl.pop(cv)[1]
            pl.append((last, f"v_cmp_lt_f32 vcc, s{sThr}, v{vX}"))
        ei = NP if have_pre else 0
        pi = 0
        def ready_pl(le):
            if pi >= len(pl): return False
            need = pl[pi][0]
            return need < ei and not (need == ei - 1 and le)
        def ready_exp():
            if ei >= len(exps): return False
            if pi < gate.get(ei, 0): return False
            for k in range(pi, len(pl)):
                if 0 <= pl[k][0] <= ei - 7 and (pl[k][0] // 16 == ei // 16): return False
                if pl[k][0] > ei - 7: break
            return True
        D = n - 4
        if ss:
            if nq == 0:
                c = 0; le = False
                while c < 120:
                    if ready_pl(le): pre.append(pl[pi][1]); pi += 1; c += 4; le = False
                    elif ready_exp(): pre.append(exps[ei]); ei += 1; c += 8; le = True
                    else: break
            def nready():
                c = 0
                for k in range(pi, len(pl)):
                    if pl[k][0] < ei: c += 1
                    else: break
                return c
            BL = int(os.environ.get("SCH_BL", "6"))
            F = sum(8 if not mem[g] else 4 for g in range(D)) + 12
            tot_over = max(0, (8 * (len(exps) - ei) + 4 * (len(pl) - pi) - F) // 4)
            done_over = 0
            for g in range(D + 1):
                le = False
                nm_left = sum(1 for q in range(g, D) if not mem[q])
                def Pl():
                    nonlocal pi, le
                    va[g].append(pl[pi][1]); pi += 1; le = False
                def Ex():
                    nonlocal ei, le
                    va[g].append(exps[ei]); ei += 1; le = True
                if g == D:
                    while ei < len(exps) or pi < len(pl):
                        if ready_pl(le): Pl()
                        elif ready_exp(): Ex()
                        else: va[g].append("s_nop 0"); le = False
                    break
                eleft = len(exps) - ei
                if not mem[g]:
                    if ready_exp() and (nready() < BL or eleft >= nm_left): Ex()
                    else:
                        for _ in range(2):
                            if ready_pl(le): Pl()
                            else: done_over -= 1
                else:
                    if eleft > nm_left and ready_exp() and (nready() < BL): Ex(); done_over += 1
                    elif ready_pl(le): Pl()
                    else: done_over -= 1
                quota = (tot_over * (g + 1)) // D
                while done_over < quota and not (le and len(exps) - ei <= nm_left):
                    if ready_pl(le) and nready() >= 2 - (len(exps) == ei): Pl(); done_over += 1
                    elif len(exps) - ei >= nm_left and ready_exp(): Ex(); done_over += 2
                    else: break
            assert ei == len(exps) and pi == len(pl), (ei, pi, len(exps), len(pl), st)
            va[n-2].append(lastcvt)
        nxt = sm_ops(1, 1 - par)[0][:NP] if do_pre else []
        post_pre = []
        if nxt:
            if nv > 0:
                va[n-3].append(nxt[0]); post_pre = nxt[1:]
            else: post_pre = ["s_nop 3"] + nxt
        kvupd = []
        if not odd:
            fr = [g for g in range(2, n - 4) if not sc[g]]
            sc[fr[0]].append(f"s_add_u32 s{sRing}, s{sRing}, 32768"); sc[fr[1]].append(f"s_and_b32 s{sRing}, s{sRing}, 0x1ffff")
            kvupd = [f"v_add_u32 v{vKV}, s{sRing}, v{vL16}"]
        order = [("K", f, -2) for f in range(4, 8)]
        evs = []
        for i in range(8):
            if i in vpos: evs.append((vpos[i], 0, "V", i))
        for i in range(8):
            if i in kpos: evs.append((kpos[i], 1, "N", i))
        evs.sort()
        allops = order + [(k, i, g) for (g, _, k, i) in evs]
        def cnt_after(kind, idx, gap):
            pos = [j for j, o in enumerate(allops) if o[0] == kind and o[1] == idx][0]
            assert allops[pos][2] < gap, (kind, idx, gap, st)
            return sum(1 for o in allops[pos+1:] if o[2] < gap)
        seen = set()
        for m, u in enumerate(use):
            if u in seen: continue
            seen.add(u)
            kind, f = u
            if f % 4 != 0: continue
            if kind == "K" and f == 0: continue
            if m == 0:
                pre.append(f"s_waitcnt lgkmcnt({cnt_after(kind, f+3, 0)})")
            else:
                sc[m-1].append(f"s_waitcnt lgkmcnt({cnt_after(kind, f+3, m-1)})")
        if krd:
            g = n - 2 if nv > 0 else n - 1
            sc[g].append(f"s_waitcnt lgkmcnt({cnt_after('N', 3, g)})")
        if tail_sc:
            free = [g for g in range(n // 2, n - 2) if not sc[g]]
            body = [x for x in tail_sc if not x.startswith("s_cmp")]; cmps = [x for x in tail_sc if x.startswith("s_cmp")]
            free = [g for g in free if g < n - 3]
            for x, g in zip(body, free[-len(body):]): sc[g].append(x)
            sc[n-3] += cmps
            for g in range(n - 2, n):
                assert all(x.startswith("s_waitcnt") for x in sc[g]), sc[g]
        if ss:
            k = self.nstub; self.nstub += 1
            sc[n-1].append(f"s_cbranch_vccnz {self.name}_stub{k}")
            sc[n-1].append(f"{self.name}_back{k}:")
            self.stubs.append((k, ss, par))
            if nv > 0: va[n-1] += post_pre
            for X in ss:
                for qb in range(2):
                    va[n-1].append(f"v_add_f32 v{LS+2*X+qb}, v{LS+2*X+qb}, v{TS+2*X+qb}")
            if nv == 0: va[n-1] += post_pre
        if kvupd and max(list(kpos.values()) + list(vpos.values()) + [0]) <= n - 2: va[n-2] += kvupd
        else: va[n-1] += kvupd
        out = pre + weave(mf, sc, mem, va)
        X_ = os.environ.get("XP", "")
        if "d" in X_ and bar != 0 and not c0: out = [l for l in out if not (l.startswith("buffer_load") and l.endswith("lds") and ("s[44:47]" in l or "s[48:51]" in l))]
        if "b" in X_: out = [l for l in out if l != "s_barrier"]
        if "r" in X_ and not c0: out = [l for l in out if not l.startswith("ds_read")]
        if "v" in X_: out = [l for l in out if not l.startswith("s_cbranch_vccnz")]
        if "a" in X_:
            out, e_, miss = align8(out)
            out = [".p2align 3"] + out
        if "s" in X_: out = [l.replace(" sc1 lds", " lds") for l in out]
        return out

    def loop_interval(self, st, hook, label, cnt):
        p1 = self.period(1, st, bar=12, hook=hook)
        p2 = self.period(0, st, tail_sc=cnt)
        return p1 + p2 + [f"s_cbranch_scc1 {label}"]

    def rare(self, X, par):
        a = self.a
        Sc = S + 32 * X + 16 * par; Sn = S + 32 * X + 16 * (1 - par)
        a.label(f"{self.name}_rare{X}{par}")
        a("s_nop 7")
        d = [vT, vT + 1]
        for qb in range(2):
            s0 = Sc + 8 * qb
            a(f"v_max3_f32 v{d[qb]}, v{s0}, v{s0+1}, v{s0+2}", f"v_max3_f32 v{d[qb]}, v{d[qb]}, v{s0+3}, v{s0+4}",
              f"v_max3_f32 v{d[qb]}, v{d[qb]}, v{s0+5}, v{s0+6}", f"v_max3_f32 v{d[qb]}, v{d[qb]}, v{s0+7}, 0")
            xreduce(a, "v_max_f32", d[qb], vT + 2)
            for r in range(8):
                a(f"v_sub_f32 v{s0+r}, v{s0+r}, v{d[qb]}", f"v_sub_f32 v{Sn+8*qb+r}, v{Sn+8*qb+r}, v{d[qb]}")
        a(f"s_call_b64 s[{sRet2}:{sRet2+1}], {self.name}_resc{X}")
        exps, pl = sm_ops(X, par)
        pi = 0
        for i in range(16):
            a(exps[i])
            while pi < len(pl) and pl[pi][0] < i:
                a(pl[pi][1]); pi += 1
        a("s_nop 0")
        a([l for _, l in pl[pi:]])
        if X == 1: a(sm_ops(1, 1 - par)[0][:1])
        a("s_nop 1", f"s_setpc_b64 s[{sRet}:{sRet+1}]")

    def resc(self, X):
        a = self.a
        a.label(f"{self.name}_resc{X}")
        for qb in range(2):
            for r in range(4):
                a(f"v_sub_f32 v{NM+8*X+4*qb+r}, v{NM+8*X+4*qb+r}, v{vT+qb}")
            a(f"v_exp_f32 v{vT+2+qb}, -v{vT+qb}")
        a("s_nop 0")
        for qb in range(2):
            a(f"v_mul_f32 v{LS+2*X+qb}, v{LS+2*X+qb}, v{vT+2+qb}")
        for db in range(8):
            for qb in range(2):
                o = O + 64 * X + 8 * db + 4 * qb
                for r in range(4): a(f"v_accvgpr_read_b32 v{vT+4+r}, a{o+r}")
                for r in range(4): a(f"v_mul_f32 v{vT+4+r}, v{vT+4+r}, v{vT+2+qb}")
                for r in range(4): a(f"v_accvgpr_write_b32 a{o+r}, v{vT+4+r}")
        a(f"s_setpc_b64 s[{sRet2}:{sRet2+1}]")

    def gen(self):
        a = self.a; name = self.name
        a("s_cmp_ge_u32 s2, 256", f"s_cbranch_scc1 {name}_end")
        stamp_init(a)
        a("s_load_dwordx2 s[4:5], s[0:1], 16", "s_load_dwordx2 s[16:17], s[0:1], 104")
        a(f"v_lshrrev_b32 v{vT}, 6, v0", f"v_and_b32 v{vL}, 63, v0", f"v_readfirstlane_b32 s{sW}, v{vT}")
        a(f"s_and_b32 s{sH}, s2, 7", f"s_lshl_b32 s{sH}, s{sH}, 2", "s_lshr_b32 s23, s2, 3", "s_and_b32 s23, s23, 3",
          f"s_add_u32 s{sH}, s{sH}, s23", f"s_lshr_b32 s{sI}, s2, 5")
        a(f"v_lshlrev_b32 v{vL16}, 4, v{vL}")
        a(f"v_bfe_u32 v{vT}, v{vL}, 2, 2", f"v_lshrrev_b32 v{vT+1}, 4, v{vL}", f"v_lshlrev_b32 v{vT+1}, 6, v{vT+1}",
          f"v_lshl_add_u32 v{vT}, v{vT}, 13, v{vT+1}", f"s_lshl_b32 s23, s{sW}, 17", f"v_add_u32 v{vT}, s23, v{vT}",
          f"v_and_b32 v{vT+2}, 3, v{vL}",
          f"v_lshl_add_u32 v{vWo}, v{vT+2}, 4, v{vT}", f"v_xor_b32 v{vT+2}, 2, v{vT+2}",
          f"v_lshl_add_u32 v{vWo+2}, v{vT+2}, 4, v{vT}",
          f"v_add_u32 v{vWo+1}, {32768-1024}, v{vWo}", f"v_add_u32 v{vWo+3}, {3*(32768-1024)}, v{vWo+2}",
          f"v_add_u32 v{vWo+2}, {2*(32768-1024)}, v{vWo+2}")
        a(f"s_lshl_b32 s23, s{sI}, 2", f"s_add_u32 s23, s23, s{sW}", f"s_mul_i32 s{sXo}, s23, {2*20480}",
          f"s_add_u32 s{sXo+1}, s{sXo}, 20480",
          f"s_sub_u32 s30, 15, s{sI}", "s_lshl_b32 s23, s30, 2", f"s_add_u32 s23, s23, s{sW}", f"s_mul_i32 s{sXo+2}, s23, {2*20480}",
          f"s_add_u32 s{sXo+3}, s{sXo+2}, 20480")
        a("s_waitcnt lgkmcnt(0)")
        a(f"s_lshl_b32 s23, s{sH}, 8", "s_add_u32 s4, s4, s23", "s_addc_u32 s5, s5, 0")
        srd(a, sWq, "s4", "s5", 0)
        a(f"s_sub_u32 s{sWq+2}, {640*8192}, s23")
        srd(a, sXn, "s16", "s17", 2048 * 1280)
        srd(a, sWS, "s16", "s17", WS_BYTES)
        a(f"s_lshl_b32 s{sKm}, s{sW}, 12", f"s_add_u32 s{sKm}, s{sKm}, 16384", f"s_mov_b32 s{sKo}, 0")
        def wdma():
            pre = [f"s_mov_b32 m0, s{sKm}"]
            l = [f"buffer_load_dwordx4 v{vWo+j}, s[{sWq}:{sWq+3}], s{sKo} offen offset:{j*1024} lds" for j in range(4)]
            post = [f"s_add_u32 s{sKo}, s{sKo}, {64*8192}", f"s_add_u32 s{sKm}, s{sKm}, 32768", f"s_and_b32 s{sKm}, s{sKm}, 0x1ffff"]
            return pre, l, post
        def xload(slot, qb):
            return f"buffer_load_dwordx4 {ar(XR+16*slot+4*qb,4)}, v{vL16}, s[{sXn}:{sXn+3}], s{sXo+qb} offen offset:{slot*1024}"
        for tok in ("W", "X0", "W", "X1", "X2", "W", "X3", "W"):
            if tok == "W":
                pre, l, post = wdma(); a(pre, "s_nop 0", l, post)
            else:
                a([xload(int(tok[1]), qb) for qb in range(4)])
        for qb in range(4): a(f"s_add_u32 s{sXo+qb}, s{sXo+qb}, 4096")
        a(f"s_lshl_b32 s23, s{sH}, 19", f"s_add_u32 s23, s23, {KFO}", "s_add_u32 s6, s16, s23", "s_addc_u32 s7, s17, 0",
          f"s_add_u32 s8, s6, {VFO-KFO}", "s_addc_u32 s9, s7, 0",
          f"s_sub_u32 s23, 16, s{sI}", "s_lshl_b32 s23, s23, 15")
        srd(a, sK, "s6", "s7", "s23")
        srd(a, sV, "s8", "s9", "s23")
        for i in range(4): a(f"v_mov_b32 v{vT+4+i}, 0")
        a(f"v_bfe_u32 v{vT+2}, v{vL}, 2, 2", f"v_lshlrev_b32 v{vT+2}, 6, v{vT+2}", f"v_lshrrev_b32 v{vT+1}, 4, v{vL}",
          f"v_lshl_add_u32 v{vT+2}, v{vT+1}, 11, v{vT+2}",
          f"v_and_b32 v{vT+3}, 1, v{vL}", f"v_lshl_add_u32 v{vT+2}, v{vT+3}, 3, v{vT+2}",
          f"v_bfe_u32 v{vT+3}, v{vL}, 1, 1", f"v_and_b32 v{vT}, 1, v{vT+1}", f"v_lshl_or_b32 v{vT+3}, v{vT}, 1, v{vT+3}",
          f"v_add_u32 v{vT+2}, 16384, v{vT+2}", f"v_lshl_add_u32 v{vWa}, v{vT+3}, 4, v{vT+2}", f"v_xor_b32 v{vWa+1}, 32, v{vWa}")
        for i in range(8):
            a(f"v_mfma_f32_32x32x16_bf16 {vr(QACC+16*i,16)}, {vr(vT+4,4)}, {vr(vT+4,4)}, 0")
        for i in range(8):
            a(f"v_mfma_f32_32x32x16_bf16 {ar(O+16*i,16)}, {vr(vT+4,4)}, {vr(vT+4,4)}, 0")
        a(f"v_and_b32 v{vT}, 15, v{vL}", f"v_lshlrev_b32 v{vT+1}, 2, v{vT+1}", f"v_sub_u32 v{vT}, v{vT}, v{vT+1}")
        for r in range(4): a(f"v_cmp_le_i32 s[{sMask+2*r}:{sMask+2*r+1}], {r}, v{vT}")
        a(f"v_mov_b32 v{vNI}, 0xff800000", f"s_mov_b32 s{sThr}, 0x47800000")
        for i in range(4): a(f"v_mov_b32 v{LS+i}, 0")
        def wreads(buf, off):
            return [f"ds_read_b64_tr_b16 {vr(Q+32*buf+4*cb+2*t,2)}, v{vWa+(cb&1)} offset:{off + t*1024 + (cb>>1)*256}" for cb in range(8) for t in range(2)]
        stamp(a, 1)
        a("s_waitcnt vmcnt(24)", "s_barrier")
        stamp(a, 2)
        if os.environ.get("CYC") == "q": stampc(a, 12)
        a(wreads(0, 0), f"s_mov_b32 s{sCnt}, 0", "s_waitcnt lgkmcnt(0)")
        a(".p2align 6")
        a.label(f"{name}_qloop")
        for ks in range(4):
            buf = ks & 1
            mf = [f"{MF} {vr(QACC+(db*4+qb)*4,4)}, {vr(Q+32*buf+4*db,4)}, {ar(XR+16*ks+4*qb,4)}, {vr(QACC+(db*4+qb)*4,4)}" for qb in range(4) for db in range(8)]
            sc = {g: [] for g in range(32)}; mem = {g: [] for g in range(32)}; va = {g: [] for g in range(32)}
            off = [8192, 32768, 32768 + 8192, 0][ks]
            rd = wreads(1 - buf, off)
            pos = [1, 2, 3, 4, 5, 6, 8, 9, 10, 12, 13, 14, 16, 17, 18, 20]
            if ks & 1: sc[0].append("s_barrier")
            for p_, x in zip(pos, rd): mem[p_].append(x)
            for qb in range(4): mem[8*qb+7].append(xload(ks, qb))
            if ks & 1:
                pre, l, post = wdma()
                sc[10] += pre
                for j, g in enumerate([11, 19, 22, 27]): mem[g].append(l[j])
                for j, x in enumerate(post): sc[28 + j if j < 2 else 27].append(x) if False else None
                sc[28].append(post[0]); sc[29].append(post[1]); sc[30].append(post[2])
            if ks == 2:
                va[24].append(f"v_xor_b32 v{vWa}, 0x10000, v{vWa}")
                va[25].append(f"v_xor_b32 v{vWa+1}, 0x10000, v{vWa+1}")
                sc[24].append(f"s_add_u32 s{sCnt}, s{sCnt}, 1")
            w = f"s_waitcnt vmcnt({15 if (ks+1) & 1 else 19}) lgkmcnt(0)"
            sc[31].append(w)
            if ks == 3:
                for qb in range(3): sc[8*qb+8].append(f"s_add_u32 s{sXo+qb}, s{sXo+qb}, 4096")
                va[31] += [f"s_add_u32 s{sXo+3}, s{sXo+3}, 4096", f"s_cmp_ge_u32 s{sCnt}, 4", f"s_cselect_b32 s{sXn+2}, 0, s{sXn+2}",
                           f"s_cmp_lt_u32 s{sCnt}, 5", f"s_cbranch_scc1 {name}_qloop"]
            a(weave(mf, sc, mem, va))
        a("s_waitcnt vmcnt(0)", "s_barrier")
        stamp(a, 3)
        if os.environ.get("CYC") == "q": stampc(a, 13)
        a(f"s_and_b32 s23, s{sW}, 1", "s_lshl_b32 s23, s23, 12", f"s_cmp_lt_u32 s{sW}, 2", f"s_cselect_b32 s{sKm}, {131072-24576}, 0",
          f"s_add_u32 s{sKm}, s{sKm}, s23", f"s_lshl_b32 s{sKo}, s{sW}, 12", f"s_mov_b32 s{sVo}, s{sKo}",
          f"s_add_u32 s{sVm}, s{sKo}, {32768+16384}")
        for (srdn, so, sm) in [(sK, sKo, sKm)] * 3 + [(sV, sVo, sVm)] * 2:
            a(f"s_mov_b32 m0, s{sm}", "s_nop 0")
            a([f"buffer_load_dwordx4 v{vL16}, s[{srdn}:{srdn+3}], s{so} offen offset:{j*1024} lds" for j in range(4)])
            a(f"s_add_u32 s{so}, s{so}, 16384", f"s_add_u32 s{sm}, s{sm}, 32768", f"s_and_b32 s{sm}, s{sm}, 0x1ffff")
        a(f"v_mov_b32 v{vT}, 0x3e0293ee", f"v_mov_b32 v{vT+1}, 0x3e0293ee")
        for X in range(2):
            for ks in range(4):
                for qb in range(2):
                    d = Q + 32 * X + 8 * ks + 4 * qb
                    for hh in range(2):
                        s0 = QACC + ((2 * ks + hh) * 4 + 2 * X + qb) * 4
                        a(f"v_pk_mul_f32 {vr(s0,2)}, {vr(s0,2)}, {vr(vT,2)}", f"v_pk_mul_f32 {vr(s0+2,2)}, {vr(s0+2,2)}, {vr(vT,2)}",
                          f"v_cvt_pk_bf16_f32 v{d+2*hh}, v{s0}, v{s0+1}", f"v_cvt_pk_bf16_f32 v{d+2*hh+1}, v{s0+2}, v{s0+3}")
        a(f"s_add_u32 s23, s{sW}, 1", "s_lshr_b32 s23, s23, 1", f"s_lshl_b32 s{sCnt}, s{sI}, 1", f"s_add_u32 s{sCnt}, s{sCnt}, s23",
          f"s_lshl_b32 s23, s{sI}, 2", f"s_sub_u32 s{sNSS}, 28, s23", f"s_and_b32 s23, s{sW}, 1", f"s_add_u32 s{sNSS}, s{sNSS}, s23")
        a(f"v_mov_b32 v{vKV}, v{vL16}", f"v_add_u32 v{vT+2}, {3*32768+8192}, v{vL16}")
        stamp(a, 4)
        a("s_waitcnt vmcnt(12)", "s_barrier")
        stamp(a, 5)
        a([f"ds_read_b128 {ar(KF+4*i,4)}, v{vT+2} offset:{i*1024}" for i in range(8)])
        a("s_waitcnt lgkmcnt(4)")
        a(self.period(1, ["q", "q"], c0=True))
        a("s_nop 7", f"s_cmp_lg_u32 s{sCnt}, 0", f"s_cbranch_scc1 {name}_nomask0")
        a(mask_ops(0, 0))
        a.label(f"{name}_nomask0")
        for X in range(2):
            for qb in range(2):
                s0 = S + 32 * X + 8 * qb; d = vT + 2 * X + qb
                a(f"v_max3_f32 v{d}, v{s0}, v{s0+1}, v{s0+2}", f"v_max3_f32 v{d}, v{d}, v{s0+3}, v{s0+4}",
                  f"v_max3_f32 v{d}, v{d}, v{s0+5}, v{s0+6}", f"v_max_f32 v{d}, v{d}, v{s0+7}")
        for sw in ("v_permlane16_swap_b32", "v_permlane32_swap_b32"):
            for k in range(4): a(f"v_mov_b32 v{vT+4+k}, v{vT+k}")
            a("s_nop 0")
            for k in range(4): a(f"{sw} v{vT+k}, v{vT+4+k}")
            for k in range(4): a(f"v_max_f32 v{vT+k}, v{vT+k}, v{vT+4+k}")
        for X in range(2):
            for qb in range(2):
                s0 = S + 32 * X + 8 * qb; d = vT + 2 * X + qb
                for r in range(4): a(f"v_sub_f32 v{NM+8*X+4*qb+r}, 0, v{d}")
        for X in range(2):
            for qb in range(2):
                s0 = S + 32 * X + 8 * qb; d = vT + 2 * X + qb
                for r in range(8): a(f"v_sub_f32 v{s0+r}, v{s0+r}, v{d}")
        a(self.period(0, ["qs", "qs"]))
        stamp(a, 6)
        if os.environ.get("CYC") != "q": stampc(a, 12)
        F = "qsv"
        a(f"s_cmp_eq_u32 s{sCnt}, 0", f"s_cbranch_scc1 {name}_AV", f"s_sub_u32 s{sCnt}, s{sCnt}, 1",
          f"s_cmp_eq_u32 s{sCnt}, 0", f"s_cbranch_scc1 {name}_Aexit")
        a(".p2align 6")
        a.label(f"{name}_DD")
        a(self.period(1, [F, F], bar=12))
        a(self.period(0, [F, F], tail_sc=[f"s_sub_u32 s{sCnt}, s{sCnt}, 1"]))
        a(f"s_cmp_lg_u32 s{sCnt}, 0", f"s_cbranch_scc1 {name}_DD")
        a.label(f"{name}_Aexit")
        a(f"s_bitcmp1_b32 s{sW}, 0", f"s_cbranch_scc1 {name}_Aodd")
        a(self.period(1, [F, F], bar=12))
        a(self.period(0, ["smv", F]))
        a.label(f"{name}_AV")
        a(self.period(1, ["v", F], bar=12))
        a(self.period(0, ["", F]))
        a(f"s_branch {name}_SSpre")
        a.label(f"{name}_Aodd")
        a(self.period(1, ["smv", F], bar=12))
        a(self.period(0, ["v", F]))
        a.label(f"{name}_SSpre")
        stamp(a, 7)
        a(f"s_cmp_eq_u32 s{sNSS}, 0", f"s_cbranch_scc1 {name}_Bexit")
        a(".p2align 6")
        a.label(f"{name}_SS")
        a(self.period(1, ["", F], bar=12))
        a(self.period(0, ["", F], tail_sc=[f"s_sub_u32 s{sNSS}, s{sNSS}, 1"]))
        a(f"s_cmp_lg_u32 s{sNSS}, 0", f"s_cbranch_scc1 {name}_SS")
        a.label(f"{name}_Bexit")
        a(f"s_bitcmp1_b32 s{sW}, 0", f"s_cbranch_scc1 {name}_Bodd")
        a(self.period(1, ["", F], bar=0, dma=False, kread=False))
        a(self.period(0, ["", "smv"], dma=False, kread=False))
        a(self.period(1, ["", "v"], bar=0, dma=False, kread=False))
        a(f"s_branch {name}_Bdone")
        a.label(f"{name}_Bodd")
        a(self.period(1, ["", "smv"], bar=0, dma=False, kread=False))
        a(self.period(0, ["", "v"], dma=False, kread=False))
        a.label(f"{name}_Bdone")
        a(f"s_cmp_ge_u32 s{sW}, 2", f"s_cbranch_scc1 {name}_epi", "s_barrier")
        a.label(f"{name}_epi")
        stamp(a, 8)
        if os.environ.get("CYC") != "q": stampc(a, 13)
        for sw in ("v_permlane16_swap_b32", "v_permlane32_swap_b32"):
            for k in range(4): a(f"v_mov_b32 v{vT+4+k}, v{LS+k}")
            a("s_nop 0")
            for k in range(4): a(f"{sw} v{LS+k}, v{vT+4+k}")
            for k in range(4): a(f"v_add_f32 v{LS+k}, v{LS+k}, v{vT+4+k}")
        for k in range(4): a(f"v_rcp_f32 v{vT+2*k}, v{LS+k}")
        a("s_nop 0")
        for k in range(4): a(f"v_mov_b32 v{vT+2*k+1}, v{vT+2*k}")
        a(f"s_lshl_b32 s23, s{sI}, 2", f"s_add_u32 s23, s23, s{sW}", "s_lshl_b32 s23, s23, 18", f"s_lshl_b32 s31, s{sH}, 12",
          f"s_add_u32 s31, s31, {CTX}", f"s_add_u32 s{sXo}, s23, s31", f"s_add_u32 s{sXo+1}, s{sXo}, {1<<17}",
          "s_lshl_b32 s23, s30, 2", f"s_add_u32 s23, s23, s{sW}", "s_lshl_b32 s23, s23, 18",
          f"s_add_u32 s{sXo+2}, s23, s31", f"s_add_u32 s{sXo+3}, s{sXo+2}, {1<<17}")
        k = 0
        for X in range(2):
            for qb in range(2):
                for t in range(4):
                    T = 32 + (k % 8) * 12; k += 1
                    f = vT + 2 * (2 * X + qb)
                    for hh in range(2):
                        for r in range(4): a(f"v_accvgpr_read_b32 v{T+4+4*hh+r}, a{O+64*X+8*(2*t+hh)+4*qb+r}")
                    for r in range(4): a(f"v_pk_mul_f32 {vr(T+4+2*r,2)}, {vr(T+4+2*r,2)}, {vr(f,2)}")
                    for r in range(4): a(f"v_cvt_pk_bf16_f32 v{T+r}, v{T+4+2*r}, v{T+5+2*r}")
                    a(f"buffer_store_dwordx4 {vr(T,4)}, v{vL16}, s[{sWS}:{sWS+3}], s{sXo+2*X+qb} offen offset:{t*1024}")
        stamp(a, 9)
        self.ffn()
        a.label(f"{name}_fin")
        stamp_flush(a, 1, sW, sWS)
        a.label(f"{name}_end")
        a("s_endpgm")
        for (k, ss, par) in self.stubs:
            a.label(f"{name}_stub{k}")
            for X in ss: a(f"s_call_b64 s[{sRet}:{sRet+1}], {name}_rare{X}{par}")
            a(f"s_branch {name}_back{k}")
        for X in range(2):
            for par in range(2): self.rare(X, par)
            self.resc(X)
        return a

    def ffn(self):
        a = self.a; name = self.name
        sG, sU, sD = 52, 56, 60
        sJ = 82
        a("s_cmp_lt_u32 s2, 192", f"s_cbranch_scc1 {name}_fin", "s_cmp_ge_u32 s2, 246", f"s_cbranch_scc1 {name}_fin")
        a("s_load_dwordx4 s[4:7], s[0:1], 64", "s_load_dwordx2 s[8:9], s[0:1], 80", f"s_sub_u32 s{sJ}, s2, 192")
        KEY = 128
        a(f"s_mov_b32 s23, {RKEY}", f"s_mov_b32 s31, {RKEY+4096}")
        for q in range(8):
            a(f"buffer_load_dwordx4 {vr(KEY+4*q,4)}, v{vL16}, s[{sWS}:{sWS+3}], s{23 if q < 4 else 31} offen offset:{(q%4)*1024}")
        a(f"v_lshrrev_b32 v{vT}, 2, v{vL}", f"v_mul_u32_u24 v{vT+1}, 3456, v{vT}", f"v_and_b32 v{vT+2}, 3, v{vL}",
          f"v_lshl_add_u32 v{vT+1}, v{vT+2}, 4, v{vT+1}")
        a("s_waitcnt lgkmcnt(0)")
        srd(a, sG, "s4", "s5", 640 * 3456); srd(a, sU, "s6", "s7", 640 * 3456); srd(a, sD, "s8", "s9", 1728 * 1280)
        a(f"s_mul_i32 s23, s{sW}, {10*16*3456}", f"s_lshl_b32 s31, s{sJ}, 6", "s_add_u32 s23, s23, s31",
          f"s_mul_i32 s24, s{sW}, 10240", f"s_mul_i32 s25, s{sJ}, 40960", "s_add_u32 s25, s25, s24", "s_mov_b32 s26, 10")
        a("s_barrier")
        a.label(f"{name}_fdma")
        a("s_mov_b32 m0, s24", "s_nop 0", f"buffer_load_dwordx4 v{vT+1}, s[{sG}:{sG+3}], s23 offen lds",
          "s_add_u32 m0, s24, 40960", "s_nop 0", f"buffer_load_dwordx4 v{vT+1}, s[{sU}:{sU+3}], s23 offen lds",
          "s_add_u32 m0, s24, 81920", "s_nop 0", f"buffer_load_dwordx4 v{vL16}, s[{sD}:{sD+3}], s25 offen lds",
          f"s_add_u32 s23, s23, {16*3456}", "s_add_u32 s24, s24, 1024", "s_add_u32 s25, s25, 1024",
          "s_sub_u32 s26, s26, 1", "s_cmp_lg_u32 s26, 0", f"s_cbranch_scc1 {name}_fdma")
        vM, vPrev, vSel, vTok, vTmp = vT + 4, vT + 5, vT + 6, vT + 7, vT + 8
        a(f"v_mov_b32 v{vPrev}, 0", f"v_mov_b32 v{vSel}, 0", f"v_and_b32 v{vTok}, 7, v{vL}", "s_mov_b32 s26, 0", "s_waitcnt vmcnt(30)")
        a.label(f"{name}_top")
        a(f"v_max3_u32 v{vM}, v{KEY}, v{KEY+1}, v{KEY+2}", f"v_max3_u32 v{vTmp}, v{KEY+3}, v{KEY+4}, v{KEY+5}")
        for q in range(6, 30, 4):
            a(f"v_max3_u32 v{vM}, v{vM}, v{KEY+q}, v{KEY+q+1}", f"v_max3_u32 v{vTmp}, v{vTmp}, v{KEY+q+2}, v{KEY+q+3}")
        a(f"v_max3_u32 v{vM}, v{vM}, v{KEY+30}, v{KEY+31}", f"v_max_u32 v{vM}, v{vM}, v{vTmp}")
        for m in ("quad_perm:[1,0,3,2]", "quad_perm:[2,3,0,1]", "row_half_mirror", "row_mirror"):
            a("s_nop 1", f"v_max_u32_dpp v{vM}, v{vM}, v{vM} {m} row_mask:0xf bank_mask:0xf")
        xreduce(a, "v_max_u32", vM, vTmp)
        a(f"v_add_u32 v{vPrev}, v{vPrev}, v{vM}", f"v_cmp_eq_u32 vcc, s26, v{vTok}")
        for q in range(32): a(f"v_sub_u32 v{KEY+q}, v{KEY+q}, v{vM}")
        a(f"v_cndmask_b32 v{vSel}, v{vSel}, v{vPrev}, vcc", "s_add_u32 s26, s26, 1", "s_cmp_lt_u32 s26, 8", f"s_cbranch_scc1 {name}_top")
        vRow, vR, vXo = vT + 9, vT + 10, vT + 11
        stamp(a, 10)
        a(f"v_and_b32 v{vRow}, 0xffff, v{vSel}", f"v_sub_u32 v{vRow}, 0xffff, v{vRow}", f"v_and_b32 v{vRow}, 2047, v{vRow}",
          f"v_lshrrev_b32 v{vXo}, 4, v{vRow}", f"v_mul_u32_u24 v{vXo}, 20480, v{vXo}", f"v_and_b32 v{vTmp}, 15, v{vRow}",
          f"v_lshl_add_u32 v{vXo}, v{vTmp}, 4, v{vXo}", f"v_lshrrev_b32 v{vTmp}, 4, v{vL}", f"v_lshl_add_u32 v{vXo}, v{vTmp}, 8, v{vXo}")
        XS = 32
        for s_ in range(20):
            if s_ % 4 == 0: a(f"s_mov_b32 s23, {s_*1024}")
            a(f"buffer_load_dwordx4 {vr(XS+4*s_,4)}, v{vXo}, s[{sWS}:{sWS+3}], s23 offen offset:{(s_%4)*1024}")
        a(f"v_ashrrev_i32 v{vM}, 31, v{vSel}", f"v_not_b32 v{vM}, v{vM}", f"v_or_b32 v{vM}, 0x80000000, v{vM}",
          f"v_xor_b32 v{vR}, v{vSel}, v{vM}", f"v_and_b32 v{vR}, 0xffff0000, v{vR}",
          f"v_mul_f32 v{vR}, 0xbfb8aa3b, v{vR}", f"v_exp_f32 v{vR}, v{vR}", "s_nop 0", f"v_add_f32 v{vR}, 1.0, v{vR}",
          f"v_rcp_f32 v{vR}, v{vR}", "s_nop 0")
        bf16r(a, vR)
        a(f"v_lshlrev_b32 v{vM}, 2, v{vL}", f"v_add_u32 v{vM}, {SEL}, v{vM}", f"v_mov_b32 v{vPrev}, 0x40000000",
          f"s_add_u32 s23, s{sJ}, s{sW}", "s_cmp_eq_u32 s23, 0", "s_cselect_b32 s23, 8, 0",
          f"v_cmp_gt_u32 vcc, s23, v{vL}", "s_nop 1", f"v_cndmask_b32 v{vM}, v{vPrev}, v{vM}, vcc",
          f"buffer_store_dword v{vRow}, v{vM}, s[{sWS}:{sWS+3}], 0 offen",
          f"buffer_store_dword v{vR}, v{vM}, s[{sWS}:{sWS+3}], 0 offen offset:32")
        vA, vB, vC = vT + 12, vT + 13, vT + 14
        a(f"v_lshl_add_u32 v{vA}, v{vTmp}, 2, v{vT}",
          f"v_lshlrev_b32 v{vA}, 6, v{vA}", f"v_lshl_add_u32 v{vA}, v{vT+2}, 3, v{vA}",
          f"s_lshr_b32 s23, s{sW}, 1", "s_mul_i32 s23, s23, 40960", f"s_and_b32 s31, s{sW}, 1", "s_lshl_b32 s31, s31, 5", "s_add_u32 s23, s23, s31",
          f"v_add_u32 v{vA}, s23, v{vA}",
          f"v_mul_u32_u24 v{vB}, 1280, v{vT}", f"v_lshl_add_u32 v{vB}, v{vT+2}, 3, v{vB}",
          f"s_mul_i32 s23, s{sW}, 320", "s_add_u32 s23, s23, 81920", f"v_add_u32 v{vB}, s23, v{vB}",
          f"s_lshl_b32 s23, s{sW}, 10", "s_add_u32 s23, s23, 122880", f"v_add_u32 v{vC}, s23, v{vL16}")
        a("s_waitcnt vmcnt(0)", "s_barrier")
        WFr = 112; DF = 192
        for s_ in range(20):
            for t in range(2):
                a(f"ds_read_b64_tr_b16 {vr(WFr+4*s_+2*t,2)}, v{vA} offset:{s_*2048+t*256}")
        a("s_waitcnt lgkmcnt(0)")
        for cb in range(10):
            for t in range(2):
                a(f"ds_read_b64_tr_b16 {vr(DF+4*cb+2*t,2)}, v{vB} offset:{t*20480+cb*32}")
        G = 232
        for s_ in range(20):
            a(f"{MF} {vr(G,4)}, {vr(WFr+4*s_,4)}, {vr(XS+4*s_,4)}, {'0' if s_ == 0 else vr(G,4)}")
        a("s_nop 7", f"ds_write_b128 v{vC}, {vr(G,4)}", f"v_add_u32 v{vC}, 122880, v{vL16}", "s_waitcnt lgkmcnt(0)", "s_barrier")
        GU = 32
        for k in range(4): a(f"ds_read_b128 {vr(GU+4*k,4)}, v{vC} offset:{k*1024}")
        a(f"v_and_b32 v{vM}, 15, v{vL}", f"v_mul_u32_u24 v{vA}, 2560, v{vM}", f"v_lshl_add_u32 v{vA}, v{vTmp}, 4, v{vA}",
          f"v_cmp_gt_u32 vcc, 8, v{vM}", f"s_mul_i32 s23, s{sJ}, 20480", f"s_mul_i32 s31, s{sW}, 640",
          f"v_cndmask_b32 v{vA}, v{vPrev}, v{vA}, vcc", "s_add_u32 s23, s23, s31", f"s_add_u32 s23, s23, {YP}")
        a("s_waitcnt lgkmcnt(0)")
        for k in range(16): bf16r(a, GU + k)
        for k in range(8): a(f"v_mul_f32 v{GU+16+k}, 0xbfb8aa3b, v{GU+k}")
        for k in range(8): a(f"v_exp_f32 v{GU+16+k}, v{GU+16+k}")
        for k in range(8): a(f"v_add_f32 v{GU+16+k}, 1.0, v{GU+16+k}")
        for k in range(8): a(f"v_rcp_f32 v{GU+16+k}, v{GU+16+k}")
        for k in range(8): a(f"v_mul_f32 v{GU+k}, v{GU+k}, v{GU+16+k}")
        for k in range(8): bf16r(a, GU + k)
        for k in range(8): a(f"v_mul_f32 v{GU+k}, v{GU+k}, v{GU+8+k}")
        H = GU + 24
        for k in range(4): a(f"v_cvt_pk_bf16_f32 v{H+k}, v{GU+2*k}, v{GU+2*k+1}")
        a("s_nop 1")
        Y = 64
        for cb in range(10): a(f"{MF} {vr(Y+4*cb,4)}, {vr(DF+4*cb,4)}, {vr(H,4)}, 0")
        a("s_nop 7")
        for cb in range(10): a(f"buffer_store_dwordx4 {vr(Y+4*cb,4)}, v{vA}, s[{sWS}:{sWS+3}], s23 offen offset:{cb*64}")

def gen_k2(name):
    return K2(name).gen()
```

```python
import os
from asmlib import *
from gen_k1 import (XNF, RKEY, SEL, YP, WOF, KFO, VFO, CTX, WS_BYTES, MF, srd, bf16r, allreduce32_add,
                    stamp, stampc, stampv, stamp_init, stamp_flush, DBG)
import gen_k2 as k2
from gen_k2 import (vL, vL16, vKV, vNI, vX, vT, Q, S, P, NM, E, TS, LS, QACC, O, KF, VF, XR,
                    sW, sH, sI, sWS, sK, sV, sKm, sVm, sKo, sVo, sCnt, sNSS, sXo, sMask, sRet, sRet2, sThr,
                    xreduce, mask_ops)

LDS = 163840
FLG = 0x284000
KVF = FLG
CF = 0x3A0000
CS = int(os.environ.get('CS', '4352'))
YF = FLG + 0x3000
WF = FLG + 0x4000
SC = " sc1"
BIG = 0x40000000
SPARE = 131072
XS = SPARE + 20480
EX = SPARE + 30720
UPD = LDS - 8192
SCR = LDS - 4096
TOPWG = 255
FFN0, FFN1 = 170, 224
SPIN_MAX = 200000
sDb = 56
sCFA, sCFB, sKVa = 80, 3, 82
vWo, vWa, vCa = 8, 12, 14
vPoll, vZero, vPo = 15, 229, 8
vCo = 3

class VM:
    def __init__(self): self.ops = []
    def issue(self, tag, n=1): self.ops += [tag] * n
    def need(self, *tags):
        last = max(i for i, t in enumerate(self.ops) if t in tags)
        return min(63, len(self.ops) - 1 - last)

class Fused(k2.K2):
    SC = SC
    U = 8
    CB = eval(os.environ.get('CB', '[3,3,4,6,8,8,8,8]'))
    FL = 96
    ROT = int(os.environ.get('ROT', '0'))
    FV = [8, 11, 12, 13, 14]
    KY = 3
    def poll_check(self, a, tag, vreg, voff, srdn, cmp_lines, soff="0"):
        n = self.name
        a(cmp_lines, f"s_cbranch_vccnz {n}_{tag}_spin")
        a.label(f"{n}_{tag}_ok")
        t = Asm()
        t.label(f"{n}_{tag}_spin")
        t(f"s_mov_b32 s83, {SPIN_MAX}")
        t.label(f"{n}_{tag}_spin2")
        t(f"buffer_load_dword v{vreg}, v{voff}, s[{srdn}:{srdn+3}], {soff} offen{SC}", "s_waitcnt vmcnt(0)")
        t(cmp_lines, f"s_cbranch_vccz {n}_{tag}_ok", f"s_sleep {os.environ.get('SLP', '8')}", "s_sub_u32 s83, s83, 1", "s_cmp_lg_u32 s83, 0",
          f"s_cbranch_scc1 {n}_{tag}_spin2", f"s_branch {n}_{tag}_ok")
        self.tail += t.lines

    def phase1(self):
        a = self.a; name = self.name
        sC, sWt, sX, sQ2, sWO, sWR = 32, 36, 44, 48, 52, 68
        sM0C, sStep, sOC, sOW, sIT = 24, 25, 26, 27, 28
        FA = 32; FB = 96
        a("s_cmp_ge_u32 s2, 256", f"s_cbranch_scc1 {name}_end")
        if os.environ.get("CT0", "1") == "1":
            a("s_getpc_b64 s[62:63]", "v_and_b32 v230, 127, v0", "v_lshlrev_b32 v230, 7, v230", "global_load_dword v231, v230, s[62:63]")
        stamp_init(a)
        a("s_load_dwordx4 s[4:7], s[0:1], 0", "s_load_dwordx4 s[8:11], s[0:1], 24", "s_load_dwordx2 s[14:15], s[0:1], 56",
          "s_load_dwordx2 s[12:13], s[0:1], 40", "s_load_dwordx4 s[16:19], s[0:1], 96", "s_load_dwordx2 s[60:61], s[0:1], 16")
        a(f"v_lshrrev_b32 v{vT}, 6, v0", f"v_and_b32 v{vL}, 63, v0", f"v_readfirstlane_b32 s{sW}, v{vT}")
        a(f"s_and_b32 s{sH}, s2, 7", f"s_lshl_b32 s{sH}, s{sH}, 2", "s_lshr_b32 s23, s2, 3", "s_and_b32 s23, s23, 3",
          f"s_add_u32 s{sH}, s{sH}, s23", f"s_lshr_b32 s{sI}, s2, 5")
        XV = 160; WR = 172; F = 184
        vU, vRow, vXo, vXo3, vWro = 208, 209, 210, 211, 212
        vS, vT2, vMean, vAcc = 213, 214, 216, 218
        vTW, vTR, vKo, vO1, vO3, vFl = 220, 221, 222, 223, 224, 225
        vTQ = 235; sM16 = 64
        LNPRE = os.environ.get("LNPRE", "1") == "1"
        lnaddr = [f"v_and_b32 v{vU}, 31, v{vL}", f"v_lshrrev_b32 v{vRow}, 5, v{vL}",
          "s_lshl_b32 s31, s2, 2", f"s_add_u32 s31, s31, s{sW}", "s_lshl_b32 s31, s31, 1", f"v_add_u32 v{vRow}, s31, v{vRow}",
          f"v_lshlrev_b32 v{vWro}, 4, v{vU}", f"v_mul_u32_u24 v{vXo}, 1280, v{vRow}", f"v_add_u32 v{vXo}, v{vXo}, v{vWro}",
          f"v_cmp_gt_u32 s[{sM16}:{sM16+1}], 16, v{vU}", f"v_mov_b32 v{vT+3}, {BIG}", f"v_and_b32 v{vTW}, 7, v{vRow}",
          f"v_cndmask_b32 v{vXo3}, v{vT+3}, v{vXo}, s[{sM16}:{sM16+1}]"]
        xloads = [f"buffer_load_dwordx4 {vr(XV,4)}, v{vXo}, s[{sX}:{sX+3}], 0 offen",
          f"buffer_load_dwordx4 {vr(XV+4,4)}, v{vXo}, s[{sX}:{sX+3}], 0 offen offset:512",
          f"buffer_load_dwordx4 {vr(XV+8,4)}, v{vXo3}, s[{sX}:{sX+3}], 0 offen offset:1024"]
        xloads += [f"buffer_load_dwordx4 {vr(WR+4*i,4)}, v{vWro}, s[{sWR}:{sWR+3}], 0 offen offset:{512*i}" for i in range(3)]
        if LNPRE: a(lnaddr)
        a(f"v_bfe_u32 v{vT+1}, v{vL}, 1, 3", f"v_lshlrev_b32 v{vT+1}, 13, v{vT+1}", f"v_and_b32 v{vT+2}, 1, v{vL}",
          f"v_lshl_add_u32 v{vTQ}, v{vT+2}, 7, v{vT+1}", f"s_lshl_b32 s74, s{sI}, 1", f"s_and_b32 s31, s{sW}, 1", "s_add_u32 s74, s74, s31",
          "s_lshl_b32 s74, s74, 16", f"s_mov_b32 s73, {128*8192}", f"v_and_b32 v{vT}, 15, v{vL}",
          f"v_lshlrev_b32 v{vT+1}, 10, v{vT}", f"v_and_b32 v{vT+2}, 16, v{vL}", f"v_lshl_add_u32 v233, v{vT+2}, 3, v{vT+1}",
          "s_lshl_b32 s30, s23, 5", f"s_add_u32 s30, s30, s{sW}", "s_lshl_b32 s30, s30, 14", f"s_lshl_b32 s29, s{sI}, 16", f"s_lshl_b32 s23, s{sH}, 8",
          f"s_cmp_ge_u32 s{sW}, 2", "s_waitcnt lgkmcnt(0)")
        if LNPRE:
            srd(a, sX, "s4", "s5", 2048*1280)
            srd(a, sWR, "s14", "s15", 1280)
            a(xloads)
        a("s_cselect_b32 s62, s10, s8", "s_cselect_b32 s63, s11, s9", "s_add_u32 s62, s62, s23", "s_addc_u32 s63, s63, 0")
        srd(a, sWt, "s62", "s63", 0)
        a(f"s_sub_u32 s{sWt+2}, {512*8192}, s23", f"buffer_load_dword v231, v{vTQ}, s[{sWt}:{sWt+3}], s74 offen",
          "s_add_u32 s6, s6, s29", "s_addc_u32 s7, s7, 0")
        srd(a, sC, "s6", "s7", 0)
        a(f"s_sub_u32 s{sC+2}, {2048*1024}, s29")
        a(f"buffer_load_dword v232, v233, s[{sC}:{sC+3}], s30 offen", "s_add_u32 s74, s74, s73")
        T01 = os.environ.get("T01", "1") == "1"
        t1 = [f"buffer_load_dword v231, v{vTQ}, s[{sWt}:{sWt+3}], s74 offen", f"buffer_load_dword v232, v233, s[{sC}:{sC+3}], s30 offen offset:256"]
        if T01: a(t1)
        a("s_getpc_b64 s[8:9]", f"{name}_pc:", "s_lshr_b32 s31, s2, 3", "s_and_b32 s31, s31, 15", "s_lshl_b32 s31, s31, 2",
          f"s_add_u32 s31, s31, s{sW}", "s_lshl_b32 s31, s31, 11", f"s_min_u32 s31, s31, {name}_codeend-{name}_pc-2048",
          f"v_lshlrev_b32 v234, 7, v{vT}", "v_add_u32 v230, s31, v234", "global_load_dword v231, v230, s[8:9]",
          f"s_add_u32 s8, s8, {name}_co1-{name}_pc-4", "s_addc_u32 s9, s9, 0")
        a("s_add_u32 s60, s60, s23", "s_addc_u32 s61, s61, 0", f"s_sub_u32 s75, {640*8192}, s23")
        srd(a, sQ2, "s62", "s63", f"s{sWt+2}")
        a(f"v_lshlrev_b32 v{vL16}, 4, v{vL}",
          f"v_lshrrev_b32 v{vT+3}, 2, v{vL}", f"v_lshrrev_b32 v{vT+1}, 5, v{vL}", f"v_mul_u32_u24 v{vT+1}, 3, v{vT+1}",
          f"v_and_b32 v{vT+2}, 3, v{vL}", f"v_xor_b32 v{vT+1}, v{vT+1}, v{vT+2}", f"v_lshlrev_b32 v{vT+1}, 4, v{vT+1}",
          f"v_lshl_add_u32 v{vCo}, v{vT+3}, 10, v{vT+1}", f"s_lshl_b32 s23, s{sW}, 19", f"v_add_u32 v{vCo}, s23, v{vCo}")
        for j in range(1, 4): a(f"v_add_u32 v{vCo+j}, {j*(16384-1024)}, v{vCo}")
        a(f"v_and_b32 v{vT+3}, 3, v{vT+3}", f"v_lshrrev_b32 v{vT+1}, 4, v{vL}", f"v_lshlrev_b32 v{vT+1}, 6, v{vT+1}",
          f"v_lshl_add_u32 v{vT+3}, v{vT+3}, 13, v{vT+1}", f"s_and_b32 s23, s{sW}, 1", "s_lshl_b32 s23, s23, 17",
          f"v_add_u32 v{vT+3}, s23, v{vT+3}", f"v_lshl_add_u32 v{vWo}, v{vT+2}, 4, v{vT+3}", f"v_xor_b32 v{vT+2}, 2, v{vT+2}",
          f"v_lshl_add_u32 v{vWo+2}, v{vT+2}, 4, v{vT+3}", f"v_add_u32 v{vWo+1}, {32768-1024}, v{vWo}",
          f"v_add_u32 v{vWo+3}, {3*(32768-1024)}, v{vWo+2}", f"v_add_u32 v{vWo+2}, {2*(32768-1024)}, v{vWo+2}")
        a(f"s_lshl_b32 s{sM0C}, s{sW}, 12", f"s_mov_b32 s{sOC}, 0", f"s_mov_b32 s{sOW}, 0", f"s_mov_b32 s{sStep}, {32*8192}", "s_mov_b32 s79, 64")
        def dma_lines():
            preC = [f"s_mov_b32 m0, s{sM0C}"]
            lc = [f"buffer_load_dwordx4 v{vCo+j}, s[{sC}:{sC+3}], s{sOC} offen offset:{j*1024}{SC} lds" for j in range(4)]
            preW = [f"s_add_u32 m0, s{sM0C}, 16384"]
            lw = [f"buffer_load_dwordx4 v{vWo+j}, s[{sWt}:{sWt+3}], s{sOW} offen offset:{j*1024} lds" for j in range(4)]
            post = [f"s_add_u32 s{sOC}, s{sOC}, s79", f"s_add_u32 s{sOW}, s{sOW}, s{sStep}",
                    f"s_add_u32 s{sM0C}, s{sM0C}, 32768", f"s_and_b32 s{sM0C}, s{sM0C}, 0x1ffff"]
            return preC, lc, preW, lw, post
        def dma_stage():
            preC, lc, preW, lw, post = dma_lines()
            a(preC, "s_nop 0", lc, preW, "s_nop 0", lw, post)
        if not LNPRE: dma_stage()
        stamp(a, 1)
        srd(a, sWS, "s18", "s19", WS_BYTES)
        srd(a, sWO, "s12", "s13", 4096*1280)
        srd(a, sDb, "s16", "s17", 256)
        if not LNPRE:
            srd(a, sX, "s4", "s5", 2048*1280)
            srd(a, sWR, "s14", "s15", 1280)
        a("s_and_b32 s29, s2, 7", "s_lshl_b32 s29, s29, 2", f"s_add_u32 s29, s29, s{sW}", "s_lshl_b32 s29, s29, 11",
          f"s_and_b32 s23, s{sH}, 3", "s_lshl_b32 s23, s23, 19", "s_add_u32 s29, s29, s23")
        a(f"s_mul_i32 s23, s{sW}, {CS}", f"s_lshl_b32 s31, s{sH}, 2", "s_add_u32 s23, s23, s31", f"s_add_u32 s23, s23, {CF}",
          f"s_mul_i32 s31, s{sI}, {4*CS}", f"s_add_u32 s{sCFA}, s23, s31", f"s_sub_u32 s31, {15*4*CS}, s31", f"s_add_u32 s{sCFB}, s23, s31",
          f"s_lshl_b32 s23, s{sH}, 7", f"s_lshl_b32 s31, s{sI}, 2", "s_add_u32 s23, s23, s31", f"s_add_u32 s{sKVa}, s23, {KVF}",
          self.yf_addr(62), f"s_sub_u32 s23, s2, {FFN0}", f"s_cmp_lt_u32 s23, {FFN1-FFN0}", f"s_cselect_b32 s62, s62, {BIG}",
          f"s_cmp_eq_u32 s{sW}, 0", f"s_cselect_b32 s31, s{sKVa}, {BIG}", f"s_cselect_b32 s77, s2, {BIG}",
          f"s_cmp_eq_u32 s2, {TOPWG}", f"s_cselect_b32 s23, {SEL}, {BIG}",
          f"v_lshl_add_u32 v{vFl}, v{vT}, 2, s23", f"v_mov_b32 v{vZero}, 0",
          f"v_writelane_b32 v{vFl}, s{sCFA}, 0", f"v_writelane_b32 v{vFl}, s{sCFB}, 1", f"v_writelane_b32 v{vFl}, s31, 2", "s_add_u32 s31, s31, 32", f"v_writelane_b32 v{vFl}, s31, 5",
          self.wf_addr(23), f"v_writelane_b32 v{vFl}, s23, 3", f"v_writelane_b32 v{vFl}, s62, 4")
        if LNPRE:
            a(f"s_and_b32 s23, s{sH}, 3", "s_lshr_b32 s31, s23, 1", "s_lshl_b32 s31, 4, s31", "s_bitcmp1_b32 s23, 0",
              "s_cselect_b32 s76, s31, 0", "s_cselect_b32 s72, 0, s31", "s_or_b32 s76, s76, 0x20", "s_or_b32 s72, s72, 0x25")
        else:
            a(f"s_and_b32 s23, s{sH}, 3", "s_cmp_eq_u32 s23, 2", "s_cselect_b32 s76, 0x2a, 0x22", "s_cselect_b32 s72, 0x27, 0x2f",
              "s_cmp_eq_u32 s23, 3", "s_cselect_b32 s72, 0x37, s72")
        for i in range(4): a(f"v_mov_b32 v{vT+4+i}, 0")
        a(f"v_lshrrev_b32 v{vT+1}, 4, v{vL}", f"v_lshrrev_b32 v{vT+2}, 3, v{vT}",
          f"v_mul_u32_u24 v{vT+2}, 3, v{vT+2}", f"v_xor_b32 v{vT+2}, v{vT+2}, v{vT+1}", f"v_lshlrev_b32 v{vT+2}, 4, v{vT+2}",
          f"v_lshl_add_u32 v{vCa}, v{vT}, 6, v{vT+2}", f"s_and_b32 s23, s{sW}, 1", "s_lshl_b32 s23, s23, 11", f"v_add_u32 v{vCa}, s23, v{vCa}")
        rest = Asm()
        rest(f"v_lshrrev_b32 v{vT+2}, 2, v{vT}", f"v_lshlrev_b32 v{vT+2}, 6, v{vT+2}", f"v_lshl_add_u32 v{vT+2}, v{vT+1}, 11, v{vT+2}",
          f"v_and_b32 v{vT+3}, 1, v{vL}", f"v_lshl_add_u32 v{vT+2}, v{vT+3}, 3, v{vT+2}", f"v_bfe_u32 v{vT+3}, v{vL}, 1, 1",
          f"v_and_b32 v{vT+1}, 1, v{vT+1}", f"v_lshl_or_b32 v{vT+3}, v{vT+1}, 1, v{vT+3}",
          f"s_lshr_b32 s23, s{sW}, 1", "s_lshl_b32 s23, s23, 13", "s_add_u32 s23, s23, 16384", f"v_add_u32 v{vT+2}, s23, v{vT+2}",
          f"v_lshl_add_u32 v{vWa}, v{vT+3}, 4, v{vT+2}", f"v_xor_b32 v{vWa+1}, 32, v{vWa}")
        TR = SPARE
        rest([f"v_mov_b32 v{vT+3}, {BIG}"] if LNPRE else lnaddr,
          f"v_lshlrev_b32 v{vTW}, 4, v{vTW}", f"v_lshl_add_u32 v{vTW}, v{vU}, 7, v{vTW}", f"v_add_u32 v{vTW}, {TR}, v{vTW}",
          f"v_lshlrev_b32 v{vKo}, 2, v{vRow}", f"v_cmp_eq_u32 vcc, 0, v{vU}", f"v_add_u32 v{vKo}, {RKEY}, v{vKo}",
          f"v_lshlrev_b32 v{vTR}, 4, v0", f"v_cndmask_b32 v{vKo}, v{vT+3}, v{vKo}, vcc", f"v_add_u32 v{vTR}, {TR}, v{vTR}",
          f"v_sub_u32 v{vRow}, 0xffff, v{vRow}",
          f"v_lshrrev_b32 v{vO1}, 3, v0", f"v_and_b32 v{vT+2}, 7, v0", f"v_lshlrev_b32 v{vT+2}, 4, v{vT+2}",
          f"v_cmp_gt_u32 vcc, 128, v0", f"v_lshl_add_u32 v{vO1}, v{vO1}, 8, v{vT+2}",
          "s_lshr_b32 s66, s2, 1", "s_mul_i32 s66, s66, 20480", "s_and_b32 s31, s2, 1", "s_lshl_b32 s31, s31, 7", "s_add_u32 s66, s66, s31",
          f"v_cndmask_b32 v{vO3}, v{vT+3}, v{vO1}, vcc", "s_add_u32 s67, s66, 8192", "s_add_u32 s78, s66, 16384", f"s_mov_b32 s{sIT}, 0")
        rl = rest.lines
        for i in range(16):
            a(f"v_mfma_f32_32x32x16_bf16 {ar(16*i,16)}, {vr(vT+4,4)}, {vr(vT+4,4)}, 0", rl[4*i:4*i+4])
        assert len(rl) <= 64
        STPRE = os.environ.get('STPRE', '0') == '1'
        CALL = os.environ.get('CALL', '0') == '1'
        def xn_store(t):
            for i in range(3): t(f"ds_read_b128 {vr(XV+4*i,4)}, v{vTR} offset:{i*4096}")
            t(f"buffer_store_dword v{vAcc}, v{vKo}, s[{sWS}:{sWS+3}], 0 offen{SC}", "s_waitcnt lgkmcnt(0)",
              f"buffer_store_dwordx4 {vr(XV,4)}, v{vO1}, s[{sWS}:{sWS+3}], s66 offen{SC}",
              f"buffer_store_dwordx4 {vr(XV+4,4)}, v{vO1}, s[{sWS}:{sWS+3}], s67 offen{SC}",
              f"buffer_store_dwordx4 {vr(XV+8,4)}, v{vO3}, s[{sWS}:{sWS+3}], s78 offen{SC}")
        def ln_compute(t):
            pk = lambda op, d, x, y, extra="": f"{op} {vr(d,2)}, {vr(x,2)}, {vr(y,2)}{extra}"
            for i in range(12):
                t(f"v_lshlrev_b32 v{F+2*i}, 16, v{XV+i}", f"v_and_b32 v{F+2*i+1}, 0xffff0000, v{XV+i}")
            t(pk("v_pk_add_f32", vT, F, F + 2), pk("v_pk_add_f32", vT + 2, F + 4, F + 6))
            for i in range(8, 24, 4): t(pk("v_pk_add_f32", vT, vT, F + i), pk("v_pk_add_f32", vT + 2, vT + 2, F + i + 2))
            t(pk("v_pk_add_f32", vT, vT, vT + 2), f"v_add_f32 v{vS}, v{vT}, v{vT+1}")
            allreduce32_add(t, vS, vT2)
            t(f"v_mul_f32 v{vMean}, 0xbacccccd, v{vS}", f"v_mul_f32 v{vMean+1}, 0xbacccccd, v{vS}")
            for i in range(12):
                d = vT + 4 + 2 * (i % 4); acc = vT if i < 8 else vT + 2
                t(pk("v_pk_add_f32", d, F + 2 * i, vMean))
                if i in (0, 8): t(pk("v_pk_mul_f32", acc, d, d))
                else: t(f"v_pk_fma_f32 {vr(acc,2)}, {vr(d,2)}, {vr(d,2)}, {vr(acc,2)}")
            t(f"v_add_f32 v{vT+2}, v{vT+2}, v{vT+3}", f"v_add_f32 v{vS}, v{vT}, v{vT+1}", f"v_cndmask_b32 v{vT+2}, 0, v{vT+2}, s[{sM16}:{sM16+1}]",
              f"v_add_f32 v{vS}, v{vS}, v{vT+2}")
            allreduce32_add(t, vS, vT2)
            t(f"v_mul_f32 v{vS}, 0x3acccccd, v{vS}")
            bf16r(t, vS)
            t(f"v_add_f32 v{vS}, 0x3727c5ac, v{vS}")
            bf16r(t, vS)
            t(f"v_sqrt_f32 v{vS}, v{vS}")
            bf16r(t, vMean)
            bf16r(t, vS)
            t(f"v_rcp_f32 v{vT+12}, v{vS}", f"v_mov_b32 v{vMean+1}, v{vMean}", f"v_mov_b32 v{vT+13}, v{vT+12}")
            for i in range(12):
                f0 = F + 2 * i; w0 = vT + 2 * (i % 2)
                t(pk("v_pk_add_f32", f0, f0, vMean), f"v_lshlrev_b32 v{w0}, 16, v{WR+i}", f"v_cvt_pk_bf16_f32 v{f0+1}, v{f0}, v{f0+1}",
                  f"v_and_b32 v{w0+1}, 0xffff0000, v{WR+i}", f"v_lshlrev_b32 v{f0}, 16, v{f0+1}", f"v_and_b32 v{f0+1}, 0xffff0000, v{f0+1}",
                  pk("v_pk_mul_f32", f0, f0, vT + 12), f"v_cvt_pk_bf16_f32 v{XV+i}, v{f0}, v{f0+1}",
                  f"v_lshlrev_b32 v{f0}, 16, v{XV+i}", f"v_and_b32 v{f0+1}, 0xffff0000, v{XV+i}")
                if i == 0: t(pk("v_pk_mul_f32", vAcc, f0, w0))
                else: t(f"v_pk_fma_f32 {vr(vAcc,2)}, {vr(f0,2)}, {vr(w0,2)}, {vr(vAcc,2)}")
                if i % 4 == 3: t(f"ds_write_b128 v{vTW}, {vr(XV+i-3,4)} offset:{(i//4)*4096}")
            t(f"v_add_f32 v{vAcc}, v{vAcc}, v{vAcc+1}")
            allreduce32_add(t, vAcc, vT2)
            bf16r(t, vAcc)
            t(f"v_ashrrev_i32 v{vT2}, 31, v{vAcc}", f"v_or_b32 v{vT2}, 0x80000000, v{vT2}", f"v_xor_b32 v{vAcc}, v{vAcc}, v{vT2}",
              f"v_and_b32 v{vAcc}, 0xffff0000, v{vAcc}", f"v_or_b32 v{vAcc}, v{vAcc}, v{vRow}")
        stamp(a, 2)
        if LNPRE:
            a(f"s_waitcnt vmcnt({5 if T01 else 3})")
            ln_compute(a)
            a(stampv(9))
            if STPRE:
                a(f"buffer_store_dword v{vZero}, v{vFl}, s[{sWS}:{sWS+3}], 0 offen{SC}", "s_waitcnt lgkmcnt(0)", "s_barrier")
                xn_store(a)
            a(f"v_mov_b32 v{vT+3}, {BIG}")
            dma_stage()
        dma_stage()
        stamp(a, 3)
        a(self.cyc(62))
        a("s_waitcnt vmcnt(8) lgkmcnt(0)", "s_barrier")
        a(f"s_cmp_ge_u32 s{sW}, 2", f"s_cbranch_scc1 {name}_roleV")
        def reads(role, buf, off):
            CFr = (FB if role == "K" else FA) + 32 * buf
            WF = (FA if role == "K" else FB) + 32 * buf
            rc = [f"ds_read_b128 {vr(CFr+4*i,4)}, v{vCa} offset:{off + (i//2)*4096 + (i%2)*1024}" for i in range(8)]
            rw = [f"ds_read_b64_tr_b16 {vr(WF+4*cb+2*t,2)}, v{vWa+(cb&1)} offset:{off + t*1024 + (cb>>1)*256}" for cb in range(8) for t in range(2)]
            return rc, rw
        for role in ("K", "V"):
            if role == "V": a.label(f"{name}_roleV")
            rc, rw = reads(role, 0, 0)
            a(rc, rw)
            dma_stage()
            a(f"buffer_load_dword v231, v{vT+3}, s[{sC}:{sC+3}], 0 offen")
            dma_stage()
            if not T01: a(t1)
            a("s_waitcnt lgkmcnt(0)")
            a(".p2align 6")
            a.label(f"{name}_loop{role}")
            if DBG: a(f"s_mov_b32 m0, s{sIT}", stampv("m0"))
            for half in range(2):
                def acc(i, j):
                    n_ = (8 * (j // 2) + 2 * (i // 2) + j % 2) if role == "K" else (8 * (i // 2) + j)
                    return ar(((n_ + 24) % 32) * 8 + 4 * (i % 2), 4)
                mf = [f"{MF} {acc(i,j)}, {vr(FA+32*half+4*i,4)}, {vr(FB+32*half+4*j,4)}, {acc(i,j)}" for i in range(8) for j in range(8)]
                sc = {}; mem = {}; va = {}
                sc[0] = [f"s_waitcnt vmcnt({17 if half == 0 else 18})"]; sc[1] = ["s_barrier"]
                rc, rw = reads(role, 1 - half, 32768 if half == 0 else 0)
                preC, lc, preW, lw, post = dma_lines()
                ds = []
                for i in range(8): ds += [rw[2*i], rw[2*i+1], rc[i]]
                for i, x in enumerate(ds): mem[2 + 2*i] = [x]
                st_ = 2 if half == 0 else 6
                sc[4] = preC
                for j in range(4): mem[5 + st_*j] = [lc[j]]
                sc[4 + 4*st_] = preW
                for j in range(4): mem[5 + st_*(4+j)] = [lw[j]]
                for j, x in enumerate(post): sc[48 + j] = [x]
                if half == 0:
                    mem[21] = [f"buffer_load_dword v231, v{vTQ}, s[{sQ2}:{sQ2+3}], s74 offen{SC}"]
                    sc[22] = ["s_add_u32 s74, s74, s73"]
                    h = self.hook(f"s_bitcmp1_b32 s72, s{sIT}", 8)
                    sc[23] = [h[0]]; sc[24] = h[1]
                    va[52] = [f"v_xor_b32 v{vCa}, 0x10000, v{vCa}"]
                    va[53] = [f"v_xor_b32 v{vWa}, 0x10000, v{vWa}"]
                    va[54] = [f"v_xor_b32 v{vWa+1}, 0x10000, v{vWa+1}"]
                    sc[63] = ["s_waitcnt lgkmcnt(0)"]
                else:
                    h = self.hook(f"s_bitcmp1_b32 s76, s{sIT}", 8)
                    sc[53] = [h[0]]; sc[54] = h[1]
                    sc[57] = [f"s_add_u32 s{sIT}, s{sIT}, 1"]
                    sc[61] = [f"s_cmp_lt_u32 s{sIT}, 8"]
                    sc[62] = ["s_waitcnt lgkmcnt(0)"]
                    sc[63] = [f"s_cbranch_scc1 {name}_loop{role}"]
                a(weave(mf, sc, mem, va))
            if role == "K":
                a(f"s_mov_b32 s64, {KFO}", "s_mov_b32 s76, 0x3e0293ee", f"s_branch {name}_p1epi")
            else:
                a(f"s_mov_b32 s64, {VFO}", "s_mov_b32 s76, 1.0")
        t = Asm()
        yld = ["s_getpc_b64 s[8:9]", "s_setpc_b64 s[10:11]"]
        t.label(f"{name}_co1")
        if not LNPRE: t(xloads, yld)
        t(f"buffer_load_dword v232, v234, s[{sC}:{sC+3}], s29 offen")
        if not STPRE: t(f"buffer_store_dword v{vZero}, v{vFl}, s[{sWS}:{sWS+3}], 0 offen{SC}")
        if not LNPRE:
            t("s_waitcnt vmcnt(18)")
            ln_compute(t)
            t(yld)
        if not STPRE: xn_store(t)
        t(yld)
        t(f"s_mov_b32 s{sQ2}, s60", f"s_mov_b32 s{sQ2+1}, s61", f"s_mov_b32 s{sQ2+2}, s75", f"s_lshl_b32 s74, s{sI}, 2", f"s_add_u32 s74, s74, s{sW}",
          "s_lshl_b32 s74, s74, 16", f"s_mov_b32 s73, {256*8192}",
          f"v_mov_b32 v{vS}, {BIG}", f"v_mov_b32 v{vT2}, 1", f"v_writelane_b32 v{vS}, s77, 0", f"v_lshlrev_b32 v{vZero}, 2, v{vL}")
        if LNPRE: t(f"s_and_b32 s23, s{sH}, 3", f"s_cbranch_scc0 {name}_arr")
        t(yld)
        t.label(f"{name}_arr")
        t(f"buffer_store_byte v{vT2}, v{vS}, s[{sDb}:{sDb+3}], 0 offen{SC}", yld)
        t(f"buffer_load_dword v{vPoll}, v{vZero}, s[{sDb}:{sDb+3}], 0 offen{SC}", yld)
        t(f"s_mov_b32 s{sWt}, s60", f"s_mov_b32 s{sWt+1}, s61", f"s_mov_b32 s{sWt+2}, s75",
          f"s_lshr_b32 s{sOW}, s{sW}, 1", f"s_lshl_b32 s{sOW}, s{sOW}, 18", f"s_mov_b32 s{sStep}, {64*8192}",
          f"s_mov_b32 s{sC}, s18", f"s_mov_b32 s{sC+1}, s19", f"s_mov_b32 s{sC+2}, {2048*1280}", f"s_mov_b32 s{sOC}, 0", "s_movk_i32 s79, 1024",
          f"s_lshl_b32 s23, s{sI}, 2", f"s_add_u32 s23, s23, s{sW}", f"s_mul_i32 s23, s23, {2*20480}", f"v_add_u32 v{vCo}, s23, v{vL16}",
          f"s_sub_u32 s23, 15, s{sI}", "s_lshl_b32 s23, s23, 2", f"s_add_u32 s23, s23, s{sW}", f"s_mul_i32 s23, s23, {2*20480}", "s_sub_u32 s23, s23, 2048",
          f"v_add_u32 v{vCo+2}, s23, v{vL16}", f"v_add_u32 v{vCo+1}, {20480-1024}, v{vCo}", f"v_add_u32 v{vCo+3}, {20480-1024}, v{vCo+2}",
          )
        if os.environ.get("XT", "0") == "1":
            t(f"s_mov_b32 s{sQ2}, s18", f"s_mov_b32 s{sQ2+1}, s19", f"s_mov_b32 s{sQ2+2}, {2048*1280}", "s_movk_i32 s73, 8192",
              f"s_sub_u32 s23, 15, s{sI}", f"s_bitcmp1_b32 s{sH}, 1", f"s_cselect_b32 s23, s23, s{sI}", "s_lshl_b32 s23, s23, 2", f"s_add_u32 s23, s23, s{sW}",
              "s_lshl_b32 s23, s23, 1", f"s_and_b32 s31, s{sH}, 1", "s_add_u32 s23, s23, s31", "s_mul_i32 s74, s23, 20480", "s_add_u32 s74, s74, 4096",
              f"v_lshlrev_b32 v{vTQ}, 7, v{vL}")
        t("s_waitcnt vmcnt(8)")
        self.poll_check(t, "ln", vPoll, vZero, sDb, [f"v_cmp_ne_u32 vcc, 0x01010101, v{vPoll}"])
        t("s_setpc_b64 s[10:11]")
        self.tail += t.lines
        a.label(f"{name}_p1epi")
        stamp(a, 4)
        a(self.cyc(56))
        self.sWq = sWt; self.sXs = sC; self.sWoff = sOW; self.sXoff = sOC

    def kv_item(self, n, D):
        sc = []
        if n and n % 8 == 0: sc = [f"s_add_u32 s64, s64, {131072-4096}"]
        elif n % 8 == 4: sc = ["s_add_u32 s64, s64, 4096"]
        regs = [((n + 24) % 32) * 8 + r for r in range(8)]
        va = [f"v_accvgpr_read_b32 v{vT+k}, a{r}" for k, r in enumerate(regs)]
        va += [f"v_mul_f32 v{vT+k}, s76, v{vT+k}" for k in range(8)]
        va += [f"v_cvt_pk_bf16_f32 v{D+r}, v{vT+2*r}, v{vT+1+2*r}" for r in range(4)]
        z = []
        st = f"buffer_store_dwordx4 {vr(D,4)}, v{vL16}, s[{sWS}:{sWS+3}], s64 offen offset:{(n%4)*1024}{SC}"
        return sc, va, z, st

    def top8(self):
        name = self.name
        self.a(f"s_cmp_eq_u32 s2, {TOPWG}", f"s_cbranch_scc1 {name}_top8")
        self.a.label(f"{name}_notop")
        a = Asm()
        KEY = 96
        a.label(f"{name}_top8")
        a(f"s_cmp_lg_u32 s{sW}, 0", f"s_cbranch_scc1 {name}_notop")
        a(f"s_mov_b32 s23, {RKEY}", f"s_mov_b32 s31, {RKEY+4096}")
        for q in range(8):
            a(f"buffer_load_dwordx4 {vr(KEY+4*q,4)}, v{vL16}, s[{sWS}:{sWS+3}], s{23 if q < 4 else 31} offen offset:{(q%4)*1024}{SC}")
        vM, vPrev, vSel, vTok, vTmp, vRow, vR = vT + 4, vT + 5, vT + 6, vT + 7, vT + 8, vT + 9, vT + 10
        a(f"v_mov_b32 v{vPrev}, 0", f"v_mov_b32 v{vSel}, 0", f"v_and_b32 v{vTok}, 7, v{vL}", "s_mov_b32 s23, 0", "s_waitcnt vmcnt(0)")
        a.label(f"{name}_top")
        a(f"v_max3_u32 v{vM}, v{KEY}, v{KEY+1}, v{KEY+2}", f"v_max3_u32 v{vTmp}, v{KEY+3}, v{KEY+4}, v{KEY+5}")
        for q in range(6, 30, 4):
            a(f"v_max3_u32 v{vM}, v{vM}, v{KEY+q}, v{KEY+q+1}", f"v_max3_u32 v{vTmp}, v{vTmp}, v{KEY+q+2}, v{KEY+q+3}")
        a(f"v_max3_u32 v{vM}, v{vM}, v{KEY+30}, v{KEY+31}", f"v_max_u32 v{vM}, v{vM}, v{vTmp}")
        for m in ("quad_perm:[1,0,3,2]", "quad_perm:[2,3,0,1]", "row_half_mirror", "row_mirror"):
            a("s_nop 1", f"v_max_u32_dpp v{vM}, v{vM}, v{vM} {m} row_mask:0xf bank_mask:0xf")
        xreduce(a, "v_max_u32", vM, vTmp)
        a(f"v_add_u32 v{vPrev}, v{vPrev}, v{vM}", f"v_cmp_eq_u32 vcc, s23, v{vTok}")
        for q in range(32): a(f"v_sub_u32 v{KEY+q}, v{KEY+q}, v{vM}")
        a(f"v_cndmask_b32 v{vSel}, v{vSel}, v{vPrev}, vcc", "s_add_u32 s23, s23, 1", "s_cmp_lt_u32 s23, 8", f"s_cbranch_scc1 {name}_top")
        a(f"v_and_b32 v{vRow}, 0xffff, v{vSel}", f"v_sub_u32 v{vRow}, 0xffff, v{vRow}", f"v_and_b32 v{vRow}, 2047, v{vRow}")
        a(f"v_ashrrev_i32 v{vM}, 31, v{vSel}", f"v_not_b32 v{vM}, v{vM}", f"v_or_b32 v{vM}, 0x80000000, v{vM}",
          f"v_xor_b32 v{vR}, v{vSel}, v{vM}", f"v_and_b32 v{vR}, 0xffff0000, v{vR}",
          f"v_mul_f32 v{vR}, 0xbfb8aa3b, v{vR}", f"v_exp_f32 v{vR}, v{vR}", "s_nop 0", f"v_add_f32 v{vR}, 1.0, v{vR}",
          f"v_rcp_f32 v{vR}, v{vR}", "s_nop 0")
        bf16r(a, vR)
        a(f"v_lshlrev_b32 v{vM}, 2, v{vL}", f"v_add_u32 v{vM}, {SEL}, v{vM}", f"v_mov_b32 v{vPrev}, {BIG}",
          f"v_cmp_gt_u32 vcc, 16, v{vL}", f"v_add_u32 v{vRow}, 1, v{vRow}", f"v_or_b32 v{vR}, 1, v{vR}", f"v_cndmask_b32 v{vM}, v{vPrev}, v{vM}, vcc",
          f"v_cmp_gt_u32 vcc, 8, v{vL}", "s_nop 1", f"v_cndmask_b32 v{vR}, v{vR}, v{vRow}, vcc",
          f"buffer_store_dword v{vR}, v{vM}, s[{sWS}:{sWS+3}], 0 offen{SC}", f"s_branch {name}_notop")
        self.tail += a.lines

    def phase2(self):
        a = self.a; name = self.name
        sWq, sXs, sWoff, sXoff = self.sWq, self.sXs, self.sWoff, self.sXoff
        XB = 224; vXa = 14; sW4 = 24
        vm = VM()
        vm.issue("X1", 4); vm.issue("W1", 4); vm.issue("X2", 4); vm.issue("W2", 4); vm.issue("T"); vm.issue("X3", 4); vm.issue("W3", 4)
        def wreads(buf, off):
            return [f"ds_read_b64_tr_b16 {vr(Q+32*buf+4*cb+2*t,2)}, v{vWa+(cb&1)} offset:{off + t*1024 + (cb>>1)*256}" for cb in range(8) for t in range(2)]
        def xreads(buf, off):
            return [f"ds_read_b128 {vr(XB+16*buf+4*qb,4)}, v{vXa} offset:{off + qb*1024}" for qb in range(4)]
        a(f"s_lshr_b32 s23, s{sW}, 1", "s_lshl_b32 s23, s23, 13", f"v_subrev_u32 v{vWa}, s23, v{vWa}", f"v_subrev_u32 v{vWa+1}, s23, v{vWa+1}",
          f"s_lshl_b32 s{sW4}, s{sW}, 12", f"v_add_u32 v{vXa}, s{sW4}, v{vL16}")
        a(wreads(0, 0), f"s_waitcnt vmcnt({vm.need('T')})", xreads(0, 0))
        a(f"s_lshl_b32 s23, s{sH}, 19", "s_add_u32 s64, s64, s23", f"s_lshl_b32 s23, s{sI}, 14", "s_add_u32 s64, s64, s23",
          f"s_and_b32 s23, s{sW}, 1", "s_lshl_b32 s23, s23, 13", "s_add_u32 s64, s64, s23")
        a(f"s_lshl_b32 s23, s{sH}, 19", f"s_add_u32 s23, s23, {KFO}", "s_add_u32 s6, s18, s23", "s_addc_u32 s7, s19, 0",
          f"s_add_u32 s8, s6, {VFO-KFO}", "s_addc_u32 s9, s7, 0", f"s_sub_u32 s23, 16, s{sI}", "s_lshl_b32 s23, s23, 15")
        srd(a, sK, "s6", "s7", "s23")
        srd(a, sV, "s8", "s9", "s23")
        a(f"s_lshl_b32 s30, s{sH}, 7", f"s_add_u32 s30, s30, {KVF}", f"s_mov_b32 s{sThr}, 0x47800000",
          f"s_cmp_eq_u32 s{sW}, 0", f"s_cselect_b32 s65, s{sKVa}, {BIG}")
        a(f"s_waitcnt vmcnt({vm.need('X1')}) lgkmcnt(0)")
        stamp(a, 6)
        per = [int(c) for c in os.environ.get("PER", "22111111111122233330")]
        per[0] += 32 - sum(per)
        assert sum(per) == 32 and len(per) == 20 and per[19] == 0
        last8 = min(k for k in range(20) if sum(per[:k+1]) >= 8)
        SFLAG = last8 + 2 if last8 % 2 else last8 + 3
        SPOLL = int(os.environ.get('SPOLL', '16'))
        misc = [f"v_and_b32 v11, 15, v{vL}", f"v_lshrrev_b32 v10, 4, v{vL}", "v_lshlrev_b32 v10, 2, v10", "v_sub_u32 v11, v11, v10"]
        misc += [f"v_cmp_le_i32 s[{sMask+2*r}:{sMask+2*r+1}], {r}, v11" for r in range(4)]
        misc += [f"v_and_b32 v{vPo}, 7, v{vL}", f"v_lshlrev_b32 v{vPo}, 2, v{vPo}", f"v_add_u32 v{vPo}, s30, v{vPo}"]
        flagst = f"buffer_store_dword v{vWa}, off, s[{sWS}:{sWS+3}], s65{SC}"
        pollld = f"buffer_load_dword v{vPoll}, v{vPo}, s[{sWS}:{sWS+3}], 0 offen{SC}"
        it = 0; zpool = []
        for s_ in range(20):
            buf = s_ & 1
            C = lambda d: "0" if s_ == 0 else vr(d, 4)
            mf = [f"{MF} {vr(QACC+(db*4+qb)*4,4)}, {vr(Q+32*buf+4*db,4)}, {vr(XB+16*buf+4*qb,4)}, {C(QACC+(db*4+qb)*4)}" for qb in range(4) for db in range(8)]
            sc = {g: [] for g in range(32)}; mem = {g: [] for g in range(32)}; va = {g: [] for g in range(32)}
            tags = {g: [] for g in range(32)}
            if s_ & 1: sc[0].append("s_barrier")
            vpos = [3, 8, 13, 18, 23, 28]
            if s_ < 19:
                off = [8192, 32768, 32768 + 8192, 0][s_ % 4]
                rd = wreads(1 - buf, off); xr = xreads(1 - buf, 32768 if s_ % 2 == 0 else 0)
                ds = rd[:8] + xr[:2] + rd[8:] + xr[2:]
                dpos = [g for g in range(1, 27) if g not in vpos][:20]
                for p_, x in zip(dpos, ds): mem[p_].append(x)
            if s_ + 4 < 20:
                sc[2].append(f"s_add_u32 m0, s{sW4}, {(s_%4)*32768}")
                for j in range(4):
                    mem[vpos[j]].append(f"buffer_load_dwordx4 v{vCo+j}, s[{sXs}:{sXs+3}], s{sXoff} offen offset:{j*1024}{SC} lds"); tags[vpos[j]].append(f"X{s_+4}")
                sc[19].append(f"s_add_u32 s{sXoff}, s{sXoff}, 1024")
            stage = (s_ + 1) // 2 + 3
            if s_ >= 1 and stage < 10:
                sc[22].append(f"s_add_u32 m0, s{sW4}, {(stage%4)*32768+16384}")
                for jj in range(2):
                    j = jj if s_ & 1 else 2 + jj
                    mem[vpos[4+jj]].append(f"buffer_load_dwordx4 v{vWo+j}, s[{sWq}:{sWq+3}], s{sWoff} offen offset:{j*1024} lds"); tags[vpos[4+jj]].append(f"W{stage}")
                if not s_ & 1: sc[29].append(f"s_add_u32 s{sWoff}, s{sWoff}, {64*8192}")
            if s_ % 4 == 2:
                va[29].append(f"v_xor_b32 v{vWa}, 0x10000, v{vWa}"); va[30].append(f"v_xor_b32 v{vWa+1}, 0x10000, v{vWa+1}")
            if s_ % 2 == 0: va[27].append(f"v_xor_b32 v{vXa}, 0x10000, v{vXa}")
            if s_ == SFLAG:
                mem[0].append(flagst); tags[0].append("flag")
            if s_ == SPOLL:
                mem[3].append(pollld); tags[3].append("poll")
            toks = []
            for k in range(per[s_]):
                D = vT + 8 + 4 * (it % 2)
                isc, iva, z, ist = self.kv_item(it, D)
                toks += [("s", x) for x in isc] + [("v", x) for x in iva] + [("st" if it >= 8 else "st0", ist)]; it += 1
                zpool += z
            if s_ == 13: toks += [("v", x) for x in misc]
            fs = []
            if s_ in (14, 15):
                for q in (range(3) if s_ == 14 else range(3, 5)):
                    toks += [("v", x) for x in [f"v_add_u32 v9, {64*q}, v{vL}", "v_mul_u32_u24 v10, 6554, v9", "v_lshrrev_b32 v10, 16, v10",
                             f"v_mul_u32_u24 v10, {1280-160}, v10", "v_lshl_add_u32 v10, v9, 4, v10", f"v_accvgpr_write_b32 a{248+q}, v10"]]
            if s_ == 16:
                fs = [f"s_mul_i32 s34, s{sW}, 5120", f"s_add_u32 s34, s34, {SPARE}"] + self.co_setup()[:-3]
            if s_ == 17:
                fs = [f"s_and_b32 s23, s{sW}, 1", "s_lshl_b32 s23, s23, 12", f"s_cmp_lt_u32 s{sW}, 2\ns_cselect_b32 s{sKm}, {131072-24576}, 0",
                         f"s_add_u32 s{sKm}, s{sKm}, s23", f"s_lshl_b32 s{sKo}, s{sW}, 12", f"s_mov_b32 s{sVo}, s{sKo}", f"s_add_u32 s{sVm}, s{sVo}, {32768+16384}",
                         "s_load_dwordx4 s[4:7], s[0:1], 64", "s_load_dwordx2 s[60:61], s[0:1], 80",
                         f"s_add_u32 s23, s{sW}, 1", "s_lshr_b32 s23, s23, 1", f"s_lshl_b32 s{sCnt}, s{sI}, 1", f"s_add_u32 s{sCnt}, s{sCnt}, s23",
                         f"s_lshl_b32 s23, s{sI}, 2", f"s_sub_u32 s{sNSS}, 28, s23", f"s_and_b32 s23, s{sW}, 1", f"s_add_u32 s{sNSS}, s{sNSS}, s23"]
                toks += [("v", x) for x in [f"v_lshrrev_b32 v6, 2, v{vL}", "v_mul_u32_u24 v6, 160, v6", f"v_and_b32 v9, 3, v{vL}",
                         "v_lshl_add_u32 v6, v9, 3, v6", "v_add_u32 v6, s34, v6", f"v_mov_b32 v{vKV}, v{vL16}", f"v_mov_b32 v{vNI}, 0xff800000",
                         f"v_add_u32 v9, {3*32768+8192}, v{vL16}"]]
            if s_ == 18:
                cs = self.co_setup()[-3:]
                fs = [f"s_cmp_ge_u32 s{sW}, 2\ns_cselect_b32 s4, s6, s4\ns_cselect_b32 s5, s7, s5", f"s_mov_b32 s62, {1728*1280}", "s_mov_b32 s63, 0x20000",
                      "s_mov_b64 s[56:57], s[52:53]", "s_mov_b32 s58, s54", "s_mov_b64 s[52:53], s[4:5]", f"s_mov_b32 s54, {640*3456}", cs[0], cs[1] + "\n" + cs[2]]
            for q, x in enumerate(fs): sc[1 + q].append(x)
            if s_ == 19:
                tmp = Asm()
                self.poll_check(tmp, "kv", vPoll, vPo, sWS, [f"v_cmp_eq_u32 vcc, 0, v{vPoll}"])
                va[0].append(tmp.lines[0]); sc[1] += tmp.lines[1:]
                for p_ in range(3):
                    g0 = 2 + 10 * p_
                    sc[g0].append(f"s_mov_b32 m0, s{sKm}")
                    for j in range(4): mem[g0+1+2*j].append(f"buffer_load_dwordx4 v{vL16}, s[{sK}:{sK+3}], s{sKo} offen offset:{j*1024}{SC} lds")
                    sc[g0+2].append(f"s_add_u32 s{sKm}, s{sKm}, 32768"); sc[g0+3].append(f"s_and_b32 s{sKm}, s{sKm}, 0x1ffff")
                    sc[g0+8].append(f"s_add_u32 s{sKo}, s{sKo}, 16384")
                def cvq(X, qb):
                    return [f"v_cvt_pk_bf16_f32 v{Q+32*X+8*ks+4*qb+2*hh+e}, v{QACC+((2*ks+hh)*4+2*X+qb)*4+2*e}, v{QACC+((2*ks+hh)*4+2*X+qb)*4+2*e+1}"
                            for ks in range(4) for hh in range(2) for e in range(2)]
                for q in range(4): va[2 + 2 * q].append(f"v_mov_b32 v{LS+q}, 0")
                for q, x in enumerate(cvq(0, 0)): va[10 + q * 10 // 16].append(x)
                for q, x in enumerate(cvq(0, 1)): va[20 + q * 11 // 16].append(x)
            cap = [max(0, 2 - len(mem[g]) - len(va[g])) for g in range(31)]
            nv = sum(1 for t_ in toks if t_[0] != "s")
            nz = len(zpool) if s_ == 19 else min(len(zpool), max(0, sum(cap) - nv - per[s_] - 1))
            toks += [("v", x) for x in zpool[:nz]]; zpool = zpool[nz:]
            nv += nz
            extra = max(0, nv - sum(cap))
            while True:
                cp = list(cap); plc = []; nsc = {g: len(sc[g]) for g in range(32)}
                for q in range(extra): cp[(q * 30 // extra) % 30] += 1
                g = 0; smin = 0; ok = True
                for kind, x in toks:
                    if kind == "s":
                        gg = max(g, smin)
                        while gg < 30 and nsc[gg] and gg < max(g, smin) + 3: gg += 1
                        gg = min(gg, 30); nsc[gg] += 1
                        plc.append((sc, gg, x, None)); smin = gg + 1
                        continue
                    if kind != "v": g = max(g + 1, smin - 1)
                    while g < 31 and cp[g] == 0: g += 1
                    if g >= 31: ok = False; break
                    cp[g] -= 1
                    if kind == "v": plc.append((va, g, x, None))
                    else: plc.append((mem, g, x, kind)); smin = g + 1
                if ok: break
                extra += 1
            for (d_, g, x, kind) in plc:
                d_[g].append(x)
                if kind: tags[g].append(kind)
            for g in range(31):
                for t_ in tags[g]: vm.issue(t_)
            if s_ < 19:
                need = []
                if s_ + 2 < 20: need.append(f"X{s_+2}")
                if (s_ + 1) & 1:
                    st1 = (s_ + 2) // 2
                    if st1 < 10: need.append(f"W{st1}")
                if s_ + 1 == SFLAG: need.append("st0")
                if s_ == 18: need.append("poll")
                sc[31].append(f"s_waitcnt vmcnt({vm.need(*need)}) lgkmcnt(0)" if need else "s_waitcnt lgkmcnt(0)")
            for t_ in tags[31]: vm.issue(t_)
            if os.environ.get("QST"): a(stampv(30 + s_))
            a(weave(mf, sc, mem, va))
        assert it == 32 and not zpool
        stamp(a, 5); stamp(a, 7)
        a(self.cyc(57))
        cv = cvq(1, 0) + cvq(1, 1)
        for p_ in range(2):
            a(f"s_mov_b32 m0, s{sVm}", "s_nop 0")
            for j in range(4):
                a(f"v_mfma_f32_32x32x16_bf16 {ar(O+16*(4*p_+j),16)}, {vr(LS,4)}, {vr(LS,4)}, 0",
                  f"buffer_load_dwordx4 v{vL16}, s[{sV}:{sV+3}], s{sVo} offen offset:{j*1024}{SC} lds", cv[:4]); cv = cv[4:]
            a(f"s_add_u32 s{sVo}, s{sVo}, 16384", f"s_add_u32 s{sVm}, s{sVm}, 32768", f"s_and_b32 s{sVm}, s{sVm}, 0x1ffff")
        assert not cv
        a("s_waitcnt vmcnt(12)", "s_barrier")
        a([f"ds_read_b128 {ar(KF+4*i,4)}, v9 offset:{i*1024}" for i in range(8)])
        a(f"buffer_store_dword v{vNI}, off, s[{sWS}:{sWS+3}], s65 offset:32{SC}", f"v_add_u32 v13, 32, v{vPo}", "v_mov_b32 v14, 0")
        self.top8()
        a("s_waitcnt lgkmcnt(4)")

    def wf_addr(self, d):
        return [f"s_and_b32 s{d}, s2, 1", f"s_lshl_b32 s{d}, s{d}, 2", f"s_add_u32 s{d}, s{d}, s{sW}", f"s_lshl_b32 s{d}, s{d}, 7",
                "s_lshr_b32 s31, s2, 1", f"s_add_u32 s{d}, s{d}, s31", f"s_lshl_b32 s{d}, s{d}, 2", f"s_add_u32 s{d}, s{d}, {WF}"]
    def yf_addr(self, d):
        return [f"s_sub_u32 s{d}, s2, {FFN0}", f"s_lshl_b32 s31, s{sW}, 6", f"s_add_u32 s{d}, s{d}, s31", f"s_lshl_b32 s{d}, s{d}, 2", f"s_add_u32 s{d}, s{d}, {YF}"]
    def flag_store(self, addr_lines, wait):
        return addr_lines + [wait, f"buffer_store_dword v{vNI}, off, s[{sWS}:{sWS+3}], s23{SC}"]

    def co_setup(self):
        name = self.name
        return (["s_mov_b32 s101, 24"] if DBG else []) + [f"s_and_b32 s32, s{sH}, 3", "s_min_u32 s32, s32, 2", "s_add_u32 s32, s32, 5", "s_lshl_b32 s32, s32, 14",
          "s_mov_b32 s9, -1", "s_sub_u32 s23, s2, 64", "s_cmp_lt_u32 s23, 96\ns_cselect_b32 s9, 0, s9", "s_cmp_ge_u32 s2, 224\ns_cselect_b32 s9, 0, s9",
          "s_and_b32 s32, s32, s9", f"s_sub_u32 s23, s2, {FFN0}", f"s_cmp_lt_u32 s23, {FFN1-FFN0}\ns_cselect_b32 s32, {6*16384}, s32",
          "s_mov_b32 s67, s2", "s_mov_b32 s8, 0", f"s_mov_b32 s{k2.sRing}, 0", "s_mov_b32 s11, 0", "s_mov_b32 s12, 0",
          f"s_lshl_b32 s15, s{sI}, 1", "s_add_u32 s23, s15, 6", f"s_sub_u32 s15, {32-self.U}, s15", "s_max_u32 s15, s15, s23", "s_lshl_b32 s15, s15, 14",
          f"s_getpc_b64 s[36:37]\n{name}_copc:", f"s_add_u32 s36, s36, {name}_co-{name}_copc-4", "s_addc_u32 s37, s37, 0"]

    def cyc(self, lane):
        if not (DBG and os.environ.get("CYC")): return []
        return ["s_memtime s[98:99]", "s_waitcnt lgkmcnt(0)", f"v_writelane_b32 v7, s98, {lane}"]

    def hook(self, cond=None, R=36):
        k = self.nhook; self.nhook += 1
        n = self.name
        dbg = ["s_memrealtime s[98:99]", "s_waitcnt lgkmcnt(0)", "s_mov_b32 s100, s98"] if (DBG and os.environ.get("REC")) else []
        self.tail += [f"{n}_hk{k}:"] + dbg + [f"s_getpc_b64 s[{R+2}:{R+3}]", f"{n}_hp{k}:", f"s_add_u32 s{R}, s{R}, 4", f"s_addc_u32 s{R+1}, s{R+1}, 0",
                      f"s_sub_u32 s{R+2}, s{R+2}, {n}_hp{k}-{n}_hb{k}", f"s_subb_u32 s{R+3}, s{R+3}, 0", f"s_setpc_b64 s[{R}:{R+1}]"]
        return [cond or f"s_cmp_ge_u32 s{sKo}, s32", [f"s_cbranch_scc1 {n}_hk{k}", f"{n}_hb{k}:"]]

    def coroutine(self):
        name = self.name
        a = Asm()
        cnt = [0]
        def rec():
            if DBG and os.environ.get("REC"): a("s_memrealtime s[98:99]", "s_waitcnt lgkmcnt(0)", "s_sub_u32 s98, s98, s100", "s_lshl_b32 s98, s98, 16", "s_and_b32 s100, s100, 0xffff",
                      "s_or_b32 s98, s98, s100", "s_mov_b32 m0, s101", "s_add_u32 s101, s101, 1", "v_writelane_b32 v7, s98, m0")
        def yld(n=1):
            for _ in range(n):
                rec()
                a("s_getpc_b64 s[36:37]", "s_setpc_b64 s[38:39]")
        G = 232; FW = 192; FX = 212; Y = 236
        def wo_reads():
            a("s_waitcnt vmcnt(8)")
            for cb in range(5):
                for tt in range(2): a(f"ds_read_b64_tr_b16 {vr(232+4*cb+2*tt,2)}, v6 offset:{tt*16*160 + cb*32}")
        def wo_stores():
            a("s_add_u32 s31, s30, 4096")
            for cb in range(5):
                a(f"buffer_store_dwordx4 {vr(232+4*cb,4)}, v{vL16}, s[{sWS}:{sWS+3}], s{30 if cb < 4 else 31} offen offset:{(cb%4)*1024}{SC}")
        a.label(f"{name}_co")
        a("s_sub_u32 s14, s2, 64", "s_cmp_lt_u32 s14, 96", f"s_cbranch_scc1 {name}_coT",
          "s_sub_u32 s14, s2, 128", "s_sub_u32 s23, s2, 224", f"s_cmp_lt_u32 s23, {TOPWG-224}", f"s_cbranch_scc1 {name}_coT")
        self.poll_check(a, "kv2", 14, 13, sWS, ["v_cmp_eq_u32 vcc, 0, v14"])
        a(f"s_sub_u32 s14, s2, {FFN0}", f"s_cmp_lt_u32 s14, {FFN1-FFN0}", f"s_cbranch_scc1 {name}_coF",
          f"s_cmp_eq_u32 s2, {TOPWG}", f"s_cbranch_scc1 {name}_coW", f"s_branch {name}_coO")
        a.label(f"{name}_coT")
        a(f"v_min_u32 v8, 16, v{vL}", "v_lshlrev_b32 v8, 7, v8", "s_lshl_b32 s10, s14, 1", f"s_and_b32 s31, s{sW}, 1", "s_add_u32 s10, s10, s31",
          f"s_mul_i32 s10, s10, {17*128}", "s_lshl_b32 s35, s14, 2", f"s_add_u32 s35, s35, s{sW}", f"s_mul_i32 s35, s35, {34*128}")
        for k in range(4):
            if k == 2: self.poll_check(a, "kv3", 14, 13, sWS, ["v_cmp_eq_u32 vcc, 0, v14"])
            a("buffer_load_dword v255, v8, s[52:55], s10 offen", f"s_add_u32 s10, s10, {160*3456}")
            if k >= 2: a(f"buffer_load_dword v255, v8, s[60:63], s35 offen offset:{(k-2)*17*128}")
            if k == 3: a("s_mov_b32 s9, -1", f"s_and_b32 s32, s{sH}, 3", "s_lshr_b32 s32, s32, 1", "s_add_u32 s32, s32, 6", "s_lshl_b32 s32, s32, 14")
            yld()
        a.label(f"{name}_coO")
        a("s_and_b32 s23, s67, 1", "s_lshl_b32 s23, s23, 2", f"s_add_u32 s23, s23, s{sW}", "s_lshr_b32 s31, s67, 1",
          f"s_mul_i32 s33, s23, {-4*self.ROT}", "s_add_u32 s33, s33, s31", "s_and_b32 s33, s33, 31", "s_andn2_b32 s30, s31, 31", "s_add_u32 s33, s33, s30",
          "s_lshl_b32 s30, s23, 7", "s_add_u32 s30, s30, s33", f"s_mul_i32 s33, s31, {32*1280}", "s_mul_i32 s23, s23, 160", "s_add_u32 s33, s33, s23")
        for q in range(5):
            a(f"s_add_u32 m0, s34, {q*1024}", f"v_accvgpr_read_b32 v{vT+3}, a{248+q}", f"buffer_load_dwordx4 v{vT+3}, s[56:59], s33 offen lds")
        a(f"s_add_u32 s32, s{sKo}, {2*16384}", "s_mov_b32 s9, -1", "s_lshl_b32 s10, s30, 2", "s_mul_i32 s30, s30, 5120", f"s_add_u32 s30, s30, {WOF}")
        yld()
        wo_reads()
        a("s_waitcnt lgkmcnt(0)")
        wo_stores()
        yld()
        a(self.flag_store([f"s_add_u32 s23, s10, {WF}"], "s_waitcnt vmcnt(8)"),
          "s_cmp_lg_u32 s67, s2", f"s_cbranch_scc1 {name}_coW",
          "s_sub_u32 s23, s2, 64", "s_sub_u32 s31, s2, 192", "s_cmp_lt_u32 s23, 32", "s_cselect_b32 s23, s23, s31",
          f"s_cmp_gt_u32 s23, {FFN1-FFN0}", f"s_cbranch_scc1 {name}_coW",
          f"s_add_u32 s67, s23, {FFN0}", f"s_cmp_eq_u32 s67, {FFN1}", f"s_cselect_b32 s67, {TOPWG}, s67", f"s_branch {name}_coO")
        FV = self.FV
        a.label(f"{name}_coF")
        if os.environ.get("NOFFN"): a(self.flag_store(self.yf_addr(23), "s_nop 0"), f"s_branch {name}_coW")
        a(f"v_and_b32 v{vT}, 7, v{vL}", f"v_lshlrev_b32 v252, 2, v{vT}", f"v_add_u32 v252, {SEL}, v252",
          f"buffer_load_dword v15, v252, s[{sWS}:{sWS+3}], 0 offen{SC}")
        a("s_lshl_b32 s33, s14, 6", f"s_and_b32 s31, s{sW}, 1", "s_lshl_b32 s31, s31, 5", "s_add_u32 s33, s33, s31",
          "s_mul_i32 s35, s14, 40960", f"s_mul_i32 s31, s{sW}, 320", "s_add_u32 s35, s35, s31",
          "s_mul_i32 s10, s14, 20480", f"s_mul_i32 s31, s{sW}, 640", "s_add_u32 s10, s10, s31", f"s_add_u32 s10, s10, {YP}")
        a(f"v_lshrrev_b32 v{vT+1}, 1, v{vL}", f"v_mul_u32_u24 v{FV[0]}, 3456, v{vT+1}", f"v_and_b32 v{vT+1}, 1, v{vL}", f"v_lshl_add_u32 v{FV[0]}, v{vT+1}, 4, v{FV[0]}")
        for q in range(1, 5): a(f"v_add_u32 v{FV[q]}, {q*32*3456 - (q%4)*1024}, v{FV[0]}")
        a(f"v_lshrrev_b32 v{vT+1}, 4, v{vL}",
          f"v_lshrrev_b32 v{vT+2}, 2, v{vL}", f"v_lshl_add_u32 v{vT+2}, v{vT+1}, 2, v{vT+2}",
          f"v_lshlrev_b32 v{vT+2}, 5, v{vT+2}", f"v_and_b32 v{vT+3}, 3, v{vL}", f"v_lshl_add_u32 v9, v{vT+3}, 3, v{vT+2}", "v_add_u32 v9, s34, v9",
          f"v_lshlrev_b32 v10, 4, v{vT}", f"v_lshl_add_u32 v10, v{vT+1}, 7, v10", f"v_add_u32 v10, {XS}, v10", "s_mov_b32 s8, -1")
        for k in range(4): a(f"v_mov_b32 v{G+k}, 0")
        yld()
        a("s_waitcnt vmcnt(8)")
        self.poll_check(a, "sel", 15, 252, sWS, ["v_cmp_eq_u32 vcc, 0, v15"])
        a(f"v_add_u32 v{vT+2}, -1, v15", f"v_and_b32 v{vT+2}, 2047, v{vT+2}", f"v_lshrrev_b32 v{vT+3}, 4, v{vT+2}", f"v_mul_u32_u24 v{vT+3}, 20480, v{vT+3}",
          f"v_and_b32 v{vT+2}, 15, v{vT+2}", f"v_lshl_add_u32 v{vT+3}, v{vT+2}, 4, v{vT+3}",
          f"v_lshrrev_b32 v{vT+2}, 3, v{vL}", f"v_lshl_add_u32 v{vT+3}, v{vT+2}, 8, v{vT+3}",
          f"s_lshl_b32 s23, s{sW}, 11", f"s_lshl_b32 s31, s{sW}, 10", f"s_add_u32 s31, s31, {XS}", "s_mov_b32 s14, 4")
        for k in range(3):
            a("s_mov_b32 m0, s31", "s_add_u32 s31, s31, 4096", f"buffer_load_dwordx4 v{vT+3}, s[{sWS}:{sWS+3}], s23 offen{SC} lds",
              "s_add_u32 s23, s23, 8192")
        yld()
        a(f"s_branch {name}_coG1")
        gm = [f"{MF} {vr(G,4)}, {ar(FW+4*q,4)}, {ar(FX+4*q,4)}, {vr(G,4)}" for q in range(5)]
        a.label(f"{name}_coG")
        yld()
        a(gm)
        a.label(f"{name}_coG1")
        a("s_waitcnt vmcnt(4)")
        for q in range(5):
            for t in range(2): a(f"ds_read_b64_tr_b16 {ar(FW+4*q+2*t,2)}, v9 offset:{q*1024+t*128}")
            a(f"ds_read_b128 {ar(FX+4*q,4)}, v10 offset:{q*512}")
        a("v_add_u32 v10, 2560, v10", f"s_add_u32 s33, s33, {160*3456}", "s_sub_u32 s14, s14, 1", "s_cmp_lg_u32 s14, 0", f"s_cbranch_scc1 {name}_coG")
        for q in range(5): a(f"v_accvgpr_read_b32 v{FV[q]}, a{248+q}")
        for q in range(1, 4): a(f"v_subrev_u32 v{FV[q]}, {q*1024}, v{FV[q]}")
        a("s_mov_b32 s52, s60", "s_mov_b32 s53, s61", "s_mov_b32 s33, s35",
          f"s_lshl_b32 s23, s{sW}, 9", f"v_add_u32 v{vT}, s23, v10",
          f"v_and_b32 v{vT+1}, 7, v{vL}", f"v_mul_u32_u24 v9, 2560, v{vT+1}", f"v_lshrrev_b32 v{vT+1}, 4, v{vL}", f"v_lshl_add_u32 v9, v{vT+1}, 4, v9",
          f"v_and_b32 v{vT+1}, 8, v{vL}", f"v_lshl_add_u32 v9, v{vT+1}, 27, v9", "s_waitcnt lgkmcnt(0)")
        a(gm, "s_nop 7", f"ds_write_b128 v{vT}, {vr(G,4)}")
        yld()
        GU = 236
        def dreads():
            a("s_waitcnt vmcnt(4)")
            for cb in range(5):
                for t in range(2): a(f"ds_read_b64_tr_b16 {ar(FW+4*cb+2*t,2)}, v6 offset:{t*2560+cb*32}")
        def dmm():
            a("s_waitcnt lgkmcnt(0)")
            for cb in range(5): a(f"{MF} {vr(Y+4*cb,4)}, {ar(FW+4*cb,4)}, {vr(G,4)}, 0")
            a("s_nop 3")
            for cb in range(5): a(f"buffer_store_dwordx4 {vr(Y+4*cb,4)}, v9, s[{sWS}:{sWS+3}], s10 offen offset:{cb*64}{SC}")
            a("s_add_u32 s10, s10, 320")
        for k in range(4): a(f"ds_read_b128 {vr(GU+4*k,4)}, v10 offset:{k*512}")
        dreads()
        a("s_add_u32 s33, s33, 160", "s_mov_b32 s8, 0", "s_waitcnt lgkmcnt(10)")
        for k in range(8):
            a(f"v_cvt_pk_bf16_f32 v{GU+k}, v{GU+k}, v{GU+8+k}")
        for k in range(8): a(f"v_lshlrev_b32 v{GU+8+k}, 16, v{GU+k}")
        for k in range(8): a(f"v_mul_f32 v{vT+k}, 0xbfb8aa3b, v{GU+8+k}")
        for k in range(8): a(f"v_exp_f32 v{vT+k}, v{vT+k}")
        for k in range(8): a(f"v_add_f32 v{vT+k}, 1.0, v{vT+k}")
        for k in range(8): a(f"v_rcp_f32 v{vT+k}, v{vT+k}")
        for k in range(8): a(f"v_and_b32 v{GU+k}, 0xffff0000, v{GU+k}")
        for k in range(4): a(f"v_pk_mul_f32 {vr(GU+8+2*k,2)}, {vr(GU+8+2*k,2)}, {vr(vT+2*k,2)}")
        for k in range(4): a(f"v_cvt_pk_bf16_f32 v{vT+k}, v{GU+8+2*k}, v{GU+9+2*k}")
        for k in range(4): a(f"v_lshlrev_b32 v{GU+8+2*k}, 16, v{vT+k}", f"v_and_b32 v{GU+9+2*k}, 0xffff0000, v{vT+k}")
        for k in range(4): a(f"v_pk_mul_f32 {vr(GU+2*k,2)}, {vr(GU+2*k,2)}, {vr(GU+8+2*k,2)}")
        for k in range(4): a(f"v_cvt_pk_bf16_f32 v{G+k}, v{GU+2*k}, v{GU+2*k+1}")
        a("s_nop 0")
        dmm()
        yld()
        dreads()
        dmm()
        yld()
        a(self.flag_store(self.yf_addr(23), "s_waitcnt vmcnt(8)"))
        a.label(f"{name}_coW")
        a("s_mov_b32 s12, 1", "s_mov_b32 s9, -1", "s_cmp_lg_u32 s11, 0", "s_cselect_b32 s32, s15, -1")
        yld()
        a(f"s_lshl_b32 s23, s{sI}, 2", f"s_add_u32 s23, s23, s{sW}", f"s_mul_i32 s13, s23, {32*5120}", f"s_add_u32 s13, s13, {WOF}",
          "s_lshl_b32 s23, s23, 7", f"s_add_u32 s23, s23, {WF}", f"v_and_b32 v9, 31, v{vL}", "v_lshl_add_u32 v9, v9, 2, s23",
          f"v_and_b32 v10, 15, v{vL}", "v_lshlrev_b32 v10, 2, v10", f"v_add_u32 v10, {SEL}, v10",
          f"buffer_load_dword v8, v9, s[{sWS}:{sWS+3}], 0 offen{SC}", f"buffer_load_dword v15, v10, s[{sWS}:{sWS+3}], 0 offen{SC}")
        self.ctx_epi(a, 0, [32, 44, 96, 108])
        a(f"s_mov_b32 s28, s{sK+2}", "s_add_u32 s30, s28, 65536", f"s_lshl_b32 s23, s{sW}, 12", "s_add_u32 s23, s23, s28",
          f"s_add_u32 s31, s13, {self.FL*1024}", "s_sub_u32 s31, s31, s23", "s_add_u32 s4, s18, s31", "s_addc_u32 s5, s19, 0",
          "s_add_u32 s6, s4, 4096", "s_addc_u32 s7, s5, 0")
        a("s_waitcnt vmcnt(8)")
        self.poll_check(a, "wof", 8, 9, sWS, ["v_cmp_eq_u32 vcc, 0, v8"])
        self.poll_check(a, "sel4", 15, 10, sWS, ["v_cmp_eq_u32 vcc, 0, v15"])
        a(f"s_lshl_b32 s31, s{sH}, 6", "s_add_u32 s31, s31, 1", f"v_subrev_u32 v{vT}, s31, v15", f"v_cmp_gt_u32 vcc, 64, v{vT}",
          f"s_cmp_lt_u32 s{sW}, 2", "s_cselect_b32 s23, 0xff, 0", "s_and_b32 s10, vcc_lo, s23",
          "s_sub_u32 s23, s10, 1", "s_and_b32 s23, s23, s10", f"s_cmp_eq_u32 s{sW}, 1", "s_cselect_b32 s10, s23, s10",
          "s_cmp_eq_u32 s10, 0", f"s_cbranch_scc1 {name}_coEnd")
        a(f"v_min_u32 v11, {FFN1-FFN0-1}, v{vL}", f"s_lshr_b32 s23, s{sI}, 1", "s_lshl_b32 s23, s23, 8", f"s_add_u32 s23, s23, {YF}",
          "v_lshl_add_u32 v11, v11, 2, s23", f"buffer_load_dword v14, v11, s[{sWS}:{sWS+3}], 0 offen{SC}")
        YQ = list(range(64, 96, 4)) + list(range(128, 160, 4)) + [176, 180]
        AC = YQ[0]
        a(f"v_mul_u32_u24 v{vT}, 3277, v{vL}", f"v_lshrrev_b32 v{vT}, 16, v{vT}", f"v_mul_u32_u24 v8, 20, v{vT}",
          f"v_sub_u32 v8, v{vL}, v8", "v_lshlrev_b32 v8, 4, v8",
          f"v_mul_u32_u24 v9, {18*20480}, v{vT}", "v_add_u32 v9, v9, v8",
          f"v_cmp_gt_u32 vcc, 3, v{vT}", f"v_mov_b32 v{vT+3}, {BIG}", "s_nop 0", f"v_cndmask_b32 v9, v{vT+3}, v9, vcc")
        a("s_mov_b32 s12, 2", "s_mov_b32 s32, -1", "s_mov_b32 s11, 0")
        yld()
        self.poll_check(a, "yf", 14, 11, sWS, ["v_cmp_eq_u32 vcc, 0, v14"])
        a.label(f"{name}_coY")
        a("s_ff1_i32_b32 s33, s10", "s_bitset0_b32 s10, s33", "s_sub_u32 s23, s10, 1", "s_and_b32 s10, s10, s23",
          "s_mul_i32 s14, s33, 2560", f"s_mul_i32 s23, s{sI}, 320", "s_add_u32 s14, s14, s23", f"s_add_u32 s14, s14, {YP}")
        for q in range(18):
            a(f"buffer_load_dwordx4 {vr(YQ[q],4)}, v9, s[{sWS}:{sWS+3}], s14 offen{SC}", "s_add_u32 s14, s14, 20480")
        a(f"s_lshl_b32 s14, s{sW}, 10", f"s_add_u32 s14, s14, {SCR}", f"v_add_u32 v{vT+3}, s14, v{vL16}", "s_add_u32 s23, s33, 8",
          "v_readlane_b32 s35, v15, s23", "s_waitcnt vmcnt(0)")
        for q in range(1, 18):
            for e in range(0, 4, 2): a(f"v_pk_add_f32 {vr(AC+e,2)}, {vr(AC+e,2)}, {vr(YQ[q]+e,2)}")
        a(f"ds_write_b128 v{vT+3}, {vr(AC,4)}", f"v_add_u32 v{vT+3}, s14, v8", "s_and_b32 s35, s35, 0xffff0000", "s_waitcnt lgkmcnt(0)",
          f"ds_read_b128 {vr(AC,4)}, v{vT+3}", f"ds_read_b128 {vr(AC+4,4)}, v{vT+3} offset:320", f"ds_read_b128 {vr(AC+8,4)}, v{vT+3} offset:640",
          "s_mul_i32 s14, s33, 320", f"s_add_u32 s14, s14, {UPD}", f"v_add_u32 v{vT+3}, s14, v8", "s_waitcnt lgkmcnt(0)")
        for e in range(4):
            a(f"v_add_f32 v{AC+e}, v{AC+e}, v{AC+4+e}", f"v_add_f32 v{AC+e}, v{AC+e}, v{AC+8+e}")
            bf16r(a, AC + e)
            a(f"v_mul_f32 v{AC+e}, s35, v{AC+e}")
            bf16r(a, AC + e)
        a(f"ds_write_b128 v{vT+3}, {vr(AC,4)}", "s_waitcnt lgkmcnt(0)", "s_cmp_lg_u32 s10, 0", f"s_cbranch_scc1 {name}_coY")
        a.label(f"{name}_coEnd")
        a("s_mov_b32 s12, 3", "s_mov_b32 s32, -1")
        rec()
        a("s_setpc_b64 s[38:39]")
        self.tail += a.lines

    def phase3(self):
        a = self.a; name = self.name
        a(self.period(1, ["q", "q"], c0=True))
        a("s_nop 7", f"s_cmp_lg_u32 s{sCnt}, 0", f"s_cbranch_scc1 {name}_nomask0")
        a(mask_ops(0, 0))
        a.label(f"{name}_nomask0")
        for X in range(2):
            for qb in range(2):
                s0 = S + 32 * X + 8 * qb; d = vT + 2 * X + qb
                a(f"v_max3_f32 v{d}, v{s0}, v{s0+1}, v{s0+2}", f"v_max3_f32 v{d}, v{d}, v{s0+3}, v{s0+4}",
                  f"v_max3_f32 v{d}, v{d}, v{s0+5}, v{s0+6}", f"v_max_f32 v{d}, v{d}, v{s0+7}")
        for sw in ("v_permlane16_swap_b32", "v_permlane32_swap_b32"):
            for k in range(4): a(f"v_mov_b32 v{vT+4+k}, v{vT+k}")
            a("s_nop 0")
            for k in range(4): a(f"{sw} v{vT+k}, v{vT+4+k}")
            for k in range(4): a(f"v_max_f32 v{vT+k}, v{vT+k}, v{vT+4+k}")
        for X in range(2):
            for qb in range(2):
                for r in range(4): a(f"v_sub_f32 v{NM+8*X+4*qb+r}, 0, v{vT+2*X+qb}")
        for X in range(2):
            for qb in range(2):
                s0 = S + 32 * X + 8 * qb
                for r in range(8): a(f"v_sub_f32 v{s0+r}, v{s0+r}, v{vT+2*X+qb}")
        a(self.period(0, ["qs", "qs"]))
        a(f"buffer_load_dword v14, v13, s[{sWS}:{sWS+3}], 0 offen{SC}")
        stamp(a, 8)
        a(self.cyc(50))
        F = "qsv"
        a(f"s_cmp_eq_u32 s{sCnt}, 0", f"s_cbranch_scc1 {name}_AV", f"s_sub_u32 s{sCnt}, s{sCnt}, 1",
          f"s_cmp_eq_u32 s{sCnt}, 0", f"s_cbranch_scc1 {name}_Aexit")
        a(".p2align 6")
        a.label(f"{name}_DD")
        a(self.period(1, [F, F], bar=12, hook=self.hook()))
        a.label(f"{name}_DDe")
        a(self.period(0, [F, F], tail_sc=[f"s_sub_u32 s{sCnt}, s{sCnt}, 1", f"s_cmp_gt_u32 s{sCnt}, s8"], hook=self.hook(f"s_cmp_ge_u32 s{sKo}, s9")))
        a(f"s_cbranch_scc1 {name}_DD", "s_cmp_lg_u32 s8, 0", f"s_cbranch_scc1 {name}_DDF")
        ex = [([f"s_add_u32 m0, s34, {(q//4)*4096}"] if q % 4 == 0 else [],
               f"buffer_load_dwordx4 v{self.FV[q]}, s[52:55], s33 offen offset:{(q%4)*1024} lds") for q in range(5)]
        hk = self.hook()
        k_ = self.nhook - 1
        self.tail[-3] = f"s_add_u32 s38, s38, {name}_hb{k_}-{name}_hp{k_}"; self.tail[-2] = "s_addc_u32 s39, s39, 0"
        self.tail += [f"{name}_DDF:"] + self.period(1, [F, F], bar=12, hook=hk, extra=ex, dgaps=eval(os.environ.get('DG', '[6, 13, 19, 25]')), egaps=eval(os.environ.get('EG', '[31, 37, 43, 49, 55]'))) + [f"s_branch {name}_DDe"]
        self.coroutine()
        a.label(f"{name}_Aexit")
        a(self.cyc(51))
        a(f"s_bitcmp1_b32 s{sW}, 0", f"s_cbranch_scc1 {name}_Aodd")
        a(self.period(1, [F, F], bar=12))
        a(self.period(0, ["smv", F]))
        a.label(f"{name}_AV")
        a(self.period(1, ["v", F], bar=12))
        a(self.period(0, ["", F]))
        a(f"s_branch {name}_SSpre")
        a.label(f"{name}_Aodd")
        a(self.period(1, ["smv", F], bar=12))
        a(self.period(0, ["v", F]))
        a.label(f"{name}_SSpre")
        a(self.cyc(52))
        a("s_mov_b32 s11, 1", "s_cmp_lg_u32 s12, 0", "s_cselect_b32 s32, s15, s32")
        U, KY = self.U, self.KY
        def wx(fs):
            out = []
            for k, f in enumerate(fs):
                pre = [f"s_add_u32 s14, s13, {(f//4)*4096}"] if (k == 0 or f % 4 == 0) else []
                out.append((pre, self.wl(f).replace("s13 offen", "s14 offen")))
            return out
        def drain(lv):
            h = self.hook(f"s_cmp_lt_u32 s12, {lv}")
            a(h[1][1], h[0], h[1][0])
        a(f"s_cmp_ge_u32 s{sW}, 2", f"s_cselect_b32 s23, {U}, 0", f"s_cmp_le_u32 s{sNSS}, s23", f"s_cbranch_scc1 {name}_chain")
        a(".p2align 6")
        a.label(f"{name}_SS")
        a(self.period(1, ["", F], bar=12, hook=self.hook()))
        a(self.period(0, ["", F], tail_sc=[f"s_sub_u32 s{sNSS}, s{sNSS}, 1", f"s_cmp_gt_u32 s{sNSS}, {U}"]))
        a(f"s_cbranch_scc1 {name}_SS")
        a.label(f"{name}_chain")
        a(self.cyc(53))
        drain(2)
        a(f"s_cmp_eq_u32 s{sNSS}, {U}", f"s_cbranch_scc0 {name}_disp")
        t = Asm()
        t.label(f"{name}_disp")
        for k in range(U - 1, 0, -1): t(f"s_cmp_eq_u32 s{sNSS}, {k}", f"s_cbranch_scc1 {name}_SSW{k}")
        t(f"s_branch {name}_Bexit")
        self.tail += t.lines
        for k in range(U, 0, -1):
            a.label(f"{name}_SSW{k}")
            f0 = sum(self.CB[:U-k]); nb = self.CB[U-k]; h1 = nb // 2
            a(self.period(1, ["", F], bar=(8 if k == 1 else 12), extra=wx(range(f0, f0 + h1)), redir=(k <= 3)))
            a(self.period(0, ["", F], extra=wx(range(f0 + h1, f0 + nb)), redir=(k <= 3)))
        a.label(f"{name}_Bexit")
        a(self.cyc(54))
        f0 = U * 6
        a(f"s_bitcmp1_b32 s{sW}, 0", f"s_cbranch_scc1 {name}_Bodd")
        a(self.period(1, ["", F], bar=8, dma=False, kread=False, extra=wx(range(f0, f0 + 6))))
        a(self.period(0, ["", "smv"], dma=False, kread=False, extra=wx(range(f0 + 6, f0 + 10))))
        a(self.period(1, ["", "v"], bar=10, dma=False, kread=False, extra=wx(range(f0 + 10, f0 + 12)), condbar=f"{name}_nb0"))
        a(f"s_branch {name}_Bdone")
        a.label(f"{name}_Bodd")
        a(self.period(1, ["", "smv"], bar=8, dma=False, kread=False, extra=wx(range(f0, f0 + 7)), condbar=f"{name}_nb1"))
        a(self.period(0, ["", "v"], dma=False, kread=False, extra=wx(range(f0 + 7, f0 + 12))))
        self.wx = wx
        a.label(f"{name}_Bdone")
        a.label(f"{name}_epi")
        stamp(a, 9)
        a(self.cyc(55))
        self.ctx_epi(a, 1, [64, 76, 128, 140])

    def ctx_epi(self, a, X, Ts):
        L = LS + 2 * X
        for sw in ("v_permlane16_swap_b32", "v_permlane32_swap_b32"):
            for k in range(2): a(f"v_mov_b32 v{vT+4+k}, v{L+k}")
            a("s_nop 1")
            for k in range(2): a(f"{sw} v{L+k}, v{vT+4+k}")
            for k in range(2): a(f"v_add_f32 v{L+k}, v{L+k}, v{vT+4+k}")
        for k in range(2): a(f"v_rcp_f32 v{vT+2*k}, v{L+k}")
        if X == 0: a(f"s_lshl_b32 s23, s{sI}, 2")
        else: a(f"s_sub_u32 s23, 15, s{sI}", "s_lshl_b32 s23, s23, 2")
        for k in range(2): a(f"v_mov_b32 v{vT+2*k+1}, v{vT+2*k}")
        a(f"s_add_u32 s23, s23, s{sW}", "s_lshl_b32 s23, s23, 18", f"s_lshl_b32 s31, s{sH}, 12",
          f"s_add_u32 s31, s31, {CTX}", f"s_add_u32 s{sXo}, s23, s31", f"s_add_u32 s{sXo+1}, s{sXo}, {1<<17}")
        k = 0
        for qb in range(2):
            for t in range(4):
                T = Ts[k % len(Ts)]; k += 1
                f = vT + 2 * qb
                for hh in range(2):
                    for r in range(4): a(f"v_accvgpr_read_b32 v{T+4+4*hh+r}, a{O+64*X+8*(2*t+hh)+4*qb+r}")
                for r in range(4): a(f"v_pk_mul_f32 {vr(T+4+2*r,2)}, {vr(T+4+2*r,2)}, {vr(f,2)}")
                for r in range(4): a(f"v_cvt_pk_bf16_f32 v{T+r}, v{T+4+2*r}, v{T+5+2*r}")
                a(f"buffer_store_dwordx4 {vr(T,4)}, v{vL16}, s[{sWS}:{sWS+3}], s{sXo+qb} offen offset:{t*1024}{SC}")

    WQ = ([ar(b, 4) for b in range(0, 64, 4)] + [ar(b, 4) for b in range(192, 256, 4)] + [vr(b, 4) for b in range(32, 64, 4)]
          + [vr(b, 4) for b in range(96, 128, 4)] + [vr(b, 4) for b in range(160, 176, 4)] + [vr(192, 4), vr(196, 4), vr(208, 4), vr(212, 4)]
          + [vr(b, 4) for b in range(232, 248, 4)]
          + [vr(b, 4) for b in range(64, 96, 4)] + [vr(b, 4) for b in range(128, 160, 4)] + [vr(b, 4) for b in range(176, 192, 4)])
    def wl(self, f):
        return f"buffer_load_dwordx4 {self.WQ[f % 80]}, v{vL16}, s[{sWS}:{sWS+3}], s13 offen offset:{(f%4)*1024}{SC}"
    WINC = "s_add_u32 s13, s13, 4096"

    def phase4(self):
        a = self.a; name = self.name
        RS = 336; PART = 64 * RS
        assert len(self.WQ) == 80
        ACq = [ar(b, 4) for b in range(64, 144, 4)]
        CRq = [ar(b, 4) for b in range(144, 192, 4)] + [vr(b, 4) for b in range(216, 232, 4)]
        YQ = list(range(64, 96, 4)) + list(range(128, 160, 4)) + [176, 180]
        XQ = [32, 36, 40, 44, 48, 52]
        XF = [96, 104, 112]; OF = [120, 160, 168]
        vXo, vLa, vXn, vUp = 248, 251, 200, 203
        sX, sO = 44, 48
        sCo = 64
        sMT, sNG = sH, sI
        wl = self.wl; winc = self.WINC
        def cl(ks, qb): return f"buffer_load_dwordx4 {CRq[4*(ks%4)+qb]}, v{vL16}, s[{sWS}:{sWS+3}], s{sCo+qb} offen offset:{(ks%4)*1024}{SC}"
        cnext = ["s_add_u32 s62, s62, 4096", "s_and_b32 s62, s62, 0x7fff", f"s_add_u32 s{sCo}, s63, s62"] + [f"s_add_u32 s{sCo+qb}, s{sCo}, {qb<<17}" for qb in range(1, 4)]
        NL = 36; F0 = 160 - NL; NPRE = int(os.environ.get("NPRE", "4"))
        a("s_load_dwordx2 s[8:9], s[0:1], 0", "s_load_dwordx2 s[16:17], s[0:1], 88")
        a(f"v_mov_b32 v{vT+14}, {BIG}", f"v_writelane_b32 v{vT+14}, s{sCFA}, 0", f"v_writelane_b32 v{vT+14}, s{sCFB}, 1")
        lw = []
        for (pre, l) in self.wx(range(60, 80)): lw.append(pre + [l])
        pubst = f"buffer_store_dword v{vNI}, v{vT+14}, s[{sWS}:{sWS+3}], 0 offen{SC}"
        a("s_cmp_lt_u32 s12, 3", f"s_cbranch_scc1 {name}_puby")
        a(lw[:NPRE], f"s_waitcnt vmcnt({NPRE})", pubst)
        a.label(f"{name}_pubb")
        t = Asm()
        t.label(f"{name}_puby")
        h = self.hook("s_cmp_lt_u32 s12, 3"); k_ = self.nhook - 1
        self.tail[-3] = f"s_add_u32 s38, s38, {name}_hb{k_}-{name}_hp{k_}"; self.tail[-2] = "s_addc_u32 s39, s39, 0"
        t("s_waitcnt vmcnt(0)", pubst, h[0], h[1], lw[:NPRE], f"s_branch {name}_pubb")
        self.tail += t.lines
        stamp(a, 10)
        a(self.cyc(60))
        a(f"s_cmp_lt_u32 s{sNSS}, {self.U}", f"s_cbranch_scc1 {name}_left")
        a.label(f"{name}_leftb")
        t = Asm()
        t.label(f"{name}_left")
        for k in range(self.U, 0, -1):
            if k < self.U: t(f"s_cmp_ge_u32 s{sNSS}, {k}", f"s_cbranch_scc1 {name}_leftb")
            for (pre, l) in self.wx(range(sum(self.CB[:self.U-k]), sum(self.CB[:self.U-k+1]))): t(pre, l)
        t(f"s_branch {name}_leftb")
        self.tail += t.lines
        su = [f"s_lshl_b32 s63, s{sMT}, 19", f"s_lshl_b32 s23, s{sW}, 15", "s_add_u32 s63, s63, s23", f"s_add_u32 s63, s63, {CTX}",
              f"s_mul_i32 s62, s{sNG}, {4096*self.ROT}", "s_and_b32 s62, s62, 0x7fff"] + cnext[2:]
        su += [f"v_bfe_u32 v12, v{vL}, 3, 1", f"v_mul_u32_u24 v12, {CS}, v12", f"v_and_b32 v13, 7, v{vL}", "v_lshl_add_u32 v12, v13, 2, v12",
               f"s_mul_i32 s23, s{sMT}, {2*CS}", f"s_lshl_b32 s31, s{sW}, 5", "s_add_u32 s23, s23, s31", f"s_add_u32 s23, s23, {CF}", "v_add_u32 v12, s23, v12",
]
        su += [f"v_mov_b32 v{vT+4+i}, 0" for i in range(4)] + [f"v_add_u32 v{vT}, {UPD+2560}, v{vL16}", f"ds_write_b128 v{vT}, {vr(vT+4,4)}",
               ]
        pollc = f"buffer_load_dword v13, v12, s[{sWS}:{sWS+3}], 0 offen{SC}"
        rest = lw[NPRE:]
        for q, l in enumerate(rest):
            if q == len(rest) - 6: a(su)
            a(l)
        FL = self.FL
        a("s_lshl_b32 s34, s28, 1", f"s_and_b32 s23, s{sW}, 1", "s_lshl_b32 s23, s23, 12", f"s_cmp_lt_u32 s{sW}, 2", f"s_cselect_b32 s33, {131072-24576}, 0",
          "s_add_u32 s33, s33, s23", "s_add_u32 s33, s33, s34", "s_and_b32 s33, s33, 0x1ffff",
          f"s_lshl_b32 s23, s{sW}, 12", f"s_add_u32 s34, s34, {32768+16384}", "s_add_u32 s34, s34, s23", "s_and_b32 s34, s34, 0x1ffff",
          "s_add_u32 s23, s23, s28", f"s_cmp_lt_u32 s{sNSS}, 3",
          f"s_cselect_b32 s{sKo}, s23, s{sKo}", f"s_cselect_b32 s{sVo}, s23, s{sVo}", f"s_cselect_b32 s{sKm}, s33, s{sKm}", f"s_cselect_b32 s{sVm}, s34, s{sVm}",
          f"s_mov_b64 s[{sK}:{sK+1}], s[4:5]", f"s_mov_b64 s[{sV}:{sV+1}], s[6:7]", f"s_mov_b32 s{sK+2}, s30", f"s_mov_b32 s{sV+2}, s30")
        def piece(srdn, so, sm):
            return [f"s_mov_b32 m0, s{sm}", f"s_add_u32 s{sm}, s{sm}, 32768", f"s_and_b32 s{sm}, s{sm}, 0x1ffff"] + \
                   [f"buffer_load_dwordx4 v{vL16}, s[{srdn}:{srdn+3}], s{so} offen offset:{q*1024}{SC} lds" for q in range(4)] + [f"s_add_u32 s{so}, s{so}, 16384"]
        for tag, (srdn, so, sm), lim in (("pk", (sK, sKo, sKm), 3), ("pv", (sV, sVo, sVm), 2)):
            a(f"s_add_u32 s23, s28, {lim*16384}")
            a.label(f"{name}_{tag}")
            a(f"s_cmp_ge_u32 s{so}, s23", f"s_cbranch_scc1 {name}_{tag}d", piece(srdn, so, sm), f"s_branch {name}_{tag}")
            a.label(f"{name}_{tag}d")
        a(f"s_lshl_b32 s35, s{sW}, 12", f"s_add_u32 s35, s35, {SPARE}", "s_mov_b32 m0, s35", f"s_add_u32 s14, s13, {(FL+56)*1024}")
        a([f"buffer_load_dwordx4 v{vL16}, s[{sWS}:{sWS+3}], s14 offen offset:{q*1024}{SC} lds" for q in range(4)])
        a("s_waitcnt lgkmcnt(0)", "s_barrier")
        a(piece(sK, sKo, sKm), pollc, piece(sV, sVo, sVm), piece(sV, sVo, sVm))
        srd(a, sX, "s8", "s9", 2048 * 1280); srd(a, sO, "s16", "s17", 2048 * 1280)
        a(f"s_lshl_b32 s25, s{sMT}, 6", f"s_mul_i32 s26, s{sNG}, 160", f"s_mul_i32 s27, s{sNG}, 2560", "s_waitcnt vmcnt(8)")
        a(stampv(20), self.cyc(61))
        self.poll_check(a, "ctx", 13, 12, sWS, ["v_cmp_eq_u32 vcc, 0, v13"])
        a(stampv(21))
        for ks in range(4): a([cl(ks, qb) for qb in range(4)])
        a(cnext, "s_waitcnt vmcnt(14)")
        a(stampv(22), self.cyc(58))
        tm = []
        for k in range(3):
            tm += [f"v_add_u32 v{vT}, {256*k}, v0", f"v_mul_u32_u24 v{vT+1}, 6554, v{vT}", f"v_lshrrev_b32 v{vT+1}, 16, v{vT+1}",
              f"v_mul_u32_u24 v{vT+2}, 10, v{vT+1}", f"v_sub_u32 v{vT+2}, v{vT}, v{vT+2}",
              f"v_mul_u32_u24 v{vLa+k}, {RS}, v{vT+1}", f"v_lshl_add_u32 v{vLa+k}, v{vT+2}, 5, v{vLa+k}",
              f"v_lshlrev_b32 v{vUp+k}, 5, v{vT+2}",
              f"v_add_u32 v{vT+1}, s25, v{vT+1}", f"v_add_u32 v{vT+8+k}, 1, v{vT+1}",
              f"v_mul_u32_u24 v{vXo+k}, 1280, v{vT+1}", f"v_lshl_add_u32 v{vXo+k}, v{vT+2}, 4, v{vXo+k}", f"v_add_u32 v{vXo+k}, s26, v{vXo+k}",
              f"v_lshrrev_b32 v{vT+3}, 4, v{vT+1}", f"v_mul_u32_u24 v{vT+3}, 20480, v{vT+3}", f"v_and_b32 v{vT+1}, 15, v{vT+1}",
              f"v_lshl_add_u32 v{vT+3}, v{vT+1}, 4, v{vT+3}", f"v_lshl_add_u32 v{vXn+k}, v{vT+2}, 8, v{vT+3}",
              f"v_mov_b32 v{vT+11+k}, 8"]
        tm += [f"v_cmp_gt_u32 vcc, 128, v0", f"v_mov_b32 v{vT}, {BIG}", f"v_mov_b32 v{vT+1}, 0",
          f"v_cndmask_b32 v{vXo+2}, v{vT}, v{vXo+2}, vcc", f"v_cndmask_b32 v{vXn+2}, v{vT}, v{vXn+2}, vcc", f"v_cndmask_b32 v{vLa+2}, v{vT+1}, v{vLa+2}, vcc"]
        tm += [f"v_readlane_b32 s{68+k}, v15, {k}" for k in range(8)]
        for k in range(8):
            tm += [f"v_cmp_eq_u32 s[{52+2*t_}:{53+2*t_}], s{68+k}, v{vT+8+t_}" for t_ in range(3)]
            tm += [f"v_cndmask_b32 v{vT+11+t_}, v{vT+11+t_}, {k}, s[{52+2*t_}:{53+2*t_}]" for t_ in range(3)]
        for t_ in range(3): tm += [f"v_mul_u32_u24 v{vT+11+t_}, 320, v{vT+11+t_}", f"v_add_u32 v{vUp+t_}, v{vUp+t_}, v{vT+11+t_}", f"v_add_u32 v{vUp+t_}, {UPD}, v{vUp+t_}"]
        pw = lambda q: f"ds_write_b128 v{vT}, {ACq[(q%5)*4+q//5]} offset:{(q//5)*16*RS+(q%5)*64}"
        vm = VM()
        for ks in range(4):
            for qb in range(4): vm.issue(f"C{ks}_{qb}")
        ldsf = {}
        for jj in range(4):
            for q in range(4): ldsf[FL + 16*jj + q] = ("K", q); ldsf[FL + 16*jj + 4 + q] = ("V", q)
        for q in range(4): ldsf[FL + 56 + q] = ("S", q)
        gl = [f for f in range(80, 160) if f not in ldsf]; ll = sorted(ldsf)
        WSP = int(os.environ.get("WSP", "26")); gi = 0; li = 0
        for ks in range(32):
            mf = [f"{MF} {ACq[cb*4+qb]}, {self.WQ[(ks*5+cb) % 80]}, {CRq[4*(ks%4)+qb]}, {ACq[cb*4+qb] if ks else 0}" for qb in range(4) for cb in range(5)]
            sc = {g: [] for g in range(20)}; mem = {g: [] for g in range(20)}; va = {g: [] for g in range(20)}
            quota = min(len(gl), (ks * len(gl) + WSP - 1) // WSP)
            tg = {g: [] for g in range(20)}
            nw = 0
            while gi + nw < quota and nw < 3 and gl[gi + nw] - 80 < ks * 5: nw += 1
            for g in sorted((2, 12, 7)[:nw]):
                f_ = gl[gi]; gi += 1
                if f_ % 4 == 0: sc[g].append(f"s_add_u32 s14, s13, {f_*1024}")
                mem[g].append(wl(f_).replace("s13 offen", "s14 offen")); tg[g].append(f"W{f_ // 5}")
            if li < len(ll) and ll[li] - 80 + 3 < ks * 5 and ks >= 12:
                kind = ldsf[ll[li]][0]; sreg = {"K": 33, "V": 34, "S": 35}[kind]
                va[10].append(f"v_add_u32 v11, s{sreg}, v{vL16}")
                if kind != "S":
                    sc[13].append(f"s_add_u32 s{sreg}, s{sreg}, 32768"); sc[15].append(f"s_and_b32 s{sreg}, s{sreg}, 0x1ffff")
                for q, g in enumerate((11, 13, 16, 17)):
                    assert ll[li] // 5 > ks + 1
                    mem[g].append(f"ds_read_b128 {self.WQ[ll[li] % 80]}, v11 offset:{q*1024}"); li += 1
            if ks == 23: sc[8].append("s_barrier")
            if 1 <= ks < 20:
                for g in (0, 2, 5, 6, 9, 13, 14):
                    if tm: va[g].append(tm.pop(0))
            if ks + 4 < 32:
                for qb in range(4):
                    mem[5*qb+4].append(cl(ks, qb)); tg[5*qb+4].append(f"C{ks+4}_{qb}")
                if ks % 4 == 0 and ks > 0:
                    for q, x in enumerate(cnext): sc[[0, 1, 3, 5, 6, 10][q]].append(x)
            XK = int(os.environ.get("XK", "26"))
            if XK <= ks < XK + 3:
                k = ks - XK
                mem[1].append(f"buffer_load_dwordx4 {vr(XQ[k],4)}, v{vXo+k}, s[{sX}:{sX+3}], 0 offen"); tg[1].append(f"x{k}")
                mem[11].append(f"buffer_load_dwordx4 {vr(XQ[3+k],4)}, v{vXn+k}, s[{sWS}:{sWS+3}], s27 offen{SC}"); tg[11].append(f"x{k}")
            if ks == 27:
                for k in range(3):
                    for hh in range(2): mem[[0, 3, 5, 6, 8, 10][2*k+hh]].append(f"ds_read_b128 {vr(OF[k]+4*hh,4)}, v{vUp+k} offset:{16*hh}")
                sc[18].append("s_waitcnt lgkmcnt(0)")
                va[14] += [f"v_and_b32 v{vT}, 15, v{vL}", f"v_mul_u32_u24 v{vT}, {RS}, v{vT}"]
                va[15] += [f"v_lshrrev_b32 v{vT+1}, 4, v{vL}", f"v_lshl_add_u32 v{vT}, v{vT+1}, 4, v{vT}"]
                sc[14].append(f"s_mul_i32 s23, s{sW}, {PART}")
                va[16] += [f"v_add_u32 v{vT}, s23, v{vT}"]
                for k in range(3): va[2+4*k].append(f"v_add_u32 v{vT+4+k}, {2*PART}, v{vLa+k}")
            if ks >= 29:
                k = ks - 29
                ops = []
                for e in range(4):
                    x = XQ[k] + e; xn = XQ[3+k] + e; o = OF[k] + 2 * e; t0, t1 = vT + 2, vT + 3
                    ops += [f"v_lshlrev_b32 v{t0}, 16, v{xn}", f"v_and_b32 v{t1}, 0xffff0000, v{xn}",
                            f"v_add_f32 v{o}, v{o}, v{t0}", f"v_add_f32 v{o+1}, v{o+1}, v{t1}",
                            f"v_cvt_pk_bf16_f32 v{t0}, v{o}, v{o+1}",
                            f"v_lshlrev_b32 v{XF[k]+2*e}, 16, v{x}", f"v_and_b32 v{XF[k]+2*e+1}, 0xffff0000, v{x}",
                            f"v_lshlrev_b32 v{o}, 16, v{t0}", f"v_and_b32 v{o+1}, 0xffff0000, v{t0}"]
                for q, x in enumerate(ops): va[q // 2].append(x)
            if ks == 31:
                for q in range(11): mem[q+9].append(pw(q))
            for g in range(20):
                if g == 9: sc[g].append(f"s_waitcnt vmcnt({vm.need(f'C{ks}_3')})")
                if g == 19 and ks < 31:
                    wneed = [f for f in gl if f // 5 == ks + 1]
                    assert all(gl.index(f) < gi for f in wneed)
                    need = [f"C{ks+1}_1"] + ([f"W{ks+1}"] if wneed else []) + ([f"x{ks-28}"] if ks >= 28 else [])
                    sc[g].append(f"s_waitcnt vmcnt({vm.need(*need)})")
                if g == 8 and 13 <= ks <= 22: sc[g].append("s_waitcnt lgkmcnt(0)")
                for t_ in tg[g]: vm.issue(t_)
            if os.environ.get("OTR"): a("s_memtime s[98:99]", "s_waitcnt lgkmcnt(0)", f"v_writelane_b32 v7, s98, {24+ks}")
            lines = weave(mf, sc, mem, va)
            OX = os.environ.get("OX", "")
            if "c" in OX: lines = [l for l in lines if not (l.startswith("buffer_load") and " s6" in l)]
            if "w" in OX: lines = [l for l in lines if not (l.startswith("buffer_load") and " s13 " in l)]
            if "s" in OX: lines = [l.replace(" sc1", "") for l in lines]
            a(lines)
        assert gi == len(gl) and li == len(ll) and not tm
        a(stampv(23), self.cyc(59))
        for q in range(11, 20): a(pw(q))
        a("s_waitcnt lgkmcnt(0)", "s_barrier")
        PVb = [32, 64, 128]
        for k in range(3):
            for p in range(4):
                for hh in range(2):
                    a(f"ds_read_b128 {vr(PVb[k]+8*p+4*hh,4)}, v{vLa+k if p < 2 else vT+4+k} offset:{(p%2)*PART+16*hh}")
        for k in range(3):
            a(f"s_waitcnt lgkmcnt({[15, 8, 0][k]})")
            b = PVb[k]
            for e in range(0, 8, 2):
                a(f"v_pk_add_f32 {vr(b+e,2)}, {vr(b+e,2)}, {vr(b+8+e,2)}", f"v_pk_add_f32 {vr(b+16+e,2)}, {vr(b+16+e,2)}, {vr(b+24+e,2)}")
            for e in range(0, 8, 2): a(f"v_pk_add_f32 {vr(b+e,2)}, {vr(b+e,2)}, {vr(b+16+e,2)}")
            for src in (XF[k], OF[k]):
                for e in range(4): a(f"v_cvt_pk_bf16_f32 v{b+8+e}, v{b+2*e}, v{b+2*e+1}")
                for e in range(4): a(f"v_lshlrev_b32 v{b+2*e}, 16, v{b+8+e}", f"v_and_b32 v{b+2*e+1}, 0xffff0000, v{b+8+e}")
                for e in range(4): a(f"v_pk_add_f32 {vr(b+2*e,2)}, {vr(b+2*e,2)}, {vr(src+2*e,2)}")
            for e in range(4): a(f"v_cvt_pk_bf16_f32 v{b+12+e}, v{b+2*e}, v{b+2*e+1}")
            a(f"buffer_store_dwordx4 {vr(b+12,4)}, v{vXo+k}, s[{sO}:{sO+3}], 0 offen")

    def gen(self, with_p4=True):
        a = self.a; name = self.name
        self.tail = []; self.p4 = with_p4; self.nhook = 0
        self.phase1()
        self.phase2()
        self.phase3()
        if with_p4: self.phase4()
        stamp_flush(a, 0, sW, sWS)
        a.label(f"{name}_end")
        a("s_endpgm")
        a(self.tail)
        for (k, ss, par) in self.stubs:
            a.label(f"{name}_stub{k}")
            for X in ss: a(f"s_call_b64 s[{sRet}:{sRet+1}], {name}_rare{X}{par}")
            a(f"s_branch {name}_back{k}")
        a.label(f"{name}_codeend")
        for X in range(2):
            for par in range(2): self.rare(X, par)
            self.resc(X)
        return a
```

```python
import os
from asmlib import *
from gen_k1 import (XNF, RKEY, SEL, YP, WOF, KFO, VFO, CTX, WS_BYTES, MF, srd, bf16r, allreduce32_add,
                    stamp, stampc, stampv, stamp_init, stamp_flush, DBG)
import gen_k2 as k2
from gen_k2 import (vL, vL16, vKV, vNI, vX, vT, Q, S, P, NM, E, TS, LS, QACC, O, KF, VF, XR,
                    sW, sH, sI, sWS, sK, sV, sKm, sVm, sKo, sVo, sCnt, sNSS, sXo, sMask, sRet, sRet2, sThr,
                    xreduce, mask_ops)

LDS = 163840
FLG = 0x284000
KVF = FLG
CF = 0x3A0000
CS = int(os.environ.get('CS', '4352'))
YF = FLG + 0x3000
WF = FLG + 0x4000
SC = " sc1"
BIG = 0x40000000
SPARE = 131072
XS = SPARE + 20480
EX = SPARE + 30720
UPD = LDS - 8192
SCR = LDS - 4096
TOPWG = 255
FFN0, FFN1 = 170, 224
SPIN_MAX = 200000
sDb = 56
sCFA, sCFB, sKVa = 80, 3, 82
vWo, vWa, vCa = 8, 12, 14
vPoll, vZero, vPo = 15, 229, 8
vCo = 3

class VM:
    def __init__(self): self.ops = []
    def issue(self, tag, n=1): self.ops += [tag] * n
    def need(self, *tags):
        last = max(i for i, t in enumerate(self.ops) if t in tags)
        return min(63, len(self.ops) - 1 - last)

class Fused(k2.K2):
    SC = SC
    U = 8
    FS = int(os.environ.get('FS', '2'))
    E7 = int(os.environ.get('E7', '0'))
    NOWO = int(os.environ.get('NOWO', '32'))
    CB = eval(os.environ.get('CB', '[3,3,4,6,8,8,8,8]'))
    FL = 96
    ROT = int(os.environ.get('ROT', '0'))
    FV = [8, 11, 12, 13, 14]
    KY = 3
    def poll_check(self, a, tag, vreg, voff, srdn, cmp_lines, soff="0"):
        n = self.name
        a(cmp_lines, f"s_cbranch_vccnz {n}_{tag}_spin")
        a.label(f"{n}_{tag}_ok")
        t = Asm()
        t.label(f"{n}_{tag}_spin")
        t(f"s_mov_b32 s83, {SPIN_MAX}")
        t.label(f"{n}_{tag}_spin2")
        t(f"buffer_load_dword v{vreg}, v{voff}, s[{srdn}:{srdn+3}], {soff} offen{SC}", "s_waitcnt vmcnt(0)")
        t(cmp_lines, f"s_cbranch_vccz {n}_{tag}_ok", f"s_sleep {os.environ.get('SLP', '8')}", "s_sub_u32 s83, s83, 1", "s_cmp_lg_u32 s83, 0",
          f"s_cbranch_scc1 {n}_{tag}_spin2", f"s_branch {n}_{tag}_ok")
        self.tail += t.lines

    def phase1(self):
        a = self.a; name = self.name
        sC, sWt, sX, sQ2, sWO, sWR = 32, 36, 44, 48, 52, 68
        sM0C, sStep, sOC, sOW, sIT = 24, 25, 26, 27, 28
        FA = 32; FB = 96
        a("s_cmp_ge_u32 s2, 256", f"s_cbranch_scc1 {name}_end")
        if os.environ.get("CT0", "1") == "1":
            a("s_getpc_b64 s[62:63]", "v_and_b32 v230, 127, v0", "v_lshlrev_b32 v230, 7, v230", "global_load_dword v231, v230, s[62:63]")
        stamp_init(a)
        a("s_load_dwordx4 s[4:7], s[0:1], 0", "s_load_dwordx4 s[8:11], s[0:1], 24", "s_load_dwordx2 s[14:15], s[0:1], 56",
          "s_load_dwordx2 s[12:13], s[0:1], 40", "s_load_dwordx4 s[16:19], s[0:1], 96", "s_load_dwordx2 s[60:61], s[0:1], 16")
        a(f"v_lshrrev_b32 v{vT}, 6, v0", f"v_and_b32 v{vL}, 63, v0", f"v_readfirstlane_b32 s{sW}, v{vT}")
        a(f"s_and_b32 s{sH}, s2, 7", f"s_lshl_b32 s{sH}, s{sH}, 2", "s_lshr_b32 s23, s2, 3", "s_and_b32 s23, s23, 3",
          f"s_add_u32 s{sH}, s{sH}, s23", f"s_lshr_b32 s{sI}, s2, 5")
        XV = 160; WR = 172; F = 184
        vU, vRow, vXo, vXo3, vWro = 208, 209, 210, 211, 212
        vS, vT2, vMean, vAcc = 213, 214, 216, 218
        vTW, vTR, vKo, vO1, vO3, vFl = 220, 221, 222, 223, 224, 225
        vTQ = 235; sM16 = 64
        LNPRE = os.environ.get("LNPRE", "1") == "1"
        lnaddr = [f"v_and_b32 v{vU}, 31, v{vL}", f"v_lshrrev_b32 v{vRow}, 5, v{vL}",
          "s_lshl_b32 s31, s2, 2", f"s_add_u32 s31, s31, s{sW}", "s_lshl_b32 s31, s31, 1", f"v_add_u32 v{vRow}, s31, v{vRow}",
          f"v_lshlrev_b32 v{vWro}, 4, v{vU}", f"v_mul_u32_u24 v{vXo}, 1280, v{vRow}", f"v_add_u32 v{vXo}, v{vXo}, v{vWro}",
          f"v_cmp_gt_u32 s[{sM16}:{sM16+1}], 16, v{vU}", f"v_mov_b32 v{vT+3}, {BIG}", f"v_and_b32 v{vTW}, 7, v{vRow}",
          f"v_cndmask_b32 v{vXo3}, v{vT+3}, v{vXo}, s[{sM16}:{sM16+1}]"]
        xloads = [f"buffer_load_dwordx4 {vr(XV,4)}, v{vXo}, s[{sX}:{sX+3}], 0 offen",
          f"buffer_load_dwordx4 {vr(XV+4,4)}, v{vXo}, s[{sX}:{sX+3}], 0 offen offset:512",
          f"buffer_load_dwordx4 {vr(XV+8,4)}, v{vXo3}, s[{sX}:{sX+3}], 0 offen offset:1024"]
        xloads += [f"buffer_load_dwordx4 {vr(WR+4*i,4)}, v{vWro}, s[{sWR}:{sWR+3}], 0 offen offset:{512*i}" for i in range(3)]
        if LNPRE: a(lnaddr)
        a(f"v_bfe_u32 v{vT+1}, v{vL}, 1, 3", f"v_lshlrev_b32 v{vT+1}, 13, v{vT+1}", f"v_and_b32 v{vT+2}, 1, v{vL}",
          f"v_lshl_add_u32 v{vTQ}, v{vT+2}, 7, v{vT+1}", f"s_lshl_b32 s74, s{sI}, 1", f"s_and_b32 s31, s{sW}, 1", "s_add_u32 s74, s74, s31",
          "s_lshl_b32 s74, s74, 16", f"s_mov_b32 s73, {128*8192}", f"v_and_b32 v{vT}, 15, v{vL}",
          f"v_lshlrev_b32 v{vT+1}, 10, v{vT}", f"v_and_b32 v{vT+2}, 16, v{vL}", f"v_lshl_add_u32 v233, v{vT+2}, 3, v{vT+1}",
          "s_lshl_b32 s30, s23, 5", f"s_add_u32 s30, s30, s{sW}", "s_lshl_b32 s30, s30, 14", f"s_lshl_b32 s29, s{sI}, 16", f"s_lshl_b32 s23, s{sH}, 8",
          f"s_cmp_ge_u32 s{sW}, 2", "s_waitcnt lgkmcnt(0)")
        if LNPRE:
            srd(a, sX, "s4", "s5", 2048*1280)
            srd(a, sWR, "s14", "s15", 1280)
            a(xloads)
        a("s_cselect_b32 s62, s10, s8", "s_cselect_b32 s63, s11, s9", "s_add_u32 s62, s62, s23", "s_addc_u32 s63, s63, 0")
        srd(a, sWt, "s62", "s63", 0)
        a(f"s_sub_u32 s{sWt+2}, {512*8192}, s23", f"buffer_load_dword v231, v{vTQ}, s[{sWt}:{sWt+3}], s74 offen",
          "s_add_u32 s6, s6, s29", "s_addc_u32 s7, s7, 0")
        srd(a, sC, "s6", "s7", 0)
        a(f"s_sub_u32 s{sC+2}, {2048*1024}, s29")
        a(f"buffer_load_dword v232, v233, s[{sC}:{sC+3}], s30 offen", "s_add_u32 s74, s74, s73")
        T01 = os.environ.get("T01", "1") == "1"
        t1 = [f"buffer_load_dword v231, v{vTQ}, s[{sWt}:{sWt+3}], s74 offen", f"buffer_load_dword v232, v233, s[{sC}:{sC+3}], s30 offen offset:256"]
        if T01: a(t1)
        a("s_getpc_b64 s[8:9]", f"{name}_pc:", "s_lshr_b32 s31, s2, 3", "s_and_b32 s31, s31, 15", "s_lshl_b32 s31, s31, 2",
          f"s_add_u32 s31, s31, s{sW}", "s_lshl_b32 s31, s31, 11", f"s_min_u32 s31, s31, {name}_codeend-{name}_pc-2048",
          f"v_lshlrev_b32 v234, 7, v{vT}", "v_add_u32 v230, s31, v234", "global_load_dword v231, v230, s[8:9]",
          f"s_add_u32 s8, s8, {name}_co1-{name}_pc-4", "s_addc_u32 s9, s9, 0")
        a("s_add_u32 s60, s60, s23", "s_addc_u32 s61, s61, 0", f"s_sub_u32 s75, {640*8192}, s23")
        srd(a, sQ2, "s62", "s63", f"s{sWt+2}")
        a(f"v_lshlrev_b32 v{vL16}, 4, v{vL}",
          f"v_lshrrev_b32 v{vT+3}, 2, v{vL}", f"v_lshrrev_b32 v{vT+1}, 5, v{vL}", f"v_mul_u32_u24 v{vT+1}, 3, v{vT+1}",
          f"v_and_b32 v{vT+2}, 3, v{vL}", f"v_xor_b32 v{vT+1}, v{vT+1}, v{vT+2}", f"v_lshlrev_b32 v{vT+1}, 4, v{vT+1}",
          f"v_lshl_add_u32 v{vCo}, v{vT+3}, 10, v{vT+1}", f"s_lshl_b32 s23, s{sW}, 19", f"v_add_u32 v{vCo}, s23, v{vCo}")
        for j in range(1, 4): a(f"v_add_u32 v{vCo+j}, {j*(16384-1024)}, v{vCo}")
        a(f"v_and_b32 v{vT+3}, 3, v{vT+3}", f"v_lshrrev_b32 v{vT+1}, 4, v{vL}", f"v_lshlrev_b32 v{vT+1}, 6, v{vT+1}",
          f"v_lshl_add_u32 v{vT+3}, v{vT+3}, 13, v{vT+1}", f"s_and_b32 s23, s{sW}, 1", "s_lshl_b32 s23, s23, 17",
          f"v_add_u32 v{vT+3}, s23, v{vT+3}", f"v_lshl_add_u32 v{vWo}, v{vT+2}, 4, v{vT+3}", f"v_xor_b32 v{vT+2}, 2, v{vT+2}",
          f"v_lshl_add_u32 v{vWo+2}, v{vT+2}, 4, v{vT+3}", f"v_add_u32 v{vWo+1}, {32768-1024}, v{vWo}",
          f"v_add_u32 v{vWo+3}, {3*(32768-1024)}, v{vWo+2}", f"v_add_u32 v{vWo+2}, {2*(32768-1024)}, v{vWo+2}")
        a(f"s_lshl_b32 s{sM0C}, s{sW}, 12", f"s_mov_b32 s{sOC}, 0", f"s_mov_b32 s{sOW}, 0", f"s_mov_b32 s{sStep}, {32*8192}", "s_mov_b32 s79, 64")
        def dma_lines():
            preC = [f"s_mov_b32 m0, s{sM0C}"]
            lc = [f"buffer_load_dwordx4 v{vCo+j}, s[{sC}:{sC+3}], s{sOC} offen offset:{j*1024}{SC} lds" for j in range(4)]
            preW = [f"s_add_u32 m0, s{sM0C}, 16384"]
            lw = [f"buffer_load_dwordx4 v{vWo+j}, s[{sWt}:{sWt+3}], s{sOW} offen offset:{j*1024} lds" for j in range(4)]
            post = [f"s_add_u32 s{sOC}, s{sOC}, s79", f"s_add_u32 s{sOW}, s{sOW}, s{sStep}",
                    f"s_add_u32 s{sM0C}, s{sM0C}, 32768", f"s_and_b32 s{sM0C}, s{sM0C}, 0x1ffff"]
            return preC, lc, preW, lw, post
        def dma_stage():
            preC, lc, preW, lw, post = dma_lines()
            a(preC, "s_nop 0", lc, preW, "s_nop 0", lw, post)
        if not LNPRE: dma_stage()
        stamp(a, 1)
        srd(a, sWS, "s18", "s19", WS_BYTES)
        srd(a, sWO, "s12", "s13", 4096*1280)
        srd(a, sDb, "s16", "s17", 256)
        if not LNPRE:
            srd(a, sX, "s4", "s5", 2048*1280)
            srd(a, sWR, "s14", "s15", 1280)
        a("s_and_b32 s29, s2, 7", "s_lshl_b32 s29, s29, 2", f"s_add_u32 s29, s29, s{sW}", "s_lshl_b32 s29, s29, 11",
          f"s_and_b32 s23, s{sH}, 3", "s_lshl_b32 s23, s23, 19", "s_add_u32 s29, s29, s23")
        a(f"s_mul_i32 s23, s{sW}, {CS}", f"s_lshl_b32 s31, s{sH}, 2", "s_add_u32 s23, s23, s31", f"s_add_u32 s23, s23, {CF}",
          f"s_mul_i32 s31, s{sI}, {4*CS}", f"s_add_u32 s{sCFA}, s23, s31", f"s_sub_u32 s31, {15*4*CS}, s31", f"s_add_u32 s{sCFB}, s23, s31",
          f"s_lshl_b32 s23, s{sH}, 7", f"s_lshl_b32 s31, s{sI}, 2", "s_add_u32 s23, s23, s31", f"s_add_u32 s{sKVa}, s23, {KVF}",
          self.yf_addr(62), f"s_sub_u32 s23, s2, {FFN0}", f"s_cmp_lt_u32 s23, {FFN1-FFN0}", f"s_cselect_b32 s62, s62, {BIG}",
          f"s_cmp_eq_u32 s{sW}, 0", f"s_cselect_b32 s31, s{sKVa}, {BIG}", f"s_cselect_b32 s77, s2, {BIG}",
          f"s_cmp_eq_u32 s2, {TOPWG}", f"s_cselect_b32 s23, {SEL}, {BIG}",
          f"v_lshl_add_u32 v{vFl}, v{vT}, 2, s23", f"v_mov_b32 v{vZero}, 0",
          f"v_writelane_b32 v{vFl}, s{sCFA}, 0", f"v_writelane_b32 v{vFl}, s{sCFB}, 1", f"v_writelane_b32 v{vFl}, s31, 2", "s_add_u32 s31, s31, 32", f"v_writelane_b32 v{vFl}, s31, 5",
          self.wf_addr(23), f"v_writelane_b32 v{vFl}, s23, 3", f"v_writelane_b32 v{vFl}, s62, 4")
        if LNPRE:
            a(f"s_and_b32 s23, s{sH}, 3", "s_lshr_b32 s31, s23, 1", "s_lshl_b32 s31, 4, s31", "s_bitcmp1_b32 s23, 0",
              "s_cselect_b32 s76, s31, 0", "s_cselect_b32 s72, 0, s31", "s_or_b32 s76, s76, 0x20", "s_or_b32 s72, s72, 0x25")
        else:
            a(f"s_and_b32 s23, s{sH}, 3", "s_cmp_eq_u32 s23, 2", "s_cselect_b32 s76, 0x2a, 0x22", "s_cselect_b32 s72, 0x27, 0x2f",
              "s_cmp_eq_u32 s23, 3", "s_cselect_b32 s72, 0x37, s72")
        for i in range(4): a(f"v_mov_b32 v{vT+4+i}, 0")
        a(f"v_lshrrev_b32 v{vT+1}, 4, v{vL}", f"v_lshrrev_b32 v{vT+2}, 3, v{vT}",
          f"v_mul_u32_u24 v{vT+2}, 3, v{vT+2}", f"v_xor_b32 v{vT+2}, v{vT+2}, v{vT+1}", f"v_lshlrev_b32 v{vT+2}, 4, v{vT+2}",
          f"v_lshl_add_u32 v{vCa}, v{vT}, 6, v{vT+2}", f"s_and_b32 s23, s{sW}, 1", "s_lshl_b32 s23, s23, 11", f"v_add_u32 v{vCa}, s23, v{vCa}")
        rest = Asm()
        rest(f"v_lshrrev_b32 v{vT+2}, 2, v{vT}", f"v_lshlrev_b32 v{vT+2}, 6, v{vT+2}", f"v_lshl_add_u32 v{vT+2}, v{vT+1}, 11, v{vT+2}",
          f"v_and_b32 v{vT+3}, 1, v{vL}", f"v_lshl_add_u32 v{vT+2}, v{vT+3}, 3, v{vT+2}", f"v_bfe_u32 v{vT+3}, v{vL}, 1, 1",
          f"v_and_b32 v{vT+1}, 1, v{vT+1}", f"v_lshl_or_b32 v{vT+3}, v{vT+1}, 1, v{vT+3}",
          f"s_lshr_b32 s23, s{sW}, 1", "s_lshl_b32 s23, s23, 13", "s_add_u32 s23, s23, 16384", f"v_add_u32 v{vT+2}, s23, v{vT+2}",
          f"v_lshl_add_u32 v{vWa}, v{vT+3}, 4, v{vT+2}", f"v_xor_b32 v{vWa+1}, 32, v{vWa}")
        TR = SPARE
        rest([f"v_mov_b32 v{vT+3}, {BIG}"] if LNPRE else lnaddr,
          f"v_lshlrev_b32 v{vTW}, 4, v{vTW}", f"v_lshl_add_u32 v{vTW}, v{vU}, 7, v{vTW}", f"v_add_u32 v{vTW}, {TR}, v{vTW}",
          f"v_lshlrev_b32 v{vKo}, 2, v{vRow}", f"v_cmp_eq_u32 vcc, 0, v{vU}", f"v_add_u32 v{vKo}, {RKEY}, v{vKo}",
          f"v_lshlrev_b32 v{vTR}, 4, v0", f"v_cndmask_b32 v{vKo}, v{vT+3}, v{vKo}, vcc", f"v_add_u32 v{vTR}, {TR}, v{vTR}",
          f"v_sub_u32 v{vRow}, 0xffff, v{vRow}",
          f"v_lshrrev_b32 v{vO1}, 3, v0", f"v_and_b32 v{vT+2}, 7, v0", f"v_lshlrev_b32 v{vT+2}, 4, v{vT+2}",
          f"v_cmp_gt_u32 vcc, 128, v0", f"v_lshl_add_u32 v{vO1}, v{vO1}, 8, v{vT+2}",
          "s_lshr_b32 s66, s2, 1", "s_mul_i32 s66, s66, 20480", "s_and_b32 s31, s2, 1", "s_lshl_b32 s31, s31, 7", "s_add_u32 s66, s66, s31",
          f"v_cndmask_b32 v{vO3}, v{vT+3}, v{vO1}, vcc", "s_add_u32 s67, s66, 8192", "s_add_u32 s78, s66, 16384", f"s_mov_b32 s{sIT}, 0")
        rl = rest.lines
        for i in range(16):
            a(f"v_mfma_f32_32x32x16_bf16 {ar(16*i,16)}, {vr(vT+4,4)}, {vr(vT+4,4)}, 0", rl[4*i:4*i+4])
        assert len(rl) <= 64
        STPRE = os.environ.get('STPRE', '0') == '1'
        CALL = os.environ.get('CALL', '0') == '1'
        def xn_store(t):
            for i in range(3): t(f"ds_read_b128 {vr(XV+4*i,4)}, v{vTR} offset:{i*4096}")
            t(f"buffer_store_dword v{vAcc}, v{vKo}, s[{sWS}:{sWS+3}], 0 offen{SC}", "s_waitcnt lgkmcnt(0)",
              f"buffer_store_dwordx4 {vr(XV,4)}, v{vO1}, s[{sWS}:{sWS+3}], s66 offen{SC}",
              f"buffer_store_dwordx4 {vr(XV+4,4)}, v{vO1}, s[{sWS}:{sWS+3}], s67 offen{SC}",
              f"buffer_store_dwordx4 {vr(XV+8,4)}, v{vO3}, s[{sWS}:{sWS+3}], s78 offen{SC}")
        def ln_compute(t):
            pk = lambda op, d, x, y, extra="": f"{op} {vr(d,2)}, {vr(x,2)}, {vr(y,2)}{extra}"
            for i in range(12):
                t(f"v_lshlrev_b32 v{F+2*i}, 16, v{XV+i}", f"v_and_b32 v{F+2*i+1}, 0xffff0000, v{XV+i}")
            t(pk("v_pk_add_f32", vT, F, F + 2), pk("v_pk_add_f32", vT + 2, F + 4, F + 6))
            for i in range(8, 24, 4): t(pk("v_pk_add_f32", vT, vT, F + i), pk("v_pk_add_f32", vT + 2, vT + 2, F + i + 2))
            t(pk("v_pk_add_f32", vT, vT, vT + 2), f"v_add_f32 v{vS}, v{vT}, v{vT+1}")
            allreduce32_add(t, vS, vT2)
            t(f"v_mul_f32 v{vMean}, 0xbacccccd, v{vS}", f"v_mul_f32 v{vMean+1}, 0xbacccccd, v{vS}")
            for i in range(12):
                d = vT + 4 + 2 * (i % 4); acc = vT if i < 8 else vT + 2
                t(pk("v_pk_add_f32", d, F + 2 * i, vMean))
                if i in (0, 8): t(pk("v_pk_mul_f32", acc, d, d))
                else: t(f"v_pk_fma_f32 {vr(acc,2)}, {vr(d,2)}, {vr(d,2)}, {vr(acc,2)}")
            t(f"v_add_f32 v{vT+2}, v{vT+2}, v{vT+3}", f"v_add_f32 v{vS}, v{vT}, v{vT+1}", f"v_cndmask_b32 v{vT+2}, 0, v{vT+2}, s[{sM16}:{sM16+1}]",
              f"v_add_f32 v{vS}, v{vS}, v{vT+2}")
            allreduce32_add(t, vS, vT2)
            t(f"v_mul_f32 v{vS}, 0x3acccccd, v{vS}")
            bf16r(t, vS)
            t(f"v_add_f32 v{vS}, 0x3727c5ac, v{vS}")
            bf16r(t, vS)
            t(f"v_sqrt_f32 v{vS}, v{vS}")
            bf16r(t, vMean)
            bf16r(t, vS)
            t(f"v_rcp_f32 v{vT+12}, v{vS}", f"v_mov_b32 v{vMean+1}, v{vMean}", f"v_mov_b32 v{vT+13}, v{vT+12}")
            for i in range(12):
                f0 = F + 2 * i; w0 = vT + 2 * (i % 2)
                t(pk("v_pk_add_f32", f0, f0, vMean), f"v_lshlrev_b32 v{w0}, 16, v{WR+i}", f"v_cvt_pk_bf16_f32 v{f0+1}, v{f0}, v{f0+1}",
                  f"v_and_b32 v{w0+1}, 0xffff0000, v{WR+i}", f"v_lshlrev_b32 v{f0}, 16, v{f0+1}", f"v_and_b32 v{f0+1}, 0xffff0000, v{f0+1}",
                  pk("v_pk_mul_f32", f0, f0, vT + 12), f"v_cvt_pk_bf16_f32 v{XV+i}, v{f0}, v{f0+1}",
                  f"v_lshlrev_b32 v{f0}, 16, v{XV+i}", f"v_and_b32 v{f0+1}, 0xffff0000, v{XV+i}")
                if i == 0: t(pk("v_pk_mul_f32", vAcc, f0, w0))
                else: t(f"v_pk_fma_f32 {vr(vAcc,2)}, {vr(f0,2)}, {vr(w0,2)}, {vr(vAcc,2)}")
                if i % 4 == 3: t(f"ds_write_b128 v{vTW}, {vr(XV+i-3,4)} offset:{(i//4)*4096}")
            t(f"v_add_f32 v{vAcc}, v{vAcc}, v{vAcc+1}")
            allreduce32_add(t, vAcc, vT2)
            bf16r(t, vAcc)
            t(f"v_ashrrev_i32 v{vT2}, 31, v{vAcc}", f"v_or_b32 v{vT2}, 0x80000000, v{vT2}", f"v_xor_b32 v{vAcc}, v{vAcc}, v{vT2}",
              f"v_and_b32 v{vAcc}, 0xffff0000, v{vAcc}", f"v_or_b32 v{vAcc}, v{vAcc}, v{vRow}")
        stamp(a, 2)
        if LNPRE:
            a(f"s_waitcnt vmcnt({5 if T01 else 3})")
            SM = int(os.environ.get("SM", "0"))
            if SM:
                a(f"s_add_u32 s4, s{sWt}, s74", f"s_addc_u32 s5, s{sWt+1}, 0", f"s_add_u32 s6, s{sC}, s29", f"s_addc_u32 s7, s{sC+1}, 0")
                step = 128 // SM
                sl = [f"s_load_dword s83, s[4:5], {r*8192 + q*step}" for r in range(8) for q in range(2 * SM)]
                sl += [f"s_load_dword s83, s[6:7], {r*1024 + 256 + q*step}" for r in range(2) for q in range(2 * SM)]
                a(sl[:14])
            ln_compute(a)
            if SM: a(sl[14:])
            a(stampv(9))
            if STPRE:
                a(f"buffer_store_dword v{vZero}, v{vFl}, s[{sWS}:{sWS+3}], 0 offen{SC}", "s_waitcnt lgkmcnt(0)", "s_barrier")
                xn_store(a)
            a(f"v_mov_b32 v{vT+3}, {BIG}")
            dma_stage()
        dma_stage()
        stamp(a, 3)
        a(self.cyc(62))
        a("s_waitcnt vmcnt(8) lgkmcnt(0)", "s_barrier")
        a(f"s_cmp_ge_u32 s{sW}, 2", f"s_cbranch_scc1 {name}_roleV")
        def reads(role, buf, off):
            CFr = (FB if role == "K" else FA) + 32 * buf
            WF = (FA if role == "K" else FB) + 32 * buf
            rc = [f"ds_read_b128 {vr(CFr+4*i,4)}, v{vCa} offset:{off + (i//2)*4096 + (i%2)*1024}" for i in range(8)]
            rw = [f"ds_read_b64_tr_b16 {vr(WF+4*cb+2*t,2)}, v{vWa+(cb&1)} offset:{off + t*1024 + (cb>>1)*256}" for cb in range(8) for t in range(2)]
            return rc, rw
        for role in ("K", "V"):
            if role == "V": a.label(f"{name}_roleV")
            rc, rw = reads(role, 0, 0)
            a(rc, rw)
            dma_stage()
            a(f"buffer_load_dword v231, v{vT+3}, s[{sC}:{sC+3}], 0 offen")
            dma_stage()
            if not T01 and not SM: a(t1)
            a("s_waitcnt lgkmcnt(0)")
            a(".p2align 6")
            a.label(f"{name}_loop{role}")
            if DBG: a(f"s_mov_b32 m0, s{sIT}", stampv("m0"))
            for half in range(2):
                def acc(i, j):
                    n_ = (8 * (j // 2) + 2 * (i // 2) + j % 2) if role == "K" else (8 * (i // 2) + j)
                    return ar(((n_ + 24) % 32) * 8 + 4 * (i % 2), 4)
                mf = [f"{MF} {acc(i,j)}, {vr(FA+32*half+4*i,4)}, {vr(FB+32*half+4*j,4)}, {acc(i,j)}" for i in range(8) for j in range(8)]
                sc = {}; mem = {}; va = {}
                sc[0] = [f"s_waitcnt vmcnt({17 if half == 0 else 18})"]; sc[1] = ["s_barrier"]
                rc, rw = reads(role, 1 - half, 32768 if half == 0 else 0)
                preC, lc, preW, lw, post = dma_lines()
                ds = []
                for i in range(8): ds += [rw[2*i], rw[2*i+1], rc[i]]
                for i, x in enumerate(ds): mem[2 + 2*i] = [x]
                st_ = 2 if half == 0 else 6
                sc[4] = preC
                for j in range(4): mem[5 + st_*j] = [lc[j]]
                sc[4 + 4*st_] = preW
                for j in range(4): mem[5 + st_*(4+j)] = [lw[j]]
                for j, x in enumerate(post): sc[48 + j] = [x]
                if half == 0:
                    mem[21] = [f"buffer_load_dword v231, v{vTQ}, s[{sQ2}:{sQ2+3}], s74 offen{SC}"]
                    sc[22] = ["s_add_u32 s74, s74, s73"]
                    h = self.hook(f"s_bitcmp1_b32 s72, s{sIT}", 8)
                    sc[23] = [h[0]]; sc[24] = h[1]
                    va[52] = [f"v_xor_b32 v{vCa}, 0x10000, v{vCa}"]
                    va[53] = [f"v_xor_b32 v{vWa}, 0x10000, v{vWa}"]
                    va[54] = [f"v_xor_b32 v{vWa+1}, 0x10000, v{vWa+1}"]
                    sc[63] = ["s_waitcnt lgkmcnt(0)"]
                else:
                    h = self.hook(f"s_bitcmp1_b32 s76, s{sIT}", 8)
                    sc[53] = [h[0]]; sc[54] = h[1]
                    sc[57] = [f"s_add_u32 s{sIT}, s{sIT}, 1"]
                    sc[61] = [f"s_cmp_lt_u32 s{sIT}, 8"]
                    sc[62] = ["s_waitcnt lgkmcnt(0)"]
                    sc[63] = [f"s_cbranch_scc1 {name}_loop{role}"]
                a(weave(mf, sc, mem, va))
            if role == "K":
                a(f"s_mov_b32 s64, {KFO}", "s_mov_b32 s76, 0x3e0293ee", f"s_branch {name}_p1epi")
            else:
                a(f"s_mov_b32 s64, {VFO}", "s_mov_b32 s76, 1.0")
        t = Asm()
        yld = ["s_getpc_b64 s[8:9]", "s_setpc_b64 s[10:11]"]
        t.label(f"{name}_co1")
        if not LNPRE: t(xloads, yld)
        t(f"buffer_load_dword v232, v234, s[{sC}:{sC+3}], s29 offen")
        if not STPRE: t(f"buffer_store_dword v{vZero}, v{vFl}, s[{sWS}:{sWS+3}], 0 offen{SC}")
        if not LNPRE:
            t("s_waitcnt vmcnt(18)")
            ln_compute(t)
            t(yld)
        if not STPRE: xn_store(t)
        t(yld)
        t(f"s_mov_b32 s{sQ2}, s60", f"s_mov_b32 s{sQ2+1}, s61", f"s_mov_b32 s{sQ2+2}, s75", f"s_lshl_b32 s74, s{sI}, 2", f"s_add_u32 s74, s74, s{sW}",
          "s_lshl_b32 s74, s74, 16", f"s_mov_b32 s73, {256*8192}",
          f"v_mov_b32 v{vS}, {BIG}", f"v_mov_b32 v{vT2}, 1", f"v_writelane_b32 v{vS}, s77, 0", f"v_lshlrev_b32 v{vZero}, 2, v{vL}")
        if LNPRE: t(f"s_and_b32 s23, s{sH}, 3", f"s_cbranch_scc0 {name}_arr")
        t(yld)
        t.label(f"{name}_arr")
        t(f"buffer_store_byte v{vT2}, v{vS}, s[{sDb}:{sDb+3}], 0 offen{SC}", yld)
        t(f"buffer_load_dword v{vPoll}, v{vZero}, s[{sDb}:{sDb+3}], 0 offen{SC}", yld)
        t(f"s_mov_b32 s{sWt}, s60", f"s_mov_b32 s{sWt+1}, s61", f"s_mov_b32 s{sWt+2}, s75",
          f"s_lshr_b32 s{sOW}, s{sW}, 1", f"s_lshl_b32 s{sOW}, s{sOW}, 18", f"s_mov_b32 s{sStep}, {64*8192}",
          f"s_mov_b32 s{sC}, s18", f"s_mov_b32 s{sC+1}, s19", f"s_mov_b32 s{sC+2}, {2048*1280}", f"s_mov_b32 s{sOC}, 0", "s_movk_i32 s79, 1024",
          f"s_lshl_b32 s23, s{sI}, 2", f"s_add_u32 s23, s23, s{sW}", f"s_mul_i32 s23, s23, {2*20480}", f"v_add_u32 v{vCo}, s23, v{vL16}",
          f"s_sub_u32 s23, 15, s{sI}", "s_lshl_b32 s23, s23, 2", f"s_add_u32 s23, s23, s{sW}", f"s_mul_i32 s23, s23, {2*20480}", "s_sub_u32 s23, s23, 2048",
          f"v_add_u32 v{vCo+2}, s23, v{vL16}", f"v_add_u32 v{vCo+1}, {20480-1024}, v{vCo}", f"v_add_u32 v{vCo+3}, {20480-1024}, v{vCo+2}",
          )
        if os.environ.get("XT", "0") == "1":
            t(f"s_mov_b32 s{sQ2}, s18", f"s_mov_b32 s{sQ2+1}, s19", f"s_mov_b32 s{sQ2+2}, {2048*1280}", "s_movk_i32 s73, 8192",
              f"s_sub_u32 s23, 15, s{sI}", f"s_bitcmp1_b32 s{sH}, 1", f"s_cselect_b32 s23, s23, s{sI}", "s_lshl_b32 s23, s23, 2", f"s_add_u32 s23, s23, s{sW}",
              "s_lshl_b32 s23, s23, 1", f"s_and_b32 s31, s{sH}, 1", "s_add_u32 s23, s23, s31", "s_mul_i32 s74, s23, 20480", "s_add_u32 s74, s74, 4096",
              f"v_lshlrev_b32 v{vTQ}, 7, v{vL}")
        t("s_waitcnt vmcnt(8)")
        self.poll_check(t, "ln", vPoll, vZero, sDb, [f"v_cmp_ne_u32 vcc, 0x01010101, v{vPoll}"])
        t("s_setpc_b64 s[10:11]")
        self.tail += t.lines
        a.label(f"{name}_p1epi")
        stamp(a, 4)
        a(self.cyc(56))
        self.sWq = sWt; self.sXs = sC; self.sWoff = sOW; self.sXoff = sOC

    def kv_item(self, n, D):
        sc = []
        if n and n % 8 == 0: sc = [f"s_add_u32 s64, s64, {131072-4096}"]
        elif n % 8 == 4: sc = ["s_add_u32 s64, s64, 4096"]
        regs = [((n + 24) % 32) * 8 + r for r in range(8)]
        va = [f"v_accvgpr_read_b32 v{vT+k}, a{r}" for k, r in enumerate(regs)]
        va += [f"v_mul_f32 v{vT+k}, s76, v{vT+k}" for k in range(8)]
        va += [f"v_cvt_pk_bf16_f32 v{D+r}, v{vT+2*r}, v{vT+1+2*r}" for r in range(4)]
        z = []
        st = f"buffer_store_dwordx4 {vr(D,4)}, v{vL16}, s[{sWS}:{sWS+3}], s64 offen offset:{(n%4)*1024}{SC}"
        return sc, va, z, st

    def top8(self):
        name = self.name
        self.a(f"s_cmp_eq_u32 s2, {TOPWG}", f"s_cbranch_scc1 {name}_top8")
        self.a.label(f"{name}_notop")
        a = Asm()
        KEY = 232; CA = 96
        a.label(f"{name}_top8")
        vM, vPrev, vSel, vTok, vTmp, vRow, vR = vT + 4, vT + 5, vT + 6, vT + 7, vT + 8, vT + 9, vT + 10
        a(f"v_mov_b32 v{vPrev}, 0", f"v_mov_b32 v{vSel}, 0", f"v_and_b32 v{vTok}, 7, v{vL}", "s_mov_b32 s23, 0")
        a.label(f"{name}_top")
        a(f"v_max3_u32 v{vM}, v{KEY}, v{KEY+1}, v{KEY+2}", f"v_max3_u32 v{vTmp}, v{KEY+3}, v{KEY+4}, v{KEY+5}",
          f"v_max3_u32 v{vM}, v{vM}, v{KEY+6}, v{KEY+7}", f"v_max_u32 v{vM}, v{vM}, v{vTmp}")
        for m in ("quad_perm:[1,0,3,2]", "quad_perm:[2,3,0,1]", "row_half_mirror", "row_mirror"):
            a("s_nop 1", f"v_max_u32_dpp v{vM}, v{vM}, v{vM} {m} row_mask:0xf bank_mask:0xf")
        xreduce(a, "v_max_u32", vM, vTmp)
        a(f"v_add_u32 v{vPrev}, v{vPrev}, v{vM}", f"v_cmp_eq_u32 vcc, s23, v{vTok}")
        for q in range(8): a(f"v_sub_u32 v{KEY+q}, v{KEY+q}, v{vM}")
        a(f"v_cndmask_b32 v{vSel}, v{vSel}, v{vPrev}, vcc", "s_add_u32 s23, s23, 1", "s_cmp_lt_u32 s23, 8", f"s_cbranch_scc1 {name}_top")
        a(f"s_lshl_b32 s23, s{sW}, 5", f"s_add_u32 s23, s23, {SPARE}", f"v_lshl_add_u32 v{vTmp}, v{vTok}, 2, s23", f"ds_write_b32 v{vTmp}, v{vSel}",
          "s_waitcnt lgkmcnt(0)", "s_barrier", f"s_cmp_lg_u32 s{sW}, 0", f"s_cbranch_scc1 {name}_notop")
        a(f"v_and_b32 v{vTmp}, 31, v{vL}", f"v_lshlrev_b32 v{vTmp}, 2, v{vTmp}", f"v_add_u32 v{vTmp}, {SPARE}, v{vTmp}", f"v_mov_b32 v{vM}, {SPARE}",
          f"ds_read_b32 v{vSel}, v{vTmp}")
        for q in range(8): a(f"ds_read_b128 {vr(CA+4*q,4)}, v{vM} offset:{16*q}")
        a(f"v_mov_b32 v{vTok}, 0", "s_waitcnt lgkmcnt(0)")
        for q in range(0, 32, 4):
            for e in range(4): a(f"v_cmp_gt_u32 s[{4+2*(e%2)}:{5+2*(e%2)}], v{CA+q+e}, v{vSel}" if e < 2 else f"v_cmp_gt_u32 s[{76+2*(e%2)}:{77+2*(e%2)}], v{CA+q+e}, v{vSel}")
            for e in range(4):
                sp = (4 + 2 * e) if e < 2 else (76 + 2 * (e - 2))
                a(f"v_addc_co_u32 v{vTok}, vcc, 0, v{vTok}, s[{sp}:{sp+1}]")
        a(f"v_and_b32 v{vRow}, 0xffff, v{vSel}", f"v_sub_u32 v{vRow}, 0xffff, v{vRow}", f"v_and_b32 v{vRow}, 2047, v{vRow}")
        a(f"v_ashrrev_i32 v{vM}, 31, v{vSel}", f"v_not_b32 v{vM}, v{vM}", f"v_or_b32 v{vM}, 0x80000000, v{vM}",
          f"v_xor_b32 v{vR}, v{vSel}, v{vM}", f"v_and_b32 v{vR}, 0xffff0000, v{vR}",
          f"v_mul_f32 v{vR}, 0xbfb8aa3b, v{vR}", f"v_exp_f32 v{vR}, v{vR}", "s_nop 0", f"v_add_f32 v{vR}, 1.0, v{vR}",
          f"v_rcp_f32 v{vR}, v{vR}", "s_nop 0")
        bf16r(a, vR)
        a(f"v_and_b32 v{vM}, 32, v{vL}", f"v_lshl_add_u32 v{vM}, v{vTok}, 2, v{vM}", f"v_add_u32 v{vM}, {SEL}, v{vM}", f"v_mov_b32 v{vPrev}, {BIG}",
          f"v_cmp_gt_u32 vcc, 8, v{vTok}", f"v_add_u32 v{vRow}, 1, v{vRow}", f"v_or_b32 v{vR}, 1, v{vR}", f"v_cndmask_b32 v{vM}, v{vPrev}, v{vM}, vcc",
          f"v_cmp_gt_u32 vcc, 32, v{vL}", "s_nop 1", f"v_cndmask_b32 v{vR}, v{vR}, v{vRow}, vcc",
          f"buffer_store_dword v{vR}, v{vM}, s[{sWS}:{sWS+3}], 0 offen{SC}", f"s_branch {name}_notop")
        self.tail += a.lines

    def phase2(self):
        a = self.a; name = self.name
        sWq, sXs, sWoff, sXoff = self.sWq, self.sXs, self.sWoff, self.sXoff
        XB = 224; vXa = 14; sW4 = 24
        vm = VM()
        vm.issue("X1", 4); vm.issue("W1", 4); vm.issue("X2", 4); vm.issue("W2", 4); vm.issue("T"); vm.issue("X3", 4); vm.issue("W3", 4)
        def wreads(buf, off):
            return [f"ds_read_b64_tr_b16 {vr(Q+32*buf+4*cb+2*t,2)}, v{vWa+(cb&1)} offset:{off + t*1024 + (cb>>1)*256}" for cb in range(8) for t in range(2)]
        def xreads(buf, off):
            return [f"ds_read_b128 {vr(XB+16*buf+4*qb,4)}, v{vXa} offset:{off + qb*1024}" for qb in range(4)]
        a(f"s_lshr_b32 s23, s{sW}, 1", "s_lshl_b32 s23, s23, 13", f"v_subrev_u32 v{vWa}, s23, v{vWa}", f"v_subrev_u32 v{vWa+1}, s23, v{vWa+1}",
          f"s_lshl_b32 s{sW4}, s{sW}, 12", f"v_add_u32 v{vXa}, s{sW4}, v{vL16}")
        a(wreads(0, 0), f"s_waitcnt vmcnt({vm.need('T')})", xreads(0, 0))
        a(f"s_lshl_b32 s23, s{sH}, 19", "s_add_u32 s64, s64, s23", f"s_lshl_b32 s23, s{sI}, 14", "s_add_u32 s64, s64, s23",
          f"s_and_b32 s23, s{sW}, 1", "s_lshl_b32 s23, s23, 13", "s_add_u32 s64, s64, s23")
        a(f"s_lshl_b32 s23, s{sH}, 19", f"s_add_u32 s23, s23, {KFO}", "s_add_u32 s6, s18, s23", "s_addc_u32 s7, s19, 0",
          f"s_add_u32 s8, s6, {VFO-KFO}", "s_addc_u32 s9, s7, 0", f"s_sub_u32 s23, 16, s{sI}", "s_lshl_b32 s23, s23, 15")
        srd(a, sK, "s6", "s7", "s23")
        srd(a, sV, "s8", "s9", "s23")
        a(f"s_lshl_b32 s30, s{sH}, 7", f"s_add_u32 s30, s30, {KVF}", f"s_mov_b32 s{sThr}, 0x47800000",
          f"s_cmp_eq_u32 s{sW}, 0", f"s_cselect_b32 s65, s{sKVa}, {BIG}")
        a(f"s_waitcnt vmcnt({vm.need('X1')}) lgkmcnt(0)")
        stamp(a, 6)
        per = [int(c) for c in os.environ.get("PER", "22111111111122233330")]
        per[0] += 32 - sum(per)
        assert sum(per) == 32 and len(per) == 20 and per[19] == 0
        last8 = min(k for k in range(20) if sum(per[:k+1]) >= 8)
        SFLAG = last8 + 2 if last8 % 2 else last8 + 3
        SPOLL = int(os.environ.get('SPOLL', '16'))
        misc = [f"v_and_b32 v11, 15, v{vL}", f"v_lshrrev_b32 v10, 4, v{vL}", "v_lshlrev_b32 v10, 2, v10", "v_sub_u32 v11, v11, v10"]
        misc += [f"v_cmp_le_i32 s[{sMask+2*r}:{sMask+2*r+1}], {r}, v11" for r in range(4)]
        misc += [f"v_and_b32 v{vPo}, 7, v{vL}", f"v_lshlrev_b32 v{vPo}, 2, v{vPo}", f"v_add_u32 v{vPo}, s30, v{vPo}"]
        flagst = f"buffer_store_dword v{vWa}, off, s[{sWS}:{sWS+3}], s65{SC}"
        pollld = f"buffer_load_dword v{vPoll}, v{vPo}, s[{sWS}:{sWS+3}], 0 offen{SC}"
        it = 0; zpool = []
        for s_ in range(20):
            buf = s_ & 1
            C = lambda d: "0" if s_ == 0 else vr(d, 4)
            mf = [f"{MF} {vr(QACC+(db*4+qb)*4,4)}, {vr(Q+32*buf+4*db,4)}, {vr(XB+16*buf+4*qb,4)}, {C(QACC+(db*4+qb)*4)}" for qb in range(4) for db in range(8)]
            sc = {g: [] for g in range(32)}; mem = {g: [] for g in range(32)}; va = {g: [] for g in range(32)}
            tags = {g: [] for g in range(32)}
            if s_ & 1: sc[0].append("s_barrier")
            vpos = [3, 8, 13, 18, 23, 28]
            if s_ < 19:
                off = [8192, 32768, 32768 + 8192, 0][s_ % 4]
                rd = wreads(1 - buf, off); xr = xreads(1 - buf, 32768 if s_ % 2 == 0 else 0)
                ds = rd[:8] + xr[:2] + rd[8:] + xr[2:]
                dpos = [g for g in range(1, 27) if g not in vpos][:20]
                for p_, x in zip(dpos, ds): mem[p_].append(x)
            if s_ + 4 < 20:
                sc[2].append(f"s_add_u32 m0, s{sW4}, {(s_%4)*32768}")
                for j in range(4):
                    mem[vpos[j]].append(f"buffer_load_dwordx4 v{vCo+j}, s[{sXs}:{sXs+3}], s{sXoff} offen offset:{j*1024}{SC} lds"); tags[vpos[j]].append(f"X{s_+4}")
                sc[19].append(f"s_add_u32 s{sXoff}, s{sXoff}, 1024")
            stage = (s_ + 1) // 2 + 3
            if s_ >= 1 and stage < 10:
                sc[22].append(f"s_add_u32 m0, s{sW4}, {(stage%4)*32768+16384}")
                for jj in range(2):
                    j = jj if s_ & 1 else 2 + jj
                    mem[vpos[4+jj]].append(f"buffer_load_dwordx4 v{vWo+j}, s[{sWq}:{sWq+3}], s{sWoff} offen offset:{j*1024} lds"); tags[vpos[4+jj]].append(f"W{stage}")
                if not s_ & 1: sc[29].append(f"s_add_u32 s{sWoff}, s{sWoff}, {64*8192}")
            if s_ % 4 == 2:
                va[29].append(f"v_xor_b32 v{vWa}, 0x10000, v{vWa}"); va[30].append(f"v_xor_b32 v{vWa+1}, 0x10000, v{vWa+1}")
            if s_ % 2 == 0: va[27].append(f"v_xor_b32 v{vXa}, 0x10000, v{vXa}")
            if s_ == SFLAG:
                mem[0].append(flagst); tags[0].append("flag")
            if s_ == SPOLL:
                mem[3].append(pollld); tags[3].append("poll")
            toks = []
            for k in range(per[s_]):
                D = vT + 8 + 4 * (it % 2)
                isc, iva, z, ist = self.kv_item(it, D)
                toks += [("s", x) for x in isc] + [("v", x) for x in iva] + [("st" if it >= 8 else "st0", ist)]; it += 1
                zpool += z
            if s_ == 13: toks += [("v", x) for x in misc]
            fs = []
            if s_ in (14, 15):
                for q in (range(3) if s_ == 14 else range(3, 5)):
                    toks += [("v", x) for x in [f"v_add_u32 v9, {64*q}, v{vL}", "v_mul_u32_u24 v10, 6554, v9", "v_lshrrev_b32 v10, 16, v10",
                             f"v_mul_u32_u24 v10, {1280-160}, v10", "v_lshl_add_u32 v10, v9, 4, v10", f"v_accvgpr_write_b32 a{248+q}, v10"]]
            if s_ == 16:
                fs = [f"s_mul_i32 s34, s{sW}, 5120", f"s_add_u32 s34, s34, {SPARE}"] + self.co_setup()[:-3]
            if s_ == 17:
                fs = [f"s_and_b32 s23, s{sW}, 1", "s_lshl_b32 s23, s23, 12", f"s_cmp_lt_u32 s{sW}, 2\ns_cselect_b32 s{sKm}, {131072-24576}, 0",
                         f"s_add_u32 s{sKm}, s{sKm}, s23", f"s_lshl_b32 s{sKo}, s{sW}, 12", f"s_mov_b32 s{sVo}, s{sKo}", f"s_add_u32 s{sVm}, s{sVo}, {32768+16384}",
                         "s_load_dwordx4 s[4:7], s[0:1], 64", "s_load_dwordx2 s[60:61], s[0:1], 80",
                         f"s_add_u32 s23, s{sW}, 1", "s_lshr_b32 s23, s23, 1", f"s_lshl_b32 s{sCnt}, s{sI}, 1", f"s_add_u32 s{sCnt}, s{sCnt}, s23",
                         f"s_lshl_b32 s23, s{sI}, 2", f"s_sub_u32 s{sNSS}, 28, s23", f"s_and_b32 s23, s{sW}, 1", f"s_add_u32 s{sNSS}, s{sNSS}, s23"]
                toks += [("v", x) for x in [f"v_lshrrev_b32 v6, 2, v{vL}", "v_mul_u32_u24 v6, 160, v6", f"v_and_b32 v9, 3, v{vL}",
                         "v_lshl_add_u32 v6, v9, 3, v6", "v_add_u32 v6, s34, v6", f"v_mov_b32 v{vKV}, v{vL16}", f"v_mov_b32 v{vNI}, 0xff800000",
                         f"v_add_u32 v9, {3*32768+8192}, v{vL16}"]]
            if s_ == 18:
                cs = self.co_setup()[-3:]
                fs = [f"s_cmp_ge_u32 s{sW}, 2\ns_cselect_b32 s4, s6, s4\ns_cselect_b32 s5, s7, s5", f"s_mov_b32 s62, {1728*1280}", "s_mov_b32 s63, 0x20000",
                      "s_mov_b64 s[56:57], s[52:53]", "s_mov_b32 s58, s54", "s_mov_b64 s[52:53], s[4:5]", f"s_mov_b32 s54, {640*3456}", cs[0], cs[1] + "\n" + cs[2],
                      f"s_lshl_b32 s31, s{sW}, 11", f"s_add_u32 s31, s31, {RKEY}", f"s_cmp_eq_u32 s2, {TOPWG}\ns_cselect_b32 s31, s31, {BIG}"]
            for q, x in enumerate(fs): sc[1 + q].append(x)
            if s_ == 19:
                tmp = Asm()
                self.poll_check(tmp, "kv", vPoll, vPo, sWS, [f"v_cmp_eq_u32 vcc, 0, v{vPoll}"])
                va[0].append(tmp.lines[0]); sc[1] += tmp.lines[1:]
                mem[0].append(f"buffer_load_dwordx4 v[232:235], v{vL16}, s[{sWS}:{sWS+3}], s31 offen{SC}")
                mem[1].append(f"buffer_load_dwordx4 v[236:239], v{vL16}, s[{sWS}:{sWS+3}], s31 offen offset:1024{SC}")
                for p_ in range(3):
                    g0 = 2 + 10 * p_
                    sc[g0].append(f"s_mov_b32 m0, s{sKm}")
                    for j in range(4): mem[g0+1+2*j].append(f"buffer_load_dwordx4 v{vL16}, s[{sK}:{sK+3}], s{sKo} offen offset:{j*1024}{SC} lds")
                    sc[g0+2].append(f"s_add_u32 s{sKm}, s{sKm}, 32768"); sc[g0+3].append(f"s_and_b32 s{sKm}, s{sKm}, 0x1ffff")
                    sc[g0+8].append(f"s_add_u32 s{sKo}, s{sKo}, 16384")
                def cvq(X, qb):
                    return [f"v_cvt_pk_bf16_f32 v{Q+32*X+8*ks+4*qb+2*hh+e}, v{QACC+((2*ks+hh)*4+2*X+qb)*4+2*e}, v{QACC+((2*ks+hh)*4+2*X+qb)*4+2*e+1}"
                            for ks in range(4) for hh in range(2) for e in range(2)]
                for q in range(4): va[2 + 2 * q].append(f"v_mov_b32 v{LS+q}, 0")
                for q, x in enumerate(cvq(0, 0)): va[10 + q * 10 // 16].append(x)
                for q, x in enumerate(cvq(0, 1)): va[20 + q * 11 // 16].append(x)
            cap = [max(0, 2 - len(mem[g]) - len(va[g])) for g in range(31)]
            nv = sum(1 for t_ in toks if t_[0] != "s")
            nz = len(zpool) if s_ == 19 else min(len(zpool), max(0, sum(cap) - nv - per[s_] - 1))
            toks += [("v", x) for x in zpool[:nz]]; zpool = zpool[nz:]
            nv += nz
            extra = max(0, nv - sum(cap))
            while True:
                cp = list(cap); plc = []; nsc = {g: len(sc[g]) for g in range(32)}
                for q in range(extra): cp[(q * 30 // extra) % 30] += 1
                g = 0; smin = 0; ok = True
                for kind, x in toks:
                    if kind == "s":
                        gg = max(g, smin)
                        while gg < 30 and nsc[gg] and gg < max(g, smin) + 3: gg += 1
                        gg = min(gg, 30); nsc[gg] += 1
                        plc.append((sc, gg, x, None)); smin = gg + 1
                        continue
                    if kind != "v": g = max(g + 1, smin - 1)
                    while g < 31 and cp[g] == 0: g += 1
                    if g >= 31: ok = False; break
                    cp[g] -= 1
                    if kind == "v": plc.append((va, g, x, None))
                    else: plc.append((mem, g, x, kind)); smin = g + 1
                if ok: break
                extra += 1
            for (d_, g, x, kind) in plc:
                d_[g].append(x)
                if kind: tags[g].append(kind)
            for g in range(31):
                for t_ in tags[g]: vm.issue(t_)
            if s_ < 19:
                need = []
                if s_ + 2 < 20: need.append(f"X{s_+2}")
                if (s_ + 1) & 1:
                    st1 = (s_ + 2) // 2
                    if st1 < 10: need.append(f"W{st1}")
                if s_ + 1 == SFLAG: need.append("st0")
                if s_ == 18: need.append("poll")
                sc[31].append(f"s_waitcnt vmcnt({vm.need(*need)}) lgkmcnt(0)" if need else "s_waitcnt lgkmcnt(0)")
            for t_ in tags[31]: vm.issue(t_)
            if os.environ.get("QST"): a(stampv(30 + s_))
            a(weave(mf, sc, mem, va))
        assert it == 32 and not zpool
        stamp(a, 5); stamp(a, 7)
        a(self.cyc(57))
        cv = cvq(1, 0) + cvq(1, 1)
        for p_ in range(2):
            a(f"s_mov_b32 m0, s{sVm}", "s_nop 0")
            for j in range(4):
                a(f"v_mfma_f32_32x32x16_bf16 {ar(O+16*(4*p_+j),16)}, {vr(LS,4)}, {vr(LS,4)}, 0",
                  f"buffer_load_dwordx4 v{vL16}, s[{sV}:{sV+3}], s{sVo} offen offset:{j*1024}{SC} lds", cv[:4]); cv = cv[4:]
            a(f"s_add_u32 s{sVo}, s{sVo}, 16384", f"s_add_u32 s{sVm}, s{sVm}, 32768", f"s_and_b32 s{sVm}, s{sVm}, 0x1ffff")
        assert not cv
        a("s_waitcnt vmcnt(12)", "s_barrier")
        a([f"ds_read_b128 {ar(KF+4*i,4)}, v9 offset:{i*1024}" for i in range(8)])
        a(f"buffer_store_dword v{vNI}, off, s[{sWS}:{sWS+3}], s65 offset:32{SC}", f"v_add_u32 v13, 32, v{vPo}", "v_mov_b32 v14, 0")
        self.top8()
        a("s_waitcnt lgkmcnt(4)")

    def wf_addr(self, d):
        return [f"s_and_b32 s{d}, s2, 1", f"s_lshl_b32 s{d}, s{d}, 2", f"s_add_u32 s{d}, s{d}, s{sW}", f"s_lshl_b32 s{d}, s{d}, 7",
                "s_lshr_b32 s31, s2, 1", f"s_add_u32 s{d}, s{d}, s31", f"s_lshl_b32 s{d}, s{d}, 2", f"s_add_u32 s{d}, s{d}, {WF}"]
    def yf_addr(self, d):
        return [f"s_sub_u32 s{d}, s2, {FFN0}", f"s_lshl_b32 s31, s{sW}, 6", f"s_add_u32 s{d}, s{d}, s31", f"s_lshl_b32 s{d}, s{d}, 2", f"s_add_u32 s{d}, s{d}, {YF}"]
    def flag_store(self, addr_lines, wait):
        return addr_lines + [wait, f"buffer_store_dword v{vNI}, off, s[{sWS}:{sWS+3}], s23{SC}"]

    def co_setup(self):
        name = self.name
        return (["s_mov_b32 s101, 24"] if DBG else []) + [f"s_and_b32 s32, s{sH}, 3", "s_min_u32 s32, s32, 2", "s_add_u32 s32, s32, 5", "s_lshl_b32 s32, s32, 14",
          "s_mov_b32 s9, -1", "s_sub_u32 s23, s2, 64", "s_cmp_lt_u32 s23, 96\ns_cselect_b32 s9, 0, s9", "s_cmp_ge_u32 s2, 224\ns_cselect_b32 s9, 0, s9",
          "s_and_b32 s32, s32, s9", f"s_sub_u32 s23, s2, {FFN0}", f"s_cmp_lt_u32 s23, {FFN1-FFN0}\ns_cselect_b32 s32, {(3+self.FS)*16384}, s32",
          "s_mov_b32 s67, s2", "s_mov_b32 s8, 0", f"s_mov_b32 s{k2.sRing}, 0", "s_mov_b32 s11, 0", "s_mov_b32 s12, 0",
          f"s_lshl_b32 s15, s{sI}, 1", "s_add_u32 s23, s15, 6", f"s_sub_u32 s15, {32-self.U}, s15", "s_max_u32 s15, s15, s23", "s_lshl_b32 s15, s15, 14",
          f"s_getpc_b64 s[36:37]\n{name}_copc:", f"s_add_u32 s36, s36, {name}_co-{name}_copc-4", "s_addc_u32 s37, s37, 0"]

    def cyc(self, lane):
        if not (DBG and os.environ.get("CYC")): return []
        return ["s_memtime s[98:99]", "s_waitcnt lgkmcnt(0)", f"v_writelane_b32 v7, s98, {lane}"]

    def hook(self, cond=None, R=36):
        k = self.nhook; self.nhook += 1
        n = self.name
        dbg = ["s_memrealtime s[98:99]", "s_waitcnt lgkmcnt(0)", "s_mov_b32 s100, s98"] if (DBG and os.environ.get("REC")) else []
        self.tail += [f"{n}_hk{k}:"] + dbg + [f"s_getpc_b64 s[{R+2}:{R+3}]", f"{n}_hp{k}:", f"s_add_u32 s{R}, s{R}, 4", f"s_addc_u32 s{R+1}, s{R+1}, 0",
                      f"s_sub_u32 s{R+2}, s{R+2}, {n}_hp{k}-{n}_hb{k}", f"s_subb_u32 s{R+3}, s{R+3}, 0", f"s_setpc_b64 s[{R}:{R+1}]"]
        return [cond or f"s_cmp_ge_u32 s{sKo}, s32", [f"s_cbranch_scc1 {n}_hk{k}", f"{n}_hb{k}:"]]

    def coroutine(self):
        name = self.name
        a = Asm()
        cnt = [0]
        def rec():
            if DBG and os.environ.get("REC"): a("s_memrealtime s[98:99]", "s_waitcnt lgkmcnt(0)", "s_sub_u32 s98, s98, s100", "s_lshl_b32 s98, s98, 16", "s_and_b32 s100, s100, 0xffff",
                      "s_or_b32 s98, s98, s100", "s_mov_b32 m0, s101", "s_add_u32 s101, s101, 1", "v_writelane_b32 v7, s98, m0")
        def yld(n=1):
            for _ in range(n):
                rec()
                a("s_getpc_b64 s[36:37]", "s_setpc_b64 s[38:39]")
        G = 232; FW = 192; FX = 212; Y = 236
        def wo_reads():
            a("s_waitcnt vmcnt(8)")
            for cb in range(5):
                for tt in range(2): a(f"ds_read_b64_tr_b16 {vr(232+4*cb+2*tt,2)}, v6 offset:{tt*16*160 + cb*32}")
        def wo_stores():
            a("s_add_u32 s31, s30, 4096")
            for cb in range(5):
                a(f"buffer_store_dwordx4 {vr(232+4*cb,4)}, v{vL16}, s[{sWS}:{sWS+3}], s{30 if cb < 4 else 31} offen offset:{(cb%4)*1024}{SC}")
        a.label(f"{name}_co")
        a("s_sub_u32 s14, s2, 64", "s_cmp_lt_u32 s14, 96", f"s_cbranch_scc1 {name}_coT",
          "s_sub_u32 s14, s2, 128", "s_sub_u32 s23, s2, 224", f"s_cmp_lt_u32 s23, {TOPWG-224}", f"s_cbranch_scc1 {name}_coT")
        self.poll_check(a, "kv2", 14, 13, sWS, ["v_cmp_eq_u32 vcc, 0, v14"])
        a(f"s_sub_u32 s14, s2, {FFN0}", f"s_cmp_lt_u32 s14, {FFN1-FFN0}", f"s_cbranch_scc1 {name}_coF",
          f"s_cmp_eq_u32 s2, {TOPWG}", f"s_cbranch_scc1 {name}_coW",
          f"s_cmp_lt_u32 s2, {self.NOWO}", f"s_cbranch_scc1 {name}_coW", f"s_branch {name}_coO")
        a.label(f"{name}_coT")
        a(f"v_min_u32 v8, 16, v{vL}", "v_lshlrev_b32 v8, 7, v8", "s_lshl_b32 s10, s14, 1", f"s_and_b32 s31, s{sW}, 1", "s_add_u32 s10, s10, s31",
          f"s_mul_i32 s10, s10, {17*128}", "s_lshl_b32 s35, s14, 2", f"s_add_u32 s35, s35, s{sW}", f"s_mul_i32 s35, s35, {34*128}")
        for k in range(4):
            if k == 2: self.poll_check(a, "kv3", 14, 13, sWS, ["v_cmp_eq_u32 vcc, 0, v14"])
            a("buffer_load_dword v255, v8, s[52:55], s10 offen", f"s_add_u32 s10, s10, {160*3456}")
            if k >= 2: a(f"buffer_load_dword v255, v8, s[60:63], s35 offen offset:{(k-2)*17*128}")
            if k == 3: a("s_mov_b32 s9, -1", f"s_and_b32 s32, s{sH}, 3", "s_lshr_b32 s32, s32, 1", "s_add_u32 s32, s32, 6", "s_lshl_b32 s32, s32, 14")
            yld()
        a.label(f"{name}_coO")
        a("s_and_b32 s23, s67, 1", "s_lshl_b32 s23, s23, 2", f"s_add_u32 s23, s23, s{sW}", "s_lshr_b32 s31, s67, 1",
          f"s_mul_i32 s33, s23, {-4*self.ROT}", "s_add_u32 s33, s33, s31", "s_and_b32 s33, s33, 31", "s_andn2_b32 s30, s31, 31", "s_add_u32 s33, s33, s30",
          "s_lshl_b32 s30, s23, 7", "s_add_u32 s30, s30, s33", f"s_mul_i32 s33, s31, {32*1280}", "s_mul_i32 s23, s23, 160", "s_add_u32 s33, s33, s23")
        for q in range(5):
            a(f"s_add_u32 m0, s34, {q*1024}", f"v_accvgpr_read_b32 v{vT+3}, a{248+q}", f"buffer_load_dwordx4 v{vT+3}, s[56:59], s33 offen lds")
        a("s_lshl_b32 s32, s11, 15", f"s_add_u32 s32, s32, s{sKo}", "s_mov_b32 s9, -1", "s_lshl_b32 s10, s30, 2", "s_mul_i32 s30, s30, 5120", f"s_add_u32 s30, s30, {WOF}")
        yld()
        wo_reads()
        a("s_waitcnt lgkmcnt(0)")
        wo_stores()
        yld()
        a(self.flag_store([f"s_add_u32 s23, s10, {WF}"], "s_waitcnt vmcnt(8)"),
          "s_cmp_lg_u32 s67, s2", f"s_cbranch_scc1 {name}_coW",
          "s_sub_u32 s67, s2, 128", f"s_cmp_lt_u32 s67, {self.NOWO}", f"s_cbranch_scc1 {name}_coO",
          "s_sub_u32 s23, s2, 96", "s_sub_u32 s31, s2, 192", "s_cmp_lt_u32 s23, 32", "s_cselect_b32 s23, s23, s31",
          f"s_cmp_gt_u32 s23, {FFN1-FFN0}", f"s_cbranch_scc1 {name}_coW",
          f"s_add_u32 s67, s23, {FFN0}", f"s_cmp_eq_u32 s67, {FFN1}", f"s_cselect_b32 s67, {TOPWG}, s67", f"s_branch {name}_coO")
        FV = self.FV
        a.label(f"{name}_coF")
        if os.environ.get("NOFFN"): a(self.flag_store(self.yf_addr(23), "s_nop 0"), f"s_branch {name}_coW")
        a(f"v_and_b32 v{vT}, 7, v{vL}", f"v_lshlrev_b32 v252, 2, v{vT}", f"v_add_u32 v252, {SEL}, v252",
          f"buffer_load_dword v15, v252, s[{sWS}:{sWS+3}], 0 offen{SC}")
        a("s_lshl_b32 s33, s14, 6", f"s_and_b32 s31, s{sW}, 1", "s_lshl_b32 s31, s31, 5", "s_add_u32 s33, s33, s31",
          "s_mul_i32 s35, s14, 40960", f"s_mul_i32 s31, s{sW}, 320", "s_add_u32 s35, s35, s31",
          "s_mul_i32 s10, s14, 20480", f"s_mul_i32 s31, s{sW}, 5120", "s_add_u32 s10, s10, s31", f"s_add_u32 s10, s10, {YP}")
        a(f"v_lshrrev_b32 v{vT+1}, 1, v{vL}", f"v_mul_u32_u24 v{FV[0]}, 3456, v{vT+1}", f"v_and_b32 v{vT+1}, 1, v{vL}", f"v_lshl_add_u32 v{FV[0]}, v{vT+1}, 4, v{FV[0]}")
        for q in range(1, 5): a(f"v_add_u32 v{FV[q]}, {q*32*3456 - (q%4)*1024}, v{FV[0]}")
        a(f"v_lshrrev_b32 v{vT+1}, 4, v{vL}",
          f"v_lshrrev_b32 v{vT+2}, 2, v{vL}", f"v_lshl_add_u32 v{vT+2}, v{vT+1}, 2, v{vT+2}",
          f"v_lshlrev_b32 v{vT+2}, 5, v{vT+2}", f"v_and_b32 v{vT+3}, 3, v{vL}", f"v_lshl_add_u32 v9, v{vT+3}, 3, v{vT+2}", "v_add_u32 v9, s34, v9",
          f"v_lshlrev_b32 v10, 4, v{vT}", f"v_lshl_add_u32 v10, v{vT+1}, 7, v10", f"v_add_u32 v10, {XS-2560}, v10", "s_mov_b32 s8, -1",
          "s_mov_b32 s4, 0", "s_mov_b32 s5, 0", f"s_mov_b32 s6, {160*3456}")
        yld()
        a("s_waitcnt vmcnt(8)")
        self.poll_check(a, "sel", 15, 252, sWS, ["v_cmp_eq_u32 vcc, 0, v15"])
        a(f"v_add_u32 v{vT+2}, -1, v15", f"v_and_b32 v{vT+2}, 2047, v{vT+2}", f"v_lshrrev_b32 v{vT+3}, 4, v{vT+2}", f"v_mul_u32_u24 v{vT+3}, 20480, v{vT+3}",
          f"v_and_b32 v{vT+2}, 15, v{vT+2}", f"v_lshl_add_u32 v{vT+3}, v{vT+2}, 4, v{vT+3}",
          f"v_lshrrev_b32 v{vT+2}, 3, v{vL}", f"v_lshl_add_u32 v{vT+3}, v{vT+2}, 8, v{vT+3}",
          f"s_lshl_b32 s23, s{sW}, 11", f"s_lshl_b32 s31, s{sW}, 10", f"s_add_u32 s31, s31, {XS}", f"s_mov_b32 s32, {(8+self.FS)*16384}")
        for k in range(3):
            a("s_mov_b32 m0, s31", "s_add_u32 s31, s31, 4096", f"buffer_load_dwordx4 v{vT+3}, s[{sWS}:{sWS+3}], s23 offen{SC} lds",
              "s_add_u32 s23, s23, 8192")
        yld()
        for q in range(5): a(f"v_accvgpr_read_b32 v{FV[q]}, a{248+q}")
        for q in range(1, 4): a(f"v_subrev_u32 v{FV[q]}, {q*1024}, v{FV[q]}")
        a("s_mov_b32 s52, s60", "s_mov_b32 s53, s61", "s_mov_b32 s33, s35", "s_movk_i32 s6, 160", "s_mov_b32 s9, 0",
          f"v_and_b32 v{vT+1}, 7, v{vL}", f"v_lshlrev_b32 v15, 6, v{vT+1}", f"v_lshrrev_b32 v{vT+1}, 4, v{vL}", f"v_lshl_add_u32 v15, v{vT+1}, 4, v15",
          f"v_and_b32 v{vT+1}, 8, v{vL}", f"v_lshl_add_u32 v15, v{vT+1}, 27, v15")
        yld()
        a(f"s_lshl_b32 s23, s{sW}, 9", f"v_add_u32 v{vT}, s23, v10", "s_mov_b32 s9, -1", f"ds_write_b128 v{vT}, {vr(G,4)}")
        yld()
        GU = 236
        def dreads():
            a("s_waitcnt vmcnt(4)")
            for cb in range(5):
                for t in range(2): a(f"ds_read_b64_tr_b16 {ar(FW+4*cb+2*t,2)}, v6 offset:{t*2560+cb*32}")
        def dmm():
            a("s_waitcnt lgkmcnt(0)")
            for cb in range(5): a(f"{MF} {vr(Y+4*cb,4)}, {ar(FW+4*cb,4)}, {ar(232,4)}, 0")
            a("s_nop 3")
            for cb in range(5): a(f"buffer_store_dwordx4 {vr(Y+4*cb,4)}, v15, s[{sWS}:{sWS+3}], s10 offen offset:{cb*512}{SC}")
            a("s_add_u32 s10, s10, 2560")
        for k in range(4): a(f"ds_read_b128 {vr(GU+4*k,4)}, v10 offset:{k*512}")
        dreads()
        a("v_subrev_u32 v10, 10240, v10", "s_mov_b32 s8, 0", "s_waitcnt lgkmcnt(10)")
        for k in range(8):
            a(f"v_cvt_pk_bf16_f32 v{GU+k}, v{GU+k}, v{GU+8+k}")
        for k in range(8): a(f"v_lshlrev_b32 v{GU+8+k}, 16, v{GU+k}")
        for k in range(8): a(f"v_mul_f32 v{vT+k}, 0xbfb8aa3b, v{GU+8+k}")
        for k in range(8): a(f"v_exp_f32 v{vT+k}, v{vT+k}")
        for k in range(8): a(f"v_add_f32 v{vT+k}, 1.0, v{vT+k}")
        for k in range(8): a(f"v_rcp_f32 v{vT+k}, v{vT+k}")
        for k in range(8): a(f"v_and_b32 v{GU+k}, 0xffff0000, v{GU+k}")
        for k in range(4): a(f"v_pk_mul_f32 {vr(GU+8+2*k,2)}, {vr(GU+8+2*k,2)}, {vr(vT+2*k,2)}")
        for k in range(4): a(f"v_cvt_pk_bf16_f32 v{vT+k}, v{GU+8+2*k}, v{GU+9+2*k}")
        for k in range(4): a(f"v_lshlrev_b32 v{GU+8+2*k}, 16, v{vT+k}", f"v_and_b32 v{GU+9+2*k}, 0xffff0000, v{vT+k}")
        for k in range(4): a(f"v_pk_mul_f32 {vr(GU+2*k,2)}, {vr(GU+2*k,2)}, {vr(GU+8+2*k,2)}")
        for k in range(4): a(f"v_cvt_pk_bf16_f32 v{vT+k}, v{GU+2*k}, v{GU+2*k+1}")
        for k in range(4): a(f"v_accvgpr_write_b32 a{232+k}, v{vT+k}")
        a("s_nop 0")
        dmm()
        yld()
        dreads()
        dmm()
        yld()
        a(self.flag_store(self.yf_addr(23), "s_waitcnt vmcnt(8)"))
        a.label(f"{name}_coW")
        waddr = [f"s_lshl_b32 s23, s{sI}, 2", f"s_add_u32 s23, s23, s{sW}", f"s_mul_i32 s13, s23, {32*5120}", f"s_add_u32 s13, s13, {WOF}",
                 "s_lshl_b32 s23, s23, 7", f"s_add_u32 s23, s23, {WF}", f"v_and_b32 v9, 31, v{vL}", "v_lshl_add_u32 v9, v9, 2, s23"]
        if self.E7:
            assert sum(self.CB[:4]) == 16
            a(f"s_cmp_lg_u32 s{sI}, 7", f"s_cbranch_scc1 {name}_coW1", "s_mov_b32 s9, -1", f"s_mov_b32 s32, {(3+self.E7)*16384}")
            yld()
            a(waddr, f"buffer_load_dword v8, v9, s[{sWS}:{sWS+3}], 0 offen{SC}")
            yld()
            a("s_waitcnt vmcnt(8)")
            self.poll_check(a, "wof7", 8, 9, sWS, ["v_cmp_eq_u32 vcc, 0, v8"])
            for f in range(16):
                if f == 8: yld()
                if f % 4 == 0: a(f"s_add_u32 s14, s13, {f*1024}")
                a(self.wl(f).replace("s13 offen", "s14 offen"))
            a.label(f"{name}_coW1")
        a("s_mov_b32 s12, 1", "s_mov_b32 s9, -1", "s_cmp_lg_u32 s11, 0", "s_cselect_b32 s32, s15, -1")
        yld()
        a(waddr,
          f"v_and_b32 v10, 15, v{vL}", "v_lshlrev_b32 v10, 2, v10", f"v_add_u32 v10, {SEL}, v10",
          f"buffer_load_dword v8, v9, s[{sWS}:{sWS+3}], 0 offen{SC}", f"buffer_load_dword v15, v10, s[{sWS}:{sWS+3}], 0 offen{SC}")
        self.ctx_epi(a, 0, [32, 44, 96, 108])
        a(f"s_mov_b32 s28, s{sK+2}", "s_add_u32 s30, s28, 65536", f"s_lshl_b32 s23, s{sW}, 12", "s_add_u32 s23, s23, s28",
          f"s_add_u32 s31, s13, {self.FL*1024}", "s_sub_u32 s31, s31, s23", "s_add_u32 s4, s18, s31", "s_addc_u32 s5, s19, 0",
          "s_add_u32 s6, s4, 4096", "s_addc_u32 s7, s5, 0")
        a("s_waitcnt vmcnt(8)")
        self.poll_check(a, "wof", 8, 9, sWS, ["v_cmp_eq_u32 vcc, 0, v8"])
        self.poll_check(a, "sel4", 15, 10, sWS, ["v_cmp_eq_u32 vcc, 0, v15"])
        a(f"s_lshl_b32 s31, s{sH}, 6", "s_add_u32 s31, s31, 1", f"v_subrev_u32 v{vT}, s31, v15", f"v_cmp_gt_u32 vcc, 64, v{vT}",
          f"s_cmp_lt_u32 s{sW}, 2", "s_cselect_b32 s23, 0xff, 0", "s_and_b32 s10, vcc_lo, s23",
          "s_sub_u32 s23, s10, 1", "s_and_b32 s23, s23, s10", f"s_cmp_eq_u32 s{sW}, 1", "s_cselect_b32 s10, s23, s10",
          "s_cmp_eq_u32 s10, 0", f"s_cbranch_scc1 {name}_coEnd")
        a(f"v_min_u32 v11, {FFN1-FFN0-1}, v{vL}", f"s_lshr_b32 s23, s{sI}, 1", "s_lshl_b32 s23, s23, 8", f"s_add_u32 s23, s23, {YF}",
          "v_lshl_add_u32 v11, v11, 2, s23", f"buffer_load_dword v14, v11, s[{sWS}:{sWS+3}], 0 offen{SC}")
        YQ = list(range(64, 96, 4)) + list(range(128, 160, 4)) + [176, 180]
        AC = YQ[0]
        a(f"v_mul_u32_u24 v{vT}, 3277, v{vL}", f"v_lshrrev_b32 v{vT}, 16, v{vT}", f"v_mul_u32_u24 v8, 20, v{vT}",
          f"v_sub_u32 v8, v{vL}, v8", "v_lshlrev_b32 v8, 4, v8",
          f"v_mul_u32_u24 v9, {18*20480}, v{vT}", f"v_lshrrev_b32 v{vT+1}, 6, v8", f"v_mul_u32_u24 v{vT+1}, 448, v{vT+1}", f"v_add3_u32 v9, v9, v8, v{vT+1}",
          f"v_cmp_gt_u32 vcc, 3, v{vT}", f"v_mov_b32 v{vT+3}, {BIG}", "s_nop 0", f"v_cndmask_b32 v9, v{vT+3}, v9, vcc")
        a("s_mov_b32 s12, 2", "s_mov_b32 s32, -1", "s_mov_b32 s11, 0")
        yld()
        self.poll_check(a, "yf", 14, 11, sWS, ["v_cmp_eq_u32 vcc, 0, v14"])
        a.label(f"{name}_coY")
        a("s_ff1_i32_b32 s33, s10", "s_bitset0_b32 s10, s33", "s_sub_u32 s23, s10, 1", "s_and_b32 s10, s10, s23",
          "s_lshl_b32 s14, s33, 6", f"s_mul_i32 s23, s{sI}, 2560", "s_add_u32 s14, s14, s23", f"s_add_u32 s14, s14, {YP}")
        for q in range(18):
            a(f"buffer_load_dwordx4 {vr(YQ[q],4)}, v9, s[{sWS}:{sWS+3}], s14 offen{SC}", "s_add_u32 s14, s14, 20480")
        a(f"s_lshl_b32 s14, s{sW}, 10", f"s_add_u32 s14, s14, {SCR}", f"v_add_u32 v{vT+3}, s14, v{vL16}", "s_add_u32 s23, s33, 8",
          "v_readlane_b32 s35, v15, s23", "s_waitcnt vmcnt(0)")
        for q in range(1, 18):
            for e in range(0, 4, 2): a(f"v_pk_add_f32 {vr(AC+e,2)}, {vr(AC+e,2)}, {vr(YQ[q]+e,2)}")
        a(f"ds_write_b128 v{vT+3}, {vr(AC,4)}", f"v_add_u32 v{vT+3}, s14, v8", "s_and_b32 s35, s35, 0xffff0000", "s_waitcnt lgkmcnt(0)",
          f"ds_read_b128 {vr(AC,4)}, v{vT+3}", f"ds_read_b128 {vr(AC+4,4)}, v{vT+3} offset:320", f"ds_read_b128 {vr(AC+8,4)}, v{vT+3} offset:640",
          "s_mul_i32 s14, s33, 320", f"s_add_u32 s14, s14, {UPD}", f"v_add_u32 v{vT+3}, s14, v8", "s_waitcnt lgkmcnt(0)")
        for e in range(4):
            a(f"v_add_f32 v{AC+e}, v{AC+e}, v{AC+4+e}", f"v_add_f32 v{AC+e}, v{AC+e}, v{AC+8+e}")
            bf16r(a, AC + e)
            a(f"v_mul_f32 v{AC+e}, s35, v{AC+e}")
            bf16r(a, AC + e)
        a(f"ds_write_b128 v{vT+3}, {vr(AC,4)}", "s_waitcnt lgkmcnt(0)", "s_cmp_lg_u32 s10, 0", f"s_cbranch_scc1 {name}_coY")
        a.label(f"{name}_coEnd")
        a("s_mov_b32 s12, 3", "s_mov_b32 s32, -1")
        rec()
        a("s_setpc_b64 s[38:39]")
        self.tail += a.lines

    def phase3(self):
        a = self.a; name = self.name
        a(self.period(1, ["q", "q"], c0=True))
        a("s_nop 7", f"s_cmp_lg_u32 s{sCnt}, 0", f"s_cbranch_scc1 {name}_nomask0")
        a(mask_ops(0, 0))
        a.label(f"{name}_nomask0")
        for X in range(2):
            for qb in range(2):
                s0 = S + 32 * X + 8 * qb; d = vT + 2 * X + qb
                a(f"v_max3_f32 v{d}, v{s0}, v{s0+1}, v{s0+2}", f"v_max3_f32 v{d}, v{d}, v{s0+3}, v{s0+4}",
                  f"v_max3_f32 v{d}, v{d}, v{s0+5}, v{s0+6}", f"v_max_f32 v{d}, v{d}, v{s0+7}")
        for sw in ("v_permlane16_swap_b32", "v_permlane32_swap_b32"):
            for k in range(4): a(f"v_mov_b32 v{vT+4+k}, v{vT+k}")
            a("s_nop 0")
            for k in range(4): a(f"{sw} v{vT+k}, v{vT+4+k}")
            for k in range(4): a(f"v_max_f32 v{vT+k}, v{vT+k}, v{vT+4+k}")
        for X in range(2):
            for qb in range(2):
                for r in range(4): a(f"v_sub_f32 v{NM+8*X+4*qb+r}, 0, v{vT+2*X+qb}")
        for X in range(2):
            for qb in range(2):
                s0 = S + 32 * X + 8 * qb
                for r in range(8): a(f"v_sub_f32 v{s0+r}, v{s0+r}, v{vT+2*X+qb}")
        a(self.period(0, ["qs", "qs"]))
        a(f"buffer_load_dword v14, v13, s[{sWS}:{sWS+3}], 0 offen{SC}")
        stamp(a, 8)
        a(self.cyc(50))
        F = "qsv"
        a(f"s_cmp_eq_u32 s{sCnt}, 0", f"s_cbranch_scc1 {name}_AV", f"s_sub_u32 s{sCnt}, s{sCnt}, 1",
          f"s_cmp_eq_u32 s{sCnt}, 0", f"s_cbranch_scc1 {name}_Aexit")
        a(".p2align 6")
        a.label(f"{name}_DD")
        a(self.period(1, [F, F], bar=12, hook=self.hook()))
        a.label(f"{name}_DDe")
        a(self.period(0, [F, F], tail_sc=[f"s_sub_u32 s{sCnt}, s{sCnt}, 1", f"s_cmp_gt_u32 s{sCnt}, s8"], hook=self.hook(f"s_cmp_ge_u32 s{sKo}, s9")))
        a(f"s_cbranch_scc1 {name}_DD", "s_cmp_lg_u32 s8, 0", f"s_cbranch_scc1 {name}_DDF")
        ex = [([f"s_add_u32 m0, s34, {(q//4)*4096}"] if q % 4 == 0 else [],
               f"buffer_load_dwordx4 v{self.FV[q]}, s[52:55], s33 offen offset:{(q%4)*1024} lds") for q in range(5)]
        hk = self.hook()
        k_ = self.nhook - 1
        self.tail[-3] = f"s_add_u32 s38, s38, {name}_hb{k_}-{name}_hp{k_}"; self.tail[-2] = "s_addc_u32 s39, s39, 0"
        G, FW, FX = 232, 192, 212
        rd = []
        for q in range(5):
            rd += [f"ds_read_b64_tr_b16 {ar(FW+4*q+2*t,2)}, v9 offset:{q*1024+t*128}" for t in range(2)] + [f"ds_read_b128 {ar(FX+4*q,4)}, v10 offset:{q*512}"]
        rg = [3, 4, 5, 5, 7, 7, 8, 9, 9, 10, 10, 11, 11, 14, 14]
        xpost = [(20 + k, f"v_and_b32 v{G+k}, s4, v{G+k}") for k in range(4)] + [(18, "v_add_u32 v10, 2560, v10")]
        xpost += [(34 + 5 * q, f"{MF} {vr(G,4)}, {ar(FW+4*q,4)}, {ar(FX+4*q,4)}, {vr(G,4)}") for q in range(5)]
        xsc = [(33, "s_mov_b32 s4, s5"), (34, "s_mov_b32 s5, -1"), (57, "s_add_u32 s33, s33, s6")]
        self.tail += [f"{name}_DDF:"] + self.period(1, [F, F], bar=4, hook=hk, extra=ex, dgaps=[6, 13, 19, 25], egaps=[31, 37, 43, 49, 55],
                                                    xmem=list(zip(rg, rd)), xsc=xsc, xpost=xpost) + [f"s_branch {name}_DDe"]
        self.coroutine()
        a.label(f"{name}_Aexit")
        a(self.cyc(51))
        a(f"s_bitcmp1_b32 s{sW}, 0", f"s_cbranch_scc1 {name}_Aodd")
        a(self.period(1, [F, F], bar=12))
        a(self.period(0, ["smv", F]))
        a.label(f"{name}_AV")
        a(self.period(1, ["v", F], bar=12))
        a(self.period(0, ["", F]))
        a(f"s_branch {name}_SSpre")
        a.label(f"{name}_Aodd")
        a(self.period(1, ["smv", F], bar=12))
        a(self.period(0, ["v", F]))
        a.label(f"{name}_SSpre")
        a(self.cyc(52))
        a("s_mov_b32 s11, 1", "s_cmp_lg_u32 s12, 0", "s_cselect_b32 s32, s15, s32")
        U, KY = self.U, self.KY
        def wx(fs):
            out = []
            for k, f in enumerate(fs):
                pre = [f"s_add_u32 s14, s13, {(f//4)*4096}"] if (k == 0 or f % 4 == 0) else []
                out.append((pre, self.wl(f).replace("s13 offen", "s14 offen")))
            return out
        def drain(lv):
            h = self.hook(f"s_cmp_lt_u32 s12, {lv}")
            a(h[1][1], h[0], h[1][0])
        a(f"s_cmp_ge_u32 s{sW}, 2", f"s_cselect_b32 s23, {U}, 0", f"s_cmp_le_u32 s{sNSS}, s23", f"s_cbranch_scc1 {name}_chain")
        a(".p2align 6")
        a.label(f"{name}_SS")
        a(self.period(1, ["", F], bar=12, hook=self.hook()))
        a(self.period(0, ["", F], tail_sc=[f"s_sub_u32 s{sNSS}, s{sNSS}, 1", f"s_cmp_gt_u32 s{sNSS}, {U}"]))
        a(f"s_cbranch_scc1 {name}_SS")
        a.label(f"{name}_chain")
        if os.environ.get("PRIO", "1") == "1": a("s_setprio 3")
        a(self.cyc(53))
        drain(2)
        a(f"s_cmp_eq_u32 s{sNSS}, {U}", f"s_cbranch_scc0 {name}_disp")
        t = Asm()
        t.label(f"{name}_disp")
        for k in range(U - 1, 0, -1): t(f"s_cmp_eq_u32 s{sNSS}, {k}", f"s_cbranch_scc1 {name}_SSW{k}")
        t(f"s_branch {name}_Bexit")
        self.tail += t.lines
        for k in range(U, 0, -1):
            a.label(f"{name}_SSW{k}")
            f0 = sum(self.CB[:U-k]); nb = self.CB[U-k]; h1 = nb // 2
            a(self.period(1, ["", F], bar=(8 if k == 1 else 12), extra=wx(range(f0, f0 + h1)), redir=(k <= 3)))
            a(self.period(0, ["", F], extra=wx(range(f0 + h1, f0 + nb)), redir=(k <= 3)))
        a.label(f"{name}_Bexit")
        a(self.cyc(54))
        f0 = U * 6
        a(f"s_bitcmp1_b32 s{sW}, 0", f"s_cbranch_scc1 {name}_Bodd")
        a(self.period(1, ["", F], bar=8, dma=False, kread=False, extra=wx(range(f0, f0 + 6))))
        a(self.period(0, ["", "smv"], dma=False, kread=False, extra=wx(range(f0 + 6, f0 + 10))))
        a(self.period(1, ["", "v"], bar=10, dma=False, kread=False, extra=wx(range(f0 + 10, f0 + 12)), condbar=f"{name}_nb0"))
        a(f"s_branch {name}_Bdone")
        a.label(f"{name}_Bodd")
        a(self.period(1, ["", "smv"], bar=8, dma=False, kread=False, extra=wx(range(f0, f0 + 7)), condbar=f"{name}_nb1"))
        a(self.period(0, ["", "v"], dma=False, kread=False, extra=wx(range(f0 + 7, f0 + 12))))
        self.wx = wx
        a.label(f"{name}_Bdone")
        a.label(f"{name}_epi")
        stamp(a, 9)
        a(self.cyc(55))
        self.ctx_epi(a, 1, [64, 76, 128, 140])

    def ctx_epi(self, a, X, Ts):
        L = LS + 2 * X
        for sw in ("v_permlane16_swap_b32", "v_permlane32_swap_b32"):
            for k in range(2): a(f"v_mov_b32 v{vT+4+k}, v{L+k}")
            a("s_nop 1")
            for k in range(2): a(f"{sw} v{L+k}, v{vT+4+k}")
            for k in range(2): a(f"v_add_f32 v{L+k}, v{L+k}, v{vT+4+k}")
        for k in range(2): a(f"v_rcp_f32 v{vT+2*k}, v{L+k}")
        if X == 0: a(f"s_lshl_b32 s23, s{sI}, 2")
        else: a(f"s_sub_u32 s23, 15, s{sI}", "s_lshl_b32 s23, s23, 2")
        for k in range(2): a(f"v_mov_b32 v{vT+2*k+1}, v{vT+2*k}")
        a(f"s_add_u32 s23, s23, s{sW}", "s_lshl_b32 s23, s23, 18", f"s_lshl_b32 s31, s{sH}, 12",
          f"s_add_u32 s31, s31, {CTX}", f"s_add_u32 s{sXo}, s23, s31", f"s_add_u32 s{sXo+1}, s{sXo}, {1<<17}")
        k = 0
        for qb in range(2):
            for t in range(4):
                T = Ts[k % len(Ts)]; k += 1
                f = vT + 2 * qb
                for hh in range(2):
                    for r in range(4): a(f"v_accvgpr_read_b32 v{T+4+4*hh+r}, a{O+64*X+8*(2*t+hh)+4*qb+r}")
                for r in range(4): a(f"v_pk_mul_f32 {vr(T+4+2*r,2)}, {vr(T+4+2*r,2)}, {vr(f,2)}")
                for r in range(4): a(f"v_cvt_pk_bf16_f32 v{T+r}, v{T+4+2*r}, v{T+5+2*r}")
                a(f"buffer_store_dwordx4 {vr(T,4)}, v{vL16}, s[{sWS}:{sWS+3}], s{sXo+qb} offen offset:{t*1024}{SC}")

    WQ = ([ar(b, 4) for b in range(192, 256, 4)] + [ar(b, 4) for b in range(0, 64, 4)] + [vr(b, 4) for b in range(32, 64, 4)]
          + [vr(b, 4) for b in range(96, 128, 4)] + [vr(b, 4) for b in range(160, 176, 4)] + [vr(192, 4), vr(196, 4), vr(208, 4), vr(212, 4)]
          + [vr(b, 4) for b in range(232, 248, 4)]
          + [vr(b, 4) for b in range(64, 96, 4)] + [vr(b, 4) for b in range(128, 160, 4)] + [vr(b, 4) for b in range(176, 192, 4)])
    def wl(self, f):
        return f"buffer_load_dwordx4 {self.WQ[f % 80]}, v{vL16}, s[{sWS}:{sWS+3}], s13 offen offset:{(f%4)*1024}{SC}"
    WINC = "s_add_u32 s13, s13, 4096"

    def phase4(self):
        a = self.a; name = self.name
        RS = 336; PART = 64 * RS
        assert len(self.WQ) == 80
        ACq = [ar(b, 4) for b in range(64, 144, 4)]
        CRq = [ar(b, 4) for b in range(144, 192, 4)] + [vr(b, 4) for b in range(216, 232, 4)]
        YQ = list(range(64, 96, 4)) + list(range(128, 160, 4)) + [176, 180]
        XQ = [32, 36, 40, 44, 48, 52]
        XF = [96, 104, 112]; OF = [120, 160, 168]
        vXo, vLa, vXn, vUp = 248, 251, 200, 203
        sX, sO = 44, 48
        sCo = 64
        sMT, sNG = sH, sI
        wl = self.wl; winc = self.WINC
        def cl(ks, qb): return f"buffer_load_dwordx4 {CRq[4*(ks%4)+qb]}, v{vL16}, s[{sWS}:{sWS+3}], s{sCo+qb} offen offset:{(ks%4)*1024}{SC}"
        cnext = ["s_add_u32 s62, s62, 4096", "s_and_b32 s62, s62, 0x7fff", f"s_add_u32 s{sCo}, s63, s62"] + [f"s_add_u32 s{sCo+qb}, s{sCo}, {qb<<17}" for qb in range(1, 4)]
        NL = 36; F0 = 160 - NL; NPRE = int(os.environ.get("NPRE", "4"))
        a("s_load_dwordx2 s[8:9], s[0:1], 0", "s_load_dwordx2 s[16:17], s[0:1], 88")
        a(f"v_mov_b32 v{vT+14}, {BIG}", f"v_writelane_b32 v{vT+14}, s{sCFA}, 0", f"v_writelane_b32 v{vT+14}, s{sCFB}, 1")
        lw = []
        for (pre, l) in self.wx(range(60, 80)): lw.append(pre + [l])
        pubst = f"buffer_store_dword v{vNI}, v{vT+14}, s[{sWS}:{sWS+3}], 0 offen{SC}"
        a("s_cmp_lt_u32 s12, 3", f"s_cbranch_scc1 {name}_puby")
        a(lw[:NPRE], f"s_waitcnt vmcnt({NPRE})", pubst)
        a.label(f"{name}_pubb")
        a("s_setprio 0")
        t = Asm()
        t.label(f"{name}_puby")
        h = self.hook("s_cmp_lt_u32 s12, 3"); k_ = self.nhook - 1
        self.tail[-3] = f"s_add_u32 s38, s38, {name}_hb{k_}-{name}_hp{k_}"; self.tail[-2] = "s_addc_u32 s39, s39, 0"
        t("s_waitcnt vmcnt(0)", pubst, h[0], h[1], lw[:NPRE], f"s_branch {name}_pubb")
        self.tail += t.lines
        stamp(a, 10)
        a(self.cyc(60))
        a(f"s_cmp_lt_u32 s{sNSS}, {self.U}", f"s_cbranch_scc1 {name}_left")
        a.label(f"{name}_leftb")
        t = Asm()
        t.label(f"{name}_left")
        if self.E7: t(f"s_cmp_eq_u32 s{sI}, 7", f"s_cbranch_scc1 {name}_left4")
        for k in range(self.U, 0, -1):
            if k == 4: t.label(f"{name}_left4")
            if k < self.U: t(f"s_cmp_ge_u32 s{sNSS}, {k}", f"s_cbranch_scc1 {name}_leftb")
            for (pre, l) in self.wx(range(sum(self.CB[:self.U-k]), sum(self.CB[:self.U-k+1]))): t(pre, l)
        t(f"s_branch {name}_leftb")
        self.tail += t.lines
        su = [f"s_lshl_b32 s63, s{sMT}, 19", f"s_lshl_b32 s23, s{sW}, 15", "s_add_u32 s63, s63, s23", f"s_add_u32 s63, s63, {CTX}",
              f"s_mul_i32 s62, s{sNG}, {4096*self.ROT}", "s_and_b32 s62, s62, 0x7fff"] + cnext[2:]
        su += [f"v_bfe_u32 v12, v{vL}, 3, 1", f"v_mul_u32_u24 v12, {CS}, v12", f"v_and_b32 v13, 7, v{vL}", "v_lshl_add_u32 v12, v13, 2, v12",
               f"s_mul_i32 s23, s{sMT}, {2*CS}", f"s_lshl_b32 s31, s{sW}, 5", "s_add_u32 s23, s23, s31", f"s_add_u32 s23, s23, {CF}", "v_add_u32 v12, s23, v12",
]
        su += [f"v_mov_b32 v{vT+4+i}, 0" for i in range(4)] + [f"v_add_u32 v{vT}, {UPD+2560}, v{vL16}", f"ds_write_b128 v{vT}, {vr(vT+4,4)}",
               ]
        pollc = f"buffer_load_dword v13, v12, s[{sWS}:{sWS+3}], 0 offen{SC}"
        rest = lw[NPRE:]
        for q, l in enumerate(rest):
            if q == len(rest) - 6: a(su)
            a(l)
        FL = self.FL
        a("s_lshl_b32 s34, s28, 1", f"s_and_b32 s23, s{sW}, 1", "s_lshl_b32 s23, s23, 12", f"s_cmp_lt_u32 s{sW}, 2", f"s_cselect_b32 s33, {131072-24576}, 0",
          "s_add_u32 s33, s33, s23", "s_add_u32 s33, s33, s34", "s_and_b32 s33, s33, 0x1ffff",
          f"s_lshl_b32 s23, s{sW}, 12", f"s_add_u32 s34, s34, {32768+16384}", "s_add_u32 s34, s34, s23", "s_and_b32 s34, s34, 0x1ffff",
          "s_add_u32 s23, s23, s28", f"s_cmp_lt_u32 s{sNSS}, 3",
          f"s_cselect_b32 s{sKo}, s23, s{sKo}", f"s_cselect_b32 s{sVo}, s23, s{sVo}", f"s_cselect_b32 s{sKm}, s33, s{sKm}", f"s_cselect_b32 s{sVm}, s34, s{sVm}",
          f"s_mov_b64 s[{sK}:{sK+1}], s[4:5]", f"s_mov_b64 s[{sV}:{sV+1}], s[6:7]", f"s_mov_b32 s{sK+2}, s30", f"s_mov_b32 s{sV+2}, s30")
        def piece(srdn, so, sm):
            return [f"s_mov_b32 m0, s{sm}", f"s_add_u32 s{sm}, s{sm}, 32768", f"s_and_b32 s{sm}, s{sm}, 0x1ffff"] + \
                   [f"buffer_load_dwordx4 v{vL16}, s[{srdn}:{srdn+3}], s{so} offen offset:{q*1024}{SC} lds" for q in range(4)] + [f"s_add_u32 s{so}, s{so}, 16384"]
        for tag, (srdn, so, sm), lim in (("pk", (sK, sKo, sKm), 3), ("pv", (sV, sVo, sVm), 2)):
            a(f"s_add_u32 s23, s28, {lim*16384}")
            a.label(f"{name}_{tag}")
            a(f"s_cmp_ge_u32 s{so}, s23", f"s_cbranch_scc1 {name}_{tag}d", piece(srdn, so, sm), f"s_branch {name}_{tag}")
            a.label(f"{name}_{tag}d")
        a(f"s_lshl_b32 s35, s{sW}, 12", f"s_add_u32 s35, s35, {SPARE}", "s_mov_b32 m0, s35", f"s_add_u32 s14, s13, {(FL+56)*1024}")
        a([f"buffer_load_dwordx4 v{vL16}, s[{sWS}:{sWS+3}], s14 offen offset:{q*1024}{SC} lds" for q in range(4)])
        a("s_waitcnt lgkmcnt(0)", "s_barrier")
        a(piece(sK, sKo, sKm), pollc, piece(sV, sVo, sVm), piece(sV, sVo, sVm))
        srd(a, sX, "s8", "s9", 2048 * 1280); srd(a, sO, "s16", "s17", 2048 * 1280)
        a(f"s_lshl_b32 s25, s{sMT}, 6", f"s_mul_i32 s26, s{sNG}, 160", f"s_mul_i32 s27, s{sNG}, 2560", "s_waitcnt vmcnt(8)")
        a(stampv(20), self.cyc(61))
        self.poll_check(a, "ctx", 13, 12, sWS, ["v_cmp_eq_u32 vcc, 0, v13"])
        a(stampv(21))
        for ks in range(4): a([cl(ks, qb) for qb in range(4)])
        a(cnext, "s_waitcnt vmcnt(14)")
        a(stampv(22), self.cyc(58))
        tm = []
        for k in range(3):
            tm += [f"v_add_u32 v{vT}, {256*k}, v0", f"v_mul_u32_u24 v{vT+1}, 6554, v{vT}", f"v_lshrrev_b32 v{vT+1}, 16, v{vT+1}",
              f"v_mul_u32_u24 v{vT+2}, 10, v{vT+1}", f"v_sub_u32 v{vT+2}, v{vT}, v{vT+2}",
              f"v_mul_u32_u24 v{vLa+k}, {RS}, v{vT+1}", f"v_lshl_add_u32 v{vLa+k}, v{vT+2}, 5, v{vLa+k}",
              f"v_lshlrev_b32 v{vUp+k}, 5, v{vT+2}",
              f"v_add_u32 v{vT+1}, s25, v{vT+1}", f"v_add_u32 v{vT+8+k}, 1, v{vT+1}",
              f"v_mul_u32_u24 v{vXo+k}, 1280, v{vT+1}", f"v_lshl_add_u32 v{vXo+k}, v{vT+2}, 4, v{vXo+k}", f"v_add_u32 v{vXo+k}, s26, v{vXo+k}",
              f"v_lshrrev_b32 v{vT+3}, 4, v{vT+1}", f"v_mul_u32_u24 v{vT+3}, 20480, v{vT+3}", f"v_and_b32 v{vT+1}, 15, v{vT+1}",
              f"v_lshl_add_u32 v{vT+3}, v{vT+1}, 4, v{vT+3}", f"v_lshl_add_u32 v{vXn+k}, v{vT+2}, 8, v{vT+3}",
              f"v_mov_b32 v{vT+11+k}, 8"]
        tm += [f"v_cmp_gt_u32 vcc, 128, v0", f"v_mov_b32 v{vT}, {BIG}", f"v_mov_b32 v{vT+1}, 0",
          f"v_cndmask_b32 v{vXo+2}, v{vT}, v{vXo+2}, vcc", f"v_cndmask_b32 v{vXn+2}, v{vT}, v{vXn+2}, vcc", f"v_cndmask_b32 v{vLa+2}, v{vT+1}, v{vLa+2}, vcc"]
        tm += [f"v_readlane_b32 s{68+k}, v15, {k}" for k in range(8)]
        for k in range(8):
            tm += [f"v_cmp_eq_u32 s[{52+2*t_}:{53+2*t_}], s{68+k}, v{vT+8+t_}" for t_ in range(3)]
            tm += [f"v_cndmask_b32 v{vT+11+t_}, v{vT+11+t_}, {k}, s[{52+2*t_}:{53+2*t_}]" for t_ in range(3)]
        for t_ in range(3): tm += [f"v_mul_u32_u24 v{vT+11+t_}, 320, v{vT+11+t_}", f"v_add_u32 v{vUp+t_}, v{vUp+t_}, v{vT+11+t_}", f"v_add_u32 v{vUp+t_}, {UPD}, v{vUp+t_}"]
        pw = lambda q: f"ds_write_b128 v{vT}, {ACq[(q%5)*4+q//5]} offset:{(q//5)*16*RS+(q%5)*64}"
        vm = VM()
        for ks in range(4):
            for qb in range(4): vm.issue(f"C{ks}_{qb}")
        ldsf = {}
        for jj in range(4):
            for q in range(4): ldsf[FL + 16*jj + q] = ("K", q); ldsf[FL + 16*jj + 4 + q] = ("V", q)
        for q in range(4): ldsf[FL + 56 + q] = ("S", q)
        gl = [f for f in range(80, 160) if f not in ldsf]; ll = sorted(ldsf)
        WSP = int(os.environ.get("WSP", "26")); gi = 0; li = 0
        for ks in range(32):
            mf = [f"{MF} {ACq[cb*4+qb]}, {self.WQ[(ks*5+cb) % 80]}, {CRq[4*(ks%4)+qb]}, {ACq[cb*4+qb] if ks else 0}" for qb in range(4) for cb in range(5)]
            sc = {g: [] for g in range(20)}; mem = {g: [] for g in range(20)}; va = {g: [] for g in range(20)}
            quota = min(len(gl), (ks * len(gl) + WSP - 1) // WSP)
            tg = {g: [] for g in range(20)}
            nw = 0
            while gi + nw < quota and nw < 3 and gl[gi + nw] - 80 < ks * 5: nw += 1
            for g in sorted((2, 12, 7)[:nw]):
                f_ = gl[gi]; gi += 1
                if f_ % 4 == 0: sc[g].append(f"s_add_u32 s14, s13, {f_*1024}")
                mem[g].append(wl(f_).replace("s13 offen", "s14 offen")); tg[g].append(f"W{f_ // 5}")
            if li < len(ll) and ll[li] - 80 + 3 < ks * 5 and ks >= 12:
                kind = ldsf[ll[li]][0]; sreg = {"K": 33, "V": 34, "S": 35}[kind]
                va[10].append(f"v_add_u32 v11, s{sreg}, v{vL16}")
                if kind != "S":
                    sc[13].append(f"s_add_u32 s{sreg}, s{sreg}, 32768"); sc[15].append(f"s_and_b32 s{sreg}, s{sreg}, 0x1ffff")
                for q, g in enumerate((11, 13, 16, 17)):
                    assert ll[li] // 5 > ks + 1
                    mem[g].append(f"ds_read_b128 {self.WQ[ll[li] % 80]}, v11 offset:{q*1024}"); li += 1
            if ks == 23: sc[8].append("s_barrier")
            if 1 <= ks < 20:
                for g in (0, 2, 5, 6, 9, 13, 14):
                    if tm: va[g].append(tm.pop(0))
            if ks + 4 < 32:
                for qb in range(4):
                    mem[5*qb+4].append(cl(ks, qb)); tg[5*qb+4].append(f"C{ks+4}_{qb}")
                if ks % 4 == 0 and ks > 0:
                    for q, x in enumerate(cnext): sc[[0, 1, 3, 5, 6, 10][q]].append(x)
            XK = int(os.environ.get("XK", "26"))
            if XK <= ks < XK + 3:
                k = ks - XK
                mem[1].append(f"buffer_load_dwordx4 {vr(XQ[k],4)}, v{vXo+k}, s[{sX}:{sX+3}], 0 offen"); tg[1].append(f"x{k}")
                mem[11].append(f"buffer_load_dwordx4 {vr(XQ[3+k],4)}, v{vXn+k}, s[{sWS}:{sWS+3}], s27 offen{SC}"); tg[11].append(f"x{k}")
            if ks == 27:
                for k in range(3):
                    for hh in range(2): mem[[0, 3, 5, 6, 8, 10][2*k+hh]].append(f"ds_read_b128 {vr(OF[k]+4*hh,4)}, v{vUp+k} offset:{16*hh}")
                sc[18].append("s_waitcnt lgkmcnt(0)")
                va[14] += [f"v_and_b32 v{vT}, 15, v{vL}", f"v_mul_u32_u24 v{vT}, {RS}, v{vT}"]
                va[15] += [f"v_lshrrev_b32 v{vT+1}, 4, v{vL}", f"v_lshl_add_u32 v{vT}, v{vT+1}, 4, v{vT}"]
                sc[14].append(f"s_mul_i32 s23, s{sW}, {PART}")
                va[16] += [f"v_add_u32 v{vT}, s23, v{vT}"]
                for k in range(3): va[2+4*k].append(f"v_add_u32 v{vT+4+k}, {2*PART}, v{vLa+k}")
            if ks >= 29:
                k = ks - 29
                ops = []
                for e in range(4):
                    x = XQ[k] + e; xn = XQ[3+k] + e; o = OF[k] + 2 * e; t0, t1 = vT + 2, vT + 3
                    ops += [f"v_lshlrev_b32 v{t0}, 16, v{xn}", f"v_and_b32 v{t1}, 0xffff0000, v{xn}",
                            f"v_add_f32 v{o}, v{o}, v{t0}", f"v_add_f32 v{o+1}, v{o+1}, v{t1}",
                            f"v_cvt_pk_bf16_f32 v{t0}, v{o}, v{o+1}",
                            f"v_lshlrev_b32 v{XF[k]+2*e}, 16, v{x}", f"v_and_b32 v{XF[k]+2*e+1}, 0xffff0000, v{x}",
                            f"v_lshlrev_b32 v{o}, 16, v{t0}", f"v_and_b32 v{o+1}, 0xffff0000, v{t0}"]
                for q, x in enumerate(ops): va[q // 2].append(x)
            if ks == 31:
                for q in range(11): mem[q+9].append(pw(q))
            for g in range(20):
                if g == 9: sc[g].append(f"s_waitcnt vmcnt({vm.need(f'C{ks}_3')})")
                if g == 19 and ks < 31:
                    wneed = [f for f in gl if f // 5 == ks + 1]
                    assert all(gl.index(f) < gi for f in wneed)
                    need = [f"C{ks+1}_1"] + ([f"W{ks+1}"] if wneed else []) + ([f"x{ks-28}"] if ks >= 28 else [])
                    sc[g].append(f"s_waitcnt vmcnt({vm.need(*need)})")
                if g == 8 and 13 <= ks <= 22: sc[g].append("s_waitcnt lgkmcnt(0)")
                for t_ in tg[g]: vm.issue(t_)
            if os.environ.get("OTR"): a("s_memtime s[98:99]", "s_waitcnt lgkmcnt(0)", f"v_writelane_b32 v7, s98, {24+ks}")
            lines = weave(mf, sc, mem, va)
            OX = os.environ.get("OX", "")
            if "c" in OX: lines = [l for l in lines if not (l.startswith("buffer_load") and " s6" in l)]
            if "w" in OX: lines = [l for l in lines if not (l.startswith("buffer_load") and " s13 " in l)]
            if "s" in OX: lines = [l.replace(" sc1", "") for l in lines]
            a(lines)
        assert gi == len(gl) and li == len(ll) and not tm
        a(stampv(23), self.cyc(59))
        for q in range(11, 20): a(pw(q))
        a("s_waitcnt lgkmcnt(0)", "s_barrier")
        PVb = [32, 64, 128]
        for k in range(3):
            for p in range(4):
                for hh in range(2):
                    a(f"ds_read_b128 {vr(PVb[k]+8*p+4*hh,4)}, v{vLa+k if p < 2 else vT+4+k} offset:{(p%2)*PART+16*hh}")
        for k in range(3):
            a(f"s_waitcnt lgkmcnt({[15, 8, 0][k]})")
            b = PVb[k]
            for e in range(0, 8, 2):
                a(f"v_pk_add_f32 {vr(b+e,2)}, {vr(b+e,2)}, {vr(b+8+e,2)}", f"v_pk_add_f32 {vr(b+16+e,2)}, {vr(b+16+e,2)}, {vr(b+24+e,2)}")
            for e in range(0, 8, 2): a(f"v_pk_add_f32 {vr(b+e,2)}, {vr(b+e,2)}, {vr(b+16+e,2)}")
            for src in (XF[k], OF[k]):
                for e in range(4): a(f"v_cvt_pk_bf16_f32 v{b+8+e}, v{b+2*e}, v{b+2*e+1}")
                for e in range(4): a(f"v_lshlrev_b32 v{b+2*e}, 16, v{b+8+e}", f"v_and_b32 v{b+2*e+1}, 0xffff0000, v{b+8+e}")
                for e in range(4): a(f"v_pk_add_f32 {vr(b+2*e,2)}, {vr(b+2*e,2)}, {vr(src+2*e,2)}")
            for e in range(4): a(f"v_cvt_pk_bf16_f32 v{b+12+e}, v{b+2*e}, v{b+2*e+1}")
            a(f"buffer_store_dwordx4 {vr(b+12,4)}, v{vXo+k}, s[{sO}:{sO+3}], 0 offen")

    def gen(self, with_p4=True):
        a = self.a; name = self.name
        self.tail = []; self.p4 = with_p4; self.nhook = 0
        self.phase1()
        self.phase2()
        self.phase3()
        if with_p4: self.phase4()
        stamp_flush(a, 0, sW, sWS)
        a.label(f"{name}_end")
        a("s_endpgm")
        a(self.tail)
        for (k, ss, par) in self.stubs:
            a.label(f"{name}_stub{k}")
            for X in ss: a(f"s_call_b64 s[{sRet}:{sRet+1}], {name}_rare{X}{par}")
            a(f"s_branch {name}_back{k}")
        a.label(f"{name}_codeend")
        for X in range(2):
            for par in range(2): self.rare(X, par)
            self.resc(X)
        return a
```

```python
import os
from asmlib import *
from gen_k1 import XNF, RKEY, SEL, YP, WOF, KFO, VFO, CTX, WS_BYTES, MF, srd, bf16r, stamp, stampc, stamp_init, stamp_flush

LDS = 131072
vL, vL16, vKV, vNI, vX = 1, 2, 3, 4, 5
vWo = 8
vWa = 12
vT = 16
Q = 32
S = 96
P = 160
NM = 192
E = 208
TS = 224
LS = 228
QACC = 96
O = 0
KF = 128
VF = 160
XR = 192
sW, sH, sI = 20, 21, 22
sWq, sXn, sWS, sK, sV = 32, 36, 40, 44, 48
sKm, sVm, sKo, sVo, sCnt, sNSS = 24, 25, 26, 27, 28, 29
sXo = 64
sMask = 68
sRet, sRet2 = 76, 78
sThr = 81
sRing = 66

def xreduce(a, op, v, t):
    a(f"v_mov_b32 v{t}, v{v}", "s_nop 1", f"v_permlane16_swap_b32 v{v}, v{t}", f"{op} v{v}, v{v}, v{t}",
      f"v_mov_b32 v{t}, v{v}", "s_nop 1", f"v_permlane32_swap_b32 v{v}, v{t}", f"{op} v{v}, v{v}, v{t}")

def mask_ops(X, par):
    Sc = S + 32 * X + 16 * par
    o = []
    for r in range(4):
        o.append(f"v_cndmask_b32 v{Sc+r}, v{vNI}, v{Sc+r}, s[{sMask+2*r}:{sMask+2*r+1}]")
    for r in range(4):
        o.append(f"v_mov_b32 v{Sc+4+r}, v{vNI}")
    for r in range(4):
        o.append(f"v_cndmask_b32 v{Sc+12+r}, v{vNI}, v{Sc+12+r}, s[{sMask+2*r}:{sMask+2*r+1}]")
    return o

def sm_ops(X, par):
    Sc = S + 32 * X + 16 * par; Pc = P + 16 * X + 8 * par; e = E + 8 * X
    exps = [f"v_exp_f32 v{e+(i%8)}, v{Sc+i}" for i in range(16)]
    pl = []
    for i in range(16):
        t = TS + 2 * X + i // 8
        aa = e + ((i - 1) % 8); bb = e + (i % 8)
        if i % 8 == 1: pl.append((i, f"v_add_f32 v{t}, v{aa}, v{bb}"))
        elif i % 8 > 1: pl.append((i, f"v_add_f32 v{t}, v{t}, v{bb}"))
        if i % 2 == 1: pl.append((i, f"v_cvt_pk_bf16_f32 v{Pc+i//2}, v{aa}, v{bb}"))
    return exps, pl

class K2:
    SC = ''
    NP = 2
    def __init__(self, name):
        self.name = name
        self.a = Asm()
        self.stubs = []
        self.nstub = 0

    def period(self, par, st, dma=True, bar=None, kread=True, c0=False, tail_sc=None, hook=None, extra=None, dgaps=None, egaps=None, have_pre=None, redir=False, condbar=None, xmem=None, xsc=None, xpost=None):
        odd = par == 1
        qs = [X for X in range(2) if "q" in st[X]]
        vs = [X for X in range(2) if "v" in st[X]]
        ss = [X for X in range(2) if "s" in st[X]]
        mf = []; use = []
        for f in range(8):
            ks, kb = f // 2, f % 2
            for X in qs:
                for qb in range(2):
                    d = S + 32 * X + 16 * (1 - par) + qb * 8 + kb * 4
                    c = vr(d, 4) if ks > 0 else ("0" if c0 else vr(NM + 8 * X + 4 * qb, 4))
                    mf.append(f"{MF} {vr(d,4)}, {ar(KF+4*f,4)}, {vr(Q+32*X+8*ks+4*qb,4)}, {c}"); use.append(("K", f))
        nq = len(mf)
        for db in range(8):
            for X in vs:
                for qb in range(2):
                    d = O + 64 * X + 8 * db + 4 * qb
                    mf.append(f"{MF} {ar(d,4)}, {ar(VF+4*db,4)}, {vr(P+16*X+8*(1-par)+4*qb,4)}, {ar(d,4)}"); use.append(("V", db))
        n = len(mf); nv = n - nq
        hoff = 0 if odd else 8192
        vrd = [f"ds_read_b128 {ar(VF+4*i,4)}, v{vKV} offset:{16384+hoff+i*1024}" for i in range(8)] if vs else []
        krd = [f"ds_read_b128 {ar(KF+4*i,4)}, v{vKV} offset:{hoff+i*1024}" for i in range(8)] if kread else []
        pre = []
        sc = {g: [] for g in range(n)}; mem = {g: [] for g in range(n)}; va = {g: [] for g in range(n)}
        first = 0
        if bar is not None:
            if nq > 0:
                sc[0].append(f"s_waitcnt vmcnt({bar})"); sc[1].append("s_barrier"); first = 2
            else:
                if condbar: pre += [f"s_cmp_ge_u32 s{sW}, 2", f"s_cbranch_scc1 {condbar}", f"s_waitcnt vmcnt({bar})", "s_barrier", f"{condbar}:"]
                else: pre += [f"s_waitcnt vmcnt({bar})", "s_barrier"]
            if os.environ.get("TRACE"):
                pre[0:0] = ["s_memtime s[98:99]", "s_mov_b32 m0, s101", "s_add_u32 s101, s101, 1", "s_waitcnt lgkmcnt(0)", "v_writelane_b32 v7, s98, m0"]
        if hook:
            sc[2].append(hook[0]); sc[3] += hook[1]
        vpos = {}; kpos = {}
        if vrd:
            if nq == 0:
                pre += vrd
                for i in range(8): vpos[i] = -1
            else:
                step = nq // 8
                for i in range(8):
                    g = max(first, i * step)
                    if step == 2 and first == 2: g = [2, 2, 4, 6, 8, 10, 12, 14][i]
                    mem[g].append(vrd[i]); vpos[i] = g
        if krd:
            if nv > 0:
                step = nv // 8
                for i in range(8):
                    g = nq + i * step
                    mem[g].append(krd[i]); kpos[i] = g
            else:
                step = nq // 8
                for i in range(8):
                    g = (i + 1) * step - 1
                    mem[g].append(krd[i]); kpos[i] = g
        if dma:
            srdn = sK if odd else sV; so = sKo if odd else sVo; sm = sKm if odd else sVm
            step = n // 4
            base = 6 if step >= 12 else 4
            gs = [base + j * step for j in range(4)]
            if n == 32: gs = [4, 10, 18, 24]
            if dgaps: gs = dgaps
            if hook and gs[0] == 4: gs = [6, 12, 18, 24]
            if n == 32 and os.environ.get("SCH_DG"): gs = eval(os.environ["SCH_DG"])
            if n == 64 and os.environ.get("SCH_DG64") and not dgaps: gs = eval(os.environ["SCH_DG64"])
            if redir:
                alt = 4 if odd else 6
                sc[gs[0] - 2] += [f"s_cmp_ge_u32 s{so}, s{srdn+2}", f"s_cselect_b64 s[{srdn}:{srdn+1}], s[{alt}:{alt+1}], s[{srdn}:{srdn+1}]",
                                  f"s_cselect_b32 s{srdn+2}, s30, s{srdn+2}"]
            sc[gs[0] - 1].append(f"s_mov_b32 m0, s{sm}")
            for j in range(4):
                (mem[gs[j]].append if not os.environ.get("SCH_BF") else (lambda x, g=gs[j]: mem[g].insert(0, x)))(f"buffer_load_dwordx4 v{vL16}, s[{srdn}:{srdn+3}], s{so} offen offset:{j*1024}{self.SC} lds")
            post = [f"s_add_u32 s{so}, s{so}, 16384", f"s_add_u32 s{sm}, s{sm}, 32768", f"s_and_b32 s{sm}, s{sm}, 0x1ffff"]
            for j, x in enumerate(post): sc[gs[3] + 1 + j].append(x)
        if extra:
            ne = len(extra)
            if n == 32 and ne <= 5 and dma: eg = {1: [14], 2: [8, 22], 3: [8, 14, 22], 4: [6, 14, 20, 26], 5: [6, 12, 16, 22, 26]}[ne]
            else: eg = [first + 1 + (k * (n - 2 - first)) // ne for k in range(ne)]
            if egaps: eg = egaps
            for g, (xs, xl) in zip(eg, extra):
                sc[g - 1 if egaps else g] += xs
                mem[g].append(xl)
        for g, l in (xmem or []): mem[g].append(l)
        for g, l in (xsc or []): sc[g].append(l)
        NP = self.NP
        if have_pre is None: have_pre = ("s" in st[1] and "m" not in st[1] and "v" in st[1])
        do_pre = "q" in st[1] and "s" in st[1]
        exps = []; pl = []; gate = {}
        for X in reversed(ss):
            if "m" in st[X]:
                k0 = 0 if not exps else max(0, len(pl) - 14)
                need = pl[k0 - 1][0] if k0 else -1
                pl[k0:k0] = [(need, l) for l in mask_ops(X, par)]
                gate[len(exps)] = k0 + 12
            e, p = sm_ops(X, par)
            off = len(exps)
            exps += e; pl += [(i + off, l) for i, l in p]
        if ss:
            ts = [TS + 2 * X + qb for X in reversed(ss) for qb in range(2)]
            last = len(exps) - 1
            if len(ts) == 2:
                pl.append((last, f"v_max_f32 v{vX}, v{ts[0]}, v{ts[1]}"))
            else:
                pl.insert(len(pl) - 6, (last - 4, f"v_max3_f32 v{vX}, v{ts[0]}, v{ts[1]}, v{ts[2]}"))
                pl.append((last, f"v_max_f32 v{vX}, v{vX}, v{ts[3]}"))
            cv = [k for k in range(len(pl)) if pl[k][0] == last and "cvt" in pl[k][1]][0]
            lastcvt = pl.pop(cv)[1]
            pl.append((last, f"v_cmp_lt_f32 vcc, s{sThr}, v{vX}"))
        ei = NP if have_pre else 0
        pi = 0
        def ready_pl(le):
            if pi >= len(pl): return False
            need = pl[pi][0]
            return need < ei and not (need == ei - 1 and le)
        def ready_exp():
            if ei >= len(exps): return False
            if pi < gate.get(ei, 0): return False
            for k in range(pi, len(pl)):
                if 0 <= pl[k][0] <= ei - 7 and (pl[k][0] // 16 == ei // 16): return False
                if pl[k][0] > ei - 7: break
            return True
        D = n - 4
        if ss:
            if nq == 0:
                c = 0; le = False
                while c < 120:
                    if ready_pl(le): pre.append(pl[pi][1]); pi += 1; c += 4; le = False
                    elif ready_exp(): pre.append(exps[ei]); ei += 1; c += 8; le = True
                    else: break
            def nready():
                c = 0
                for k in range(pi, len(pl)):
                    if pl[k][0] < ei: c += 1
                    else: break
                return c
            BL = int(os.environ.get("SCH_BL", "6"))
            F = sum(8 if not mem[g] else 4 for g in range(D)) + 12
            tot_over = max(0, (8 * (len(exps) - ei) + 4 * (len(pl) - pi) - F) // 4)
            done_over = 0
            for g in range(D + 1):
                le = False
                nm_left = sum(1 for q in range(g, D) if not mem[q])
                def Pl():
                    nonlocal pi, le
                    va[g].append(pl[pi][1]); pi += 1; le = False
                def Ex():
                    nonlocal ei, le
                    va[g].append(exps[ei]); ei += 1; le = True
                if g == D:
                    while ei < len(exps) or pi < len(pl):
                        if ready_pl(le): Pl()
                        elif ready_exp(): Ex()
                        else: va[g].append("s_nop 0"); le = False
                    break
                eleft = len(exps) - ei
                if not mem[g]:
                    if ready_exp() and (nready() < BL or eleft >= nm_left): Ex()
                    else:
                        for _ in range(2):
                            if ready_pl(le): Pl()
                            else: done_over -= 1
                else:
                    if eleft > nm_left and ready_exp() and (nready() < BL): Ex(); done_over += 1
                    elif ready_pl(le): Pl()
                    else: done_over -= 1
                quota = (tot_over * (g + 1)) // D
                while done_over < quota and not (le and len(exps) - ei <= nm_left):
                    if ready_pl(le) and nready() >= 2 - (len(exps) == ei): Pl(); done_over += 1
                    elif len(exps) - ei >= nm_left and ready_exp(): Ex(); done_over += 2
                    else: break
            assert ei == len(exps) and pi == len(pl), (ei, pi, len(exps), len(pl), st)
            va[n-2].append(lastcvt)
        nxt = sm_ops(1, 1 - par)[0][:NP] if do_pre else []
        post_pre = []
        if nxt:
            if nv > 0:
                va[n-3].append(nxt[0]); post_pre = nxt[1:]
            else: post_pre = ["s_nop 3"] + nxt
        kvupd = []
        if not odd:
            fr = [g for g in range(2, n - 4) if not sc[g]]
            sc[fr[0]].append(f"s_add_u32 s{sRing}, s{sRing}, 32768"); sc[fr[1]].append(f"s_and_b32 s{sRing}, s{sRing}, 0x1ffff")
            kvupd = [f"v_add_u32 v{vKV}, s{sRing}, v{vL16}"]
        order = [("K", f, -2) for f in range(4, 8)]
        evs = []
        for i in range(8):
            if i in vpos: evs.append((vpos[i], 0, "V", i))
        for i in range(8):
            if i in kpos: evs.append((kpos[i], 1, "N", i))
        evs.sort()
        allops = order + [(k, i, g) for (g, _, k, i) in evs]
        def cnt_after(kind, idx, gap):
            pos = [j for j, o in enumerate(allops) if o[0] == kind and o[1] == idx][0]
            assert allops[pos][2] < gap, (kind, idx, gap, st)
            return sum(1 for o in allops[pos+1:] if o[2] < gap)
        seen = set()
        for m, u in enumerate(use):
            if u in seen: continue
            seen.add(u)
            kind, f = u
            if f % 4 != 0: continue
            if kind == "K" and f == 0: continue
            if m == 0:
                pre.append(f"s_waitcnt lgkmcnt({cnt_after(kind, f+3, 0)})")
            else:
                sc[m-1].append(f"s_waitcnt lgkmcnt({cnt_after(kind, f+3, m-1)})")
        if krd:
            g = n - 2 if nv > 0 else n - 1
            sc[g].append(f"s_waitcnt lgkmcnt({cnt_after('N', 3, g)})")
        if tail_sc:
            free = [g for g in range(n // 2, n - 2) if not sc[g]]
            body = [x for x in tail_sc if not x.startswith("s_cmp")]; cmps = [x for x in tail_sc if x.startswith("s_cmp")]
            free = [g for g in free if g < n - 3]
            for x, g in zip(body, free[-len(body):]): sc[g].append(x)
            sc[n-3] += cmps
            for g in range(n - 2, n):
                assert all(x.startswith("s_waitcnt") for x in sc[g]), sc[g]
        if ss:
            k = self.nstub; self.nstub += 1
            sc[n-1].append(f"s_cbranch_vccnz {self.name}_stub{k}")
            sc[n-1].append(f"{self.name}_back{k}:")
            self.stubs.append((k, ss, par))
            if nv > 0: va[n-1] += post_pre
            for X in ss:
                for qb in range(2):
                    va[n-1].append(f"v_add_f32 v{LS+2*X+qb}, v{LS+2*X+qb}, v{TS+2*X+qb}")
            if nv == 0: va[n-1] += post_pre
        if kvupd and max(list(kpos.values()) + list(vpos.values()) + [0]) <= n - 2: va[n-2] += kvupd
        else: va[n-1] += kvupd
        for g, l in (xpost or []): va[g].append(l)
        out = pre + weave(mf, sc, mem, va)
        X_ = os.environ.get("XP", "")
        if "d" in X_ and bar != 0 and not c0: out = [l for l in out if not (l.startswith("buffer_load") and l.endswith("lds") and ("s[44:47]" in l or "s[48:51]" in l))]
        if "b" in X_: out = [l for l in out if l != "s_barrier"]
        if "r" in X_ and not c0: out = [l for l in out if not l.startswith("ds_read")]
        if "v" in X_: out = [l for l in out if not l.startswith("s_cbranch_vccnz")]
        if "a" in X_:
            out, e_, miss = align8(out)
            out = [".p2align 3"] + out
        if "s" in X_: out = [l.replace(" sc1 lds", " lds") for l in out]
        return out

    def loop_interval(self, st, hook, label, cnt):
        p1 = self.period(1, st, bar=12, hook=hook)
        p2 = self.period(0, st, tail_sc=cnt)
        return p1 + p2 + [f"s_cbranch_scc1 {label}"]

    def rare(self, X, par):
        a = self.a
        Sc = S + 32 * X + 16 * par; Sn = S + 32 * X + 16 * (1 - par)
        a.label(f"{self.name}_rare{X}{par}")
        a("s_nop 7")
        d = [vT, vT + 1]
        for qb in range(2):
            s0 = Sc + 8 * qb
            a(f"v_max3_f32 v{d[qb]}, v{s0}, v{s0+1}, v{s0+2}", f"v_max3_f32 v{d[qb]}, v{d[qb]}, v{s0+3}, v{s0+4}",
              f"v_max3_f32 v{d[qb]}, v{d[qb]}, v{s0+5}, v{s0+6}", f"v_max3_f32 v{d[qb]}, v{d[qb]}, v{s0+7}, 0")
            xreduce(a, "v_max_f32", d[qb], vT + 2)
            for r in range(8):
                a(f"v_sub_f32 v{s0+r}, v{s0+r}, v{d[qb]}", f"v_sub_f32 v{Sn+8*qb+r}, v{Sn+8*qb+r}, v{d[qb]}")
        a(f"s_call_b64 s[{sRet2}:{sRet2+1}], {self.name}_resc{X}")
        exps, pl = sm_ops(X, par)
        pi = 0
        for i in range(16):
            a(exps[i])
            while pi < len(pl) and pl[pi][0] < i:
                a(pl[pi][1]); pi += 1
        a("s_nop 0")
        a([l for _, l in pl[pi:]])
        if X == 1: a(sm_ops(1, 1 - par)[0][:1])
        a("s_nop 1", f"s_setpc_b64 s[{sRet}:{sRet+1}]")

    def resc(self, X):
        a = self.a
        a.label(f"{self.name}_resc{X}")
        for qb in range(2):
            for r in range(4):
                a(f"v_sub_f32 v{NM+8*X+4*qb+r}, v{NM+8*X+4*qb+r}, v{vT+qb}")
            a(f"v_exp_f32 v{vT+2+qb}, -v{vT+qb}")
        a("s_nop 0")
        for qb in range(2):
            a(f"v_mul_f32 v{LS+2*X+qb}, v{LS+2*X+qb}, v{vT+2+qb}")
        for db in range(8):
            for qb in range(2):
                o = O + 64 * X + 8 * db + 4 * qb
                for r in range(4): a(f"v_accvgpr_read_b32 v{vT+4+r}, a{o+r}")
                for r in range(4): a(f"v_mul_f32 v{vT+4+r}, v{vT+4+r}, v{vT+2+qb}")
                for r in range(4): a(f"v_accvgpr_write_b32 a{o+r}, v{vT+4+r}")
        a(f"s_setpc_b64 s[{sRet2}:{sRet2+1}]")

    def gen(self):
        a = self.a; name = self.name
        a("s_cmp_ge_u32 s2, 256", f"s_cbranch_scc1 {name}_end")
        stamp_init(a)
        a("s_load_dwordx2 s[4:5], s[0:1], 16", "s_load_dwordx2 s[16:17], s[0:1], 104")
        a(f"v_lshrrev_b32 v{vT}, 6, v0", f"v_and_b32 v{vL}, 63, v0", f"v_readfirstlane_b32 s{sW}, v{vT}")
        a(f"s_and_b32 s{sH}, s2, 7", f"s_lshl_b32 s{sH}, s{sH}, 2", "s_lshr_b32 s23, s2, 3", "s_and_b32 s23, s23, 3",
          f"s_add_u32 s{sH}, s{sH}, s23", f"s_lshr_b32 s{sI}, s2, 5")
        a(f"v_lshlrev_b32 v{vL16}, 4, v{vL}")
        a(f"v_bfe_u32 v{vT}, v{vL}, 2, 2", f"v_lshrrev_b32 v{vT+1}, 4, v{vL}", f"v_lshlrev_b32 v{vT+1}, 6, v{vT+1}",
          f"v_lshl_add_u32 v{vT}, v{vT}, 13, v{vT+1}", f"s_lshl_b32 s23, s{sW}, 17", f"v_add_u32 v{vT}, s23, v{vT}",
          f"v_and_b32 v{vT+2}, 3, v{vL}",
          f"v_lshl_add_u32 v{vWo}, v{vT+2}, 4, v{vT}", f"v_xor_b32 v{vT+2}, 2, v{vT+2}",
          f"v_lshl_add_u32 v{vWo+2}, v{vT+2}, 4, v{vT}",
          f"v_add_u32 v{vWo+1}, {32768-1024}, v{vWo}", f"v_add_u32 v{vWo+3}, {3*(32768-1024)}, v{vWo+2}",
          f"v_add_u32 v{vWo+2}, {2*(32768-1024)}, v{vWo+2}")
        a(f"s_lshl_b32 s23, s{sI}, 2", f"s_add_u32 s23, s23, s{sW}", f"s_mul_i32 s{sXo}, s23, {2*20480}",
          f"s_add_u32 s{sXo+1}, s{sXo}, 20480",
          f"s_sub_u32 s30, 15, s{sI}", "s_lshl_b32 s23, s30, 2", f"s_add_u32 s23, s23, s{sW}", f"s_mul_i32 s{sXo+2}, s23, {2*20480}",
          f"s_add_u32 s{sXo+3}, s{sXo+2}, 20480")
        a("s_waitcnt lgkmcnt(0)")
        a(f"s_lshl_b32 s23, s{sH}, 8", "s_add_u32 s4, s4, s23", "s_addc_u32 s5, s5, 0")
        srd(a, sWq, "s4", "s5", 0)
        a(f"s_sub_u32 s{sWq+2}, {640*8192}, s23")
        srd(a, sXn, "s16", "s17", 2048 * 1280)
        srd(a, sWS, "s16", "s17", WS_BYTES)
        a(f"s_lshl_b32 s{sKm}, s{sW}, 12", f"s_add_u32 s{sKm}, s{sKm}, 16384", f"s_mov_b32 s{sKo}, 0")
        def wdma():
            pre = [f"s_mov_b32 m0, s{sKm}"]
            l = [f"buffer_load_dwordx4 v{vWo+j}, s[{sWq}:{sWq+3}], s{sKo} offen offset:{j*1024} lds" for j in range(4)]
            post = [f"s_add_u32 s{sKo}, s{sKo}, {64*8192}", f"s_add_u32 s{sKm}, s{sKm}, 32768", f"s_and_b32 s{sKm}, s{sKm}, 0x1ffff"]
            return pre, l, post
        def xload(slot, qb):
            return f"buffer_load_dwordx4 {ar(XR+16*slot+4*qb,4)}, v{vL16}, s[{sXn}:{sXn+3}], s{sXo+qb} offen offset:{slot*1024}"
        for tok in ("W", "X0", "W", "X1", "X2", "W", "X3", "W"):
            if tok == "W":
                pre, l, post = wdma(); a(pre, "s_nop 0", l, post)
            else:
                a([xload(int(tok[1]), qb) for qb in range(4)])
        for qb in range(4): a(f"s_add_u32 s{sXo+qb}, s{sXo+qb}, 4096")
        a(f"s_lshl_b32 s23, s{sH}, 19", f"s_add_u32 s23, s23, {KFO}", "s_add_u32 s6, s16, s23", "s_addc_u32 s7, s17, 0",
          f"s_add_u32 s8, s6, {VFO-KFO}", "s_addc_u32 s9, s7, 0",
          f"s_sub_u32 s23, 16, s{sI}", "s_lshl_b32 s23, s23, 15")
        srd(a, sK, "s6", "s7", "s23")
        srd(a, sV, "s8", "s9", "s23")
        for i in range(4): a(f"v_mov_b32 v{vT+4+i}, 0")
        a(f"v_bfe_u32 v{vT+2}, v{vL}, 2, 2", f"v_lshlrev_b32 v{vT+2}, 6, v{vT+2}", f"v_lshrrev_b32 v{vT+1}, 4, v{vL}",
          f"v_lshl_add_u32 v{vT+2}, v{vT+1}, 11, v{vT+2}",
          f"v_and_b32 v{vT+3}, 1, v{vL}", f"v_lshl_add_u32 v{vT+2}, v{vT+3}, 3, v{vT+2}",
          f"v_bfe_u32 v{vT+3}, v{vL}, 1, 1", f"v_and_b32 v{vT}, 1, v{vT+1}", f"v_lshl_or_b32 v{vT+3}, v{vT}, 1, v{vT+3}",
          f"v_add_u32 v{vT+2}, 16384, v{vT+2}", f"v_lshl_add_u32 v{vWa}, v{vT+3}, 4, v{vT+2}", f"v_xor_b32 v{vWa+1}, 32, v{vWa}")
        for i in range(8):
            a(f"v_mfma_f32_32x32x16_bf16 {vr(QACC+16*i,16)}, {vr(vT+4,4)}, {vr(vT+4,4)}, 0")
        for i in range(8):
            a(f"v_mfma_f32_32x32x16_bf16 {ar(O+16*i,16)}, {vr(vT+4,4)}, {vr(vT+4,4)}, 0")
        a(f"v_and_b32 v{vT}, 15, v{vL}", f"v_lshlrev_b32 v{vT+1}, 2, v{vT+1}", f"v_sub_u32 v{vT}, v{vT}, v{vT+1}")
        for r in range(4): a(f"v_cmp_le_i32 s[{sMask+2*r}:{sMask+2*r+1}], {r}, v{vT}")
        a(f"v_mov_b32 v{vNI}, 0xff800000", f"s_mov_b32 s{sThr}, 0x47800000")
        for i in range(4): a(f"v_mov_b32 v{LS+i}, 0")
        def wreads(buf, off):
            return [f"ds_read_b64_tr_b16 {vr(Q+32*buf+4*cb+2*t,2)}, v{vWa+(cb&1)} offset:{off + t*1024 + (cb>>1)*256}" for cb in range(8) for t in range(2)]
        stamp(a, 1)
        a("s_waitcnt vmcnt(24)", "s_barrier")
        stamp(a, 2)
        if os.environ.get("CYC") == "q": stampc(a, 12)
        a(wreads(0, 0), f"s_mov_b32 s{sCnt}, 0", "s_waitcnt lgkmcnt(0)")
        a(".p2align 6")
        a.label(f"{name}_qloop")
        for ks in range(4):
            buf = ks & 1
            mf = [f"{MF} {vr(QACC+(db*4+qb)*4,4)}, {vr(Q+32*buf+4*db,4)}, {ar(XR+16*ks+4*qb,4)}, {vr(QACC+(db*4+qb)*4,4)}" for qb in range(4) for db in range(8)]
            sc = {g: [] for g in range(32)}; mem = {g: [] for g in range(32)}; va = {g: [] for g in range(32)}
            off = [8192, 32768, 32768 + 8192, 0][ks]
            rd = wreads(1 - buf, off)
            pos = [1, 2, 3, 4, 5, 6, 8, 9, 10, 12, 13, 14, 16, 17, 18, 20]
            if ks & 1: sc[0].append("s_barrier")
            for p_, x in zip(pos, rd): mem[p_].append(x)
            for qb in range(4): mem[8*qb+7].append(xload(ks, qb))
            if ks & 1:
                pre, l, post = wdma()
                sc[10] += pre
                for j, g in enumerate([11, 19, 22, 27]): mem[g].append(l[j])
                for j, x in enumerate(post): sc[28 + j if j < 2 else 27].append(x) if False else None
                sc[28].append(post[0]); sc[29].append(post[1]); sc[30].append(post[2])
            if ks == 2:
                va[24].append(f"v_xor_b32 v{vWa}, 0x10000, v{vWa}")
                va[25].append(f"v_xor_b32 v{vWa+1}, 0x10000, v{vWa+1}")
                sc[24].append(f"s_add_u32 s{sCnt}, s{sCnt}, 1")
            w = f"s_waitcnt vmcnt({15 if (ks+1) & 1 else 19}) lgkmcnt(0)"
            sc[31].append(w)
            if ks == 3:
                for qb in range(3): sc[8*qb+8].append(f"s_add_u32 s{sXo+qb}, s{sXo+qb}, 4096")
                va[31] += [f"s_add_u32 s{sXo+3}, s{sXo+3}, 4096", f"s_cmp_ge_u32 s{sCnt}, 4", f"s_cselect_b32 s{sXn+2}, 0, s{sXn+2}",
                           f"s_cmp_lt_u32 s{sCnt}, 5", f"s_cbranch_scc1 {name}_qloop"]
            a(weave(mf, sc, mem, va))
        a("s_waitcnt vmcnt(0)", "s_barrier")
        stamp(a, 3)
        if os.environ.get("CYC") == "q": stampc(a, 13)
        a(f"s_and_b32 s23, s{sW}, 1", "s_lshl_b32 s23, s23, 12", f"s_cmp_lt_u32 s{sW}, 2", f"s_cselect_b32 s{sKm}, {131072-24576}, 0",
          f"s_add_u32 s{sKm}, s{sKm}, s23", f"s_lshl_b32 s{sKo}, s{sW}, 12", f"s_mov_b32 s{sVo}, s{sKo}",
          f"s_add_u32 s{sVm}, s{sKo}, {32768+16384}")
        for (srdn, so, sm) in [(sK, sKo, sKm)] * 3 + [(sV, sVo, sVm)] * 2:
            a(f"s_mov_b32 m0, s{sm}", "s_nop 0")
            a([f"buffer_load_dwordx4 v{vL16}, s[{srdn}:{srdn+3}], s{so} offen offset:{j*1024} lds" for j in range(4)])
            a(f"s_add_u32 s{so}, s{so}, 16384", f"s_add_u32 s{sm}, s{sm}, 32768", f"s_and_b32 s{sm}, s{sm}, 0x1ffff")
        a(f"v_mov_b32 v{vT}, 0x3e0293ee", f"v_mov_b32 v{vT+1}, 0x3e0293ee")
        for X in range(2):
            for ks in range(4):
                for qb in range(2):
                    d = Q + 32 * X + 8 * ks + 4 * qb
                    for hh in range(2):
                        s0 = QACC + ((2 * ks + hh) * 4 + 2 * X + qb) * 4
                        a(f"v_pk_mul_f32 {vr(s0,2)}, {vr(s0,2)}, {vr(vT,2)}", f"v_pk_mul_f32 {vr(s0+2,2)}, {vr(s0+2,2)}, {vr(vT,2)}",
                          f"v_cvt_pk_bf16_f32 v{d+2*hh}, v{s0}, v{s0+1}", f"v_cvt_pk_bf16_f32 v{d+2*hh+1}, v{s0+2}, v{s0+3}")
        a(f"s_add_u32 s23, s{sW}, 1", "s_lshr_b32 s23, s23, 1", f"s_lshl_b32 s{sCnt}, s{sI}, 1", f"s_add_u32 s{sCnt}, s{sCnt}, s23",
          f"s_lshl_b32 s23, s{sI}, 2", f"s_sub_u32 s{sNSS}, 28, s23", f"s_and_b32 s23, s{sW}, 1", f"s_add_u32 s{sNSS}, s{sNSS}, s23")
        a(f"v_mov_b32 v{vKV}, v{vL16}", f"v_add_u32 v{vT+2}, {3*32768+8192}, v{vL16}")
        stamp(a, 4)
        a("s_waitcnt vmcnt(12)", "s_barrier")
        stamp(a, 5)
        a([f"ds_read_b128 {ar(KF+4*i,4)}, v{vT+2} offset:{i*1024}" for i in range(8)])
        a("s_waitcnt lgkmcnt(4)")
        a(self.period(1, ["q", "q"], c0=True))
        a("s_nop 7", f"s_cmp_lg_u32 s{sCnt}, 0", f"s_cbranch_scc1 {name}_nomask0")
        a(mask_ops(0, 0))
        a.label(f"{name}_nomask0")
        for X in range(2):
            for qb in range(2):
                s0 = S + 32 * X + 8 * qb; d = vT + 2 * X + qb
                a(f"v_max3_f32 v{d}, v{s0}, v{s0+1}, v{s0+2}", f"v_max3_f32 v{d}, v{d}, v{s0+3}, v{s0+4}",
                  f"v_max3_f32 v{d}, v{d}, v{s0+5}, v{s0+6}", f"v_max_f32 v{d}, v{d}, v{s0+7}")
        for sw in ("v_permlane16_swap_b32", "v_permlane32_swap_b32"):
            for k in range(4): a(f"v_mov_b32 v{vT+4+k}, v{vT+k}")
            a("s_nop 0")
            for k in range(4): a(f"{sw} v{vT+k}, v{vT+4+k}")
            for k in range(4): a(f"v_max_f32 v{vT+k}, v{vT+k}, v{vT+4+k}")
        for X in range(2):
            for qb in range(2):
                s0 = S + 32 * X + 8 * qb; d = vT + 2 * X + qb
                for r in range(4): a(f"v_sub_f32 v{NM+8*X+4*qb+r}, 0, v{d}")
        for X in range(2):
            for qb in range(2):
                s0 = S + 32 * X + 8 * qb; d = vT + 2 * X + qb
                for r in range(8): a(f"v_sub_f32 v{s0+r}, v{s0+r}, v{d}")
        a(self.period(0, ["qs", "qs"]))
        stamp(a, 6)
        if os.environ.get("CYC") != "q": stampc(a, 12)
        F = "qsv"
        a(f"s_cmp_eq_u32 s{sCnt}, 0", f"s_cbranch_scc1 {name}_AV", f"s_sub_u32 s{sCnt}, s{sCnt}, 1",
          f"s_cmp_eq_u32 s{sCnt}, 0", f"s_cbranch_scc1 {name}_Aexit")
        a(".p2align 6")
        a.label(f"{name}_DD")
        a(self.period(1, [F, F], bar=12))
        a(self.period(0, [F, F], tail_sc=[f"s_sub_u32 s{sCnt}, s{sCnt}, 1"]))
        a(f"s_cmp_lg_u32 s{sCnt}, 0", f"s_cbranch_scc1 {name}_DD")
        a.label(f"{name}_Aexit")
        a(f"s_bitcmp1_b32 s{sW}, 0", f"s_cbranch_scc1 {name}_Aodd")
        a(self.period(1, [F, F], bar=12))
        a(self.period(0, ["smv", F]))
        a.label(f"{name}_AV")
        a(self.period(1, ["v", F], bar=12))
        a(self.period(0, ["", F]))
        a(f"s_branch {name}_SSpre")
        a.label(f"{name}_Aodd")
        a(self.period(1, ["smv", F], bar=12))
        a(self.period(0, ["v", F]))
        a.label(f"{name}_SSpre")
        stamp(a, 7)
        a(f"s_cmp_eq_u32 s{sNSS}, 0", f"s_cbranch_scc1 {name}_Bexit")
        a(".p2align 6")
        a.label(f"{name}_SS")
        a(self.period(1, ["", F], bar=12))
        a(self.period(0, ["", F], tail_sc=[f"s_sub_u32 s{sNSS}, s{sNSS}, 1"]))
        a(f"s_cmp_lg_u32 s{sNSS}, 0", f"s_cbranch_scc1 {name}_SS")
        a.label(f"{name}_Bexit")
        a(f"s_bitcmp1_b32 s{sW}, 0", f"s_cbranch_scc1 {name}_Bodd")
        a(self.period(1, ["", F], bar=0, dma=False, kread=False))
        a(self.period(0, ["", "smv"], dma=False, kread=False))
        a(self.period(1, ["", "v"], bar=0, dma=False, kread=False))
        a(f"s_branch {name}_Bdone")
        a.label(f"{name}_Bodd")
        a(self.period(1, ["", "smv"], bar=0, dma=False, kread=False))
        a(self.period(0, ["", "v"], dma=False, kread=False))
        a.label(f"{name}_Bdone")
        a(f"s_cmp_ge_u32 s{sW}, 2", f"s_cbranch_scc1 {name}_epi", "s_barrier")
        a.label(f"{name}_epi")
        stamp(a, 8)
        if os.environ.get("CYC") != "q": stampc(a, 13)
        for sw in ("v_permlane16_swap_b32", "v_permlane32_swap_b32"):
            for k in range(4): a(f"v_mov_b32 v{vT+4+k}, v{LS+k}")
            a("s_nop 0")
            for k in range(4): a(f"{sw} v{LS+k}, v{vT+4+k}")
            for k in range(4): a(f"v_add_f32 v{LS+k}, v{LS+k}, v{vT+4+k}")
        for k in range(4): a(f"v_rcp_f32 v{vT+2*k}, v{LS+k}")
        a("s_nop 0")
        for k in range(4): a(f"v_mov_b32 v{vT+2*k+1}, v{vT+2*k}")
        a(f"s_lshl_b32 s23, s{sI}, 2", f"s_add_u32 s23, s23, s{sW}", "s_lshl_b32 s23, s23, 18", f"s_lshl_b32 s31, s{sH}, 12",
          f"s_add_u32 s31, s31, {CTX}", f"s_add_u32 s{sXo}, s23, s31", f"s_add_u32 s{sXo+1}, s{sXo}, {1<<17}",
          "s_lshl_b32 s23, s30, 2", f"s_add_u32 s23, s23, s{sW}", "s_lshl_b32 s23, s23, 18",
          f"s_add_u32 s{sXo+2}, s23, s31", f"s_add_u32 s{sXo+3}, s{sXo+2}, {1<<17}")
        k = 0
        for X in range(2):
            for qb in range(2):
                for t in range(4):
                    T = 32 + (k % 8) * 12; k += 1
                    f = vT + 2 * (2 * X + qb)
                    for hh in range(2):
                        for r in range(4): a(f"v_accvgpr_read_b32 v{T+4+4*hh+r}, a{O+64*X+8*(2*t+hh)+4*qb+r}")
                    for r in range(4): a(f"v_pk_mul_f32 {vr(T+4+2*r,2)}, {vr(T+4+2*r,2)}, {vr(f,2)}")
                    for r in range(4): a(f"v_cvt_pk_bf16_f32 v{T+r}, v{T+4+2*r}, v{T+5+2*r}")
                    a(f"buffer_store_dwordx4 {vr(T,4)}, v{vL16}, s[{sWS}:{sWS+3}], s{sXo+2*X+qb} offen offset:{t*1024}")
        stamp(a, 9)
        self.ffn()
        a.label(f"{name}_fin")
        stamp_flush(a, 1, sW, sWS)
        a.label(f"{name}_end")
        a("s_endpgm")
        for (k, ss, par) in self.stubs:
            a.label(f"{name}_stub{k}")
            for X in ss: a(f"s_call_b64 s[{sRet}:{sRet+1}], {name}_rare{X}{par}")
            a(f"s_branch {name}_back{k}")
        for X in range(2):
            for par in range(2): self.rare(X, par)
            self.resc(X)
        return a

    def ffn(self):
        a = self.a; name = self.name
        sG, sU, sD = 52, 56, 60
        sJ = 82
        a("s_cmp_lt_u32 s2, 192", f"s_cbranch_scc1 {name}_fin", "s_cmp_ge_u32 s2, 246", f"s_cbranch_scc1 {name}_fin")
        a("s_load_dwordx4 s[4:7], s[0:1], 64", "s_load_dwordx2 s[8:9], s[0:1], 80", f"s_sub_u32 s{sJ}, s2, 192")
        KEY = 128
        a(f"s_mov_b32 s23, {RKEY}", f"s_mov_b32 s31, {RKEY+4096}")
        for q in range(8):
            a(f"buffer_load_dwordx4 {vr(KEY+4*q,4)}, v{vL16}, s[{sWS}:{sWS+3}], s{23 if q < 4 else 31} offen offset:{(q%4)*1024}")
        a(f"v_lshrrev_b32 v{vT}, 2, v{vL}", f"v_mul_u32_u24 v{vT+1}, 3456, v{vT}", f"v_and_b32 v{vT+2}, 3, v{vL}",
          f"v_lshl_add_u32 v{vT+1}, v{vT+2}, 4, v{vT+1}")
        a("s_waitcnt lgkmcnt(0)")
        srd(a, sG, "s4", "s5", 640 * 3456); srd(a, sU, "s6", "s7", 640 * 3456); srd(a, sD, "s8", "s9", 1728 * 1280)
        a(f"s_mul_i32 s23, s{sW}, {10*16*3456}", f"s_lshl_b32 s31, s{sJ}, 6", "s_add_u32 s23, s23, s31",
          f"s_mul_i32 s24, s{sW}, 10240", f"s_mul_i32 s25, s{sJ}, 40960", "s_add_u32 s25, s25, s24", "s_mov_b32 s26, 10")
        a("s_barrier")
        a.label(f"{name}_fdma")
        a("s_mov_b32 m0, s24", "s_nop 0", f"buffer_load_dwordx4 v{vT+1}, s[{sG}:{sG+3}], s23 offen lds",
          "s_add_u32 m0, s24, 40960", "s_nop 0", f"buffer_load_dwordx4 v{vT+1}, s[{sU}:{sU+3}], s23 offen lds",
          "s_add_u32 m0, s24, 81920", "s_nop 0", f"buffer_load_dwordx4 v{vL16}, s[{sD}:{sD+3}], s25 offen lds",
          f"s_add_u32 s23, s23, {16*3456}", "s_add_u32 s24, s24, 1024", "s_add_u32 s25, s25, 1024",
          "s_sub_u32 s26, s26, 1", "s_cmp_lg_u32 s26, 0", f"s_cbranch_scc1 {name}_fdma")
        vM, vPrev, vSel, vTok, vTmp = vT + 4, vT + 5, vT + 6, vT + 7, vT + 8
        a(f"v_mov_b32 v{vPrev}, 0", f"v_mov_b32 v{vSel}, 0", f"v_and_b32 v{vTok}, 7, v{vL}", "s_mov_b32 s26, 0", "s_waitcnt vmcnt(30)")
        a.label(f"{name}_top")
        a(f"v_max3_u32 v{vM}, v{KEY}, v{KEY+1}, v{KEY+2}", f"v_max3_u32 v{vTmp}, v{KEY+3}, v{KEY+4}, v{KEY+5}")
        for q in range(6, 30, 4):
            a(f"v_max3_u32 v{vM}, v{vM}, v{KEY+q}, v{KEY+q+1}", f"v_max3_u32 v{vTmp}, v{vTmp}, v{KEY+q+2}, v{KEY+q+3}")
        a(f"v_max3_u32 v{vM}, v{vM}, v{KEY+30}, v{KEY+31}", f"v_max_u32 v{vM}, v{vM}, v{vTmp}")
        for m in ("quad_perm:[1,0,3,2]", "quad_perm:[2,3,0,1]", "row_half_mirror", "row_mirror"):
            a("s_nop 1", f"v_max_u32_dpp v{vM}, v{vM}, v{vM} {m} row_mask:0xf bank_mask:0xf")
        xreduce(a, "v_max_u32", vM, vTmp)
        a(f"v_add_u32 v{vPrev}, v{vPrev}, v{vM}", f"v_cmp_eq_u32 vcc, s26, v{vTok}")
        for q in range(32): a(f"v_sub_u32 v{KEY+q}, v{KEY+q}, v{vM}")
        a(f"v_cndmask_b32 v{vSel}, v{vSel}, v{vPrev}, vcc", "s_add_u32 s26, s26, 1", "s_cmp_lt_u32 s26, 8", f"s_cbranch_scc1 {name}_top")
        vRow, vR, vXo = vT + 9, vT + 10, vT + 11
        stamp(a, 10)
        a(f"v_and_b32 v{vRow}, 0xffff, v{vSel}", f"v_sub_u32 v{vRow}, 0xffff, v{vRow}", f"v_and_b32 v{vRow}, 2047, v{vRow}",
          f"v_lshrrev_b32 v{vXo}, 4, v{vRow}", f"v_mul_u32_u24 v{vXo}, 20480, v{vXo}", f"v_and_b32 v{vTmp}, 15, v{vRow}",
          f"v_lshl_add_u32 v{vXo}, v{vTmp}, 4, v{vXo}", f"v_lshrrev_b32 v{vTmp}, 4, v{vL}", f"v_lshl_add_u32 v{vXo}, v{vTmp}, 8, v{vXo}")
        XS = 32
        for s_ in range(20):
            if s_ % 4 == 0: a(f"s_mov_b32 s23, {s_*1024}")
            a(f"buffer_load_dwordx4 {vr(XS+4*s_,4)}, v{vXo}, s[{sWS}:{sWS+3}], s23 offen offset:{(s_%4)*1024}")
        a(f"v_ashrrev_i32 v{vM}, 31, v{vSel}", f"v_not_b32 v{vM}, v{vM}", f"v_or_b32 v{vM}, 0x80000000, v{vM}",
          f"v_xor_b32 v{vR}, v{vSel}, v{vM}", f"v_and_b32 v{vR}, 0xffff0000, v{vR}",
          f"v_mul_f32 v{vR}, 0xbfb8aa3b, v{vR}", f"v_exp_f32 v{vR}, v{vR}", "s_nop 0", f"v_add_f32 v{vR}, 1.0, v{vR}",
          f"v_rcp_f32 v{vR}, v{vR}", "s_nop 0")
        bf16r(a, vR)
        a(f"v_lshlrev_b32 v{vM}, 2, v{vL}", f"v_add_u32 v{vM}, {SEL}, v{vM}", f"v_mov_b32 v{vPrev}, 0x40000000",
          f"s_add_u32 s23, s{sJ}, s{sW}", "s_cmp_eq_u32 s23, 0", "s_cselect_b32 s23, 8, 0",
          f"v_cmp_gt_u32 vcc, s23, v{vL}", "s_nop 1", f"v_cndmask_b32 v{vM}, v{vPrev}, v{vM}, vcc",
          f"buffer_store_dword v{vRow}, v{vM}, s[{sWS}:{sWS+3}], 0 offen",
          f"buffer_store_dword v{vR}, v{vM}, s[{sWS}:{sWS+3}], 0 offen offset:32")
        vA, vB, vC = vT + 12, vT + 13, vT + 14
        a(f"v_lshl_add_u32 v{vA}, v{vTmp}, 2, v{vT}",
          f"v_lshlrev_b32 v{vA}, 6, v{vA}", f"v_lshl_add_u32 v{vA}, v{vT+2}, 3, v{vA}",
          f"s_lshr_b32 s23, s{sW}, 1", "s_mul_i32 s23, s23, 40960", f"s_and_b32 s31, s{sW}, 1", "s_lshl_b32 s31, s31, 5", "s_add_u32 s23, s23, s31",
          f"v_add_u32 v{vA}, s23, v{vA}",
          f"v_mul_u32_u24 v{vB}, 1280, v{vT}", f"v_lshl_add_u32 v{vB}, v{vT+2}, 3, v{vB}",
          f"s_mul_i32 s23, s{sW}, 320", "s_add_u32 s23, s23, 81920", f"v_add_u32 v{vB}, s23, v{vB}",
          f"s_lshl_b32 s23, s{sW}, 10", "s_add_u32 s23, s23, 122880", f"v_add_u32 v{vC}, s23, v{vL16}")
        a("s_waitcnt vmcnt(0)", "s_barrier")
        WFr = 112; DF = 192
        for s_ in range(20):
            for t in range(2):
                a(f"ds_read_b64_tr_b16 {vr(WFr+4*s_+2*t,2)}, v{vA} offset:{s_*2048+t*256}")
        a("s_waitcnt lgkmcnt(0)")
        for cb in range(10):
            for t in range(2):
                a(f"ds_read_b64_tr_b16 {vr(DF+4*cb+2*t,2)}, v{vB} offset:{t*20480+cb*32}")
        G = 232
        for s_ in range(20):
            a(f"{MF} {vr(G,4)}, {vr(WFr+4*s_,4)}, {vr(XS+4*s_,4)}, {'0' if s_ == 0 else vr(G,4)}")
        a("s_nop 7", f"ds_write_b128 v{vC}, {vr(G,4)}", f"v_add_u32 v{vC}, 122880, v{vL16}", "s_waitcnt lgkmcnt(0)", "s_barrier")
        GU = 32
        for k in range(4): a(f"ds_read_b128 {vr(GU+4*k,4)}, v{vC} offset:{k*1024}")
        a(f"v_and_b32 v{vM}, 15, v{vL}", f"v_mul_u32_u24 v{vA}, 2560, v{vM}", f"v_lshl_add_u32 v{vA}, v{vTmp}, 4, v{vA}",
          f"v_cmp_gt_u32 vcc, 8, v{vM}", f"s_mul_i32 s23, s{sJ}, 20480", f"s_mul_i32 s31, s{sW}, 640",
          f"v_cndmask_b32 v{vA}, v{vPrev}, v{vA}, vcc", "s_add_u32 s23, s23, s31", f"s_add_u32 s23, s23, {YP}")
        a("s_waitcnt lgkmcnt(0)")
        for k in range(16): bf16r(a, GU + k)
        for k in range(8): a(f"v_mul_f32 v{GU+16+k}, 0xbfb8aa3b, v{GU+k}")
        for k in range(8): a(f"v_exp_f32 v{GU+16+k}, v{GU+16+k}")
        for k in range(8): a(f"v_add_f32 v{GU+16+k}, 1.0, v{GU+16+k}")
        for k in range(8): a(f"v_rcp_f32 v{GU+16+k}, v{GU+16+k}")
        for k in range(8): a(f"v_mul_f32 v{GU+k}, v{GU+k}, v{GU+16+k}")
        for k in range(8): bf16r(a, GU + k)
        for k in range(8): a(f"v_mul_f32 v{GU+k}, v{GU+k}, v{GU+8+k}")
        H = GU + 24
        for k in range(4): a(f"v_cvt_pk_bf16_f32 v{H+k}, v{GU+2*k}, v{GU+2*k+1}")
        a("s_nop 1")
        Y = 64
        for cb in range(10): a(f"{MF} {vr(Y+4*cb,4)}, {vr(DF+4*cb,4)}, {vr(H,4)}, 0")
        a("s_nop 7")
        for cb in range(10): a(f"buffer_store_dwordx4 {vr(Y+4*cb,4)}, v{vA}, s[{sWS}:{sWS+3}], s23 offen offset:{cb*64}")

def gen_k2(name):
    return K2(name).gen()
```

```python
import os
from asmlib import *
from gen_k1 import (XNF, RKEY, SEL, YP, WOF, KFO, VFO, CTX, WS_BYTES, MF, srd, bf16r, allreduce32_add,
                    stamp, stampc, stampv, stamp_init, stamp_flush, DBG)
import gen_k2 as k2
from gen_k2 import (vL, vL16, vKV, vNI, vX, vT, Q, S, P, NM, E, TS, LS, QACC, O, KF, VF, XR,
                    sW, sH, sI, sWS, sK, sV, sKm, sVm, sKo, sVo, sCnt, sNSS, sXo, sMask, sRet, sRet2, sThr,
                    xreduce, mask_ops)

LDS = 163840
FLG = 0x284000
KVF = 0x4000000
CF = 0x3A0000
CS = 4096; CH = int(os.environ.get('CH', '7'))
YF = 0x4010000
PX = 0xA00000
XFL = 0x4020000
WF = 0x4040000
SC = " sc1"
BIG = 0x40000000
SPARE = 131072
XS = SPARE + 20480
EX = SPARE + 30720
UPD = LDS - 8192
SCR = LDS - 4096
TOPWG = 255
FFN0, FFN1 = 170, 224
SPIN_MAX = 200000
sDb = 56
sCFA, sCFB, sKVa = 80, 3, 82
vWo, vWa, vCa = 8, 12, 14
vPoll, vZero, vPo = 15, 229, 8
vCo = 3

class VM:
    def __init__(self): self.ops = []
    def issue(self, tag, n=1): self.ops += [tag] * n
    def need(self, *tags):
        last = max(i for i, t in enumerate(self.ops) if t in tags)
        return min(63, len(self.ops) - 1 - last)

class Fused(k2.K2):
    SC = SC
    U = 8
    FS = int(os.environ.get('FS', '2'))
    E7 = int(os.environ.get('E7', '0'))
    NOWO = int(os.environ.get('NOWO', '32'))
    CB = eval(os.environ.get('CB', '[3,3,4,6,8,8,8,8]'))
    FL = 32
    ROT = int(os.environ.get('ROT', '0'))
    FV = [8, 11, 12, 13, 14]
    KY = 3
    def poll_check(self, a, tag, vreg, voff, srdn, cmp_lines, soff="0"):
        n = self.name
        a(cmp_lines, f"s_cbranch_vccnz {n}_{tag}_spin")
        a.label(f"{n}_{tag}_ok")
        t = Asm()
        t.label(f"{n}_{tag}_spin")
        t(f"s_mov_b32 s83, {SPIN_MAX}")
        t.label(f"{n}_{tag}_spin2")
        t(f"buffer_load_dword v{vreg}, v{voff}, s[{srdn}:{srdn+3}], {soff} offen{SC}", "s_waitcnt vmcnt(0)")
        t(cmp_lines, f"s_cbranch_vccz {n}_{tag}_ok", f"s_sleep {os.environ.get('SLP', '3')}", "s_sub_u32 s83, s83, 1", "s_cmp_lg_u32 s83, 0",
          f"s_cbranch_scc1 {n}_{tag}_spin2", f"s_branch {n}_{tag}_ok")
        self.tail += t.lines

    def phase1(self):
        a = self.a; name = self.name
        sC, sWt, sX, sQ2, sWO, sWR = 32, 36, 44, 48, 52, 68
        sM0C, sStep, sOC, sOW, sIT = 24, 25, 26, 27, 28
        FA = 32; FB = 96
        a("s_cmp_ge_u32 s2, 256", f"s_cbranch_scc1 {name}_end")
        if os.environ.get("CT0", "1") == "1":
            a("s_getpc_b64 s[62:63]", "v_and_b32 v230, 127, v0", "v_lshlrev_b32 v230, 7, v230", "global_load_dword v231, v230, s[62:63]")
        stamp_init(a)
        a("s_load_dwordx4 s[4:7], s[0:1], 0", "s_load_dwordx4 s[8:11], s[0:1], 24", "s_load_dwordx2 s[14:15], s[0:1], 56",
          "s_load_dwordx2 s[12:13], s[0:1], 40", "s_load_dwordx4 s[16:19], s[0:1], 96", "s_load_dwordx2 s[60:61], s[0:1], 16")
        a(f"v_lshrrev_b32 v{vT}, 6, v0", f"v_and_b32 v{vL}, 63, v0", f"v_readfirstlane_b32 s{sW}, v{vT}")
        a(f"s_and_b32 s{sH}, s2, 7", f"s_lshl_b32 s{sH}, s{sH}, 2", "s_lshr_b32 s23, s2, 3", "s_and_b32 s23, s23, 3",
          f"s_add_u32 s{sH}, s{sH}, s23", f"s_lshr_b32 s{sI}, s2, 5")
        XV = 160; WR = 172; F = 184
        vU, vRow, vXo, vXo3, vWro = 208, 209, 210, 211, 212
        vS, vT2, vMean, vAcc = 213, 214, 216, 218
        vTW, vTR, vKo, vO1, vO3, vFl = 220, 221, 222, 223, 224, 225
        vTQ = 235; sM16 = 64
        LNPRE = os.environ.get("LNPRE", "1") == "1"
        lnaddr = [f"v_and_b32 v{vU}, 31, v{vL}", f"v_lshrrev_b32 v{vRow}, 5, v{vL}",
          "s_lshl_b32 s31, s2, 2", f"s_add_u32 s31, s31, s{sW}", "s_lshl_b32 s31, s31, 1", f"v_add_u32 v{vRow}, s31, v{vRow}",
          f"v_lshlrev_b32 v{vWro}, 4, v{vU}", f"v_mul_u32_u24 v{vXo}, 1280, v{vRow}", f"v_add_u32 v{vXo}, v{vXo}, v{vWro}",
          f"v_cmp_gt_u32 s[{sM16}:{sM16+1}], 16, v{vU}", f"v_mov_b32 v{vT+3}, {BIG}", f"v_and_b32 v{vTW}, 7, v{vRow}",
          f"v_cndmask_b32 v{vXo3}, v{vT+3}, v{vXo}, s[{sM16}:{sM16+1}]"]
        xloads = [f"buffer_load_dwordx4 {vr(XV,4)}, v{vXo}, s[{sX}:{sX+3}], 0 offen",
          f"buffer_load_dwordx4 {vr(XV+4,4)}, v{vXo}, s[{sX}:{sX+3}], 0 offen offset:512",
          f"buffer_load_dwordx4 {vr(XV+8,4)}, v{vXo3}, s[{sX}:{sX+3}], 0 offen offset:1024"]
        xloads += [f"buffer_load_dwordx4 {vr(WR+4*i,4)}, v{vWro}, s[{sWR}:{sWR+3}], 0 offen offset:{512*i}" for i in range(3)]
        if LNPRE: a(lnaddr)
        a(f"v_bfe_u32 v{vT+1}, v{vL}, 1, 3", f"v_lshlrev_b32 v{vT+1}, 13, v{vT+1}", f"v_and_b32 v{vT+2}, 1, v{vL}",
          f"v_lshl_add_u32 v{vTQ}, v{vT+2}, 7, v{vT+1}", f"s_lshl_b32 s74, s{sI}, 1", f"s_and_b32 s31, s{sW}, 1", "s_add_u32 s74, s74, s31",
          "s_lshl_b32 s74, s74, 16", f"s_mov_b32 s73, {128*8192}", f"v_and_b32 v{vT}, 15, v{vL}",
          f"v_lshlrev_b32 v{vT+1}, 10, v{vT}", f"v_and_b32 v{vT+2}, 16, v{vL}", f"v_lshl_add_u32 v233, v{vT+2}, 3, v{vT+1}",
          "s_lshl_b32 s30, s23, 5", f"s_add_u32 s30, s30, s{sW}", "s_lshl_b32 s30, s30, 14", f"s_lshl_b32 s29, s{sI}, 16", f"s_lshl_b32 s23, s{sH}, 8",
          f"s_cmp_ge_u32 s{sW}, 2", "s_waitcnt lgkmcnt(0)")
        if LNPRE:
            srd(a, sX, "s4", "s5", 2048*1280)
            srd(a, sWR, "s14", "s15", 1280)
            a(xloads)
        a("s_cselect_b32 s62, s10, s8", "s_cselect_b32 s63, s11, s9", "s_add_u32 s62, s62, s23", "s_addc_u32 s63, s63, 0")
        srd(a, sWt, "s62", "s63", 0)
        a(f"s_sub_u32 s{sWt+2}, {512*8192}, s23", f"buffer_load_dword v231, v{vTQ}, s[{sWt}:{sWt+3}], s74 offen",
          "s_add_u32 s6, s6, s29", "s_addc_u32 s7, s7, 0")
        srd(a, sC, "s6", "s7", 0)
        a(f"s_sub_u32 s{sC+2}, {2048*1024}, s29")
        a(f"buffer_load_dword v232, v233, s[{sC}:{sC+3}], s30 offen", "s_add_u32 s74, s74, s73")
        T01 = os.environ.get("T01", "1") == "1"
        t1 = [f"buffer_load_dword v231, v{vTQ}, s[{sWt}:{sWt+3}], s74 offen", f"buffer_load_dword v232, v233, s[{sC}:{sC+3}], s30 offen offset:256"]
        if T01: a(t1)
        a("s_getpc_b64 s[8:9]", f"{name}_pc:", "s_lshr_b32 s31, s2, 3", "s_and_b32 s31, s31, 15", "s_lshl_b32 s31, s31, 2",
          f"s_add_u32 s31, s31, s{sW}", "s_lshl_b32 s31, s31, 11", f"s_min_u32 s31, s31, {name}_codeend-{name}_pc-2048",
          f"v_lshlrev_b32 v234, 7, v{vT}", "v_add_u32 v230, s31, v234", "global_load_dword v231, v230, s[8:9]",
          f"s_add_u32 s8, s8, {name}_co1-{name}_pc-4", "s_addc_u32 s9, s9, 0")
        a("s_add_u32 s60, s60, s23", "s_addc_u32 s61, s61, 0", f"s_sub_u32 s75, {640*8192}, s23")
        srd(a, sQ2, "s62", "s63", f"s{sWt+2}")
        a(f"v_lshlrev_b32 v{vL16}, 4, v{vL}",
          f"v_lshrrev_b32 v{vT+3}, 2, v{vL}", f"v_lshrrev_b32 v{vT+1}, 5, v{vL}", f"v_mul_u32_u24 v{vT+1}, 3, v{vT+1}",
          f"v_and_b32 v{vT+2}, 3, v{vL}", f"v_xor_b32 v{vT+1}, v{vT+1}, v{vT+2}", f"v_lshlrev_b32 v{vT+1}, 4, v{vT+1}",
          f"v_lshl_add_u32 v{vCo}, v{vT+3}, 10, v{vT+1}", f"s_lshl_b32 s23, s{sW}, 19", f"v_add_u32 v{vCo}, s23, v{vCo}")
        for j in range(1, 4): a(f"v_add_u32 v{vCo+j}, {j*(16384-1024)}, v{vCo}")
        a(f"v_and_b32 v{vT+3}, 3, v{vT+3}", f"v_lshrrev_b32 v{vT+1}, 4, v{vL}", f"v_lshlrev_b32 v{vT+1}, 6, v{vT+1}",
          f"v_lshl_add_u32 v{vT+3}, v{vT+3}, 13, v{vT+1}", f"s_and_b32 s23, s{sW}, 1", "s_lshl_b32 s23, s23, 17",
          f"v_add_u32 v{vT+3}, s23, v{vT+3}", f"v_lshl_add_u32 v{vWo}, v{vT+2}, 4, v{vT+3}", f"v_xor_b32 v{vT+2}, 2, v{vT+2}",
          f"v_lshl_add_u32 v{vWo+2}, v{vT+2}, 4, v{vT+3}", f"v_add_u32 v{vWo+1}, {32768-1024}, v{vWo}",
          f"v_add_u32 v{vWo+3}, {3*(32768-1024)}, v{vWo+2}", f"v_add_u32 v{vWo+2}, {2*(32768-1024)}, v{vWo+2}")
        a(f"s_lshl_b32 s{sM0C}, s{sW}, 12", f"s_mov_b32 s{sOC}, 0", f"s_mov_b32 s{sOW}, 0", f"s_mov_b32 s{sStep}, {32*8192}", "s_mov_b32 s79, 64")
        def dma_lines():
            preC = [f"s_mov_b32 m0, s{sM0C}"]
            lc = [f"buffer_load_dwordx4 v{vCo+j}, s[{sC}:{sC+3}], s{sOC} offen offset:{j*1024}{SC} lds" for j in range(4)]
            preW = [f"s_add_u32 m0, s{sM0C}, 16384"]
            lw = [f"buffer_load_dwordx4 v{vWo+j}, s[{sWt}:{sWt+3}], s{sOW} offen offset:{j*1024} lds" for j in range(4)]
            post = [f"s_add_u32 s{sOC}, s{sOC}, s79", f"s_add_u32 s{sOW}, s{sOW}, s{sStep}",
                    f"s_add_u32 s{sM0C}, s{sM0C}, 32768", f"s_and_b32 s{sM0C}, s{sM0C}, 0x1ffff"]
            return preC, lc, preW, lw, post
        def dma_stage():
            preC, lc, preW, lw, post = dma_lines()
            a(preC, "s_nop 0", lc, preW, "s_nop 0", lw, post)
        if not LNPRE: dma_stage()
        stamp(a, 1)
        srd(a, sWS, "s18", "s19", WS_BYTES)
        srd(a, sWO, "s12", "s13", 4096*1280)
        srd(a, sDb, "s16", "s17", 256)
        if not LNPRE:
            srd(a, sX, "s4", "s5", 2048*1280)
            srd(a, sWR, "s14", "s15", 1280)
        a("s_and_b32 s29, s2, 7", "s_lshl_b32 s29, s29, 2", f"s_add_u32 s29, s29, s{sW}", "s_lshl_b32 s29, s29, 11",
          f"s_and_b32 s23, s{sH}, 3", "s_lshl_b32 s23, s23, 19", "s_add_u32 s29, s29, s23")
        a(f"s_mul_i32 s23, s{sW}, {CS}", f"s_lshl_b32 s31, s{sH}, {CH}", "s_add_u32 s23, s23, s31", f"s_add_u32 s23, s23, {CF}",
          f"s_mul_i32 s31, s{sI}, {4*CS}", f"s_add_u32 s{sCFA}, s23, s31", f"s_sub_u32 s31, {15*4*CS}, s31", f"s_add_u32 s{sCFB}, s23, s31",
          f"s_lshl_b32 s23, s{sH}, 10", f"s_lshl_b32 s31, s{sI}, 7", "s_add_u32 s23, s23, s31", f"s_add_u32 s{sKVa}, s23, {KVF}",
          self.yf_addr(62), f"s_sub_u32 s23, s2, {FFN0}", f"s_cmp_lt_u32 s23, {FFN1-FFN0}", f"s_cselect_b32 s62, s62, {BIG}",
          f"s_cmp_eq_u32 s{sW}, 0", f"s_cselect_b32 s31, s{sKVa}, {BIG}", f"s_cselect_b32 s77, s2, {BIG}",
          f"s_cmp_eq_u32 s2, {TOPWG}", f"s_cselect_b32 s23, {SEL}, {BIG}",
          f"v_lshl_add_u32 v{vFl}, v{vT}, 2, s23", f"v_mov_b32 v{vZero}, 0",
          f"v_writelane_b32 v{vFl}, s{sCFA}, 0", f"v_writelane_b32 v{vFl}, s{sCFB}, 1", f"v_writelane_b32 v{vFl}, s31, 2", "s_add_u32 s31, s31, 32", f"v_writelane_b32 v{vFl}, s31, 5",
          self.wf_addr(23), f"v_writelane_b32 v{vFl}, s23, 3", f"v_writelane_b32 v{vFl}, s62, 4",
          "s_lshl_b32 s23, s2, 2", f"s_add_u32 s23, s23, s{sW}", "s_lshl_b32 s23, s23, 7", f"s_add_u32 s23, s23, {XFL}", f"v_writelane_b32 v{vFl}, s23, 6")
        if LNPRE:
            a(f"s_and_b32 s23, s{sH}, 3", "s_lshr_b32 s31, s23, 1", "s_lshl_b32 s31, 4, s31", "s_bitcmp1_b32 s23, 0",
              "s_cselect_b32 s76, s31, 0", "s_cselect_b32 s72, 0, s31", "s_or_b32 s76, s76, 0x20", "s_or_b32 s72, s72, 0x25")
        else:
            a(f"s_and_b32 s23, s{sH}, 3", "s_cmp_eq_u32 s23, 2", "s_cselect_b32 s76, 0x2a, 0x22", "s_cselect_b32 s72, 0x27, 0x2f",
              "s_cmp_eq_u32 s23, 3", "s_cselect_b32 s72, 0x37, s72")
        for i in range(4): a(f"v_mov_b32 v{vT+4+i}, 0")
        a(f"v_lshrrev_b32 v{vT+1}, 4, v{vL}", f"v_lshrrev_b32 v{vT+2}, 3, v{vT}",
          f"v_mul_u32_u24 v{vT+2}, 3, v{vT+2}", f"v_xor_b32 v{vT+2}, v{vT+2}, v{vT+1}", f"v_lshlrev_b32 v{vT+2}, 4, v{vT+2}",
          f"v_lshl_add_u32 v{vCa}, v{vT}, 6, v{vT+2}", f"s_and_b32 s23, s{sW}, 1", "s_lshl_b32 s23, s23, 11", f"v_add_u32 v{vCa}, s23, v{vCa}")
        rest = Asm()
        rest(f"v_lshrrev_b32 v{vT+2}, 2, v{vT}", f"v_lshlrev_b32 v{vT+2}, 6, v{vT+2}", f"v_lshl_add_u32 v{vT+2}, v{vT+1}, 11, v{vT+2}",
          f"v_and_b32 v{vT+3}, 1, v{vL}", f"v_lshl_add_u32 v{vT+2}, v{vT+3}, 3, v{vT+2}", f"v_bfe_u32 v{vT+3}, v{vL}, 1, 1",
          f"v_and_b32 v{vT+1}, 1, v{vT+1}", f"v_lshl_or_b32 v{vT+3}, v{vT+1}, 1, v{vT+3}",
          f"s_lshr_b32 s23, s{sW}, 1", "s_lshl_b32 s23, s23, 13", "s_add_u32 s23, s23, 16384", f"v_add_u32 v{vT+2}, s23, v{vT+2}",
          f"v_lshl_add_u32 v{vWa}, v{vT+3}, 4, v{vT+2}", f"v_xor_b32 v{vWa+1}, 32, v{vWa}")
        TR = SPARE
        rest([f"v_mov_b32 v{vT+3}, {BIG}"] if LNPRE else lnaddr,
          f"v_lshlrev_b32 v{vTW}, 4, v{vTW}", f"v_lshl_add_u32 v{vTW}, v{vU}, 7, v{vTW}", f"v_add_u32 v{vTW}, {TR}, v{vTW}",
          f"v_lshlrev_b32 v{vKo}, 2, v{vRow}", f"v_cmp_eq_u32 vcc, 0, v{vU}", f"v_add_u32 v{vKo}, {RKEY}, v{vKo}",
          f"v_lshlrev_b32 v{vTR}, 4, v0", f"v_cndmask_b32 v{vKo}, v{vT+3}, v{vKo}, vcc", f"v_add_u32 v{vTR}, {TR}, v{vTR}",
          f"v_sub_u32 v{vRow}, 0xffff, v{vRow}",
          f"v_lshrrev_b32 v{vO1}, 3, v0", f"v_and_b32 v{vT+2}, 7, v0", f"v_lshlrev_b32 v{vT+2}, 4, v{vT+2}",
          f"v_cmp_gt_u32 vcc, 128, v0", f"v_lshl_add_u32 v{vO1}, v{vO1}, 8, v{vT+2}",
          "s_lshr_b32 s66, s2, 1", "s_mul_i32 s66, s66, 20480", "s_and_b32 s31, s2, 1", "s_lshl_b32 s31, s31, 7", "s_add_u32 s66, s66, s31",
          f"v_cndmask_b32 v{vO3}, v{vT+3}, v{vO1}, vcc", "s_add_u32 s67, s66, 8192", "s_add_u32 s78, s66, 16384", f"s_mov_b32 s{sIT}, 0")
        rl = rest.lines
        for i in range(16):
            a(f"v_mfma_f32_32x32x16_bf16 {ar(16*i,16)}, {vr(vT+4,4)}, {vr(vT+4,4)}, 0", rl[4*i:4*i+4])
        assert len(rl) <= 64
        STPRE = os.environ.get('STPRE', '0') == '1'
        CALL = os.environ.get('CALL', '0') == '1'
        def xn_store(t):
            for i in range(3): t(f"ds_read_b128 {vr(XV+4*i,4)}, v{vTR} offset:{i*4096}")
            t(f"buffer_store_dword v{vAcc}, v{vKo}, s[{sWS}:{sWS+3}], 0 offen{SC}", "s_waitcnt lgkmcnt(0)",
              f"buffer_store_dwordx4 {vr(XV,4)}, v{vO1}, s[{sWS}:{sWS+3}], s66 offen{SC}",
              f"buffer_store_dwordx4 {vr(XV+4,4)}, v{vO1}, s[{sWS}:{sWS+3}], s67 offen{SC}",
              f"buffer_store_dwordx4 {vr(XV+8,4)}, v{vO3}, s[{sWS}:{sWS+3}], s78 offen{SC}")
        def ln_compute(t):
            pk = lambda op, d, x, y, extra="": f"{op} {vr(d,2)}, {vr(x,2)}, {vr(y,2)}{extra}"
            for i in range(12):
                t(f"v_lshlrev_b32 v{F+2*i}, 16, v{XV+i}", f"v_and_b32 v{F+2*i+1}, 0xffff0000, v{XV+i}")
            t(pk("v_pk_add_f32", vT, F, F + 2), pk("v_pk_add_f32", vT + 2, F + 4, F + 6))
            for i in range(8, 24, 4): t(pk("v_pk_add_f32", vT, vT, F + i), pk("v_pk_add_f32", vT + 2, vT + 2, F + i + 2))
            t(pk("v_pk_add_f32", vT, vT, vT + 2), f"v_add_f32 v{vS}, v{vT}, v{vT+1}")
            allreduce32_add(t, vS, vT2)
            t(f"v_mul_f32 v{vMean}, 0xbacccccd, v{vS}", f"v_mul_f32 v{vMean+1}, 0xbacccccd, v{vS}")
            for i in range(12):
                d = vT + 4 + 2 * (i % 4); acc = vT if i < 8 else vT + 2
                t(pk("v_pk_add_f32", d, F + 2 * i, vMean))
                if i in (0, 8): t(pk("v_pk_mul_f32", acc, d, d))
                else: t(f"v_pk_fma_f32 {vr(acc,2)}, {vr(d,2)}, {vr(d,2)}, {vr(acc,2)}")
            t(f"v_add_f32 v{vT+2}, v{vT+2}, v{vT+3}", f"v_add_f32 v{vS}, v{vT}, v{vT+1}", f"v_cndmask_b32 v{vT+2}, 0, v{vT+2}, s[{sM16}:{sM16+1}]",
              f"v_add_f32 v{vS}, v{vS}, v{vT+2}")
            allreduce32_add(t, vS, vT2)
            t(f"v_mul_f32 v{vS}, 0x3acccccd, v{vS}")
            bf16r(t, vS)
            t(f"v_add_f32 v{vS}, 0x3727c5ac, v{vS}")
            bf16r(t, vS)
            t(f"v_sqrt_f32 v{vS}, v{vS}")
            bf16r(t, vMean)
            bf16r(t, vS)
            t(f"v_rcp_f32 v{vT+12}, v{vS}", f"v_mov_b32 v{vMean+1}, v{vMean}", f"v_mov_b32 v{vT+13}, v{vT+12}")
            for i in range(12):
                f0 = F + 2 * i; w0 = vT + 2 * (i % 2)
                t(pk("v_pk_add_f32", f0, f0, vMean), f"v_lshlrev_b32 v{w0}, 16, v{WR+i}", f"v_cvt_pk_bf16_f32 v{f0+1}, v{f0}, v{f0+1}",
                  f"v_and_b32 v{w0+1}, 0xffff0000, v{WR+i}", f"v_lshlrev_b32 v{f0}, 16, v{f0+1}", f"v_and_b32 v{f0+1}, 0xffff0000, v{f0+1}",
                  pk("v_pk_mul_f32", f0, f0, vT + 12), f"v_cvt_pk_bf16_f32 v{XV+i}, v{f0}, v{f0+1}",
                  f"v_lshlrev_b32 v{f0}, 16, v{XV+i}", f"v_and_b32 v{f0+1}, 0xffff0000, v{XV+i}")
                if i == 0: t(pk("v_pk_mul_f32", vAcc, f0, w0))
                else: t(f"v_pk_fma_f32 {vr(vAcc,2)}, {vr(f0,2)}, {vr(w0,2)}, {vr(vAcc,2)}")
                if i % 4 == 3: t(f"ds_write_b128 v{vTW}, {vr(XV+i-3,4)} offset:{(i//4)*4096}")
            t(f"v_add_f32 v{vAcc}, v{vAcc}, v{vAcc+1}")
            allreduce32_add(t, vAcc, vT2)
            bf16r(t, vAcc)
            t(f"v_ashrrev_i32 v{vT2}, 31, v{vAcc}", f"v_or_b32 v{vT2}, 0x80000000, v{vT2}", f"v_xor_b32 v{vAcc}, v{vAcc}, v{vT2}",
              f"v_and_b32 v{vAcc}, 0xffff0000, v{vAcc}", f"v_or_b32 v{vAcc}, v{vAcc}, v{vRow}")
        stamp(a, 2)
        if LNPRE:
            a(f"s_waitcnt vmcnt({5 if T01 else 3})")
            SM = int(os.environ.get("SM", "0"))
            if SM:
                a(f"s_add_u32 s4, s{sWt}, s74", f"s_addc_u32 s5, s{sWt+1}, 0", f"s_add_u32 s6, s{sC}, s29", f"s_addc_u32 s7, s{sC+1}, 0")
                step = 128 // SM
                sl = [f"s_load_dword s83, s[4:5], {r*8192 + q*step}" for r in range(8) for q in range(2 * SM)]
                sl += [f"s_load_dword s83, s[6:7], {r*1024 + 256 + q*step}" for r in range(2) for q in range(2 * SM)]
                a(sl[:14])
            ln_compute(a)
            if SM: a(sl[14:])
            a(stampv(9))
            if STPRE:
                a(f"buffer_store_dword v{vZero}, v{vFl}, s[{sWS}:{sWS+3}], 0 offen{SC}", "s_waitcnt lgkmcnt(0)", "s_barrier")
                xn_store(a)
            a(f"v_mov_b32 v{vT+3}, {BIG}")
            dma_stage()
        dma_stage()
        stamp(a, 3)
        a(self.cyc(62))
        a("s_waitcnt vmcnt(8) lgkmcnt(0)", "s_barrier")
        a(f"s_cmp_ge_u32 s{sW}, 2", f"s_cbranch_scc1 {name}_roleV")
        def reads(role, buf, off):
            CFr = (FB if role == "K" else FA) + 32 * buf
            WF = (FA if role == "K" else FB) + 32 * buf
            rc = [f"ds_read_b128 {vr(CFr+4*i,4)}, v{vCa} offset:{off + (i//2)*4096 + (i%2)*1024}" for i in range(8)]
            rw = [f"ds_read_b64_tr_b16 {vr(WF+4*cb+2*t,2)}, v{vWa+(cb&1)} offset:{off + t*1024 + (cb>>1)*256}" for cb in range(8) for t in range(2)]
            return rc, rw
        for role in ("K", "V"):
            if role == "V": a.label(f"{name}_roleV")
            rc, rw = reads(role, 0, 0)
            a(rc, rw)
            dma_stage()
            a(f"buffer_load_dword v231, v{vT+3}, s[{sC}:{sC+3}], 0 offen")
            dma_stage()
            if not T01 and not SM: a(t1)
            a("s_waitcnt lgkmcnt(0)")
            a(".p2align 6")
            a.label(f"{name}_loop{role}")
            if DBG: a(f"s_mov_b32 m0, s{sIT}", stampv("m0"))
            for half in range(2):
                def acc(i, j):
                    n_ = (8 * (j // 2) + 2 * (i // 2) + j % 2) if role == "K" else (8 * (i // 2) + j)
                    return ar(((n_ + 24) % 32) * 8 + 4 * (i % 2), 4)
                mf = [f"{MF} {acc(i,j)}, {vr(FA+32*half+4*i,4)}, {vr(FB+32*half+4*j,4)}, {acc(i,j)}" for i in range(8) for j in range(8)]
                sc = {}; mem = {}; va = {}
                sc[0] = [f"s_waitcnt vmcnt({17 if half == 0 else 18})"]; sc[1] = ["s_barrier"]
                rc, rw = reads(role, 1 - half, 32768 if half == 0 else 0)
                preC, lc, preW, lw, post = dma_lines()
                ds = []
                for i in range(8): ds += [rw[2*i], rw[2*i+1], rc[i]]
                for i, x in enumerate(ds): mem[2 + 2*i] = [x]
                st_ = 2 if half == 0 else 6
                sc[4] = preC
                for j in range(4): mem[5 + st_*j] = [lc[j]]
                sc[4 + 4*st_] = preW
                for j in range(4): mem[5 + st_*(4+j)] = [lw[j]]
                for j, x in enumerate(post): sc[48 + j] = [x]
                if half == 0:
                    mem[21] = [f"buffer_load_dword v231, v{vTQ}, s[{sQ2}:{sQ2+3}], s74 offen{SC}"]
                    sc[22] = ["s_add_u32 s74, s74, s73"]
                    h = self.hook(f"s_bitcmp1_b32 s72, s{sIT}", 8)
                    sc[23] = [h[0]]; sc[24] = h[1]
                    va[52] = [f"v_xor_b32 v{vCa}, 0x10000, v{vCa}"]
                    va[53] = [f"v_xor_b32 v{vWa}, 0x10000, v{vWa}"]
                    va[54] = [f"v_xor_b32 v{vWa+1}, 0x10000, v{vWa+1}"]
                    sc[63] = ["s_waitcnt lgkmcnt(0)"]
                else:
                    h = self.hook(f"s_bitcmp1_b32 s76, s{sIT}", 8)
                    sc[53] = [h[0]]; sc[54] = h[1]
                    sc[57] = [f"s_add_u32 s{sIT}, s{sIT}, 1"]
                    sc[61] = [f"s_cmp_lt_u32 s{sIT}, 8"]
                    sc[62] = ["s_waitcnt lgkmcnt(0)"]
                    sc[63] = [f"s_cbranch_scc1 {name}_loop{role}"]
                a(weave(mf, sc, mem, va))
            if role == "K":
                a(f"s_mov_b32 s64, {KFO}", "s_mov_b32 s76, 0x3e0293ee", f"s_branch {name}_p1epi")
            else:
                a(f"s_mov_b32 s64, {VFO}", "s_mov_b32 s76, 1.0")
        t = Asm()
        yld = ["s_getpc_b64 s[8:9]", "s_setpc_b64 s[10:11]"]
        t.label(f"{name}_co1")
        if not LNPRE: t(xloads, yld)
        t(f"buffer_load_dword v232, v234, s[{sC}:{sC+3}], s29 offen")
        if not STPRE: t(f"buffer_store_dword v{vZero}, v{vFl}, s[{sWS}:{sWS+3}], 0 offen{SC}")
        if not LNPRE:
            t("s_waitcnt vmcnt(18)")
            ln_compute(t)
            t(yld)
        if not STPRE: xn_store(t)
        t(yld)
        t(f"s_mov_b32 s{sQ2}, s60", f"s_mov_b32 s{sQ2+1}, s61", f"s_mov_b32 s{sQ2+2}, s75", f"s_lshl_b32 s74, s{sI}, 2", f"s_add_u32 s74, s74, s{sW}",
          "s_lshl_b32 s74, s74, 16", f"s_mov_b32 s73, {256*8192}",
          f"v_mov_b32 v{vS}, {BIG}", f"v_mov_b32 v{vT2}, 1", f"v_writelane_b32 v{vS}, s77, 0", f"v_lshlrev_b32 v{vZero}, 2, v{vL}")
        if LNPRE: t(f"s_and_b32 s23, s{sH}, 3", f"s_cbranch_scc0 {name}_arr")
        t(yld)
        t.label(f"{name}_arr")
        t(f"buffer_store_byte v{vT2}, v{vS}, s[{sDb}:{sDb+3}], 0 offen{SC}", yld)
        t(f"buffer_load_dword v{vPoll}, v{vZero}, s[{sDb}:{sDb+3}], 0 offen{SC}", yld)
        t(f"s_mov_b32 s{sWt}, s60", f"s_mov_b32 s{sWt+1}, s61", f"s_mov_b32 s{sWt+2}, s75",
          f"s_lshr_b32 s{sOW}, s{sW}, 1", f"s_lshl_b32 s{sOW}, s{sOW}, 18", f"s_mov_b32 s{sStep}, {64*8192}",
          f"s_mov_b32 s{sC}, s18", f"s_mov_b32 s{sC+1}, s19", f"s_mov_b32 s{sC+2}, {2048*1280}", f"s_mov_b32 s{sOC}, 0", "s_movk_i32 s79, 1024",
          f"s_lshl_b32 s23, s{sI}, 2", f"s_add_u32 s23, s23, s{sW}", f"s_mul_i32 s23, s23, {2*20480}", f"v_add_u32 v{vCo}, s23, v{vL16}",
          f"s_sub_u32 s23, 15, s{sI}", "s_lshl_b32 s23, s23, 2", f"s_add_u32 s23, s23, s{sW}", f"s_mul_i32 s23, s23, {2*20480}", "s_sub_u32 s23, s23, 2048",
          f"v_add_u32 v{vCo+2}, s23, v{vL16}", f"v_add_u32 v{vCo+1}, {20480-1024}, v{vCo}", f"v_add_u32 v{vCo+3}, {20480-1024}, v{vCo+2}",
          )
        if os.environ.get("XT", "0") == "1":
            t(f"s_mov_b32 s{sQ2}, s18", f"s_mov_b32 s{sQ2+1}, s19", f"s_mov_b32 s{sQ2+2}, {2048*1280}", "s_movk_i32 s73, 8192",
              f"s_sub_u32 s23, 15, s{sI}", f"s_bitcmp1_b32 s{sH}, 1", f"s_cselect_b32 s23, s23, s{sI}", "s_lshl_b32 s23, s23, 2", f"s_add_u32 s23, s23, s{sW}",
              "s_lshl_b32 s23, s23, 1", f"s_and_b32 s31, s{sH}, 1", "s_add_u32 s23, s23, s31", "s_mul_i32 s74, s23, 20480", "s_add_u32 s74, s74, 4096",
              f"v_lshlrev_b32 v{vTQ}, 7, v{vL}")
        t("s_waitcnt vmcnt(8)")
        self.poll_check(t, "ln", vPoll, vZero, sDb, [f"v_cmp_ne_u32 vcc, 0x01010101, v{vPoll}"])
        t("s_setpc_b64 s[10:11]")
        self.tail += t.lines
        a.label(f"{name}_p1epi")
        stamp(a, 4)
        a(self.cyc(56))
        self.sWq = sWt; self.sXs = sC; self.sWoff = sOW; self.sXoff = sOC

    def kv_item(self, n, D):
        sc = []
        if n and n % 8 == 0: sc = [f"s_add_u32 s64, s64, {131072-4096}"]
        elif n % 8 == 4: sc = ["s_add_u32 s64, s64, 4096"]
        regs = [((n + 24) % 32) * 8 + r for r in range(8)]
        va = [f"v_accvgpr_read_b32 v{vT+k}, a{r}" for k, r in enumerate(regs)]
        va += [f"v_mul_f32 v{vT+k}, s76, v{vT+k}" for k in range(8)]
        va += [f"v_cvt_pk_bf16_f32 v{D+r}, v{vT+2*r}, v{vT+1+2*r}" for r in range(4)]
        z = []
        st = f"buffer_store_dwordx4 {vr(D,4)}, v{vL16}, s[{sWS}:{sWS+3}], s64 offen offset:{(n%4)*1024}{SC}"
        return sc, va, z, st

    def top8(self):
        name = self.name
        self.a(f"s_cmp_eq_u32 s2, {TOPWG}", f"s_cbranch_scc1 {name}_top8")
        self.a.label(f"{name}_notop")
        a = Asm()
        KEY = 232; CA = 96
        a.label(f"{name}_top8")
        vM, vPrev, vSel, vTok, vTmp, vRow, vR = vT + 4, vT + 5, vT + 6, vT + 7, vT + 8, vT + 9, vT + 10
        a(f"v_mov_b32 v{vPrev}, 0", f"v_mov_b32 v{vSel}, 0", f"v_and_b32 v{vTok}, 7, v{vL}", "s_mov_b32 s23, 0")
        a.label(f"{name}_top")
        a(f"v_max3_u32 v{vM}, v{KEY}, v{KEY+1}, v{KEY+2}", f"v_max3_u32 v{vTmp}, v{KEY+3}, v{KEY+4}, v{KEY+5}",
          f"v_max3_u32 v{vM}, v{vM}, v{KEY+6}, v{KEY+7}", f"v_max_u32 v{vM}, v{vM}, v{vTmp}")
        for m in ("quad_perm:[1,0,3,2]", "quad_perm:[2,3,0,1]", "row_half_mirror", "row_mirror"):
            a("s_nop 1", f"v_max_u32_dpp v{vM}, v{vM}, v{vM} {m} row_mask:0xf bank_mask:0xf")
        xreduce(a, "v_max_u32", vM, vTmp)
        a(f"v_add_u32 v{vPrev}, v{vPrev}, v{vM}", f"v_cmp_eq_u32 vcc, s23, v{vTok}")
        for q in range(8): a(f"v_sub_u32 v{KEY+q}, v{KEY+q}, v{vM}")
        a(f"v_cndmask_b32 v{vSel}, v{vSel}, v{vPrev}, vcc", "s_add_u32 s23, s23, 1", "s_cmp_lt_u32 s23, 8", f"s_cbranch_scc1 {name}_top")
        a(f"s_lshl_b32 s23, s{sW}, 5", f"s_add_u32 s23, s23, {SPARE}", f"v_lshl_add_u32 v{vTmp}, v{vTok}, 2, s23", f"ds_write_b32 v{vTmp}, v{vSel}",
          "s_waitcnt lgkmcnt(0)", "s_barrier", f"s_cmp_lg_u32 s{sW}, 0", f"s_cbranch_scc1 {name}_notop")
        a(f"v_and_b32 v{vTmp}, 31, v{vL}", f"v_lshlrev_b32 v{vTmp}, 2, v{vTmp}", f"v_add_u32 v{vTmp}, {SPARE}, v{vTmp}", f"v_mov_b32 v{vM}, {SPARE}",
          f"ds_read_b32 v{vSel}, v{vTmp}")
        for q in range(8): a(f"ds_read_b128 {vr(CA+4*q,4)}, v{vM} offset:{16*q}")
        a(f"v_mov_b32 v{vTok}, 0", "s_waitcnt lgkmcnt(0)")
        for q in range(0, 32, 4):
            for e in range(4): a(f"v_cmp_gt_u32 s[{4+2*(e%2)}:{5+2*(e%2)}], v{CA+q+e}, v{vSel}" if e < 2 else f"v_cmp_gt_u32 s[{76+2*(e%2)}:{77+2*(e%2)}], v{CA+q+e}, v{vSel}")
            for e in range(4):
                sp = (4 + 2 * e) if e < 2 else (76 + 2 * (e - 2))
                a(f"v_addc_co_u32 v{vTok}, vcc, 0, v{vTok}, s[{sp}:{sp+1}]")
        a(f"v_and_b32 v{vRow}, 0xffff, v{vSel}", f"v_sub_u32 v{vRow}, 0xffff, v{vRow}", f"v_and_b32 v{vRow}, 2047, v{vRow}")
        a(f"v_ashrrev_i32 v{vM}, 31, v{vSel}", f"v_not_b32 v{vM}, v{vM}", f"v_or_b32 v{vM}, 0x80000000, v{vM}",
          f"v_xor_b32 v{vR}, v{vSel}, v{vM}", f"v_and_b32 v{vR}, 0xffff0000, v{vR}",
          f"v_mul_f32 v{vR}, 0xbfb8aa3b, v{vR}", f"v_exp_f32 v{vR}, v{vR}", "s_nop 0", f"v_add_f32 v{vR}, 1.0, v{vR}",
          f"v_rcp_f32 v{vR}, v{vR}", "s_nop 0")
        bf16r(a, vR)
        a(f"v_and_b32 v{vM}, 32, v{vL}", f"v_lshl_add_u32 v{vM}, v{vTok}, 2, v{vM}", f"v_add_u32 v{vM}, {SEL}, v{vM}", f"v_mov_b32 v{vPrev}, {BIG}",
          f"v_cmp_gt_u32 vcc, 8, v{vTok}", f"v_add_u32 v{vRow}, 1, v{vRow}", f"v_or_b32 v{vR}, 1, v{vR}", f"v_cndmask_b32 v{vM}, v{vPrev}, v{vM}, vcc",
          f"v_cmp_gt_u32 vcc, 32, v{vL}", "s_nop 1", f"v_cndmask_b32 v{vR}, v{vR}, v{vRow}, vcc",
          f"buffer_store_dword v{vR}, v{vM}, s[{sWS}:{sWS+3}], 0 offen{SC}", f"s_branch {name}_notop")
        self.tail += a.lines

    def phase2(self):
        a = self.a; name = self.name
        sWq, sXs, sWoff, sXoff = self.sWq, self.sXs, self.sWoff, self.sXoff
        XB = 224; vXa = 14; sW4 = 24
        vm = VM()
        vm.issue("X1", 4); vm.issue("W1", 4); vm.issue("X2", 4); vm.issue("W2", 4); vm.issue("T"); vm.issue("X3", 4); vm.issue("W3", 4)
        def wreads(buf, off):
            return [f"ds_read_b64_tr_b16 {vr(Q+32*buf+4*cb+2*t,2)}, v{vWa+(cb&1)} offset:{off + t*1024 + (cb>>1)*256}" for cb in range(8) for t in range(2)]
        def xreads(buf, off):
            return [f"ds_read_b128 {vr(XB+16*buf+4*qb,4)}, v{vXa} offset:{off + qb*1024}" for qb in range(4)]
        a(f"s_lshr_b32 s23, s{sW}, 1", "s_lshl_b32 s23, s23, 13", f"v_subrev_u32 v{vWa}, s23, v{vWa}", f"v_subrev_u32 v{vWa+1}, s23, v{vWa+1}",
          f"s_lshl_b32 s{sW4}, s{sW}, 12", f"v_add_u32 v{vXa}, s{sW4}, v{vL16}")
        a(wreads(0, 0), f"s_waitcnt vmcnt({vm.need('T')})", xreads(0, 0))
        a(f"s_lshl_b32 s23, s{sH}, 19", "s_add_u32 s64, s64, s23", f"s_lshl_b32 s23, s{sI}, 14", "s_add_u32 s64, s64, s23",
          f"s_and_b32 s23, s{sW}, 1", "s_lshl_b32 s23, s23, 13", "s_add_u32 s64, s64, s23")
        a(f"s_lshl_b32 s23, s{sH}, 19", f"s_add_u32 s23, s23, {KFO}", "s_add_u32 s6, s18, s23", "s_addc_u32 s7, s19, 0",
          f"s_add_u32 s8, s6, {VFO-KFO}", "s_addc_u32 s9, s7, 0", f"s_sub_u32 s23, 16, s{sI}", "s_lshl_b32 s23, s23, 15")
        srd(a, sK, "s6", "s7", "s23")
        srd(a, sV, "s8", "s9", "s23")
        a(f"s_lshl_b32 s30, s{sH}, 10", f"s_add_u32 s30, s30, {KVF}", f"s_mov_b32 s{sThr}, 0x47800000",
          f"s_cmp_eq_u32 s{sW}, 0", f"s_cselect_b32 s65, s{sKVa}, {BIG}")
        a(f"s_waitcnt vmcnt({vm.need('X1')}) lgkmcnt(0)")
        stamp(a, 6)
        per = [int(c) for c in os.environ.get("PER", "22111111111122233330")]
        per[0] += 32 - sum(per)
        assert sum(per) == 32 and len(per) == 20 and per[19] == 0
        last8 = min(k for k in range(20) if sum(per[:k+1]) >= 8)
        SFLAG = last8 + 2 if last8 % 2 else last8 + 3
        SPOLL = int(os.environ.get('SPOLL', '16'))
        misc = [f"v_and_b32 v11, 15, v{vL}", f"v_lshrrev_b32 v10, 4, v{vL}", "v_lshlrev_b32 v10, 2, v10", "v_sub_u32 v11, v11, v10"]
        misc += [f"v_cmp_le_i32 s[{sMask+2*r}:{sMask+2*r+1}], {r}, v11" for r in range(4)]
        misc += [f"v_and_b32 v{vPo}, 7, v{vL}", f"v_lshlrev_b32 v{vPo}, 7, v{vPo}", f"v_add_u32 v{vPo}, s30, v{vPo}"]
        flagst = f"buffer_store_dword v{vWa}, off, s[{sWS}:{sWS+3}], s65{SC}"
        pollld = f"buffer_load_dword v{vPoll}, v{vPo}, s[{sWS}:{sWS+3}], 0 offen{SC}"
        it = 0; zpool = []
        for s_ in range(20):
            buf = s_ & 1
            C = lambda d: "0" if s_ == 0 else vr(d, 4)
            mf = [f"{MF} {vr(QACC+(db*4+qb)*4,4)}, {vr(Q+32*buf+4*db,4)}, {vr(XB+16*buf+4*qb,4)}, {C(QACC+(db*4+qb)*4)}" for qb in range(4) for db in range(8)]
            sc = {g: [] for g in range(32)}; mem = {g: [] for g in range(32)}; va = {g: [] for g in range(32)}
            tags = {g: [] for g in range(32)}
            if s_ & 1: sc[0].append("s_barrier")
            vpos = [3, 8, 13, 18, 23, 28]
            if s_ < 19:
                off = [8192, 32768, 32768 + 8192, 0][s_ % 4]
                rd = wreads(1 - buf, off); xr = xreads(1 - buf, 32768 if s_ % 2 == 0 else 0)
                ds = rd[:8] + xr[:2] + rd[8:] + xr[2:]
                dpos = [g for g in range(1, 27) if g not in vpos][:20]
                for p_, x in zip(dpos, ds): mem[p_].append(x)
            if s_ + 4 < 20:
                sc[2].append(f"s_add_u32 m0, s{sW4}, {(s_%4)*32768}")
                for j in range(4):
                    mem[vpos[j]].append(f"buffer_load_dwordx4 v{vCo+j}, s[{sXs}:{sXs+3}], s{sXoff} offen offset:{j*1024}{SC} lds"); tags[vpos[j]].append(f"X{s_+4}")
                sc[19].append(f"s_add_u32 s{sXoff}, s{sXoff}, 1024")
            stage = (s_ + 1) // 2 + 3
            if s_ >= 1 and stage < 10:
                sc[22].append(f"s_add_u32 m0, s{sW4}, {(stage%4)*32768+16384}")
                for jj in range(2):
                    j = jj if s_ & 1 else 2 + jj
                    mem[vpos[4+jj]].append(f"buffer_load_dwordx4 v{vWo+j}, s[{sWq}:{sWq+3}], s{sWoff} offen offset:{j*1024} lds"); tags[vpos[4+jj]].append(f"W{stage}")
                if not s_ & 1: sc[29].append(f"s_add_u32 s{sWoff}, s{sWoff}, {64*8192}")
            if s_ % 4 == 2:
                va[29].append(f"v_xor_b32 v{vWa}, 0x10000, v{vWa}"); va[30].append(f"v_xor_b32 v{vWa+1}, 0x10000, v{vWa+1}")
            if s_ % 2 == 0: va[27].append(f"v_xor_b32 v{vXa}, 0x10000, v{vXa}")
            if s_ == SFLAG:
                mem[0].append(flagst); tags[0].append("flag")
            if s_ == SPOLL:
                mem[3].append(pollld); tags[3].append("poll")
            toks = []
            for k in range(per[s_]):
                D = vT + 8 + 4 * (it % 2)
                isc, iva, z, ist = self.kv_item(it, D)
                toks += [("s", x) for x in isc] + [("v", x) for x in iva] + [("st" if it >= 8 else "st0", ist)]; it += 1
                zpool += z
            if s_ == 13: toks += [("v", x) for x in misc]
            fs = []
            if s_ in (14, 15):
                for q in (range(3) if s_ == 14 else range(3, 5)):
                    toks += [("v", x) for x in [f"v_add_u32 v9, {64*q}, v{vL}", "v_mul_u32_u24 v10, 6554, v9", "v_lshrrev_b32 v10, 16, v10",
                             f"v_mul_u32_u24 v10, {1280-160}, v10", "v_lshl_add_u32 v10, v9, 4, v10", f"v_accvgpr_write_b32 a{248+q}, v10"]]
            if s_ == 16:
                fs = [f"s_mul_i32 s34, s{sW}, 5120", f"s_add_u32 s34, s34, {SPARE}"] + self.co_setup()[:-3]
            if s_ == 17:
                fs = [f"s_and_b32 s23, s{sW}, 1", "s_lshl_b32 s23, s23, 12", f"s_cmp_lt_u32 s{sW}, 2\ns_cselect_b32 s{sKm}, {131072-24576}, 0",
                         f"s_add_u32 s{sKm}, s{sKm}, s23", f"s_lshl_b32 s{sKo}, s{sW}, 12", f"s_mov_b32 s{sVo}, s{sKo}", f"s_add_u32 s{sVm}, s{sVo}, {32768+16384}",
                         "s_load_dwordx4 s[4:7], s[0:1], 64", "s_load_dwordx2 s[60:61], s[0:1], 80",
                         f"s_add_u32 s23, s{sW}, 1", "s_lshr_b32 s23, s23, 1", f"s_lshl_b32 s{sCnt}, s{sI}, 1", f"s_add_u32 s{sCnt}, s{sCnt}, s23",
                         f"s_lshl_b32 s23, s{sI}, 2", f"s_sub_u32 s{sNSS}, 28, s23", f"s_and_b32 s23, s{sW}, 1", f"s_add_u32 s{sNSS}, s{sNSS}, s23"]
                toks += [("v", x) for x in [f"v_lshrrev_b32 v6, 2, v{vL}", "v_mul_u32_u24 v6, 160, v6", f"v_and_b32 v9, 3, v{vL}",
                         "v_lshl_add_u32 v6, v9, 3, v6", "v_add_u32 v6, s34, v6", f"v_mov_b32 v{vKV}, v{vL16}", f"v_mov_b32 v{vNI}, 0xff800000",
                         f"v_add_u32 v9, {3*32768+8192}, v{vL16}"]]
            if s_ == 18:
                cs = self.co_setup()[-3:]
                fs = [f"s_cmp_ge_u32 s{sW}, 2\ns_cselect_b32 s4, s6, s4\ns_cselect_b32 s5, s7, s5", f"s_mov_b32 s62, {1728*1280}", "s_mov_b32 s63, 0x20000",
                      "s_mov_b64 s[56:57], s[52:53]", "s_mov_b32 s58, s54", "s_mov_b64 s[52:53], s[4:5]", f"s_mov_b32 s54, {640*3456}", cs[0], cs[1] + "\n" + cs[2],
                      f"s_lshl_b32 s31, s{sW}, 11", f"s_add_u32 s31, s31, {RKEY}", f"s_cmp_eq_u32 s2, {TOPWG}\ns_cselect_b32 s31, s31, {BIG}"]
            for q, x in enumerate(fs): sc[1 + q].append(x)
            if s_ == 19:
                tmp = Asm()
                self.poll_check(tmp, "kv", vPoll, vPo, sWS, [f"v_cmp_eq_u32 vcc, 0, v{vPoll}"])
                va[0].append(tmp.lines[0]); sc[1] += tmp.lines[1:]
                mem[0].append(f"buffer_load_dwordx4 v[232:235], v{vL16}, s[{sWS}:{sWS+3}], s31 offen{SC}")
                mem[1].append(f"buffer_load_dwordx4 v[236:239], v{vL16}, s[{sWS}:{sWS+3}], s31 offen offset:1024{SC}")
                for p_ in range(3):
                    g0 = 2 + 10 * p_
                    sc[g0].append(f"s_mov_b32 m0, s{sKm}")
                    for j in range(4): mem[g0+1+2*j].append(f"buffer_load_dwordx4 v{vL16}, s[{sK}:{sK+3}], s{sKo} offen offset:{j*1024}{SC} lds")
                    sc[g0+2].append(f"s_add_u32 s{sKm}, s{sKm}, 32768"); sc[g0+3].append(f"s_and_b32 s{sKm}, s{sKm}, 0x1ffff")
                    sc[g0+8].append(f"s_add_u32 s{sKo}, s{sKo}, 16384")
                def cvq(X, qb):
                    return [f"v_cvt_pk_bf16_f32 v{Q+32*X+8*ks+4*qb+2*hh+e}, v{QACC+((2*ks+hh)*4+2*X+qb)*4+2*e}, v{QACC+((2*ks+hh)*4+2*X+qb)*4+2*e+1}"
                            for ks in range(4) for hh in range(2) for e in range(2)]
                for q in range(4): va[2 + 2 * q].append(f"v_mov_b32 v{LS+q}, 0")
                for q, x in enumerate(cvq(0, 0)): va[10 + q * 10 // 16].append(x)
                for q, x in enumerate(cvq(0, 1)): va[20 + q * 11 // 16].append(x)
            cap = [max(0, 2 - len(mem[g]) - len(va[g])) for g in range(31)]
            nv = sum(1 for t_ in toks if t_[0] != "s")
            nz = len(zpool) if s_ == 19 else min(len(zpool), max(0, sum(cap) - nv - per[s_] - 1))
            toks += [("v", x) for x in zpool[:nz]]; zpool = zpool[nz:]
            nv += nz
            extra = max(0, nv - sum(cap))
            while True:
                cp = list(cap); plc = []; nsc = {g: len(sc[g]) for g in range(32)}
                for q in range(extra): cp[(q * 30 // extra) % 30] += 1
                g = 0; smin = 0; ok = True
                for kind, x in toks:
                    if kind == "s":
                        gg = max(g, smin)
                        while gg < 30 and nsc[gg] and gg < max(g, smin) + 3: gg += 1
                        gg = min(gg, 30); nsc[gg] += 1
                        plc.append((sc, gg, x, None)); smin = gg + 1
                        continue
                    if kind != "v": g = max(g + 1, smin - 1)
                    while g < 31 and cp[g] == 0: g += 1
                    if g >= 31: ok = False; break
                    cp[g] -= 1
                    if kind == "v": plc.append((va, g, x, None))
                    else: plc.append((mem, g, x, kind)); smin = g + 1
                if ok: break
                extra += 1
            for (d_, g, x, kind) in plc:
                d_[g].append(x)
                if kind: tags[g].append(kind)
            for g in range(31):
                for t_ in tags[g]: vm.issue(t_)
            if s_ < 19:
                need = []
                if s_ + 2 < 20: need.append(f"X{s_+2}")
                if (s_ + 1) & 1:
                    st1 = (s_ + 2) // 2
                    if st1 < 10: need.append(f"W{st1}")
                if s_ + 1 == SFLAG: need.append("st0")
                if s_ == 18: need.append("poll")
                sc[31].append(f"s_waitcnt vmcnt({vm.need(*need)}) lgkmcnt(0)" if need else "s_waitcnt lgkmcnt(0)")
            for t_ in tags[31]: vm.issue(t_)
            if os.environ.get("QST"): a(stampv(30 + s_))
            a(weave(mf, sc, mem, va))
        assert it == 32 and not zpool
        stamp(a, 5); stamp(a, 7)
        a(self.cyc(57))
        cv = cvq(1, 0) + cvq(1, 1)
        for p_ in range(2):
            a(f"s_mov_b32 m0, s{sVm}", "s_nop 0")
            for j in range(4):
                a(f"v_mfma_f32_32x32x16_bf16 {ar(O+16*(4*p_+j),16)}, {vr(LS,4)}, {vr(LS,4)}, 0",
                  f"buffer_load_dwordx4 v{vL16}, s[{sV}:{sV+3}], s{sVo} offen offset:{j*1024}{SC} lds", cv[:4]); cv = cv[4:]
            a(f"s_add_u32 s{sVo}, s{sVo}, 16384", f"s_add_u32 s{sVm}, s{sVm}, 32768", f"s_and_b32 s{sVm}, s{sVm}, 0x1ffff")
        assert not cv
        a("s_waitcnt vmcnt(12)", "s_barrier")
        a([f"ds_read_b128 {ar(KF+4*i,4)}, v9 offset:{i*1024}" for i in range(8)])
        a(f"buffer_store_dword v{vNI}, off, s[{sWS}:{sWS+3}], s65 offset:32{SC}", f"v_add_u32 v13, 32, v{vPo}", "v_mov_b32 v14, 0")
        self.top8()
        a("s_waitcnt lgkmcnt(4)")

    def wf_addr(self, d):
        return [f"s_and_b32 s{d}, s2, 1", f"s_lshl_b32 s{d}, s{d}, 2", f"s_add_u32 s{d}, s{d}, s{sW}", f"s_lshl_b32 s{d}, s{d}, 7",
                "s_lshr_b32 s31, s2, 1", f"s_add_u32 s{d}, s{d}, s31", f"s_lshl_b32 s{d}, s{d}, 7", f"s_add_u32 s{d}, s{d}, {WF}"]
    def yf_addr(self, d):
        return [f"s_sub_u32 s{d}, s2, {FFN0}", f"s_lshl_b32 s31, s{sW}, 6", f"s_add_u32 s{d}, s{d}, s31", f"s_lshl_b32 s{d}, s{d}, 7", f"s_add_u32 s{d}, s{d}, {YF}"]
    def flag_store(self, addr_lines, wait):
        return addr_lines + [wait, f"buffer_store_dword v{vNI}, off, s[{sWS}:{sWS+3}], s23{SC}"]

    def co_setup(self):
        name = self.name
        return (["s_mov_b32 s101, 24"] if DBG else []) + [f"s_and_b32 s32, s{sH}, 3", "s_min_u32 s32, s32, 2", "s_add_u32 s32, s32, 5", "s_lshl_b32 s32, s32, 14",
          "s_mov_b32 s9, -1", "s_sub_u32 s23, s2, 64", "s_cmp_lt_u32 s23, 96\ns_cselect_b32 s9, 0, s9", "s_cmp_ge_u32 s2, 224\ns_cselect_b32 s9, 0, s9",
          "s_and_b32 s32, s32, s9", f"s_sub_u32 s23, s2, {FFN0}", f"s_cmp_lt_u32 s23, {FFN1-FFN0}\ns_cselect_b32 s32, {(3+self.FS)*16384}, s32",
          "s_mov_b32 s67, s2", "s_mov_b32 s8, 0", f"s_mov_b32 s{k2.sRing}, 0", "s_mov_b32 s11, 0", "s_mov_b32 s12, 0",
          f"s_lshl_b32 s15, s{sI}, 1", "s_add_u32 s23, s15, 6", f"s_sub_u32 s15, {32-self.U}, s15", "s_max_u32 s15, s15, s23", "s_lshl_b32 s15, s15, 14",
          f"s_getpc_b64 s[36:37]\n{name}_copc:", f"s_add_u32 s36, s36, {name}_co-{name}_copc-4", "s_addc_u32 s37, s37, 0"]

    def cyc(self, lane):
        if not (DBG and os.environ.get("CYC")): return []
        return ["s_memtime s[98:99]", "s_waitcnt lgkmcnt(0)", f"v_writelane_b32 v7, s98, {lane}"]

    def hook(self, cond=None, R=36):
        k = self.nhook; self.nhook += 1
        n = self.name
        dbg = ["s_memrealtime s[98:99]", "s_waitcnt lgkmcnt(0)", "s_mov_b32 s100, s98"] if (DBG and os.environ.get("REC")) else []
        self.tail += [f"{n}_hk{k}:"] + dbg + [f"s_getpc_b64 s[{R+2}:{R+3}]", f"{n}_hp{k}:", f"s_add_u32 s{R}, s{R}, 4", f"s_addc_u32 s{R+1}, s{R+1}, 0",
                      f"s_sub_u32 s{R+2}, s{R+2}, {n}_hp{k}-{n}_hb{k}", f"s_subb_u32 s{R+3}, s{R+3}, 0", f"s_setpc_b64 s[{R}:{R+1}]"]
        return [cond or f"s_cmp_ge_u32 s{sKo}, s32", [f"s_cbranch_scc1 {n}_hk{k}", f"{n}_hb{k}:"]]

    def coroutine(self):
        name = self.name
        a = Asm()
        cnt = [0]
        def rec():
            if DBG and os.environ.get("REC"): a("s_memrealtime s[98:99]", "s_waitcnt lgkmcnt(0)", "s_sub_u32 s98, s98, s100", "s_lshl_b32 s98, s98, 16", "s_and_b32 s100, s100, 0xffff",
                      "s_or_b32 s98, s98, s100", "s_mov_b32 m0, s101", "s_add_u32 s101, s101, 1", "v_writelane_b32 v7, s98, m0")
        def yld(n=1):
            for _ in range(n):
                rec()
                a("s_getpc_b64 s[36:37]", "s_setpc_b64 s[38:39]")
        G = 232; FW = 192; FX = 212; Y = 236
        def wo_reads():
            a("s_waitcnt vmcnt(8)")
            for cb in range(5):
                for tt in range(2): a(f"ds_read_b64_tr_b16 {vr(232+4*cb+2*tt,2)}, v6 offset:{tt*16*160 + cb*32}")
        def wo_stores():
            a("s_add_u32 s31, s30, 4096")
            for cb in range(5):
                a(f"buffer_store_dwordx4 {vr(232+4*cb,4)}, v{vL16}, s[{sWS}:{sWS+3}], s{30 if cb < 4 else 31} offen offset:{(cb%4)*1024}{SC}")
        a.label(f"{name}_co")
        a("s_sub_u32 s14, s2, 64", "s_cmp_lt_u32 s14, 96", f"s_cbranch_scc1 {name}_coT",
          "s_sub_u32 s14, s2, 128", "s_sub_u32 s23, s2, 224", f"s_cmp_lt_u32 s23, {TOPWG-224}", f"s_cbranch_scc1 {name}_coT")
        self.poll_check(a, "kv2", 14, 13, sWS, ["v_cmp_eq_u32 vcc, 0, v14"])
        a(f"s_sub_u32 s14, s2, {FFN0}", f"s_cmp_lt_u32 s14, {FFN1-FFN0}", f"s_cbranch_scc1 {name}_coF",
          f"s_cmp_eq_u32 s2, {TOPWG}", f"s_cbranch_scc1 {name}_coW",
          f"s_cmp_lt_u32 s2, {self.NOWO}", f"s_cbranch_scc1 {name}_coW", f"s_branch {name}_coO")
        a.label(f"{name}_coT")
        a(f"v_min_u32 v8, 16, v{vL}", "v_lshlrev_b32 v8, 7, v8", "s_lshl_b32 s10, s14, 1", f"s_and_b32 s31, s{sW}, 1", "s_add_u32 s10, s10, s31",
          f"s_mul_i32 s10, s10, {17*128}", "s_lshl_b32 s35, s14, 2", f"s_add_u32 s35, s35, s{sW}", f"s_mul_i32 s35, s35, {34*128}")
        for k in range(4):
            if k == 2: self.poll_check(a, "kv3", 14, 13, sWS, ["v_cmp_eq_u32 vcc, 0, v14"])
            a("buffer_load_dword v255, v8, s[52:55], s10 offen", f"s_add_u32 s10, s10, {160*3456}")
            if k >= 2: a(f"buffer_load_dword v255, v8, s[60:63], s35 offen offset:{(k-2)*17*128}")
            if k == 3: a("s_mov_b32 s9, -1", f"s_and_b32 s32, s{sH}, 3", "s_lshr_b32 s32, s32, 1", "s_add_u32 s32, s32, 6", "s_lshl_b32 s32, s32, 14")
            yld()
        a.label(f"{name}_coO")
        a("s_and_b32 s23, s67, 1", "s_lshl_b32 s23, s23, 2", f"s_add_u32 s23, s23, s{sW}", "s_lshr_b32 s31, s67, 1",
          f"s_mul_i32 s33, s23, {-4*self.ROT}", "s_add_u32 s33, s33, s31", "s_and_b32 s33, s33, 31", "s_andn2_b32 s30, s31, 31", "s_add_u32 s33, s33, s30",
          "s_lshl_b32 s30, s23, 7", "s_add_u32 s30, s30, s33", f"s_mul_i32 s33, s31, {32*1280}", "s_mul_i32 s23, s23, 160", "s_add_u32 s33, s33, s23")
        for q in range(5):
            a(f"s_add_u32 m0, s34, {q*1024}", f"v_accvgpr_read_b32 v{vT+3}, a{248+q}", f"buffer_load_dwordx4 v{vT+3}, s[56:59], s33 offen lds")
        a("s_lshl_b32 s32, s11, 15", f"s_add_u32 s32, s32, s{sKo}", "s_mov_b32 s9, -1", "s_lshl_b32 s10, s30, 7", "s_mul_i32 s30, s30, 5120", f"s_add_u32 s30, s30, {WOF}")
        yld()
        wo_reads()
        a("s_waitcnt lgkmcnt(0)")
        wo_stores()
        yld()
        a(self.flag_store([f"s_add_u32 s23, s10, {WF}"], "s_waitcnt vmcnt(8)"),
          "s_cmp_lg_u32 s67, s2", f"s_cbranch_scc1 {name}_coW",
          "s_sub_u32 s67, s2, 128", f"s_cmp_lt_u32 s67, {self.NOWO}", f"s_cbranch_scc1 {name}_coO",
          "s_sub_u32 s23, s2, 96", "s_sub_u32 s31, s2, 192", "s_cmp_lt_u32 s23, 32", "s_cselect_b32 s23, s23, s31",
          f"s_cmp_gt_u32 s23, {FFN1-FFN0}", f"s_cbranch_scc1 {name}_coW",
          f"s_add_u32 s67, s23, {FFN0}", f"s_cmp_eq_u32 s67, {FFN1}", f"s_cselect_b32 s67, {TOPWG}, s67", f"s_branch {name}_coO")
        FV = self.FV
        a.label(f"{name}_coF")
        if os.environ.get("NOFFN"): a(self.flag_store(self.yf_addr(23), "s_nop 0"), f"s_branch {name}_coW")
        a(f"v_and_b32 v{vT}, 7, v{vL}", f"v_lshlrev_b32 v252, 2, v{vT}", f"v_add_u32 v252, {SEL}, v252",
          f"buffer_load_dword v15, v252, s[{sWS}:{sWS+3}], 0 offen{SC}")
        a("s_lshl_b32 s33, s14, 6", f"s_and_b32 s31, s{sW}, 1", "s_lshl_b32 s31, s31, 5", "s_add_u32 s33, s33, s31",
          "s_mul_i32 s35, s14, 40960", f"s_mul_i32 s31, s{sW}, 320", "s_add_u32 s35, s35, s31",
          "s_mul_i32 s10, s14, 20480", f"s_mul_i32 s31, s{sW}, 5120", "s_add_u32 s10, s10, s31", f"s_add_u32 s10, s10, {YP}")
        a(f"v_lshrrev_b32 v{vT+1}, 1, v{vL}", f"v_mul_u32_u24 v{FV[0]}, 3456, v{vT+1}", f"v_and_b32 v{vT+1}, 1, v{vL}", f"v_lshl_add_u32 v{FV[0]}, v{vT+1}, 4, v{FV[0]}")
        for q in range(1, 5): a(f"v_add_u32 v{FV[q]}, {q*32*3456 - (q%4)*1024}, v{FV[0]}")
        a(f"v_lshrrev_b32 v{vT+1}, 4, v{vL}",
          f"v_lshrrev_b32 v{vT+2}, 2, v{vL}", f"v_lshl_add_u32 v{vT+2}, v{vT+1}, 2, v{vT+2}",
          f"v_lshlrev_b32 v{vT+2}, 5, v{vT+2}", f"v_and_b32 v{vT+3}, 3, v{vL}", f"v_lshl_add_u32 v9, v{vT+3}, 3, v{vT+2}", "v_add_u32 v9, s34, v9",
          f"v_lshlrev_b32 v10, 4, v{vT}", f"v_lshl_add_u32 v10, v{vT+1}, 7, v10", f"v_add_u32 v10, {XS-2560}, v10", "s_mov_b32 s8, -1",
          "s_mov_b32 s4, 0", "s_mov_b32 s5, 0", f"s_mov_b32 s6, {160*3456}")
        yld()
        a("s_waitcnt vmcnt(8)")
        self.poll_check(a, "sel", 15, 252, sWS, ["v_cmp_eq_u32 vcc, 0, v15"])
        a(f"v_add_u32 v{vT+2}, -1, v15", f"v_and_b32 v{vT+2}, 2047, v{vT+2}", f"v_lshrrev_b32 v{vT+3}, 4, v{vT+2}", f"v_mul_u32_u24 v{vT+3}, 20480, v{vT+3}",
          f"v_and_b32 v{vT+2}, 15, v{vT+2}", f"v_lshl_add_u32 v{vT+3}, v{vT+2}, 4, v{vT+3}",
          f"v_lshrrev_b32 v{vT+2}, 3, v{vL}", f"v_lshl_add_u32 v{vT+3}, v{vT+2}, 8, v{vT+3}",
          f"s_lshl_b32 s23, s{sW}, 11", f"s_lshl_b32 s31, s{sW}, 10", f"s_add_u32 s31, s31, {XS}", f"s_mov_b32 s32, {(8+self.FS)*16384}")
        for k in range(3):
            a("s_mov_b32 m0, s31", "s_add_u32 s31, s31, 4096", f"buffer_load_dwordx4 v{vT+3}, s[{sWS}:{sWS+3}], s23 offen{SC} lds",
              "s_add_u32 s23, s23, 8192")
        yld()
        for q in range(5): a(f"v_accvgpr_read_b32 v{FV[q]}, a{248+q}")
        for q in range(1, 4): a(f"v_subrev_u32 v{FV[q]}, {q*1024}, v{FV[q]}")
        a("s_mov_b32 s52, s60", "s_mov_b32 s53, s61", "s_mov_b32 s33, s35", "s_movk_i32 s6, 160", "s_mov_b32 s9, 0",
          f"v_and_b32 v{vT+1}, 7, v{vL}", f"v_lshlrev_b32 v15, 6, v{vT+1}", f"v_lshrrev_b32 v{vT+1}, 4, v{vL}", f"v_lshl_add_u32 v15, v{vT+1}, 4, v15",
          f"v_and_b32 v{vT+1}, 8, v{vL}", f"v_lshl_add_u32 v15, v{vT+1}, 27, v15")
        yld()
        a(f"s_lshl_b32 s23, s{sW}, 9", f"v_add_u32 v{vT}, s23, v10", "s_mov_b32 s9, -1", f"ds_write_b128 v{vT}, {vr(G,4)}")
        yld()
        GU = 236
        def dreads():
            a("s_waitcnt vmcnt(4)")
            for cb in range(5):
                for t in range(2): a(f"ds_read_b64_tr_b16 {ar(FW+4*cb+2*t,2)}, v6 offset:{t*2560+cb*32}")
        def dmm():
            a("s_waitcnt lgkmcnt(0)")
            for cb in range(5): a(f"{MF} {vr(Y+4*cb,4)}, {ar(FW+4*cb,4)}, {ar(232,4)}, 0")
            a("s_nop 3")
            for cb in range(5): a(f"buffer_store_dwordx4 {vr(Y+4*cb,4)}, v15, s[{sWS}:{sWS+3}], s10 offen offset:{cb*512}{SC}")
            a("s_add_u32 s10, s10, 2560")
        for k in range(4): a(f"ds_read_b128 {vr(GU+4*k,4)}, v10 offset:{k*512}")
        dreads()
        a("v_subrev_u32 v10, 10240, v10", "s_mov_b32 s8, 0", "s_waitcnt lgkmcnt(10)")
        for k in range(8):
            a(f"v_cvt_pk_bf16_f32 v{GU+k}, v{GU+k}, v{GU+8+k}")
        for k in range(8): a(f"v_lshlrev_b32 v{GU+8+k}, 16, v{GU+k}")
        for k in range(8): a(f"v_mul_f32 v{vT+k}, 0xbfb8aa3b, v{GU+8+k}")
        for k in range(8): a(f"v_exp_f32 v{vT+k}, v{vT+k}")
        for k in range(8): a(f"v_add_f32 v{vT+k}, 1.0, v{vT+k}")
        for k in range(8): a(f"v_rcp_f32 v{vT+k}, v{vT+k}")
        for k in range(8): a(f"v_and_b32 v{GU+k}, 0xffff0000, v{GU+k}")
        for k in range(4): a(f"v_pk_mul_f32 {vr(GU+8+2*k,2)}, {vr(GU+8+2*k,2)}, {vr(vT+2*k,2)}")
        for k in range(4): a(f"v_cvt_pk_bf16_f32 v{vT+k}, v{GU+8+2*k}, v{GU+9+2*k}")
        for k in range(4): a(f"v_lshlrev_b32 v{GU+8+2*k}, 16, v{vT+k}", f"v_and_b32 v{GU+9+2*k}, 0xffff0000, v{vT+k}")
        for k in range(4): a(f"v_pk_mul_f32 {vr(GU+2*k,2)}, {vr(GU+2*k,2)}, {vr(GU+8+2*k,2)}")
        for k in range(4): a(f"v_cvt_pk_bf16_f32 v{vT+k}, v{GU+2*k}, v{GU+2*k+1}")
        for k in range(4): a(f"v_accvgpr_write_b32 a{232+k}, v{vT+k}")
        a("s_nop 0")
        dmm()
        yld()
        dreads()
        dmm()
        yld()
        a(self.flag_store(self.yf_addr(23), "s_waitcnt vmcnt(8)"))
        a.label(f"{name}_coW")
        waddr = [f"s_lshl_b32 s23, s{sI}, 1", "s_and_b32 s31, s2, 1", "s_add_u32 s23, s23, s31", "s_lshl_b32 s23, s23, 2", f"s_add_u32 s23, s23, s{sW}",
                 f"s_mul_i32 s13, s23, {16*5120}", f"s_add_u32 s13, s13, {WOF}",
                 "s_lshl_b32 s23, s23, 11", f"s_add_u32 s23, s23, {WF}", f"v_and_b32 v9, 15, v{vL}", "v_lshl_add_u32 v9, v9, 7, s23",
                 "s_and_b32 s60, s2, 7", "s_lshl_b32 s60, s60, 1", "s_and_b32 s23, s2, 16", "s_add_u32 s60, s60, s23", "s_bfe_u32 s23, s2, 0x10003", "s_add_u32 s60, s60, s23"]
        a("s_mov_b32 s12, 1", "s_mov_b32 s9, -1", "s_cmp_lg_u32 s11, 0", "s_cselect_b32 s32, s15, -1")
        yld()
        a(waddr,
          f"v_and_b32 v10, 15, v{vL}", "v_lshlrev_b32 v10, 2, v10", f"v_add_u32 v10, {SEL}, v10",
          f"buffer_load_dword v8, v9, s[{sWS}:{sWS+3}], 0 offen{SC}", f"buffer_load_dword v15, v10, s[{sWS}:{sWS+3}], 0 offen{SC}")
        a("s_load_dwordx2 s[52:53], s[0:1], 0")
        self.ctx_epi(a, 0, [32, 44, 96, 108])
        vXo, vLa, RS = 248, 251, 336
        a("s_lshl_b32 s33, s60, 6", f"s_mul_i32 s35, s{sI}, 160", f"s_mul_i32 s14, s{sI}, 2560", f"s_mov_b32 s54, {2048*1280}", "s_mov_b32 s55, 0x20000")
        for k in range(3):
            a(f"v_add_u32 v{vT}, {256*k}, v0", f"v_mul_u32_u24 v{vT+1}, 6554, v{vT}", f"v_lshrrev_b32 v{vT+1}, 16, v{vT+1}",
              f"v_mul_u32_u24 v{vT+2}, 10, v{vT+1}", f"v_sub_u32 v{vT+2}, v{vT}, v{vT+2}",
              f"v_mul_u32_u24 v{vLa+k}, {RS}, v{vT+1}", f"v_lshl_add_u32 v{vLa+k}, v{vT+2}, 5, v{vLa+k}", f"v_add_u32 v{vT+1}, s33, v{vT+1}",
              f"v_mul_u32_u24 v{vXo+k}, 1280, v{vT+1}", f"v_lshl_add_u32 v{vXo+k}, v{vT+2}, 4, v{vXo+k}", f"v_add_u32 v{vXo+k}, s35, v{vXo+k}",
              f"v_lshrrev_b32 v{vT+3}, 4, v{vT+1}", f"v_mul_u32_u24 v{vT+3}, 20480, v{vT+3}", f"v_and_b32 v{vT+1}, 15, v{vT+1}",
              f"v_lshl_add_u32 v{vT+3}, v{vT+1}, 4, v{vT+3}", f"v_lshl_add_u32 v{vT+8+k}, v{vT+2}, 8, v{vT+3}")
        a("v_cmp_gt_u32 vcc, 128, v0", f"v_mov_b32 v{vT}, {BIG}", f"v_mov_b32 v{vT+1}, 0", "v_lshlrev_b32 v6, 4, v0",
          f"v_cndmask_b32 v{vXo+2}, v{vT}, v{vXo+2}, vcc", f"v_cndmask_b32 v{vT+10}, v{vT}, v{vT+10}, vcc", f"v_cndmask_b32 v{vLa+2}, v{vT+1}, v{vLa+2}, vcc",
          f"v_cndmask_b32 v6, v{vT}, v6, vcc", f"s_lshl_b32 s23, s{sW}, 10", f"s_add_u32 s23, s23, {XS}", "s_waitcnt vmcnt(8) lgkmcnt(0)")
        for k in range(3):
            a(f"s_add_u32 m0, s34, {k*1024}", "s_nop 0", f"buffer_load_dwordx4 v{vXo+k}, s[52:55], 0 offen lds",
              f"s_add_u32 m0, s34, {(3+k)*1024}" if k < 2 else "s_mov_b32 m0, s23", "s_nop 0", f"buffer_load_dwordx4 v{vT+8+k}, s[{sWS}:{sWS+3}], s14 offen{SC} lds")
        a(f"s_mov_b32 s28, s{sK+2}", "s_add_u32 s30, s28, 65536", f"s_lshl_b32 s23, s{sW}, 12", "s_add_u32 s23, s23, s28",
          f"s_add_u32 s31, s13, {self.FL*1024}", "s_sub_u32 s31, s31, s23", "s_add_u32 s4, s18, s31", "s_addc_u32 s5, s19, 0",
          "s_add_u32 s6, s4, 4096", "s_addc_u32 s7, s5, 0")
        self.poll_check(a, "wof", 8, 9, sWS, ["v_cmp_eq_u32 vcc, 0, v8"])
        self.poll_check(a, "sel4", 15, 10, sWS, ["v_cmp_eq_u32 vcc, 0, v15"])
        a("s_lshl_b32 s31, s60, 6", "s_add_u32 s31, s31, 1", f"v_subrev_u32 v{vT}, s31, v15", f"v_cmp_gt_u32 vcc, 64, v{vT}",
          f"s_cmp_lt_u32 s{sW}, 2", "s_cselect_b32 s23, 0xff, 0", "s_and_b32 s10, vcc_lo, s23",
          "s_sub_u32 s23, s10, 1", "s_and_b32 s23, s23, s10", f"s_cmp_eq_u32 s{sW}, 1", "s_cselect_b32 s10, s23, s10",
          "s_cmp_eq_u32 s10, 0", f"s_cbranch_scc1 {name}_coEnd")
        a(f"v_min_u32 v11, {FFN1-FFN0-1}, v{vL}", f"s_lshr_b32 s23, s{sI}, 1", "s_lshl_b32 s23, s23, 13", f"s_add_u32 s23, s23, {YF}",
          "v_lshl_add_u32 v11, v11, 7, s23", f"buffer_load_dword v14, v11, s[{sWS}:{sWS+3}], 0 offen{SC}")
        YQ = list(range(64, 96, 4)) + list(range(128, 160, 4)) + [176, 180]
        AC = YQ[0]
        a(f"v_mul_u32_u24 v{vT}, 3277, v{vL}", f"v_lshrrev_b32 v{vT}, 16, v{vT}", f"v_mul_u32_u24 v8, 20, v{vT}",
          f"v_sub_u32 v8, v{vL}, v8", "v_lshlrev_b32 v8, 4, v8",
          f"v_mul_u32_u24 v9, {18*20480}, v{vT}", f"v_lshrrev_b32 v{vT+1}, 6, v8", f"v_mul_u32_u24 v{vT+1}, 448, v{vT+1}", f"v_add3_u32 v9, v9, v8, v{vT+1}",
          f"v_cmp_gt_u32 vcc, 3, v{vT}", f"v_mov_b32 v{vT+3}, {BIG}", "s_nop 0", f"v_cndmask_b32 v9, v{vT+3}, v9, vcc")
        a("s_mov_b32 s12, 2", "s_mov_b32 s32, -1", "s_mov_b32 s11, 0")
        yld()
        self.poll_check(a, "yf", 14, 11, sWS, ["v_cmp_eq_u32 vcc, 0, v14"])
        a.label(f"{name}_coY")
        a("s_ff1_i32_b32 s33, s10", "s_bitset0_b32 s10, s33", "s_sub_u32 s23, s10, 1", "s_and_b32 s10, s10, s23",
          "s_lshl_b32 s14, s33, 6", f"s_mul_i32 s23, s{sI}, 2560", "s_add_u32 s14, s14, s23", f"s_add_u32 s14, s14, {YP}")
        for q in range(18):
            a(f"buffer_load_dwordx4 {vr(YQ[q],4)}, v9, s[{sWS}:{sWS+3}], s14 offen{SC}", "s_add_u32 s14, s14, 20480")
        a(f"s_lshl_b32 s14, s{sW}, 10", f"s_add_u32 s14, s14, {SCR}", f"v_add_u32 v{vT+3}, s14, v{vL16}", "s_add_u32 s23, s33, 8",
          "v_readlane_b32 s35, v15, s23", "s_waitcnt vmcnt(0)")
        for q in range(1, 18):
            for e in range(0, 4, 2): a(f"v_pk_add_f32 {vr(AC+e,2)}, {vr(AC+e,2)}, {vr(YQ[q]+e,2)}")
        a(f"ds_write_b128 v{vT+3}, {vr(AC,4)}", f"v_add_u32 v{vT+3}, s14, v8", "s_and_b32 s35, s35, 0xffff0000", "s_waitcnt lgkmcnt(0)",
          f"ds_read_b128 {vr(AC,4)}, v{vT+3}", f"ds_read_b128 {vr(AC+4,4)}, v{vT+3} offset:320", f"ds_read_b128 {vr(AC+8,4)}, v{vT+3} offset:640",
          "s_mul_i32 s14, s33, 320", f"s_add_u32 s14, s14, {UPD}", f"v_add_u32 v{vT+3}, s14, v8", "s_waitcnt lgkmcnt(0)")
        for e in range(4):
            a(f"v_add_f32 v{AC+e}, v{AC+e}, v{AC+4+e}", f"v_add_f32 v{AC+e}, v{AC+e}, v{AC+8+e}")
            bf16r(a, AC + e)
            a(f"v_mul_f32 v{AC+e}, s35, v{AC+e}")
            bf16r(a, AC + e)
        a(f"ds_write_b128 v{vT+3}, {vr(AC,4)}", "s_waitcnt lgkmcnt(0)", "s_cmp_lg_u32 s10, 0", f"s_cbranch_scc1 {name}_coY")
        a.label(f"{name}_coEnd")
        a("s_mov_b32 s12, 3", "s_mov_b32 s32, -1")
        rec()
        a("s_setpc_b64 s[38:39]")
        self.tail += a.lines

    def phase3(self):
        a = self.a; name = self.name
        a(self.period(1, ["q", "q"], c0=True))
        a("s_nop 7", f"s_cmp_lg_u32 s{sCnt}, 0", f"s_cbranch_scc1 {name}_nomask0")
        a(mask_ops(0, 0))
        a.label(f"{name}_nomask0")
        for X in range(2):
            for qb in range(2):
                s0 = S + 32 * X + 8 * qb; d = vT + 2 * X + qb
                a(f"v_max3_f32 v{d}, v{s0}, v{s0+1}, v{s0+2}", f"v_max3_f32 v{d}, v{d}, v{s0+3}, v{s0+4}",
                  f"v_max3_f32 v{d}, v{d}, v{s0+5}, v{s0+6}", f"v_max_f32 v{d}, v{d}, v{s0+7}")
        for sw in ("v_permlane16_swap_b32", "v_permlane32_swap_b32"):
            for k in range(4): a(f"v_mov_b32 v{vT+4+k}, v{vT+k}")
            a("s_nop 0")
            for k in range(4): a(f"{sw} v{vT+k}, v{vT+4+k}")
            for k in range(4): a(f"v_max_f32 v{vT+k}, v{vT+k}, v{vT+4+k}")
        for X in range(2):
            for qb in range(2):
                for r in range(4): a(f"v_sub_f32 v{NM+8*X+4*qb+r}, 0, v{vT+2*X+qb}")
        for X in range(2):
            for qb in range(2):
                s0 = S + 32 * X + 8 * qb
                for r in range(8): a(f"v_sub_f32 v{s0+r}, v{s0+r}, v{vT+2*X+qb}")
        a(self.period(0, ["qs", "qs"]))
        a(f"buffer_load_dword v14, v13, s[{sWS}:{sWS+3}], 0 offen{SC}")
        stamp(a, 8)
        a(self.cyc(50))
        F = "qsv"
        a(f"s_cmp_eq_u32 s{sCnt}, 0", f"s_cbranch_scc1 {name}_AV", f"s_sub_u32 s{sCnt}, s{sCnt}, 1",
          f"s_cmp_eq_u32 s{sCnt}, 0", f"s_cbranch_scc1 {name}_Aexit")
        a(".p2align 6")
        a.label(f"{name}_DD")
        a(self.period(1, [F, F], bar=12, hook=self.hook()))
        a.label(f"{name}_DDe")
        a(self.period(0, [F, F], tail_sc=[f"s_sub_u32 s{sCnt}, s{sCnt}, 1", f"s_cmp_gt_u32 s{sCnt}, s8"], hook=self.hook(f"s_cmp_ge_u32 s{sKo}, s9")))
        a(f"s_cbranch_scc1 {name}_DD", "s_cmp_lg_u32 s8, 0", f"s_cbranch_scc1 {name}_DDF")
        ex = [([f"s_add_u32 m0, s34, {(q//4)*4096}"] if q % 4 == 0 else [],
               f"buffer_load_dwordx4 v{self.FV[q]}, s[52:55], s33 offen offset:{(q%4)*1024} lds") for q in range(5)]
        hk = self.hook()
        k_ = self.nhook - 1
        self.tail[-3] = f"s_add_u32 s38, s38, {name}_hb{k_}-{name}_hp{k_}"; self.tail[-2] = "s_addc_u32 s39, s39, 0"
        G, FW, FX = 232, 192, 212
        rd = []
        for q in range(5):
            rd += [f"ds_read_b64_tr_b16 {ar(FW+4*q+2*t,2)}, v9 offset:{q*1024+t*128}" for t in range(2)] + [f"ds_read_b128 {ar(FX+4*q,4)}, v10 offset:{q*512}"]
        rg = [3, 4, 5, 5, 7, 7, 8, 9, 9, 10, 10, 11, 11, 14, 14]
        xpost = [(20 + k, f"v_and_b32 v{G+k}, s4, v{G+k}") for k in range(4)] + [(18, "v_add_u32 v10, 2560, v10")]
        xpost += [(34 + 5 * q, f"{MF} {vr(G,4)}, {ar(FW+4*q,4)}, {ar(FX+4*q,4)}, {vr(G,4)}") for q in range(5)]
        xsc = [(33, "s_mov_b32 s4, s5"), (34, "s_mov_b32 s5, -1"), (57, "s_add_u32 s33, s33, s6")]
        self.tail += [f"{name}_DDF:"] + self.period(1, [F, F], bar=4, hook=hk, extra=ex, dgaps=[6, 13, 19, 25], egaps=[31, 37, 43, 49, 55],
                                                    xmem=list(zip(rg, rd)), xsc=xsc, xpost=xpost) + [f"s_branch {name}_DDe"]
        self.coroutine()
        a.label(f"{name}_Aexit")
        a(self.cyc(51))
        a(f"s_bitcmp1_b32 s{sW}, 0", f"s_cbranch_scc1 {name}_Aodd")
        a(self.period(1, [F, F], bar=12))
        a(self.period(0, ["smv", F]))
        a.label(f"{name}_AV")
        a(self.period(1, ["v", F], bar=12))
        a(self.period(0, ["", F]))
        a(f"s_branch {name}_SSpre")
        a.label(f"{name}_Aodd")
        a(self.period(1, ["smv", F], bar=12))
        a(self.period(0, ["v", F]))
        a.label(f"{name}_SSpre")
        a(self.cyc(52))
        a("s_mov_b32 s11, 1", "s_cmp_lg_u32 s12, 0", "s_cselect_b32 s32, s15, s32")
        U, KY = self.U, self.KY
        def wx(fs):
            out = []
            for k, e in enumerate(fs):
                f = self.EF[59 - e]
                pre = [f"s_add_u32 s14, s13, {(f//4)*4096}"] if (k == 0 or f % 4 == 3) else []
                out.append((pre, self.wl(f)))
            return out
        def drain(lv):
            h = self.hook(f"s_cmp_lt_u32 s12, {lv}")
            a(h[1][1], h[0], h[1][0])
        a(f"s_cmp_ge_u32 s{sW}, 2", f"s_cselect_b32 s23, {U}, 0", f"s_cmp_le_u32 s{sNSS}, s23", f"s_cbranch_scc1 {name}_chain")
        a(".p2align 6")
        a.label(f"{name}_SS")
        a(self.period(1, ["", F], bar=12, hook=self.hook()))
        a(self.period(0, ["", F], tail_sc=[f"s_sub_u32 s{sNSS}, s{sNSS}, 1", f"s_cmp_gt_u32 s{sNSS}, {U}"]))
        a(f"s_cbranch_scc1 {name}_SS")
        a.label(f"{name}_chain")
        if os.environ.get("PRIO", "1") == "1": a("s_setprio 3")
        a(self.cyc(53))
        drain(2)
        a(f"s_cmp_eq_u32 s{sNSS}, {U}", f"s_cbranch_scc0 {name}_disp")
        t = Asm()
        t.label(f"{name}_disp")
        for k in range(U - 1, 0, -1): t(f"s_cmp_eq_u32 s{sNSS}, {k}", f"s_cbranch_scc1 {name}_SSW{k}")
        t(f"s_branch {name}_Bexit")
        self.tail += t.lines
        for k in range(U, 0, -1):
            a.label(f"{name}_SSW{k}")
            f0 = sum(self.CB[:U-k]); nb = self.CB[U-k]; h1 = nb // 2
            a(self.period(1, ["", F], bar=(8 if k == 1 else 12), extra=wx(range(f0, f0 + h1)), redir=(k <= 3)))
            a(self.period(0, ["", F], extra=wx(range(f0 + h1, f0 + nb)), redir=(k <= 3)))
        a.label(f"{name}_Bexit")
        a(self.cyc(54))
        f0 = U * 6
        a(f"s_bitcmp1_b32 s{sW}, 0", f"s_cbranch_scc1 {name}_Bodd")
        a(self.period(1, ["", F], bar=8, dma=False, kread=False, extra=wx(range(f0, f0 + 6))))
        a(self.period(0, ["", "smv"], dma=False, kread=False, extra=wx(range(f0 + 6, f0 + 10))))
        a(self.period(1, ["", "v"], bar=10, dma=False, kread=False, extra=wx(range(f0 + 10, f0 + 12)), condbar=f"{name}_nb0"))
        a(f"s_branch {name}_Bdone")
        a.label(f"{name}_Bodd")
        a(self.period(1, ["", "smv"], bar=8, dma=False, kread=False, extra=wx(range(f0, f0 + 7)), condbar=f"{name}_nb1"))
        a(self.period(0, ["", "v"], dma=False, kread=False, extra=wx(range(f0 + 7, f0 + 12))))
        self.wx = wx
        a.label(f"{name}_Bdone")
        a.label(f"{name}_epi")
        stamp(a, 9)
        a(self.cyc(55))
        self.ctx_epi(a, 1, [64, 76, 128, 140])

    def ctx_epi(self, a, X, Ts):
        L = LS + 2 * X
        for sw in ("v_permlane16_swap_b32", "v_permlane32_swap_b32"):
            for k in range(2): a(f"v_mov_b32 v{vT+4+k}, v{L+k}")
            a("s_nop 1")
            for k in range(2): a(f"{sw} v{L+k}, v{vT+4+k}")
            for k in range(2): a(f"v_add_f32 v{L+k}, v{L+k}, v{vT+4+k}")
        for k in range(2): a(f"v_rcp_f32 v{vT+2*k}, v{L+k}")
        if X == 0: a(f"s_lshl_b32 s23, s{sI}, 2")
        else: a(f"s_sub_u32 s23, 15, s{sI}", "s_lshl_b32 s23, s23, 2")
        for k in range(2): a(f"v_mov_b32 v{vT+2*k+1}, v{vT+2*k}")
        a(f"s_add_u32 s23, s23, s{sW}", "s_lshl_b32 s23, s23, 18", f"s_lshl_b32 s31, s{sH}, 12",
          f"s_add_u32 s31, s31, {CTX}", f"s_add_u32 s{sXo}, s23, s31", f"s_add_u32 s{sXo+1}, s{sXo}, {1<<17}")
        k = 0
        for qb in range(2):
            for t in range(4):
                T = Ts[k % len(Ts)]; k += 1
                f = vT + 2 * qb
                for hh in range(2):
                    for r in range(4): a(f"v_accvgpr_read_b32 v{T+4+4*hh+r}, a{O+64*X+8*(2*t+hh)+4*qb+r}")
                for r in range(4): a(f"v_pk_mul_f32 {vr(T+4+2*r,2)}, {vr(T+4+2*r,2)}, {vr(f,2)}")
                for r in range(4): a(f"v_cvt_pk_bf16_f32 v{T+r}, v{T+4+2*r}, v{T+5+2*r}")
                a(f"buffer_store_dwordx4 {vr(T,4)}, v{vL16}, s[{sWS}:{sWS+3}], s{sXo+qb} offen offset:{t*1024}{SC}")

    LF = [32, 33, 34, 35, 36, 37, 38, 39, 48, 49, 50, 51, 52, 53, 54, 55, 64, 65, 66, 67]
    EF = [f for f in range(80) if f not in (32, 33, 34, 35, 36, 37, 38, 39, 48, 49, 50, 51, 52, 53, 54, 55, 64, 65, 66, 67)]
    _EQ = ([vr(b, 4) for b in range(32, 64, 4)] + [vr(b, 4) for b in range(96, 128, 4)] + [vr(b, 4) for b in range(160, 176, 4)]
           + [vr(b, 4) for b in range(232, 248, 4)] + [vr(192, 4), vr(196, 4), vr(208, 4), vr(212, 4)]
           + [ar(b, 4) for b in range(0, 64, 4)] + [ar(b, 4) for b in range(192, 256, 4)])
    _LQ = [vr(b, 4) for b in range(64, 96, 4)] + [vr(b, 4) for b in range(128, 160, 4)] + [vr(b, 4) for b in range(176, 192, 4)]
    WQ = dict(list(zip(EF, _EQ)) + list(zip(LF, _LQ)))
    def wl(self, f):
        return f"buffer_load_dwordx4 {self.WQ[f]}, v{vL16}, s[{sWS}:{sWS+3}], s14 offen offset:{(f%4)*1024}{SC}"

    def phase4(self):
        a = self.a; name = self.name
        RS = 336; PART = 64 * RS
        ACq = [ar(b, 4) for b in range(64, 144, 4)]
        CRq = [ar(b, 4) for b in range(144, 192, 4)] + [vr(b, 4) for b in range(216, 232, 4)]
        vXo, vLa, vXn, vUp = 248, 251, 200, 203
        sX, sO = 44, 48
        sCo = 64
        sMT, sNG = 60, sI
        def cl(ks, qb): return f"buffer_load_dwordx4 {CRq[4*(ks%4)+qb]}, v{vL16}, s[{sWS}:{sWS+3}], s{sCo+qb} offen offset:{(ks%4)*1024}{SC}"
        def cbase(src): return [f"s_add_u32 s{sCo}, {src}"] + [f"s_add_u32 s{sCo+qb}, s{sCo}, {qb<<17}" for qb in range(1, 4)]
        a("s_load_dwordx2 s[16:17], s[0:1], 88")
        a(f"v_mov_b32 v{vT+14}, {BIG}", f"v_writelane_b32 v{vT+14}, s{sCFA}, 0", f"v_writelane_b32 v{vT+14}, s{sCFB}, 1")
        a("s_and_b32 s23, s2, 1", "s_lshl_b32 s23, s23, 2", f"s_add_u32 s61, s23, s{sW}", "s_lshl_b32 s23, s61, 14", f"s_add_u32 s23, s23, {CTX}",
          f"s_lshl_b32 s63, s{sMT}, 19", "s_add_u32 s63, s63, s23", f"s_xor_b32 s62, s63, {2<<19}", cbase("s62, 0"))
        a(f"v_bfe_u32 v12, v{vL}, 2, 1", f"v_mul_u32_u24 v12, {CS}, v12", f"v_and_b32 v13, 3, v{vL}", f"v_lshl_add_u32 v12, v13, {CH}, v12",
          f"s_lshl_b32 s31, s61, {CH+2}", f"s_add_u32 s31, s31, {CF}", f"s_mul_i32 s23, s{sMT}, {2*CS}", "s_add_u32 s23, s23, s31", "v_add_u32 v10, s23, v12",
          f"s_xor_b32 s23, s{sMT}, 2", f"s_mul_i32 s23, s23, {2*CS}", "s_add_u32 s23, s23, s31", "v_add_u32 v12, s23, v12")
        a([f"v_mov_b32 v{vT+4+i}, 0" for i in range(4)], f"v_add_u32 v{vT}, {UPD+2560}, v{vL16}", f"ds_write_b128 v{vT}, {vr(vT+4,4)}")
        a("s_waitcnt vmcnt(0)", f"buffer_store_dword v{vNI}, v{vT+14}, s[{sWS}:{sWS+3}], 0 offen{SC}", "s_setprio 0")
        stamp(a, 10)
        a(self.cyc(60))
        a(self.hook("s_cmp_lt_u32 s12, 3"))
        a(f"s_cmp_lt_u32 s{sNSS}, {self.U}", f"s_cbranch_scc1 {name}_left")
        a.label(f"{name}_leftb")
        t = Asm()
        t.label(f"{name}_left")
        for k in range(self.U, 0, -1):
            if k < self.U: t(f"s_cmp_ge_u32 s{sNSS}, {k}", f"s_cbranch_scc1 {name}_leftb")
            for (pre, l) in self.wx(range(sum(self.CB[:self.U-k]), sum(self.CB[:self.U-k+1]))): t(pre, l)
        t(f"s_branch {name}_leftb")
        self.tail += t.lines
        a("s_lshl_b32 s34, s28, 1", f"s_and_b32 s23, s{sW}, 1", "s_lshl_b32 s23, s23, 12", f"s_cmp_lt_u32 s{sW}, 2", f"s_cselect_b32 s33, {131072-24576}, 0",
          "s_add_u32 s33, s33, s23", "s_add_u32 s33, s33, s34", "s_and_b32 s33, s33, 0x1ffff",
          f"s_lshl_b32 s23, s{sW}, 12", f"s_add_u32 s34, s34, {32768+16384}", "s_add_u32 s34, s34, s23", "s_and_b32 s34, s34, 0x1ffff",
          "s_add_u32 s23, s23, s28", f"s_cmp_lt_u32 s{sNSS}, 3",
          f"s_cselect_b32 s{sKo}, s23, s{sKo}", f"s_cselect_b32 s{sVo}, s23, s{sVo}", f"s_cselect_b32 s{sKm}, s33, s{sKm}", f"s_cselect_b32 s{sVm}, s34, s{sVm}",
          f"s_mov_b64 s[{sK}:{sK+1}], s[4:5]", f"s_mov_b64 s[{sV}:{sV+1}], s[6:7]", f"s_mov_b32 s{sK+2}, s30", f"s_mov_b32 s{sV+2}, s30")
        def piece(srdn, so, sm):
            return [f"s_mov_b32 m0, s{sm}", f"s_add_u32 s{sm}, s{sm}, 32768", f"s_and_b32 s{sm}, s{sm}, 0x1ffff"] + \
                   [f"buffer_load_dwordx4 v{vL16}, s[{srdn}:{srdn+3}], s{so} offen offset:{q*1024}{SC} lds" for q in range(4)] + [f"s_add_u32 s{so}, s{so}, 16384"]
        for tag, (srdn, so, sm), lim in (("pk", (sK, sKo, sKm), 3), ("pv", (sV, sVo, sVm), 2)):
            a(f"s_add_u32 s23, s28, {lim*16384}")
            a.label(f"{name}_{tag}")
            a(f"s_cmp_ge_u32 s{so}, s23", f"s_cbranch_scc1 {name}_{tag}d", piece(srdn, so, sm), f"s_branch {name}_{tag}")
            a.label(f"{name}_{tag}d")
        a("s_waitcnt lgkmcnt(0)", "s_barrier")
        a(f"buffer_load_dword v13, v12, s[{sWS}:{sWS+3}], 0 offen{SC}")
        a(
          "s_mul_i32 s28, s2, 24576", f"s_add_u32 s28, s28, {PX}", "s_xor_b32 s23, s2, 1", "s_mul_i32 s29, s23, 24576", f"s_add_u32 s29, s29, {PX}",
          "s_lshl_b32 s30, s2, 2", f"s_add_u32 s30, s30, s{sW}", "s_lshl_b32 s30, s30, 7", f"s_add_u32 s30, s30, {XFL}", "s_xor_b32 s35, s30, 512",
          "v_lshlrev_b32 v9, 4, v0", "v_mov_b32 v8, s35", f"s_lshl_b32 s25, s{sMT}, 6", "s_add_u32 s25, s25, 1",
          f"s_mul_i32 s26, s{sW}, 5120", f"s_add_u32 s26, s26, {SPARE}", f"s_mul_i32 s27, s{sW}, 1024", f"s_add_u32 s27, s27, {XS}")
        srd(a, sO, "s16", "s17", 2048 * 1280)
        a("s_waitcnt vmcnt(0)")
        a(stampv(20), self.cyc(61))
        self.poll_check(a, "ctx", 13, 12, sWS, ["v_cmp_eq_u32 vcc, 0, v13"])
        a(stampv(21))
        for ks in range(4): a([cl(ks, qb) for qb in range(4)])
        for kind, sreg, fs in (("K", 33, (32, 48, 64)), ("V", 34, (36, 52))):
            for f0 in fs:
                a(f"v_add_u32 v11, s{sreg}, v{vL16}", f"s_add_u32 s{sreg}, s{sreg}, 32768", f"s_and_b32 s{sreg}, s{sreg}, 0x1ffff",
                  [f"ds_read_b128 {self.WQ[f0+q]}, v11 offset:{q*1024}" for q in range(4)])
        a(cbase(f"s{sCo}, 4096"), "s_waitcnt vmcnt(14) lgkmcnt(0)")
        a(stampv(22), self.cyc(58))
        tm = [f"v_add_u32 v{vXn}, s26, v{vL16}", f"v_add_u32 v{vXn+1}, s27, v{vL16}"]
        for k in range(3):
            tm += [f"v_add_u32 v{vT}, {256*k}, v0", f"v_mul_u32_u24 v{vT+1}, 6554, v{vT}", f"v_lshrrev_b32 v{vT+1}, 16, v{vT+1}",
              f"v_mul_u32_u24 v{vT+2}, 10, v{vT+1}", f"v_sub_u32 v{vT+2}, v{vT}, v{vT+2}", f"v_lshlrev_b32 v{vUp+k}, 5, v{vT+2}",
              f"v_add_u32 v{vT+8+k}, s25, v{vT+1}", f"v_mov_b32 v{vT+11+k}, 8"]
        tm += [f"v_readlane_b32 s{68+k}, v15, {k}" for k in range(8)]
        for k in range(8):
            tm += [f"v_cmp_eq_u32 s[{52+2*t_}:{53+2*t_}], s{68+k}, v{vT+8+t_}" for t_ in range(3)]
            tm += [f"v_cndmask_b32 v{vT+11+t_}, v{vT+11+t_}, {k}, s[{52+2*t_}:{53+2*t_}]" for t_ in range(3)]
        for t_ in range(3): tm += [f"v_mul_u32_u24 v{vT+11+t_}, 320, v{vT+11+t_}", f"v_add_u32 v{vUp+t_}, v{vUp+t_}, v{vT+11+t_}", f"v_add_u32 v{vUp+t_}, {UPD}, v{vUp+t_}"]
        tm += [f"v_and_b32 v{vT}, 15, v{vL}", f"v_mul_u32_u24 v{vT}, {RS}, v{vT}", f"v_lshrrev_b32 v{vT+1}, 4, v{vL}", f"v_lshl_add_u32 v{vT}, v{vT+1}, 4, v{vT}",
               f"v_add_u32 v{vT}, s24, v{vT}"]
        pw = lambda q: f"ds_write_b128 v{vT}, {ACq[(q%5)*4+q//5]} offset:{(q//5)*16*RS+(q%5)*64}"
        pr = lambda k, b: [f"ds_read_b128 {vr(b+8*p+4*hh,4)}, v{vLa+k} offset:{p*PART+16*hh}" for p in range(4) for hh in range(2)]
        MB = [32, 96, 32]; MR = [18, 20, 21]
        XQ = [160, 164, 168, 172, 232, 236]; XF = [96, 104, 112]; OF = [120, 192, 208]; PP = [240, 176, 184]
        vm = VM()
        for ks in range(4):
            for qb in range(4): vm.issue(f"C{ks}_{qb}")
        for ks in range(32):
            mf = [f"{MF} {ACq[cb*4+qb]}, {self.WQ[(ks%16)*5+cb]}, {CRq[4*(ks%4)+qb]}, {ACq[cb*4+qb] if ks % 16 else 0}" for qb in range(4) for cb in range(5)]
            sc = {g: [] for g in range(20)}; mem = {g: [] for g in range(20)}; va = {g: [] for g in range(20)}
            tg = {g: [] for g in range(20)}; need = []; lg = ""
            if ks == 0: sc[2].append(f"s_mul_i32 s24, s{sW}, {PART}")
            if ks < 9:
                for g in (0, 1, 2, 3, 5, 6, 7, 8, 10, 11, 12, 13, 15, 16, 17, 18):
                    if tm: va[g].append(tm.pop(0))
            if ks + 4 < 32:
                for qb in range(4):
                    mem[5*qb+4].append(cl(ks, qb)); tg[5*qb+4].append(f"C{ks+4}_{qb}")
                if ks % 4 == 0 and ks > 0:
                    for q, x in enumerate(cbase("s63, 0" if ks == 12 else f"s{sCo}, 4096")): sc[[3, 5, 6, 10][q]].append(x)
            def chk(tag, vreg, voff):
                tmp = Asm(); self.poll_check(tmp, tag, vreg, voff, sWS, [f"v_cmp_eq_u32 vcc, 0, v{vreg}"])
                va[0].append(tmp.lines[0]); sc[2] += tmp.lines[1:]
            if ks == 9:
                mem[1].append(f"buffer_load_dword v13, v10, s[{sWS}:{sWS+3}], 0 offen{SC}"); tg[1].append("p2")
            if ks == 10: sc[7].append("s_barrier")
            if ks == 11: need.append("p2")
            if ks == 12: chk("ctx2", 13, 10)
            if ks in (15, 31):
                for q in range(11): mem[q+9].append(pw(q))
            if ks == 16:
                for q in range(11, 20): mem[q-11].append(pw(q))
                lg = " lgkmcnt(0)"
            if ks == 17: sc[7].append("s_barrier")
            for k in range(3):
                b = MB[k]
                if ks == MR[k]:
                    for g, x in zip((0, 1, 2, 3, 5, 6, 7, 8), pr(k, b)): mem[g].append(x)
                    lg = " lgkmcnt(0)"
                if ks == MR[k] + 1:
                    ops = []
                    for e in range(8): ops += [f"v_add_f32 v{b+e}, v{b+e}, v{b+8+e}", f"v_add_f32 v{b+16+e}, v{b+16+e}, v{b+24+e}"]
                    ops += [f"v_add_f32 v{b+e}, v{b+e}, v{b+16+e}" for e in range(8)]
                    for q, x in enumerate(ops): va[(q * 15) // 24].append(x)
                    sc[15].append(f"s_add_u32 s14, s28, {k*8192}"); sc[17].append(f"s_add_u32 s14, s28, {k*8192+4096}")
                    for hh, g in ((0, 16), (1, 18)):
                        mem[g].append(f"buffer_store_dwordx4 {vr(b+4*hh,4)}, v{9 if k < 2 else 6}, s[{sWS}:{sWS+3}], s14 offen{SC}"); tg[g].append("px")
            if ks == 23: sc[7].append("s_barrier")
            XFK = int(os.environ.get("XFK", "25"))
            if ks == XFK - 1: need.append("px")
            if ks == XFK:
                mem[1].append(f"buffer_store_dword v{vNI}, off, s[{sWS}:{sWS+3}], s30{SC}"); tg[1].append("xf")
            if ks == 24:
                for q in range(6): mem[[0, 3, 5, 6, 8, 10][q]].append(f"ds_read_b128 {vr(XQ[q],4)}, v{vXn + q//5} offset:{(q%5)*1024}")
            if ks == 25:
                for k in range(3):
                    for hh in range(2): mem[[0, 3, 5, 6, 8, 10][2*k+hh]].append(f"ds_read_b128 {vr(OF[k]+4*hh,4)}, v{vUp+k} offset:{16*hh}")
                lg = " lgkmcnt(0)"
            if 26 <= ks < 29:
                k = ks - 26
                ops = []
                for e in range(4):
                    x = XQ[k] + e; xn = XQ[3+k] + e; o = OF[k] + 2 * e; t0, t1 = vT + 2, vT + 3
                    ops += [f"v_lshlrev_b32 v{t0}, 16, v{xn}", f"v_and_b32 v{t1}, 0xffff0000, v{xn}",
                            f"v_add_f32 v{o}, v{o}, v{t0}", f"v_add_f32 v{o+1}, v{o+1}, v{t1}",
                            f"v_cvt_pk_bf16_f32 v{t0}, v{o}, v{o+1}",
                            f"v_lshlrev_b32 v{XF[k]+2*e}, 16, v{x}", f"v_and_b32 v{XF[k]+2*e+1}, 0xffff0000, v{x}",
                            f"v_lshlrev_b32 v{o}, 16, v{t0}", f"v_and_b32 v{o+1}, 0xffff0000, v{t0}"]
                for q, x in enumerate(ops): va[1 + q // 2].append(x)
            if ks == 28:
                mem[0].append(f"buffer_load_dword v13, v8, s[{sWS}:{sWS+3}], 0 offen{SC}"); tg[0].append("p3")
            if ks == 29: need.append("p3")
            if ks == 30:
                chk("px", 13, 8)
                for q in range(6):
                    sc[3+2*q].append(f"s_add_u32 s14, s29, {q*4096}")
                    mem[3+2*q].append(f"buffer_load_dwordx4 {vr(PP[q//2]+4*(q%2),4)}, v{9 if q < 4 else 6}, s[{sWS}:{sWS+3}], s14 offen{SC}"); tg[3+2*q].append("pp")
            for g in range(20):
                if g == 9: sc[g].insert(0, f"s_waitcnt vmcnt({vm.need(f'C{ks}_3')})")
                if g == 19 and ks < 31: sc[g].append(f"s_waitcnt vmcnt({vm.need(f'C{ks+1}_1', *need)}){lg}")
                for t_ in tg[g]: vm.issue(t_)
            if os.environ.get("OTR"): a("s_memtime s[98:99]", "s_waitcnt lgkmcnt(0)", f"v_writelane_b32 v7, s98, {24+ks}")
            a(weave(mf, sc, mem, va))
        assert not tm
        a(stampv(23), self.cyc(59))
        for q in range(11, 20): a(pw(q))
        a("s_waitcnt vmcnt(0) lgkmcnt(0)", "s_barrier")
        PVb = [32, 64, 128]
        for k in range(3): a(pr(k, PVb[k]))
        for k in range(3):
            a(f"s_waitcnt lgkmcnt({[15, 8, 0][k]})")
            b = PVb[k]
            for e in range(0, 8, 2):
                a(f"v_pk_add_f32 {vr(b+e,2)}, {vr(b+e,2)}, {vr(b+8+e,2)}", f"v_pk_add_f32 {vr(b+16+e,2)}, {vr(b+16+e,2)}, {vr(b+24+e,2)}")
            for e in range(0, 8, 2): a(f"v_pk_add_f32 {vr(b+e,2)}, {vr(b+e,2)}, {vr(b+16+e,2)}")
            for e in range(0, 8, 2): a(f"v_pk_add_f32 {vr(b+e,2)}, {vr(b+e,2)}, {vr(PP[k]+e,2)}")
            for src in (XF[k], OF[k]):
                for e in range(4): a(f"v_cvt_pk_bf16_f32 v{b+8+e}, v{b+2*e}, v{b+2*e+1}")
                for e in range(4): a(f"v_lshlrev_b32 v{b+2*e}, 16, v{b+8+e}", f"v_and_b32 v{b+2*e+1}, 0xffff0000, v{b+8+e}")
                for e in range(4): a(f"v_pk_add_f32 {vr(b+2*e,2)}, {vr(b+2*e,2)}, {vr(src+2*e,2)}")
            for e in range(4): a(f"v_cvt_pk_bf16_f32 v{b+12+e}, v{b+2*e}, v{b+2*e+1}")
            a(f"buffer_store_dwordx4 {vr(b+12,4)}, v{vXo+k}, s[{sO}:{sO+3}], 0 offen")

    def gen(self, with_p4=True):
        a = self.a; name = self.name
        self.tail = []; self.p4 = with_p4; self.nhook = 0
        self.phase1()
        self.phase2()
        self.phase3()
        if with_p4: self.phase4()
        stamp_flush(a, 0, sW, sWS)
        a.label(f"{name}_end")
        a("s_endpgm")
        a(self.tail)
        for (k, ss, par) in self.stubs:
            a.label(f"{name}_stub{k}")
            for X in ss: a(f"s_call_b64 s[{sRet}:{sRet+1}], {name}_rare{X}{par}")
            a(f"s_branch {name}_back{k}")
        a.label(f"{name}_codeend")
        for X in range(2):
            for par in range(2): self.rare(X, par)
            self.resc(X)
        return a
```

```python
import os
from asmlib import *
from gen_k1 import (XNF, RKEY, SEL, YP, WOF, KFO, VFO, CTX, WS_BYTES, MF, srd, bf16r, allreduce32_add,
                    stamp, stampc, stampv, stamp_init, stamp_flush, DBG)
import gen_k2 as k2
from gen_k2 import (vL, vL16, vKV, vNI, vX, vT, Q, S, P, NM, E, TS, LS, QACC, O, KF, VF, XR,
                    sW, sH, sI, sWS, sK, sV, sKm, sVm, sKo, sVo, sCnt, sNSS, sXo, sMask, sRet, sRet2, sThr,
                    xreduce, mask_ops)

LDS = 163840
FLG = 0x284000
KVF = 0x4000000
CF = 0x3A0000
CS = 4096; CH = int(os.environ.get('CH', '7'))
YF = 0x4010000
PX = 0xA00000
XFL = 0x4020000
WF = 0x4040000
SC = " sc1"
BIG = 0x40000000
SPARE = 131072
XS = SPARE + 20480
EX = SPARE + 30720
UPD = LDS - 8192
SCR = LDS - 4096
TOPWG = 255
FFN0, FFN1 = 170, 224
SPIN_MAX = 200000
sDb = 56
sCFA, sCFB, sKVa = 80, 3, 82
vWo, vWa, vCa = 8, 12, 14
vPoll, vZero, vPo = 15, 229, 8
vCo = 3

class VM:
    def __init__(self): self.ops = []
    def issue(self, tag, n=1): self.ops += [tag] * n
    def need(self, *tags):
        last = max(i for i, t in enumerate(self.ops) if t in tags)
        return min(63, len(self.ops) - 1 - last)

class Fused(k2.K2):
    SC = SC
    U = 8
    FS = int(os.environ.get('FS', '2'))
    E7 = int(os.environ.get('E7', '0'))
    NOWO = int(os.environ.get('NOWO', '32'))
    CB = eval(os.environ.get('CB', '[3,3,4,6,8,8,8,8]'))
    FL = 32
    ROT = int(os.environ.get('ROT', '0'))
    FV = [8, 11, 12, 13, 14]
    KY = 3
    def poll_check(self, a, tag, vreg, voff, srdn, cmp_lines, soff="0"):
        n = self.name
        a(cmp_lines, f"s_cbranch_vccnz {n}_{tag}_spin")
        a.label(f"{n}_{tag}_ok")
        t = Asm()
        t.label(f"{n}_{tag}_spin")
        t(f"s_mov_b32 s83, {SPIN_MAX}")
        t.label(f"{n}_{tag}_spin2")
        t(f"buffer_load_dword v{vreg}, v{voff}, s[{srdn}:{srdn+3}], {soff} offen{SC}", "s_waitcnt vmcnt(0)")
        t(cmp_lines, f"s_cbranch_vccz {n}_{tag}_ok", f"s_sleep {os.environ.get('SLP', '3')}", "s_sub_u32 s83, s83, 1", "s_cmp_lg_u32 s83, 0",
          f"s_cbranch_scc1 {n}_{tag}_spin2", f"s_branch {n}_{tag}_ok")
        self.tail += t.lines

    def phase1(self):
        a = self.a; name = self.name
        sC, sWt, sX, sQ2, sWO, sWR = 32, 36, 44, 48, 52, 68
        sM0C, sStep, sOC, sOW, sIT = 24, 25, 26, 27, 28
        FA = 32; FB = 96
        a("s_cmp_ge_u32 s2, 256", f"s_cbranch_scc1 {name}_end")
        if os.environ.get("CT0", "1") == "1":
            a("s_getpc_b64 s[62:63]", "v_and_b32 v230, 127, v0", "v_lshlrev_b32 v230, 7, v230", "global_load_dword v231, v230, s[62:63]")
        stamp_init(a)
        a("s_load_dwordx4 s[4:7], s[0:1], 0", "s_load_dwordx4 s[8:11], s[0:1], 24", "s_load_dwordx2 s[14:15], s[0:1], 56",
          "s_load_dwordx2 s[12:13], s[0:1], 40", "s_load_dwordx4 s[16:19], s[0:1], 96", "s_load_dwordx2 s[60:61], s[0:1], 16")
        a(f"v_lshrrev_b32 v{vT}, 6, v0", f"v_and_b32 v{vL}, 63, v0", f"v_readfirstlane_b32 s{sW}, v{vT}")
        a(f"s_and_b32 s{sH}, s2, 7", f"s_lshl_b32 s{sH}, s{sH}, 2", "s_lshr_b32 s23, s2, 3", "s_and_b32 s23, s23, 3",
          f"s_add_u32 s{sH}, s{sH}, s23", f"s_lshr_b32 s{sI}, s2, 5")
        XV = 160; WR = 172; F = 184
        vU, vRow, vXo, vXo3, vWro = 208, 209, 210, 211, 212
        vS, vT2, vMean, vAcc = 213, 214, 216, 218
        vTW, vTR, vKo, vO1, vO3, vFl = 220, 221, 222, 223, 224, 225
        vTQ = 235; sM16 = 64
        LNPRE = os.environ.get("LNPRE", "1") == "1"
        lnaddr = [f"v_and_b32 v{vU}, 31, v{vL}", f"v_lshrrev_b32 v{vRow}, 5, v{vL}",
          "s_lshl_b32 s31, s2, 2", f"s_add_u32 s31, s31, s{sW}", "s_lshl_b32 s31, s31, 1", f"v_add_u32 v{vRow}, s31, v{vRow}",
          f"v_lshlrev_b32 v{vWro}, 4, v{vU}", f"v_mul_u32_u24 v{vXo}, 1280, v{vRow}", f"v_add_u32 v{vXo}, v{vXo}, v{vWro}",
          f"v_cmp_gt_u32 s[{sM16}:{sM16+1}], 16, v{vU}", f"v_mov_b32 v{vT+3}, {BIG}", f"v_and_b32 v{vTW}, 7, v{vRow}",
          f"v_cndmask_b32 v{vXo3}, v{vT+3}, v{vXo}, s[{sM16}:{sM16+1}]"]
        xloads = [f"buffer_load_dwordx4 {vr(XV,4)}, v{vXo}, s[{sX}:{sX+3}], 0 offen",
          f"buffer_load_dwordx4 {vr(XV+4,4)}, v{vXo}, s[{sX}:{sX+3}], 0 offen offset:512",
          f"buffer_load_dwordx4 {vr(XV+8,4)}, v{vXo3}, s[{sX}:{sX+3}], 0 offen offset:1024"]
        xloads += [f"buffer_load_dwordx4 {vr(WR+4*i,4)}, v{vWro}, s[{sWR}:{sWR+3}], 0 offen offset:{512*i}" for i in range(3)]
        if LNPRE: a(lnaddr)
        a(f"v_bfe_u32 v{vT+1}, v{vL}, 1, 3", f"v_lshlrev_b32 v{vT+1}, 13, v{vT+1}", f"v_and_b32 v{vT+2}, 1, v{vL}",
          f"v_lshl_add_u32 v{vTQ}, v{vT+2}, 7, v{vT+1}", f"s_lshl_b32 s74, s{sI}, 1", f"s_and_b32 s31, s{sW}, 1", "s_add_u32 s74, s74, s31",
          "s_lshl_b32 s74, s74, 16", f"s_mov_b32 s73, {128*8192}", f"v_and_b32 v{vT}, 15, v{vL}",
          f"v_lshlrev_b32 v{vT+1}, 10, v{vT}", f"v_and_b32 v{vT+2}, 16, v{vL}", f"v_lshl_add_u32 v233, v{vT+2}, 3, v{vT+1}",
          "s_lshl_b32 s30, s23, 5", f"s_add_u32 s30, s30, s{sW}", "s_lshl_b32 s30, s30, 14", f"s_lshl_b32 s29, s{sI}, 16", f"s_lshl_b32 s23, s{sH}, 8",
          f"s_cmp_ge_u32 s{sW}, 2", "s_waitcnt lgkmcnt(0)")
        if LNPRE:
            srd(a, sX, "s4", "s5", 2048*1280)
            srd(a, sWR, "s14", "s15", 1280)
            a(xloads)
        a("s_cselect_b32 s62, s10, s8", "s_cselect_b32 s63, s11, s9", "s_add_u32 s62, s62, s23", "s_addc_u32 s63, s63, 0")
        srd(a, sWt, "s62", "s63", 0)
        a(f"s_sub_u32 s{sWt+2}, {512*8192}, s23", f"buffer_load_dword v231, v{vTQ}, s[{sWt}:{sWt+3}], s74 offen",
          "s_add_u32 s6, s6, s29", "s_addc_u32 s7, s7, 0")
        srd(a, sC, "s6", "s7", 0)
        a(f"s_sub_u32 s{sC+2}, {2048*1024}, s29")
        a(f"buffer_load_dword v232, v233, s[{sC}:{sC+3}], s30 offen", "s_add_u32 s74, s74, s73")
        T01 = os.environ.get("T01", "1") == "1"
        t1 = [f"buffer_load_dword v231, v{vTQ}, s[{sWt}:{sWt+3}], s74 offen", f"buffer_load_dword v232, v233, s[{sC}:{sC+3}], s30 offen offset:256"]
        if T01: a(t1)
        a("s_getpc_b64 s[8:9]", f"{name}_pc:", "s_lshr_b32 s31, s2, 3", "s_and_b32 s31, s31, 15", "s_lshl_b32 s31, s31, 2",
          f"s_add_u32 s31, s31, s{sW}", "s_lshl_b32 s31, s31, 11", f"s_min_u32 s31, s31, {name}_codeend-{name}_pc-2048",
          f"v_lshlrev_b32 v234, 7, v{vT}", "v_add_u32 v230, s31, v234", "global_load_dword v231, v230, s[8:9]",
          f"s_add_u32 s8, s8, {name}_co1-{name}_pc-4", "s_addc_u32 s9, s9, 0")
        a("s_add_u32 s60, s60, s23", "s_addc_u32 s61, s61, 0", f"s_sub_u32 s75, {640*8192}, s23")
        srd(a, sQ2, "s62", "s63", f"s{sWt+2}")
        a(f"v_lshlrev_b32 v{vL16}, 4, v{vL}",
          f"v_lshrrev_b32 v{vT+3}, 2, v{vL}", f"v_lshrrev_b32 v{vT+1}, 5, v{vL}", f"v_mul_u32_u24 v{vT+1}, 3, v{vT+1}",
          f"v_and_b32 v{vT+2}, 3, v{vL}", f"v_xor_b32 v{vT+1}, v{vT+1}, v{vT+2}", f"v_lshlrev_b32 v{vT+1}, 4, v{vT+1}",
          f"v_lshl_add_u32 v{vCo}, v{vT+3}, 10, v{vT+1}", f"s_lshl_b32 s23, s{sW}, 19", f"v_add_u32 v{vCo}, s23, v{vCo}")
        for j in range(1, 4): a(f"v_add_u32 v{vCo+j}, {j*(16384-1024)}, v{vCo}")
        a(f"v_and_b32 v{vT+3}, 3, v{vT+3}", f"v_lshrrev_b32 v{vT+1}, 4, v{vL}", f"v_lshlrev_b32 v{vT+1}, 6, v{vT+1}",
          f"v_lshl_add_u32 v{vT+3}, v{vT+3}, 13, v{vT+1}", f"s_and_b32 s23, s{sW}, 1", "s_lshl_b32 s23, s23, 17",
          f"v_add_u32 v{vT+3}, s23, v{vT+3}", f"v_lshl_add_u32 v{vWo}, v{vT+2}, 4, v{vT+3}", f"v_xor_b32 v{vT+2}, 2, v{vT+2}",
          f"v_lshl_add_u32 v{vWo+2}, v{vT+2}, 4, v{vT+3}", f"v_add_u32 v{vWo+1}, {32768-1024}, v{vWo}",
          f"v_add_u32 v{vWo+3}, {3*(32768-1024)}, v{vWo+2}", f"v_add_u32 v{vWo+2}, {2*(32768-1024)}, v{vWo+2}")
        a(f"s_lshl_b32 s{sM0C}, s{sW}, 12", f"s_mov_b32 s{sOC}, 0", f"s_mov_b32 s{sOW}, 0", f"s_mov_b32 s{sStep}, {32*8192}", "s_mov_b32 s79, 64")
        def dma_lines():
            preC = [f"s_mov_b32 m0, s{sM0C}"]
            lc = [f"buffer_load_dwordx4 v{vCo+j}, s[{sC}:{sC+3}], s{sOC} offen offset:{j*1024}{SC} lds" for j in range(4)]
            preW = [f"s_add_u32 m0, s{sM0C}, 16384"]
            lw = [f"buffer_load_dwordx4 v{vWo+j}, s[{sWt}:{sWt+3}], s{sOW} offen offset:{j*1024} lds" for j in range(4)]
            post = [f"s_add_u32 s{sOC}, s{sOC}, s79", f"s_add_u32 s{sOW}, s{sOW}, s{sStep}",
                    f"s_add_u32 s{sM0C}, s{sM0C}, 32768", f"s_and_b32 s{sM0C}, s{sM0C}, 0x1ffff"]
            return preC, lc, preW, lw, post
        def dma_stage():
            preC, lc, preW, lw, post = dma_lines()
            a(preC, "s_nop 0", lc, preW, "s_nop 0", lw, post)
        if not LNPRE: dma_stage()
        SB = os.environ.get("SB", "1") == "1"
        if SB:
            assert T01
            a(f"v_and_b32 v{vTQ}, 0x7fff, v{vTQ}", "s_sub_u32 s74, s74, s73", "s_lshr_b32 s74, s74, 1", f"s_add_u32 s74, s74, {256*8192}", f"s_mov_b32 s73, {64*8192}")
        stamp(a, 1)
        srd(a, sWS, "s18", "s19", WS_BYTES)
        srd(a, sWO, "s12", "s13", 4096*1280)
        srd(a, sDb, "s16", "s17", 256)
        if not LNPRE:
            srd(a, sX, "s4", "s5", 2048*1280)
            srd(a, sWR, "s14", "s15", 1280)
        a("s_and_b32 s29, s2, 7", "s_lshl_b32 s29, s29, 2", f"s_add_u32 s29, s29, s{sW}", "s_lshl_b32 s29, s29, 11",
          f"s_and_b32 s23, s{sH}, 3", "s_lshl_b32 s23, s23, 19", "s_add_u32 s29, s29, s23")
        a(f"s_mul_i32 s23, s{sW}, {CS}", f"s_lshl_b32 s31, s{sH}, {CH}", "s_add_u32 s23, s23, s31", f"s_add_u32 s23, s23, {CF}",
          f"s_mul_i32 s31, s{sI}, {4*CS}", f"s_add_u32 s{sCFA}, s23, s31", f"s_sub_u32 s31, {15*4*CS}, s31", f"s_add_u32 s{sCFB}, s23, s31",
          f"s_lshl_b32 s23, s{sH}, 10", f"s_lshl_b32 s31, s{sI}, 7", "s_add_u32 s23, s23, s31", f"s_add_u32 s{sKVa}, s23, {KVF}",
          self.yf_addr(62), f"s_sub_u32 s23, s2, {FFN0}", f"s_cmp_lt_u32 s23, {FFN1-FFN0}", f"s_cselect_b32 s62, s62, {BIG}",
          f"s_cmp_eq_u32 s{sW}, 0", f"s_cselect_b32 s31, s{sKVa}, {BIG}", f"s_cselect_b32 s77, s2, {BIG}",
          f"s_cmp_eq_u32 s2, {TOPWG}", f"s_cselect_b32 s23, {SEL}, {BIG}",
          f"v_lshl_add_u32 v{vFl}, v{vT}, 2, s23", f"v_mov_b32 v{vZero}, 0",
          f"v_writelane_b32 v{vFl}, s{sCFA}, 0", f"v_writelane_b32 v{vFl}, s{sCFB}, 1", f"v_writelane_b32 v{vFl}, s31, 2", "s_add_u32 s31, s31, 32", f"v_writelane_b32 v{vFl}, s31, 5",
          self.wf_addr(23), f"v_writelane_b32 v{vFl}, s23, 3", f"v_writelane_b32 v{vFl}, s62, 4",
          "s_lshl_b32 s23, s2, 2", f"s_add_u32 s23, s23, s{sW}", "s_lshl_b32 s23, s23, 7", f"s_add_u32 s23, s23, {XFL}", f"v_writelane_b32 v{vFl}, s23, 6")
        if LNPRE:
            a(f"s_and_b32 s23, s{sH}, 3", "s_lshr_b32 s31, s23, 1", "s_lshl_b32 s31, 4, s31", "s_bitcmp1_b32 s23, 0",
              "s_cselect_b32 s76, s31, 0", "s_cselect_b32 s72, 0, s31", f"s_or_b32 s76, s76, {0x28 if SB else 0x20}", f"s_or_b32 s72, s72, {0x21 if SB else 0x25}")
        else:
            a(f"s_and_b32 s23, s{sH}, 3", "s_cmp_eq_u32 s23, 2", "s_cselect_b32 s76, 0x2a, 0x22", "s_cselect_b32 s72, 0x27, 0x2f",
              "s_cmp_eq_u32 s23, 3", "s_cselect_b32 s72, 0x37, s72")
        for i in range(4): a(f"v_mov_b32 v{vT+4+i}, 0")
        a(f"v_lshrrev_b32 v{vT+1}, 4, v{vL}", f"v_lshrrev_b32 v{vT+2}, 3, v{vT}",
          f"v_mul_u32_u24 v{vT+2}, 3, v{vT+2}", f"v_xor_b32 v{vT+2}, v{vT+2}, v{vT+1}", f"v_lshlrev_b32 v{vT+2}, 4, v{vT+2}",
          f"v_lshl_add_u32 v{vCa}, v{vT}, 6, v{vT+2}", f"s_and_b32 s23, s{sW}, 1", "s_lshl_b32 s23, s23, 11", f"v_add_u32 v{vCa}, s23, v{vCa}")
        rest = Asm()
        rest(f"v_lshrrev_b32 v{vT+2}, 2, v{vT}", f"v_lshlrev_b32 v{vT+2}, 6, v{vT+2}", f"v_lshl_add_u32 v{vT+2}, v{vT+1}, 11, v{vT+2}",
          f"v_and_b32 v{vT+3}, 1, v{vL}", f"v_lshl_add_u32 v{vT+2}, v{vT+3}, 3, v{vT+2}", f"v_bfe_u32 v{vT+3}, v{vL}, 1, 1",
          f"v_and_b32 v{vT+1}, 1, v{vT+1}", f"v_lshl_or_b32 v{vT+3}, v{vT+1}, 1, v{vT+3}",
          f"s_lshr_b32 s23, s{sW}, 1", "s_lshl_b32 s23, s23, 13", "s_add_u32 s23, s23, 16384", f"v_add_u32 v{vT+2}, s23, v{vT+2}",
          f"v_lshl_add_u32 v{vWa}, v{vT+3}, 4, v{vT+2}", f"v_xor_b32 v{vWa+1}, 32, v{vWa}")
        TR = SPARE
        rest([f"v_mov_b32 v{vT+3}, {BIG}"] if LNPRE else lnaddr,
          f"v_lshlrev_b32 v{vTW}, 4, v{vTW}", f"v_lshl_add_u32 v{vTW}, v{vU}, 7, v{vTW}", f"v_add_u32 v{vTW}, {TR}, v{vTW}",
          f"v_lshlrev_b32 v{vKo}, 2, v{vRow}", f"v_cmp_eq_u32 vcc, 0, v{vU}", f"v_add_u32 v{vKo}, {RKEY}, v{vKo}",
          f"v_lshlrev_b32 v{vTR}, 4, v0", f"v_cndmask_b32 v{vKo}, v{vT+3}, v{vKo}, vcc", f"v_add_u32 v{vTR}, {TR}, v{vTR}",
          f"v_sub_u32 v{vRow}, 0xffff, v{vRow}",
          f"v_lshrrev_b32 v{vO1}, 3, v0", f"v_and_b32 v{vT+2}, 7, v0", f"v_lshlrev_b32 v{vT+2}, 4, v{vT+2}",
          f"v_cmp_gt_u32 vcc, 128, v0", f"v_lshl_add_u32 v{vO1}, v{vO1}, 8, v{vT+2}",
          "s_lshr_b32 s66, s2, 1", "s_mul_i32 s66, s66, 20480", "s_and_b32 s31, s2, 1", "s_lshl_b32 s31, s31, 7", "s_add_u32 s66, s66, s31",
          f"v_cndmask_b32 v{vO3}, v{vT+3}, v{vO1}, vcc", "s_add_u32 s67, s66, 8192", "s_add_u32 s78, s66, 16384", f"s_mov_b32 s{sIT}, 0")
        rl = rest.lines
        for i in range(16):
            a(f"v_mfma_f32_32x32x16_bf16 {ar(16*i,16)}, {vr(vT+4,4)}, {vr(vT+4,4)}, 0", rl[4*i:4*i+4])
        assert len(rl) <= 64
        STPRE = os.environ.get('STPRE', '0') == '1'
        CALL = os.environ.get('CALL', '0') == '1'
        def xn_store(t):
            for i in range(3): t(f"ds_read_b128 {vr(XV+4*i,4)}, v{vTR} offset:{i*4096}")
            t(f"buffer_store_dword v{vAcc}, v{vKo}, s[{sWS}:{sWS+3}], 0 offen{SC}", "s_waitcnt lgkmcnt(0)",
              f"buffer_store_dwordx4 {vr(XV,4)}, v{vO1}, s[{sWS}:{sWS+3}], s66 offen{SC}",
              f"buffer_store_dwordx4 {vr(XV+4,4)}, v{vO1}, s[{sWS}:{sWS+3}], s67 offen{SC}",
              f"buffer_store_dwordx4 {vr(XV+8,4)}, v{vO3}, s[{sWS}:{sWS+3}], s78 offen{SC}")
        def ln_compute(t):
            pk = lambda op, d, x, y, extra="": f"{op} {vr(d,2)}, {vr(x,2)}, {vr(y,2)}{extra}"
            for i in range(12):
                t(f"v_lshlrev_b32 v{F+2*i}, 16, v{XV+i}", f"v_and_b32 v{F+2*i+1}, 0xffff0000, v{XV+i}")
            t(pk("v_pk_add_f32", vT, F, F + 2), pk("v_pk_add_f32", vT + 2, F + 4, F + 6))
            for i in range(8, 24, 4): t(pk("v_pk_add_f32", vT, vT, F + i), pk("v_pk_add_f32", vT + 2, vT + 2, F + i + 2))
            t(pk("v_pk_add_f32", vT, vT, vT + 2), f"v_add_f32 v{vS}, v{vT}, v{vT+1}")
            allreduce32_add(t, vS, vT2)
            t(f"v_mul_f32 v{vMean}, 0xbacccccd, v{vS}", f"v_mul_f32 v{vMean+1}, 0xbacccccd, v{vS}")
            for i in range(12):
                d = vT + 4 + 2 * (i % 4); acc = vT if i < 8 else vT + 2
                t(pk("v_pk_add_f32", d, F + 2 * i, vMean))
                if i in (0, 8): t(pk("v_pk_mul_f32", acc, d, d))
                else: t(f"v_pk_fma_f32 {vr(acc,2)}, {vr(d,2)}, {vr(d,2)}, {vr(acc,2)}")
            t(f"v_add_f32 v{vT+2}, v{vT+2}, v{vT+3}", f"v_add_f32 v{vS}, v{vT}, v{vT+1}", f"v_cndmask_b32 v{vT+2}, 0, v{vT+2}, s[{sM16}:{sM16+1}]",
              f"v_add_f32 v{vS}, v{vS}, v{vT+2}")
            allreduce32_add(t, vS, vT2)
            t(f"v_mul_f32 v{vS}, 0x3acccccd, v{vS}")
            bf16r(t, vS)
            t(f"v_add_f32 v{vS}, 0x3727c5ac, v{vS}")
            bf16r(t, vS)
            t(f"v_sqrt_f32 v{vS}, v{vS}")
            bf16r(t, vMean)
            bf16r(t, vS)
            t(f"v_rcp_f32 v{vT+12}, v{vS}", f"v_mov_b32 v{vMean+1}, v{vMean}", f"v_mov_b32 v{vT+13}, v{vT+12}")
            for i in range(12):
                f0 = F + 2 * i; w0 = vT + 2 * (i % 2)
                t(pk("v_pk_add_f32", f0, f0, vMean), f"v_lshlrev_b32 v{w0}, 16, v{WR+i}", f"v_cvt_pk_bf16_f32 v{f0+1}, v{f0}, v{f0+1}",
                  f"v_and_b32 v{w0+1}, 0xffff0000, v{WR+i}", f"v_lshlrev_b32 v{f0}, 16, v{f0+1}", f"v_and_b32 v{f0+1}, 0xffff0000, v{f0+1}",
                  pk("v_pk_mul_f32", f0, f0, vT + 12), f"v_cvt_pk_bf16_f32 v{XV+i}, v{f0}, v{f0+1}",
                  f"v_lshlrev_b32 v{f0}, 16, v{XV+i}", f"v_and_b32 v{f0+1}, 0xffff0000, v{XV+i}")
                if i == 0: t(pk("v_pk_mul_f32", vAcc, f0, w0))
                else: t(f"v_pk_fma_f32 {vr(vAcc,2)}, {vr(f0,2)}, {vr(w0,2)}, {vr(vAcc,2)}")
                if i % 4 == 3: t(f"ds_write_b128 v{vTW}, {vr(XV+i-3,4)} offset:{(i//4)*4096}")
            t(f"v_add_f32 v{vAcc}, v{vAcc}, v{vAcc+1}")
            allreduce32_add(t, vAcc, vT2)
            bf16r(t, vAcc)
            t(f"v_ashrrev_i32 v{vT2}, 31, v{vAcc}", f"v_or_b32 v{vT2}, 0x80000000, v{vT2}", f"v_xor_b32 v{vAcc}, v{vAcc}, v{vT2}",
              f"v_and_b32 v{vAcc}, 0xffff0000, v{vAcc}", f"v_or_b32 v{vAcc}, v{vAcc}, v{vRow}")
        stamp(a, 2)
        if LNPRE:
            a(f"s_waitcnt vmcnt({5 if T01 else 3})")
            SM = int(os.environ.get("SM", "0"))
            if SM:
                a(f"s_add_u32 s4, s{sWt}, s74", f"s_addc_u32 s5, s{sWt+1}, 0", f"s_add_u32 s6, s{sC}, s29", f"s_addc_u32 s7, s{sC+1}, 0")
                step = 128 // SM
                sl = [f"s_load_dword s83, s[4:5], {r*8192 + q*step}" for r in range(8) for q in range(2 * SM)]
                sl += [f"s_load_dword s83, s[6:7], {r*1024 + 256 + q*step}" for r in range(2) for q in range(2 * SM)]
                a(sl[:14])
            ln_compute(a)
            if SM: a(sl[14:])
            a(stampv(9))
            if STPRE:
                a(f"buffer_store_dword v{vZero}, v{vFl}, s[{sWS}:{sWS+3}], 0 offen{SC}", "s_waitcnt lgkmcnt(0)", "s_barrier")
                xn_store(a)
            a(f"v_mov_b32 v{vT+3}, {BIG}")
            dma_stage()
        dma_stage()
        stamp(a, 3)
        a(self.cyc(62))
        a("s_waitcnt vmcnt(8) lgkmcnt(0)", "s_barrier")
        a(f"s_cmp_ge_u32 s{sW}, 2", f"s_cbranch_scc1 {name}_roleV")
        def reads(role, buf, off):
            CFr = (FB if role == "K" else FA) + 32 * buf
            WF = (FA if role == "K" else FB) + 32 * buf
            rc = [f"ds_read_b128 {vr(CFr+4*i,4)}, v{vCa} offset:{off + (i//2)*4096 + (i%2)*1024}" for i in range(8)]
            rw = [f"ds_read_b64_tr_b16 {vr(WF+4*cb+2*t,2)}, v{vWa+(cb&1)} offset:{off + t*1024 + (cb>>1)*256}" for cb in range(8) for t in range(2)]
            return rc, rw
        for role in ("K", "V"):
            if role == "V": a.label(f"{name}_roleV")
            rc, rw = reads(role, 0, 0)
            a(rc, rw)
            dma_stage()
            a(f"buffer_load_dword v231, v{vT+3}, s[{sC}:{sC+3}], 0 offen")
            dma_stage()
            if not T01 and not SM: a(t1)
            a("s_waitcnt lgkmcnt(0)")
            a(".p2align 6")
            a.label(f"{name}_loop{role}")
            if DBG: a(f"s_mov_b32 m0, s{sIT}", stampv("m0"))
            for half in range(2):
                def acc(i, j):
                    n_ = (8 * (j // 2) + 2 * (i // 2) + j % 2) if role == "K" else (8 * (i // 2) + j)
                    return ar(((n_ + 24) % 32) * 8 + 4 * (i % 2), 4)
                mf = [f"{MF} {acc(i,j)}, {vr(FA+32*half+4*i,4)}, {vr(FB+32*half+4*j,4)}, {acc(i,j)}" for i in range(8) for j in range(8)]
                sc = {}; mem = {}; va = {}
                sc[0] = [f"s_waitcnt vmcnt({17 if half == 0 else 18})"]; sc[1] = ["s_barrier"]
                rc, rw = reads(role, 1 - half, 32768 if half == 0 else 0)
                preC, lc, preW, lw, post = dma_lines()
                ds = []
                for i in range(8): ds += [rw[2*i], rw[2*i+1], rc[i]]
                for i, x in enumerate(ds): mem[2 + 2*i] = [x]
                st_ = 2 if half == 0 else 6
                sc[4] = preC
                for j in range(4): mem[5 + st_*j] = [lc[j]]
                sc[4 + 4*st_] = preW
                for j in range(4): mem[5 + st_*(4+j)] = [lw[j]]
                for j, x in enumerate(post): sc[48 + j] = [x]
                if half == 0:
                    mem[21] = [f"buffer_load_dword v231, v{vTQ}, s[{sQ2}:{sQ2+3}], s74 offen{SC}"]
                    sc[22] = ["s_add_u32 s74, s74, s73"]
                    h = self.hook(f"s_bitcmp1_b32 s72, s{sIT}", 8)
                    sc[23] = [h[0]]; sc[24] = h[1]
                    va[52] = [f"v_xor_b32 v{vCa}, 0x10000, v{vCa}"]
                    va[53] = [f"v_xor_b32 v{vWa}, 0x10000, v{vWa}"]
                    va[54] = [f"v_xor_b32 v{vWa+1}, 0x10000, v{vWa+1}"]
                    sc[63] = ["s_waitcnt lgkmcnt(0)"]
                else:
                    h = self.hook(f"s_bitcmp1_b32 s76, s{sIT}", 8)
                    sc[53] = [h[0]]; sc[54] = h[1]
                    sc[57] = [f"s_add_u32 s{sIT}, s{sIT}, 1"]
                    sc[61] = [f"s_cmp_lt_u32 s{sIT}, 8"]
                    sc[62] = ["s_waitcnt lgkmcnt(0)"]
                    sc[63] = [f"s_cbranch_scc1 {name}_loop{role}"]
                a(weave(mf, sc, mem, va))
            if role == "K":
                a(f"s_mov_b32 s64, {KFO}", "s_mov_b32 s76, 0x3e0293ee", f"s_branch {name}_p1epi")
            else:
                a(f"s_mov_b32 s64, {VFO}", "s_mov_b32 s76, 1.0")
        t = Asm()
        yld = ["s_getpc_b64 s[8:9]", "s_setpc_b64 s[10:11]"]
        t.label(f"{name}_co1")
        if not LNPRE: t(xloads, yld)
        t(f"buffer_load_dword v232, v234, s[{sC}:{sC+3}], s29 offen")
        if not STPRE: t(f"buffer_store_dword v{vZero}, v{vFl}, s[{sWS}:{sWS+3}], 0 offen{SC}")
        if not LNPRE:
            t("s_waitcnt vmcnt(18)")
            ln_compute(t)
            t(yld)
        if not STPRE: xn_store(t)
        t(yld)
        sw = [f"s_mov_b32 s{sQ2}, s60", f"s_mov_b32 s{sQ2+1}, s61", f"s_mov_b32 s{sQ2+2}, s75", f"s_lshl_b32 s74, s{sI}, 2", f"s_add_u32 s74, s74, s{sW}"]
        prep = [f"v_mov_b32 v{vS}, {BIG}", f"v_mov_b32 v{vT2}, 1", f"v_writelane_b32 v{vS}, s77, 0", f"v_lshlrev_b32 v{vZero}, 2, v{vL}"]
        arr = f"buffer_store_byte v{vT2}, v{vS}, s[{sDb}:{sDb+3}], 0 offen{SC}"
        if SB:
            t(prep, arr, f"s_and_b32 s23, s{sH}, 3", "s_cmp_eq_u32 s23, 3", f"s_cbranch_scc1 {name}_arr", yld)
            t.label(f"{name}_arr")
            t(sw, f"s_mul_i32 s74, s74, {5*8192}", f"s_mov_b32 s73, {160*8192}", f"v_lshrrev_b32 v{vTQ}, 1, v{vL}", f"v_min_u32 v{vTQ}, 4, v{vTQ}",
              f"v_lshlrev_b32 v{vTQ}, 13, v{vTQ}", f"v_and_b32 v{vS}, 1, v{vL}", f"v_lshl_add_u32 v{vTQ}, v{vS}, 7, v{vTQ}", yld)
        else:
            t(sw, "s_lshl_b32 s74, s74, 16", f"s_mov_b32 s73, {256*8192}", prep)
            if LNPRE: t(f"s_and_b32 s23, s{sH}, 3", f"s_cbranch_scc0 {name}_arr")
            t(yld)
            t.label(f"{name}_arr")
            t(arr, yld)
        t(f"buffer_load_dword v{vPoll}, v{vZero}, s[{sDb}:{sDb+3}], 0 offen{SC}", yld)
        t(f"s_mov_b32 s{sWt}, s60", f"s_mov_b32 s{sWt+1}, s61", f"s_mov_b32 s{sWt+2}, s75",
          f"s_lshr_b32 s{sOW}, s{sW}, 1", f"s_lshl_b32 s{sOW}, s{sOW}, 18", f"s_mov_b32 s{sStep}, {64*8192}",
          f"s_mov_b32 s{sC}, s18", f"s_mov_b32 s{sC+1}, s19", f"s_mov_b32 s{sC+2}, {2048*1280}", f"s_mov_b32 s{sOC}, 0", "s_movk_i32 s79, 1024",
          f"s_lshl_b32 s23, s{sI}, 2", f"s_add_u32 s23, s23, s{sW}", f"s_mul_i32 s23, s23, {2*20480}", f"v_add_u32 v{vCo}, s23, v{vL16}",
          f"s_sub_u32 s23, 15, s{sI}", "s_lshl_b32 s23, s23, 2", f"s_add_u32 s23, s23, s{sW}", f"s_mul_i32 s23, s23, {2*20480}", "s_sub_u32 s23, s23, 2048",
          f"v_add_u32 v{vCo+2}, s23, v{vL16}", f"v_add_u32 v{vCo+1}, {20480-1024}, v{vCo}", f"v_add_u32 v{vCo+3}, {20480-1024}, v{vCo+2}",
          )
        if os.environ.get("XT", "0") == "1":
            t(f"s_mov_b32 s{sQ2}, s18", f"s_mov_b32 s{sQ2+1}, s19", f"s_mov_b32 s{sQ2+2}, {2048*1280}", "s_movk_i32 s73, 8192",
              f"s_sub_u32 s23, 15, s{sI}", f"s_bitcmp1_b32 s{sH}, 1", f"s_cselect_b32 s23, s23, s{sI}", "s_lshl_b32 s23, s23, 2", f"s_add_u32 s23, s23, s{sW}",
              "s_lshl_b32 s23, s23, 1", f"s_and_b32 s31, s{sH}, 1", "s_add_u32 s23, s23, s31", "s_mul_i32 s74, s23, 20480", "s_add_u32 s74, s74, 4096",
              f"v_lshlrev_b32 v{vTQ}, 7, v{vL}")
        t("s_waitcnt vmcnt(8)")
        self.poll_check(t, "ln", vPoll, vZero, sDb, [f"v_cmp_ne_u32 vcc, 0x01010101, v{vPoll}"])
        t("s_setpc_b64 s[10:11]")
        self.tail += t.lines
        a.label(f"{name}_p1epi")
        stamp(a, 4)
        a(self.cyc(56))
        self.sWq = sWt; self.sXs = sC; self.sWoff = sOW; self.sXoff = sOC

    def kv_item(self, n, D):
        sc = []
        if n and n % 8 == 0: sc = [f"s_add_u32 s64, s64, {131072-4096}"]
        elif n % 8 == 4: sc = ["s_add_u32 s64, s64, 4096"]
        regs = [((n + 24) % 32) * 8 + r for r in range(8)]
        va = [f"v_accvgpr_read_b32 v{vT+k}, a{r}" for k, r in enumerate(regs)]
        va += [f"v_mul_f32 v{vT+k}, s76, v{vT+k}" for k in range(8)]
        va += [f"v_cvt_pk_bf16_f32 v{D+r}, v{vT+2*r}, v{vT+1+2*r}" for r in range(4)]
        z = []
        st = f"buffer_store_dwordx4 {vr(D,4)}, v{vL16}, s[{sWS}:{sWS+3}], s64 offen offset:{(n%4)*1024}{SC}"
        return sc, va, z, st

    def top8(self):
        name = self.name
        self.a(f"s_cmp_eq_u32 s2, {TOPWG}", f"s_cbranch_scc1 {name}_top8")
        self.a.label(f"{name}_notop")
        a = Asm()
        KEY = 232; CA = 96
        a.label(f"{name}_top8")
        vM, vPrev, vSel, vTok, vTmp, vRow, vR = vT + 4, vT + 5, vT + 6, vT + 7, vT + 8, vT + 9, vT + 10
        a(f"v_mov_b32 v{vPrev}, 0", f"v_mov_b32 v{vSel}, 0", f"v_and_b32 v{vTok}, 7, v{vL}", "s_mov_b32 s23, 0")
        a.label(f"{name}_top")
        a(f"v_max3_u32 v{vM}, v{KEY}, v{KEY+1}, v{KEY+2}", f"v_max3_u32 v{vTmp}, v{KEY+3}, v{KEY+4}, v{KEY+5}",
          f"v_max3_u32 v{vM}, v{vM}, v{KEY+6}, v{KEY+7}", f"v_max_u32 v{vM}, v{vM}, v{vTmp}")
        for m in ("quad_perm:[1,0,3,2]", "quad_perm:[2,3,0,1]", "row_half_mirror", "row_mirror"):
            a("s_nop 1", f"v_max_u32_dpp v{vM}, v{vM}, v{vM} {m} row_mask:0xf bank_mask:0xf")
        xreduce(a, "v_max_u32", vM, vTmp)
        a(f"v_add_u32 v{vPrev}, v{vPrev}, v{vM}", f"v_cmp_eq_u32 vcc, s23, v{vTok}")
        for q in range(8): a(f"v_sub_u32 v{KEY+q}, v{KEY+q}, v{vM}")
        a(f"v_cndmask_b32 v{vSel}, v{vSel}, v{vPrev}, vcc", "s_add_u32 s23, s23, 1", "s_cmp_lt_u32 s23, 8", f"s_cbranch_scc1 {name}_top")
        a(f"s_lshl_b32 s23, s{sW}, 5", f"s_add_u32 s23, s23, {SPARE}", f"v_lshl_add_u32 v{vTmp}, v{vTok}, 2, s23", f"ds_write_b32 v{vTmp}, v{vSel}",
          "s_waitcnt lgkmcnt(0)", "s_barrier", f"s_cmp_lg_u32 s{sW}, 0", f"s_cbranch_scc1 {name}_notop")
        a(f"v_and_b32 v{vTmp}, 31, v{vL}", f"v_lshlrev_b32 v{vTmp}, 2, v{vTmp}", f"v_add_u32 v{vTmp}, {SPARE}, v{vTmp}", f"v_mov_b32 v{vM}, {SPARE}",
          f"ds_read_b32 v{vSel}, v{vTmp}")
        for q in range(8): a(f"ds_read_b128 {vr(CA+4*q,4)}, v{vM} offset:{16*q}")
        a(f"v_mov_b32 v{vTok}, 0", "s_waitcnt lgkmcnt(0)")
        for q in range(0, 32, 4):
            for e in range(4): a(f"v_cmp_gt_u32 s[{4+2*(e%2)}:{5+2*(e%2)}], v{CA+q+e}, v{vSel}" if e < 2 else f"v_cmp_gt_u32 s[{76+2*(e%2)}:{77+2*(e%2)}], v{CA+q+e}, v{vSel}")
            for e in range(4):
                sp = (4 + 2 * e) if e < 2 else (76 + 2 * (e - 2))
                a(f"v_addc_co_u32 v{vTok}, vcc, 0, v{vTok}, s[{sp}:{sp+1}]")
        a(f"v_and_b32 v{vRow}, 0xffff, v{vSel}", f"v_sub_u32 v{vRow}, 0xffff, v{vRow}", f"v_and_b32 v{vRow}, 2047, v{vRow}")
        a(f"v_ashrrev_i32 v{vM}, 31, v{vSel}", f"v_not_b32 v{vM}, v{vM}", f"v_or_b32 v{vM}, 0x80000000, v{vM}",
          f"v_xor_b32 v{vR}, v{vSel}, v{vM}", f"v_and_b32 v{vR}, 0xffff0000, v{vR}",
          f"v_mul_f32 v{vR}, 0xbfb8aa3b, v{vR}", f"v_exp_f32 v{vR}, v{vR}", "s_nop 0", f"v_add_f32 v{vR}, 1.0, v{vR}",
          f"v_rcp_f32 v{vR}, v{vR}", "s_nop 0")
        bf16r(a, vR)
        a(f"v_and_b32 v{vM}, 32, v{vL}", f"v_lshl_add_u32 v{vM}, v{vTok}, 2, v{vM}", f"v_add_u32 v{vM}, {SEL}, v{vM}", f"v_mov_b32 v{vPrev}, {BIG}",
          f"v_cmp_gt_u32 vcc, 8, v{vTok}", f"v_add_u32 v{vRow}, 1, v{vRow}", f"v_or_b32 v{vR}, 1, v{vR}", f"v_cndmask_b32 v{vM}, v{vPrev}, v{vM}, vcc",
          f"v_cmp_gt_u32 vcc, 32, v{vL}", "s_nop 1", f"v_cndmask_b32 v{vR}, v{vR}, v{vRow}, vcc",
          f"buffer_store_dword v{vR}, v{vM}, s[{sWS}:{sWS+3}], 0 offen{SC}", f"s_branch {name}_notop")
        self.tail += a.lines

    def phase2(self):
        a = self.a; name = self.name
        sWq, sXs, sWoff, sXoff = self.sWq, self.sXs, self.sWoff, self.sXoff
        XB = 224; vXa = 14; sW4 = 24
        vm = VM()
        vm.issue("X1", 4); vm.issue("W1", 4); vm.issue("X2", 4); vm.issue("W2", 4); vm.issue("T"); vm.issue("X3", 4); vm.issue("W3", 4)
        def wreads(buf, off):
            return [f"ds_read_b64_tr_b16 {vr(Q+32*buf+4*cb+2*t,2)}, v{vWa+(cb&1)} offset:{off + t*1024 + (cb>>1)*256}" for cb in range(8) for t in range(2)]
        def xreads(buf, off):
            return [f"ds_read_b128 {vr(XB+16*buf+4*qb,4)}, v{vXa} offset:{off + qb*1024}" for qb in range(4)]
        a(f"s_lshr_b32 s23, s{sW}, 1", "s_lshl_b32 s23, s23, 13", f"v_subrev_u32 v{vWa}, s23, v{vWa}", f"v_subrev_u32 v{vWa+1}, s23, v{vWa+1}",
          f"s_lshl_b32 s{sW4}, s{sW}, 12", f"v_add_u32 v{vXa}, s{sW4}, v{vL16}")
        a(wreads(0, 0), f"s_waitcnt vmcnt({vm.need('T')})", xreads(0, 0))
        a(f"s_lshl_b32 s23, s{sH}, 19", "s_add_u32 s64, s64, s23", f"s_lshl_b32 s23, s{sI}, 14", "s_add_u32 s64, s64, s23",
          f"s_and_b32 s23, s{sW}, 1", "s_lshl_b32 s23, s23, 13", "s_add_u32 s64, s64, s23")
        a(f"s_lshl_b32 s23, s{sH}, 19", f"s_add_u32 s23, s23, {KFO}", "s_add_u32 s6, s18, s23", "s_addc_u32 s7, s19, 0",
          f"s_add_u32 s8, s6, {VFO-KFO}", "s_addc_u32 s9, s7, 0", f"s_sub_u32 s23, 16, s{sI}", "s_lshl_b32 s23, s23, 15")
        srd(a, sK, "s6", "s7", "s23")
        srd(a, sV, "s8", "s9", "s23")
        a(f"s_lshl_b32 s30, s{sH}, 10", f"s_add_u32 s30, s30, {KVF}", f"s_mov_b32 s{sThr}, 0x47800000",
          f"s_cmp_eq_u32 s{sW}, 0", f"s_cselect_b32 s65, s{sKVa}, {BIG}")
        a(f"s_waitcnt vmcnt({vm.need('X1')}) lgkmcnt(0)")
        stamp(a, 6)
        per = [int(c) for c in os.environ.get("PER", "22111111111122233330")]
        per[0] += 32 - sum(per)
        assert sum(per) == 32 and len(per) == 20 and per[19] == 0
        last8 = min(k for k in range(20) if sum(per[:k+1]) >= 8)
        SFLAG = last8 + 2 if last8 % 2 else last8 + 3
        SPOLL = int(os.environ.get('SPOLL', '16'))
        misc = [f"v_and_b32 v11, 15, v{vL}", f"v_lshrrev_b32 v10, 4, v{vL}", "v_lshlrev_b32 v10, 2, v10", "v_sub_u32 v11, v11, v10"]
        misc += [f"v_cmp_le_i32 s[{sMask+2*r}:{sMask+2*r+1}], {r}, v11" for r in range(4)]
        misc += [f"v_and_b32 v{vPo}, 7, v{vL}", f"v_lshlrev_b32 v{vPo}, 7, v{vPo}", f"v_add_u32 v{vPo}, s30, v{vPo}"]
        flagst = f"buffer_store_dword v{vWa}, off, s[{sWS}:{sWS+3}], s65{SC}"
        pollld = f"buffer_load_dword v{vPoll}, v{vPo}, s[{sWS}:{sWS+3}], 0 offen{SC}"
        it = 0; zpool = []
        for s_ in range(20):
            buf = s_ & 1
            C = lambda d: "0" if s_ == 0 else vr(d, 4)
            mf = [f"{MF} {vr(QACC+(db*4+qb)*4,4)}, {vr(Q+32*buf+4*db,4)}, {vr(XB+16*buf+4*qb,4)}, {C(QACC+(db*4+qb)*4)}" for qb in range(4) for db in range(8)]
            sc = {g: [] for g in range(32)}; mem = {g: [] for g in range(32)}; va = {g: [] for g in range(32)}
            tags = {g: [] for g in range(32)}
            if s_ & 1: sc[0].append("s_barrier")
            vpos = [3, 8, 13, 18, 23, 28]
            if s_ < 19:
                off = [8192, 32768, 32768 + 8192, 0][s_ % 4]
                rd = wreads(1 - buf, off); xr = xreads(1 - buf, 32768 if s_ % 2 == 0 else 0)
                ds = rd[:8] + xr[:2] + rd[8:] + xr[2:]
                dpos = [g for g in range(1, 27) if g not in vpos][:20]
                for p_, x in zip(dpos, ds): mem[p_].append(x)
            if s_ + 4 < 20:
                sc[2].append(f"s_add_u32 m0, s{sW4}, {(s_%4)*32768}")
                for j in range(4):
                    mem[vpos[j]].append(f"buffer_load_dwordx4 v{vCo+j}, s[{sXs}:{sXs+3}], s{sXoff} offen offset:{j*1024}{SC} lds"); tags[vpos[j]].append(f"X{s_+4}")
                sc[19].append(f"s_add_u32 s{sXoff}, s{sXoff}, 1024")
            stage = (s_ + 1) // 2 + 3
            if s_ >= 1 and stage < 10:
                sc[22].append(f"s_add_u32 m0, s{sW4}, {(stage%4)*32768+16384}")
                for jj in range(2):
                    j = jj if s_ & 1 else 2 + jj
                    mem[vpos[4+jj]].append(f"buffer_load_dwordx4 v{vWo+j}, s[{sWq}:{sWq+3}], s{sWoff} offen offset:{j*1024} lds"); tags[vpos[4+jj]].append(f"W{stage}")
                if not s_ & 1: sc[29].append(f"s_add_u32 s{sWoff}, s{sWoff}, {64*8192}")
            if s_ % 4 == 2:
                va[29].append(f"v_xor_b32 v{vWa}, 0x10000, v{vWa}"); va[30].append(f"v_xor_b32 v{vWa+1}, 0x10000, v{vWa+1}")
            if s_ % 2 == 0: va[27].append(f"v_xor_b32 v{vXa}, 0x10000, v{vXa}")
            if s_ == SFLAG:
                mem[0].append(flagst); tags[0].append("flag")
            if s_ == SPOLL:
                mem[3].append(pollld); tags[3].append("poll")
            toks = []
            for k in range(per[s_]):
                D = vT + 8 + 4 * (it % 2)
                isc, iva, z, ist = self.kv_item(it, D)
                toks += [("s", x) for x in isc] + [("v", x) for x in iva] + [("st" if it >= 8 else "st0", ist)]; it += 1
                zpool += z
            if s_ == 13: toks += [("v", x) for x in misc]
            fs = []
            if s_ in (14, 15):
                for q in (range(3) if s_ == 14 else range(3, 5)):
                    toks += [("v", x) for x in [f"v_add_u32 v9, {64*q}, v{vL}", "v_mul_u32_u24 v10, 6554, v9", "v_lshrrev_b32 v10, 16, v10",
                             f"v_mul_u32_u24 v10, {1280-160}, v10", "v_lshl_add_u32 v10, v9, 4, v10", f"v_accvgpr_write_b32 a{248+q}, v10"]]
            if s_ == 16:
                fs = [f"s_mul_i32 s34, s{sW}, 5120", f"s_add_u32 s34, s34, {SPARE}"] + self.co_setup()[:-3]
            if s_ == 17:
                fs = [f"s_and_b32 s23, s{sW}, 1", "s_lshl_b32 s23, s23, 12", f"s_cmp_lt_u32 s{sW}, 2\ns_cselect_b32 s{sKm}, {131072-24576}, 0",
                         f"s_add_u32 s{sKm}, s{sKm}, s23", f"s_lshl_b32 s{sKo}, s{sW}, 12", f"s_mov_b32 s{sVo}, s{sKo}", f"s_add_u32 s{sVm}, s{sVo}, {32768+16384}",
                         "s_load_dwordx4 s[4:7], s[0:1], 64", "s_load_dwordx2 s[60:61], s[0:1], 80",
                         f"s_add_u32 s23, s{sW}, 1", "s_lshr_b32 s23, s23, 1", f"s_lshl_b32 s{sCnt}, s{sI}, 1", f"s_add_u32 s{sCnt}, s{sCnt}, s23",
                         f"s_lshl_b32 s23, s{sI}, 2", f"s_sub_u32 s{sNSS}, 28, s23", f"s_and_b32 s23, s{sW}, 1", f"s_add_u32 s{sNSS}, s{sNSS}, s23"]
                toks += [("v", x) for x in [f"v_lshrrev_b32 v6, 2, v{vL}", "v_mul_u32_u24 v6, 160, v6", f"v_and_b32 v9, 3, v{vL}",
                         "v_lshl_add_u32 v6, v9, 3, v6", "v_add_u32 v6, s34, v6", f"v_mov_b32 v{vKV}, v{vL16}", f"v_mov_b32 v{vNI}, 0xff800000",
                         f"v_add_u32 v9, {3*32768+8192}, v{vL16}"]]
            if s_ == 18:
                cs = self.co_setup()[-3:]
                fs = [f"s_cmp_ge_u32 s{sW}, 2\ns_cselect_b32 s4, s6, s4\ns_cselect_b32 s5, s7, s5", f"s_mov_b32 s62, {1728*1280}", "s_mov_b32 s63, 0x20000",
                      "s_mov_b64 s[56:57], s[52:53]", "s_mov_b32 s58, s54", "s_mov_b64 s[52:53], s[4:5]", f"s_mov_b32 s54, {640*3456}", cs[0], cs[1] + "\n" + cs[2],
                      f"s_lshl_b32 s31, s{sW}, 11", f"s_add_u32 s31, s31, {RKEY}", f"s_cmp_eq_u32 s2, {TOPWG}\ns_cselect_b32 s31, s31, {BIG}"]
            if s_ == 15 and os.environ.get("CT2", "1") == "1":
                fs = [f"s_getpc_b64 s[78:79]\n{name}_pc2:", "s_lshr_b32 s23, s2, 3", "s_and_b32 s23, s23, 7", "s_lshl_b32 s23, s23, 2", f"s_add_u32 s23, s23, s{sW}",
                      "s_lshl_b32 s23, s23, 11", f"s_min_u32 s23, s23, {name}_codeend-{name}_pc2-2048"]
                va[24] += [f"v_and_b32 v11, 15, v{vL}"]; va[25] += ["v_lshl_add_u32 v11, v11, 7, s23"]
                mem[28].append("global_load_dword v11, v11, s[78:79]"); tags[28].append("ct")
            for q, x in enumerate(fs): sc[(1 if s_ != 15 else 4) + q].append(x)
            if s_ == 19:
                tmp = Asm()
                self.poll_check(tmp, "kv", vPoll, vPo, sWS, [f"v_cmp_eq_u32 vcc, 0, v{vPoll}"])
                va[0].append(tmp.lines[0]); sc[1] += tmp.lines[1:]
                mem[0].append(f"buffer_load_dwordx4 v[232:235], v{vL16}, s[{sWS}:{sWS+3}], s31 offen{SC}")
                mem[1].append(f"buffer_load_dwordx4 v[236:239], v{vL16}, s[{sWS}:{sWS+3}], s31 offen offset:1024{SC}")
                for p_ in range(3):
                    g0 = 2 + 10 * p_
                    sc[g0].append(f"s_mov_b32 m0, s{sKm}")
                    for j in range(4): mem[g0+1+2*j].append(f"buffer_load_dwordx4 v{vL16}, s[{sK}:{sK+3}], s{sKo} offen offset:{j*1024}{SC} lds")
                    sc[g0+2].append(f"s_add_u32 s{sKm}, s{sKm}, 32768"); sc[g0+3].append(f"s_and_b32 s{sKm}, s{sKm}, 0x1ffff")
                    sc[g0+8].append(f"s_add_u32 s{sKo}, s{sKo}, 16384")
                def cvq(X, qb):
                    return [f"v_cvt_pk_bf16_f32 v{Q+32*X+8*ks+4*qb+2*hh+e}, v{QACC+((2*ks+hh)*4+2*X+qb)*4+2*e}, v{QACC+((2*ks+hh)*4+2*X+qb)*4+2*e+1}"
                            for ks in range(4) for hh in range(2) for e in range(2)]
                for q in range(4): va[2 + 2 * q].append(f"v_mov_b32 v{LS+q}, 0")
                for q, x in enumerate(cvq(0, 0)): va[10 + q * 10 // 16].append(x)
                for q, x in enumerate(cvq(0, 1)): va[20 + q * 11 // 16].append(x)
            cap = [max(0, 2 - len(mem[g]) - len(va[g])) for g in range(31)]
            nv = sum(1 for t_ in toks if t_[0] != "s")
            nz = len(zpool) if s_ == 19 else min(len(zpool), max(0, sum(cap) - nv - per[s_] - 1))
            toks += [("v", x) for x in zpool[:nz]]; zpool = zpool[nz:]
            nv += nz
            extra = max(0, nv - sum(cap))
            while True:
                cp = list(cap); plc = []; nsc = {g: len(sc[g]) for g in range(32)}
                for q in range(extra): cp[(q * 30 // extra) % 30] += 1
                g = 0; smin = 0; ok = True
                for kind, x in toks:
                    if kind == "s":
                        gg = max(g, smin)
                        while gg < 30 and nsc[gg] and gg < max(g, smin) + 3: gg += 1
                        gg = min(gg, 30); nsc[gg] += 1
                        plc.append((sc, gg, x, None)); smin = gg + 1
                        continue
                    if kind != "v": g = max(g + 1, smin - 1)
                    while g < 31 and cp[g] == 0: g += 1
                    if g >= 31: ok = False; break
                    cp[g] -= 1
                    if kind == "v": plc.append((va, g, x, None))
                    else: plc.append((mem, g, x, kind)); smin = g + 1
                if ok: break
                extra += 1
            for (d_, g, x, kind) in plc:
                d_[g].append(x)
                if kind: tags[g].append(kind)
            for g in range(31):
                for t_ in tags[g]: vm.issue(t_)
            if s_ < 19:
                need = []
                if s_ + 2 < 20: need.append(f"X{s_+2}")
                if (s_ + 1) & 1:
                    st1 = (s_ + 2) // 2
                    if st1 < 10: need.append(f"W{st1}")
                if s_ + 1 == SFLAG: need.append("st0")
                if s_ == 18: need.append("poll")
                sc[31].append(f"s_waitcnt vmcnt({vm.need(*need)}) lgkmcnt(0)" if need else "s_waitcnt lgkmcnt(0)")
            for t_ in tags[31]: vm.issue(t_)
            if os.environ.get("QST"): a(stampv(30 + s_))
            a(weave(mf, sc, mem, va))
        assert it == 32 and not zpool
        stamp(a, 5); stamp(a, 7)
        a(self.cyc(57))
        cv = cvq(1, 0) + cvq(1, 1)
        for p_ in range(2):
            a(f"s_mov_b32 m0, s{sVm}", "s_nop 0")
            for j in range(4):
                a(f"v_mfma_f32_32x32x16_bf16 {ar(O+16*(4*p_+j),16)}, {vr(LS,4)}, {vr(LS,4)}, 0",
                  f"buffer_load_dwordx4 v{vL16}, s[{sV}:{sV+3}], s{sVo} offen offset:{j*1024}{SC} lds", cv[:4]); cv = cv[4:]
            a(f"s_add_u32 s{sVo}, s{sVo}, 16384", f"s_add_u32 s{sVm}, s{sVm}, 32768", f"s_and_b32 s{sVm}, s{sVm}, 0x1ffff")
        assert not cv
        a("s_waitcnt vmcnt(12)", "s_barrier")
        a([f"ds_read_b128 {ar(KF+4*i,4)}, v9 offset:{i*1024}" for i in range(8)])
        a(f"buffer_store_dword v{vNI}, off, s[{sWS}:{sWS+3}], s65 offset:32{SC}", f"v_add_u32 v13, 32, v{vPo}", "v_mov_b32 v14, 0")
        self.top8()
        a("s_waitcnt lgkmcnt(4)")

    def wf_addr(self, d):
        return [f"s_and_b32 s{d}, s2, 1", f"s_lshl_b32 s{d}, s{d}, 2", f"s_add_u32 s{d}, s{d}, s{sW}", f"s_lshl_b32 s{d}, s{d}, 7",
                "s_lshr_b32 s31, s2, 1", f"s_add_u32 s{d}, s{d}, s31", f"s_lshl_b32 s{d}, s{d}, 7", f"s_add_u32 s{d}, s{d}, {WF}"]
    def yf_addr(self, d):
        return [f"s_sub_u32 s{d}, s2, {FFN0}", f"s_lshl_b32 s31, s{sW}, 6", f"s_add_u32 s{d}, s{d}, s31", f"s_lshl_b32 s{d}, s{d}, 7", f"s_add_u32 s{d}, s{d}, {YF}"]
    def flag_store(self, addr_lines, wait):
        return addr_lines + [wait, f"buffer_store_dword v{vNI}, off, s[{sWS}:{sWS+3}], s23{SC}"]

    def co_setup(self):
        name = self.name
        return (["s_mov_b32 s101, 24"] if DBG else []) + [f"s_and_b32 s32, s{sH}, 3", "s_min_u32 s32, s32, 2", "s_add_u32 s32, s32, 5", "s_lshl_b32 s32, s32, 14",
          "s_mov_b32 s9, -1", "s_sub_u32 s23, s2, 64", "s_cmp_lt_u32 s23, 96\ns_cselect_b32 s9, 0, s9", "s_cmp_ge_u32 s2, 224\ns_cselect_b32 s9, 0, s9",
          "s_and_b32 s32, s32, s9", f"s_sub_u32 s23, s2, {FFN0}", f"s_cmp_lt_u32 s23, {FFN1-FFN0}\ns_cselect_b32 s32, {(3+self.FS)*16384}, s32",
          "s_mov_b32 s67, s2", "s_mov_b32 s8, 0", f"s_mov_b32 s{k2.sRing}, 0", "s_mov_b32 s11, 0", "s_mov_b32 s12, 0",
          f"s_lshl_b32 s15, s{sI}, 1", "s_add_u32 s23, s15, 6", f"s_sub_u32 s15, {32-self.U}, s15", "s_max_u32 s15, s15, s23", "s_lshl_b32 s15, s15, 14",
          f"s_getpc_b64 s[36:37]\n{name}_copc:", f"s_add_u32 s36, s36, {name}_co-{name}_copc-4", "s_addc_u32 s37, s37, 0"]

    def cyc(self, lane):
        if not (DBG and os.environ.get("CYC")): return []
        return ["s_memtime s[98:99]", "s_waitcnt lgkmcnt(0)", f"v_writelane_b32 v7, s98, {lane}"]

    def hook(self, cond=None, R=36):
        k = self.nhook; self.nhook += 1
        n = self.name
        dbg = ["s_memrealtime s[98:99]", "s_waitcnt lgkmcnt(0)", "s_mov_b32 s100, s98"] if (DBG and os.environ.get("REC")) else []
        self.tail += [f"{n}_hk{k}:"] + dbg + [f"s_getpc_b64 s[{R+2}:{R+3}]", f"{n}_hp{k}:", f"s_add_u32 s{R}, s{R}, 4", f"s_addc_u32 s{R+1}, s{R+1}, 0",
                      f"s_sub_u32 s{R+2}, s{R+2}, {n}_hp{k}-{n}_hb{k}", f"s_subb_u32 s{R+3}, s{R+3}, 0", f"s_setpc_b64 s[{R}:{R+1}]"]
        return [cond or f"s_cmp_ge_u32 s{sKo}, s32", [f"s_cbranch_scc1 {n}_hk{k}", f"{n}_hb{k}:"]]

    def coroutine(self):
        name = self.name
        a = Asm()
        cnt = [0]
        def rec():
            if DBG and os.environ.get("REC"): a("s_memrealtime s[98:99]", "s_waitcnt lgkmcnt(0)", "s_sub_u32 s98, s98, s100", "s_lshl_b32 s98, s98, 16", "s_and_b32 s100, s100, 0xffff",
                      "s_or_b32 s98, s98, s100", "s_mov_b32 m0, s101", "s_add_u32 s101, s101, 1", "v_writelane_b32 v7, s98, m0")
        def yld(n=1):
            for _ in range(n):
                rec()
                a("s_getpc_b64 s[36:37]", "s_setpc_b64 s[38:39]")
        G = 232; FW = 192; FX = 212; Y = 236
        def wo_reads():
            a("s_waitcnt vmcnt(8)")
            for cb in range(5):
                for tt in range(2): a(f"ds_read_b64_tr_b16 {vr(232+4*cb+2*tt,2)}, v6 offset:{tt*16*160 + cb*32}")
        def wo_stores():
            a("s_add_u32 s31, s30, 4096")
            for cb in range(5):
                a(f"buffer_store_dwordx4 {vr(232+4*cb,4)}, v{vL16}, s[{sWS}:{sWS+3}], s{30 if cb < 4 else 31} offen offset:{(cb%4)*1024}{SC}")
        a.label(f"{name}_co")
        a("s_sub_u32 s14, s2, 64", "s_cmp_lt_u32 s14, 96", f"s_cbranch_scc1 {name}_coT",
          "s_sub_u32 s14, s2, 128", "s_sub_u32 s23, s2, 224", f"s_cmp_lt_u32 s23, {TOPWG-224}", f"s_cbranch_scc1 {name}_coT")
        self.poll_check(a, "kv2", 14, 13, sWS, ["v_cmp_eq_u32 vcc, 0, v14"])
        a(f"s_sub_u32 s14, s2, {FFN0}", f"s_cmp_lt_u32 s14, {FFN1-FFN0}", f"s_cbranch_scc1 {name}_coF",
          f"s_cmp_eq_u32 s2, {TOPWG}", f"s_cbranch_scc1 {name}_coW",
          f"s_cmp_lt_u32 s2, {self.NOWO}", f"s_cbranch_scc1 {name}_coW", f"s_branch {name}_coO")
        a.label(f"{name}_coT")
        a(f"v_min_u32 v8, 16, v{vL}", "v_lshlrev_b32 v8, 7, v8", "s_lshl_b32 s10, s14, 1", f"s_and_b32 s31, s{sW}, 1", "s_add_u32 s10, s10, s31",
          f"s_mul_i32 s10, s10, {17*128}", "s_lshl_b32 s35, s14, 2", f"s_add_u32 s35, s35, s{sW}", f"s_mul_i32 s35, s35, {34*128}")
        for k in range(4):
            if k == 2: self.poll_check(a, "kv3", 14, 13, sWS, ["v_cmp_eq_u32 vcc, 0, v14"])
            a("buffer_load_dword v255, v8, s[52:55], s10 offen", f"s_add_u32 s10, s10, {160*3456}")
            if k >= 2: a(f"buffer_load_dword v255, v8, s[60:63], s35 offen offset:{(k-2)*17*128}")
            if k == 3: a("s_mov_b32 s9, -1", f"s_and_b32 s32, s{sH}, 3", "s_lshr_b32 s32, s32, 1", "s_add_u32 s32, s32, 6", "s_lshl_b32 s32, s32, 14")
            yld()
        a.label(f"{name}_coO")
        a("s_and_b32 s23, s67, 1", "s_lshl_b32 s23, s23, 2", f"s_add_u32 s23, s23, s{sW}", "s_lshr_b32 s31, s67, 1",
          f"s_mul_i32 s33, s23, {-4*self.ROT}", "s_add_u32 s33, s33, s31", "s_and_b32 s33, s33, 31", "s_andn2_b32 s30, s31, 31", "s_add_u32 s33, s33, s30",
          "s_lshl_b32 s30, s23, 7", "s_add_u32 s30, s30, s33", f"s_mul_i32 s33, s31, {32*1280}", "s_mul_i32 s23, s23, 160", "s_add_u32 s33, s33, s23")
        for q in range(5):
            a(f"s_add_u32 m0, s34, {q*1024}", f"v_accvgpr_read_b32 v{vT+3}, a{248+q}", f"buffer_load_dwordx4 v{vT+3}, s[56:59], s33 offen lds")
        a("s_lshl_b32 s32, s11, 15", f"s_add_u32 s32, s32, s{sKo}", "s_mov_b32 s9, -1", "s_lshl_b32 s10, s30, 7", "s_mul_i32 s30, s30, 5120", f"s_add_u32 s30, s30, {WOF}")
        yld()
        wo_reads()
        a("s_waitcnt lgkmcnt(0)")
        wo_stores()
        yld()
        a(self.flag_store([f"s_add_u32 s23, s10, {WF}"], "s_waitcnt vmcnt(8)"),
          "s_cmp_lg_u32 s67, s2", f"s_cbranch_scc1 {name}_coW",
          "s_sub_u32 s67, s2, 128", f"s_cmp_lt_u32 s67, {self.NOWO}", f"s_cbranch_scc1 {name}_coO",
          "s_sub_u32 s23, s2, 96", "s_sub_u32 s31, s2, 192", "s_cmp_lt_u32 s23, 32", "s_cselect_b32 s23, s23, s31",
          f"s_cmp_gt_u32 s23, {FFN1-FFN0}", f"s_cbranch_scc1 {name}_coW",
          f"s_add_u32 s67, s23, {FFN0}", f"s_cmp_eq_u32 s67, {FFN1}", f"s_cselect_b32 s67, {TOPWG}, s67", f"s_branch {name}_coO")
        FV = self.FV
        a.label(f"{name}_coF")
        if os.environ.get("NOFFN"): a(self.flag_store(self.yf_addr(23), "s_nop 0"), f"s_branch {name}_coW")
        a(f"v_and_b32 v{vT}, 7, v{vL}", f"v_lshlrev_b32 v252, 2, v{vT}", f"v_add_u32 v252, {SEL}, v252",
          f"buffer_load_dword v15, v252, s[{sWS}:{sWS+3}], 0 offen{SC}")
        a("s_lshl_b32 s33, s14, 6", f"s_and_b32 s31, s{sW}, 1", "s_lshl_b32 s31, s31, 5", "s_add_u32 s33, s33, s31",
          "s_mul_i32 s35, s14, 40960", f"s_mul_i32 s31, s{sW}, 320", "s_add_u32 s35, s35, s31",
          "s_mul_i32 s10, s14, 20480", f"s_mul_i32 s31, s{sW}, 5120", "s_add_u32 s10, s10, s31", f"s_add_u32 s10, s10, {YP}")
        a(f"v_lshrrev_b32 v{vT+1}, 1, v{vL}", f"v_mul_u32_u24 v{FV[0]}, 3456, v{vT+1}", f"v_and_b32 v{vT+1}, 1, v{vL}", f"v_lshl_add_u32 v{FV[0]}, v{vT+1}, 4, v{FV[0]}")
        for q in range(1, 5): a(f"v_add_u32 v{FV[q]}, {q*32*3456 - (q%4)*1024}, v{FV[0]}")
        a(f"v_lshrrev_b32 v{vT+1}, 4, v{vL}",
          f"v_lshrrev_b32 v{vT+2}, 2, v{vL}", f"v_lshl_add_u32 v{vT+2}, v{vT+1}, 2, v{vT+2}",
          f"v_lshlrev_b32 v{vT+2}, 5, v{vT+2}", f"v_and_b32 v{vT+3}, 3, v{vL}", f"v_lshl_add_u32 v9, v{vT+3}, 3, v{vT+2}", "v_add_u32 v9, s34, v9",
          f"v_lshlrev_b32 v10, 4, v{vT}", f"v_lshl_add_u32 v10, v{vT+1}, 7, v10", f"v_add_u32 v10, {XS-2560}, v10", "s_mov_b32 s8, -1",
          "s_mov_b32 s4, 0", "s_mov_b32 s5, 0", f"s_mov_b32 s6, {160*3456}")
        yld()
        a("s_waitcnt vmcnt(8)")
        self.poll_check(a, "sel", 15, 252, sWS, ["v_cmp_eq_u32 vcc, 0, v15"])
        a(f"v_add_u32 v{vT+2}, -1, v15", f"v_and_b32 v{vT+2}, 2047, v{vT+2}", f"v_lshrrev_b32 v{vT+3}, 4, v{vT+2}", f"v_mul_u32_u24 v{vT+3}, 20480, v{vT+3}",
          f"v_and_b32 v{vT+2}, 15, v{vT+2}", f"v_lshl_add_u32 v{vT+3}, v{vT+2}, 4, v{vT+3}",
          f"v_lshrrev_b32 v{vT+2}, 3, v{vL}", f"v_lshl_add_u32 v{vT+3}, v{vT+2}, 8, v{vT+3}",
          f"s_lshl_b32 s23, s{sW}, 11", f"s_lshl_b32 s31, s{sW}, 10", f"s_add_u32 s31, s31, {XS}", f"s_mov_b32 s32, {(8+self.FS)*16384}")
        for k in range(3):
            a("s_mov_b32 m0, s31", "s_add_u32 s31, s31, 4096", f"buffer_load_dwordx4 v{vT+3}, s[{sWS}:{sWS+3}], s23 offen{SC} lds",
              "s_add_u32 s23, s23, 8192")
        yld()
        for q in range(5): a(f"v_accvgpr_read_b32 v{FV[q]}, a{248+q}")
        for q in range(1, 4): a(f"v_subrev_u32 v{FV[q]}, {q*1024}, v{FV[q]}")
        a("s_mov_b32 s52, s60", "s_mov_b32 s53, s61", "s_mov_b32 s33, s35", "s_movk_i32 s6, 160", "s_mov_b32 s9, 0",
          f"v_and_b32 v{vT+1}, 7, v{vL}", f"v_lshlrev_b32 v15, 6, v{vT+1}", f"v_lshrrev_b32 v{vT+1}, 4, v{vL}", f"v_lshl_add_u32 v15, v{vT+1}, 4, v15",
          f"v_and_b32 v{vT+1}, 8, v{vL}", f"v_lshl_add_u32 v15, v{vT+1}, 27, v15")
        yld()
        a(f"s_lshl_b32 s23, s{sW}, 9", f"v_add_u32 v{vT}, s23, v10", "s_mov_b32 s9, -1", f"ds_write_b128 v{vT}, {vr(G,4)}")
        yld()
        GU = 236
        def dreads():
            a("s_waitcnt vmcnt(4)")
            for cb in range(5):
                for t in range(2): a(f"ds_read_b64_tr_b16 {ar(FW+4*cb+2*t,2)}, v6 offset:{t*2560+cb*32}")
        def dmm():
            a("s_waitcnt lgkmcnt(0)")
            for cb in range(5): a(f"{MF} {vr(Y+4*cb,4)}, {ar(FW+4*cb,4)}, {ar(232,4)}, 0")
            a("s_nop 3")
            for cb in range(5): a(f"buffer_store_dwordx4 {vr(Y+4*cb,4)}, v15, s[{sWS}:{sWS+3}], s10 offen offset:{cb*512}{SC}")
            a("s_add_u32 s10, s10, 2560")
        for k in range(4): a(f"ds_read_b128 {vr(GU+4*k,4)}, v10 offset:{k*512}")
        dreads()
        a("v_subrev_u32 v10, 10240, v10", "s_mov_b32 s8, 0", "s_waitcnt lgkmcnt(10)")
        for k in range(8):
            a(f"v_cvt_pk_bf16_f32 v{GU+k}, v{GU+k}, v{GU+8+k}")
        for k in range(8): a(f"v_lshlrev_b32 v{GU+8+k}, 16, v{GU+k}")
        for k in range(8): a(f"v_mul_f32 v{vT+k}, 0xbfb8aa3b, v{GU+8+k}")
        for k in range(8): a(f"v_exp_f32 v{vT+k}, v{vT+k}")
        for k in range(8): a(f"v_add_f32 v{vT+k}, 1.0, v{vT+k}")
        for k in range(8): a(f"v_rcp_f32 v{vT+k}, v{vT+k}")
        for k in range(8): a(f"v_and_b32 v{GU+k}, 0xffff0000, v{GU+k}")
        for k in range(4): a(f"v_pk_mul_f32 {vr(GU+8+2*k,2)}, {vr(GU+8+2*k,2)}, {vr(vT+2*k,2)}")
        for k in range(4): a(f"v_cvt_pk_bf16_f32 v{vT+k}, v{GU+8+2*k}, v{GU+9+2*k}")
        for k in range(4): a(f"v_lshlrev_b32 v{GU+8+2*k}, 16, v{vT+k}", f"v_and_b32 v{GU+9+2*k}, 0xffff0000, v{vT+k}")
        for k in range(4): a(f"v_pk_mul_f32 {vr(GU+2*k,2)}, {vr(GU+2*k,2)}, {vr(GU+8+2*k,2)}")
        for k in range(4): a(f"v_cvt_pk_bf16_f32 v{vT+k}, v{GU+2*k}, v{GU+2*k+1}")
        for k in range(4): a(f"v_accvgpr_write_b32 a{232+k}, v{vT+k}")
        a("s_nop 0")
        dmm()
        yld()
        dreads()
        dmm()
        yld()
        a(self.flag_store(self.yf_addr(23), "s_waitcnt vmcnt(8)"))
        a.label(f"{name}_coW")
        waddr = [f"s_lshl_b32 s23, s{sI}, 1", "s_and_b32 s31, s2, 1", "s_add_u32 s23, s23, s31", "s_lshl_b32 s23, s23, 2", f"s_add_u32 s23, s23, s{sW}",
                 f"s_mul_i32 s13, s23, {16*5120}", f"s_add_u32 s13, s13, {WOF}",
                 "s_lshl_b32 s23, s23, 11", f"s_add_u32 s23, s23, {WF}", f"v_and_b32 v9, 15, v{vL}", "v_lshl_add_u32 v9, v9, 7, s23",
                 "s_and_b32 s60, s2, 7", "s_lshl_b32 s60, s60, 1", "s_and_b32 s23, s2, 16", "s_add_u32 s60, s60, s23", "s_bfe_u32 s23, s2, 0x10003", "s_add_u32 s60, s60, s23"]
        a("s_mov_b32 s12, 1", "s_mov_b32 s9, -1", "s_cmp_lg_u32 s11, 0", "s_cselect_b32 s32, s15, -1")
        yld()
        a(waddr,
          f"v_and_b32 v10, 15, v{vL}", "v_lshlrev_b32 v10, 2, v10", f"v_add_u32 v10, {SEL}, v10",
          f"buffer_load_dword v8, v9, s[{sWS}:{sWS+3}], 0 offen{SC}", f"buffer_load_dword v15, v10, s[{sWS}:{sWS+3}], 0 offen{SC}")
        a("s_load_dwordx2 s[52:53], s[0:1], 0")
        if os.environ.get("CT3", "0") == "1":
            a("s_getpc_b64 s[4:5]", f"{name}_pc3:", f"s_sub_u32 s4, s4, {name}_pc3-{name}_chain", "s_subb_u32 s5, s5, 0", f"s_and_b32 s23, s{sH}, 3",
              "s_lshl_b32 s23, s23, 2", f"s_add_u32 s23, s23, s{sW}", "s_lshl_b32 s23, s23, 11", f"s_min_u32 s23, s23, {name}_end-{name}_chain-2048",
              f"v_and_b32 v14, 15, v{vL}", "v_lshl_add_u32 v14, v14, 7, s23", "global_load_dword v14, v14, s[4:5]")
        self.ctx_epi(a, 0, [32, 44, 96, 108])
        vXo, vLa, RS = 248, 251, 336
        a("s_lshl_b32 s33, s60, 6", f"s_mul_i32 s35, s{sI}, 160", f"s_mul_i32 s14, s{sI}, 2560", f"s_mov_b32 s54, {2048*1280}", "s_mov_b32 s55, 0x20000")
        for k in range(3):
            a(f"v_add_u32 v{vT}, {256*k}, v0", f"v_mul_u32_u24 v{vT+1}, 6554, v{vT}", f"v_lshrrev_b32 v{vT+1}, 16, v{vT+1}",
              f"v_mul_u32_u24 v{vT+2}, 10, v{vT+1}", f"v_sub_u32 v{vT+2}, v{vT}, v{vT+2}",
              f"v_mul_u32_u24 v{vLa+k}, {RS}, v{vT+1}", f"v_lshl_add_u32 v{vLa+k}, v{vT+2}, 5, v{vLa+k}", f"v_add_u32 v{vT+1}, s33, v{vT+1}",
              f"v_mul_u32_u24 v{vXo+k}, 1280, v{vT+1}", f"v_lshl_add_u32 v{vXo+k}, v{vT+2}, 4, v{vXo+k}", f"v_add_u32 v{vXo+k}, s35, v{vXo+k}",
              f"v_lshrrev_b32 v{vT+3}, 4, v{vT+1}", f"v_mul_u32_u24 v{vT+3}, 20480, v{vT+3}", f"v_and_b32 v{vT+1}, 15, v{vT+1}",
              f"v_lshl_add_u32 v{vT+3}, v{vT+1}, 4, v{vT+3}", f"v_lshl_add_u32 v{vT+8+k}, v{vT+2}, 8, v{vT+3}")
        a("v_cmp_gt_u32 vcc, 128, v0", f"v_mov_b32 v{vT}, {BIG}", f"v_mov_b32 v{vT+1}, 0", "v_lshlrev_b32 v6, 4, v0",
          f"v_cndmask_b32 v{vXo+2}, v{vT}, v{vXo+2}, vcc", f"v_cndmask_b32 v{vT+10}, v{vT}, v{vT+10}, vcc", f"v_cndmask_b32 v{vLa+2}, v{vT+1}, v{vLa+2}, vcc",
          f"v_cndmask_b32 v6, v{vT}, v6, vcc", f"s_lshl_b32 s23, s{sW}, 10", f"s_add_u32 s23, s23, {XS}", "s_waitcnt vmcnt(8) lgkmcnt(0)")
        for k in range(3):
            a(f"s_add_u32 m0, s34, {k*1024}", "s_nop 0", f"buffer_load_dwordx4 v{vXo+k}, s[52:55], 0 offen lds",
              f"s_add_u32 m0, s34, {(3+k)*1024}" if k < 2 else "s_mov_b32 m0, s23", "s_nop 0", f"buffer_load_dwordx4 v{vT+8+k}, s[{sWS}:{sWS+3}], s14 offen{SC} lds")
        a(f"s_mov_b32 s28, s{sK+2}", "s_add_u32 s30, s28, 65536", f"s_lshl_b32 s23, s{sW}, 12", "s_add_u32 s23, s23, s28",
          f"s_add_u32 s31, s13, {self.FL*1024}", "s_sub_u32 s31, s31, s23", "s_add_u32 s4, s18, s31", "s_addc_u32 s5, s19, 0",
          "s_add_u32 s6, s4, 4096", "s_addc_u32 s7, s5, 0")
        self.poll_check(a, "wof", 8, 9, sWS, ["v_cmp_eq_u32 vcc, 0, v8"])
        self.poll_check(a, "sel4", 15, 10, sWS, ["v_cmp_eq_u32 vcc, 0, v15"])
        a("s_lshl_b32 s31, s60, 6", "s_add_u32 s31, s31, 1", f"v_subrev_u32 v{vT}, s31, v15", f"v_cmp_gt_u32 vcc, 64, v{vT}",
          f"s_cmp_lt_u32 s{sW}, 2", "s_cselect_b32 s23, 0xff, 0", "s_and_b32 s10, vcc_lo, s23",
          "s_sub_u32 s23, s10, 1", "s_and_b32 s23, s23, s10", f"s_cmp_eq_u32 s{sW}, 1", "s_cselect_b32 s10, s23, s10",
          "s_cmp_eq_u32 s10, 0", f"s_cbranch_scc1 {name}_coEnd")
        a(f"v_min_u32 v11, {FFN1-FFN0-1}, v{vL}", f"s_lshr_b32 s23, s{sI}, 1", "s_lshl_b32 s23, s23, 13", f"s_add_u32 s23, s23, {YF}",
          "v_lshl_add_u32 v11, v11, 7, s23", f"buffer_load_dword v14, v11, s[{sWS}:{sWS+3}], 0 offen{SC}")
        YQ = list(range(64, 96, 4)) + list(range(128, 160, 4)) + [176, 180]
        AC = YQ[0]
        a(f"v_mul_u32_u24 v{vT}, 3277, v{vL}", f"v_lshrrev_b32 v{vT}, 16, v{vT}", f"v_mul_u32_u24 v8, 20, v{vT}",
          f"v_sub_u32 v8, v{vL}, v8", "v_lshlrev_b32 v8, 4, v8",
          f"v_mul_u32_u24 v9, {18*20480}, v{vT}", f"v_lshrrev_b32 v{vT+1}, 6, v8", f"v_mul_u32_u24 v{vT+1}, 448, v{vT+1}", f"v_add3_u32 v9, v9, v8, v{vT+1}",
          f"v_cmp_gt_u32 vcc, 3, v{vT}", f"v_mov_b32 v{vT+3}, {BIG}", "s_nop 0", f"v_cndmask_b32 v9, v{vT+3}, v9, vcc")
        a("s_mov_b32 s12, 2", "s_mov_b32 s32, -1", "s_mov_b32 s11, 0")
        yld()
        self.poll_check(a, "yf", 14, 11, sWS, ["v_cmp_eq_u32 vcc, 0, v14"])
        a.label(f"{name}_coY")
        a("s_ff1_i32_b32 s33, s10", "s_bitset0_b32 s10, s33", "s_sub_u32 s23, s10, 1", "s_and_b32 s10, s10, s23",
          "s_lshl_b32 s14, s33, 6", f"s_mul_i32 s23, s{sI}, 2560", "s_add_u32 s14, s14, s23", f"s_add_u32 s14, s14, {YP}")
        for q in range(18):
            a(f"buffer_load_dwordx4 {vr(YQ[q],4)}, v9, s[{sWS}:{sWS+3}], s14 offen{SC}", "s_add_u32 s14, s14, 20480")
        a(f"s_lshl_b32 s14, s{sW}, 10", f"s_add_u32 s14, s14, {SCR}", f"v_add_u32 v{vT+3}, s14, v{vL16}", "s_add_u32 s23, s33, 8",
          "v_readlane_b32 s35, v15, s23", "s_waitcnt vmcnt(0)")
        for q in range(1, 18):
            for e in range(0, 4, 2): a(f"v_pk_add_f32 {vr(AC+e,2)}, {vr(AC+e,2)}, {vr(YQ[q]+e,2)}")
        a(f"ds_write_b128 v{vT+3}, {vr(AC,4)}", f"v_add_u32 v{vT+3}, s14, v8", "s_and_b32 s35, s35, 0xffff0000", "s_waitcnt lgkmcnt(0)",
          f"ds_read_b128 {vr(AC,4)}, v{vT+3}", f"ds_read_b128 {vr(AC+4,4)}, v{vT+3} offset:320", f"ds_read_b128 {vr(AC+8,4)}, v{vT+3} offset:640",
          "s_mul_i32 s14, s33, 320", f"s_add_u32 s14, s14, {UPD}", f"v_add_u32 v{vT+3}, s14, v8", "s_waitcnt lgkmcnt(0)")
        for e in range(4):
            a(f"v_add_f32 v{AC+e}, v{AC+e}, v{AC+4+e}", f"v_add_f32 v{AC+e}, v{AC+e}, v{AC+8+e}")
            bf16r(a, AC + e)
            a(f"v_mul_f32 v{AC+e}, s35, v{AC+e}")
            bf16r(a, AC + e)
        a(f"ds_write_b128 v{vT+3}, {vr(AC,4)}", "s_waitcnt lgkmcnt(0)", "s_cmp_lg_u32 s10, 0", f"s_cbranch_scc1 {name}_coY")
        a.label(f"{name}_coEnd")
        a("s_mov_b32 s12, 3", "s_mov_b32 s32, -1")
        rec()
        a("s_setpc_b64 s[38:39]")
        self.tail += a.lines

    def phase3(self):
        a = self.a; name = self.name
        a(self.period(1, ["q", "q"], c0=True))
        a("s_nop 7", f"s_cmp_lg_u32 s{sCnt}, 0", f"s_cbranch_scc1 {name}_nomask0")
        a(mask_ops(0, 0))
        a.label(f"{name}_nomask0")
        for X in range(2):
            for qb in range(2):
                s0 = S + 32 * X + 8 * qb; d = vT + 2 * X + qb
                a(f"v_max3_f32 v{d}, v{s0}, v{s0+1}, v{s0+2}", f"v_max3_f32 v{d}, v{d}, v{s0+3}, v{s0+4}",
                  f"v_max3_f32 v{d}, v{d}, v{s0+5}, v{s0+6}", f"v_max_f32 v{d}, v{d}, v{s0+7}")
        for sw in ("v_permlane16_swap_b32", "v_permlane32_swap_b32"):
            for k in range(4): a(f"v_mov_b32 v{vT+4+k}, v{vT+k}")
            a("s_nop 0")
            for k in range(4): a(f"{sw} v{vT+k}, v{vT+4+k}")
            for k in range(4): a(f"v_max_f32 v{vT+k}, v{vT+k}, v{vT+4+k}")
        for X in range(2):
            for qb in range(2):
                for r in range(4): a(f"v_sub_f32 v{NM+8*X+4*qb+r}, 0, v{vT+2*X+qb}")
        for X in range(2):
            for qb in range(2):
                s0 = S + 32 * X + 8 * qb
                for r in range(8): a(f"v_sub_f32 v{s0+r}, v{s0+r}, v{vT+2*X+qb}")
        a(self.period(0, ["qs", "qs"]))
        a(f"buffer_load_dword v14, v13, s[{sWS}:{sWS+3}], 0 offen{SC}")
        stamp(a, 8)
        a(self.cyc(50))
        F = "qsv"
        a(f"s_cmp_eq_u32 s{sCnt}, 0", f"s_cbranch_scc1 {name}_AV", f"s_sub_u32 s{sCnt}, s{sCnt}, 1",
          f"s_cmp_eq_u32 s{sCnt}, 0", f"s_cbranch_scc1 {name}_Aexit")
        a(".p2align 6")
        a.label(f"{name}_DD")
        a(self.period(1, [F, F], bar=12, hook=self.hook()))
        a.label(f"{name}_DDe")
        a(self.period(0, [F, F], tail_sc=[f"s_sub_u32 s{sCnt}, s{sCnt}, 1", f"s_cmp_gt_u32 s{sCnt}, s8"], hook=self.hook(f"s_cmp_ge_u32 s{sKo}, s9")))
        a(f"s_cbranch_scc1 {name}_DD", "s_cmp_lg_u32 s8, 0", f"s_cbranch_scc1 {name}_DDF")
        ex = [([f"s_add_u32 m0, s34, {(q//4)*4096}"] if q % 4 == 0 else [],
               f"buffer_load_dwordx4 v{self.FV[q]}, s[52:55], s33 offen offset:{(q%4)*1024} lds") for q in range(5)]
        hk = self.hook()
        k_ = self.nhook - 1
        self.tail[-3] = f"s_add_u32 s38, s38, {name}_hb{k_}-{name}_hp{k_}"; self.tail[-2] = "s_addc_u32 s39, s39, 0"
        G, FW, FX = 232, 192, 212
        rd = []
        for q in range(5):
            rd += [f"ds_read_b64_tr_b16 {ar(FW+4*q+2*t,2)}, v9 offset:{q*1024+t*128}" for t in range(2)] + [f"ds_read_b128 {ar(FX+4*q,4)}, v10 offset:{q*512}"]
        rg = [3, 4, 5, 5, 7, 7, 8, 9, 9, 10, 10, 11, 11, 14, 14]
        xpost = [(20 + k, f"v_and_b32 v{G+k}, s4, v{G+k}") for k in range(4)] + [(18, "v_add_u32 v10, 2560, v10")]
        xpost += [(34 + 5 * q, f"{MF} {vr(G,4)}, {ar(FW+4*q,4)}, {ar(FX+4*q,4)}, {vr(G,4)}") for q in range(5)]
        xsc = [(33, "s_mov_b32 s4, s5"), (34, "s_mov_b32 s5, -1"), (57, "s_add_u32 s33, s33, s6")]
        self.tail += [f"{name}_DDF:"] + self.period(1, [F, F], bar=4, hook=hk, extra=ex, dgaps=[6, 13, 19, 25], egaps=[31, 37, 43, 49, 55],
                                                    xmem=list(zip(rg, rd)), xsc=xsc, xpost=xpost) + [f"s_branch {name}_DDe"]
        self.coroutine()
        a.label(f"{name}_Aexit")
        a(self.cyc(51))
        a(f"s_bitcmp1_b32 s{sW}, 0", f"s_cbranch_scc1 {name}_Aodd")
        a(self.period(1, [F, F], bar=12))
        a(self.period(0, ["smv", F]))
        a.label(f"{name}_AV")
        a(self.period(1, ["v", F], bar=12))
        a(self.period(0, ["", F]))
        a(f"s_branch {name}_SSpre")
        a.label(f"{name}_Aodd")
        a(self.period(1, ["smv", F], bar=12))
        a(self.period(0, ["v", F]))
        a.label(f"{name}_SSpre")
        a(self.cyc(52))
        a("s_mov_b32 s11, 1", "s_cmp_lg_u32 s12, 0", "s_cselect_b32 s32, s15, s32")
        U, KY = self.U, self.KY
        def wx(fs):
            out = []
            for k, e in enumerate(fs):
                f = self.EF[59 - e]
                pre = [f"s_add_u32 s14, s13, {(f//4)*4096}"] if (k == 0 or f % 4 == 3) else []
                out.append((pre, self.wl(f)))
            return out
        def drain(lv):
            h = self.hook(f"s_cmp_lt_u32 s12, {lv}")
            a(h[1][1], h[0], h[1][0])
        a(f"s_cmp_ge_u32 s{sW}, 2", f"s_cselect_b32 s23, {U}, 0", f"s_cmp_le_u32 s{sNSS}, s23", f"s_cbranch_scc1 {name}_chain")
        a(".p2align 6")
        a.label(f"{name}_SS")
        a(self.period(1, ["", F], bar=12, hook=self.hook()))
        a(self.period(0, ["", F], tail_sc=[f"s_sub_u32 s{sNSS}, s{sNSS}, 1", f"s_cmp_gt_u32 s{sNSS}, {U}"]))
        a(f"s_cbranch_scc1 {name}_SS")
        a.label(f"{name}_chain")
        if os.environ.get("PRIO", "1") == "1": a("s_setprio 3")
        a(self.cyc(53))
        drain(2)
        a(f"s_cmp_eq_u32 s{sNSS}, {U}", f"s_cbranch_scc0 {name}_disp")
        t = Asm()
        t.label(f"{name}_disp")
        for k in range(U - 1, 0, -1): t(f"s_cmp_eq_u32 s{sNSS}, {k}", f"s_cbranch_scc1 {name}_SSW{k}")
        t(f"s_branch {name}_Bexit")
        self.tail += t.lines
        for k in range(U, 0, -1):
            a.label(f"{name}_SSW{k}")
            f0 = sum(self.CB[:U-k]); nb = self.CB[U-k]; h1 = nb // 2
            a(self.period(1, ["", F], bar=(8 if k == 1 else 12), extra=wx(range(f0, f0 + h1)), redir=(k <= 3)))
            a(self.period(0, ["", F], extra=wx(range(f0 + h1, f0 + nb)), redir=(k <= 3)))
        a.label(f"{name}_Bexit")
        a(self.cyc(54))
        f0 = U * 6
        a(f"s_bitcmp1_b32 s{sW}, 0", f"s_cbranch_scc1 {name}_Bodd")
        a(self.period(1, ["", F], bar=8, dma=False, kread=False, extra=wx(range(f0, f0 + 6))))
        a(self.period(0, ["", "smv"], dma=False, kread=False, extra=wx(range(f0 + 6, f0 + 10))))
        a(self.period(1, ["", "v"], bar=10, dma=False, kread=False, extra=wx(range(f0 + 10, f0 + 12)), condbar=f"{name}_nb0"))
        a(f"s_branch {name}_Bdone")
        a.label(f"{name}_Bodd")
        a(self.period(1, ["", "smv"], bar=8, dma=False, kread=False, extra=wx(range(f0, f0 + 7)), condbar=f"{name}_nb1"))
        a(self.period(0, ["", "v"], dma=False, kread=False, extra=wx(range(f0 + 7, f0 + 12))))
        self.wx = wx
        a.label(f"{name}_Bdone")
        a.label(f"{name}_epi")
        stamp(a, 9)
        a(self.cyc(55))
        self.ctx_epi(a, 1, [64, 76, 128, 140])

    def ctx_epi(self, a, X, Ts):
        L = LS + 2 * X
        for sw in ("v_permlane16_swap_b32", "v_permlane32_swap_b32"):
            for k in range(2): a(f"v_mov_b32 v{vT+4+k}, v{L+k}")
            a("s_nop 1")
            for k in range(2): a(f"{sw} v{L+k}, v{vT+4+k}")
            for k in range(2): a(f"v_add_f32 v{L+k}, v{L+k}, v{vT+4+k}")
        for k in range(2): a(f"v_rcp_f32 v{vT+2*k}, v{L+k}")
        if X == 0: a(f"s_lshl_b32 s23, s{sI}, 2")
        else: a(f"s_sub_u32 s23, 15, s{sI}", "s_lshl_b32 s23, s23, 2")
        for k in range(2): a(f"v_mov_b32 v{vT+2*k+1}, v{vT+2*k}")
        a(f"s_add_u32 s23, s23, s{sW}", "s_lshl_b32 s23, s23, 18", f"s_lshl_b32 s31, s{sH}, 12",
          f"s_add_u32 s31, s31, {CTX}", f"s_add_u32 s{sXo}, s23, s31", f"s_add_u32 s{sXo+1}, s{sXo}, {1<<17}")
        k = 0
        for qb in range(2):
            for t in range(4):
                T = Ts[k % len(Ts)]; k += 1
                f = vT + 2 * qb
                for hh in range(2):
                    for r in range(4): a(f"v_accvgpr_read_b32 v{T+4+4*hh+r}, a{O+64*X+8*(2*t+hh)+4*qb+r}")
                for r in range(4): a(f"v_pk_mul_f32 {vr(T+4+2*r,2)}, {vr(T+4+2*r,2)}, {vr(f,2)}")
                for r in range(4): a(f"v_cvt_pk_bf16_f32 v{T+r}, v{T+4+2*r}, v{T+5+2*r}")
                a(f"buffer_store_dwordx4 {vr(T,4)}, v{vL16}, s[{sWS}:{sWS+3}], s{sXo+qb} offen offset:{t*1024}{SC}")

    LF = [32, 33, 34, 35, 36, 37, 38, 39, 48, 49, 50, 51, 52, 53, 54, 55, 64, 65, 66, 67]
    EF = [f for f in range(80) if f not in (32, 33, 34, 35, 36, 37, 38, 39, 48, 49, 50, 51, 52, 53, 54, 55, 64, 65, 66, 67)]
    _EQ = ([vr(b, 4) for b in range(32, 64, 4)] + [vr(b, 4) for b in range(96, 128, 4)] + [vr(b, 4) for b in range(160, 176, 4)]
           + [vr(b, 4) for b in range(232, 248, 4)] + [vr(192, 4), vr(196, 4), vr(208, 4), vr(212, 4)]
           + [ar(b, 4) for b in range(0, 64, 4)] + [ar(b, 4) for b in range(192, 256, 4)])
    _LQ = [vr(b, 4) for b in range(64, 96, 4)] + [vr(b, 4) for b in range(128, 160, 4)] + [vr(b, 4) for b in range(176, 192, 4)]
    WQ = dict(list(zip(EF, _EQ)) + list(zip(LF, _LQ)))
    def wl(self, f):
        return f"buffer_load_dwordx4 {self.WQ[f]}, v{vL16}, s[{sWS}:{sWS+3}], s14 offen offset:{(f%4)*1024}{SC}"

    def phase4(self):
        a = self.a; name = self.name
        RS = 336; PART = 64 * RS
        ACq = [ar(b, 4) for b in range(64, 144, 4)]
        CRq = [ar(b, 4) for b in range(144, 192, 4)] + [vr(b, 4) for b in range(216, 232, 4)]
        vXo, vLa, vXn, vUp = 248, 251, 200, 203
        sX, sO = 44, 48
        sCo = 64
        sMT, sNG = 60, sI
        def cl(ks, qb): return f"buffer_load_dwordx4 {CRq[4*(ks%4)+qb]}, v{vL16}, s[{sWS}:{sWS+3}], s{sCo+qb} offen offset:{(ks%4)*1024}{SC}"
        def cbase(src): return [f"s_add_u32 s{sCo}, {src}"] + [f"s_add_u32 s{sCo+qb}, s{sCo}, {qb<<17}" for qb in range(1, 4)]
        a("s_load_dwordx2 s[16:17], s[0:1], 88")
        a(f"v_mov_b32 v{vT+14}, {BIG}", f"v_writelane_b32 v{vT+14}, s{sCFA}, 0", f"v_writelane_b32 v{vT+14}, s{sCFB}, 1")
        a("s_and_b32 s23, s2, 1", "s_lshl_b32 s23, s23, 2", f"s_add_u32 s61, s23, s{sW}", "s_lshl_b32 s23, s61, 14", f"s_add_u32 s23, s23, {CTX}",
          f"s_lshl_b32 s63, s{sMT}, 19", "s_add_u32 s63, s63, s23", f"s_xor_b32 s62, s63, {2<<19}", cbase("s62, 0"))
        a(f"v_bfe_u32 v12, v{vL}, 2, 1", f"v_mul_u32_u24 v12, {CS}, v12", f"v_and_b32 v13, 3, v{vL}", f"v_lshl_add_u32 v12, v13, {CH}, v12",
          f"s_lshl_b32 s31, s61, {CH+2}", f"s_add_u32 s31, s31, {CF}", f"s_mul_i32 s23, s{sMT}, {2*CS}", "s_add_u32 s23, s23, s31", "v_add_u32 v10, s23, v12",
          f"s_xor_b32 s23, s{sMT}, 2", f"s_mul_i32 s23, s23, {2*CS}", "s_add_u32 s23, s23, s31", "v_add_u32 v12, s23, v12")
        a([f"v_mov_b32 v{vT+4+i}, 0" for i in range(4)], f"v_add_u32 v{vT}, {UPD+2560}, v{vL16}", f"ds_write_b128 v{vT}, {vr(vT+4,4)}")
        a("s_waitcnt vmcnt(0)", f"buffer_store_dword v{vNI}, v{vT+14}, s[{sWS}:{sWS+3}], 0 offen{SC}", "s_setprio 0")
        stamp(a, 10)
        a(self.cyc(60))
        a(self.hook("s_cmp_lt_u32 s12, 3"))
        a(f"s_cmp_lt_u32 s{sNSS}, {self.U}", f"s_cbranch_scc1 {name}_left")
        a.label(f"{name}_leftb")
        t = Asm()
        t.label(f"{name}_left")
        for k in range(self.U, 0, -1):
            if k < self.U: t(f"s_cmp_ge_u32 s{sNSS}, {k}", f"s_cbranch_scc1 {name}_leftb")
            for (pre, l) in self.wx(range(sum(self.CB[:self.U-k]), sum(self.CB[:self.U-k+1]))): t(pre, l)
        t(f"s_branch {name}_leftb")
        self.tail += t.lines
        a("s_lshl_b32 s34, s28, 1", f"s_and_b32 s23, s{sW}, 1", "s_lshl_b32 s23, s23, 12", f"s_cmp_lt_u32 s{sW}, 2", f"s_cselect_b32 s33, {131072-24576}, 0",
          "s_add_u32 s33, s33, s23", "s_add_u32 s33, s33, s34", "s_and_b32 s33, s33, 0x1ffff",
          f"s_lshl_b32 s23, s{sW}, 12", f"s_add_u32 s34, s34, {32768+16384}", "s_add_u32 s34, s34, s23", "s_and_b32 s34, s34, 0x1ffff",
          "s_add_u32 s23, s23, s28", f"s_cmp_lt_u32 s{sNSS}, 3",
          f"s_cselect_b32 s{sKo}, s23, s{sKo}", f"s_cselect_b32 s{sVo}, s23, s{sVo}", f"s_cselect_b32 s{sKm}, s33, s{sKm}", f"s_cselect_b32 s{sVm}, s34, s{sVm}",
          f"s_mov_b64 s[{sK}:{sK+1}], s[4:5]", f"s_mov_b64 s[{sV}:{sV+1}], s[6:7]", f"s_mov_b32 s{sK+2}, s30", f"s_mov_b32 s{sV+2}, s30")
        def piece(srdn, so, sm):
            return [f"s_mov_b32 m0, s{sm}", f"s_add_u32 s{sm}, s{sm}, 32768", f"s_and_b32 s{sm}, s{sm}, 0x1ffff"] + \
                   [f"buffer_load_dwordx4 v{vL16}, s[{srdn}:{srdn+3}], s{so} offen offset:{q*1024}{SC} lds" for q in range(4)] + [f"s_add_u32 s{so}, s{so}, 16384"]
        for tag, (srdn, so, sm), lim in (("pk", (sK, sKo, sKm), 3), ("pv", (sV, sVo, sVm), 2)):
            a(f"s_add_u32 s23, s28, {lim*16384}")
            a.label(f"{name}_{tag}")
            a(f"s_cmp_ge_u32 s{so}, s23", f"s_cbranch_scc1 {name}_{tag}d", piece(srdn, so, sm), f"s_branch {name}_{tag}")
            a.label(f"{name}_{tag}d")
        a("s_waitcnt lgkmcnt(0)", "s_barrier")
        a(f"buffer_load_dword v13, v12, s[{sWS}:{sWS+3}], 0 offen{SC}")
        a(
          "s_mul_i32 s28, s2, 24576", f"s_add_u32 s28, s28, {PX}", "s_xor_b32 s23, s2, 1", "s_mul_i32 s29, s23, 24576", f"s_add_u32 s29, s29, {PX}",
          "s_lshl_b32 s30, s2, 2", f"s_add_u32 s30, s30, s{sW}", "s_lshl_b32 s30, s30, 7", f"s_add_u32 s30, s30, {XFL}", "s_xor_b32 s35, s30, 512",
          "v_lshlrev_b32 v9, 4, v0", "v_mov_b32 v8, s35", f"s_lshl_b32 s25, s{sMT}, 6", "s_add_u32 s25, s25, 1",
          f"s_mul_i32 s26, s{sW}, 5120", f"s_add_u32 s26, s26, {SPARE}", f"s_mul_i32 s27, s{sW}, 1024", f"s_add_u32 s27, s27, {XS}")
        srd(a, sO, "s16", "s17", 2048 * 1280)
        a("s_waitcnt vmcnt(0)")
        a(stampv(20), self.cyc(61))
        self.poll_check(a, "ctx", 13, 12, sWS, ["v_cmp_eq_u32 vcc, 0, v13"])
        a(stampv(21))
        for ks in range(4): a([cl(ks, qb) for qb in range(4)])
        for kind, sreg, fs in (("K", 33, (32, 48, 64)), ("V", 34, (36, 52))):
            for f0 in fs:
                a(f"v_add_u32 v11, s{sreg}, v{vL16}", f"s_add_u32 s{sreg}, s{sreg}, 32768", f"s_and_b32 s{sreg}, s{sreg}, 0x1ffff",
                  [f"ds_read_b128 {self.WQ[f0+q]}, v11 offset:{q*1024}" for q in range(4)])
        a(cbase(f"s{sCo}, 4096"), "s_waitcnt vmcnt(14) lgkmcnt(0)")
        a(stampv(22), self.cyc(58))
        tm = [f"v_add_u32 v{vXn}, s26, v{vL16}", f"v_add_u32 v{vXn+1}, s27, v{vL16}"]
        for k in range(3):
            tm += [f"v_add_u32 v{vT}, {256*k}, v0", f"v_mul_u32_u24 v{vT+1}, 6554, v{vT}", f"v_lshrrev_b32 v{vT+1}, 16, v{vT+1}",
              f"v_mul_u32_u24 v{vT+2}, 10, v{vT+1}", f"v_sub_u32 v{vT+2}, v{vT}, v{vT+2}", f"v_lshlrev_b32 v{vUp+k}, 5, v{vT+2}",
              f"v_add_u32 v{vT+8+k}, s25, v{vT+1}", f"v_mov_b32 v{vT+11+k}, 8"]
        tm += [f"v_readlane_b32 s{68+k}, v15, {k}" for k in range(8)]
        for k in range(8):
            tm += [f"v_cmp_eq_u32 s[{52+2*t_}:{53+2*t_}], s{68+k}, v{vT+8+t_}" for t_ in range(3)]
            tm += [f"v_cndmask_b32 v{vT+11+t_}, v{vT+11+t_}, {k}, s[{52+2*t_}:{53+2*t_}]" for t_ in range(3)]
        for t_ in range(3): tm += [f"v_mul_u32_u24 v{vT+11+t_}, 320, v{vT+11+t_}", f"v_add_u32 v{vUp+t_}, v{vUp+t_}, v{vT+11+t_}", f"v_add_u32 v{vUp+t_}, {UPD}, v{vUp+t_}"]
        tm += [f"v_and_b32 v{vT}, 15, v{vL}", f"v_mul_u32_u24 v{vT}, {RS}, v{vT}", f"v_lshrrev_b32 v{vT+1}, 4, v{vL}", f"v_lshl_add_u32 v{vT}, v{vT+1}, 4, v{vT}",
               f"v_add_u32 v{vT}, s24, v{vT}"]
        pw = lambda q: f"ds_write_b128 v{vT}, {ACq[(q%5)*4+q//5]} offset:{(q//5)*16*RS+(q%5)*64}"
        pr = lambda k, b: [f"ds_read_b128 {vr(b+8*p+4*hh,4)}, v{vLa+k} offset:{p*PART+16*hh}" for p in range(4) for hh in range(2)]
        MB = [32, 96, 32]; MR = [18, 20, 21]
        XQ = [160, 164, 168, 172, 232, 236]; XF = [96, 104, 112]; OF = [120, 192, 208]; PP = [240, 176, 184]
        vm = VM()
        for ks in range(4):
            for qb in range(4): vm.issue(f"C{ks}_{qb}")
        for ks in range(32):
            mf = [f"{MF} {ACq[cb*4+qb]}, {self.WQ[(ks%16)*5+cb]}, {CRq[4*(ks%4)+qb]}, {ACq[cb*4+qb] if ks % 16 else 0}" for qb in range(4) for cb in range(5)]
            sc = {g: [] for g in range(20)}; mem = {g: [] for g in range(20)}; va = {g: [] for g in range(20)}
            tg = {g: [] for g in range(20)}; need = []; lg = ""
            if ks == 0: sc[2].append(f"s_mul_i32 s24, s{sW}, {PART}")
            if ks < 9:
                for g in (0, 1, 2, 3, 5, 6, 7, 8, 10, 11, 12, 13, 15, 16, 17, 18):
                    if tm: va[g].append(tm.pop(0))
            if ks + 4 < 32:
                for qb in range(4):
                    mem[5*qb+4].append(cl(ks, qb)); tg[5*qb+4].append(f"C{ks+4}_{qb}")
                if ks % 4 == 0 and ks > 0:
                    for q, x in enumerate(cbase("s63, 0" if ks == 12 else f"s{sCo}, 4096")): sc[[3, 5, 6, 10][q]].append(x)
            def chk(tag, vreg, voff):
                tmp = Asm(); self.poll_check(tmp, tag, vreg, voff, sWS, [f"v_cmp_eq_u32 vcc, 0, v{vreg}"])
                va[0].append(tmp.lines[0]); sc[2] += tmp.lines[1:]
            if ks == 9:
                mem[1].append(f"buffer_load_dword v13, v10, s[{sWS}:{sWS+3}], 0 offen{SC}"); tg[1].append("p2")
            if ks == 10: sc[7].append("s_barrier")
            if ks == 11: need.append("p2")
            if ks == 12: chk("ctx2", 13, 10)
            if ks in (15, 31):
                for q in range(11): mem[q+9].append(pw(q))
            if ks == 16:
                for q in range(11, 20): mem[q-11].append(pw(q))
                lg = " lgkmcnt(0)"
            if ks == 17: sc[7].append("s_barrier")
            for k in range(3):
                b = MB[k]
                if ks == MR[k]:
                    for g, x in zip((0, 1, 2, 3, 5, 6, 7, 8), pr(k, b)): mem[g].append(x)
                    lg = " lgkmcnt(0)"
                if ks == MR[k] + 1:
                    ops = []
                    for e in range(8): ops += [f"v_add_f32 v{b+e}, v{b+e}, v{b+8+e}", f"v_add_f32 v{b+16+e}, v{b+16+e}, v{b+24+e}"]
                    ops += [f"v_add_f32 v{b+e}, v{b+e}, v{b+16+e}" for e in range(8)]
                    for q, x in enumerate(ops): va[(q * 15) // 24].append(x)
                    sc[15].append(f"s_add_u32 s14, s28, {k*8192}"); sc[17].append(f"s_add_u32 s14, s28, {k*8192+4096}")
                    for hh, g in ((0, 16), (1, 18)):
                        mem[g].append(f"buffer_store_dwordx4 {vr(b+4*hh,4)}, v{9 if k < 2 else 6}, s[{sWS}:{sWS+3}], s14 offen{SC}"); tg[g].append("px")
            if ks == 23: sc[7].append("s_barrier")
            XFK = int(os.environ.get("XFK", "25"))
            if ks == XFK - 1: need.append("px")
            if ks == XFK:
                mem[1].append(f"buffer_store_dword v{vNI}, off, s[{sWS}:{sWS+3}], s30{SC}"); tg[1].append("xf")
            if ks == 24:
                for q in range(6): mem[[0, 3, 5, 6, 8, 10][q]].append(f"ds_read_b128 {vr(XQ[q],4)}, v{vXn + q//5} offset:{(q%5)*1024}")
            if ks == 25:
                for k in range(3):
                    for hh in range(2): mem[[0, 3, 5, 6, 8, 10][2*k+hh]].append(f"ds_read_b128 {vr(OF[k]+4*hh,4)}, v{vUp+k} offset:{16*hh}")
                lg = " lgkmcnt(0)"
            if 26 <= ks < 29:
                k = ks - 26
                ops = []
                for e in range(4):
                    x = XQ[k] + e; xn = XQ[3+k] + e; o = OF[k] + 2 * e; t0, t1 = vT + 2, vT + 3
                    ops += [f"v_lshlrev_b32 v{t0}, 16, v{xn}", f"v_and_b32 v{t1}, 0xffff0000, v{xn}",
                            f"v_add_f32 v{o}, v{o}, v{t0}", f"v_add_f32 v{o+1}, v{o+1}, v{t1}",
                            f"v_cvt_pk_bf16_f32 v{t0}, v{o}, v{o+1}",
                            f"v_lshlrev_b32 v{XF[k]+2*e}, 16, v{x}", f"v_and_b32 v{XF[k]+2*e+1}, 0xffff0000, v{x}",
                            f"v_lshlrev_b32 v{o}, 16, v{t0}", f"v_and_b32 v{o+1}, 0xffff0000, v{t0}"]
                for q, x in enumerate(ops): va[1 + q // 2].append(x)
            if ks == 28:
                mem[0].append(f"buffer_load_dword v13, v8, s[{sWS}:{sWS+3}], 0 offen{SC}"); tg[0].append("p3")
            if ks == 29: need.append("p3")
            if ks == 30:
                chk("px", 13, 8)
                for q in range(6):
                    sc[3+2*q].append(f"s_add_u32 s14, s29, {q*4096}")
                    mem[3+2*q].append(f"buffer_load_dwordx4 {vr(PP[q//2]+4*(q%2),4)}, v{9 if q < 4 else 6}, s[{sWS}:{sWS+3}], s14 offen{SC}"); tg[3+2*q].append("pp")
            for g in range(20):
                if g == 9: sc[g].insert(0, f"s_waitcnt vmcnt({vm.need(f'C{ks}_3')})")
                if g == 19 and ks < 31: sc[g].append(f"s_waitcnt vmcnt({vm.need(f'C{ks+1}_1', *need)}){lg}")
                for t_ in tg[g]: vm.issue(t_)
            if os.environ.get("OTR"): a("s_memtime s[98:99]", "s_waitcnt lgkmcnt(0)", f"v_writelane_b32 v7, s98, {24+ks}")
            a(weave(mf, sc, mem, va))
        assert not tm
        a(stampv(23), self.cyc(59))
        for q in range(11, 20): a(pw(q))
        a("s_waitcnt vmcnt(0) lgkmcnt(0)", "s_barrier")
        PVb = [32, 64, 128]
        for k in range(3): a(pr(k, PVb[k]))
        for k in range(3):
            a(f"s_waitcnt lgkmcnt({[15, 8, 0][k]})")
            b = PVb[k]
            for e in range(0, 8, 2):
                a(f"v_pk_add_f32 {vr(b+e,2)}, {vr(b+e,2)}, {vr(b+8+e,2)}", f"v_pk_add_f32 {vr(b+16+e,2)}, {vr(b+16+e,2)}, {vr(b+24+e,2)}")
            for e in range(0, 8, 2): a(f"v_pk_add_f32 {vr(b+e,2)}, {vr(b+e,2)}, {vr(b+16+e,2)}")
            for e in range(0, 8, 2): a(f"v_pk_add_f32 {vr(b+e,2)}, {vr(b+e,2)}, {vr(PP[k]+e,2)}")
            for src in (XF[k], OF[k]):
                for e in range(4): a(f"v_cvt_pk_bf16_f32 v{b+8+e}, v{b+2*e}, v{b+2*e+1}")
                for e in range(4): a(f"v_lshlrev_b32 v{b+2*e}, 16, v{b+8+e}", f"v_and_b32 v{b+2*e+1}, 0xffff0000, v{b+8+e}")
                for e in range(4): a(f"v_pk_add_f32 {vr(b+2*e,2)}, {vr(b+2*e,2)}, {vr(src+2*e,2)}")
            for e in range(4): a(f"v_cvt_pk_bf16_f32 v{b+12+e}, v{b+2*e}, v{b+2*e+1}")
            a(f"buffer_store_dwordx4 {vr(b+12,4)}, v{vXo+k}, s[{sO}:{sO+3}], 0 offen")

    def gen(self, with_p4=True):
        a = self.a; name = self.name
        self.tail = []; self.p4 = with_p4; self.nhook = 0
        self.phase1()
        self.phase2()
        self.phase3()
        if with_p4: self.phase4()
        stamp_flush(a, 0, sW, sWS)
        a.label(f"{name}_end")
        a("s_endpgm")
        a(self.tail)
        for (k, ss, par) in self.stubs:
            a.label(f"{name}_stub{k}")
            for X in ss: a(f"s_call_b64 s[{sRet}:{sRet+1}], {name}_rare{X}{par}")
            a(f"s_branch {name}_back{k}")
        a.label(f"{name}_codeend")
        for X in range(2):
            for par in range(2): self.rare(X, par)
            self.resc(X)
        return a
```

```python
import os
from asmlib import *
from gen_k1 import (XNF, RKEY, SEL, YP, WOF, KFO, VFO, CTX, WS_BYTES, MF, srd, bf16r, allreduce32_add,
                    stamp, stampc, stampv, stamp_init, stamp_flush, DBG)
import gen_k2 as k2
from gen_k2 import (vL, vL16, vKV, vNI, vX, vT, Q, S, P, NM, E, TS, LS, QACC, O, KF, VF, XR,
                    sW, sH, sI, sWS, sK, sV, sKm, sVm, sKo, sVo, sCnt, sNSS, sXo, sMask, sRet, sRet2, sThr,
                    xreduce, mask_ops)

LDS = 163840
FLG = 0x284000
KVF = 0x4000000
CF = 0x3A0000
CS = 4096; CH = int(os.environ.get('CH', '7'))
YF = 0x4010000
PX = 0xA00000
XFL = 0x4020000
WF = 0x4040000
SC = " sc1"
BIG = 0x40000000
SPARE = 131072
XS = SPARE + 20480
EX = SPARE + 30720
UPD = LDS - 8192
SCR = LDS - 4096
TOPWG = 255
FFN0, FFN1 = 170, 224
SPIN_MAX = 200000
sDb = 56
sCFA, sCFB, sKVa = 80, 3, 82
vWo, vWa, vCa = 8, 12, 14
vPoll, vZero, vPo = 15, 229, 8
vCo = 3

class VM:
    def __init__(self): self.ops = []
    def issue(self, tag, n=1): self.ops += [tag] * n
    def need(self, *tags):
        last = max(i for i, t in enumerate(self.ops) if t in tags)
        return min(63, len(self.ops) - 1 - last)

class Fused(k2.K2):
    SC = SC
    U = 8
    FS = int(os.environ.get('FS', '2'))
    E7 = int(os.environ.get('E7', '0'))
    NOWO = int(os.environ.get('NOWO', '32'))
    CB = eval(os.environ.get('CB', '[3,3,4,6,8,8,8,8]'))
    FL = 32
    ROT = int(os.environ.get('ROT', '0'))
    FV = [8, 11, 12, 13, 14]
    KY = 3
    def poll_check(self, a, tag, vreg, voff, srdn, cmp_lines, soff="0"):
        n = self.name
        a(cmp_lines, f"s_cbranch_vccnz {n}_{tag}_spin")
        a.label(f"{n}_{tag}_ok")
        t = Asm()
        t.label(f"{n}_{tag}_spin")
        t(f"s_mov_b32 s83, {SPIN_MAX}")
        t.label(f"{n}_{tag}_spin2")
        t(f"buffer_load_dword v{vreg}, v{voff}, s[{srdn}:{srdn+3}], {soff} offen{SC}", "s_waitcnt vmcnt(0)")
        t(cmp_lines, f"s_cbranch_vccz {n}_{tag}_ok", f"s_sleep {os.environ.get('SLP', '3')}", "s_sub_u32 s83, s83, 1", "s_cmp_lg_u32 s83, 0",
          f"s_cbranch_scc1 {n}_{tag}_spin2", f"s_branch {n}_{tag}_ok")
        self.tail += t.lines

    def phase1(self):
        a = self.a; name = self.name
        sC, sWt, sX, sQ2, sWO, sWR = 32, 36, 44, 48, 52, 68
        sM0C, sStep, sOC, sOW, sIT = 24, 25, 26, 27, 28
        FA = 32; FB = 96
        a("s_cmp_ge_u32 s2, 256", f"s_cbranch_scc1 {name}_end")
        if os.environ.get("CT0", "1") == "1":
            a("s_getpc_b64 s[62:63]", "v_and_b32 v230, 127, v0", "v_lshlrev_b32 v230, 7, v230", "global_load_dword v231, v230, s[62:63]")
        stamp_init(a)
        a("s_load_dwordx4 s[4:7], s[0:1], 0", "s_load_dwordx4 s[8:11], s[0:1], 24", "s_load_dwordx2 s[14:15], s[0:1], 56",
          "s_load_dwordx2 s[12:13], s[0:1], 40", "s_load_dwordx4 s[16:19], s[0:1], 96", "s_load_dwordx2 s[60:61], s[0:1], 16")
        a(f"v_lshrrev_b32 v{vT}, 6, v0", f"v_and_b32 v{vL}, 63, v0", f"v_readfirstlane_b32 s{sW}, v{vT}")
        a(f"s_and_b32 s{sH}, s2, 7", f"s_lshl_b32 s{sH}, s{sH}, 2", "s_lshr_b32 s23, s2, 3", "s_and_b32 s23, s23, 3",
          f"s_add_u32 s{sH}, s{sH}, s23", f"s_lshr_b32 s{sI}, s2, 5")
        XV = 160; WR = 172; F = 184
        vU, vRow, vXo, vXo3, vWro = 208, 209, 210, 211, 212
        vS, vT2, vMean, vAcc = 213, 214, 216, 218
        vTW, vTR, vKo, vO1, vO3, vFl = 220, 221, 222, 223, 224, 225
        vTQ = 235; sM16 = 64
        LNPRE = os.environ.get("LNPRE", "1") == "1"
        lnaddr = [f"v_and_b32 v{vU}, 31, v{vL}", f"v_lshrrev_b32 v{vRow}, 5, v{vL}",
          "s_lshl_b32 s31, s2, 2", f"s_add_u32 s31, s31, s{sW}", "s_lshl_b32 s31, s31, 1", f"v_add_u32 v{vRow}, s31, v{vRow}",
          f"v_lshlrev_b32 v{vWro}, 4, v{vU}", f"v_mul_u32_u24 v{vXo}, 1280, v{vRow}", f"v_add_u32 v{vXo}, v{vXo}, v{vWro}",
          f"v_cmp_gt_u32 s[{sM16}:{sM16+1}], 16, v{vU}", f"v_mov_b32 v{vT+3}, {BIG}", f"v_and_b32 v{vTW}, 7, v{vRow}",
          f"v_cndmask_b32 v{vXo3}, v{vT+3}, v{vXo}, s[{sM16}:{sM16+1}]"]
        xloads = [f"buffer_load_dwordx4 {vr(XV,4)}, v{vXo}, s[{sX}:{sX+3}], 0 offen",
          f"buffer_load_dwordx4 {vr(XV+4,4)}, v{vXo}, s[{sX}:{sX+3}], 0 offen offset:512",
          f"buffer_load_dwordx4 {vr(XV+8,4)}, v{vXo3}, s[{sX}:{sX+3}], 0 offen offset:1024"]
        xloads += [f"buffer_load_dwordx4 {vr(WR+4*i,4)}, v{vWro}, s[{sWR}:{sWR+3}], 0 offen offset:{512*i}" for i in range(3)]
        if LNPRE: a(lnaddr)
        a(f"v_bfe_u32 v{vT+1}, v{vL}, 1, 3", f"v_lshlrev_b32 v{vT+1}, 13, v{vT+1}", f"v_and_b32 v{vT+2}, 1, v{vL}",
          f"v_lshl_add_u32 v{vTQ}, v{vT+2}, 7, v{vT+1}", f"s_lshl_b32 s74, s{sI}, 1", f"s_and_b32 s31, s{sW}, 1", "s_add_u32 s74, s74, s31",
          "s_lshl_b32 s74, s74, 16", f"s_mov_b32 s73, {128*8192}", f"v_and_b32 v{vT}, 15, v{vL}",
          f"v_lshlrev_b32 v{vT+1}, 10, v{vT}", f"v_and_b32 v{vT+2}, 16, v{vL}", f"v_lshl_add_u32 v233, v{vT+2}, 3, v{vT+1}",
          "s_lshl_b32 s30, s23, 5", f"s_add_u32 s30, s30, s{sW}", "s_lshl_b32 s30, s30, 14", f"s_lshl_b32 s29, s{sI}, 16", f"s_lshl_b32 s23, s{sH}, 8",
          f"s_cmp_ge_u32 s{sW}, 2", "s_waitcnt lgkmcnt(0)")
        if LNPRE:
            srd(a, sX, "s4", "s5", 2048*1280)
            srd(a, sWR, "s14", "s15", 1280)
            a(xloads)
        a("s_cselect_b32 s62, s10, s8", "s_cselect_b32 s63, s11, s9", "s_add_u32 s62, s62, s23", "s_addc_u32 s63, s63, 0")
        srd(a, sWt, "s62", "s63", 0)
        a(f"s_sub_u32 s{sWt+2}, {512*8192}, s23", f"buffer_load_dword v231, v{vTQ}, s[{sWt}:{sWt+3}], s74 offen",
          "s_add_u32 s6, s6, s29", "s_addc_u32 s7, s7, 0")
        srd(a, sC, "s6", "s7", 0)
        a(f"s_sub_u32 s{sC+2}, {2048*1024}, s29")
        a(f"buffer_load_dword v232, v233, s[{sC}:{sC+3}], s30 offen", "s_add_u32 s74, s74, s73")
        T01 = os.environ.get("T01", "1") == "1"
        t1 = [f"buffer_load_dword v231, v{vTQ}, s[{sWt}:{sWt+3}], s74 offen", f"buffer_load_dword v232, v233, s[{sC}:{sC+3}], s30 offen offset:256"]
        if "1" in os.environ.get("NOT", ""): t1 = [x.replace("s74 offen", "s73 offen offset:0").replace(f"v{vTQ}", f"v{vT+3}").replace("v233", f"v{vT+3}") for x in t1]
        if T01: a(t1)
        a("s_getpc_b64 s[8:9]", f"{name}_pc:", "s_lshr_b32 s31, s2, 3", "s_and_b32 s31, s31, 15", "s_lshl_b32 s31, s31, 2",
          f"s_add_u32 s31, s31, s{sW}", "s_lshl_b32 s31, s31, 11", f"s_min_u32 s31, s31, {name}_codeend-{name}_pc-2048",
          f"v_lshlrev_b32 v234, 7, v{vT}", "v_add_u32 v230, s31, v234", "global_load_dword v231, v230, s[8:9]",
          f"s_add_u32 s8, s8, {name}_co1-{name}_pc-4", "s_addc_u32 s9, s9, 0")
        a("s_add_u32 s60, s60, s23", "s_addc_u32 s61, s61, 0", f"s_sub_u32 s75, {640*8192}, s23")
        srd(a, sQ2, "s62", "s63", f"s{sWt+2}")
        a(f"v_lshlrev_b32 v{vL16}, 4, v{vL}",
          f"v_lshrrev_b32 v{vT+3}, 2, v{vL}", f"v_lshrrev_b32 v{vT+1}, 5, v{vL}", f"v_mul_u32_u24 v{vT+1}, 3, v{vT+1}",
          f"v_and_b32 v{vT+2}, 3, v{vL}", f"v_xor_b32 v{vT+1}, v{vT+1}, v{vT+2}", f"v_lshlrev_b32 v{vT+1}, 4, v{vT+1}",
          f"v_lshl_add_u32 v{vCo}, v{vT+3}, 10, v{vT+1}", f"s_lshl_b32 s23, s{sW}, 19", f"v_add_u32 v{vCo}, s23, v{vCo}")
        for j in range(1, 4): a(f"v_add_u32 v{vCo+j}, {j*(16384-1024)}, v{vCo}")
        a(f"v_and_b32 v{vT+3}, 3, v{vT+3}", f"v_lshrrev_b32 v{vT+1}, 4, v{vL}", f"v_lshlrev_b32 v{vT+1}, 6, v{vT+1}",
          f"v_lshl_add_u32 v{vT+3}, v{vT+3}, 13, v{vT+1}", f"s_and_b32 s23, s{sW}, 1", "s_lshl_b32 s23, s23, 17",
          f"v_add_u32 v{vT+3}, s23, v{vT+3}", f"v_lshl_add_u32 v{vWo}, v{vT+2}, 4, v{vT+3}", f"v_xor_b32 v{vT+2}, 2, v{vT+2}",
          f"v_lshl_add_u32 v{vWo+2}, v{vT+2}, 4, v{vT+3}", f"v_add_u32 v{vWo+1}, {32768-1024}, v{vWo}",
          f"v_add_u32 v{vWo+3}, {3*(32768-1024)}, v{vWo+2}", f"v_add_u32 v{vWo+2}, {2*(32768-1024)}, v{vWo+2}")
        a(f"s_lshl_b32 s{sM0C}, s{sW}, 12", f"s_mov_b32 s{sOC}, 0", f"s_mov_b32 s{sOW}, 0", f"s_mov_b32 s{sStep}, {32*8192}", "s_mov_b32 s79, 64")
        def dma_lines():
            preC = [f"s_mov_b32 m0, s{sM0C}"]
            lc = [f"buffer_load_dwordx4 v{vCo+j}, s[{sC}:{sC+3}], s{sOC} offen offset:{j*1024}{SC} lds" for j in range(4)]
            preW = [f"s_add_u32 m0, s{sM0C}, 16384"]
            lw = [f"buffer_load_dwordx4 v{vWo+j}, s[{sWt}:{sWt+3}], s{sOW} offen offset:{j*1024} lds" for j in range(4)]
            post = [f"s_add_u32 s{sOC}, s{sOC}, s79", f"s_add_u32 s{sOW}, s{sOW}, s{sStep}",
                    f"s_add_u32 s{sM0C}, s{sM0C}, 32768", f"s_and_b32 s{sM0C}, s{sM0C}, 0x1ffff"]
            return preC, lc, preW, lw, post
        def dma_stage():
            preC, lc, preW, lw, post = dma_lines()
            a(preC, "s_nop 0", lc, preW, "s_nop 0", lw, post)
        if not LNPRE: dma_stage()
        SB = os.environ.get("SB", "1") == "1"
        if SB:
            assert T01
            a(f"v_and_b32 v{vTQ}, 0x7fff, v{vTQ}", "s_sub_u32 s74, s74, s73", "s_lshr_b32 s74, s74, 1", f"s_add_u32 s74, s74, {256*8192}", f"s_mov_b32 s73, {64*8192}")
        if "l" in os.environ.get("NOT", ""): a(f"s_mov_b32 s{sQ2+2}, 0", "s_mov_b32 s81, 0")
        stamp(a, 1)
        srd(a, sWS, "s18", "s19", WS_BYTES)
        srd(a, sWO, "s12", "s13", 4096*1280)
        srd(a, sDb, "s16", "s17", 256)
        if not LNPRE:
            srd(a, sX, "s4", "s5", 2048*1280)
            srd(a, sWR, "s14", "s15", 1280)
        a("s_and_b32 s29, s2, 7", "s_lshl_b32 s29, s29, 2", f"s_add_u32 s29, s29, s{sW}", "s_lshl_b32 s29, s29, 11",
          f"s_and_b32 s23, s{sH}, 3", "s_lshl_b32 s23, s23, 19", "s_add_u32 s29, s29, s23")
        a(f"s_mul_i32 s23, s{sW}, {CS}", f"s_lshl_b32 s31, s{sH}, {CH}", "s_add_u32 s23, s23, s31", f"s_add_u32 s23, s23, {CF}",
          f"s_mul_i32 s31, s{sI}, {4*CS}", f"s_add_u32 s{sCFA}, s23, s31", f"s_sub_u32 s31, {15*4*CS}, s31", f"s_add_u32 s{sCFB}, s23, s31",
          f"s_lshl_b32 s23, s{sH}, 10", f"s_lshl_b32 s31, s{sI}, 7", "s_add_u32 s23, s23, s31", f"s_add_u32 s{sKVa}, s23, {KVF}",
          self.yf_addr(62), f"s_sub_u32 s23, s2, {FFN0}", f"s_cmp_lt_u32 s23, {FFN1-FFN0}", f"s_cselect_b32 s62, s62, {BIG}",
          f"s_cmp_eq_u32 s{sW}, 0", f"s_cselect_b32 s31, s{sKVa}, {BIG}", f"s_cselect_b32 s77, s2, {BIG}",
          f"s_cmp_eq_u32 s2, {TOPWG}", f"s_cselect_b32 s23, {SEL}, {BIG}",
          f"v_lshl_add_u32 v{vFl}, v{vT}, 2, s23", f"v_mov_b32 v{vZero}, 0",
          f"v_writelane_b32 v{vFl}, s{sCFA}, 0", f"v_writelane_b32 v{vFl}, s{sCFB}, 1", f"v_writelane_b32 v{vFl}, s31, 2", "s_add_u32 s31, s31, 32", f"v_writelane_b32 v{vFl}, s31, 5",
          self.wf_addr(23), f"v_writelane_b32 v{vFl}, s23, 3", f"v_writelane_b32 v{vFl}, s62, 4",
          "s_lshl_b32 s23, s2, 2", f"s_add_u32 s23, s23, s{sW}", "s_lshl_b32 s23, s23, 7", f"s_add_u32 s23, s23, {XFL}", f"v_writelane_b32 v{vFl}, s23, 6")
        if LNPRE:
            a(f"s_and_b32 s23, s{sH}, 3", "s_lshr_b32 s31, s23, 1", "s_lshl_b32 s31, 4, s31", "s_bitcmp1_b32 s23, 0",
              "s_cselect_b32 s76, s31, 0", "s_cselect_b32 s72, 0, s31", f"s_or_b32 s76, s76, {0x28 if SB else 0x20}", f"s_or_b32 s72, s72, {0x21 if SB else 0x25}")
        else:
            a(f"s_and_b32 s23, s{sH}, 3", "s_cmp_eq_u32 s23, 2", "s_cselect_b32 s76, 0x2a, 0x22", "s_cselect_b32 s72, 0x27, 0x2f",
              "s_cmp_eq_u32 s23, 3", "s_cselect_b32 s72, 0x37, s72")
        for i in range(4): a(f"v_mov_b32 v{vT+4+i}, 0")
        a(f"v_lshrrev_b32 v{vT+1}, 4, v{vL}", f"v_lshrrev_b32 v{vT+2}, 3, v{vT}",
          f"v_mul_u32_u24 v{vT+2}, 3, v{vT+2}", f"v_xor_b32 v{vT+2}, v{vT+2}, v{vT+1}", f"v_lshlrev_b32 v{vT+2}, 4, v{vT+2}",
          f"v_lshl_add_u32 v{vCa}, v{vT}, 6, v{vT+2}", f"s_and_b32 s23, s{sW}, 1", "s_lshl_b32 s23, s23, 11", f"v_add_u32 v{vCa}, s23, v{vCa}")
        rest = Asm()
        rest(f"v_lshrrev_b32 v{vT+2}, 2, v{vT}", f"v_lshlrev_b32 v{vT+2}, 6, v{vT+2}", f"v_lshl_add_u32 v{vT+2}, v{vT+1}, 11, v{vT+2}",
          f"v_and_b32 v{vT+3}, 1, v{vL}", f"v_lshl_add_u32 v{vT+2}, v{vT+3}, 3, v{vT+2}", f"v_bfe_u32 v{vT+3}, v{vL}, 1, 1",
          f"v_and_b32 v{vT+1}, 1, v{vT+1}", f"v_lshl_or_b32 v{vT+3}, v{vT+1}, 1, v{vT+3}",
          f"s_lshr_b32 s23, s{sW}, 1", "s_lshl_b32 s23, s23, 13", "s_add_u32 s23, s23, 16384", f"v_add_u32 v{vT+2}, s23, v{vT+2}",
          f"v_lshl_add_u32 v{vWa}, v{vT+3}, 4, v{vT+2}", f"v_xor_b32 v{vWa+1}, 32, v{vWa}")
        TR = SPARE
        rest([f"v_mov_b32 v{vT+3}, {BIG}"] if LNPRE else lnaddr,
          f"v_lshlrev_b32 v{vTW}, 4, v{vTW}", f"v_lshl_add_u32 v{vTW}, v{vU}, 7, v{vTW}", f"v_add_u32 v{vTW}, {TR}, v{vTW}",
          f"v_lshlrev_b32 v{vKo}, 2, v{vRow}", f"v_cmp_eq_u32 vcc, 0, v{vU}", f"v_add_u32 v{vKo}, {RKEY}, v{vKo}",
          f"v_lshlrev_b32 v{vTR}, 4, v0", f"v_cndmask_b32 v{vKo}, v{vT+3}, v{vKo}, vcc", f"v_add_u32 v{vTR}, {TR}, v{vTR}",
          f"v_sub_u32 v{vRow}, 0xffff, v{vRow}",
          f"v_lshrrev_b32 v{vO1}, 3, v0", f"v_and_b32 v{vT+2}, 7, v0", f"v_lshlrev_b32 v{vT+2}, 4, v{vT+2}",
          f"v_cmp_gt_u32 vcc, 128, v0", f"v_lshl_add_u32 v{vO1}, v{vO1}, 8, v{vT+2}",
          "s_lshr_b32 s66, s2, 1", "s_mul_i32 s66, s66, 20480", "s_and_b32 s31, s2, 1", "s_lshl_b32 s31, s31, 7", "s_add_u32 s66, s66, s31",
          f"v_cndmask_b32 v{vO3}, v{vT+3}, v{vO1}, vcc", "s_add_u32 s67, s66, 8192", "s_add_u32 s78, s66, 16384", f"s_mov_b32 s{sIT}, 0")
        rl = rest.lines
        for i in range(16):
            a(f"v_mfma_f32_32x32x16_bf16 {ar(16*i,16)}, {vr(vT+4,4)}, {vr(vT+4,4)}, 0", rl[4*i:4*i+4])
        assert len(rl) <= 64
        STPRE = os.environ.get('STPRE', '0') == '1'
        CALL = os.environ.get('CALL', '0') == '1'
        def xn_store(t):
            for i in range(3): t(f"ds_read_b128 {vr(XV+4*i,4)}, v{vTR} offset:{i*4096}")
            t(f"buffer_store_dword v{vAcc}, v{vKo}, s[{sWS}:{sWS+3}], 0 offen{SC}", "s_waitcnt lgkmcnt(0)",
              f"buffer_store_dwordx4 {vr(XV,4)}, v{vO1}, s[{sWS}:{sWS+3}], s66 offen{SC}",
              f"buffer_store_dwordx4 {vr(XV+4,4)}, v{vO1}, s[{sWS}:{sWS+3}], s67 offen{SC}",
              f"buffer_store_dwordx4 {vr(XV+8,4)}, v{vO3}, s[{sWS}:{sWS+3}], s78 offen{SC}")
        def ln_compute(t):
            pk = lambda op, d, x, y, extra="": f"{op} {vr(d,2)}, {vr(x,2)}, {vr(y,2)}{extra}"
            for i in range(12):
                t(f"v_lshlrev_b32 v{F+2*i}, 16, v{XV+i}", f"v_and_b32 v{F+2*i+1}, 0xffff0000, v{XV+i}")
            t(pk("v_pk_add_f32", vT, F, F + 2), pk("v_pk_add_f32", vT + 2, F + 4, F + 6))
            for i in range(8, 24, 4): t(pk("v_pk_add_f32", vT, vT, F + i), pk("v_pk_add_f32", vT + 2, vT + 2, F + i + 2))
            t(pk("v_pk_add_f32", vT, vT, vT + 2), f"v_add_f32 v{vS}, v{vT}, v{vT+1}")
            allreduce32_add(t, vS, vT2)
            t(f"v_mul_f32 v{vMean}, 0xbacccccd, v{vS}", f"v_mul_f32 v{vMean+1}, 0xbacccccd, v{vS}")
            for i in range(12):
                d = vT + 4 + 2 * (i % 4); acc = vT if i < 8 else vT + 2
                t(pk("v_pk_add_f32", d, F + 2 * i, vMean))
                if i in (0, 8): t(pk("v_pk_mul_f32", acc, d, d))
                else: t(f"v_pk_fma_f32 {vr(acc,2)}, {vr(d,2)}, {vr(d,2)}, {vr(acc,2)}")
            t(f"v_add_f32 v{vT+2}, v{vT+2}, v{vT+3}", f"v_add_f32 v{vS}, v{vT}, v{vT+1}", f"v_cndmask_b32 v{vT+2}, 0, v{vT+2}, s[{sM16}:{sM16+1}]",
              f"v_add_f32 v{vS}, v{vS}, v{vT+2}")
            allreduce32_add(t, vS, vT2)
            t(f"v_mul_f32 v{vS}, 0x3acccccd, v{vS}")
            bf16r(t, vS)
            t(f"v_add_f32 v{vS}, 0x3727c5ac, v{vS}")
            bf16r(t, vS)
            t(f"v_sqrt_f32 v{vS}, v{vS}")
            bf16r(t, vMean)
            bf16r(t, vS)
            t(f"v_rcp_f32 v{vT+12}, v{vS}", f"v_mov_b32 v{vMean+1}, v{vMean}", f"v_mov_b32 v{vT+13}, v{vT+12}")
            for i in range(12):
                f0 = F + 2 * i; w0 = vT + 2 * (i % 2)
                t(pk("v_pk_add_f32", f0, f0, vMean), f"v_lshlrev_b32 v{w0}, 16, v{WR+i}", f"v_cvt_pk_bf16_f32 v{f0+1}, v{f0}, v{f0+1}",
                  f"v_and_b32 v{w0+1}, 0xffff0000, v{WR+i}", f"v_lshlrev_b32 v{f0}, 16, v{f0+1}", f"v_and_b32 v{f0+1}, 0xffff0000, v{f0+1}",
                  pk("v_pk_mul_f32", f0, f0, vT + 12), f"v_cvt_pk_bf16_f32 v{XV+i}, v{f0}, v{f0+1}",
                  f"v_lshlrev_b32 v{f0}, 16, v{XV+i}", f"v_and_b32 v{f0+1}, 0xffff0000, v{XV+i}")
                if i == 0: t(pk("v_pk_mul_f32", vAcc, f0, w0))
                else: t(f"v_pk_fma_f32 {vr(vAcc,2)}, {vr(f0,2)}, {vr(w0,2)}, {vr(vAcc,2)}")
                if i % 4 == 3: t(f"ds_write_b128 v{vTW}, {vr(XV+i-3,4)} offset:{(i//4)*4096}")
            t(f"v_add_f32 v{vAcc}, v{vAcc}, v{vAcc+1}")
            allreduce32_add(t, vAcc, vT2)
            bf16r(t, vAcc)
            t(f"v_ashrrev_i32 v{vT2}, 31, v{vAcc}", f"v_or_b32 v{vT2}, 0x80000000, v{vT2}", f"v_xor_b32 v{vAcc}, v{vAcc}, v{vT2}",
              f"v_and_b32 v{vAcc}, 0xffff0000, v{vAcc}", f"v_or_b32 v{vAcc}, v{vAcc}, v{vRow}")
        stamp(a, 2)
        if LNPRE:
            a(f"s_waitcnt vmcnt({5 if T01 else 3})")
            SM = int(os.environ.get("SM", "0"))
            if SM:
                a(f"s_add_u32 s4, s{sWt}, s74", f"s_addc_u32 s5, s{sWt+1}, 0", f"s_add_u32 s6, s{sC}, s29", f"s_addc_u32 s7, s{sC+1}, 0")
                step = 128 // SM
                sl = [f"s_load_dword s83, s[4:5], {r*8192 + q*step}" for r in range(8) for q in range(2 * SM)]
                sl += [f"s_load_dword s83, s[6:7], {r*1024 + 256 + q*step}" for r in range(2) for q in range(2 * SM)]
                a(sl[:14])
            ln_compute(a)
            if SM: a(sl[14:])
            a(stampv(9))
            if STPRE:
                a(f"buffer_store_dword v{vZero}, v{vFl}, s[{sWS}:{sWS+3}], 0 offen{SC}", "s_waitcnt lgkmcnt(0)", "s_barrier")
                xn_store(a)
            a(f"v_mov_b32 v{vT+3}, {BIG}")
            dma_stage()
        dma_stage()
        stamp(a, 3)
        a(self.cyc(62))
        a("s_waitcnt vmcnt(8) lgkmcnt(0)", "s_barrier")
        a(f"s_cmp_ge_u32 s{sW}, 2", f"s_cbranch_scc1 {name}_roleV")
        def reads(role, buf, off):
            CFr = (FB if role == "K" else FA) + 32 * buf
            WF = (FA if role == "K" else FB) + 32 * buf
            rc = [f"ds_read_b128 {vr(CFr+4*i,4)}, v{vCa} offset:{off + (i//2)*4096 + (i%2)*1024}" for i in range(8)]
            rw = [f"ds_read_b64_tr_b16 {vr(WF+4*cb+2*t,2)}, v{vWa+(cb&1)} offset:{off + t*1024 + (cb>>1)*256}" for cb in range(8) for t in range(2)]
            return rc, rw
        for role in ("K", "V"):
            if role == "V": a.label(f"{name}_roleV")
            rc, rw = reads(role, 0, 0)
            a(rc, rw)
            dma_stage()
            a(f"buffer_load_dword v231, v{vT+3}, s[{sC}:{sC+3}], 0 offen")
            dma_stage()
            if not T01 and not SM: a(t1)
            a("s_waitcnt lgkmcnt(0)")
            a(".p2align 6")
            a.label(f"{name}_loop{role}")
            if DBG: a(f"s_mov_b32 m0, s{sIT}", stampv("m0"))
            for half in range(2):
                def acc(i, j):
                    n_ = (8 * (j // 2) + 2 * (i // 2) + j % 2) if role == "K" else (8 * (i // 2) + j)
                    return ar(((n_ + 24) % 32) * 8 + 4 * (i % 2), 4)
                mf = [f"{MF} {acc(i,j)}, {vr(FA+32*half+4*i,4)}, {vr(FB+32*half+4*j,4)}, {acc(i,j)}" for i in range(8) for j in range(8)]
                sc = {}; mem = {}; va = {}
                sc[0] = [f"s_waitcnt vmcnt({17 if half == 0 else 18})"]; sc[1] = ["s_barrier"]
                rc, rw = reads(role, 1 - half, 32768 if half == 0 else 0)
                preC, lc, preW, lw, post = dma_lines()
                ds = []
                for i in range(8): ds += [rw[2*i], rw[2*i+1], rc[i]]
                for i, x in enumerate(ds): mem[2 + 2*i] = [x]
                st_ = 2 if half == 0 else 6
                sc[4] = preC
                for j in range(4): mem[5 + st_*j] = [lc[j]]
                sc[4 + 4*st_] = preW
                for j in range(4): mem[5 + st_*(4+j)] = [lw[j]]
                for j, x in enumerate(post): sc[48 + j] = [x]
                if half == 0:
                    mem[21] = [f"buffer_load_dword v231, v{vTQ}, s[{sQ2}:{sQ2+3}], s74 offen{SC}"]
                    sc[22] = ["s_add_u32 s74, s74, s73"]
                    h = self.hook(f"s_bitcmp1_b32 s72, s{sIT}", 8)
                    sc[23] = [h[0]]; sc[24] = h[1]
                    va[52] = [f"v_xor_b32 v{vCa}, 0x10000, v{vCa}"]
                    va[53] = [f"v_xor_b32 v{vWa}, 0x10000, v{vWa}"]
                    va[54] = [f"v_xor_b32 v{vWa+1}, 0x10000, v{vWa+1}"]
                    sc[63] = ["s_waitcnt lgkmcnt(0)"]
                else:
                    h = self.hook(f"s_bitcmp1_b32 s76, s{sIT}", 8)
                    sc[53] = [h[0]]; sc[54] = h[1]
                    sc[57] = [f"s_add_u32 s{sIT}, s{sIT}, 1"]
                    sc[61] = [f"s_cmp_lt_u32 s{sIT}, 8"]
                    sc[62] = ["s_waitcnt lgkmcnt(0)"]
                    sc[63] = [f"s_cbranch_scc1 {name}_loop{role}"]
                a(weave(mf, sc, mem, va))
            if role == "K":
                a(f"s_mov_b32 s64, {KFO}", "s_mov_b32 s76, 0x3e0293ee", f"s_branch {name}_p1epi")
            else:
                a(f"s_mov_b32 s64, {VFO}", "s_mov_b32 s76, 1.0")
        t = Asm()
        yld = ["s_getpc_b64 s[8:9]", "s_setpc_b64 s[10:11]"]
        t.label(f"{name}_co1")
        if not LNPRE: t(xloads, yld)
        if "c" not in os.environ.get("NOT", ""): t(f"buffer_load_dword v232, v234, s[{sC}:{sC+3}], s29 offen")
        if not STPRE: t(f"buffer_store_dword v{vZero}, v{vFl}, s[{sWS}:{sWS+3}], 0 offen{SC}")
        if not LNPRE:
            t("s_waitcnt vmcnt(18)")
            ln_compute(t)
            t(yld)
        if not STPRE: xn_store(t)
        t(yld)
        sw = [f"s_mov_b32 s{sQ2}, s60", f"s_mov_b32 s{sQ2+1}, s61", f"s_mov_b32 s{sQ2+2}, {'0' if 'l' in os.environ.get('NOT', '') else 's75'}", f"s_lshl_b32 s74, s{sI}, 2", f"s_add_u32 s74, s74, s{sW}"]
        prep = [f"v_mov_b32 v{vS}, {BIG}", f"v_mov_b32 v{vT2}, 1", f"v_writelane_b32 v{vS}, s77, 0", f"v_lshlrev_b32 v{vZero}, 2, v{vL}"]
        arr = f"buffer_store_byte v{vT2}, v{vS}, s[{sDb}:{sDb+3}], 0 offen{SC}"
        if SB:
            t(prep, arr, f"s_and_b32 s23, s{sH}, 3", "s_cmp_eq_u32 s23, 3", f"s_cbranch_scc1 {name}_arr", yld)
            t.label(f"{name}_arr")
            t(sw, f"s_mul_i32 s74, s74, {5*8192}", f"s_mov_b32 s73, {160*8192}", f"v_lshrrev_b32 v{vTQ}, 1, v{vL}", f"v_min_u32 v{vTQ}, 4, v{vTQ}",
              f"v_lshlrev_b32 v{vTQ}, 13, v{vTQ}", f"v_and_b32 v{vS}, 1, v{vL}", f"v_lshl_add_u32 v{vTQ}, v{vS}, 7, v{vTQ}", yld)
        else:
            t(sw, "s_lshl_b32 s74, s74, 16", f"s_mov_b32 s73, {256*8192}", prep)
            if LNPRE: t(f"s_and_b32 s23, s{sH}, 3", f"s_cbranch_scc0 {name}_arr")
            t(yld)
            t.label(f"{name}_arr")
            t(arr, yld)
        t(f"buffer_load_dword v{vPoll}, v{vZero}, s[{sDb}:{sDb+3}], 0 offen{SC}", yld)
        t(f"s_mov_b32 s{sWt}, s60", f"s_mov_b32 s{sWt+1}, s61", f"s_mov_b32 s{sWt+2}, s75",
          f"s_lshr_b32 s{sOW}, s{sW}, 1", f"s_lshl_b32 s{sOW}, s{sOW}, 18", f"s_mov_b32 s{sStep}, {64*8192}",
          f"s_mov_b32 s{sC}, s18", f"s_mov_b32 s{sC+1}, s19", f"s_mov_b32 s{sC+2}, {2048*1280}", f"s_mov_b32 s{sOC}, 0", "s_movk_i32 s79, 1024",
          f"s_lshl_b32 s23, s{sI}, 2", f"s_add_u32 s23, s23, s{sW}", f"s_mul_i32 s23, s23, {2*20480}", f"v_add_u32 v{vCo}, s23, v{vL16}",
          f"s_sub_u32 s23, 15, s{sI}", "s_lshl_b32 s23, s23, 2", f"s_add_u32 s23, s23, s{sW}", f"s_mul_i32 s23, s23, {2*20480}", "s_sub_u32 s23, s23, 2048",
          f"v_add_u32 v{vCo+2}, s23, v{vL16}", f"v_add_u32 v{vCo+1}, {20480-1024}, v{vCo}", f"v_add_u32 v{vCo+3}, {20480-1024}, v{vCo+2}",
          )
        if os.environ.get("XT", "0") == "1":
            t(f"s_mov_b32 s{sQ2}, s18", f"s_mov_b32 s{sQ2+1}, s19", f"s_mov_b32 s{sQ2+2}, {2048*1280}", "s_movk_i32 s73, 8192",
              f"s_sub_u32 s23, 15, s{sI}", f"s_bitcmp1_b32 s{sH}, 1", f"s_cselect_b32 s23, s23, s{sI}", "s_lshl_b32 s23, s23, 2", f"s_add_u32 s23, s23, s{sW}",
              "s_lshl_b32 s23, s23, 1", f"s_and_b32 s31, s{sH}, 1", "s_add_u32 s23, s23, s31", "s_mul_i32 s74, s23, 20480", "s_add_u32 s74, s74, 4096",
              f"v_lshlrev_b32 v{vTQ}, 7, v{vL}")
        t("s_waitcnt vmcnt(8)")
        self.poll_check(t, "ln", vPoll, vZero, sDb, [f"v_cmp_ne_u32 vcc, 0x01010101, v{vPoll}"])
        t("s_setpc_b64 s[10:11]")
        self.tail += t.lines
        a.label(f"{name}_p1epi")
        stamp(a, 4)
        a(self.cyc(56))
        self.sWq = sWt; self.sXs = sC; self.sWoff = sOW; self.sXoff = sOC

    def kv_item(self, n, D):
        sc = []
        if n and n % 8 == 0: sc = [f"s_add_u32 s64, s64, {131072-4096}"]
        elif n % 8 == 4: sc = ["s_add_u32 s64, s64, 4096"]
        regs = [((n + 24) % 32) * 8 + r for r in range(8)]
        va = [f"v_accvgpr_read_b32 v{vT+k}, a{r}" for k, r in enumerate(regs)]
        va += [f"v_mul_f32 v{vT+k}, s76, v{vT+k}" for k in range(8)]
        va += [f"v_cvt_pk_bf16_f32 v{D+r}, v{vT+2*r}, v{vT+1+2*r}" for r in range(4)]
        z = []
        st = f"buffer_store_dwordx4 {vr(D,4)}, v{vL16}, s[{sWS}:{sWS+3}], s64 offen offset:{(n%4)*1024}{SC}"
        return sc, va, z, st

    def top8(self):
        name = self.name
        self.a(f"s_cmp_eq_u32 s2, {TOPWG}", f"s_cbranch_scc1 {name}_top8")
        self.a.label(f"{name}_notop")
        a = Asm()
        KEY = 232; CA = 96
        a.label(f"{name}_top8")
        vM, vPrev, vSel, vTok, vTmp, vRow, vR = vT + 4, vT + 5, vT + 6, vT + 7, vT + 8, vT + 9, vT + 10
        a(f"v_mov_b32 v{vPrev}, 0", f"v_mov_b32 v{vSel}, 0", f"v_and_b32 v{vTok}, 7, v{vL}", "s_mov_b32 s23, 0")
        a.label(f"{name}_top")
        a(f"v_max3_u32 v{vM}, v{KEY}, v{KEY+1}, v{KEY+2}", f"v_max3_u32 v{vTmp}, v{KEY+3}, v{KEY+4}, v{KEY+5}",
          f"v_max3_u32 v{vM}, v{vM}, v{KEY+6}, v{KEY+7}", f"v_max_u32 v{vM}, v{vM}, v{vTmp}")
        for m in ("quad_perm:[1,0,3,2]", "quad_perm:[2,3,0,1]", "row_half_mirror", "row_mirror"):
            a("s_nop 1", f"v_max_u32_dpp v{vM}, v{vM}, v{vM} {m} row_mask:0xf bank_mask:0xf")
        xreduce(a, "v_max_u32", vM, vTmp)
        a(f"v_add_u32 v{vPrev}, v{vPrev}, v{vM}", f"v_cmp_eq_u32 vcc, s23, v{vTok}")
        for q in range(8): a(f"v_sub_u32 v{KEY+q}, v{KEY+q}, v{vM}")
        a(f"v_cndmask_b32 v{vSel}, v{vSel}, v{vPrev}, vcc", "s_add_u32 s23, s23, 1", "s_cmp_lt_u32 s23, 8", f"s_cbranch_scc1 {name}_top")
        a(f"s_lshl_b32 s23, s{sW}, 5", f"s_add_u32 s23, s23, {SPARE}", f"v_lshl_add_u32 v{vTmp}, v{vTok}, 2, s23", f"ds_write_b32 v{vTmp}, v{vSel}",
          "s_waitcnt lgkmcnt(0)", "s_barrier", f"s_cmp_lg_u32 s{sW}, 0", f"s_cbranch_scc1 {name}_notop")
        a(f"v_and_b32 v{vTmp}, 31, v{vL}", f"v_lshlrev_b32 v{vTmp}, 2, v{vTmp}", f"v_add_u32 v{vTmp}, {SPARE}, v{vTmp}", f"v_mov_b32 v{vM}, {SPARE}",
          f"ds_read_b32 v{vSel}, v{vTmp}")
        for q in range(8): a(f"ds_read_b128 {vr(CA+4*q,4)}, v{vM} offset:{16*q}")
        a(f"v_mov_b32 v{vTok}, 0", "s_waitcnt lgkmcnt(0)")
        for q in range(0, 32, 4):
            for e in range(4): a(f"v_cmp_gt_u32 s[{4+2*(e%2)}:{5+2*(e%2)}], v{CA+q+e}, v{vSel}" if e < 2 else f"v_cmp_gt_u32 s[{76+2*(e%2)}:{77+2*(e%2)}], v{CA+q+e}, v{vSel}")
            for e in range(4):
                sp = (4 + 2 * e) if e < 2 else (76 + 2 * (e - 2))
                a(f"v_addc_co_u32 v{vTok}, vcc, 0, v{vTok}, s[{sp}:{sp+1}]")
        a(f"v_and_b32 v{vRow}, 0xffff, v{vSel}", f"v_sub_u32 v{vRow}, 0xffff, v{vRow}", f"v_and_b32 v{vRow}, 2047, v{vRow}")
        a(f"v_ashrrev_i32 v{vM}, 31, v{vSel}", f"v_not_b32 v{vM}, v{vM}", f"v_or_b32 v{vM}, 0x80000000, v{vM}",
          f"v_xor_b32 v{vR}, v{vSel}, v{vM}", f"v_and_b32 v{vR}, 0xffff0000, v{vR}",
          f"v_mul_f32 v{vR}, 0xbfb8aa3b, v{vR}", f"v_exp_f32 v{vR}, v{vR}", "s_nop 0", f"v_add_f32 v{vR}, 1.0, v{vR}",
          f"v_rcp_f32 v{vR}, v{vR}", "s_nop 0")
        bf16r(a, vR)
        a(f"v_and_b32 v{vM}, 32, v{vL}", f"v_lshl_add_u32 v{vM}, v{vTok}, 2, v{vM}", f"v_add_u32 v{vM}, {SEL}, v{vM}", f"v_mov_b32 v{vPrev}, {BIG}",
          f"v_cmp_gt_u32 vcc, 8, v{vTok}", f"v_add_u32 v{vRow}, 1, v{vRow}", f"v_or_b32 v{vR}, 1, v{vR}", f"v_cndmask_b32 v{vM}, v{vPrev}, v{vM}, vcc",
          f"v_cmp_gt_u32 vcc, 32, v{vL}", "s_nop 1", f"v_cndmask_b32 v{vR}, v{vR}, v{vRow}, vcc",
          f"buffer_store_dword v{vR}, v{vM}, s[{sWS}:{sWS+3}], 0 offen{SC}", f"s_branch {name}_notop")
        self.tail += a.lines

    def phase2(self):
        a = self.a; name = self.name
        sWq, sXs, sWoff, sXoff = self.sWq, self.sXs, self.sWoff, self.sXoff
        XB = 224; vXa = 14; sW4 = 24
        vm = VM()
        vm.issue("X1", 4); vm.issue("W1", 4); vm.issue("X2", 4); vm.issue("W2", 4); vm.issue("T"); vm.issue("X3", 4); vm.issue("W3", 4)
        def wreads(buf, off):
            return [f"ds_read_b64_tr_b16 {vr(Q+32*buf+4*cb+2*t,2)}, v{vWa+(cb&1)} offset:{off + t*1024 + (cb>>1)*256}" for cb in range(8) for t in range(2)]
        def xreads(buf, off):
            return [f"ds_read_b128 {vr(XB+16*buf+4*qb,4)}, v{vXa} offset:{off + qb*1024}" for qb in range(4)]
        a(f"s_lshr_b32 s23, s{sW}, 1", "s_lshl_b32 s23, s23, 13", f"v_subrev_u32 v{vWa}, s23, v{vWa}", f"v_subrev_u32 v{vWa+1}, s23, v{vWa+1}",
          f"s_lshl_b32 s{sW4}, s{sW}, 12", f"v_add_u32 v{vXa}, s{sW4}, v{vL16}")
        a(wreads(0, 0), f"s_waitcnt vmcnt({vm.need('T')})", xreads(0, 0))
        a(f"s_lshl_b32 s23, s{sH}, 19", "s_add_u32 s64, s64, s23", f"s_lshl_b32 s23, s{sI}, 14", "s_add_u32 s64, s64, s23",
          f"s_and_b32 s23, s{sW}, 1", "s_lshl_b32 s23, s23, 13", "s_add_u32 s64, s64, s23")
        a(f"s_lshl_b32 s23, s{sH}, 19", f"s_add_u32 s23, s23, {KFO}", "s_add_u32 s6, s18, s23", "s_addc_u32 s7, s19, 0",
          f"s_add_u32 s8, s6, {VFO-KFO}", "s_addc_u32 s9, s7, 0", f"s_sub_u32 s23, 16, s{sI}", "s_lshl_b32 s23, s23, 15")
        srd(a, sK, "s6", "s7", "s23")
        srd(a, sV, "s8", "s9", "s23")
        a(f"s_lshl_b32 s30, s{sH}, 10", f"s_add_u32 s30, s30, {KVF}", f"s_mov_b32 s{sThr}, 0x47800000",
          f"s_cmp_eq_u32 s{sW}, 0", f"s_cselect_b32 s65, s{sKVa}, {BIG}")
        a(f"s_waitcnt vmcnt({vm.need('X1')}) lgkmcnt(0)")
        stamp(a, 6)
        per = [int(c) for c in os.environ.get("PER", "22111111111122233330")]
        per[0] += 32 - sum(per)
        assert sum(per) == 32 and len(per) == 20 and per[19] == 0
        last8 = min(k for k in range(20) if sum(per[:k+1]) >= 8)
        SFLAG = last8 + 2 if last8 % 2 else last8 + 3
        SPOLL = int(os.environ.get('SPOLL', '16'))
        misc = [f"v_and_b32 v11, 15, v{vL}", f"v_lshrrev_b32 v10, 4, v{vL}", "v_lshlrev_b32 v10, 2, v10", "v_sub_u32 v11, v11, v10"]
        misc += [f"v_cmp_le_i32 s[{sMask+2*r}:{sMask+2*r+1}], {r}, v11" for r in range(4)]
        misc += [f"v_and_b32 v{vPo}, 7, v{vL}", f"v_lshlrev_b32 v{vPo}, 7, v{vPo}", f"v_add_u32 v{vPo}, s30, v{vPo}"]
        flagst = f"buffer_store_dword v{vWa}, off, s[{sWS}:{sWS+3}], s65{SC}"
        pollld = f"buffer_load_dword v{vPoll}, v{vPo}, s[{sWS}:{sWS+3}], 0 offen{SC}"
        it = 0; zpool = []
        for s_ in range(20):
            buf = s_ & 1
            C = lambda d: "0" if s_ == 0 else vr(d, 4)
            mf = [f"{MF} {vr(QACC+(db*4+qb)*4,4)}, {vr(Q+32*buf+4*db,4)}, {vr(XB+16*buf+4*qb,4)}, {C(QACC+(db*4+qb)*4)}" for qb in range(4) for db in range(8)]
            sc = {g: [] for g in range(32)}; mem = {g: [] for g in range(32)}; va = {g: [] for g in range(32)}
            tags = {g: [] for g in range(32)}
            if s_ & 1: sc[0].append("s_barrier")
            vpos = [3, 8, 13, 18, 23, 28]
            if s_ < 19:
                off = [8192, 32768, 32768 + 8192, 0][s_ % 4]
                rd = wreads(1 - buf, off); xr = xreads(1 - buf, 32768 if s_ % 2 == 0 else 0)
                ds = rd[:8] + xr[:2] + rd[8:] + xr[2:]
                dpos = [g for g in range(1, 27) if g not in vpos][:20]
                for p_, x in zip(dpos, ds): mem[p_].append(x)
            if s_ + 4 < 20:
                sc[2].append(f"s_add_u32 m0, s{sW4}, {(s_%4)*32768}")
                for j in range(4):
                    mem[vpos[j]].append(f"buffer_load_dwordx4 v{vCo+j}, s[{sXs}:{sXs+3}], s{sXoff} offen offset:{j*1024}{SC} lds"); tags[vpos[j]].append(f"X{s_+4}")
                sc[19].append(f"s_add_u32 s{sXoff}, s{sXoff}, 1024")
            stage = (s_ + 1) // 2 + 3
            if s_ >= 1 and stage < 10:
                sc[22].append(f"s_add_u32 m0, s{sW4}, {(stage%4)*32768+16384}")
                for jj in range(2):
                    j = jj if s_ & 1 else 2 + jj
                    mem[vpos[4+jj]].append(f"buffer_load_dwordx4 v{vWo+j}, s[{sWq}:{sWq+3}], s{sWoff} offen offset:{j*1024} lds"); tags[vpos[4+jj]].append(f"W{stage}")
                if not s_ & 1: sc[29].append(f"s_add_u32 s{sWoff}, s{sWoff}, {64*8192}")
            if s_ % 4 == 2:
                va[29].append(f"v_xor_b32 v{vWa}, 0x10000, v{vWa}"); va[30].append(f"v_xor_b32 v{vWa+1}, 0x10000, v{vWa+1}")
            if s_ % 2 == 0: va[27].append(f"v_xor_b32 v{vXa}, 0x10000, v{vXa}")
            if s_ == SFLAG:
                mem[0].append(flagst); tags[0].append("flag")
            if s_ == SPOLL:
                mem[3].append(pollld); tags[3].append("poll")
            toks = []
            for k in range(per[s_]):
                D = vT + 8 + 4 * (it % 2)
                isc, iva, z, ist = self.kv_item(it, D)
                toks += [("s", x) for x in isc] + [("v", x) for x in iva] + [("st" if it >= 8 else "st0", ist)]; it += 1
                zpool += z
            if s_ == 13: toks += [("v", x) for x in misc]
            fs = []
            if s_ in (14, 15):
                for q in (range(3) if s_ == 14 else range(3, 5)):
                    toks += [("v", x) for x in [f"v_add_u32 v9, {64*q}, v{vL}", "v_mul_u32_u24 v10, 6554, v9", "v_lshrrev_b32 v10, 16, v10",
                             f"v_mul_u32_u24 v10, {1280-160}, v10", "v_lshl_add_u32 v10, v9, 4, v10", f"v_accvgpr_write_b32 a{248+q}, v10"]]
            if s_ == 16:
                fs = [f"s_mul_i32 s34, s{sW}, 5120", f"s_add_u32 s34, s34, {SPARE}"] + self.co_setup()[:-3]
            if s_ == 17:
                fs = [f"s_and_b32 s23, s{sW}, 1", "s_lshl_b32 s23, s23, 12", f"s_cmp_lt_u32 s{sW}, 2\ns_cselect_b32 s{sKm}, {131072-24576}, 0",
                         f"s_add_u32 s{sKm}, s{sKm}, s23", f"s_lshl_b32 s{sKo}, s{sW}, 12", f"s_mov_b32 s{sVo}, s{sKo}", f"s_add_u32 s{sVm}, s{sVo}, {32768+16384}",
                         "s_load_dwordx4 s[4:7], s[0:1], 64", "s_load_dwordx2 s[60:61], s[0:1], 80",
                         f"s_add_u32 s23, s{sW}, 1", "s_lshr_b32 s23, s23, 1", f"s_lshl_b32 s{sCnt}, s{sI}, 1", f"s_add_u32 s{sCnt}, s{sCnt}, s23",
                         f"s_lshl_b32 s23, s{sI}, 2", f"s_sub_u32 s{sNSS}, 28, s23", f"s_and_b32 s23, s{sW}, 1", f"s_add_u32 s{sNSS}, s{sNSS}, s23"]
                toks += [("v", x) for x in [f"v_lshrrev_b32 v6, 2, v{vL}", "v_mul_u32_u24 v6, 160, v6", f"v_and_b32 v9, 3, v{vL}",
                         "v_lshl_add_u32 v6, v9, 3, v6", "v_add_u32 v6, s34, v6", f"v_mov_b32 v{vKV}, v{vL16}", f"v_mov_b32 v{vNI}, 0xff800000",
                         f"v_add_u32 v9, {3*32768+8192}, v{vL16}"]]
            if s_ == 18:
                cs = self.co_setup()[-3:]
                fs = [f"s_cmp_ge_u32 s{sW}, 2\ns_cselect_b32 s4, s6, s4\ns_cselect_b32 s5, s7, s5", f"s_mov_b32 s62, {1728*1280}", "s_mov_b32 s63, 0x20000",
                      "s_mov_b64 s[56:57], s[52:53]", "s_mov_b32 s58, s54", "s_mov_b64 s[52:53], s[4:5]", f"s_mov_b32 s54, {640*3456}", cs[0], cs[1] + "\n" + cs[2],
                      f"s_lshl_b32 s31, s{sW}, 11", f"s_add_u32 s31, s31, {RKEY}", f"s_cmp_eq_u32 s2, {TOPWG}\ns_cselect_b32 s31, s31, {BIG}"]
            if s_ == 15 and os.environ.get("CT2", "1") == "1":
                fs = [f"s_getpc_b64 s[78:79]\n{name}_pc2:", "s_lshr_b32 s23, s2, 3", "s_and_b32 s23, s23, 7", "s_lshl_b32 s23, s23, 2", f"s_add_u32 s23, s23, s{sW}",
                      "s_lshl_b32 s23, s23, 11", f"s_min_u32 s23, s23, {name}_codeend-{name}_pc2-2048"]
                va[24] += [f"v_and_b32 v11, 15, v{vL}"]; va[25] += ["v_lshl_add_u32 v11, v11, 7, s23"]
                mem[28].append("global_load_dword v11, v11, s[78:79]"); tags[28].append("ct")
            for q, x in enumerate(fs): sc[(1 if s_ != 15 else 4) + q].append(x)
            if s_ == 19:
                tmp = Asm()
                self.poll_check(tmp, "kv", vPoll, vPo, sWS, [f"v_cmp_eq_u32 vcc, 0, v{vPoll}"])
                va[0].append(tmp.lines[0]); sc[1] += tmp.lines[1:]
                mem[0].append(f"buffer_load_dwordx4 v[232:235], v{vL16}, s[{sWS}:{sWS+3}], s31 offen{SC}")
                mem[1].append(f"buffer_load_dwordx4 v[236:239], v{vL16}, s[{sWS}:{sWS+3}], s31 offen offset:1024{SC}")
                for p_ in range(3):
                    g0 = 2 + 10 * p_
                    sc[g0].append(f"s_mov_b32 m0, s{sKm}")
                    for j in range(4): mem[g0+1+2*j].append(f"buffer_load_dwordx4 v{vL16}, s[{sK}:{sK+3}], s{sKo} offen offset:{j*1024}{SC} lds")
                    sc[g0+2].append(f"s_add_u32 s{sKm}, s{sKm}, 32768"); sc[g0+3].append(f"s_and_b32 s{sKm}, s{sKm}, 0x1ffff")
                    sc[g0+8].append(f"s_add_u32 s{sKo}, s{sKo}, 16384")
                def cvq(X, qb):
                    return [f"v_cvt_pk_bf16_f32 v{Q+32*X+8*ks+4*qb+2*hh+e}, v{QACC+((2*ks+hh)*4+2*X+qb)*4+2*e}, v{QACC+((2*ks+hh)*4+2*X+qb)*4+2*e+1}"
                            for ks in range(4) for hh in range(2) for e in range(2)]
                for q in range(4): va[2 + 2 * q].append(f"v_mov_b32 v{LS+q}, 0")
                for q, x in enumerate(cvq(0, 0)): va[10 + q * 10 // 16].append(x)
                for q, x in enumerate(cvq(0, 1)): va[20 + q * 11 // 16].append(x)
            cap = [max(0, 2 - len(mem[g]) - len(va[g])) for g in range(31)]
            nv = sum(1 for t_ in toks if t_[0] != "s")
            nz = len(zpool) if s_ == 19 else min(len(zpool), max(0, sum(cap) - nv - per[s_] - 1))
            toks += [("v", x) for x in zpool[:nz]]; zpool = zpool[nz:]
            nv += nz
            extra = max(0, nv - sum(cap))
            while True:
                cp = list(cap); plc = []; nsc = {g: len(sc[g]) for g in range(32)}
                for q in range(extra): cp[(q * 30 // extra) % 30] += 1
                g = 0; smin = 0; ok = True
                for kind, x in toks:
                    if kind == "s":
                        gg = max(g, smin)
                        while gg < 30 and nsc[gg] and gg < max(g, smin) + 3: gg += 1
                        gg = min(gg, 30); nsc[gg] += 1
                        plc.append((sc, gg, x, None)); smin = gg + 1
                        continue
                    if kind != "v": g = max(g + 1, smin - 1)
                    while g < 31 and cp[g] == 0: g += 1
                    if g >= 31: ok = False; break
                    cp[g] -= 1
                    if kind == "v": plc.append((va, g, x, None))
                    else: plc.append((mem, g, x, kind)); smin = g + 1
                if ok: break
                extra += 1
            for (d_, g, x, kind) in plc:
                d_[g].append(x)
                if kind: tags[g].append(kind)
            for g in range(31):
                for t_ in tags[g]: vm.issue(t_)
            if s_ < 19:
                need = []
                if s_ + 2 < 20: need.append(f"X{s_+2}")
                if (s_ + 1) & 1:
                    st1 = (s_ + 2) // 2
                    if st1 < 10: need.append(f"W{st1}")
                if s_ + 1 == SFLAG: need.append("st0")
                if s_ == 18: need.append("poll")
                sc[31].append(f"s_waitcnt vmcnt({vm.need(*need)}) lgkmcnt(0)" if need else "s_waitcnt lgkmcnt(0)")
            for t_ in tags[31]: vm.issue(t_)
            if os.environ.get("QST"): a(stampv(30 + s_))
            a(weave(mf, sc, mem, va))
        assert it == 32 and not zpool
        stamp(a, 5); stamp(a, 7)
        a(self.cyc(57))
        cv = cvq(1, 0) + cvq(1, 1)
        for p_ in range(2):
            a(f"s_mov_b32 m0, s{sVm}", "s_nop 0")
            for j in range(4):
                a(f"v_mfma_f32_32x32x16_bf16 {ar(O+16*(4*p_+j),16)}, {vr(LS,4)}, {vr(LS,4)}, 0",
                  f"buffer_load_dwordx4 v{vL16}, s[{sV}:{sV+3}], s{sVo} offen offset:{j*1024}{SC} lds", cv[:4]); cv = cv[4:]
            a(f"s_add_u32 s{sVo}, s{sVo}, 16384", f"s_add_u32 s{sVm}, s{sVm}, 32768", f"s_and_b32 s{sVm}, s{sVm}, 0x1ffff")
        assert not cv
        a("s_waitcnt vmcnt(12)", "s_barrier")
        a([f"ds_read_b128 {ar(KF+4*i,4)}, v9 offset:{i*1024}" for i in range(8)])
        a(f"buffer_store_dword v{vNI}, off, s[{sWS}:{sWS+3}], s65 offset:32{SC}", f"v_add_u32 v13, 32, v{vPo}", "v_mov_b32 v14, 0")
        self.top8()
        a("s_waitcnt lgkmcnt(4)")

    def wf_addr(self, d):
        return [f"s_and_b32 s{d}, s2, 1", f"s_lshl_b32 s{d}, s{d}, 2", f"s_add_u32 s{d}, s{d}, s{sW}", f"s_lshl_b32 s{d}, s{d}, 7",
                "s_lshr_b32 s31, s2, 1", f"s_add_u32 s{d}, s{d}, s31", f"s_lshl_b32 s{d}, s{d}, 7", f"s_add_u32 s{d}, s{d}, {WF}"]
    def yf_addr(self, d):
        return [f"s_sub_u32 s{d}, s2, {FFN0}", f"s_lshl_b32 s31, s{sW}, 6", f"s_add_u32 s{d}, s{d}, s31", f"s_lshl_b32 s{d}, s{d}, 7", f"s_add_u32 s{d}, s{d}, {YF}"]
    def flag_store(self, addr_lines, wait):
        return addr_lines + [wait, f"buffer_store_dword v{vNI}, off, s[{sWS}:{sWS+3}], s23{SC}"]

    def co_setup(self):
        name = self.name
        return (["s_mov_b32 s101, 24"] if DBG else []) + [f"s_and_b32 s32, s{sH}, 3", "s_min_u32 s32, s32, 2", "s_add_u32 s32, s32, 5", "s_lshl_b32 s32, s32, 14",
          "s_mov_b32 s9, -1", "s_sub_u32 s23, s2, 64", "s_cmp_lt_u32 s23, 96\ns_cselect_b32 s9, 0, s9", "s_cmp_ge_u32 s2, 224\ns_cselect_b32 s9, 0, s9",
          "s_and_b32 s32, s32, s9", f"s_sub_u32 s23, s2, {FFN0}", f"s_cmp_lt_u32 s23, {FFN1-FFN0}\ns_cselect_b32 s32, {(3+self.FS)*16384}, s32",
          "s_mov_b32 s67, s2", "s_mov_b32 s8, 0", f"s_mov_b32 s{k2.sRing}, 0", "s_mov_b32 s11, 0", "s_mov_b32 s12, 0",
          f"s_lshl_b32 s15, s{sI}, 1", "s_add_u32 s23, s15, 6", f"s_sub_u32 s15, {32-self.U}, s15", "s_max_u32 s15, s15, s23", "s_lshl_b32 s15, s15, 14",
          f"s_getpc_b64 s[36:37]\n{name}_copc:", f"s_add_u32 s36, s36, {name}_co-{name}_copc-4", "s_addc_u32 s37, s37, 0"]

    def cyc(self, lane):
        if not (DBG and os.environ.get("CYC")): return []
        return ["s_memtime s[98:99]", "s_waitcnt lgkmcnt(0)", f"v_writelane_b32 v7, s98, {lane}"]

    def hook(self, cond=None, R=36):
        k = self.nhook; self.nhook += 1
        n = self.name
        dbg = ["s_memrealtime s[98:99]", "s_waitcnt lgkmcnt(0)", "s_mov_b32 s100, s98"] if (DBG and os.environ.get("REC")) else []
        self.tail += [f"{n}_hk{k}:"] + dbg + [f"s_getpc_b64 s[{R+2}:{R+3}]", f"{n}_hp{k}:", f"s_add_u32 s{R}, s{R}, 4", f"s_addc_u32 s{R+1}, s{R+1}, 0",
                      f"s_sub_u32 s{R+2}, s{R+2}, {n}_hp{k}-{n}_hb{k}", f"s_subb_u32 s{R+3}, s{R+3}, 0", f"s_setpc_b64 s[{R}:{R+1}]"]
        return [cond or f"s_cmp_ge_u32 s{sKo}, s32", [f"s_cbranch_scc1 {n}_hk{k}", f"{n}_hb{k}:"]]

    def coroutine(self):
        name = self.name
        a = Asm()
        cnt = [0]
        def rec():
            if DBG and os.environ.get("REC"): a("s_memrealtime s[98:99]", "s_waitcnt lgkmcnt(0)", "s_sub_u32 s98, s98, s100", "s_lshl_b32 s98, s98, 16", "s_and_b32 s100, s100, 0xffff",
                      "s_or_b32 s98, s98, s100", "s_mov_b32 m0, s101", "s_add_u32 s101, s101, 1", "v_writelane_b32 v7, s98, m0")
        def yld(n=1):
            for _ in range(n):
                rec()
                a("s_getpc_b64 s[36:37]", "s_setpc_b64 s[38:39]")
        G = 232; FW = 192; FX = 212; Y = 236
        def wo_reads():
            a("s_waitcnt vmcnt(8)")
            for cb in range(5):
                for tt in range(2): a(f"ds_read_b64_tr_b16 {vr(232+4*cb+2*tt,2)}, v6 offset:{tt*16*160 + cb*32}")
        def wo_stores():
            a("s_add_u32 s31, s30, 4096")
            for cb in range(5):
                a(f"buffer_store_dwordx4 {vr(232+4*cb,4)}, v{vL16}, s[{sWS}:{sWS+3}], s{30 if cb < 4 else 31} offen offset:{(cb%4)*1024}{SC}")
        a.label(f"{name}_co")
        a("s_sub_u32 s14, s2, 64", "s_cmp_lt_u32 s14, 96", f"s_cbranch_scc1 {name}_coT",
          "s_sub_u32 s14, s2, 128", "s_sub_u32 s23, s2, 224", f"s_cmp_lt_u32 s23, {TOPWG-224}", f"s_cbranch_scc1 {name}_coT")
        self.poll_check(a, "kv2", 14, 13, sWS, ["v_cmp_eq_u32 vcc, 0, v14"])
        a(f"s_sub_u32 s14, s2, {FFN0}", f"s_cmp_lt_u32 s14, {FFN1-FFN0}", f"s_cbranch_scc1 {name}_coF",
          f"s_cmp_eq_u32 s2, {TOPWG}", f"s_cbranch_scc1 {name}_coW",
          f"s_cmp_lt_u32 s2, {self.NOWO}", f"s_cbranch_scc1 {name}_coW", f"s_branch {name}_coO")
        a.label(f"{name}_coT")
        a(f"v_min_u32 v8, 16, v{vL}", "v_lshlrev_b32 v8, 7, v8" if "f" not in os.environ.get("NOT", "") else f"v_mov_b32 v8, {BIG}", "s_lshl_b32 s10, s14, 1", f"s_and_b32 s31, s{sW}, 1", "s_add_u32 s10, s10, s31",
          f"s_mul_i32 s10, s10, {17*128}", "s_lshl_b32 s35, s14, 2", f"s_add_u32 s35, s35, s{sW}", f"s_mul_i32 s35, s35, {34*128}")
        for k in range(4):
            if k == 2: self.poll_check(a, "kv3", 14, 13, sWS, ["v_cmp_eq_u32 vcc, 0, v14"])
            a("buffer_load_dword v255, v8, s[52:55], s10 offen", f"s_add_u32 s10, s10, {160*3456}")
            if k >= 2: a(f"buffer_load_dword v255, v8, s[60:63], s35 offen offset:{(k-2)*17*128}")
            if k == 3: a("s_mov_b32 s9, -1", f"s_and_b32 s32, s{sH}, 3", "s_lshr_b32 s32, s32, 1", "s_add_u32 s32, s32, 6", "s_lshl_b32 s32, s32, 14")
            yld()
        a.label(f"{name}_coO")
        a("s_and_b32 s23, s67, 1", "s_lshl_b32 s23, s23, 2", f"s_add_u32 s23, s23, s{sW}", "s_lshr_b32 s31, s67, 1",
          f"s_mul_i32 s33, s23, {-4*self.ROT}", "s_add_u32 s33, s33, s31", "s_and_b32 s33, s33, 31", "s_andn2_b32 s30, s31, 31", "s_add_u32 s33, s33, s30",
          "s_lshl_b32 s30, s23, 7", "s_add_u32 s30, s30, s33", f"s_mul_i32 s33, s31, {32*1280}", "s_mul_i32 s23, s23, 160", "s_add_u32 s33, s33, s23")
        for q in range(5):
            a(f"s_add_u32 m0, s34, {q*1024}", f"v_accvgpr_read_b32 v{vT+3}, a{248+q}", f"buffer_load_dwordx4 v{vT+3}, s[56:59], s33 offen lds")
        a("s_lshl_b32 s32, s11, 15", f"s_add_u32 s32, s32, s{sKo}", "s_mov_b32 s9, -1", "s_lshl_b32 s10, s30, 7", "s_mul_i32 s30, s30, 5120", f"s_add_u32 s30, s30, {WOF}")
        yld()
        wo_reads()
        a("s_waitcnt lgkmcnt(0)")
        wo_stores()
        yld()
        a(self.flag_store([f"s_add_u32 s23, s10, {WF}"], "s_waitcnt vmcnt(8)"),
          "s_cmp_lg_u32 s67, s2", f"s_cbranch_scc1 {name}_coW",
          "s_sub_u32 s67, s2, 128", f"s_cmp_lt_u32 s67, {self.NOWO}", f"s_cbranch_scc1 {name}_coO",
          "s_sub_u32 s23, s2, 96", "s_sub_u32 s31, s2, 192", "s_cmp_lt_u32 s23, 32", "s_cselect_b32 s23, s23, s31",
          f"s_cmp_gt_u32 s23, {FFN1-FFN0}", f"s_cbranch_scc1 {name}_coW",
          f"s_add_u32 s67, s23, {FFN0}", f"s_cmp_eq_u32 s67, {FFN1}", f"s_cselect_b32 s67, {TOPWG}, s67", f"s_branch {name}_coO")
        FV = self.FV
        a.label(f"{name}_coF")
        if os.environ.get("NOFFN"): a(self.flag_store(self.yf_addr(23), "s_nop 0"), f"s_branch {name}_coW")
        a(f"v_and_b32 v{vT}, 7, v{vL}", f"v_lshlrev_b32 v252, 2, v{vT}", f"v_add_u32 v252, {SEL}, v252",
          f"buffer_load_dword v15, v252, s[{sWS}:{sWS+3}], 0 offen{SC}")
        a("s_lshl_b32 s33, s14, 6", f"s_and_b32 s31, s{sW}, 1", "s_lshl_b32 s31, s31, 5", "s_add_u32 s33, s33, s31",
          "s_mul_i32 s35, s14, 40960", f"s_mul_i32 s31, s{sW}, 320", "s_add_u32 s35, s35, s31",
          "s_mul_i32 s10, s14, 20480", f"s_mul_i32 s31, s{sW}, 5120", "s_add_u32 s10, s10, s31", f"s_add_u32 s10, s10, {YP}")
        a(f"v_lshrrev_b32 v{vT+1}, 1, v{vL}", f"v_mul_u32_u24 v{FV[0]}, 3456, v{vT+1}", f"v_and_b32 v{vT+1}, 1, v{vL}", f"v_lshl_add_u32 v{FV[0]}, v{vT+1}, 4, v{FV[0]}")
        for q in range(1, 5): a(f"v_add_u32 v{FV[q]}, {q*32*3456 - (q%4)*1024}, v{FV[0]}")
        a(f"v_lshrrev_b32 v{vT+1}, 4, v{vL}",
          f"v_lshrrev_b32 v{vT+2}, 2, v{vL}", f"v_lshl_add_u32 v{vT+2}, v{vT+1}, 2, v{vT+2}",
          f"v_lshlrev_b32 v{vT+2}, 5, v{vT+2}", f"v_and_b32 v{vT+3}, 3, v{vL}", f"v_lshl_add_u32 v9, v{vT+3}, 3, v{vT+2}", "v_add_u32 v9, s34, v9",
          f"v_lshlrev_b32 v10, 4, v{vT}", f"v_lshl_add_u32 v10, v{vT+1}, 7, v10", f"v_add_u32 v10, {XS-2560}, v10", "s_mov_b32 s8, -1",
          "s_mov_b32 s4, 0", "s_mov_b32 s5, 0", f"s_mov_b32 s6, {160*3456}")
        yld()
        a("s_waitcnt vmcnt(8)")
        self.poll_check(a, "sel", 15, 252, sWS, ["v_cmp_eq_u32 vcc, 0, v15"])
        a(f"v_add_u32 v{vT+2}, -1, v15", f"v_and_b32 v{vT+2}, 2047, v{vT+2}", f"v_lshrrev_b32 v{vT+3}, 4, v{vT+2}", f"v_mul_u32_u24 v{vT+3}, 20480, v{vT+3}",
          f"v_and_b32 v{vT+2}, 15, v{vT+2}", f"v_lshl_add_u32 v{vT+3}, v{vT+2}, 4, v{vT+3}",
          f"v_lshrrev_b32 v{vT+2}, 3, v{vL}", f"v_lshl_add_u32 v{vT+3}, v{vT+2}, 8, v{vT+3}",
          f"s_lshl_b32 s23, s{sW}, 11", f"s_lshl_b32 s31, s{sW}, 10", f"s_add_u32 s31, s31, {XS}", f"s_mov_b32 s32, {(8+self.FS)*16384}")
        for k in range(3):
            a("s_mov_b32 m0, s31", "s_add_u32 s31, s31, 4096", f"buffer_load_dwordx4 v{vT+3}, s[{sWS}:{sWS+3}], s23 offen{SC} lds",
              "s_add_u32 s23, s23, 8192")
        yld()
        for q in range(5): a(f"v_accvgpr_read_b32 v{FV[q]}, a{248+q}")
        for q in range(1, 4): a(f"v_subrev_u32 v{FV[q]}, {q*1024}, v{FV[q]}")
        a("s_mov_b32 s52, s60", "s_mov_b32 s53, s61", "s_mov_b32 s33, s35", "s_movk_i32 s6, 160", "s_mov_b32 s9, 0",
          f"v_and_b32 v{vT+1}, 7, v{vL}", f"v_lshlrev_b32 v15, 6, v{vT+1}", f"v_lshrrev_b32 v{vT+1}, 4, v{vL}", f"v_lshl_add_u32 v15, v{vT+1}, 4, v15",
          f"v_and_b32 v{vT+1}, 8, v{vL}", f"v_lshl_add_u32 v15, v{vT+1}, 27, v15")
        yld()
        a(f"s_lshl_b32 s23, s{sW}, 9", f"v_add_u32 v{vT}, s23, v10", "s_mov_b32 s9, -1", f"ds_write_b128 v{vT}, {vr(G,4)}")
        yld()
        GU = 236
        def dreads():
            a("s_waitcnt vmcnt(4)")
            for cb in range(5):
                for t in range(2): a(f"ds_read_b64_tr_b16 {ar(FW+4*cb+2*t,2)}, v6 offset:{t*2560+cb*32}")
        def dmm():
            a("s_waitcnt lgkmcnt(0)")
            for cb in range(5): a(f"{MF} {vr(Y+4*cb,4)}, {ar(FW+4*cb,4)}, {ar(232,4)}, 0")
            a("s_nop 3")
            for cb in range(5): a(f"buffer_store_dwordx4 {vr(Y+4*cb,4)}, v15, s[{sWS}:{sWS+3}], s10 offen offset:{cb*512}{SC}")
            a("s_add_u32 s10, s10, 2560")
        for k in range(4): a(f"ds_read_b128 {vr(GU+4*k,4)}, v10 offset:{k*512}")
        dreads()
        a("v_subrev_u32 v10, 10240, v10", "s_mov_b32 s8, 0", "s_waitcnt lgkmcnt(10)")
        for k in range(8):
            a(f"v_cvt_pk_bf16_f32 v{GU+k}, v{GU+k}, v{GU+8+k}")
        for k in range(8): a(f"v_lshlrev_b32 v{GU+8+k}, 16, v{GU+k}")
        for k in range(8): a(f"v_mul_f32 v{vT+k}, 0xbfb8aa3b, v{GU+8+k}")
        for k in range(8): a(f"v_exp_f32 v{vT+k}, v{vT+k}")
        for k in range(8): a(f"v_add_f32 v{vT+k}, 1.0, v{vT+k}")
        for k in range(8): a(f"v_rcp_f32 v{vT+k}, v{vT+k}")
        for k in range(8): a(f"v_and_b32 v{GU+k}, 0xffff0000, v{GU+k}")
        for k in range(4): a(f"v_pk_mul_f32 {vr(GU+8+2*k,2)}, {vr(GU+8+2*k,2)}, {vr(vT+2*k,2)}")
        for k in range(4): a(f"v_cvt_pk_bf16_f32 v{vT+k}, v{GU+8+2*k}, v{GU+9+2*k}")
        for k in range(4): a(f"v_lshlrev_b32 v{GU+8+2*k}, 16, v{vT+k}", f"v_and_b32 v{GU+9+2*k}, 0xffff0000, v{vT+k}")
        for k in range(4): a(f"v_pk_mul_f32 {vr(GU+2*k,2)}, {vr(GU+2*k,2)}, {vr(GU+8+2*k,2)}")
        for k in range(4): a(f"v_cvt_pk_bf16_f32 v{vT+k}, v{GU+2*k}, v{GU+2*k+1}")
        for k in range(4): a(f"v_accvgpr_write_b32 a{232+k}, v{vT+k}")
        a("s_nop 0")
        dmm()
        yld()
        dreads()
        dmm()
        yld()
        a(self.flag_store(self.yf_addr(23), "s_waitcnt vmcnt(8)"))
        a.label(f"{name}_coW")
        waddr = [f"s_lshl_b32 s23, s{sI}, 1", "s_and_b32 s31, s2, 1", "s_add_u32 s23, s23, s31", "s_lshl_b32 s23, s23, 2", f"s_add_u32 s23, s23, s{sW}",
                 f"s_mul_i32 s13, s23, {16*5120}", f"s_add_u32 s13, s13, {WOF}",
                 "s_lshl_b32 s23, s23, 11", f"s_add_u32 s23, s23, {WF}", f"v_and_b32 v9, 15, v{vL}", "v_lshl_add_u32 v9, v9, 7, s23",
                 "s_and_b32 s60, s2, 7", "s_lshl_b32 s60, s60, 1", "s_and_b32 s23, s2, 16", "s_add_u32 s60, s60, s23", "s_bfe_u32 s23, s2, 0x10003", "s_add_u32 s60, s60, s23"]
        a("s_mov_b32 s12, 1", "s_mov_b32 s9, -1", "s_cmp_lg_u32 s11, 0", "s_cselect_b32 s32, s15, -1")
        yld()
        a(waddr,
          f"v_and_b32 v10, 15, v{vL}", "v_lshlrev_b32 v10, 2, v10", f"v_add_u32 v10, {SEL}, v10",
          f"buffer_load_dword v8, v9, s[{sWS}:{sWS+3}], 0 offen{SC}", f"buffer_load_dword v15, v10, s[{sWS}:{sWS+3}], 0 offen{SC}")
        a("s_load_dwordx2 s[52:53], s[0:1], 0")
        if os.environ.get("CT3", "0") == "1":
            a("s_getpc_b64 s[4:5]", f"{name}_pc3:", f"s_sub_u32 s4, s4, {name}_pc3-{name}_chain", "s_subb_u32 s5, s5, 0", f"s_and_b32 s23, s{sH}, 3",
              "s_lshl_b32 s23, s23, 2", f"s_add_u32 s23, s23, s{sW}", "s_lshl_b32 s23, s23, 11", f"s_min_u32 s23, s23, {name}_end-{name}_chain-2048",
              f"v_and_b32 v14, 15, v{vL}", "v_lshl_add_u32 v14, v14, 7, s23", "global_load_dword v14, v14, s[4:5]")
        self.ctx_epi(a, 0, [32, 44, 96, 108])
        vXo, vLa, RS = 248, 251, 336
        a("s_lshl_b32 s33, s60, 6", f"s_mul_i32 s35, s{sI}, 160", f"s_mul_i32 s14, s{sI}, 2560", f"s_mov_b32 s54, {2048*1280}", "s_mov_b32 s55, 0x20000")
        for k in range(3):
            a(f"v_add_u32 v{vT}, {256*k}, v0", f"v_mul_u32_u24 v{vT+1}, 6554, v{vT}", f"v_lshrrev_b32 v{vT+1}, 16, v{vT+1}",
              f"v_mul_u32_u24 v{vT+2}, 10, v{vT+1}", f"v_sub_u32 v{vT+2}, v{vT}, v{vT+2}",
              f"v_mul_u32_u24 v{vLa+k}, {RS}, v{vT+1}", f"v_lshl_add_u32 v{vLa+k}, v{vT+2}, 5, v{vLa+k}", f"v_add_u32 v{vT+1}, s33, v{vT+1}",
              f"v_mul_u32_u24 v{vXo+k}, 1280, v{vT+1}", f"v_lshl_add_u32 v{vXo+k}, v{vT+2}, 4, v{vXo+k}", f"v_add_u32 v{vXo+k}, s35, v{vXo+k}",
              f"v_lshrrev_b32 v{vT+3}, 4, v{vT+1}", f"v_mul_u32_u24 v{vT+3}, 20480, v{vT+3}", f"v_and_b32 v{vT+1}, 15, v{vT+1}",
              f"v_lshl_add_u32 v{vT+3}, v{vT+1}, 4, v{vT+3}", f"v_lshl_add_u32 v{vT+8+k}, v{vT+2}, 8, v{vT+3}")
        a("v_cmp_gt_u32 vcc, 128, v0", f"v_mov_b32 v{vT}, {BIG}", f"v_mov_b32 v{vT+1}, 0", "v_lshlrev_b32 v6, 4, v0",
          f"v_cndmask_b32 v{vXo+2}, v{vT}, v{vXo+2}, vcc", f"v_cndmask_b32 v{vT+10}, v{vT}, v{vT+10}, vcc", f"v_cndmask_b32 v{vLa+2}, v{vT+1}, v{vLa+2}, vcc",
          f"v_cndmask_b32 v6, v{vT}, v6, vcc", f"s_lshl_b32 s23, s{sW}, 10", f"s_add_u32 s23, s23, {XS}", "s_waitcnt vmcnt(8) lgkmcnt(0)")
        for k in range(3):
            a(f"s_add_u32 m0, s34, {k*1024}", "s_nop 0", f"buffer_load_dwordx4 v{vXo+k}, s[52:55], 0 offen lds",
              f"s_add_u32 m0, s34, {(3+k)*1024}" if k < 2 else "s_mov_b32 m0, s23", "s_nop 0", f"buffer_load_dwordx4 v{vT+8+k}, s[{sWS}:{sWS+3}], s14 offen{SC} lds")
        a(f"s_mov_b32 s28, s{sK+2}", "s_add_u32 s30, s28, 65536", f"s_lshl_b32 s23, s{sW}, 12", "s_add_u32 s23, s23, s28",
          f"s_add_u32 s31, s13, {self.FL*1024}", "s_sub_u32 s31, s31, s23", "s_add_u32 s4, s18, s31", "s_addc_u32 s5, s19, 0",
          "s_add_u32 s6, s4, 4096", "s_addc_u32 s7, s5, 0")
        self.poll_check(a, "wof", 8, 9, sWS, ["v_cmp_eq_u32 vcc, 0, v8"])
        self.poll_check(a, "sel4", 15, 10, sWS, ["v_cmp_eq_u32 vcc, 0, v15"])
        a("s_lshl_b32 s31, s60, 6", "s_add_u32 s31, s31, 1", f"v_subrev_u32 v{vT}, s31, v15", f"v_cmp_gt_u32 vcc, 64, v{vT}",
          f"s_cmp_lt_u32 s{sW}, 2", "s_cselect_b32 s23, 0xff, 0", "s_and_b32 s10, vcc_lo, s23",
          "s_sub_u32 s23, s10, 1", "s_and_b32 s23, s23, s10", f"s_cmp_eq_u32 s{sW}, 1", "s_cselect_b32 s10, s23, s10",
          "s_cmp_eq_u32 s10, 0", f"s_cbranch_scc1 {name}_coEnd")
        a(f"v_min_u32 v11, {FFN1-FFN0-1}, v{vL}", f"s_lshr_b32 s23, s{sI}, 1", "s_lshl_b32 s23, s23, 13", f"s_add_u32 s23, s23, {YF}",
          "v_lshl_add_u32 v11, v11, 7, s23", f"buffer_load_dword v14, v11, s[{sWS}:{sWS+3}], 0 offen{SC}")
        YQ = list(range(64, 96, 4)) + list(range(128, 160, 4)) + [176, 180]
        AC = YQ[0]
        a(f"v_mul_u32_u24 v{vT}, 3277, v{vL}", f"v_lshrrev_b32 v{vT}, 16, v{vT}", f"v_mul_u32_u24 v8, 20, v{vT}",
          f"v_sub_u32 v8, v{vL}, v8", "v_lshlrev_b32 v8, 4, v8",
          f"v_mul_u32_u24 v9, {18*20480}, v{vT}", f"v_lshrrev_b32 v{vT+1}, 6, v8", f"v_mul_u32_u24 v{vT+1}, 448, v{vT+1}", f"v_add3_u32 v9, v9, v8, v{vT+1}",
          f"v_cmp_gt_u32 vcc, 3, v{vT}", f"v_mov_b32 v{vT+3}, {BIG}", "s_nop 0", f"v_cndmask_b32 v9, v{vT+3}, v9, vcc")
        a("s_mov_b32 s12, 2", "s_mov_b32 s32, -1", "s_mov_b32 s11, 0")
        yld()
        self.poll_check(a, "yf", 14, 11, sWS, ["v_cmp_eq_u32 vcc, 0, v14"])
        a.label(f"{name}_coY")
        a("s_ff1_i32_b32 s33, s10", "s_bitset0_b32 s10, s33", "s_sub_u32 s23, s10, 1", "s_and_b32 s10, s10, s23",
          "s_lshl_b32 s14, s33, 6", f"s_mul_i32 s23, s{sI}, 2560", "s_add_u32 s14, s14, s23", f"s_add_u32 s14, s14, {YP}")
        for q in range(18):
            a(f"buffer_load_dwordx4 {vr(YQ[q],4)}, v9, s[{sWS}:{sWS+3}], s14 offen{SC}", "s_add_u32 s14, s14, 20480")
        a(f"s_lshl_b32 s14, s{sW}, 10", f"s_add_u32 s14, s14, {SCR}", f"v_add_u32 v{vT+3}, s14, v{vL16}", "s_add_u32 s23, s33, 8",
          "v_readlane_b32 s35, v15, s23", "s_waitcnt vmcnt(0)")
        for q in range(1, 18):
            for e in range(0, 4, 2): a(f"v_pk_add_f32 {vr(AC+e,2)}, {vr(AC+e,2)}, {vr(YQ[q]+e,2)}")
        a(f"ds_write_b128 v{vT+3}, {vr(AC,4)}", f"v_add_u32 v{vT+3}, s14, v8", "s_and_b32 s35, s35, 0xffff0000", "s_waitcnt lgkmcnt(0)",
          f"ds_read_b128 {vr(AC,4)}, v{vT+3}", f"ds_read_b128 {vr(AC+4,4)}, v{vT+3} offset:320", f"ds_read_b128 {vr(AC+8,4)}, v{vT+3} offset:640",
          "s_mul_i32 s14, s33, 320", f"s_add_u32 s14, s14, {UPD}", f"v_add_u32 v{vT+3}, s14, v8", "s_waitcnt lgkmcnt(0)")
        for e in range(4):
            a(f"v_add_f32 v{AC+e}, v{AC+e}, v{AC+4+e}", f"v_add_f32 v{AC+e}, v{AC+e}, v{AC+8+e}")
            bf16r(a, AC + e)
            a(f"v_mul_f32 v{AC+e}, s35, v{AC+e}")
            bf16r(a, AC + e)
        a(f"ds_write_b128 v{vT+3}, {vr(AC,4)}", "s_waitcnt lgkmcnt(0)", "s_cmp_lg_u32 s10, 0", f"s_cbranch_scc1 {name}_coY")
        a.label(f"{name}_coEnd")
        a("s_mov_b32 s12, 3", "s_mov_b32 s32, -1")
        rec()
        a("s_setpc_b64 s[38:39]")
        self.tail += a.lines

    def phase3(self):
        a = self.a; name = self.name
        a(self.period(1, ["q", "q"], c0=True))
        a("s_nop 7", f"s_cmp_lg_u32 s{sCnt}, 0", f"s_cbranch_scc1 {name}_nomask0")
        a(mask_ops(0, 0))
        a.label(f"{name}_nomask0")
        for X in range(2):
            for qb in range(2):
                s0 = S + 32 * X + 8 * qb; d = vT + 2 * X + qb
                a(f"v_max3_f32 v{d}, v{s0}, v{s0+1}, v{s0+2}", f"v_max3_f32 v{d}, v{d}, v{s0+3}, v{s0+4}",
                  f"v_max3_f32 v{d}, v{d}, v{s0+5}, v{s0+6}", f"v_max_f32 v{d}, v{d}, v{s0+7}")
        for sw in ("v_permlane16_swap_b32", "v_permlane32_swap_b32"):
            for k in range(4): a(f"v_mov_b32 v{vT+4+k}, v{vT+k}")
            a("s_nop 0")
            for k in range(4): a(f"{sw} v{vT+k}, v{vT+4+k}")
            for k in range(4): a(f"v_max_f32 v{vT+k}, v{vT+k}, v{vT+4+k}")
        for X in range(2):
            for qb in range(2):
                for r in range(4): a(f"v_sub_f32 v{NM+8*X+4*qb+r}, 0, v{vT+2*X+qb}")
        for X in range(2):
            for qb in range(2):
                s0 = S + 32 * X + 8 * qb
                for r in range(8): a(f"v_sub_f32 v{s0+r}, v{s0+r}, v{vT+2*X+qb}")
        a(self.period(0, ["qs", "qs"]))
        a(f"buffer_load_dword v14, v13, s[{sWS}:{sWS+3}], 0 offen{SC}")
        stamp(a, 8)
        a(self.cyc(50))
        F = "qsv"
        a(f"s_cmp_eq_u32 s{sCnt}, 0", f"s_cbranch_scc1 {name}_AV", f"s_sub_u32 s{sCnt}, s{sCnt}, 1",
          f"s_cmp_eq_u32 s{sCnt}, 0", f"s_cbranch_scc1 {name}_Aexit")
        a(".p2align 6")
        a.label(f"{name}_DD")
        a(self.period(1, [F, F], bar=12, hook=self.hook()))
        a.label(f"{name}_DDe")
        a(self.period(0, [F, F], tail_sc=[f"s_sub_u32 s{sCnt}, s{sCnt}, 1", f"s_cmp_gt_u32 s{sCnt}, s8"], hook=self.hook(f"s_cmp_ge_u32 s{sKo}, s9")))
        a(f"s_cbranch_scc1 {name}_DD", "s_cmp_lg_u32 s8, 0", f"s_cbranch_scc1 {name}_DDF")
        ex = [([f"s_add_u32 m0, s34, {(q//4)*4096}"] if q % 4 == 0 else [],
               f"buffer_load_dwordx4 v{self.FV[q]}, s[52:55], s33 offen offset:{(q%4)*1024} lds") for q in range(5)]
        hk = self.hook()
        k_ = self.nhook - 1
        self.tail[-3] = f"s_add_u32 s38, s38, {name}_hb{k_}-{name}_hp{k_}"; self.tail[-2] = "s_addc_u32 s39, s39, 0"
        G, FW, FX = 232, 192, 212
        rd = []
        for q in range(5):
            rd += [f"ds_read_b64_tr_b16 {ar(FW+4*q+2*t,2)}, v9 offset:{q*1024+t*128}" for t in range(2)] + [f"ds_read_b128 {ar(FX+4*q,4)}, v10 offset:{q*512}"]
        rg = [3, 4, 5, 5, 7, 7, 8, 9, 9, 10, 10, 11, 11, 14, 14]
        xpost = [(20 + k, f"v_and_b32 v{G+k}, s4, v{G+k}") for k in range(4)] + [(18, "v_add_u32 v10, 2560, v10")]
        xpost += [(34 + 5 * q, f"{MF} {vr(G,4)}, {ar(FW+4*q,4)}, {ar(FX+4*q,4)}, {vr(G,4)}") for q in range(5)]
        xsc = [(33, "s_mov_b32 s4, s5"), (34, "s_mov_b32 s5, -1"), (57, "s_add_u32 s33, s33, s6")]
        self.tail += [f"{name}_DDF:"] + self.period(1, [F, F], bar=4, hook=hk, extra=ex, dgaps=[6, 13, 19, 25], egaps=[31, 37, 43, 49, 55],
                                                    xmem=list(zip(rg, rd)), xsc=xsc, xpost=xpost) + [f"s_branch {name}_DDe"]
        self.coroutine()
        a.label(f"{name}_Aexit")
        a(self.cyc(51))
        a(f"s_bitcmp1_b32 s{sW}, 0", f"s_cbranch_scc1 {name}_Aodd")
        a(self.period(1, [F, F], bar=12))
        a(self.period(0, ["smv", F]))
        a.label(f"{name}_AV")
        a(self.period(1, ["v", F], bar=12))
        a(self.period(0, ["", F]))
        a(f"s_branch {name}_SSpre")
        a.label(f"{name}_Aodd")
        a(self.period(1, ["smv", F], bar=12))
        a(self.period(0, ["v", F]))
        a.label(f"{name}_SSpre")
        a(self.cyc(52))
        a("s_mov_b32 s11, 1", "s_cmp_lg_u32 s12, 0", "s_cselect_b32 s32, s15, s32")
        U, KY = self.U, self.KY
        def wx(fs):
            out = []
            for k, e in enumerate(fs):
                f = self.EF[59 - e]
                pre = [f"s_add_u32 s14, s13, {(f//4)*4096}"] if (k == 0 or f % 4 == 3) else []
                out.append((pre, self.wl(f)))
            return out
        def drain(lv):
            h = self.hook(f"s_cmp_lt_u32 s12, {lv}")
            a(h[1][1], h[0], h[1][0])
        a(f"s_cmp_ge_u32 s{sW}, 2", f"s_cselect_b32 s23, {U}, 0", f"s_cmp_le_u32 s{sNSS}, s23", f"s_cbranch_scc1 {name}_chain")
        a(".p2align 6")
        a.label(f"{name}_SS")
        a(self.period(1, ["", F], bar=12, hook=self.hook()))
        a(self.period(0, ["", F], tail_sc=[f"s_sub_u32 s{sNSS}, s{sNSS}, 1", f"s_cmp_gt_u32 s{sNSS}, {U}"]))
        a(f"s_cbranch_scc1 {name}_SS")
        a.label(f"{name}_chain")
        if os.environ.get("PRIO", "1") == "1": a("s_setprio 3")
        a(self.cyc(53))
        drain(2)
        a(f"s_cmp_eq_u32 s{sNSS}, {U}", f"s_cbranch_scc0 {name}_disp")
        t = Asm()
        t.label(f"{name}_disp")
        for k in range(U - 1, 0, -1): t(f"s_cmp_eq_u32 s{sNSS}, {k}", f"s_cbranch_scc1 {name}_SSW{k}")
        t(f"s_branch {name}_Bexit")
        self.tail += t.lines
        for k in range(U, 0, -1):
            a.label(f"{name}_SSW{k}")
            f0 = sum(self.CB[:U-k]); nb = self.CB[U-k]; h1 = nb // 2
            a(self.period(1, ["", F], bar=(8 if k == 1 else 12), extra=wx(range(f0, f0 + h1)), redir=(k <= 3)))
            a(self.period(0, ["", F], extra=wx(range(f0 + h1, f0 + nb)), redir=(k <= 3)))
        a.label(f"{name}_Bexit")
        a(self.cyc(54))
        f0 = U * 6
        a(f"s_bitcmp1_b32 s{sW}, 0", f"s_cbranch_scc1 {name}_Bodd")
        a(self.period(1, ["", F], bar=8, dma=False, kread=False, extra=wx(range(f0, f0 + 6))))
        a(self.period(0, ["", "smv"], dma=False, kread=False, extra=wx(range(f0 + 6, f0 + 10))))
        a(self.period(1, ["", "v"], bar=10, dma=False, kread=False, extra=wx(range(f0 + 10, f0 + 12)), condbar=f"{name}_nb0"))
        a(f"s_branch {name}_Bdone")
        a.label(f"{name}_Bodd")
        a(self.period(1, ["", "smv"], bar=8, dma=False, kread=False, extra=wx(range(f0, f0 + 7)), condbar=f"{name}_nb1"))
        a(self.period(0, ["", "v"], dma=False, kread=False, extra=wx(range(f0 + 7, f0 + 12))))
        self.wx = wx
        a.label(f"{name}_Bdone")
        a.label(f"{name}_epi")
        stamp(a, 9)
        a(self.cyc(55))
        self.ctx_epi(a, 1, [64, 76, 128, 140])

    def ctx_epi(self, a, X, Ts):
        L = LS + 2 * X
        for sw in ("v_permlane16_swap_b32", "v_permlane32_swap_b32"):
            for k in range(2): a(f"v_mov_b32 v{vT+4+k}, v{L+k}")
            a("s_nop 1")
            for k in range(2): a(f"{sw} v{L+k}, v{vT+4+k}")
            for k in range(2): a(f"v_add_f32 v{L+k}, v{L+k}, v{vT+4+k}")
        for k in range(2): a(f"v_rcp_f32 v{vT+2*k}, v{L+k}")
        if X == 0: a(f"s_lshl_b32 s23, s{sI}, 2")
        else: a(f"s_sub_u32 s23, 15, s{sI}", "s_lshl_b32 s23, s23, 2")
        for k in range(2): a(f"v_mov_b32 v{vT+2*k+1}, v{vT+2*k}")
        a(f"s_add_u32 s23, s23, s{sW}", "s_lshl_b32 s23, s23, 18", f"s_lshl_b32 s31, s{sH}, 12",
          f"s_add_u32 s31, s31, {CTX}", f"s_add_u32 s{sXo}, s23, s31", f"s_add_u32 s{sXo+1}, s{sXo}, {1<<17}")
        k = 0
        for qb in range(2):
            for t in range(4):
                T = Ts[k % len(Ts)]; k += 1
                f = vT + 2 * qb
                for hh in range(2):
                    for r in range(4): a(f"v_accvgpr_read_b32 v{T+4+4*hh+r}, a{O+64*X+8*(2*t+hh)+4*qb+r}")
                for r in range(4): a(f"v_pk_mul_f32 {vr(T+4+2*r,2)}, {vr(T+4+2*r,2)}, {vr(f,2)}")
                for r in range(4): a(f"v_cvt_pk_bf16_f32 v{T+r}, v{T+4+2*r}, v{T+5+2*r}")
                a(f"buffer_store_dwordx4 {vr(T,4)}, v{vL16}, s[{sWS}:{sWS+3}], s{sXo+qb} offen offset:{t*1024}{SC}")

    LF = [32, 33, 34, 35, 36, 37, 38, 39, 48, 49, 50, 51, 52, 53, 54, 55, 64, 65, 66, 67]
    EF = [f for f in range(80) if f not in (32, 33, 34, 35, 36, 37, 38, 39, 48, 49, 50, 51, 52, 53, 54, 55, 64, 65, 66, 67)]
    _EQ = ([vr(b, 4) for b in range(32, 64, 4)] + [vr(b, 4) for b in range(96, 128, 4)] + [vr(b, 4) for b in range(160, 176, 4)]
           + [vr(b, 4) for b in range(232, 248, 4)] + [vr(192, 4), vr(196, 4), vr(208, 4), vr(212, 4)]
           + [ar(b, 4) for b in range(0, 64, 4)] + [ar(b, 4) for b in range(192, 256, 4)])
    _LQ = [vr(b, 4) for b in range(64, 96, 4)] + [vr(b, 4) for b in range(128, 160, 4)] + [vr(b, 4) for b in range(176, 192, 4)]
    WQ = dict(list(zip(EF, _EQ)) + list(zip(LF, _LQ)))
    def wl(self, f):
        return f"buffer_load_dwordx4 {self.WQ[f]}, v{vL16}, s[{sWS}:{sWS+3}], s14 offen offset:{(f%4)*1024}{SC}"

    def phase4(self):
        a = self.a; name = self.name
        RS = 336; PART = 64 * RS
        ACq = [ar(b, 4) for b in range(64, 144, 4)]
        CRq = [ar(b, 4) for b in range(144, 192, 4)] + [vr(b, 4) for b in range(216, 232, 4)]
        vXo, vLa, vXn, vUp = 248, 251, 200, 203
        sX, sO = 44, 48
        sCo = 64
        sMT, sNG = 60, sI
        def cl(ks, qb): return f"buffer_load_dwordx4 {CRq[4*(ks%4)+qb]}, v{vL16}, s[{sWS}:{sWS+3}], s{sCo+qb} offen offset:{(ks%4)*1024}{SC}"
        def cbase(src): return [f"s_add_u32 s{sCo}, {src}"] + [f"s_add_u32 s{sCo+qb}, s{sCo}, {qb<<17}" for qb in range(1, 4)]
        a("s_load_dwordx2 s[16:17], s[0:1], 88")
        a(f"v_mov_b32 v{vT+14}, {BIG}", f"v_writelane_b32 v{vT+14}, s{sCFA}, 0", f"v_writelane_b32 v{vT+14}, s{sCFB}, 1")
        a("s_and_b32 s23, s2, 1", "s_lshl_b32 s23, s23, 2", f"s_add_u32 s61, s23, s{sW}", "s_lshl_b32 s23, s61, 14", f"s_add_u32 s23, s23, {CTX}",
          f"s_lshl_b32 s63, s{sMT}, 19", "s_add_u32 s63, s63, s23", f"s_xor_b32 s62, s63, {2<<19}", cbase("s62, 0"))
        a(f"v_bfe_u32 v12, v{vL}, 2, 1", f"v_mul_u32_u24 v12, {CS}, v12", f"v_and_b32 v13, 3, v{vL}", f"v_lshl_add_u32 v12, v13, {CH}, v12",
          f"s_lshl_b32 s31, s61, {CH+2}", f"s_add_u32 s31, s31, {CF}", f"s_mul_i32 s23, s{sMT}, {2*CS}", "s_add_u32 s23, s23, s31", "v_add_u32 v10, s23, v12",
          f"s_xor_b32 s23, s{sMT}, 2", f"s_mul_i32 s23, s23, {2*CS}", "s_add_u32 s23, s23, s31", "v_add_u32 v12, s23, v12")
        a([f"v_mov_b32 v{vT+4+i}, 0" for i in range(4)], f"v_add_u32 v{vT}, {UPD+2560}, v{vL16}", f"ds_write_b128 v{vT}, {vr(vT+4,4)}")
        a("s_waitcnt vmcnt(0)", f"buffer_store_dword v{vNI}, v{vT+14}, s[{sWS}:{sWS+3}], 0 offen{SC}", "s_setprio 0")
        stamp(a, 10)
        a(self.cyc(60))
        a(self.hook("s_cmp_lt_u32 s12, 3"))
        a(f"s_cmp_lt_u32 s{sNSS}, {self.U}", f"s_cbranch_scc1 {name}_left")
        a.label(f"{name}_leftb")
        t = Asm()
        t.label(f"{name}_left")
        for k in range(self.U, 0, -1):
            if k < self.U: t(f"s_cmp_ge_u32 s{sNSS}, {k}", f"s_cbranch_scc1 {name}_leftb")
            for (pre, l) in self.wx(range(sum(self.CB[:self.U-k]), sum(self.CB[:self.U-k+1]))): t(pre, l)
        t(f"s_branch {name}_leftb")
        self.tail += t.lines
        a("s_lshl_b32 s34, s28, 1", f"s_and_b32 s23, s{sW}, 1", "s_lshl_b32 s23, s23, 12", f"s_cmp_lt_u32 s{sW}, 2", f"s_cselect_b32 s33, {131072-24576}, 0",
          "s_add_u32 s33, s33, s23", "s_add_u32 s33, s33, s34", "s_and_b32 s33, s33, 0x1ffff",
          f"s_lshl_b32 s23, s{sW}, 12", f"s_add_u32 s34, s34, {32768+16384}", "s_add_u32 s34, s34, s23", "s_and_b32 s34, s34, 0x1ffff",
          "s_add_u32 s23, s23, s28", f"s_cmp_lt_u32 s{sNSS}, 3",
          f"s_cselect_b32 s{sKo}, s23, s{sKo}", f"s_cselect_b32 s{sVo}, s23, s{sVo}", f"s_cselect_b32 s{sKm}, s33, s{sKm}", f"s_cselect_b32 s{sVm}, s34, s{sVm}",
          f"s_mov_b64 s[{sK}:{sK+1}], s[4:5]", f"s_mov_b64 s[{sV}:{sV+1}], s[6:7]", f"s_mov_b32 s{sK+2}, s30", f"s_mov_b32 s{sV+2}, s30")
        def piece(srdn, so, sm):
            return [f"s_mov_b32 m0, s{sm}", f"s_add_u32 s{sm}, s{sm}, 32768", f"s_and_b32 s{sm}, s{sm}, 0x1ffff"] + \
                   [f"buffer_load_dwordx4 v{vL16}, s[{srdn}:{srdn+3}], s{so} offen offset:{q*1024}{SC} lds" for q in range(4)] + [f"s_add_u32 s{so}, s{so}, 16384"]
        for tag, (srdn, so, sm), lim in (("pk", (sK, sKo, sKm), 3), ("pv", (sV, sVo, sVm), 2)):
            a(f"s_add_u32 s23, s28, {lim*16384}")
            a.label(f"{name}_{tag}")
            a(f"s_cmp_ge_u32 s{so}, s23", f"s_cbranch_scc1 {name}_{tag}d", piece(srdn, so, sm), f"s_branch {name}_{tag}")
            a.label(f"{name}_{tag}d")
        a("s_waitcnt lgkmcnt(0)", "s_barrier")
        a(f"buffer_load_dword v13, v12, s[{sWS}:{sWS+3}], 0 offen{SC}")
        a(
          "s_mul_i32 s28, s2, 24576", f"s_add_u32 s28, s28, {PX}", "s_xor_b32 s23, s2, 1", "s_mul_i32 s29, s23, 24576", f"s_add_u32 s29, s29, {PX}",
          "s_lshl_b32 s30, s2, 2", f"s_add_u32 s30, s30, s{sW}", "s_lshl_b32 s30, s30, 7", f"s_add_u32 s30, s30, {XFL}", "s_xor_b32 s35, s30, 512",
          "v_lshlrev_b32 v9, 4, v0", "v_mov_b32 v8, s35", f"s_lshl_b32 s25, s{sMT}, 6", "s_add_u32 s25, s25, 1",
          f"s_mul_i32 s26, s{sW}, 5120", f"s_add_u32 s26, s26, {SPARE}", f"s_mul_i32 s27, s{sW}, 1024", f"s_add_u32 s27, s27, {XS}")
        srd(a, sO, "s16", "s17", 2048 * 1280)
        a("s_waitcnt vmcnt(0)")
        a(stampv(20), self.cyc(61))
        self.poll_check(a, "ctx", 13, 12, sWS, ["v_cmp_eq_u32 vcc, 0, v13"])
        a(stampv(21))
        for ks in range(4): a([cl(ks, qb) for qb in range(4)])
        for kind, sreg, fs in (("K", 33, (32, 48, 64)), ("V", 34, (36, 52))):
            for f0 in fs:
                a(f"v_add_u32 v11, s{sreg}, v{vL16}", f"s_add_u32 s{sreg}, s{sreg}, 32768", f"s_and_b32 s{sreg}, s{sreg}, 0x1ffff",
                  [f"ds_read_b128 {self.WQ[f0+q]}, v11 offset:{q*1024}" for q in range(4)])
        a(cbase(f"s{sCo}, 4096"), "s_waitcnt vmcnt(14) lgkmcnt(0)")
        a(stampv(22), self.cyc(58))
        tm = [f"v_add_u32 v{vXn}, s26, v{vL16}", f"v_add_u32 v{vXn+1}, s27, v{vL16}"]
        for k in range(3):
            tm += [f"v_add_u32 v{vT}, {256*k}, v0", f"v_mul_u32_u24 v{vT+1}, 6554, v{vT}", f"v_lshrrev_b32 v{vT+1}, 16, v{vT+1}",
              f"v_mul_u32_u24 v{vT+2}, 10, v{vT+1}", f"v_sub_u32 v{vT+2}, v{vT}, v{vT+2}", f"v_lshlrev_b32 v{vUp+k}, 5, v{vT+2}",
              f"v_add_u32 v{vT+8+k}, s25, v{vT+1}", f"v_mov_b32 v{vT+11+k}, 8"]
        tm += [f"v_readlane_b32 s{68+k}, v15, {k}" for k in range(8)]
        for k in range(8):
            tm += [f"v_cmp_eq_u32 s[{52+2*t_}:{53+2*t_}], s{68+k}, v{vT+8+t_}" for t_ in range(3)]
            tm += [f"v_cndmask_b32 v{vT+11+t_}, v{vT+11+t_}, {k}, s[{52+2*t_}:{53+2*t_}]" for t_ in range(3)]
        for t_ in range(3): tm += [f"v_mul_u32_u24 v{vT+11+t_}, 320, v{vT+11+t_}", f"v_add_u32 v{vUp+t_}, v{vUp+t_}, v{vT+11+t_}", f"v_add_u32 v{vUp+t_}, {UPD}, v{vUp+t_}"]
        tm += [f"v_and_b32 v{vT}, 15, v{vL}", f"v_mul_u32_u24 v{vT}, {RS}, v{vT}", f"v_lshrrev_b32 v{vT+1}, 4, v{vL}", f"v_lshl_add_u32 v{vT}, v{vT+1}, 4, v{vT}",
               f"v_add_u32 v{vT}, s24, v{vT}"]
        pw = lambda q: f"ds_write_b128 v{vT}, {ACq[(q%5)*4+q//5]} offset:{(q//5)*16*RS+(q%5)*64}"
        pr = lambda k, b: [f"ds_read_b128 {vr(b+8*p+4*hh,4)}, v{vLa+k} offset:{p*PART+16*hh}" for p in range(4) for hh in range(2)]
        MB = [32, 96, 32]; MR = [18, 20, 21]
        XQ = [160, 164, 168, 172, 232, 236]; XF = [96, 104, 112]; OF = [120, 192, 208]; PP = [240, 176, 184]
        vm = VM()
        for ks in range(4):
            for qb in range(4): vm.issue(f"C{ks}_{qb}")
        for ks in range(32):
            mf = [f"{MF} {ACq[cb*4+qb]}, {self.WQ[(ks%16)*5+cb]}, {CRq[4*(ks%4)+qb]}, {ACq[cb*4+qb] if ks % 16 else 0}" for qb in range(4) for cb in range(5)]
            sc = {g: [] for g in range(20)}; mem = {g: [] for g in range(20)}; va = {g: [] for g in range(20)}
            tg = {g: [] for g in range(20)}; need = []; lg = ""
            if ks == 0: sc[2].append(f"s_mul_i32 s24, s{sW}, {PART}")
            if ks < 9:
                for g in (0, 1, 2, 3, 5, 6, 7, 8, 10, 11, 12, 13, 15, 16, 17, 18):
                    if tm: va[g].append(tm.pop(0))
            if ks + 4 < 32:
                for qb in range(4):
                    mem[5*qb+4].append(cl(ks, qb)); tg[5*qb+4].append(f"C{ks+4}_{qb}")
                if ks % 4 == 0 and ks > 0:
                    for q, x in enumerate(cbase("s63, 0" if ks == 12 else f"s{sCo}, 4096")): sc[[3, 5, 6, 10][q]].append(x)
            def chk(tag, vreg, voff):
                tmp = Asm(); self.poll_check(tmp, tag, vreg, voff, sWS, [f"v_cmp_eq_u32 vcc, 0, v{vreg}"])
                va[0].append(tmp.lines[0]); sc[2] += tmp.lines[1:]
            if ks == 9:
                mem[1].append(f"buffer_load_dword v13, v10, s[{sWS}:{sWS+3}], 0 offen{SC}"); tg[1].append("p2")
            if ks == 10: sc[7].append("s_barrier")
            if ks == 11: need.append("p2")
            if ks == 12: chk("ctx2", 13, 10)
            if ks in (15, 31):
                for q in range(11): mem[q+9].append(pw(q))
            if ks == 16:
                for q in range(11, 20): mem[q-11].append(pw(q))
                lg = " lgkmcnt(0)"
            if ks == 17: sc[7].append("s_barrier")
            for k in range(3):
                b = MB[k]
                if ks == MR[k]:
                    for g, x in zip((0, 1, 2, 3, 5, 6, 7, 8), pr(k, b)): mem[g].append(x)
                    lg = " lgkmcnt(0)"
                if ks == MR[k] + 1:
                    ops = []
                    for e in range(8): ops += [f"v_add_f32 v{b+e}, v{b+e}, v{b+8+e}", f"v_add_f32 v{b+16+e}, v{b+16+e}, v{b+24+e}"]
                    ops += [f"v_add_f32 v{b+e}, v{b+e}, v{b+16+e}" for e in range(8)]
                    for q, x in enumerate(ops): va[(q * 15) // 24].append(x)
                    sc[15].append(f"s_add_u32 s14, s28, {k*8192}"); sc[17].append(f"s_add_u32 s14, s28, {k*8192+4096}")
                    for hh, g in ((0, 16), (1, 18)):
                        mem[g].append(f"buffer_store_dwordx4 {vr(b+4*hh,4)}, v{9 if k < 2 else 6}, s[{sWS}:{sWS+3}], s14 offen{SC}"); tg[g].append("px")
            if ks == 23: sc[7].append("s_barrier")
            XFK = int(os.environ.get("XFK", "25"))
            if ks == XFK - 1: need.append("px")
            if ks == XFK:
                mem[1].append(f"buffer_store_dword v{vNI}, off, s[{sWS}:{sWS+3}], s30{SC}"); tg[1].append("xf")
            if ks == 24:
                for q in range(6): mem[[0, 3, 5, 6, 8, 10][q]].append(f"ds_read_b128 {vr(XQ[q],4)}, v{vXn + q//5} offset:{(q%5)*1024}")
            if ks == 25:
                for k in range(3):
                    for hh in range(2): mem[[0, 3, 5, 6, 8, 10][2*k+hh]].append(f"ds_read_b128 {vr(OF[k]+4*hh,4)}, v{vUp+k} offset:{16*hh}")
                lg = " lgkmcnt(0)"
            if 26 <= ks < 29:
                k = ks - 26
                ops = []
                for e in range(4):
                    x = XQ[k] + e; xn = XQ[3+k] + e; o = OF[k] + 2 * e; t0, t1 = vT + 2, vT + 3
                    ops += [f"v_lshlrev_b32 v{t0}, 16, v{xn}", f"v_and_b32 v{t1}, 0xffff0000, v{xn}",
                            f"v_add_f32 v{o}, v{o}, v{t0}", f"v_add_f32 v{o+1}, v{o+1}, v{t1}",
                            f"v_cvt_pk_bf16_f32 v{t0}, v{o}, v{o+1}",
                            f"v_lshlrev_b32 v{XF[k]+2*e}, 16, v{x}", f"v_and_b32 v{XF[k]+2*e+1}, 0xffff0000, v{x}",
                            f"v_lshlrev_b32 v{o}, 16, v{t0}", f"v_and_b32 v{o+1}, 0xffff0000, v{t0}"]
                for q, x in enumerate(ops): va[1 + q // 2].append(x)
            if ks == 28:
                mem[0].append(f"buffer_load_dword v13, v8, s[{sWS}:{sWS+3}], 0 offen{SC}"); tg[0].append("p3")
            if ks == 29: need.append("p3")
            if ks == 30:
                chk("px", 13, 8)
                for q in range(6):
                    sc[3+2*q].append(f"s_add_u32 s14, s29, {q*4096}")
                    mem[3+2*q].append(f"buffer_load_dwordx4 {vr(PP[q//2]+4*(q%2),4)}, v{9 if q < 4 else 6}, s[{sWS}:{sWS+3}], s14 offen{SC}"); tg[3+2*q].append("pp")
            for g in range(20):
                if g == 9: sc[g].insert(0, f"s_waitcnt vmcnt({vm.need(f'C{ks}_3')})")
                if g == 19 and ks < 31: sc[g].append(f"s_waitcnt vmcnt({vm.need(f'C{ks+1}_1', *need)}){lg}")
                for t_ in tg[g]: vm.issue(t_)
            if os.environ.get("OTR"): a("s_memtime s[98:99]", "s_waitcnt lgkmcnt(0)", f"v_writelane_b32 v7, s98, {24+ks}")
            a(weave(mf, sc, mem, va))
        assert not tm
        a(stampv(23), self.cyc(59))
        for q in range(11, 20): a(pw(q))
        a("s_waitcnt vmcnt(0) lgkmcnt(0)", "s_barrier")
        PVb = [32, 64, 128]
        for k in range(3): a(pr(k, PVb[k]))
        for k in range(3):
            a(f"s_waitcnt lgkmcnt({[15, 8, 0][k]})")
            b = PVb[k]
            for e in range(0, 8, 2):
                a(f"v_pk_add_f32 {vr(b+e,2)}, {vr(b+e,2)}, {vr(b+8+e,2)}", f"v_pk_add_f32 {vr(b+16+e,2)}, {vr(b+16+e,2)}, {vr(b+24+e,2)}")
            for e in range(0, 8, 2): a(f"v_pk_add_f32 {vr(b+e,2)}, {vr(b+e,2)}, {vr(b+16+e,2)}")
            for e in range(0, 8, 2): a(f"v_pk_add_f32 {vr(b+e,2)}, {vr(b+e,2)}, {vr(PP[k]+e,2)}")
            for src in (XF[k], OF[k]):
                for e in range(4): a(f"v_cvt_pk_bf16_f32 v{b+8+e}, v{b+2*e}, v{b+2*e+1}")
                for e in range(4): a(f"v_lshlrev_b32 v{b+2*e}, 16, v{b+8+e}", f"v_and_b32 v{b+2*e+1}, 0xffff0000, v{b+8+e}")
                for e in range(4): a(f"v_pk_add_f32 {vr(b+2*e,2)}, {vr(b+2*e,2)}, {vr(src+2*e,2)}")
            for e in range(4): a(f"v_cvt_pk_bf16_f32 v{b+12+e}, v{b+2*e}, v{b+2*e+1}")
            a(f"buffer_store_dwordx4 {vr(b+12,4)}, v{vXo+k}, s[{sO}:{sO+3}], 0 offen")

    def gen(self, with_p4=True):
        a = self.a; name = self.name
        self.tail = []; self.p4 = with_p4; self.nhook = 0
        self.phase1()
        self.phase2()
        self.phase3()
        if with_p4: self.phase4()
        stamp_flush(a, 0, sW, sWS)
        a.label(f"{name}_end")
        a("s_endpgm")
        a(self.tail)
        for (k, ss, par) in self.stubs:
            a.label(f"{name}_stub{k}")
            for X in ss: a(f"s_call_b64 s[{sRet}:{sRet+1}], {name}_rare{X}{par}")
            a(f"s_branch {name}_back{k}")
        a.label(f"{name}_codeend")
        for X in range(2):
            for par in range(2): self.rare(X, par)
            self.resc(X)
        return a
```

```python
import os
from asmlib import *
from gen_k1 import (XNF, RKEY, SEL, YP, WOF, KFO, VFO, CTX, WS_BYTES, MF, srd, bf16r, allreduce32_add,
                    stamp, stampc, stampv, stamp_init, stamp_flush, DBG)
import gen_k2 as k2
from gen_k2 import (vL, vL16, vKV, vNI, vX, vT, Q, S, P, NM, E, TS, LS, QACC, O, KF, VF, XR,
                    sW, sH, sI, sWS, sK, sV, sKm, sVm, sKo, sVo, sCnt, sNSS, sXo, sMask, sRet, sRet2, sThr,
                    xreduce, mask_ops)

LDS = 163840
FLG = 0x284000
KVF = 0x4000000
CF = 0x3A0000
CS = 4096; CH = int(os.environ.get('CH', '7'))
YF = 0x4010000
PX = 0xA00000
XFL = 0x4020000
WF = 0x4040000
SC = " sc1"
BIG = 0x40000000
SPARE = 131072
XS = SPARE + 20480
EX = SPARE + 30720
UPD = LDS - 8192
SCR = LDS - 4096
TOPWG = 255
FFN0, FFN1 = 170, 224
SPIN_MAX = 200000
sDb = 56
sCFA, sCFB, sKVa = 80, 3, 82
vWo, vWa, vCa = 8, 12, 14
vPoll, vZero, vPo = 15, 229, 8
vCo = 3

class VM:
    def __init__(self): self.ops = []
    def issue(self, tag, n=1): self.ops += [tag] * n
    def need(self, *tags):
        last = max(i for i, t in enumerate(self.ops) if t in tags)
        return min(63, len(self.ops) - 1 - last)

class Fused(k2.K2):
    SC = SC
    U = 8
    NQ = 32 - sum(int(c) for c in os.environ.get('HLD', '00111111111100000000'))
    FS = int(os.environ.get('FS', '2'))
    E7 = int(os.environ.get('E7', '0'))
    NOWO = int(os.environ.get('NOWO', '32'))
    CB = eval(os.environ.get('CB', '[3,3,4,6,8,8,8,8]'))
    FL = 32
    ROT = int(os.environ.get('ROT', '0'))
    FV = [8, 11, 12, 13, 14]
    KY = 3
    def poll_check(self, a, tag, vreg, voff, srdn, cmp_lines, soff="0"):
        n = self.name
        a(cmp_lines, f"s_cbranch_vccnz {n}_{tag}_spin")
        a.label(f"{n}_{tag}_ok")
        t = Asm()
        t.label(f"{n}_{tag}_spin")
        t(f"s_mov_b32 s83, {SPIN_MAX}")
        t.label(f"{n}_{tag}_spin2")
        t(f"buffer_load_dword v{vreg}, v{voff}, s[{srdn}:{srdn+3}], {soff} offen{SC}", "s_waitcnt vmcnt(0)")
        t(cmp_lines, f"s_cbranch_vccz {n}_{tag}_ok", f"s_sleep {os.environ.get('SLP', '3')}", "s_sub_u32 s83, s83, 1", "s_cmp_lg_u32 s83, 0",
          f"s_cbranch_scc1 {n}_{tag}_spin2", f"s_branch {n}_{tag}_ok")
        self.tail += t.lines

    def phase1(self):
        a = self.a; name = self.name
        sC, sWt, sX, sQ2, sWO, sWR = 32, 36, 44, 48, 52, 68
        sM0C, sStep, sOC, sOW, sIT = 24, 25, 26, 27, 28
        FA = 32; FB = 96
        a("s_cmp_ge_u32 s2, 256", f"s_cbranch_scc1 {name}_end")
        if os.environ.get("CT0", "1") == "1":
            a("s_getpc_b64 s[62:63]", "v_and_b32 v230, 127, v0", "v_lshlrev_b32 v230, 7, v230", "global_load_dword v231, v230, s[62:63]")
        stamp_init(a)
        a("s_load_dwordx4 s[4:7], s[0:1], 0", "s_load_dwordx4 s[8:11], s[0:1], 24", "s_load_dwordx2 s[14:15], s[0:1], 56",
          "s_load_dwordx2 s[12:13], s[0:1], 40", "s_load_dwordx4 s[16:19], s[0:1], 96", "s_load_dwordx2 s[60:61], s[0:1], 16")
        a(f"v_lshrrev_b32 v{vT}, 6, v0", f"v_and_b32 v{vL}, 63, v0", f"v_readfirstlane_b32 s{sW}, v{vT}")
        a(f"s_and_b32 s{sH}, s2, 7", f"s_lshl_b32 s{sH}, s{sH}, 2", "s_lshr_b32 s23, s2, 3", "s_and_b32 s23, s23, 3",
          f"s_add_u32 s{sH}, s{sH}, s23", f"s_lshr_b32 s{sI}, s2, 5")
        XV = 160; WR = 172; F = 184
        vU, vRow, vXo, vXo3, vWro = 208, 209, 210, 211, 212
        vS, vT2, vMean, vAcc = 213, 214, 216, 218
        vTW, vTR, vKo, vO1, vO3, vFl = 220, 221, 222, 223, 224, 225
        vTQ = 235; sM16 = 64
        LNPRE = os.environ.get("LNPRE", "1") == "1"
        lnaddr = [f"v_and_b32 v{vU}, 31, v{vL}", f"v_lshrrev_b32 v{vRow}, 5, v{vL}",
          "s_lshl_b32 s31, s2, 2", f"s_add_u32 s31, s31, s{sW}", "s_lshl_b32 s31, s31, 1", f"v_add_u32 v{vRow}, s31, v{vRow}",
          f"v_lshlrev_b32 v{vWro}, 4, v{vU}", f"v_mul_u32_u24 v{vXo}, 1280, v{vRow}", f"v_add_u32 v{vXo}, v{vXo}, v{vWro}",
          f"v_cmp_gt_u32 s[{sM16}:{sM16+1}], 16, v{vU}", f"v_mov_b32 v{vT+3}, {BIG}", f"v_and_b32 v{vTW}, 7, v{vRow}",
          f"v_cndmask_b32 v{vXo3}, v{vT+3}, v{vXo}, s[{sM16}:{sM16+1}]"]
        xloads = [f"buffer_load_dwordx4 {vr(XV,4)}, v{vXo}, s[{sX}:{sX+3}], 0 offen",
          f"buffer_load_dwordx4 {vr(XV+4,4)}, v{vXo}, s[{sX}:{sX+3}], 0 offen offset:512",
          f"buffer_load_dwordx4 {vr(XV+8,4)}, v{vXo3}, s[{sX}:{sX+3}], 0 offen offset:1024"]
        xloads += [f"buffer_load_dwordx4 {vr(WR+4*i,4)}, v{vWro}, s[{sWR}:{sWR+3}], 0 offen offset:{512*i}" for i in range(3)]
        if LNPRE: a(lnaddr)
        a(f"v_bfe_u32 v{vT+1}, v{vL}, 1, 3", f"v_lshlrev_b32 v{vT+1}, 13, v{vT+1}", f"v_and_b32 v{vT+2}, 1, v{vL}",
          f"v_lshl_add_u32 v{vTQ}, v{vT+2}, 7, v{vT+1}", f"s_lshl_b32 s74, s{sI}, 1", f"s_and_b32 s31, s{sW}, 1", "s_add_u32 s74, s74, s31",
          "s_lshl_b32 s74, s74, 16", f"s_mov_b32 s73, {128*8192}", f"v_and_b32 v{vT}, 15, v{vL}",
          f"v_lshlrev_b32 v{vT+1}, 10, v{vT}", f"v_and_b32 v{vT+2}, 16, v{vL}", f"v_lshl_add_u32 v233, v{vT+2}, 3, v{vT+1}",
          "s_lshl_b32 s30, s23, 5", f"s_add_u32 s30, s30, s{sW}", "s_lshl_b32 s30, s30, 14", f"s_lshl_b32 s29, s{sI}, 16", f"s_lshl_b32 s23, s{sH}, 8",
          f"s_cmp_ge_u32 s{sW}, 2", "s_waitcnt lgkmcnt(0)")
        if LNPRE:
            srd(a, sX, "s4", "s5", 2048*1280)
            srd(a, sWR, "s14", "s15", 1280)
            a(xloads)
        a("s_cselect_b32 s62, s10, s8", "s_cselect_b32 s63, s11, s9", "s_add_u32 s62, s62, s23", "s_addc_u32 s63, s63, 0")
        srd(a, sWt, "s62", "s63", 0)
        a(f"s_sub_u32 s{sWt+2}, {512*8192}, s23", f"buffer_load_dword v231, v{vTQ}, s[{sWt}:{sWt+3}], s74 offen",
          "s_add_u32 s6, s6, s29", "s_addc_u32 s7, s7, 0")
        srd(a, sC, "s6", "s7", 0)
        a(f"s_sub_u32 s{sC+2}, {2048*1024}, s29")
        a(f"buffer_load_dword v232, v233, s[{sC}:{sC+3}], s30 offen", "s_add_u32 s74, s74, s73")
        T01 = os.environ.get("T01", "1") == "1"
        t1 = [f"buffer_load_dword v231, v{vTQ}, s[{sWt}:{sWt+3}], s74 offen", f"buffer_load_dword v232, v233, s[{sC}:{sC+3}], s30 offen offset:256"]
        if "1" in os.environ.get("NOT", ""): t1 = [x.replace("s74 offen", "s73 offen offset:0").replace(f"v{vTQ}", f"v{vT+3}").replace("v233", f"v{vT+3}") for x in t1]
        if T01: a(t1)
        a("s_getpc_b64 s[8:9]", f"{name}_pc:", "s_lshr_b32 s31, s2, 3", "s_and_b32 s31, s31, 15", "s_lshl_b32 s31, s31, 2",
          f"s_add_u32 s31, s31, s{sW}", "s_lshl_b32 s31, s31, 11", f"s_min_u32 s31, s31, {name}_codeend-{name}_pc-2048",
          f"v_lshlrev_b32 v234, 7, v{vT}", "v_add_u32 v230, s31, v234", "global_load_dword v231, v230, s[8:9]",
          f"s_add_u32 s8, s8, {name}_co1-{name}_pc-4", "s_addc_u32 s9, s9, 0")
        a("s_add_u32 s60, s60, s23", "s_addc_u32 s61, s61, 0", f"s_sub_u32 s75, {640*8192}, s23")
        srd(a, sQ2, "s62", "s63", f"s{sWt+2}")
        a(f"v_lshlrev_b32 v{vL16}, 4, v{vL}",
          f"v_lshrrev_b32 v{vT+3}, 2, v{vL}", f"v_lshrrev_b32 v{vT+1}, 5, v{vL}", f"v_mul_u32_u24 v{vT+1}, 3, v{vT+1}",
          f"v_and_b32 v{vT+2}, 3, v{vL}", f"v_xor_b32 v{vT+1}, v{vT+1}, v{vT+2}", f"v_lshlrev_b32 v{vT+1}, 4, v{vT+1}",
          f"v_lshl_add_u32 v{vCo}, v{vT+3}, 10, v{vT+1}", f"s_lshl_b32 s23, s{sW}, 19", f"v_add_u32 v{vCo}, s23, v{vCo}")
        for j in range(1, 4): a(f"v_add_u32 v{vCo+j}, {j*(16384-1024)}, v{vCo}")
        a(f"v_and_b32 v{vT+3}, 3, v{vT+3}", f"v_lshrrev_b32 v{vT+1}, 4, v{vL}", f"v_lshlrev_b32 v{vT+1}, 6, v{vT+1}",
          f"v_lshl_add_u32 v{vT+3}, v{vT+3}, 13, v{vT+1}", f"s_and_b32 s23, s{sW}, 1", "s_lshl_b32 s23, s23, 17",
          f"v_add_u32 v{vT+3}, s23, v{vT+3}", f"v_lshl_add_u32 v{vWo}, v{vT+2}, 4, v{vT+3}", f"v_xor_b32 v{vT+2}, 2, v{vT+2}",
          f"v_lshl_add_u32 v{vWo+2}, v{vT+2}, 4, v{vT+3}", f"v_add_u32 v{vWo+1}, {32768-1024}, v{vWo}",
          f"v_add_u32 v{vWo+3}, {3*(32768-1024)}, v{vWo+2}", f"v_add_u32 v{vWo+2}, {2*(32768-1024)}, v{vWo+2}")
        a(f"s_lshl_b32 s{sM0C}, s{sW}, 12", f"s_mov_b32 s{sOC}, 0", f"s_mov_b32 s{sOW}, 0", f"s_mov_b32 s{sStep}, {32*8192}", "s_mov_b32 s79, 64")
        def dma_lines():
            preC = [f"s_mov_b32 m0, s{sM0C}"]
            lc = [f"buffer_load_dwordx4 v{vCo+j}, s[{sC}:{sC+3}], s{sOC} offen offset:{j*1024}{SC} lds" for j in range(4)]
            preW = [f"s_add_u32 m0, s{sM0C}, 16384"]
            lw = [f"buffer_load_dwordx4 v{vWo+j}, s[{sWt}:{sWt+3}], s{sOW} offen offset:{j*1024} lds" for j in range(4)]
            post = [f"s_add_u32 s{sOC}, s{sOC}, s79", f"s_add_u32 s{sOW}, s{sOW}, s{sStep}",
                    f"s_add_u32 s{sM0C}, s{sM0C}, 32768", f"s_and_b32 s{sM0C}, s{sM0C}, 0x1ffff"]
            return preC, lc, preW, lw, post
        def dma_stage():
            preC, lc, preW, lw, post = dma_lines()
            a(preC, "s_nop 0", lc, preW, "s_nop 0", lw, post)
        if not LNPRE: dma_stage()
        SB = os.environ.get("SB", "1") == "1"
        if SB:
            assert T01
            a(f"v_and_b32 v{vTQ}, 0x7fff, v{vTQ}", "s_sub_u32 s74, s74, s73", "s_lshr_b32 s74, s74, 1", f"s_add_u32 s74, s74, {256*8192}", f"s_mov_b32 s73, {64*8192}")
        if "l" in os.environ.get("NOT", ""): a(f"s_mov_b32 s{sQ2+2}, 0", "s_mov_b32 s81, 0")
        stamp(a, 1)
        srd(a, sWS, "s18", "s19", WS_BYTES)
        srd(a, sWO, "s12", "s13", 4096*1280)
        srd(a, sDb, "s16", "s17", 256)
        if not LNPRE:
            srd(a, sX, "s4", "s5", 2048*1280)
            srd(a, sWR, "s14", "s15", 1280)
        a("s_and_b32 s29, s2, 7", "s_lshl_b32 s29, s29, 2", f"s_add_u32 s29, s29, s{sW}", "s_lshl_b32 s29, s29, 11",
          f"s_and_b32 s23, s{sH}, 3", "s_lshl_b32 s23, s23, 19", "s_add_u32 s29, s29, s23")
        a(f"s_mul_i32 s23, s{sW}, {CS}", f"s_lshl_b32 s31, s{sH}, {CH}", "s_add_u32 s23, s23, s31", f"s_add_u32 s23, s23, {CF}",
          f"s_mul_i32 s31, s{sI}, {4*CS}", f"s_add_u32 s{sCFA}, s23, s31", f"s_sub_u32 s31, {15*4*CS}, s31", f"s_add_u32 s{sCFB}, s23, s31",
          f"s_lshl_b32 s23, s{sH}, 10", f"s_lshl_b32 s31, s{sI}, 7", "s_add_u32 s23, s23, s31", f"s_add_u32 s{sKVa}, s23, {KVF}",
          self.yf_addr(62), f"s_sub_u32 s23, s2, {FFN0}", f"s_cmp_lt_u32 s23, {FFN1-FFN0}", f"s_cselect_b32 s62, s62, {BIG}",
          f"s_cmp_eq_u32 s{sW}, 0", f"s_cselect_b32 s31, s{sKVa}, {BIG}", f"s_cselect_b32 s77, s2, {BIG}",
          f"s_cmp_eq_u32 s2, {TOPWG}", f"s_cselect_b32 s23, {SEL}, {BIG}",
          f"v_lshl_add_u32 v{vFl}, v{vT}, 2, s23", f"v_mov_b32 v{vZero}, 0",
          f"v_writelane_b32 v{vFl}, s{sCFA}, 0", f"v_writelane_b32 v{vFl}, s{sCFB}, 1", f"v_writelane_b32 v{vFl}, s31, 2", "s_add_u32 s31, s31, 32", f"v_writelane_b32 v{vFl}, s31, 5",
          self.wf_addr(23), f"v_writelane_b32 v{vFl}, s23, 3", f"v_writelane_b32 v{vFl}, s62, 4",
          "s_lshl_b32 s23, s2, 2", f"s_add_u32 s23, s23, s{sW}", "s_lshl_b32 s23, s23, 7", f"s_add_u32 s23, s23, {XFL}", f"v_writelane_b32 v{vFl}, s23, 6")
        if LNPRE:
            a(f"s_and_b32 s23, s{sH}, 3", "s_lshr_b32 s31, s23, 1", "s_lshl_b32 s31, 4, s31", "s_bitcmp1_b32 s23, 0",
              "s_cselect_b32 s76, s31, 0", "s_cselect_b32 s72, 0, s31", f"s_or_b32 s76, s76, {0x28 if SB else 0x20}", f"s_or_b32 s72, s72, {0x21 if SB else 0x25}")
        else:
            a(f"s_and_b32 s23, s{sH}, 3", "s_cmp_eq_u32 s23, 2", "s_cselect_b32 s76, 0x2a, 0x22", "s_cselect_b32 s72, 0x27, 0x2f",
              "s_cmp_eq_u32 s23, 3", "s_cselect_b32 s72, 0x37, s72")
        for i in range(4): a(f"v_mov_b32 v{vT+4+i}, 0")
        a(f"v_lshrrev_b32 v{vT+1}, 4, v{vL}", f"v_lshrrev_b32 v{vT+2}, 3, v{vT}",
          f"v_mul_u32_u24 v{vT+2}, 3, v{vT+2}", f"v_xor_b32 v{vT+2}, v{vT+2}, v{vT+1}", f"v_lshlrev_b32 v{vT+2}, 4, v{vT+2}",
          f"v_lshl_add_u32 v{vCa}, v{vT}, 6, v{vT+2}", f"s_and_b32 s23, s{sW}, 1", "s_lshl_b32 s23, s23, 11", f"v_add_u32 v{vCa}, s23, v{vCa}")
        rest = Asm()
        rest(f"v_lshrrev_b32 v{vT+2}, 2, v{vT}", f"v_lshlrev_b32 v{vT+2}, 6, v{vT+2}", f"v_lshl_add_u32 v{vT+2}, v{vT+1}, 11, v{vT+2}",
          f"v_and_b32 v{vT+3}, 1, v{vL}", f"v_lshl_add_u32 v{vT+2}, v{vT+3}, 3, v{vT+2}", f"v_bfe_u32 v{vT+3}, v{vL}, 1, 1",
          f"v_and_b32 v{vT+1}, 1, v{vT+1}", f"v_lshl_or_b32 v{vT+3}, v{vT+1}, 1, v{vT+3}",
          f"s_lshr_b32 s23, s{sW}, 1", "s_lshl_b32 s23, s23, 13", "s_add_u32 s23, s23, 16384", f"v_add_u32 v{vT+2}, s23, v{vT+2}",
          f"v_lshl_add_u32 v{vWa}, v{vT+3}, 4, v{vT+2}", f"v_xor_b32 v{vWa+1}, 32, v{vWa}")
        TR = SPARE
        rest([f"v_mov_b32 v{vT+3}, {BIG}"] if LNPRE else lnaddr,
          f"v_lshlrev_b32 v{vTW}, 4, v{vTW}", f"v_lshl_add_u32 v{vTW}, v{vU}, 7, v{vTW}", f"v_add_u32 v{vTW}, {TR}, v{vTW}",
          f"v_lshlrev_b32 v{vKo}, 2, v{vRow}", f"v_cmp_eq_u32 vcc, 0, v{vU}", f"v_add_u32 v{vKo}, {RKEY}, v{vKo}",
          f"v_lshlrev_b32 v{vTR}, 4, v0", f"v_cndmask_b32 v{vKo}, v{vT+3}, v{vKo}, vcc", f"v_add_u32 v{vTR}, {TR}, v{vTR}",
          f"v_sub_u32 v{vRow}, 0xffff, v{vRow}",
          f"v_lshrrev_b32 v{vO1}, 3, v0", f"v_and_b32 v{vT+2}, 7, v0", f"v_lshlrev_b32 v{vT+2}, 4, v{vT+2}",
          f"v_cmp_gt_u32 vcc, 128, v0", f"v_lshl_add_u32 v{vO1}, v{vO1}, 8, v{vT+2}",
          "s_lshr_b32 s66, s2, 1", "s_mul_i32 s66, s66, 20480", "s_and_b32 s31, s2, 1", "s_lshl_b32 s31, s31, 7", "s_add_u32 s66, s66, s31",
          f"v_cndmask_b32 v{vO3}, v{vT+3}, v{vO1}, vcc", "s_add_u32 s67, s66, 8192", "s_add_u32 s78, s66, 16384", f"s_mov_b32 s{sIT}, 0")
        rl = rest.lines
        for i in range(16):
            a(f"v_mfma_f32_32x32x16_bf16 {ar(16*i,16)}, {vr(vT+4,4)}, {vr(vT+4,4)}, 0", rl[4*i:4*i+4])
        assert len(rl) <= 64
        STPRE = os.environ.get('STPRE', '0') == '1'
        CALL = os.environ.get('CALL', '0') == '1'
        def xn_store(t):
            for i in range(3): t(f"ds_read_b128 {vr(XV+4*i,4)}, v{vTR} offset:{i*4096}")
            t(f"buffer_store_dword v{vAcc}, v{vKo}, s[{sWS}:{sWS+3}], 0 offen{SC}", "s_waitcnt lgkmcnt(0)",
              f"buffer_store_dwordx4 {vr(XV,4)}, v{vO1}, s[{sWS}:{sWS+3}], s66 offen{SC}",
              f"buffer_store_dwordx4 {vr(XV+4,4)}, v{vO1}, s[{sWS}:{sWS+3}], s67 offen{SC}",
              f"buffer_store_dwordx4 {vr(XV+8,4)}, v{vO3}, s[{sWS}:{sWS+3}], s78 offen{SC}")
        def ln_compute(t):
            pk = lambda op, d, x, y, extra="": f"{op} {vr(d,2)}, {vr(x,2)}, {vr(y,2)}{extra}"
            for i in range(12):
                t(f"v_lshlrev_b32 v{F+2*i}, 16, v{XV+i}", f"v_and_b32 v{F+2*i+1}, 0xffff0000, v{XV+i}")
            t(pk("v_pk_add_f32", vT, F, F + 2), pk("v_pk_add_f32", vT + 2, F + 4, F + 6))
            for i in range(8, 24, 4): t(pk("v_pk_add_f32", vT, vT, F + i), pk("v_pk_add_f32", vT + 2, vT + 2, F + i + 2))
            t(pk("v_pk_add_f32", vT, vT, vT + 2), f"v_add_f32 v{vS}, v{vT}, v{vT+1}")
            allreduce32_add(t, vS, vT2)
            t(f"v_mul_f32 v{vMean}, 0xbacccccd, v{vS}", f"v_mul_f32 v{vMean+1}, 0xbacccccd, v{vS}")
            for i in range(12):
                d = vT + 4 + 2 * (i % 4); acc = vT if i < 8 else vT + 2
                t(pk("v_pk_add_f32", d, F + 2 * i, vMean))
                if i in (0, 8): t(pk("v_pk_mul_f32", acc, d, d))
                else: t(f"v_pk_fma_f32 {vr(acc,2)}, {vr(d,2)}, {vr(d,2)}, {vr(acc,2)}")
            t(f"v_add_f32 v{vT+2}, v{vT+2}, v{vT+3}", f"v_add_f32 v{vS}, v{vT}, v{vT+1}", f"v_cndmask_b32 v{vT+2}, 0, v{vT+2}, s[{sM16}:{sM16+1}]",
              f"v_add_f32 v{vS}, v{vS}, v{vT+2}")
            allreduce32_add(t, vS, vT2)
            t(f"v_mul_f32 v{vS}, 0x3acccccd, v{vS}")
            bf16r(t, vS)
            t(f"v_add_f32 v{vS}, 0x3727c5ac, v{vS}")
            bf16r(t, vS)
            t(f"v_sqrt_f32 v{vS}, v{vS}")
            bf16r(t, vMean)
            bf16r(t, vS)
            t(f"v_rcp_f32 v{vT+12}, v{vS}", f"v_mov_b32 v{vMean+1}, v{vMean}", f"v_mov_b32 v{vT+13}, v{vT+12}")
            for i in range(12):
                f0 = F + 2 * i; w0 = vT + 2 * (i % 2)
                t(pk("v_pk_add_f32", f0, f0, vMean), f"v_lshlrev_b32 v{w0}, 16, v{WR+i}", f"v_cvt_pk_bf16_f32 v{f0+1}, v{f0}, v{f0+1}",
                  f"v_and_b32 v{w0+1}, 0xffff0000, v{WR+i}", f"v_lshlrev_b32 v{f0}, 16, v{f0+1}", f"v_and_b32 v{f0+1}, 0xffff0000, v{f0+1}",
                  pk("v_pk_mul_f32", f0, f0, vT + 12), f"v_cvt_pk_bf16_f32 v{XV+i}, v{f0}, v{f0+1}",
                  f"v_lshlrev_b32 v{f0}, 16, v{XV+i}", f"v_and_b32 v{f0+1}, 0xffff0000, v{XV+i}")
                if i == 0: t(pk("v_pk_mul_f32", vAcc, f0, w0))
                else: t(f"v_pk_fma_f32 {vr(vAcc,2)}, {vr(f0,2)}, {vr(w0,2)}, {vr(vAcc,2)}")
                if i % 4 == 3: t(f"ds_write_b128 v{vTW}, {vr(XV+i-3,4)} offset:{(i//4)*4096}")
            t(f"v_add_f32 v{vAcc}, v{vAcc}, v{vAcc+1}")
            allreduce32_add(t, vAcc, vT2)
            bf16r(t, vAcc)
            t(f"v_ashrrev_i32 v{vT2}, 31, v{vAcc}", f"v_or_b32 v{vT2}, 0x80000000, v{vT2}", f"v_xor_b32 v{vAcc}, v{vAcc}, v{vT2}",
              f"v_and_b32 v{vAcc}, 0xffff0000, v{vAcc}", f"v_or_b32 v{vAcc}, v{vAcc}, v{vRow}")
        stamp(a, 2)
        if LNPRE:
            a(f"s_waitcnt vmcnt({5 if T01 else 3})")
            SM = int(os.environ.get("SM", "0"))
            if SM:
                a(f"s_add_u32 s4, s{sWt}, s74", f"s_addc_u32 s5, s{sWt+1}, 0", f"s_add_u32 s6, s{sC}, s29", f"s_addc_u32 s7, s{sC+1}, 0")
                step = 128 // SM
                sl = [f"s_load_dword s83, s[4:5], {r*8192 + q*step}" for r in range(8) for q in range(2 * SM)]
                sl += [f"s_load_dword s83, s[6:7], {r*1024 + 256 + q*step}" for r in range(2) for q in range(2 * SM)]
                a(sl[:14])
            ln_compute(a)
            if SM: a(sl[14:])
            a(stampv(9))
            if STPRE:
                a(f"buffer_store_dword v{vZero}, v{vFl}, s[{sWS}:{sWS+3}], 0 offen{SC}", "s_waitcnt lgkmcnt(0)", "s_barrier")
                xn_store(a)
            a(f"v_mov_b32 v{vT+3}, {BIG}")
            dma_stage()
        dma_stage()
        stamp(a, 3)
        a(self.cyc(62))
        a("s_waitcnt vmcnt(8) lgkmcnt(0)", "s_barrier")
        a(f"s_cmp_ge_u32 s{sW}, 2", f"s_cbranch_scc1 {name}_roleV")
        def reads(role, buf, off):
            CFr = (FB if role == "K" else FA) + 32 * buf
            WF = (FA if role == "K" else FB) + 32 * buf
            rc = [f"ds_read_b128 {vr(CFr+4*i,4)}, v{vCa} offset:{off + (i//2)*4096 + (i%2)*1024}" for i in range(8)]
            rw = [f"ds_read_b64_tr_b16 {vr(WF+4*cb+2*t,2)}, v{vWa+(cb&1)} offset:{off + t*1024 + (cb>>1)*256}" for cb in range(8) for t in range(2)]
            return rc, rw
        for role in ("K", "V"):
            if role == "V": a.label(f"{name}_roleV")
            rc, rw = reads(role, 0, 0)
            a(rc, rw)
            dma_stage()
            a(f"buffer_load_dword v231, v{vT+3}, s[{sC}:{sC+3}], 0 offen")
            dma_stage()
            if not T01 and not SM: a(t1)
            a("s_waitcnt lgkmcnt(0)")
            a(".p2align 6")
            a.label(f"{name}_loop{role}")
            if DBG: a(f"s_mov_b32 m0, s{sIT}", stampv("m0"))
            for half in range(2):
                def acc(i, j):
                    n_ = (8 * (j // 2) + 2 * (i // 2) + j % 2) if role == "K" else (8 * (i // 2) + j)
                    return ar(((n_ + 24) % 32) * 8 + 4 * (i % 2), 4)
                mf = [f"{MF} {acc(i,j)}, {vr(FA+32*half+4*i,4)}, {vr(FB+32*half+4*j,4)}, {acc(i,j)}" for i in range(8) for j in range(8)]
                sc = {}; mem = {}; va = {}
                sc[0] = [f"s_waitcnt vmcnt({17 if half == 0 else 18})"]; sc[1] = ["s_barrier"]
                rc, rw = reads(role, 1 - half, 32768 if half == 0 else 0)
                preC, lc, preW, lw, post = dma_lines()
                ds = []
                for i in range(8): ds += [rw[2*i], rw[2*i+1], rc[i]]
                for i, x in enumerate(ds): mem[2 + 2*i] = [x]
                st_ = 2 if half == 0 else 6
                sc[4] = preC
                for j in range(4): mem[5 + st_*j] = [lc[j]]
                sc[4 + 4*st_] = preW
                for j in range(4): mem[5 + st_*(4+j)] = [lw[j]]
                for j, x in enumerate(post): sc[48 + j] = [x]
                if half == 0:
                    mem[21] = [f"buffer_load_dword v231, v{vTQ}, s[{sQ2}:{sQ2+3}], s74 offen{SC}"]
                    sc[22] = ["s_add_u32 s74, s74, s73"]
                    h = self.hook(f"s_bitcmp1_b32 s72, s{sIT}", 8)
                    sc[23] = [h[0]]; sc[24] = h[1]
                    va[52] = [f"v_xor_b32 v{vCa}, 0x10000, v{vCa}"]
                    va[53] = [f"v_xor_b32 v{vWa}, 0x10000, v{vWa}"]
                    va[54] = [f"v_xor_b32 v{vWa+1}, 0x10000, v{vWa+1}"]
                    sc[63] = ["s_waitcnt lgkmcnt(0)"]
                else:
                    h = self.hook(f"s_bitcmp1_b32 s76, s{sIT}", 8)
                    sc[53] = [h[0]]; sc[54] = h[1]
                    sc[57] = [f"s_add_u32 s{sIT}, s{sIT}, 1"]
                    sc[61] = [f"s_cmp_lt_u32 s{sIT}, 8"]
                    sc[62] = ["s_waitcnt lgkmcnt(0)"]
                    sc[63] = [f"s_cbranch_scc1 {name}_loop{role}"]
                a(weave(mf, sc, mem, va))
            if role == "K":
                a(f"s_mov_b32 s64, {KFO}", "s_mov_b32 s76, 0x3e0293ee", f"s_branch {name}_p1epi")
            else:
                a(f"s_mov_b32 s64, {VFO}", "s_mov_b32 s76, 1.0")
        t = Asm()
        yld = ["s_getpc_b64 s[8:9]", "s_setpc_b64 s[10:11]"]
        t.label(f"{name}_co1")
        if not LNPRE: t(xloads, yld)
        if "c" not in os.environ.get("NOT", ""): t(f"buffer_load_dword v232, v234, s[{sC}:{sC+3}], s29 offen")
        if not STPRE: t(f"buffer_store_dword v{vZero}, v{vFl}, s[{sWS}:{sWS+3}], 0 offen{SC}")
        if not LNPRE:
            t("s_waitcnt vmcnt(18)")
            ln_compute(t)
            t(yld)
        if not STPRE: xn_store(t)
        t(yld)
        sw = [f"s_mov_b32 s{sQ2}, s60", f"s_mov_b32 s{sQ2+1}, s61", f"s_mov_b32 s{sQ2+2}, {'0' if 'l' in os.environ.get('NOT', '') else 's75'}", f"s_lshl_b32 s74, s{sI}, 2", f"s_add_u32 s74, s74, s{sW}"]
        prep = [f"v_mov_b32 v{vS}, {BIG}", f"v_mov_b32 v{vT2}, 1", f"v_writelane_b32 v{vS}, s77, 0", f"v_lshlrev_b32 v{vZero}, 2, v{vL}"]
        arr = f"buffer_store_byte v{vT2}, v{vS}, s[{sDb}:{sDb+3}], 0 offen{SC}"
        if SB:
            t(prep, arr, f"s_and_b32 s23, s{sH}, 3", "s_cmp_eq_u32 s23, 3", f"s_cbranch_scc1 {name}_arr", yld)
            t.label(f"{name}_arr")
            t(sw, f"s_mul_i32 s74, s74, {5*8192}", f"s_mov_b32 s73, {160*8192}", f"v_lshrrev_b32 v{vTQ}, 1, v{vL}", f"v_min_u32 v{vTQ}, 4, v{vTQ}",
              f"v_lshlrev_b32 v{vTQ}, 13, v{vTQ}", f"v_and_b32 v{vS}, 1, v{vL}", f"v_lshl_add_u32 v{vTQ}, v{vS}, 7, v{vTQ}", yld)
        else:
            t(sw, "s_lshl_b32 s74, s74, 16", f"s_mov_b32 s73, {256*8192}", prep)
            if LNPRE: t(f"s_and_b32 s23, s{sH}, 3", f"s_cbranch_scc0 {name}_arr")
            t(yld)
            t.label(f"{name}_arr")
            t(arr, yld)
        t(f"buffer_load_dword v{vPoll}, v{vZero}, s[{sDb}:{sDb+3}], 0 offen{SC}", yld)
        t(f"s_mov_b32 s{sWt}, s60", f"s_mov_b32 s{sWt+1}, s61", f"s_mov_b32 s{sWt+2}, s75",
          f"s_lshr_b32 s{sOW}, s{sW}, 1", f"s_lshl_b32 s{sOW}, s{sOW}, 18", f"s_mov_b32 s{sStep}, {64*8192}",
          f"s_mov_b32 s{sC}, s18", f"s_mov_b32 s{sC+1}, s19", f"s_mov_b32 s{sC+2}, {2048*1280}", f"s_mov_b32 s{sOC}, 0", "s_movk_i32 s79, 1024",
          f"s_lshl_b32 s23, s{sI}, 2", f"s_add_u32 s23, s23, s{sW}", f"s_mul_i32 s23, s23, {2*20480}", f"v_add_u32 v{vCo}, s23, v{vL16}",
          f"s_sub_u32 s23, 15, s{sI}", "s_lshl_b32 s23, s23, 2", f"s_add_u32 s23, s23, s{sW}", f"s_mul_i32 s23, s23, {2*20480}", "s_sub_u32 s23, s23, 2048",
          f"v_add_u32 v{vCo+2}, s23, v{vL16}", f"v_add_u32 v{vCo+1}, {20480-1024}, v{vCo}", f"v_add_u32 v{vCo+3}, {20480-1024}, v{vCo+2}",
          )
        if os.environ.get("XT", "0") == "1":
            t(f"s_mov_b32 s{sQ2}, s18", f"s_mov_b32 s{sQ2+1}, s19", f"s_mov_b32 s{sQ2+2}, {2048*1280}", "s_movk_i32 s73, 8192",
              f"s_sub_u32 s23, 15, s{sI}", f"s_bitcmp1_b32 s{sH}, 1", f"s_cselect_b32 s23, s23, s{sI}", "s_lshl_b32 s23, s23, 2", f"s_add_u32 s23, s23, s{sW}",
              "s_lshl_b32 s23, s23, 1", f"s_and_b32 s31, s{sH}, 1", "s_add_u32 s23, s23, s31", "s_mul_i32 s74, s23, 20480", "s_add_u32 s74, s74, 4096",
              f"v_lshlrev_b32 v{vTQ}, 7, v{vL}")
        t("s_waitcnt vmcnt(8)")
        self.poll_check(t, "ln", vPoll, vZero, sDb, [f"v_cmp_ne_u32 vcc, 0x01010101, v{vPoll}"])
        t("s_setpc_b64 s[10:11]")
        self.tail += t.lines
        a.label(f"{name}_p1epi")
        stamp(a, 4)
        a(self.cyc(56))
        self.sWq = sWt; self.sXs = sC; self.sWoff = sOW; self.sXoff = sOC

    def kv_item(self, n, D):
        sc = []
        if n and n % 8 == 0: sc = [f"s_add_u32 s64, s64, {131072-4096}"]
        elif n % 8 == 4: sc = ["s_add_u32 s64, s64, 4096"]
        regs = [((n + 24) % 32) * 8 + r for r in range(8)]
        va = [f"v_accvgpr_read_b32 v{vT+k}, a{r}" for k, r in enumerate(regs)]
        va += [f"v_mul_f32 v{vT+k}, s76, v{vT+k}" for k in range(8)]
        va += [f"v_cvt_pk_bf16_f32 v{D+r}, v{vT+2*r}, v{vT+1+2*r}" for r in range(4)]
        z = []; src = vr(D, 4)
        if n >= self.NQ:
            H = 192 + 4 * (n - self.NQ)
            va += [f"v_accvgpr_write_b32 a{H+r}, v{D+r}" for r in range(4)]; src = ar(H, 4)
        st = f"buffer_store_dwordx4 {src}, v{vL16}, s[{sWS}:{sWS+3}], s64 offen offset:{(n%4)*1024}{SC}"
        return sc, va, z, st

    def top8(self):
        name = self.name
        self.a(f"s_cmp_eq_u32 s2, {TOPWG}", f"s_cbranch_scc1 {name}_top8")
        self.a.label(f"{name}_notop")
        a = Asm()
        KEY = 232; CA = 96
        a.label(f"{name}_top8")
        vM, vPrev, vSel, vTok, vTmp, vRow, vR = vT + 4, vT + 5, vT + 6, vT + 7, vT + 8, vT + 9, vT + 10
        a(f"v_mov_b32 v{vPrev}, 0", f"v_mov_b32 v{vSel}, 0", f"v_and_b32 v{vTok}, 7, v{vL}", "s_mov_b32 s23, 0")
        a.label(f"{name}_top")
        a(f"v_max3_u32 v{vM}, v{KEY}, v{KEY+1}, v{KEY+2}", f"v_max3_u32 v{vTmp}, v{KEY+3}, v{KEY+4}, v{KEY+5}",
          f"v_max3_u32 v{vM}, v{vM}, v{KEY+6}, v{KEY+7}", f"v_max_u32 v{vM}, v{vM}, v{vTmp}")
        for m in ("quad_perm:[1,0,3,2]", "quad_perm:[2,3,0,1]", "row_half_mirror", "row_mirror"):
            a("s_nop 1", f"v_max_u32_dpp v{vM}, v{vM}, v{vM} {m} row_mask:0xf bank_mask:0xf")
        xreduce(a, "v_max_u32", vM, vTmp)
        a(f"v_add_u32 v{vPrev}, v{vPrev}, v{vM}", f"v_cmp_eq_u32 vcc, s23, v{vTok}")
        for q in range(8): a(f"v_sub_u32 v{KEY+q}, v{KEY+q}, v{vM}")
        a(f"v_cndmask_b32 v{vSel}, v{vSel}, v{vPrev}, vcc", "s_add_u32 s23, s23, 1", "s_cmp_lt_u32 s23, 8", f"s_cbranch_scc1 {name}_top")
        a(f"s_lshl_b32 s23, s{sW}, 5", f"s_add_u32 s23, s23, {SPARE}", f"v_lshl_add_u32 v{vTmp}, v{vTok}, 2, s23", f"ds_write_b32 v{vTmp}, v{vSel}",
          "s_waitcnt lgkmcnt(0)", "s_barrier", f"s_cmp_lg_u32 s{sW}, 0", f"s_cbranch_scc1 {name}_notop")
        a(f"v_and_b32 v{vTmp}, 31, v{vL}", f"v_lshlrev_b32 v{vTmp}, 2, v{vTmp}", f"v_add_u32 v{vTmp}, {SPARE}, v{vTmp}", f"v_mov_b32 v{vM}, {SPARE}",
          f"ds_read_b32 v{vSel}, v{vTmp}")
        for q in range(8): a(f"ds_read_b128 {vr(CA+4*q,4)}, v{vM} offset:{16*q}")
        a(f"v_mov_b32 v{vTok}, 0", "s_waitcnt lgkmcnt(0)")
        for q in range(0, 32, 4):
            for e in range(4): a(f"v_cmp_gt_u32 s[{4+2*(e%2)}:{5+2*(e%2)}], v{CA+q+e}, v{vSel}" if e < 2 else f"v_cmp_gt_u32 s[{76+2*(e%2)}:{77+2*(e%2)}], v{CA+q+e}, v{vSel}")
            for e in range(4):
                sp = (4 + 2 * e) if e < 2 else (76 + 2 * (e - 2))
                a(f"v_addc_co_u32 v{vTok}, vcc, 0, v{vTok}, s[{sp}:{sp+1}]")
        a(f"v_and_b32 v{vRow}, 0xffff, v{vSel}", f"v_sub_u32 v{vRow}, 0xffff, v{vRow}", f"v_and_b32 v{vRow}, 2047, v{vRow}")
        a(f"v_ashrrev_i32 v{vM}, 31, v{vSel}", f"v_not_b32 v{vM}, v{vM}", f"v_or_b32 v{vM}, 0x80000000, v{vM}",
          f"v_xor_b32 v{vR}, v{vSel}, v{vM}", f"v_and_b32 v{vR}, 0xffff0000, v{vR}",
          f"v_mul_f32 v{vR}, 0xbfb8aa3b, v{vR}", f"v_exp_f32 v{vR}, v{vR}", "s_nop 0", f"v_add_f32 v{vR}, 1.0, v{vR}",
          f"v_rcp_f32 v{vR}, v{vR}", "s_nop 0")
        bf16r(a, vR)
        a(f"v_and_b32 v{vM}, 32, v{vL}", f"v_lshl_add_u32 v{vM}, v{vTok}, 2, v{vM}", f"v_add_u32 v{vM}, {SEL}, v{vM}", f"v_mov_b32 v{vPrev}, {BIG}",
          f"v_cmp_gt_u32 vcc, 8, v{vTok}", f"v_add_u32 v{vRow}, 1, v{vRow}", f"v_or_b32 v{vR}, 1, v{vR}", f"v_cndmask_b32 v{vM}, v{vPrev}, v{vM}, vcc",
          f"v_cmp_gt_u32 vcc, 32, v{vL}", "s_nop 1", f"v_cndmask_b32 v{vR}, v{vR}, v{vRow}, vcc",
          f"buffer_store_dword v{vR}, v{vM}, s[{sWS}:{sWS+3}], 0 offen{SC}", f"s_branch {name}_notop")
        self.tail += a.lines

    def phase2(self):
        a = self.a; name = self.name
        sWq, sXs, sWoff, sXoff = self.sWq, self.sXs, self.sWoff, self.sXoff
        XB = 224; vXa = 14; sW4 = 24
        vm = VM()
        vm.issue("X1", 4); vm.issue("W1", 4); vm.issue("X2", 4); vm.issue("W2", 4); vm.issue("T"); vm.issue("X3", 4); vm.issue("W3", 4)
        def wreads(buf, off):
            return [f"ds_read_b64_tr_b16 {vr(Q+32*buf+4*cb+2*t,2)}, v{vWa+(cb&1)} offset:{off + t*1024 + (cb>>1)*256}" for cb in range(8) for t in range(2)]
        def xreads(buf, off):
            return [f"ds_read_b128 {vr(XB+16*buf+4*qb,4)}, v{vXa} offset:{off + qb*1024}" for qb in range(4)]
        a(f"s_lshr_b32 s23, s{sW}, 1", "s_lshl_b32 s23, s23, 13", f"v_subrev_u32 v{vWa}, s23, v{vWa}", f"v_subrev_u32 v{vWa+1}, s23, v{vWa+1}",
          f"s_lshl_b32 s{sW4}, s{sW}, 12", f"v_add_u32 v{vXa}, s{sW4}, v{vL16}")
        a(wreads(0, 0), f"s_waitcnt vmcnt({vm.need('T')})", xreads(0, 0))
        a(f"s_lshl_b32 s23, s{sH}, 19", "s_add_u32 s64, s64, s23", f"s_lshl_b32 s23, s{sI}, 14", "s_add_u32 s64, s64, s23",
          f"s_and_b32 s23, s{sW}, 1", "s_lshl_b32 s23, s23, 13", "s_add_u32 s64, s64, s23")
        a(f"s_lshl_b32 s23, s{sH}, 19", f"s_add_u32 s23, s23, {KFO}", "s_add_u32 s6, s18, s23", "s_addc_u32 s7, s19, 0",
          f"s_add_u32 s8, s6, {VFO-KFO}", "s_addc_u32 s9, s7, 0", f"s_sub_u32 s23, 16, s{sI}", "s_lshl_b32 s23, s23, 15")
        srd(a, sK, "s6", "s7", "s23")
        srd(a, sV, "s8", "s9", "s23")
        a(f"s_lshl_b32 s30, s{sH}, 10", f"s_add_u32 s30, s30, {KVF}", f"s_mov_b32 s{sThr}, 0x47800000",
          f"s_cmp_eq_u32 s{sW}, 0", f"s_cselect_b32 s65, s{sKVa}, {BIG}")
        a(f"s_waitcnt vmcnt({vm.need('X1')}) lgkmcnt(0)")
        stamp(a, 6)
        per = [int(c) for c in os.environ.get("PER", "22111111111122233330")]
        per[0] += 32 - sum(per)
        assert sum(per) == 32 and len(per) == 20 and per[19] == 0
        last8 = min(k for k in range(20) if sum(per[:k+1]) >= 8)
        SFLAG = last8 + 2 if last8 % 2 else last8 + 3
        SPOLL = int(os.environ.get('SPOLL', '16'))
        misc = [f"v_and_b32 v11, 15, v{vL}", f"v_lshrrev_b32 v10, 4, v{vL}", "v_lshlrev_b32 v10, 2, v10", "v_sub_u32 v11, v11, v10"]
        misc += [f"v_cmp_le_i32 s[{sMask+2*r}:{sMask+2*r+1}], {r}, v11" for r in range(4)]
        misc += [f"v_and_b32 v{vPo}, 7, v{vL}", f"v_lshlrev_b32 v{vPo}, 7, v{vPo}", f"v_add_u32 v{vPo}, s30, v{vPo}"]
        flagst = f"buffer_store_dword v{vWa}, off, s[{sWS}:{sWS+3}], s65{SC}"
        pollld = f"buffer_load_dword v{vPoll}, v{vPo}, s[{sWS}:{sWS+3}], 0 offen{SC}"
        it = 0; zpool = []; ih = self.NQ; cnt_ = 0; held = []
        hld = [int(c) for c in os.environ.get('HLD', '00111111111100000000')]
        for s_ in range(20):
            buf = s_ & 1
            C = lambda d: "0" if s_ == 0 else vr(d, 4)
            mf = [f"{MF} {vr(QACC+(db*4+qb)*4,4)}, {vr(Q+32*buf+4*db,4)}, {vr(XB+16*buf+4*qb,4)}, {C(QACC+(db*4+qb)*4)}" for qb in range(4) for db in range(8)]
            sc = {g: [] for g in range(32)}; mem = {g: [] for g in range(32)}; va = {g: [] for g in range(32)}
            tags = {g: [] for g in range(32)}
            if s_ & 1: sc[0].append("s_barrier")
            vpos = [3, 8, 13, 18, 23, 28]
            if s_ < 19:
                off = [8192, 32768, 32768 + 8192, 0][s_ % 4]
                rd = wreads(1 - buf, off); xr = xreads(1 - buf, 32768 if s_ % 2 == 0 else 0)
                ds = rd[:8] + xr[:2] + rd[8:] + xr[2:]
                dpos = [g for g in range(1, 27) if g not in vpos][:20]
                for p_, x in zip(dpos, ds): mem[p_].append(x)
            if s_ + 4 < 20:
                sc[2].append(f"s_add_u32 m0, s{sW4}, {(s_%4)*32768}")
                for j in range(4):
                    mem[vpos[j]].append(f"buffer_load_dwordx4 v{vCo+j}, s[{sXs}:{sXs+3}], s{sXoff} offen offset:{j*1024}{SC} lds"); tags[vpos[j]].append(f"X{s_+4}")
                sc[19].append(f"s_add_u32 s{sXoff}, s{sXoff}, 1024")
            stage = (s_ + 1) // 2 + 3
            if s_ >= 1 and stage < 10:
                sc[22].append(f"s_add_u32 m0, s{sW4}, {(stage%4)*32768+16384}")
                for jj in range(2):
                    j = jj if s_ & 1 else 2 + jj
                    mem[vpos[4+jj]].append(f"buffer_load_dwordx4 v{vWo+j}, s[{sWq}:{sWq+3}], s{sWoff} offen offset:{j*1024} lds"); tags[vpos[4+jj]].append(f"W{stage}")
                if not s_ & 1: sc[29].append(f"s_add_u32 s{sWoff}, s{sWoff}, {64*8192}")
            if s_ % 4 == 2:
                va[29].append(f"v_xor_b32 v{vWa}, 0x10000, v{vWa}"); va[30].append(f"v_xor_b32 v{vWa+1}, 0x10000, v{vWa+1}")
            if s_ % 2 == 0: va[27].append(f"v_xor_b32 v{vXa}, 0x10000, v{vXa}")
            if s_ == SFLAG:
                mem[0].append(flagst); tags[0].append("flag")
            if s_ == SPOLL:
                mem[3].append(pollld); tags[3].append("poll")
            toks = []
            for k in range(per[s_]):
                if it < self.NQ:
                    isc, iva, z, ist = self.kv_item(it, vT + 8 + 4 * (cnt_ % 2)); cnt_ += 1
                    toks += [("s", x) for x in isc] + [("v", x) for x in iva] + [("st" if it >= 8 else "st0", ist)]
                else:
                    assert it < ih
                    isc, ist = held[it - self.NQ]
                    toks += [("gap", 31 * k // per[s_])] + [("s", x) for x in isc] + [("st", ist)]
                it += 1
            for k in range(hld[s_]):
                assert (ih - self.NQ) // 2 < min(it, 7)
                isc, iva, z, ist = self.kv_item(ih, vT + 8 + 4 * (cnt_ % 2)); cnt_ += 1
                toks += [("v", x) for x in iva]; held.append((isc, ist)); ih += 1
            if s_ == 13: toks += [("v", x) for x in misc]
            fs = []
            if s_ in (14, 15):
                for q in (range(3) if s_ == 14 else range(3, 5)):
                    toks += [("v", x) for x in [f"v_add_u32 v9, {64*q}, v{vL}", "v_mul_u32_u24 v10, 6554, v9", "v_lshrrev_b32 v10, 16, v10",
                             f"v_mul_u32_u24 v10, {1280-160}, v10", "v_lshl_add_u32 v10, v9, 4, v10", f"v_accvgpr_write_b32 a{248+q}, v10"]]
            if s_ == 16:
                fs = [f"s_mul_i32 s34, s{sW}, 5120", f"s_add_u32 s34, s34, {SPARE}"] + self.co_setup()[:-3]
            if s_ == 17:
                fs = [f"s_and_b32 s23, s{sW}, 1", "s_lshl_b32 s23, s23, 12", f"s_cmp_lt_u32 s{sW}, 2\ns_cselect_b32 s{sKm}, {131072-24576}, 0",
                         f"s_add_u32 s{sKm}, s{sKm}, s23", f"s_lshl_b32 s{sKo}, s{sW}, 12", f"s_mov_b32 s{sVo}, s{sKo}", f"s_add_u32 s{sVm}, s{sVo}, {32768+16384}",
                         "s_load_dwordx4 s[4:7], s[0:1], 64", "s_load_dwordx2 s[60:61], s[0:1], 80",
                         f"s_add_u32 s23, s{sW}, 1", "s_lshr_b32 s23, s23, 1", f"s_lshl_b32 s{sCnt}, s{sI}, 1", f"s_add_u32 s{sCnt}, s{sCnt}, s23",
                         f"s_lshl_b32 s23, s{sI}, 2", f"s_sub_u32 s{sNSS}, 28, s23", f"s_and_b32 s23, s{sW}, 1", f"s_add_u32 s{sNSS}, s{sNSS}, s23"]
                toks += [("v", x) for x in [f"v_lshrrev_b32 v6, 2, v{vL}", "v_mul_u32_u24 v6, 160, v6", f"v_and_b32 v9, 3, v{vL}",
                         "v_lshl_add_u32 v6, v9, 3, v6", "v_add_u32 v6, s34, v6", f"v_mov_b32 v{vKV}, v{vL16}", f"v_mov_b32 v{vNI}, 0xff800000",
                         f"v_add_u32 v9, {3*32768+8192}, v{vL16}"]]
            if s_ == 18:
                cs = self.co_setup()[-3:]
                fs = [f"s_cmp_ge_u32 s{sW}, 2\ns_cselect_b32 s4, s6, s4\ns_cselect_b32 s5, s7, s5", f"s_mov_b32 s62, {1728*1280}", "s_mov_b32 s63, 0x20000",
                      "s_mov_b64 s[56:57], s[52:53]", "s_mov_b32 s58, s54", "s_mov_b64 s[52:53], s[4:5]", f"s_mov_b32 s54, {640*3456}", cs[0], cs[1] + "\n" + cs[2],
                      f"s_lshl_b32 s31, s{sW}, 11", f"s_add_u32 s31, s31, {RKEY}", f"s_cmp_eq_u32 s2, {TOPWG}\ns_cselect_b32 s31, s31, {BIG}"]
            if s_ == 15 and os.environ.get("CT2", "1") == "1":
                fs = [f"s_getpc_b64 s[78:79]\n{name}_pc2:", "s_lshr_b32 s23, s2, 3", "s_and_b32 s23, s23, 7", "s_lshl_b32 s23, s23, 2", f"s_add_u32 s23, s23, s{sW}",
                      "s_lshl_b32 s23, s23, 11", f"s_min_u32 s23, s23, {name}_codeend-{name}_pc2-2048"]
                va[24] += [f"v_and_b32 v11, 15, v{vL}"]; va[25] += ["v_lshl_add_u32 v11, v11, 7, s23"]
                mem[28].append("global_load_dword v11, v11, s[78:79]"); tags[28].append("ct")
            for q, x in enumerate(fs): sc[(1 if s_ != 15 else 4) + q].append(x)
            if s_ == 19:
                tmp = Asm()
                self.poll_check(tmp, "kv", vPoll, vPo, sWS, [f"v_cmp_eq_u32 vcc, 0, v{vPoll}"])
                va[0].append(tmp.lines[0]); sc[1] += tmp.lines[1:]
                mem[0].append(f"buffer_load_dwordx4 v[232:235], v{vL16}, s[{sWS}:{sWS+3}], s31 offen{SC}")
                mem[1].append(f"buffer_load_dwordx4 v[236:239], v{vL16}, s[{sWS}:{sWS+3}], s31 offen offset:1024{SC}")
                for p_ in range(3):
                    g0 = 2 + 10 * p_
                    sc[g0].append(f"s_mov_b32 m0, s{sKm}")
                    for j in range(4): mem[g0+1+2*j].append(f"buffer_load_dwordx4 v{vL16}, s[{sK}:{sK+3}], s{sKo} offen offset:{j*1024}{SC} lds")
                    sc[g0+2].append(f"s_add_u32 s{sKm}, s{sKm}, 32768"); sc[g0+3].append(f"s_and_b32 s{sKm}, s{sKm}, 0x1ffff")
                    sc[g0+8].append(f"s_add_u32 s{sKo}, s{sKo}, 16384")
                def cvq(X, qb):
                    return [f"v_cvt_pk_bf16_f32 v{Q+32*X+8*ks+4*qb+2*hh+e}, v{QACC+((2*ks+hh)*4+2*X+qb)*4+2*e}, v{QACC+((2*ks+hh)*4+2*X+qb)*4+2*e+1}"
                            for ks in range(4) for hh in range(2) for e in range(2)]
                for q in range(4): va[2 + 2 * q].append(f"v_mov_b32 v{LS+q}, 0")
                for q, x in enumerate(cvq(0, 0)): va[10 + q * 10 // 16].append(x)
                for q, x in enumerate(cvq(0, 1)): va[20 + q * 11 // 16].append(x)
            cap = [max(0, 2 - len(mem[g]) - len(va[g])) for g in range(31)]
            lead = [t_ for t_ in toks if t_[0] == "v"] if any(t_[0] == "gap" for t_ in toks) and toks[0][0] == "gap" else []
            if lead:
                toks = [t_ for t_ in toks if t_[0] != "v"]
                fr = [g for g in range(31) if cap[g] > 0]
                for q, t_ in enumerate(lead): va[fr[q % len(fr)] if len(lead) <= len(fr) else fr[q * len(fr) // len(lead)]].append(t_[1])
            nv = sum(1 for t_ in toks if t_[0] not in ("s", "gap"))
            nz = len(zpool) if s_ == 19 else min(len(zpool), max(0, sum(cap) - nv - per[s_] - 1))
            toks += [("v", x) for x in zpool[:nz]]; zpool = zpool[nz:]
            nv += nz
            extra = max(0, nv - sum(cap))
            while True:
                cp = list(cap); plc = []; nsc = {g: len(sc[g]) for g in range(32)}
                for q in range(extra): cp[(q * 30 // extra) % 30] += 1
                g = 0; smin = 0; ok = True
                for kind, x in toks:
                    if kind == "gap":
                        g = max(g, x); continue
                    if kind == "s":
                        gg = max(g, smin)
                        while gg < 30 and nsc[gg] and gg < max(g, smin) + 3: gg += 1
                        gg = min(gg, 30); nsc[gg] += 1
                        plc.append((sc, gg, x, None)); smin = gg + 1
                        continue
                    if kind != "v": g = max(g + 1, smin - 1)
                    while g < 31 and cp[g] == 0: g += 1
                    if g >= 31: ok = False; break
                    cp[g] -= 1
                    if kind == "v": plc.append((va, g, x, None))
                    else: plc.append((mem, g, x, kind)); smin = g + 1
                if ok: break
                extra += 1
            for (d_, g, x, kind) in plc:
                d_[g].append(x)
                if kind: tags[g].append(kind)
            for g in range(31):
                for t_ in tags[g]: vm.issue(t_)
            if s_ < 19:
                need = []
                if s_ + 2 < 20: need.append(f"X{s_+2}")
                if (s_ + 1) & 1:
                    st1 = (s_ + 2) // 2
                    if st1 < 10: need.append(f"W{st1}")
                if s_ + 1 == SFLAG: need.append("st0")
                if s_ == 18: need.append("poll")
                sc[31].append(f"s_waitcnt vmcnt({vm.need(*need)}) lgkmcnt(0)" if need else "s_waitcnt lgkmcnt(0)")
            for t_ in tags[31]: vm.issue(t_)
            if os.environ.get("QST"): a(stampv(30 + s_))
            a(weave(mf, sc, mem, va))
        assert it == 32 and not zpool
        stamp(a, 5); stamp(a, 7)
        a(self.cyc(57))
        cv = cvq(1, 0) + cvq(1, 1)
        for p_ in range(2):
            a(f"s_mov_b32 m0, s{sVm}", "s_nop 0")
            for j in range(4):
                a(f"v_mfma_f32_32x32x16_bf16 {ar(O+16*(4*p_+j),16)}, {vr(LS,4)}, {vr(LS,4)}, 0",
                  f"buffer_load_dwordx4 v{vL16}, s[{sV}:{sV+3}], s{sVo} offen offset:{j*1024}{SC} lds", cv[:4]); cv = cv[4:]
            a(f"s_add_u32 s{sVo}, s{sVo}, 16384", f"s_add_u32 s{sVm}, s{sVm}, 32768", f"s_and_b32 s{sVm}, s{sVm}, 0x1ffff")
        assert not cv
        a("s_waitcnt vmcnt(12)", "s_barrier")
        a([f"ds_read_b128 {ar(KF+4*i,4)}, v9 offset:{i*1024}" for i in range(8)])
        a(f"buffer_store_dword v{vNI}, off, s[{sWS}:{sWS+3}], s65 offset:32{SC}", f"v_add_u32 v13, 32, v{vPo}", "v_mov_b32 v14, 0")
        self.top8()
        a("s_waitcnt lgkmcnt(4)")

    def wf_addr(self, d):
        return [f"s_and_b32 s{d}, s2, 1", f"s_lshl_b32 s{d}, s{d}, 2", f"s_add_u32 s{d}, s{d}, s{sW}", f"s_lshl_b32 s{d}, s{d}, 7",
                "s_lshr_b32 s31, s2, 1", f"s_add_u32 s{d}, s{d}, s31", f"s_lshl_b32 s{d}, s{d}, 7", f"s_add_u32 s{d}, s{d}, {WF}"]
    def yf_addr(self, d):
        return [f"s_sub_u32 s{d}, s2, {FFN0}", f"s_lshl_b32 s31, s{sW}, 6", f"s_add_u32 s{d}, s{d}, s31", f"s_lshl_b32 s{d}, s{d}, 7", f"s_add_u32 s{d}, s{d}, {YF}"]
    def flag_store(self, addr_lines, wait):
        return addr_lines + [wait, f"buffer_store_dword v{vNI}, off, s[{sWS}:{sWS+3}], s23{SC}"]

    def co_setup(self):
        name = self.name
        return (["s_mov_b32 s101, 24"] if DBG else []) + [f"s_and_b32 s32, s{sH}, 3", "s_min_u32 s32, s32, 2", "s_add_u32 s32, s32, 5", "s_lshl_b32 s32, s32, 14",
          "s_mov_b32 s9, -1", "s_sub_u32 s23, s2, 64", "s_cmp_lt_u32 s23, 96\ns_cselect_b32 s9, 0, s9", "s_cmp_ge_u32 s2, 224\ns_cselect_b32 s9, 0, s9",
          "s_and_b32 s32, s32, s9", f"s_sub_u32 s23, s2, {FFN0}", f"s_cmp_lt_u32 s23, {FFN1-FFN0}\ns_cselect_b32 s32, {(3+self.FS)*16384}, s32",
          "s_mov_b32 s67, s2", "s_mov_b32 s8, 0", f"s_mov_b32 s{k2.sRing}, 0", "s_mov_b32 s11, 0", "s_mov_b32 s12, 0",
          f"s_lshl_b32 s15, s{sI}, 1", "s_add_u32 s23, s15, 6", f"s_sub_u32 s15, {32-self.U}, s15", "s_max_u32 s15, s15, s23", "s_lshl_b32 s15, s15, 14",
          f"s_getpc_b64 s[36:37]\n{name}_copc:", f"s_add_u32 s36, s36, {name}_co-{name}_copc-4", "s_addc_u32 s37, s37, 0"]

    def cyc(self, lane):
        if not (DBG and os.environ.get("CYC")): return []
        return ["s_memtime s[98:99]", "s_waitcnt lgkmcnt(0)", f"v_writelane_b32 v7, s98, {lane}"]

    def hook(self, cond=None, R=36):
        k = self.nhook; self.nhook += 1
        n = self.name
        dbg = ["s_memrealtime s[98:99]", "s_waitcnt lgkmcnt(0)", "s_mov_b32 s100, s98"] if (DBG and os.environ.get("REC")) else []
        self.tail += [f"{n}_hk{k}:"] + dbg + [f"s_getpc_b64 s[{R+2}:{R+3}]", f"{n}_hp{k}:", f"s_add_u32 s{R}, s{R}, 4", f"s_addc_u32 s{R+1}, s{R+1}, 0",
                      f"s_sub_u32 s{R+2}, s{R+2}, {n}_hp{k}-{n}_hb{k}", f"s_subb_u32 s{R+3}, s{R+3}, 0", f"s_setpc_b64 s[{R}:{R+1}]"]
        return [cond or f"s_cmp_ge_u32 s{sKo}, s32", [f"s_cbranch_scc1 {n}_hk{k}", f"{n}_hb{k}:"]]

    def coroutine(self):
        name = self.name
        a = Asm()
        cnt = [0]
        def rec():
            if DBG and os.environ.get("REC"): a("s_memrealtime s[98:99]", "s_waitcnt lgkmcnt(0)", "s_sub_u32 s98, s98, s100", "s_lshl_b32 s98, s98, 16", "s_and_b32 s100, s100, 0xffff",
                      "s_or_b32 s98, s98, s100", "s_mov_b32 m0, s101", "s_add_u32 s101, s101, 1", "v_writelane_b32 v7, s98, m0")
        def yld(n=1):
            for _ in range(n):
                rec()
                a("s_getpc_b64 s[36:37]", "s_setpc_b64 s[38:39]")
        G = 232; FW = 192; FX = 212; Y = 236
        def wo_reads():
            a("s_waitcnt vmcnt(8)")
            for cb in range(5):
                for tt in range(2): a(f"ds_read_b64_tr_b16 {vr(232+4*cb+2*tt,2)}, v6 offset:{tt*16*160 + cb*32}")
        def wo_stores():
            a("s_add_u32 s31, s30, 4096")
            for cb in range(5):
                a(f"buffer_store_dwordx4 {vr(232+4*cb,4)}, v{vL16}, s[{sWS}:{sWS+3}], s{30 if cb < 4 else 31} offen offset:{(cb%4)*1024}{SC}")
        a.label(f"{name}_co")
        a("s_sub_u32 s14, s2, 64", "s_cmp_lt_u32 s14, 96", f"s_cbranch_scc1 {name}_coT",
          "s_sub_u32 s14, s2, 128", "s_sub_u32 s23, s2, 224", f"s_cmp_lt_u32 s23, {TOPWG-224}", f"s_cbranch_scc1 {name}_coT")
        self.poll_check(a, "kv2", 14, 13, sWS, ["v_cmp_eq_u32 vcc, 0, v14"])
        a(f"s_sub_u32 s14, s2, {FFN0}", f"s_cmp_lt_u32 s14, {FFN1-FFN0}", f"s_cbranch_scc1 {name}_coF",
          f"s_cmp_eq_u32 s2, {TOPWG}", f"s_cbranch_scc1 {name}_coW",
          f"s_cmp_lt_u32 s2, {self.NOWO}", f"s_cbranch_scc1 {name}_coW", f"s_branch {name}_coO")
        a.label(f"{name}_coT")
        a(f"v_min_u32 v8, 16, v{vL}", "v_lshlrev_b32 v8, 7, v8" if "f" not in os.environ.get("NOT", "") else f"v_mov_b32 v8, {BIG}", "s_lshl_b32 s10, s14, 1", f"s_and_b32 s31, s{sW}, 1", "s_add_u32 s10, s10, s31",
          f"s_mul_i32 s10, s10, {17*128}", "s_lshl_b32 s35, s14, 2", f"s_add_u32 s35, s35, s{sW}", f"s_mul_i32 s35, s35, {34*128}")
        for k in range(4):
            if k == 2: self.poll_check(a, "kv3", 14, 13, sWS, ["v_cmp_eq_u32 vcc, 0, v14"])
            a("buffer_load_dword v255, v8, s[52:55], s10 offen", f"s_add_u32 s10, s10, {160*3456}")
            if k >= 2: a(f"buffer_load_dword v255, v8, s[60:63], s35 offen offset:{(k-2)*17*128}")
            if k == 3: a("s_mov_b32 s9, -1", f"s_and_b32 s32, s{sH}, 3", "s_lshr_b32 s32, s32, 1", "s_add_u32 s32, s32, 6", "s_lshl_b32 s32, s32, 14")
            yld()
        a.label(f"{name}_coO")
        a("s_and_b32 s23, s67, 1", "s_lshl_b32 s23, s23, 2", f"s_add_u32 s23, s23, s{sW}", "s_lshr_b32 s31, s67, 1",
          f"s_mul_i32 s33, s23, {-4*self.ROT}", "s_add_u32 s33, s33, s31", "s_and_b32 s33, s33, 31", "s_andn2_b32 s30, s31, 31", "s_add_u32 s33, s33, s30",
          "s_lshl_b32 s30, s23, 7", "s_add_u32 s30, s30, s33", f"s_mul_i32 s33, s31, {32*1280}", "s_mul_i32 s23, s23, 160", "s_add_u32 s33, s33, s23")
        for q in range(5):
            a(f"s_add_u32 m0, s34, {q*1024}", f"v_accvgpr_read_b32 v{vT+3}, a{248+q}", f"buffer_load_dwordx4 v{vT+3}, s[56:59], s33 offen lds")
        a("s_lshl_b32 s32, s11, 15", f"s_add_u32 s32, s32, s{sKo}", "s_mov_b32 s9, -1", "s_lshl_b32 s10, s30, 7", "s_mul_i32 s30, s30, 5120", f"s_add_u32 s30, s30, {WOF}")
        yld()
        wo_reads()
        a("s_waitcnt lgkmcnt(0)")
        wo_stores()
        yld()
        a(self.flag_store([f"s_add_u32 s23, s10, {WF}"], "s_waitcnt vmcnt(8)"),
          "s_cmp_lg_u32 s67, s2", f"s_cbranch_scc1 {name}_coW",
          "s_sub_u32 s67, s2, 128", f"s_cmp_lt_u32 s67, {self.NOWO}", f"s_cbranch_scc1 {name}_coO",
          "s_sub_u32 s23, s2, 96", "s_sub_u32 s31, s2, 192", "s_cmp_lt_u32 s23, 32", "s_cselect_b32 s23, s23, s31",
          f"s_cmp_gt_u32 s23, {FFN1-FFN0}", f"s_cbranch_scc1 {name}_coW",
          f"s_add_u32 s67, s23, {FFN0}", f"s_cmp_eq_u32 s67, {FFN1}", f"s_cselect_b32 s67, {TOPWG}, s67", f"s_branch {name}_coO")
        FV = self.FV
        a.label(f"{name}_coF")
        if os.environ.get("NOFFN"): a(self.flag_store(self.yf_addr(23), "s_nop 0"), f"s_branch {name}_coW")
        a(f"v_and_b32 v{vT}, 7, v{vL}", f"v_lshlrev_b32 v252, 2, v{vT}", f"v_add_u32 v252, {SEL}, v252",
          f"buffer_load_dword v15, v252, s[{sWS}:{sWS+3}], 0 offen{SC}")
        a("s_lshl_b32 s33, s14, 6", f"s_and_b32 s31, s{sW}, 1", "s_lshl_b32 s31, s31, 5", "s_add_u32 s33, s33, s31",
          "s_mul_i32 s35, s14, 40960", f"s_mul_i32 s31, s{sW}, 320", "s_add_u32 s35, s35, s31",
          "s_mul_i32 s10, s14, 20480", f"s_mul_i32 s31, s{sW}, 5120", "s_add_u32 s10, s10, s31", f"s_add_u32 s10, s10, {YP}")
        a(f"v_lshrrev_b32 v{vT+1}, 1, v{vL}", f"v_mul_u32_u24 v{FV[0]}, 3456, v{vT+1}", f"v_and_b32 v{vT+1}, 1, v{vL}", f"v_lshl_add_u32 v{FV[0]}, v{vT+1}, 4, v{FV[0]}")
        for q in range(1, 5): a(f"v_add_u32 v{FV[q]}, {q*32*3456 - (q%4)*1024}, v{FV[0]}")
        a(f"v_lshrrev_b32 v{vT+1}, 4, v{vL}",
          f"v_lshrrev_b32 v{vT+2}, 2, v{vL}", f"v_lshl_add_u32 v{vT+2}, v{vT+1}, 2, v{vT+2}",
          f"v_lshlrev_b32 v{vT+2}, 5, v{vT+2}", f"v_and_b32 v{vT+3}, 3, v{vL}", f"v_lshl_add_u32 v9, v{vT+3}, 3, v{vT+2}", "v_add_u32 v9, s34, v9",
          f"v_lshlrev_b32 v10, 4, v{vT}", f"v_lshl_add_u32 v10, v{vT+1}, 7, v10", f"v_add_u32 v10, {XS-2560}, v10", "s_mov_b32 s8, -1",
          "s_mov_b32 s4, 0", "s_mov_b32 s5, 0", f"s_mov_b32 s6, {160*3456}")
        yld()
        a("s_waitcnt vmcnt(8)")
        self.poll_check(a, "sel", 15, 252, sWS, ["v_cmp_eq_u32 vcc, 0, v15"])
        a(f"v_add_u32 v{vT+2}, -1, v15", f"v_and_b32 v{vT+2}, 2047, v{vT+2}", f"v_lshrrev_b32 v{vT+3}, 4, v{vT+2}", f"v_mul_u32_u24 v{vT+3}, 20480, v{vT+3}",
          f"v_and_b32 v{vT+2}, 15, v{vT+2}", f"v_lshl_add_u32 v{vT+3}, v{vT+2}, 4, v{vT+3}",
          f"v_lshrrev_b32 v{vT+2}, 3, v{vL}", f"v_lshl_add_u32 v{vT+3}, v{vT+2}, 8, v{vT+3}",
          f"s_lshl_b32 s23, s{sW}, 11", f"s_lshl_b32 s31, s{sW}, 10", f"s_add_u32 s31, s31, {XS}", f"s_mov_b32 s32, {(8+self.FS)*16384}")
        for k in range(3):
            a("s_mov_b32 m0, s31", "s_add_u32 s31, s31, 4096", f"buffer_load_dwordx4 v{vT+3}, s[{sWS}:{sWS+3}], s23 offen{SC} lds",
              "s_add_u32 s23, s23, 8192")
        yld()
        for q in range(5): a(f"v_accvgpr_read_b32 v{FV[q]}, a{248+q}")
        for q in range(1, 4): a(f"v_subrev_u32 v{FV[q]}, {q*1024}, v{FV[q]}")
        a("s_mov_b32 s52, s60", "s_mov_b32 s53, s61", "s_mov_b32 s33, s35", "s_movk_i32 s6, 160", "s_mov_b32 s9, 0",
          f"v_and_b32 v{vT+1}, 7, v{vL}", f"v_lshlrev_b32 v15, 6, v{vT+1}", f"v_lshrrev_b32 v{vT+1}, 4, v{vL}", f"v_lshl_add_u32 v15, v{vT+1}, 4, v15",
          f"v_and_b32 v{vT+1}, 8, v{vL}", f"v_lshl_add_u32 v15, v{vT+1}, 27, v15")
        yld()
        a(f"s_lshl_b32 s23, s{sW}, 9", f"v_add_u32 v{vT}, s23, v10", "s_mov_b32 s9, -1", f"ds_write_b128 v{vT}, {vr(G,4)}")
        yld()
        GU = 236
        def dreads():
            a("s_waitcnt vmcnt(4)")
            for cb in range(5):
                for t in range(2): a(f"ds_read_b64_tr_b16 {ar(FW+4*cb+2*t,2)}, v6 offset:{t*2560+cb*32}")
        def dmm():
            a("s_waitcnt lgkmcnt(0)")
            for cb in range(5): a(f"{MF} {vr(Y+4*cb,4)}, {ar(FW+4*cb,4)}, {ar(232,4)}, 0")
            a("s_nop 3")
            for cb in range(5): a(f"buffer_store_dwordx4 {vr(Y+4*cb,4)}, v15, s[{sWS}:{sWS+3}], s10 offen offset:{cb*512}{SC}")
            a("s_add_u32 s10, s10, 2560")
        for k in range(4): a(f"ds_read_b128 {vr(GU+4*k,4)}, v10 offset:{k*512}")
        dreads()
        a("v_subrev_u32 v10, 10240, v10", "s_mov_b32 s8, 0", "s_waitcnt lgkmcnt(10)")
        for k in range(8):
            a(f"v_cvt_pk_bf16_f32 v{GU+k}, v{GU+k}, v{GU+8+k}")
        for k in range(8): a(f"v_lshlrev_b32 v{GU+8+k}, 16, v{GU+k}")
        for k in range(8): a(f"v_mul_f32 v{vT+k}, 0xbfb8aa3b, v{GU+8+k}")
        for k in range(8): a(f"v_exp_f32 v{vT+k}, v{vT+k}")
        for k in range(8): a(f"v_add_f32 v{vT+k}, 1.0, v{vT+k}")
        for k in range(8): a(f"v_rcp_f32 v{vT+k}, v{vT+k}")
        for k in range(8): a(f"v_and_b32 v{GU+k}, 0xffff0000, v{GU+k}")
        for k in range(4): a(f"v_pk_mul_f32 {vr(GU+8+2*k,2)}, {vr(GU+8+2*k,2)}, {vr(vT+2*k,2)}")
        for k in range(4): a(f"v_cvt_pk_bf16_f32 v{vT+k}, v{GU+8+2*k}, v{GU+9+2*k}")
        for k in range(4): a(f"v_lshlrev_b32 v{GU+8+2*k}, 16, v{vT+k}", f"v_and_b32 v{GU+9+2*k}, 0xffff0000, v{vT+k}")
        for k in range(4): a(f"v_pk_mul_f32 {vr(GU+2*k,2)}, {vr(GU+2*k,2)}, {vr(GU+8+2*k,2)}")
        for k in range(4): a(f"v_cvt_pk_bf16_f32 v{vT+k}, v{GU+2*k}, v{GU+2*k+1}")
        for k in range(4): a(f"v_accvgpr_write_b32 a{232+k}, v{vT+k}")
        a("s_nop 0")
        dmm()
        yld()
        dreads()
        dmm()
        yld()
        a(self.flag_store(self.yf_addr(23), "s_waitcnt vmcnt(8)"))
        a.label(f"{name}_coW")
        waddr = [f"s_lshl_b32 s23, s{sI}, 1", "s_and_b32 s31, s2, 1", "s_add_u32 s23, s23, s31", "s_lshl_b32 s23, s23, 2", f"s_add_u32 s23, s23, s{sW}",
                 f"s_mul_i32 s13, s23, {16*5120}", f"s_add_u32 s13, s13, {WOF}",
                 "s_lshl_b32 s23, s23, 11", f"s_add_u32 s23, s23, {WF}", f"v_and_b32 v9, 15, v{vL}", "v_lshl_add_u32 v9, v9, 7, s23",
                 "s_and_b32 s60, s2, 7", "s_lshl_b32 s60, s60, 1", "s_and_b32 s23, s2, 16", "s_add_u32 s60, s60, s23", "s_bfe_u32 s23, s2, 0x10003", "s_add_u32 s60, s60, s23"]
        a("s_mov_b32 s12, 1", "s_mov_b32 s9, -1", "s_cmp_lg_u32 s11, 0", "s_cselect_b32 s32, s15, -1")
        yld()
        a(waddr,
          f"v_and_b32 v10, 15, v{vL}", "v_lshlrev_b32 v10, 2, v10", f"v_add_u32 v10, {SEL}, v10",
          f"buffer_load_dword v8, v9, s[{sWS}:{sWS+3}], 0 offen{SC}", f"buffer_load_dword v15, v10, s[{sWS}:{sWS+3}], 0 offen{SC}")
        a("s_load_dwordx2 s[52:53], s[0:1], 0")
        if os.environ.get("CT3", "0") == "1":
            a("s_getpc_b64 s[4:5]", f"{name}_pc3:", f"s_sub_u32 s4, s4, {name}_pc3-{name}_chain", "s_subb_u32 s5, s5, 0", f"s_and_b32 s23, s{sH}, 3",
              "s_lshl_b32 s23, s23, 2", f"s_add_u32 s23, s23, s{sW}", "s_lshl_b32 s23, s23, 11", f"s_min_u32 s23, s23, {name}_end-{name}_chain-2048",
              f"v_and_b32 v14, 15, v{vL}", "v_lshl_add_u32 v14, v14, 7, s23", "global_load_dword v14, v14, s[4:5]")
        self.ctx_epi(a, 0, [32, 44, 96, 108])
        vXo, vLa, RS = 248, 251, 336
        a("s_lshl_b32 s33, s60, 6", f"s_mul_i32 s35, s{sI}, 160", f"s_mul_i32 s14, s{sI}, 2560", f"s_mov_b32 s54, {2048*1280}", "s_mov_b32 s55, 0x20000")
        for k in range(3):
            a(f"v_add_u32 v{vT}, {256*k}, v0", f"v_mul_u32_u24 v{vT+1}, 6554, v{vT}", f"v_lshrrev_b32 v{vT+1}, 16, v{vT+1}",
              f"v_mul_u32_u24 v{vT+2}, 10, v{vT+1}", f"v_sub_u32 v{vT+2}, v{vT}, v{vT+2}",
              f"v_mul_u32_u24 v{vLa+k}, {RS}, v{vT+1}", f"v_lshl_add_u32 v{vLa+k}, v{vT+2}, 5, v{vLa+k}", f"v_add_u32 v{vT+1}, s33, v{vT+1}",
              f"v_mul_u32_u24 v{vXo+k}, 1280, v{vT+1}", f"v_lshl_add_u32 v{vXo+k}, v{vT+2}, 4, v{vXo+k}", f"v_add_u32 v{vXo+k}, s35, v{vXo+k}",
              f"v_lshrrev_b32 v{vT+3}, 4, v{vT+1}", f"v_mul_u32_u24 v{vT+3}, 20480, v{vT+3}", f"v_and_b32 v{vT+1}, 15, v{vT+1}",
              f"v_lshl_add_u32 v{vT+3}, v{vT+1}, 4, v{vT+3}", f"v_lshl_add_u32 v{vT+8+k}, v{vT+2}, 8, v{vT+3}")
        a("v_cmp_gt_u32 vcc, 128, v0", f"v_mov_b32 v{vT}, {BIG}", f"v_mov_b32 v{vT+1}, 0", "v_lshlrev_b32 v6, 4, v0",
          f"v_cndmask_b32 v{vXo+2}, v{vT}, v{vXo+2}, vcc", f"v_cndmask_b32 v{vT+10}, v{vT}, v{vT+10}, vcc", f"v_cndmask_b32 v{vLa+2}, v{vT+1}, v{vLa+2}, vcc",
          f"v_cndmask_b32 v6, v{vT}, v6, vcc", f"s_lshl_b32 s23, s{sW}, 10", f"s_add_u32 s23, s23, {XS}", "s_waitcnt vmcnt(8) lgkmcnt(0)")
        for k in range(3):
            a(f"s_add_u32 m0, s34, {k*1024}", "s_nop 0", f"buffer_load_dwordx4 v{vXo+k}, s[52:55], 0 offen lds",
              f"s_add_u32 m0, s34, {(3+k)*1024}" if k < 2 else "s_mov_b32 m0, s23", "s_nop 0", f"buffer_load_dwordx4 v{vT+8+k}, s[{sWS}:{sWS+3}], s14 offen{SC} lds")
        a(f"s_mov_b32 s28, s{sK+2}", "s_add_u32 s30, s28, 65536", f"s_lshl_b32 s23, s{sW}, 12", "s_add_u32 s23, s23, s28",
          f"s_add_u32 s31, s13, {self.FL*1024}", "s_sub_u32 s31, s31, s23", "s_add_u32 s4, s18, s31", "s_addc_u32 s5, s19, 0",
          "s_add_u32 s6, s4, 4096", "s_addc_u32 s7, s5, 0")
        self.poll_check(a, "wof", 8, 9, sWS, ["v_cmp_eq_u32 vcc, 0, v8"])
        self.poll_check(a, "sel4", 15, 10, sWS, ["v_cmp_eq_u32 vcc, 0, v15"])
        a("s_lshl_b32 s31, s60, 6", "s_add_u32 s31, s31, 1", f"v_subrev_u32 v{vT}, s31, v15", f"v_cmp_gt_u32 vcc, 64, v{vT}",
          f"s_cmp_lt_u32 s{sW}, 2", "s_cselect_b32 s23, 0xff, 0", "s_and_b32 s10, vcc_lo, s23",
          "s_sub_u32 s23, s10, 1", "s_and_b32 s23, s23, s10", f"s_cmp_eq_u32 s{sW}, 1", "s_cselect_b32 s10, s23, s10",
          "s_cmp_eq_u32 s10, 0", f"s_cbranch_scc1 {name}_coEnd")
        a(f"v_min_u32 v11, {FFN1-FFN0-1}, v{vL}", f"s_lshr_b32 s23, s{sI}, 1", "s_lshl_b32 s23, s23, 13", f"s_add_u32 s23, s23, {YF}",
          "v_lshl_add_u32 v11, v11, 7, s23", f"buffer_load_dword v14, v11, s[{sWS}:{sWS+3}], 0 offen{SC}")
        YQ = list(range(64, 96, 4)) + list(range(128, 160, 4)) + [176, 180]
        AC = YQ[0]
        a(f"v_mul_u32_u24 v{vT}, 3277, v{vL}", f"v_lshrrev_b32 v{vT}, 16, v{vT}", f"v_mul_u32_u24 v8, 20, v{vT}",
          f"v_sub_u32 v8, v{vL}, v8", "v_lshlrev_b32 v8, 4, v8",
          f"v_mul_u32_u24 v9, {18*20480}, v{vT}", f"v_lshrrev_b32 v{vT+1}, 6, v8", f"v_mul_u32_u24 v{vT+1}, 448, v{vT+1}", f"v_add3_u32 v9, v9, v8, v{vT+1}",
          f"v_cmp_gt_u32 vcc, 3, v{vT}", f"v_mov_b32 v{vT+3}, {BIG}", "s_nop 0", f"v_cndmask_b32 v9, v{vT+3}, v9, vcc")
        a("s_mov_b32 s12, 2", "s_mov_b32 s32, -1", "s_mov_b32 s11, 0")
        yld()
        self.poll_check(a, "yf", 14, 11, sWS, ["v_cmp_eq_u32 vcc, 0, v14"])
        a.label(f"{name}_coY")
        a("s_ff1_i32_b32 s33, s10", "s_bitset0_b32 s10, s33", "s_sub_u32 s23, s10, 1", "s_and_b32 s10, s10, s23",
          "s_lshl_b32 s14, s33, 6", f"s_mul_i32 s23, s{sI}, 2560", "s_add_u32 s14, s14, s23", f"s_add_u32 s14, s14, {YP}")
        for q in range(18):
            a(f"buffer_load_dwordx4 {vr(YQ[q],4)}, v9, s[{sWS}:{sWS+3}], s14 offen{SC}", "s_add_u32 s14, s14, 20480")
        a(f"s_lshl_b32 s14, s{sW}, 10", f"s_add_u32 s14, s14, {SCR}", f"v_add_u32 v{vT+3}, s14, v{vL16}", "s_add_u32 s23, s33, 8",
          "v_readlane_b32 s35, v15, s23", "s_waitcnt vmcnt(0)")
        for q in range(1, 18):
            for e in range(0, 4, 2): a(f"v_pk_add_f32 {vr(AC+e,2)}, {vr(AC+e,2)}, {vr(YQ[q]+e,2)}")
        a(f"ds_write_b128 v{vT+3}, {vr(AC,4)}", f"v_add_u32 v{vT+3}, s14, v8", "s_and_b32 s35, s35, 0xffff0000", "s_waitcnt lgkmcnt(0)",
          f"ds_read_b128 {vr(AC,4)}, v{vT+3}", f"ds_read_b128 {vr(AC+4,4)}, v{vT+3} offset:320", f"ds_read_b128 {vr(AC+8,4)}, v{vT+3} offset:640",
          "s_mul_i32 s14, s33, 320", f"s_add_u32 s14, s14, {UPD}", f"v_add_u32 v{vT+3}, s14, v8", "s_waitcnt lgkmcnt(0)")
        for e in range(4):
            a(f"v_add_f32 v{AC+e}, v{AC+e}, v{AC+4+e}", f"v_add_f32 v{AC+e}, v{AC+e}, v{AC+8+e}")
            bf16r(a, AC + e)
            a(f"v_mul_f32 v{AC+e}, s35, v{AC+e}")
            bf16r(a, AC + e)
        a(f"ds_write_b128 v{vT+3}, {vr(AC,4)}", "s_waitcnt lgkmcnt(0)", "s_cmp_lg_u32 s10, 0", f"s_cbranch_scc1 {name}_coY")
        a.label(f"{name}_coEnd")
        a("s_mov_b32 s12, 3", "s_mov_b32 s32, -1")
        rec()
        a("s_setpc_b64 s[38:39]")
        self.tail += a.lines

    def phase3(self):
        a = self.a; name = self.name
        a(self.period(1, ["q", "q"], c0=True))
        a("s_nop 7", f"s_cmp_lg_u32 s{sCnt}, 0", f"s_cbranch_scc1 {name}_nomask0")
        a(mask_ops(0, 0))
        a.label(f"{name}_nomask0")
        for X in range(2):
            for qb in range(2):
                s0 = S + 32 * X + 8 * qb; d = vT + 2 * X + qb
                a(f"v_max3_f32 v{d}, v{s0}, v{s0+1}, v{s0+2}", f"v_max3_f32 v{d}, v{d}, v{s0+3}, v{s0+4}",
                  f"v_max3_f32 v{d}, v{d}, v{s0+5}, v{s0+6}", f"v_max_f32 v{d}, v{d}, v{s0+7}")
        for sw in ("v_permlane16_swap_b32", "v_permlane32_swap_b32"):
            for k in range(4): a(f"v_mov_b32 v{vT+4+k}, v{vT+k}")
            a("s_nop 0")
            for k in range(4): a(f"{sw} v{vT+k}, v{vT+4+k}")
            for k in range(4): a(f"v_max_f32 v{vT+k}, v{vT+k}, v{vT+4+k}")
        for X in range(2):
            for qb in range(2):
                for r in range(4): a(f"v_sub_f32 v{NM+8*X+4*qb+r}, 0, v{vT+2*X+qb}")
        for X in range(2):
            for qb in range(2):
                s0 = S + 32 * X + 8 * qb
                for r in range(8): a(f"v_sub_f32 v{s0+r}, v{s0+r}, v{vT+2*X+qb}")
        a(self.period(0, ["qs", "qs"]))
        a(f"buffer_load_dword v14, v13, s[{sWS}:{sWS+3}], 0 offen{SC}")
        stamp(a, 8)
        a(self.cyc(50))
        F = "qsv"
        a(f"s_cmp_eq_u32 s{sCnt}, 0", f"s_cbranch_scc1 {name}_AV", f"s_sub_u32 s{sCnt}, s{sCnt}, 1",
          f"s_cmp_eq_u32 s{sCnt}, 0", f"s_cbranch_scc1 {name}_Aexit")
        a(".p2align 6")
        a.label(f"{name}_DD")
        a(self.period(1, [F, F], bar=12, hook=self.hook()))
        a.label(f"{name}_DDe")
        a(self.period(0, [F, F], tail_sc=[f"s_sub_u32 s{sCnt}, s{sCnt}, 1", f"s_cmp_gt_u32 s{sCnt}, s8"], hook=self.hook(f"s_cmp_ge_u32 s{sKo}, s9")))
        a(f"s_cbranch_scc1 {name}_DD", "s_cmp_lg_u32 s8, 0", f"s_cbranch_scc1 {name}_DDF")
        ex = [([f"s_add_u32 m0, s34, {(q//4)*4096}"] if q % 4 == 0 else [],
               f"buffer_load_dwordx4 v{self.FV[q]}, s[52:55], s33 offen offset:{(q%4)*1024} lds") for q in range(5)]
        hk = self.hook()
        k_ = self.nhook - 1
        self.tail[-3] = f"s_add_u32 s38, s38, {name}_hb{k_}-{name}_hp{k_}"; self.tail[-2] = "s_addc_u32 s39, s39, 0"
        G, FW, FX = 232, 192, 212
        rd = []
        for q in range(5):
            rd += [f"ds_read_b64_tr_b16 {ar(FW+4*q+2*t,2)}, v9 offset:{q*1024+t*128}" for t in range(2)] + [f"ds_read_b128 {ar(FX+4*q,4)}, v10 offset:{q*512}"]
        rg = [3, 4, 5, 5, 7, 7, 8, 9, 9, 10, 10, 11, 11, 14, 14]
        xpost = [(20 + k, f"v_and_b32 v{G+k}, s4, v{G+k}") for k in range(4)] + [(18, "v_add_u32 v10, 2560, v10")]
        xpost += [(34 + 5 * q, f"{MF} {vr(G,4)}, {ar(FW+4*q,4)}, {ar(FX+4*q,4)}, {vr(G,4)}") for q in range(5)]
        xsc = [(33, "s_mov_b32 s4, s5"), (34, "s_mov_b32 s5, -1"), (57, "s_add_u32 s33, s33, s6")]
        self.tail += [f"{name}_DDF:"] + self.period(1, [F, F], bar=4, hook=hk, extra=ex, dgaps=[6, 13, 19, 25], egaps=[31, 37, 43, 49, 55],
                                                    xmem=list(zip(rg, rd)), xsc=xsc, xpost=xpost) + [f"s_branch {name}_DDe"]
        self.coroutine()
        a.label(f"{name}_Aexit")
        a(self.cyc(51))
        a(f"s_bitcmp1_b32 s{sW}, 0", f"s_cbranch_scc1 {name}_Aodd")
        a(self.period(1, [F, F], bar=12))
        a(self.period(0, ["smv", F]))
        a.label(f"{name}_AV")
        a(self.period(1, ["v", F], bar=12))
        a(self.period(0, ["", F]))
        a(f"s_branch {name}_SSpre")
        a.label(f"{name}_Aodd")
        a(self.period(1, ["smv", F], bar=12))
        a(self.period(0, ["v", F]))
        a.label(f"{name}_SSpre")
        a(self.cyc(52))
        a("s_mov_b32 s11, 1", "s_cmp_lg_u32 s12, 0", "s_cselect_b32 s32, s15, s32")
        U, KY = self.U, self.KY
        def wx(fs):
            out = []
            for k, e in enumerate(fs):
                f = self.EF[59 - e]
                pre = [f"s_add_u32 s14, s13, {(f//4)*4096}"] if (k == 0 or f % 4 == 3) else []
                out.append((pre, self.wl(f)))
            return out
        def drain(lv):
            h = self.hook(f"s_cmp_lt_u32 s12, {lv}")
            a(h[1][1], h[0], h[1][0])
        a(f"s_cmp_ge_u32 s{sW}, 2", f"s_cselect_b32 s23, {U}, 0", f"s_cmp_le_u32 s{sNSS}, s23", f"s_cbranch_scc1 {name}_chain")
        a(".p2align 6")
        a.label(f"{name}_SS")
        a(self.period(1, ["", F], bar=12, hook=self.hook()))
        a(self.period(0, ["", F], tail_sc=[f"s_sub_u32 s{sNSS}, s{sNSS}, 1", f"s_cmp_gt_u32 s{sNSS}, {U}"]))
        a(f"s_cbranch_scc1 {name}_SS")
        a.label(f"{name}_chain")
        if os.environ.get("PRIO", "1") == "1": a("s_setprio 3")
        a(self.cyc(53))
        drain(2)
        a(f"s_cmp_eq_u32 s{sNSS}, {U}", f"s_cbranch_scc0 {name}_disp")
        t = Asm()
        t.label(f"{name}_disp")
        for k in range(U - 1, 0, -1): t(f"s_cmp_eq_u32 s{sNSS}, {k}", f"s_cbranch_scc1 {name}_SSW{k}")
        t(f"s_branch {name}_Bexit")
        self.tail += t.lines
        for k in range(U, 0, -1):
            a.label(f"{name}_SSW{k}")
            f0 = sum(self.CB[:U-k]); nb = self.CB[U-k]; h1 = nb // 2
            a(self.period(1, ["", F], bar=(8 if k == 1 else 12), extra=wx(range(f0, f0 + h1)), redir=(k <= 3)))
            a(self.period(0, ["", F], extra=wx(range(f0 + h1, f0 + nb)), redir=(k <= 3)))
        a.label(f"{name}_Bexit")
        a(self.cyc(54))
        f0 = U * 6
        a(f"s_bitcmp1_b32 s{sW}, 0", f"s_cbranch_scc1 {name}_Bodd")
        a(self.period(1, ["", F], bar=8, dma=False, kread=False, extra=wx(range(f0, f0 + 6))))
        a(self.period(0, ["", "smv"], dma=False, kread=False, extra=wx(range(f0 + 6, f0 + 10))))
        a(self.period(1, ["", "v"], bar=10, dma=False, kread=False, extra=wx(range(f0 + 10, f0 + 12)), condbar=f"{name}_nb0"))
        a(f"s_branch {name}_Bdone")
        a.label(f"{name}_Bodd")
        a(self.period(1, ["", "smv"], bar=8, dma=False, kread=False, extra=wx(range(f0, f0 + 7)), condbar=f"{name}_nb1"))
        a(self.period(0, ["", "v"], dma=False, kread=False, extra=wx(range(f0 + 7, f0 + 12))))
        self.wx = wx
        a.label(f"{name}_Bdone")
        a.label(f"{name}_epi")
        stamp(a, 9)
        a(self.cyc(55))
        self.ctx_epi(a, 1, [64, 76, 128, 140])

    def ctx_epi(self, a, X, Ts):
        L = LS + 2 * X
        for sw in ("v_permlane16_swap_b32", "v_permlane32_swap_b32"):
            for k in range(2): a(f"v_mov_b32 v{vT+4+k}, v{L+k}")
            a("s_nop 1")
            for k in range(2): a(f"{sw} v{L+k}, v{vT+4+k}")
            for k in range(2): a(f"v_add_f32 v{L+k}, v{L+k}, v{vT+4+k}")
        for k in range(2): a(f"v_rcp_f32 v{vT+2*k}, v{L+k}")
        if X == 0: a(f"s_lshl_b32 s23, s{sI}, 2")
        else: a(f"s_sub_u32 s23, 15, s{sI}", "s_lshl_b32 s23, s23, 2")
        for k in range(2): a(f"v_mov_b32 v{vT+2*k+1}, v{vT+2*k}")
        a(f"s_add_u32 s23, s23, s{sW}", "s_lshl_b32 s23, s23, 18", f"s_lshl_b32 s31, s{sH}, 12",
          f"s_add_u32 s31, s31, {CTX}", f"s_add_u32 s{sXo}, s23, s31", f"s_add_u32 s{sXo+1}, s{sXo}, {1<<17}")
        k = 0
        for qb in range(2):
            for t in range(4):
                T = Ts[k % len(Ts)]; k += 1
                f = vT + 2 * qb
                for hh in range(2):
                    for r in range(4): a(f"v_accvgpr_read_b32 v{T+4+4*hh+r}, a{O+64*X+8*(2*t+hh)+4*qb+r}")
                for r in range(4): a(f"v_pk_mul_f32 {vr(T+4+2*r,2)}, {vr(T+4+2*r,2)}, {vr(f,2)}")
                for r in range(4): a(f"v_cvt_pk_bf16_f32 v{T+r}, v{T+4+2*r}, v{T+5+2*r}")
                a(f"buffer_store_dwordx4 {vr(T,4)}, v{vL16}, s[{sWS}:{sWS+3}], s{sXo+qb} offen offset:{t*1024}{SC}")

    LF = [32, 33, 34, 35, 36, 37, 38, 39, 48, 49, 50, 51, 52, 53, 54, 55, 64, 65, 66, 67]
    EF = [f for f in range(80) if f not in (32, 33, 34, 35, 36, 37, 38, 39, 48, 49, 50, 51, 52, 53, 54, 55, 64, 65, 66, 67)]
    _EQ = ([vr(b, 4) for b in range(32, 64, 4)] + [vr(b, 4) for b in range(96, 128, 4)] + [vr(b, 4) for b in range(160, 176, 4)]
           + [vr(b, 4) for b in range(232, 248, 4)] + [vr(192, 4), vr(196, 4), vr(208, 4), vr(212, 4)]
           + [ar(b, 4) for b in range(0, 64, 4)] + [ar(b, 4) for b in range(192, 256, 4)])
    _LQ = [vr(b, 4) for b in range(64, 96, 4)] + [vr(b, 4) for b in range(128, 160, 4)] + [vr(b, 4) for b in range(176, 192, 4)]
    WQ = dict(list(zip(EF, _EQ)) + list(zip(LF, _LQ)))
    def wl(self, f):
        return f"buffer_load_dwordx4 {self.WQ[f]}, v{vL16}, s[{sWS}:{sWS+3}], s14 offen offset:{(f%4)*1024}{SC}"

    def phase4(self):
        a = self.a; name = self.name
        RS = 336; PART = 64 * RS
        ACq = [ar(b, 4) for b in range(64, 144, 4)]
        CRq = [ar(b, 4) for b in range(144, 192, 4)] + [vr(b, 4) for b in range(216, 232, 4)]
        vXo, vLa, vXn, vUp = 248, 251, 200, 203
        sX, sO = 44, 48
        sCo = 64
        sMT, sNG = 60, sI
        def cl(ks, qb): return f"buffer_load_dwordx4 {CRq[4*(ks%4)+qb]}, v{vL16}, s[{sWS}:{sWS+3}], s{sCo+qb} offen offset:{(ks%4)*1024}{SC}"
        def cbase(src): return [f"s_add_u32 s{sCo}, {src}"] + [f"s_add_u32 s{sCo+qb}, s{sCo}, {qb<<17}" for qb in range(1, 4)]
        a("s_load_dwordx2 s[16:17], s[0:1], 88")
        a(f"v_mov_b32 v{vT+14}, {BIG}", f"v_writelane_b32 v{vT+14}, s{sCFA}, 0", f"v_writelane_b32 v{vT+14}, s{sCFB}, 1")
        a("s_and_b32 s23, s2, 1", "s_lshl_b32 s23, s23, 2", f"s_add_u32 s61, s23, s{sW}", "s_lshl_b32 s23, s61, 14", f"s_add_u32 s23, s23, {CTX}",
          f"s_lshl_b32 s63, s{sMT}, 19", "s_add_u32 s63, s63, s23", f"s_xor_b32 s62, s63, {2<<19}", cbase("s62, 0"))
        a(f"v_bfe_u32 v12, v{vL}, 2, 1", f"v_mul_u32_u24 v12, {CS}, v12", f"v_and_b32 v13, 3, v{vL}", f"v_lshl_add_u32 v12, v13, {CH}, v12",
          f"s_lshl_b32 s31, s61, {CH+2}", f"s_add_u32 s31, s31, {CF}", f"s_mul_i32 s23, s{sMT}, {2*CS}", "s_add_u32 s23, s23, s31", "v_add_u32 v10, s23, v12",
          f"s_xor_b32 s23, s{sMT}, 2", f"s_mul_i32 s23, s23, {2*CS}", "s_add_u32 s23, s23, s31", "v_add_u32 v12, s23, v12")
        a([f"v_mov_b32 v{vT+4+i}, 0" for i in range(4)], f"v_add_u32 v{vT}, {UPD+2560}, v{vL16}", f"ds_write_b128 v{vT}, {vr(vT+4,4)}")
        a("s_waitcnt vmcnt(0)", f"buffer_store_dword v{vNI}, v{vT+14}, s[{sWS}:{sWS+3}], 0 offen{SC}", "s_setprio 0")
        stamp(a, 10)
        a(self.cyc(60))
        a(self.hook("s_cmp_lt_u32 s12, 3"))
        a(f"s_cmp_lt_u32 s{sNSS}, {self.U}", f"s_cbranch_scc1 {name}_left")
        a.label(f"{name}_leftb")
        t = Asm()
        t.label(f"{name}_left")
        for k in range(self.U, 0, -1):
            if k < self.U: t(f"s_cmp_ge_u32 s{sNSS}, {k}", f"s_cbranch_scc1 {name}_leftb")
            for (pre, l) in self.wx(range(sum(self.CB[:self.U-k]), sum(self.CB[:self.U-k+1]))): t(pre, l)
        t(f"s_branch {name}_leftb")
        self.tail += t.lines
        a("s_lshl_b32 s34, s28, 1", f"s_and_b32 s23, s{sW}, 1", "s_lshl_b32 s23, s23, 12", f"s_cmp_lt_u32 s{sW}, 2", f"s_cselect_b32 s33, {131072-24576}, 0",
          "s_add_u32 s33, s33, s23", "s_add_u32 s33, s33, s34", "s_and_b32 s33, s33, 0x1ffff",
          f"s_lshl_b32 s23, s{sW}, 12", f"s_add_u32 s34, s34, {32768+16384}", "s_add_u32 s34, s34, s23", "s_and_b32 s34, s34, 0x1ffff",
          "s_add_u32 s23, s23, s28", f"s_cmp_lt_u32 s{sNSS}, 3",
          f"s_cselect_b32 s{sKo}, s23, s{sKo}", f"s_cselect_b32 s{sVo}, s23, s{sVo}", f"s_cselect_b32 s{sKm}, s33, s{sKm}", f"s_cselect_b32 s{sVm}, s34, s{sVm}",
          f"s_mov_b64 s[{sK}:{sK+1}], s[4:5]", f"s_mov_b64 s[{sV}:{sV+1}], s[6:7]", f"s_mov_b32 s{sK+2}, s30", f"s_mov_b32 s{sV+2}, s30")
        def piece(srdn, so, sm):
            return [f"s_mov_b32 m0, s{sm}", f"s_add_u32 s{sm}, s{sm}, 32768", f"s_and_b32 s{sm}, s{sm}, 0x1ffff"] + \
                   [f"buffer_load_dwordx4 v{vL16}, s[{srdn}:{srdn+3}], s{so} offen offset:{q*1024}{SC} lds" for q in range(4)] + [f"s_add_u32 s{so}, s{so}, 16384"]
        for tag, (srdn, so, sm), lim in (("pk", (sK, sKo, sKm), 3), ("pv", (sV, sVo, sVm), 2)):
            a(f"s_add_u32 s23, s28, {lim*16384}")
            a.label(f"{name}_{tag}")
            a(f"s_cmp_ge_u32 s{so}, s23", f"s_cbranch_scc1 {name}_{tag}d", piece(srdn, so, sm), f"s_branch {name}_{tag}")
            a.label(f"{name}_{tag}d")
        a("s_waitcnt lgkmcnt(0)", "s_barrier")
        a(f"buffer_load_dword v13, v12, s[{sWS}:{sWS+3}], 0 offen{SC}")
        a(
          "s_mul_i32 s28, s2, 24576", f"s_add_u32 s28, s28, {PX}", "s_xor_b32 s23, s2, 1", "s_mul_i32 s29, s23, 24576", f"s_add_u32 s29, s29, {PX}",
          "s_lshl_b32 s30, s2, 2", f"s_add_u32 s30, s30, s{sW}", "s_lshl_b32 s30, s30, 7", f"s_add_u32 s30, s30, {XFL}", "s_xor_b32 s35, s30, 512",
          "v_lshlrev_b32 v9, 4, v0", "v_mov_b32 v8, s35", f"s_lshl_b32 s25, s{sMT}, 6", "s_add_u32 s25, s25, 1",
          f"s_mul_i32 s26, s{sW}, 5120", f"s_add_u32 s26, s26, {SPARE}", f"s_mul_i32 s27, s{sW}, 1024", f"s_add_u32 s27, s27, {XS}")
        srd(a, sO, "s16", "s17", 2048 * 1280)
        a("s_waitcnt vmcnt(0)")
        a(stampv(20), self.cyc(61))
        self.poll_check(a, "ctx", 13, 12, sWS, ["v_cmp_eq_u32 vcc, 0, v13"])
        a(stampv(21))
        for ks in range(4): a([cl(ks, qb) for qb in range(4)])
        for kind, sreg, fs in (("K", 33, (32, 48, 64)), ("V", 34, (36, 52))):
            for f0 in fs:
                a(f"v_add_u32 v11, s{sreg}, v{vL16}", f"s_add_u32 s{sreg}, s{sreg}, 32768", f"s_and_b32 s{sreg}, s{sreg}, 0x1ffff",
                  [f"ds_read_b128 {self.WQ[f0+q]}, v11 offset:{q*1024}" for q in range(4)])
        a(cbase(f"s{sCo}, 4096"), "s_waitcnt vmcnt(14) lgkmcnt(0)")
        a(stampv(22), self.cyc(58))
        tm = [f"v_add_u32 v{vXn}, s26, v{vL16}", f"v_add_u32 v{vXn+1}, s27, v{vL16}"]
        for k in range(3):
            tm += [f"v_add_u32 v{vT}, {256*k}, v0", f"v_mul_u32_u24 v{vT+1}, 6554, v{vT}", f"v_lshrrev_b32 v{vT+1}, 16, v{vT+1}",
              f"v_mul_u32_u24 v{vT+2}, 10, v{vT+1}", f"v_sub_u32 v{vT+2}, v{vT}, v{vT+2}", f"v_lshlrev_b32 v{vUp+k}, 5, v{vT+2}",
              f"v_add_u32 v{vT+8+k}, s25, v{vT+1}", f"v_mov_b32 v{vT+11+k}, 8"]
        tm += [f"v_readlane_b32 s{68+k}, v15, {k}" for k in range(8)]
        for k in range(8):
            tm += [f"v_cmp_eq_u32 s[{52+2*t_}:{53+2*t_}], s{68+k}, v{vT+8+t_}" for t_ in range(3)]
            tm += [f"v_cndmask_b32 v{vT+11+t_}, v{vT+11+t_}, {k}, s[{52+2*t_}:{53+2*t_}]" for t_ in range(3)]
        for t_ in range(3): tm += [f"v_mul_u32_u24 v{vT+11+t_}, 320, v{vT+11+t_}", f"v_add_u32 v{vUp+t_}, v{vUp+t_}, v{vT+11+t_}", f"v_add_u32 v{vUp+t_}, {UPD}, v{vUp+t_}"]
        tm += [f"v_and_b32 v{vT}, 15, v{vL}", f"v_mul_u32_u24 v{vT}, {RS}, v{vT}", f"v_lshrrev_b32 v{vT+1}, 4, v{vL}", f"v_lshl_add_u32 v{vT}, v{vT+1}, 4, v{vT}",
               f"v_add_u32 v{vT}, s24, v{vT}"]
        pw = lambda q: f"ds_write_b128 v{vT}, {ACq[(q%5)*4+q//5]} offset:{(q//5)*16*RS+(q%5)*64}"
        pr = lambda k, b: [f"ds_read_b128 {vr(b+8*p+4*hh,4)}, v{vLa+k} offset:{p*PART+16*hh}" for p in range(4) for hh in range(2)]
        MB = [32, 96, 32]; MR = [18, 20, 21]
        XQ = [160, 164, 168, 172, 232, 236]; XF = [96, 104, 112]; OF = [120, 192, 208]; PP = [240, 176, 184]
        vm = VM()
        for ks in range(4):
            for qb in range(4): vm.issue(f"C{ks}_{qb}")
        for ks in range(32):
            mf = [f"{MF} {ACq[cb*4+qb]}, {self.WQ[(ks%16)*5+cb]}, {CRq[4*(ks%4)+qb]}, {ACq[cb*4+qb] if ks % 16 else 0}" for qb in range(4) for cb in range(5)]
            sc = {g: [] for g in range(20)}; mem = {g: [] for g in range(20)}; va = {g: [] for g in range(20)}
            tg = {g: [] for g in range(20)}; need = []; lg = ""
            if ks == 0: sc[2].append(f"s_mul_i32 s24, s{sW}, {PART}")
            if ks < 9:
                for g in (0, 1, 2, 3, 5, 6, 7, 8, 10, 11, 12, 13, 15, 16, 17, 18):
                    if tm: va[g].append(tm.pop(0))
            if ks + 4 < 32:
                for qb in range(4):
                    mem[5*qb+4].append(cl(ks, qb)); tg[5*qb+4].append(f"C{ks+4}_{qb}")
                if ks % 4 == 0 and ks > 0:
                    for q, x in enumerate(cbase("s63, 0" if ks == 12 else f"s{sCo}, 4096")): sc[[3, 5, 6, 10][q]].append(x)
            def chk(tag, vreg, voff):
                tmp = Asm(); self.poll_check(tmp, tag, vreg, voff, sWS, [f"v_cmp_eq_u32 vcc, 0, v{vreg}"])
                va[0].append(tmp.lines[0]); sc[2] += tmp.lines[1:]
            if ks == 9:
                mem[1].append(f"buffer_load_dword v13, v10, s[{sWS}:{sWS+3}], 0 offen{SC}"); tg[1].append("p2")
            if ks == 10: sc[7].append("s_barrier")
            if ks == 11: need.append("p2")
            if ks == 12: chk("ctx2", 13, 10)
            if ks in (15, 31):
                for q in range(11): mem[q+9].append(pw(q))
            if ks == 16:
                for q in range(11, 20): mem[q-11].append(pw(q))
                lg = " lgkmcnt(0)"
            if ks == 17: sc[7].append("s_barrier")
            for k in range(3):
                b = MB[k]
                if ks == MR[k]:
                    for g, x in zip((0, 1, 2, 3, 5, 6, 7, 8), pr(k, b)): mem[g].append(x)
                    lg = " lgkmcnt(0)"
                if ks == MR[k] + 1:
                    ops = []
                    for e in range(8): ops += [f"v_add_f32 v{b+e}, v{b+e}, v{b+8+e}", f"v_add_f32 v{b+16+e}, v{b+16+e}, v{b+24+e}"]
                    ops += [f"v_add_f32 v{b+e}, v{b+e}, v{b+16+e}" for e in range(8)]
                    for q, x in enumerate(ops): va[(q * 15) // 24].append(x)
                    sc[15].append(f"s_add_u32 s14, s28, {k*8192}"); sc[17].append(f"s_add_u32 s14, s28, {k*8192+4096}")
                    for hh, g in ((0, 16), (1, 18)):
                        mem[g].append(f"buffer_store_dwordx4 {vr(b+4*hh,4)}, v{9 if k < 2 else 6}, s[{sWS}:{sWS+3}], s14 offen{SC}"); tg[g].append("px")
            if ks == 23: sc[7].append("s_barrier")
            XFK = int(os.environ.get("XFK", "25"))
            if ks == XFK - 1: need.append("px")
            if ks == XFK:
                mem[1].append(f"buffer_store_dword v{vNI}, off, s[{sWS}:{sWS+3}], s30{SC}"); tg[1].append("xf")
            if ks == 24:
                for q in range(6): mem[[0, 3, 5, 6, 8, 10][q]].append(f"ds_read_b128 {vr(XQ[q],4)}, v{vXn + q//5} offset:{(q%5)*1024}")
            if ks == 25:
                for k in range(3):
                    for hh in range(2): mem[[0, 3, 5, 6, 8, 10][2*k+hh]].append(f"ds_read_b128 {vr(OF[k]+4*hh,4)}, v{vUp+k} offset:{16*hh}")
                lg = " lgkmcnt(0)"
            if 26 <= ks < 29:
                k = ks - 26
                ops = []
                for e in range(4):
                    x = XQ[k] + e; xn = XQ[3+k] + e; o = OF[k] + 2 * e; t0, t1 = vT + 2, vT + 3
                    ops += [f"v_lshlrev_b32 v{t0}, 16, v{xn}", f"v_and_b32 v{t1}, 0xffff0000, v{xn}",
                            f"v_add_f32 v{o}, v{o}, v{t0}", f"v_add_f32 v{o+1}, v{o+1}, v{t1}",
                            f"v_cvt_pk_bf16_f32 v{t0}, v{o}, v{o+1}",
                            f"v_lshlrev_b32 v{XF[k]+2*e}, 16, v{x}", f"v_and_b32 v{XF[k]+2*e+1}, 0xffff0000, v{x}",
                            f"v_lshlrev_b32 v{o}, 16, v{t0}", f"v_and_b32 v{o+1}, 0xffff0000, v{t0}"]
                for q, x in enumerate(ops): va[1 + q // 2].append(x)
            if ks == 28:
                mem[0].append(f"buffer_load_dword v13, v8, s[{sWS}:{sWS+3}], 0 offen{SC}"); tg[0].append("p3")
            if ks == 29: need.append("p3")
            if ks == 30:
                chk("px", 13, 8)
                for q in range(6):
                    sc[3+2*q].append(f"s_add_u32 s14, s29, {q*4096}")
                    mem[3+2*q].append(f"buffer_load_dwordx4 {vr(PP[q//2]+4*(q%2),4)}, v{9 if q < 4 else 6}, s[{sWS}:{sWS+3}], s14 offen{SC}"); tg[3+2*q].append("pp")
            for g in range(20):
                if g == 9: sc[g].insert(0, f"s_waitcnt vmcnt({vm.need(f'C{ks}_3')})")
                if g == 19 and ks < 31: sc[g].append(f"s_waitcnt vmcnt({vm.need(f'C{ks+1}_1', *need)}){lg}")
                for t_ in tg[g]: vm.issue(t_)
            if os.environ.get("OTR"): a("s_memtime s[98:99]", "s_waitcnt lgkmcnt(0)", f"v_writelane_b32 v7, s98, {24+ks}")
            a(weave(mf, sc, mem, va))
        assert not tm
        a(stampv(23), self.cyc(59))
        for q in range(11, 20): a(pw(q))
        a("s_waitcnt vmcnt(0) lgkmcnt(0)", "s_barrier")
        PVb = [32, 64, 128]
        for k in range(3): a(pr(k, PVb[k]))
        for k in range(3):
            a(f"s_waitcnt lgkmcnt({[15, 8, 0][k]})")
            b = PVb[k]
            for e in range(0, 8, 2):
                a(f"v_pk_add_f32 {vr(b+e,2)}, {vr(b+e,2)}, {vr(b+8+e,2)}", f"v_pk_add_f32 {vr(b+16+e,2)}, {vr(b+16+e,2)}, {vr(b+24+e,2)}")
            for e in range(0, 8, 2): a(f"v_pk_add_f32 {vr(b+e,2)}, {vr(b+e,2)}, {vr(b+16+e,2)}")
            for e in range(0, 8, 2): a(f"v_pk_add_f32 {vr(b+e,2)}, {vr(b+e,2)}, {vr(PP[k]+e,2)}")
            for src in (XF[k], OF[k]):
                for e in range(4): a(f"v_cvt_pk_bf16_f32 v{b+8+e}, v{b+2*e}, v{b+2*e+1}")
                for e in range(4): a(f"v_lshlrev_b32 v{b+2*e}, 16, v{b+8+e}", f"v_and_b32 v{b+2*e+1}, 0xffff0000, v{b+8+e}")
                for e in range(4): a(f"v_pk_add_f32 {vr(b+2*e,2)}, {vr(b+2*e,2)}, {vr(src+2*e,2)}")
            for e in range(4): a(f"v_cvt_pk_bf16_f32 v{b+12+e}, v{b+2*e}, v{b+2*e+1}")
            a(f"buffer_store_dwordx4 {vr(b+12,4)}, v{vXo+k}, s[{sO}:{sO+3}], 0 offen")

    def gen(self, with_p4=True):
        a = self.a; name = self.name
        self.tail = []; self.p4 = with_p4; self.nhook = 0
        self.phase1()
        self.phase2()
        self.phase3()
        if with_p4: self.phase4()
        stamp_flush(a, 0, sW, sWS)
        a.label(f"{name}_end")
        a("s_endpgm")
        a(self.tail)
        for (k, ss, par) in self.stubs:
            a.label(f"{name}_stub{k}")
            for X in ss: a(f"s_call_b64 s[{sRet}:{sRet+1}], {name}_rare{X}{par}")
            a(f"s_branch {name}_back{k}")
        a.label(f"{name}_codeend")
        for X in range(2):
            for par in range(2): self.rare(X, par)
            self.resc(X)
        return a
```
